```python
import torch

def _softmax(x, axis=-1):
    return torch.softmax(x, dim=axis)
def _gelu(x):
    return torch.nn.functional.gelu(x, approximate="tanh")
def _silu(x):
    return torch.nn.functional.silu(x)
def _sigmoid(x):
    return torch.sigmoid(x)
def _layernorm(x, axis=-1, eps=1e-5):
    m = x.mean(dim=axis, keepdim=True)
    v = x.var(dim=axis, keepdim=True, unbiased=False)
    return (x - m) / torch.sqrt(v + eps)
def _scatter_add(tgt, idx, src, axis=0):
    return tgt.clone().index_add_(axis, idx, src)
def _segment_sum(src, seg, n):
    out = torch.zeros((n,) + src.shape[1:], dtype=src.dtype)
    return out.index_add_(0, seg, src)
def _pad(x, pw):
    flat = tuple(v for pair in reversed(pw) for v in pair)
    return torch.nn.functional.pad(x, flat)

kernel_name = 'sequential_preLN__sliding_block__dense_activation_silu__prompt'

def setup_inputs():

    _w = (lambda a: (lambda t: t.to(torch.bfloat16) if t.is_floating_point() else t)(torch.as_tensor(a)))
    def _A_setup():
        B, S, D = 1, 2048, 1024
        return {
            "x": _w((lambda *s: torch.randn(*s, dtype=torch.bfloat16) * 0.05)(B, S, D)),
            "wqkv": _w((lambda *s: torch.randn(*s, dtype=torch.bfloat16) * 0.05)(D, 3 * D)),
            "wo": _w((lambda *s: torch.randn(*s, dtype=torch.bfloat16) * 0.05)(D, D)),
        }
    _A_in = _A_setup()

    def _B_setup():
        B, S, D, F = 1, 2048, 1024, 3584
        return {
            "x": _w((lambda *s: torch.randn(*s, dtype=torch.bfloat16) * 0.05)(B, S, D)),
            "w1": _w((lambda *s: torch.randn(*s, dtype=torch.bfloat16) * 3.2)(D, F) * (D ** -0.5)),
            "w2": _w((lambda *s: torch.randn(*s, dtype=torch.bfloat16) * 0.4)(F, D) * (F ** -0.5)),
        }
    _B_in = _B_setup()

    return {
        "A_x": _A_in["x"],
        "A_wqkv": _A_in["wqkv"],
        "A_wo": _A_in["wo"],
        "B_x": _B_in["x"],
        "B_w1": _B_in["w1"],
        "B_w2": _B_in["w2"],
    }

def reference(A_x, A_wqkv, A_wo, B_x, B_w1, B_w2):
    def _A_ref(x, wqkv, wo):
        B, S, D = x.shape
        H = 32; Dh = D // H; W = 256
        qkv = (lambda x, *d: x.permute(*d))((x @ wqkv).reshape(B, S, 3, H, Dh), 2, 0, 3, 1, 4)
        q, k, v = qkv[0], qkv[1], qkv[2]
        scores = torch.einsum("bhqd,bhkd->bhqk", q, k) * (Dh ** -0.5)
        idx = torch.arange(S)
        mask = (idx[:, None] - idx[None, :] >= 0) & (idx[:, None] - idx[None, :] < W)
        scores = torch.where(mask[None, None], scores, -1e9)
        p = _softmax(scores, axis=-1)
        o = torch.einsum("bhqk,bhkd->bhqd", p, v)
        return (lambda x, *d: x.permute(*d))(o, 0, 2, 1, 3).reshape(B, S, D) @ wo

    def _B_ref(x, w1, w2):
        h = torch.einsum("bsd,df->bsf", x, w1)
        h = _silu(h)
        out = torch.einsum("bsf,fd->bsd", h, w2)
        return out

    x = A_x
    h = x + _A_ref(_layernorm(x, axis=-1), A_wqkv, A_wo)
    h2 = h + _B_ref(_layernorm(h, axis=-1), B_w1, B_w2)
    return h2
```

```python
class Asm:
    def __init__(self):
        self.lines = []
        self.launches = []
        self.kds = []
        self._lab = 0
    def e(self, s=""):
        for ln in s.split("\n"):
            self.lines.append("    " + ln.strip() if ln.strip() and not ln.strip().endswith(":") else ln.strip())
    def label(self, name):
        self.lines.append(name + ":")
    def newlabel(self, p="L"):
        self._lab += 1
        return f"{p}_{self._lab}"
    def begin_kernel(self, name):
        self.lines += [".text", f".globl {name}", ".p2align 8", f".type {name},@function", f"{name}:"]
    def end_kernel(self, name, vgpr, sgpr=102, accum=None, wgy=False):
        if accum is None:
            accum = min(256, (vgpr + 3) // 4 * 4)
        kd = [f".amdhsa_kernel {name}",
              f"  .amdhsa_next_free_vgpr {vgpr}",
              f"  .amdhsa_next_free_sgpr {sgpr}",
              f"  .amdhsa_accum_offset {accum}",
              "  .amdhsa_group_segment_fixed_size 0",
              "  .amdhsa_kernarg_size 72",
              "  .amdhsa_user_sgpr_count 2",
              "  .amdhsa_user_sgpr_kernarg_segment_ptr 1",
              "  .amdhsa_system_sgpr_workgroup_id_x 1"]
        if wgy:
            kd.append("  .amdhsa_system_sgpr_workgroup_id_y 1")
        kd.append(".end_amdhsa_kernel")
        self.kds.append("\n".join(kd))
    def launch(self, name, grid, block, lds):
        self.launches.append(f"; @launch kernel={name} grid=({grid[0]},{grid[1]},{grid[2]}) block=({block[0]},{block[1]},{block[2]}) lds={lds}")
    def text(self, header=""):
        out = []
        if header:
            out.append(header.rstrip("\n"))
        out += self.launches
        out.append('.amdgcn_target "amdgcn-amd-amdhsa--gfx950"')
        out += self.lines
        out.append('.section .rodata,"a"')
        for kd in self.kds:
            out.append(".p2align 6")
            out.append(kd)
        return "\n".join(out) + "\n"
```

```python
import re

TRANS = ("v_exp_f32", "v_log_f32", "v_rcp_f32", "v_rsq_f32", "v_sqrt_f32", "v_sin_f32", "v_cos_f32", "v_rcp_iflag_f32")
_reg_re = re.compile(r"^(-|\|)?(abs\()?([vsa])(\d+|\[(\d+):(\d+)\])\)?\|?$")

def regs_of(tok):
    tok = tok.strip()
    if tok in ("vcc", "vcc_lo", "vcc_hi"): return {("s", "vcc")}
    if tok in ("exec", "exec_lo", "exec_hi"): return {("s", "exec")}
    if tok == "m0": return {("s", "m0")}
    m = _reg_re.match(tok)
    if not m: return set()
    k = m.group(3)
    if m.group(5) is not None:
        return {(k, i) for i in range(int(m.group(5)), int(m.group(6)) + 1)}
    return {(k, int(m.group(4)))}

class Ins:
    __slots__ = ("text", "mn", "ops", "mods", "cls", "dst", "src", "states", "passes", "srcC", "srcAB", "store_data", "dpp", "lds")
    def __init__(self, text):
        self.text = text
        t = text.split(";")[0].strip()
        parts = t.split(None, 1)
        self.mn = mn = parts[0]
        rest = parts[1] if len(parts) > 1 else ""
        ops, depth, cur = [], 0, ""
        for ch in rest:
            if ch in "[(": depth += 1
            if ch in "])": depth -= 1
            if ch == "," and depth == 0:
                ops.append(cur.strip()); cur = ""
            else:
                cur += ch
        if cur.strip(): ops.append(cur.strip())
        mods = ""
        if ops:
            last = ops[-1].split(None, 1)
            ops[-1] = last[0]
            if len(last) > 1: mods = last[1]
        self.ops, self.mods = ops, mods
        self.states = 1
        self.passes = 0
        self.srcC = set(); self.srcAB = set(); self.store_data = set()
        self.dpp = ("_dpp" in mn) or ("row_" in mods) or ("quad_perm" in mods)
        self.lds = False
        R = [regs_of(o) for o in ops]
        U = lambda xs: set().union(*xs) if xs else set()
        base = re.sub(r"_(e32|e64|dpp|sdwa)$", "", mn)
        if mn == "s_nop":
            self.cls = "nop"; self.states = int(ops[0], 0) + 1; self.dst = set(); self.src = set()
        elif mn.startswith("v_mfma"):
            self.cls = "mfma"
            self.dst = R[0]; self.srcAB = R[1] | R[2]; self.srcC = R[3]; self.src = self.srcAB | self.srcC
            self.passes = 8 if "32x32x16" in mn else 4 if "16x16x32" in mn else 16
        elif mn.startswith("v_"):
            self.cls = "trans" if base in TRANS else "dot" if base.startswith("v_dot") else "valu"
            if base.startswith("v_cmpx"):
                self.dst = R[0] | {("s", "exec")}; self.src = U(R[1:])
            elif base.startswith("v_permlane") and "swap" in base:
                self.dst = R[0] | R[1]; self.src = R[0] | R[1]
            elif base in ("v_add_co_u32", "v_sub_co_u32", "v_subrev_co_u32", "v_addc_co_u32", "v_subb_co_u32", "v_mad_u64_u32", "v_div_scale_f32"):
                self.dst = R[0] | R[1]; self.src = U(R[2:])
            elif base in ("v_fmac_f32", "v_dot2c_f32_bf16", "v_pk_fmac_f16", "v_writelane_b32", "v_fmaak_f32x"):
                self.dst = R[0]; self.src = U(R)
            else:
                self.dst = R[0]; self.src = U(R[1:])
                if self.dpp: self.src |= R[0]
        elif mn.startswith("ds_"):
            self.cls = "ds"
            if mn.startswith("ds_read") or mn.startswith("ds_bpermute") or mn.startswith("ds_permute") or mn.startswith("ds_swizzle") or "_rtn" in mn:
                self.dst = R[0]; self.src = U(R[1:])
            else:
                self.dst = set(); self.src = U(R)
        elif mn.startswith("buffer_") or mn.startswith("global_") or mn.startswith("flat_"):
            self.cls = "vmem"
            modl = mods.split()
            if mn in ("buffer_wbl2", "buffer_inv"):
                self.dst = set(); self.src = set()
            elif "lds" in modl or "_lds_" in mn:
                self.lds = True; self.dst = set(); self.src = U(R) | {("s", "m0")}
            elif "load" in mn:
                self.dst = R[0]; self.src = U(R[1:])
            elif "atomic" in mn:
                self.src = U(R); self.dst = R[0] if "sc0" in modl else set()
            else:
                self.dst = set(); self.src = U(R)
                if "x4" in mn or "x3" in mn:
                    self.store_data = R[0] if mn.startswith("buffer_") else R[1]
        elif mn.startswith("s_"):
            self.cls = "salu"
            if mn.startswith("s_cmp") or mn.startswith("s_cbranch") or mn in ("s_branch", "s_waitcnt", "s_barrier", "s_endpgm", "s_sleep", "s_wakeup", "s_setprio", "s_bitcmp0_b32", "s_bitcmp1_b32"):
                self.dst = set(); self.src = U(R)
            else:
                self.dst = R[0] if R else set(); self.src = U(R[1:])
                if "saveexec" in mn: self.dst = self.dst | {("s", "exec")}
        else:
            raise ValueError("unknown instruction " + text)

def vset(s): return {r for r in s if r[0] in "va"}
def sset(s): return {r for r in s if r[0] == "s"}
VALU = ("valu", "trans", "dot")

def need(p, c):
    n = 0
    if p.cls in VALU:
        pv, ps = vset(p.dst), sset(p.dst)
        if c.cls == "mfma" and pv & c.src: n = max(n, 2)
        if c.cls in VALU:
            if p.cls == "trans" and c.cls != "trans" and pv & c.src: n = max(n, 1)
            if p.cls == "dot" and pv & (c.src | c.dst) and c.mn != p.mn: n = max(n, 3)
            if p.cls == "dot" and c.mn == p.mn and pv & set().union(*[regs_of(o) for o in c.ops[1:3]]): n = max(n, 3)
            if c.mn.startswith(("v_readlane", "v_readfirstlane")) and pv & c.src: n = max(n, 1)
            if c.mn.startswith("v_permlane") and pv & c.src: n = max(n, 2)
            if c.dpp and pv & c.src: n = max(n, 2)
            if (ps - {("s", "exec")}) & c.src:
                n = max(n, 4 if c.mn.startswith(("v_readlane", "v_writelane", "v_div_fmas")) else 2)
            if ("s", "vcc") in ps and c.mn.startswith(("v_cndmask", "v_addc", "v_subb", "v_div_fmas")) : n = max(n, 2)
            if ("s", "exec") in ps and (c.dpp or c.mn.startswith(("v_readlane", "v_readfirstlane", "v_writelane", "v_permlane"))): n = max(n, 5)
            if "dst_sel" in p.mods and "dst_sel:DWORD" not in p.mods and pv & (c.src | c.dst): n = max(n, 1)
        if c.cls == "mfma" and ("s", "exec") in ps: n = max(n, 4)
        if c.cls == "vmem" and ps & c.src: n = max(n, 5)
        if p.cls == "dot" and c.cls in ("vmem", "ds", "mfma") and pv & c.src: n = max(n, 3)
    if p.cls == "mfma":
        P = p.passes
        if c.cls == "mfma":
            if p.dst & c.srcAB: n = max(n, P + 4)
            if p.dst & c.srcC:
                if not (p.dst == c.srcC and p.passes == c.passes): n = max(n, P + 2)
            elif p.dst & c.dst: n = max(n, P + 2)
        elif c.cls in VALU:
            if p.dst & (c.src | c.dst): n = max(n, P + 4)
            if p.srcC & c.dst: n = max(n, P - 1)
        elif c.cls in ("vmem", "ds"):
            if p.dst & (c.src | c.dst): n = max(n, P + 4)
            if p.srcC & c.dst: n = max(n, P - 1)
    if p.store_data:
        if c.cls in VALU + ("mfma",) and p.store_data & c.dst: n = max(n, 2)
        elif p.store_data & c.dst: n = max(n, 1)
    if p.cls == "salu" and ("s", "m0") in p.dst and (c.lds or "addtid" in c.mn): n = max(n, 1)
    return n

WIN = 24
def fix(lines, verbose=False):
    items = []
    for ln in lines:
        s = ln.split(";")[0].strip()
        if not s or s.startswith(".") or s.startswith("//"):
            items.append(("other", ln, None))
        elif s.endswith(":"):
            items.append(("label", ln, s[:-1]))
        else:
            items.append(("ins", ln, Ins(s)))
    labels = {it[2]: i for i, it in enumerate(items) if it[0] == "label"}
    out = []
    win = []
    ninserted = 0
    def required(win, c, extra=0):
        d = extra; n = 0
        for p in reversed(win):
            k = need(p, c) - d
            if k > n: n = k
            d += p.states
            if d > WIN: break
        return n
    def emit_nop(n):
        nonlocal ninserted
        while n > 0:
            k = min(n, 16)
            out.append(f"    s_nop {k-1}")
            win.append(Ins(f"s_nop {k-1}"))
            ninserted += 1
            n -= k
    for i, (kind, text, x) in enumerate(items):
        if kind == "other":
            out.append(text)
            if text.strip().startswith(".p2align 8"): win.clear()
            continue
        if kind == "label":
            out.append(text); continue
        n = required(win, x)
        if x.mn.startswith("s_cbranch") or x.mn == "s_branch":
            tgt = labels.get(x.ops[0])
            assert tgt is not None, text
            d = 1; j = tgt; cnt = 0
            while j < len(items) and d <= WIN:
                if items[j][0] == "ins":
                    c = items[j][2]
                    n = max(n, required(win, c, d))
                    d += c.states
                    if c.mn in ("s_branch", "s_endpgm"): break
                j += 1
        if n > 0:
            if verbose: print("nop", n, "before", text)
            emit_nop(n)
        out.append(text)
        win.append(x)
        if x.mn in ("s_branch", "s_endpgm"): win.clear()
        if len(win) > 64: del win[:32]
    return out
```

```python
import sys, argparse, struct
from asmlib import Asm
import hazard

MB = 1 << 20
WS_XH, WS_Q, WS_K, WS_V, WS_O, WS_H, WS_H1 = 0, 4 * MB, 8 * MB, 12 * MB, 16 * MB, 20 * MB, 24 * MB
WS_STAT, WS_CS = 40 * MB, 41 * MB
WS_BYTES = 256 * MB
KA_X, KA_WQKV, KA_WO, KA_BX, KA_W1, KA_W2, KA_OUT, KA_DBG, KA_WS = 0, 8, 16, 24, 32, 40, 48, 56, 64
LOG2E = 1.4426950408889634

def f32(x): return "0x%08x" % struct.unpack("<I", struct.pack("<f", x))[0]
def v(a, n=1): return f"v{a}" if n == 1 else f"v[{a}:{a+n-1}]"
def s(a, n=1): return f"s{a}" if n == 1 else f"s[{a}:{a+n-1}]"

def srd(A, d, base, nbytes):
    A.e(f"s_mov_b32 s{d}, s{base}\ns_and_b32 s{d+1}, s{base+1}, 0xffff\ns_mov_b32 s{d+2}, {nbytes}\ns_mov_b32 s{d+3}, 0x20000")

def xg_sum(A, r, t):
    A.e(f"v_mov_b32 v{t}, v{r}\nv_permlane16_swap_b32 v{r}, v{t}\nv_add_f32 v{r}, v{r}, v{t}")
    A.e(f"v_mov_b32 v{t}, v{r}\nv_permlane32_swap_b32 v{r}, v{t}\nv_add_f32 v{r}, v{r}, v{t}")

def xg_max(A, r, t):
    A.e(f"v_mov_b32 v{t}, v{r}\nv_permlane16_swap_b32 v{r}, v{t}\nv_max_f32 v{r}, v{r}, v{t}")
    A.e(f"v_mov_b32 v{t}, v{r}\nv_permlane32_swap_b32 v{r}, v{t}\nv_max_f32 v{r}, v{r}, v{t}")

def round_bf16(A, r):
    A.e(f"v_cvt_pk_bf16_f32 v{r}, v{r}, v{r}\nv_and_b32 v{r}, 0xffff0000, v{r}")

def ln_finish(A, vsum, vm2, n, t):
    A.e(f"v_mul_f32 v{vsum}, {f32(1.0/n)}, v{vsum}")
    round_bf16(A, vsum)
    A.e(f"v_mul_f32 v{vm2}, {f32(1.0/n)}, v{vm2}")
    round_bf16(A, vm2)
    A.e(f"v_add_f32 v{vm2}, {f32(1e-5)}, v{vm2}")
    round_bf16(A, vm2)
    A.e(f"v_sqrt_f32 v{vm2}, v{vm2}")
    round_bf16(A, vm2)
    A.e(f"v_rcp_f32 v{vm2}, v{vm2}")

def gen_pre(A):
    name = "pre_kernel"
    A.begin_kernel(name)
    A.e(f"""
s_cmp_ge_u32 s2, 240
s_cbranch_scc1 pre_end
s_load_dwordx2 s[4:5], s[0:1], {KA_X}
s_load_dwordx2 s[6:7], s[0:1], {KA_WS}
s_load_dwordx2 s[20:21], s[0:1], {KA_W1}
v_and_b32 v1, 63, v0                 ; lane
v_lshrrev_b32 v2, 6, v0              ; wave
s_waitcnt lgkmcnt(0)
""")
    srd(A, 8, 4, 4 * MB)
    srd(A, 12, 6, WS_BYTES)
    srd(A, 16, 20, 1024 * 3584 * 2)
    A.e("s_cmp_ge_u32 s2, 128\ns_cbranch_scc1 pre_colsum")
    A.e(f"""
v_and_b32 v3, 15, v1                 ; m
v_lshrrev_b32 v4, 4, v1              ; g
v_lshlrev_b32 v5, 11, v3             ; m*2048
v_lshl_add_u32 v5, v4, 4, v5         ; + g*16
v_lshl_add_u32 v5, v2, 9, v5         ; + w*512
s_lshl_b32 s3, s2, 15                ; 16 rows * 2048
""")
    for b in range(8):
        A.e(f"buffer_load_dwordx4 {v(16+4*b,4)}, v5, s[8:11], s3 offen offset:{64*b}")
    for b in range(8):
        A.e(f"s_waitcnt vmcnt({7-b})")
        for d in range(4):
            r = 16 + 4 * b + d
            A.e(f"v_lshlrev_b32 v{64+8*b+2*d}, 16, v{r}\nv_and_b32 v{64+8*b+2*d+1}, 0xffff0000, v{r}")
    A.e("v_pk_add_f32 v[8:9], v[64:65], v[66:67]")
    for i in range(2, 32):
        A.e(f"v_pk_add_f32 v[8:9], v[8:9], {v(64+2*i,2)}")
    A.e("v_add_f32 v8, v8, v9")
    xg_sum(A, 8, 10)
    A.e(f"v_mul_f32 v12, {f32(1.0/256)}, v8\nv_mov_b32 v10, 0\nv_mov_b32 v11, 0")
    for i in range(32):
        A.e(f"v_pk_add_f32 v[14:15], {v(64+2*i,2)}, v[12:13] op_sel_hi:[1,0] neg_lo:[0,1] neg_hi:[0,1]")
        A.e(f"v_pk_fma_f32 v[10:11], v[14:15], v[14:15], v[10:11]")
    A.e("v_add_f32 v9, v10, v11")
    xg_sum(A, 9, 10)
    A.e(f"""
v_lshlrev_b32 v10, 5, v3
v_lshl_add_u32 v11, v2, 3, v10
ds_write_b64 v11, v[8:9]
s_waitcnt lgkmcnt(0)
s_barrier
ds_read_b128 v[16:19], v10
ds_read_b128 v[20:23], v10 offset:16
s_waitcnt lgkmcnt(0)
v_add_f32 v8, v16, v18
v_add_f32 v9, v20, v22
v_add_f32 v8, v8, v9
v_add_f32 v9, v17, v19
v_add_f32 v10, v21, v23
v_add_f32 v9, v9, v10                 ; sum M2
v_mul_f32 v10, {f32(0.25)}, v8        ; 256*mean
""")
    for r in (16, 18, 20, 22):
        A.e(f"v_sub_f32 v11, v{r}, v10\nv_mul_f32 v12, {f32(1.0/256)}, v11\nv_fma_f32 v9, v11, v12, v9")
    ln_finish(A, 8, 9, 1024, 10)
    A.e(f"v_mov_b32 v12, v8\nv_mov_b32 v10, v9")
    A.e(f"v_lshlrev_b32 v5, 4, v1\nv_lshl_add_u32 v5, v2, 13, v5")
    for b in range(8):
        for d in range(4):
            p = 64 + 8 * b + 2 * d
            A.e(f"v_pk_add_f32 {v(p,2)}, {v(p,2)}, v[12:13] op_sel_hi:[1,0] neg_lo:[0,1] neg_hi:[0,1]")
            A.e(f"v_cvt_pk_bf16_f32 v14, v{p}, v{p+1}")
            A.e(f"v_lshlrev_b32 v{p}, 16, v14\nv_and_b32 v{p+1}, 0xffff0000, v14")
            A.e(f"v_pk_mul_f32 {v(p,2)}, {v(p,2)}, v[10:11] op_sel_hi:[1,0]")
            A.e(f"v_cvt_pk_bf16_f32 v{16+4*b+d}, v{p}, v{p+1}")
        if b == 4:
            A.e("v_add_u32 v5, 4096, v5")
        A.e(f"buffer_store_dwordx4 {v(16+4*b,4)}, v5, s[12:15], s3 offen offset:{1024*(b%4)}")
        if b == 3: pass
    A.e("s_endpgm")
    A.label("pre_colsum")
    A.e(f"""
s_sub_u32 s3, s2, 128
s_lshl_b32 s22, s3, 6
v_and_b32 v3, 3, v0
v_lshrrev_b32 v4, 2, v0
v_mul_u32_u24 v5, 7168, v4
v_lshl_add_u32 v5, v3, 4, v5
""")
    for i in range(16):
        A.e(f"s_add_u32 s23, s22, {i*64*7168}\nbuffer_load_dwordx4 {v(16+4*i,4)}, v5, s[16:19], s23 offen")
    for j in range(8): A.e(f"v_mov_b32 v{8+j}, 0")
    for i in range(16):
        A.e(f"s_waitcnt vmcnt({15-i})")
        for d in range(4):
            r = 16 + 4 * i + d
            A.e(f"v_lshlrev_b32 v6, 16, v{r}\nv_and_b32 v7, 0xffff0000, v{r}\nv_pk_add_f32 {v(8+2*d,2)}, {v(8+2*d,2)}, v[6:7]")
    for j in range(8):
        r = 8 + j
        A.e(f"v_add_f32_dpp v{r}, v{r}, v{r} row_ror:4 row_mask:0xf bank_mask:0xf")
    for j in range(8):
        r = 8 + j
        A.e(f"v_add_f32_dpp v{r}, v{r}, v{r} row_ror:8 row_mask:0xf bank_mask:0xf")
    for j in range(8):
        xg_sum(A, 8 + j, 6)
    A.e(f"""
v_lshlrev_b32 v6, 5, v3
v_lshl_add_u32 v7, v2, 7, v6
ds_write_b128 v7, v[8:11]
ds_write_b128 v7, v[12:15] offset:16
s_waitcnt lgkmcnt(0)
s_barrier
v_and_b32 v6, 31, v0
v_lshlrev_b32 v6, 2, v6
ds_read_b32 v8, v6
ds_read_b32 v9, v6 offset:128
ds_read_b32 v10, v6 offset:256
ds_read_b32 v11, v6 offset:384
s_lshl_b32 s22, s3, 7
s_add_u32 s22, s22, {WS_CS}
s_waitcnt lgkmcnt(0)
v_add_f32 v8, v8, v9
v_add_f32 v10, v10, v11
v_add_f32 v8, v8, v10
v_cmp_gt_u32 vcc, 32, v0
s_and_saveexec_b64 s[24:25], vcc
s_cbranch_execz pre_end
buffer_store_dword v8, v6, s[12:15], s22 offen
""")
    A.label("pre_end")
    A.e("s_endpgm")
    A.end_kernel(name, 128, 40)
    A.launch(name, (240, 1, 1), (256, 1, 1), 1024)

class Gemm:
    def __init__(self, name, TN, K, NS, a_off, b_ka, ldb, kperm, RM, RN):
        self.name, self.TM, self.TN, self.K, self.NS = name, 128, TN, K, NS
        self.a_off, self.b_ka, self.ldb, self.kperm, self.RM, self.RN = a_off, b_ka, ldb, kperm, RM, RN
        self.KB = K // 32
        self.NK = K // 64
        self.MT = self.TM // 32
        self.NT = TN // 32
        self.nfull = TN // 64
        self.half = (TN % 64) != 0
        self.a_stage = self.TM * 128
        self.b_base = [NS * self.a_stage + j * NS * 8192 for j in range(self.nfull)]
        self.h_base = NS * self.a_stage + self.nfull * NS * 8192
        self.lds_ring = self.h_base + (NS * 4096 if self.half else 0)
        self.lds = self.lds_ring
        self.ACC = 0
    def acc(self, mt, nt): return self.ACC + (nt * self.MT + mt) * 4

    def tiles(self):
        raise NotImplementedError
    def swapped(self, nt): return True
    def b_cols(self, A): raise NotImplementedError
    def blk_delta(self, j): return 128 * j
    def cons_pro(self, A): pass
    def prod_pro(self, A): return 0
    def prod_after0(self, A): pass
    def epilogue(self, A): raise NotImplementedError

    def gen(self, A):
        n = self.name
        MT, NT, NS, NK = self.MT, self.NT, self.NS, self.NK
        A.begin_kernel(n)
        A.e(f"""
s_cmp_ge_u32 s2, 256
s_cbranch_scc1 {n}_end
s_load_dwordx2 s[4:5], s[0:1], {KA_WS}
s_load_dwordx2 s[6:7], s[0:1], {self.b_ka}
s_load_dwordx2 s[40:41], s[0:1], {KA_X}
s_load_dwordx2 s[42:43], s[0:1], {KA_OUT}
v_lshrrev_b32 v2, 6, v0
v_and_b32 v1, 63, v0                 ; lane
v_readfirstlane_b32 s20, v2
s_and_b32 s21, s2, 7                 ; xcd
s_lshr_b32 s22, s2, 3
""")
        RM, RN = self.RM, self.RN
        gm = 16 // RM
        lg = lambda x: x.bit_length() - 1
        A.e(f"""
s_and_b32 s23, s21, {gm-1}
s_lshl_b32 s23, s23, {lg(RM)}
s_and_b32 s24, s22, {RM-1}
s_add_u32 s23, s23, s24
s_lshr_b32 s24, s21, {lg(gm)}
s_lshl_b32 s24, s24, {lg(RN)}
s_lshr_b32 s25, s22, {lg(RM)}
s_add_u32 s24, s24, s25
""")
        self.b_cols(A)
        A.e("s_waitcnt lgkmcnt(0)")
        srd(A, 8, 4, WS_BYTES)
        srd(A, 12, 6, self.K * self.ldb)
        A.e(f"s_cmp_ge_u32 s20, 4\ns_cbranch_scc1 {n}_prod")
        FA = [8, 8 + 4 * MT + 4 * NT]
        FB = [FA[0] + 4 * MT, FA[1] + 4 * MT]
        nxt = FA[1] + 4 * MT + 4 * NT
        self.VA = nxt; nxt += 1
        self.VB = nxt; nxt += NT
        nxt = (nxt + 3) // 4 * 4
        self.ACC = nxt; nxt += MT * NT * 4
        self.VX = nxt
        self.FA, self.FB = FA, FB
        A.e(f"""
s_lshr_b32 s28, s20, 1               ; wm
s_and_b32 s29, s20, 1                ; wn
v_lshrrev_b32 v3, 4, v1              ; g
v_and_b32 v4, 15, v1                 ; m
s_mul_i32 s30, s28, {MT*2048}
v_lshl_add_u32 v{self.VA}, v1, 4, s30
v_bfe_u32 v5, v1, 2, 2               ; r
v_and_b32 v6, 3, v1                  ; c
""")
        if self.kperm:
            A.e("v_lshl_add_u32 v7, v3, 2, v5          ; row = 4g + r\nv_bfe_u32 v2, v7, 1, 2               ; f")
        else:
            A.e("v_lshl_add_u32 v7, v3, 3, v5          ; row = 8g + r")
            A.e("v_lshrrev_b32 v2, 1, v5\nv_and_b32 v8, 1, v3\nv_lshl_or_b32 v2, v8, 1, v2")
        A.e("v_mov_b32 v9, v7\nv_lshlrev_b32 v7, 7, v7\nv_lshl_add_u32 v7, v6, 3, v7")
        for t, (kind, blk, seg) in enumerate(self.tiles()):
            vb = self.VB + t
            if kind == "F":
                A.e(f"s_mul_i32 s30, s29, {seg[1]}\ns_add_u32 s30, s30, {seg[0]}")
                A.e(f"v_xor_b32 v8, s30, v2\nv_lshl_add_u32 v{vb}, v8, 5, v7")
                A.e(f"s_mul_i32 s30, s29, {blk[1]*NS*8192}\ns_add_u32 s30, s30, {self.b_base[0] + blk[0]*NS*8192}")
                A.e(f"v_add_u32 v{vb}, s30, v{vb}")
            else:
                assert self.kperm
                A.e(f"v_bfe_u32 v8, v9, 2, 1\nv_xor_b32 v8, s29, v8\nv_lshlrev_b32 v8, 5, v8")
                A.e(f"v_lshl_add_u32 v8, v9, 6, v8\nv_lshl_add_u32 v8, v6, 3, v8\nv_add_u32 v{vb}, {self.h_base}, v8")
        self.cons_pro(A)
        for r in range(self.ACC, self.ACC + MT * NT * 4, 2):
            A.e(f"v_mov_b64 {v(r,2)}, 0")
        kinds = [t[0] for t in self.tiles()]
        def reads(st, sub, fs):
            out = []
            for t in range(NT):
                for hi in range(2):
                    rows = 32 * sub + (16 if self.kperm else 4) * hi
                    off = st * 8192 + rows * 128 if kinds[t] == "F" else st * 4096 + rows * 64
                    out.append(f"ds_read_b64_tr_b16 {v(FB[fs]+4*t+2*hi,2)}, v{self.VB+t} offset:{off}")
                if t == 0:
                    for mt in range(MT):
                        out.append(f"ds_read_b128 {v(FA[fs]+4*mt,4)}, v{self.VA} offset:{st*self.a_stage + mt*2048 + sub*1024}")
            return out
        def mfmas(fs):
            out = []
            for t in range(NT):
                for mt in range(MT):
                    a, w = v(FA[fs] + 4 * mt, 4), v(FB[fs] + 4 * t, 4)
                    c = v(self.acc(mt, t), 4)
                    out.append(f"v_mfma_f32_16x16x32_bf16 {c}, {w}, {a}, {c}" if self.swapped(t) else
                               f"v_mfma_f32_16x16x32_bf16 {c}, {a}, {w}, {c}")
            return out
        def interleave(m, r):
            for i in range(max(len(m), len(r))):
                if i < len(m): A.e(m[i])
                if i < len(r): A.e(r[i])
        def step(st, last=False):
            A.e("s_waitcnt lgkmcnt(0)")
            interleave(mfmas(0), reads(st, 1, 1))
            A.e("s_waitcnt lgkmcnt(0)")
            if last:
                interleave(mfmas(1), [])
            else:
                A.e("s_barrier")
                interleave(mfmas(1), reads((st + 1) % NS, 0, 0))
        A.e("s_barrier")
        for r in reads(0, 0, 0): A.e(r)
        body = NK - 1
        peel = body % NS
        st = 0
        for i in range(peel):
            step(st); st = (st + 1) % NS
        iters = body // NS
        A.e(f"s_mov_b32 s31, {iters}")
        A.label(f"{n}_cloop")
        for i in range(NS):
            step(st); st = (st + 1) % NS
        A.e(f"s_sub_u32 s31, s31, 1\ns_cmp_lg_u32 s31, 0\ns_cbranch_scc1 {n}_cloop")
        step(st, last=True)
        self.epilogue(A)
        A.e("s_endpgm")
        A.label(f"{n}_prod")
        RTW = self.TM // 64
        A.e(f"""
s_sub_u32 s28, s20, 4                ; w
s_mul_i32 s30, s28, {RTW*self.KB*1024}
v_lshl_add_u32 v3, v1, 4, s30        ; A voffset
s_mul_i32 s16, s23, {(self.TM//16)*self.KB*1024}
s_add_u32 s16, s16, {self.a_off}
s_mov_b32 s17, 0
s_mul_i32 s32, s28, {RTW*2048}
s_lshl_b32 s33, s28, 11
s_lshl_b32 s34, s28, 10
v_lshrrev_b32 v6, 3, v1              ; l>>3
s_lshl_b32 s30, s28, 4
v_add_u32 v6, s30, v6                ; row = 16w + (l>>3)
v_mul_u32_u24 v6, {self.ldb}, v6
v_and_b32 v7, 1, v1
v_lshl_add_u32 v6, v7, 4, v6
v_add_u32 v6, s26, v6
v_bfe_u32 v7, v1, 1, 2               ; seg'
""")
        if self.kperm:
            A.e(f"v_lshrrev_b32 v8, 4, v1\nv_xor_b32 v8, v7, v8\nv_lshl_add_u32 v4, v8, 5, v6\nv_add_u32 v5, {8*self.ldb}, v4")
        else:
            A.e(f"v_bfe_u32 v8, v1, 4, 1\nv_xor_b32 v8, v7, v8\nv_lshl_add_u32 v4, v8, 5, v6")
            A.e(f"v_xor_b32 v8, 2, v8\nv_lshl_add_u32 v5, v8, 5, v6\nv_add_u32 v5, {8*self.ldb}, v5")
        if self.half:
            A.e(f"""
v_lshrrev_b32 v6, 2, v1
v_add_u32 v6, s30, v6                ; row = 16w + (l>>2)
v_mul_u32_u24 v6, {self.ldb}, v6
v_and_b32 v7, 1, v1
v_lshl_add_u32 v6, v7, 4, v6
v_add_u32 v6, s27, v6
v_bfe_u32 v7, v1, 1, 1
v_bfe_u32 v8, v1, 4, 1
v_xor_b32 v8, v7, v8
v_lshl_add_u32 v6, v8, 5, v6
""")
        self.prod_pro(A)
        def issue(st):
            for i in range(RTW):
                A.e(f"s_add_u32 m0, s32, {st*self.a_stage + i*2048}\ns_add_u32 s18, s16, {i*self.KB*1024}")
                A.e("buffer_load_dwordx4 v3, s[8:11], s18 offen lds\nbuffer_load_dwordx4 v3, s[8:11], s18 offen offset:1024 lds")
            for j in range(self.nfull):
                A.e(f"s_add_u32 m0, s33, {self.b_base[j] + st*8192}\ns_add_u32 s18, s17, {self.blk_delta(j)}")
                A.e("buffer_load_dwordx4 v4, s[12:15], s18 offen lds")
                A.e(f"s_add_u32 m0, s33, {self.b_base[j] + st*8192 + 1024}")
                A.e("buffer_load_dwordx4 v5, s[12:15], s18 offen lds")
            if self.half:
                A.e(f"s_add_u32 m0, s34, {self.h_base + st*4096}")
                A.e("buffer_load_dwordx4 v6, s[12:15], s17 offen lds")
            A.e(f"s_add_u32 s16, s16, 2048\ns_add_u32 s17, s17, {64*self.ldb}")
        L = 2 * RTW + 2 * self.nfull + (1 if self.half else 0)
        for st in range(NS): issue(st)
        A.e(f"s_waitcnt vmcnt({(NS-1)*L})\ns_barrier")
        self.prod_after0(A)
        steady = NK - NS
        peel = steady % NS
        i = 1
        def pstep(i, do_issue, left):
            A.e(f"s_waitcnt vmcnt({left*L})\ns_barrier")
            if do_issue: issue((i - 1) % NS)
        for _ in range(peel):
            pstep(i, True, NS - 2); i += 1
        if steady // NS:
            A.e(f"s_mov_b32 s31, {steady // NS}")
            A.label(f"{n}_ploop")
            for _ in range(NS):
                pstep(i, True, NS - 2); i += 1
            A.e(f"s_sub_u32 s31, s31, 1\ns_cmp_lg_u32 s31, 0\ns_cbranch_scc1 {n}_ploop")
        i = steady + 1
        while i < NK:
            pstep(i, False, NK - 1 - i); i += 1
        A.label(f"{n}_end")
        A.e("s_endpgm")
        A.end_kernel(n, 256, 64)
        A.launch(n, (256, 1, 1), (512, 1, 1), self.lds)

    def pack(self, A, dst, c0, c1):
        A.e(f"v_cvt_pk_bf16_f32 v{dst}, v{c0}, v{c0+1}\nv_cvt_pk_bf16_f32 v{dst+1}, v{c0+2}, v{c0+3}")
        A.e(f"v_cvt_pk_bf16_f32 v{dst+2}, v{c1}, v{c1+1}\nv_cvt_pk_bf16_f32 v{dst+3}, v{c1+2}, v{c1+3}")

class QKV(Gemm):
    def __init__(self): super().__init__("qkv_kernel", 192, 1024, 4, WS_XH, KA_WQKV, 6144, False, 8, 4)
    def tiles(self): return [("F", (t >> 1, 0), (t & 1, 2)) for t in range(6)]
    def swapped(self, nt): return nt < 4
    def b_cols(self, A): A.e("s_lshl_b32 s26, s24, 7")
    def blk_delta(self, j): return 2048 * j
    def epilogue(self, A):
        MT = self.MT
        A.e(f"""
s_lshl_b32 s30, s24, 1
s_add_u32 s30, s30, s29
s_lshl_b32 s30, s30, 7               ; head*128
s_lshl_b32 s31, s23, 3
s_add_u32 s30, s30, s31
s_lshl_b32 s31, s28, 2
s_add_u32 s30, s30, s31
s_lshl_b32 s30, s30, 10
v_lshlrev_b32 v2, 4, v1
s_add_u32 s32, s30, {WS_Q}
s_add_u32 s33, s30, {WS_K}
s_add_u32 s34, s30, {WS_V}
""")
        t = 8
        for mt in range(MT):
            self.pack(A, t, self.acc(mt, 0), self.acc(mt, 1))
            A.e(f"buffer_store_dwordx4 {v(t,4)}, v2, s[8:11], s32 offen offset:{mt*1024}"); t += 4
        for mt in range(MT):
            self.pack(A, t, self.acc(mt, 2), self.acc(mt, 3))
            A.e(f"buffer_store_dwordx4 {v(t,4)}, v2, s[8:11], s33 offen offset:{mt*1024}"); t += 4
        for p in range(MT // 2):
            for dt in range(2):
                self.pack(A, t, self.acc(2 * p, 4 + dt), self.acc(2 * p + 1, 4 + dt))
                A.e(f"buffer_store_dwordx4 {v(t,4)}, v2, s[8:11], s34 offen offset:{(2*p+dt)*1024}"); t += 4

def rowmajor_voff(A, dst, t):
    A.e(f"v_and_b32 v{t}, 1, v3\nv_lshlrev_b32 v{t}, 1, v{t}\nv_lshrrev_b32 v{dst}, 1, v3\nv_or_b32 v{t}, v{t}, v{dst}")
    A.e(f"v_lshlrev_b32 v{t}, 4, v{t}\nv_lshl_add_u32 v{dst}, v4, 11, v{t}")

class WO(Gemm):
    def __init__(self): super().__init__("wo_kernel", 64, 1024, 4, WS_O, KA_WO, 2048, True, 4, 8)
    def tiles(self): return [("F", (0, 0), (t, 2)) for t in range(2)]
    def b_cols(self, A): A.e("s_lshl_b32 s26, s24, 7")
    def cons_pro(self, A):
        X = self.VX
        srd(A, 44, 40, 4 * MB)
        rowmajor_voff(A, X + 16, X + 17)
        A.e(f"""
s_lshl_b32 s35, s23, 1
s_add_u32 s35, s35, s28
s_lshl_b32 s36, s24, 1
s_add_u32 s36, s36, s29              ; kb
s_lshl_b32 s30, s35, 17
s_lshl_b32 s31, s36, 6
s_add_u32 s30, s30, s31
""")
        for mt in range(self.MT):
            A.e(f"s_add_u32 s31, s30, {mt*16*2048}\nbuffer_load_dwordx4 {v(X+4*mt,4)}, v{X+16}, s[44:47], s31 offen")
    def epilogue(self, A):
        X = self.VX
        A.e("s_waitcnt vmcnt(0)")
        A.e(f"""
s_lshl_b32 s30, s35, 17
s_lshl_b32 s31, s36, 10
s_add_u32 s30, s30, s31
s_add_u32 s30, s30, {WS_H}
v_lshlrev_b32 v2, 4, v1
""")
        for mt in range(self.MT):
            x = X + 4 * mt
            A.e(f"v_permlane16_swap_b32 v{x}, v{x+2}\nv_permlane16_swap_b32 v{x+1}, v{x+3}")
            self.pack(A, 8, self.acc(mt, 0), self.acc(mt, 1))
            for d in range(4):
                A.e(f"v_lshlrev_b32 v12, 16, v{8+d}\nv_and_b32 v13, 0xffff0000, v{8+d}")
                A.e(f"v_lshlrev_b32 v14, 16, v{x+d}\nv_and_b32 v15, 0xffff0000, v{x+d}")
                A.e(f"v_pk_add_f32 v[12:13], v[12:13], v[14:15]\nv_cvt_pk_bf16_f32 v{x+d}, v12, v13")
                A.e(f"v_lshlrev_b32 v{16+2*d}, 16, v{x+d}\nv_and_b32 v{17+2*d}, 0xffff0000, v{x+d}")
            A.e(f"s_add_u32 s31, s30, {mt*32*1024}\nbuffer_store_dwordx4 {v(x,4)}, v2, s[8:11], s31 offen")
            sm, m2 = 32 + 2 * mt, 33 + 2 * mt
            A.e("v_pk_add_f32 v[12:13], v[16:17], v[18:19]\nv_pk_add_f32 v[14:15], v[20:21], v[22:23]")
            A.e(f"v_pk_add_f32 v[12:13], v[12:13], v[14:15]\nv_add_f32 v{sm}, v12, v13")
            xg_sum(A, sm, 12)
            A.e(f"v_mul_f32 v12, {f32(1/32)}, v{sm}")
            for d in range(4):
                A.e(f"v_pk_add_f32 {v(16+2*d,2)}, {v(16+2*d,2)}, v[12:13] op_sel_hi:[1,0] neg_lo:[0,1] neg_hi:[0,1]")
            A.e("v_pk_mul_f32 v[14:15], v[16:17], v[16:17]")
            for d in range(1, 4):
                A.e(f"v_pk_fma_f32 v[14:15], {v(16+2*d,2)}, {v(16+2*d,2)}, v[14:15]")
            A.e(f"v_add_f32 v{m2}, v14, v15")
            xg_sum(A, m2, 12)
        A.e("v_cmp_eq_u32 vcc, 1, v3\nv_cndmask_b32 v32, v32, v34, vcc\nv_cndmask_b32 v33, v33, v35, vcc")
        A.e("v_cmp_eq_u32 vcc, 2, v3\nv_cndmask_b32 v32, v32, v36, vcc\nv_cndmask_b32 v33, v33, v37, vcc")
        A.e("v_cmp_eq_u32 vcc, 3, v3\nv_cndmask_b32 v32, v32, v38, vcc\nv_cndmask_b32 v33, v33, v39, vcc")
        A.e(f"""
s_lshl_b32 s30, s35, 14              ; 64 rows * 256 B
s_lshl_b32 s31, s36, 3
s_add_u32 s30, s30, s31
s_add_u32 s30, s30, {WS_STAT}
v_lshlrev_b32 v2, 8, v1
buffer_store_dwordx2 v[32:33], v2, s[8:11], s30 offen
""")

class W1(Gemm):
    def __init__(self):
        super().__init__("w1_kernel", 224, 1024, 3, WS_H, KA_W1, 7168, True, 8, 4)
        self.l_stat = self.lds_ring
        self.l_cs = self.lds_ring + 1024
        self.lds = self.lds_ring + 2048
    def tiles(self):
        return [("F", (0, 2), (t, 0)) for t in range(4)] + [("F", (1, 0), (t, 2)) for t in range(2)] + [("H", None, None)]
    def b_cols(self, A):
        A.e("""
s_mul_i32 s27, s24, 448
s_and_b32 s30, s24, 1
s_lshl_b32 s26, s30, 6
s_add_u32 s26, s26, s27
s_xor_b32 s30, s30, 1
s_mul_i32 s30, s30, 384
s_add_u32 s27, s27, s30
""")
    def prod_pro(self, A):
        A.e(f"""
v_and_b32 v10, 31, v1
v_lshlrev_b32 v11, 8, v10
v_lshrrev_b32 v12, 5, v1
v_lshl_add_u32 v11, v12, 7, v11
s_lshl_b32 s30, s23, 2
s_add_u32 s30, s30, s28
s_lshl_b32 s30, s30, 13
s_add_u32 s30, s30, {WS_STAT}
""")
        for i in range(8):
            A.e(f"buffer_load_dwordx4 {v(16+4*i,4)}, v11, s[8:11], s30 offen offset:{16*i}")
        A.e(f"""
s_mul_i32 s30, s24, 896
s_add_u32 s30, s30, {WS_CS}
s_mov_b32 m0, {self.l_cs}
v_lshlrev_b32 v13, 4, v1
buffer_load_dwordx4 v13, s[8:11], s30 offen lds
""")
    def prod_after0(self, A):
        A.e("v_pk_add_f32 v[14:15], v[16:17], v[18:19]")
        for i in range(2, 16):
            A.e(f"v_pk_add_f32 v[14:15], v[14:15], {v(16+2*i,2)}")
        A.e("v_mov_b32 v13, v14\nv_permlane32_swap_b32 v14, v13\nv_add_f32 v14, v14, v13")
        A.e(f"v_mul_f32 v12, {f32(1/32)}, v14       ; 32*mean")
        for i in range(16):
            A.e(f"v_sub_f32 v13, v{16+2*i}, v12\nv_mul_f32 v11, {f32(1/32)}, v13\nv_fma_f32 v15, v13, v11, v15")
        A.e("v_mov_b32 v13, v15\nv_permlane32_swap_b32 v15, v13\nv_add_f32 v15, v15, v13")
        ln_finish(A, 14, 15, 1024, 13)
        A.e(f"v_mul_f32 v15, {f32(-LOG2E)}, v15\nv_mul_f32 v14, v14, v15\nv_sub_f32 v14, 0, v14")
        A.e(f"s_lshl_b32 s30, s28, 8\ns_add_u32 s30, s30, {self.l_stat}\nv_lshl_add_u32 v13, v10, 3, s30\nds_write_b64 v13, v[14:15]\ns_waitcnt lgkmcnt(0)")
    def epilogue(self, A):
        MT, NT = self.MT, self.NT
        A.e(f"s_lshl_b32 s30, s28, 9\ns_add_u32 s30, s30, {self.l_stat}\nv_lshl_add_u32 v2, v4, 3, s30")
        for mt in range(MT):
            A.e(f"ds_read_b64 {v(8+2*mt,2)}, v2 offset:{mt*128}")
        A.e(f"""
s_and_b32 s30, s24, 1                ; odd
s_lshl_b32 s31, s30, 7
s_lshl_b32 s32, s29, 9
s_add_u32 s32, s32, s31
s_add_u32 s32, s32, {self.l_cs}
v_lshl_add_u32 v5, v3, 4, s32        ; tiles 0..3
s_lshl_b32 s32, s29, 7
s_add_u32 s32, s32, s31
s_add_u32 s32, s32, {self.l_cs + 256}
v_lshl_add_u32 v6, v3, 4, s32        ; tiles 4,5
s_xor_b32 s33, s30, 1
s_mul_i32 s33, s33, 768
s_lshl_b32 s32, s29, 6
s_add_u32 s32, s32, s33
s_add_u32 s32, s32, {self.l_cs}
v_lshl_add_u32 v7, v3, 4, s32        ; tile 6
""")
        CS = 16
        for t in range(4): A.e(f"ds_read_b128 {v(CS+4*t,4)}, v5 offset:{64*t}")
        for t in range(2): A.e(f"ds_read_b128 {v(CS+16+4*t,4)}, v6 offset:{64*t}")
        A.e(f"ds_read_b128 {v(CS+24,4)}, v7")
        A.e(f"""
s_mul_i32 s32, s24, 7
s_lshl_b32 s33, s23, 3
s_lshl_b32 s34, s28, 2
s_add_u32 s33, s33, s34              ; rt0
s_mul_i32 s33, s33, 112
s_add_u32 s32, s32, s33
s_add_u32 s33, s32, s30              ; + odd
s_lshl_b32 s34, s29, 2
s_add_u32 s34, s34, s33
s_add_u32 s35, s33, s29
s_add_u32 s35, s35, 2
s_xor_b32 s36, s30, 1
s_mul_i32 s36, s36, 6
s_add_u32 s36, s36, s32              ; H
s_lshl_b32 s34, s34, 10
s_lshl_b32 s35, s35, 10
s_lshl_b32 s36, s36, 10
s_add_u32 s34, s34, {WS_H1}
s_add_u32 s35, s35, {WS_H1}
s_add_u32 s36, s36, {WS_H1}
s_lshl_b32 s37, s29, 3
s_add_u32 s36, s36, s37
v_lshlrev_b32 v2, 4, v1
s_mov_b32 s38, {f32(-LOG2E)}
s_mov_b32 s39, {f32(-LOG2E)}
s_waitcnt lgkmcnt(0)
""")
        T = 48
        def silu(mt, t):
            c = self.acc(mt, t); k = 8 + 2 * mt; cs = CS + 4 * t
            for h in range(2):
                p = v(c + 2 * h, 2)
                A.e(f"v_pk_mul_f32 {p}, {p}, {v(k,2)} op_sel:[0,1] op_sel_hi:[1,1]")
                A.e(f"v_pk_fma_f32 {p}, {v(cs+2*h,2)}, {v(k,2)}, {p} op_sel_hi:[1,0,1]")
            for e in range(4): A.e(f"v_exp_f32 v{T+e}, v{c+e}")
            for h in range(2): A.e(f"v_pk_fma_f32 {v(T+2*h,2)}, {v(T+2*h,2)}, s[38:39], s[38:39]")
            for e in range(4): A.e(f"v_rcp_f32 v{T+e}, v{T+e}")
            for h in range(2): A.e(f"v_pk_mul_f32 {v(c+2*h,2)}, {v(c+2*h,2)}, {v(T+2*h,2)}")
        o = 56
        for mt in range(MT):
            A.e(f"s_add_u32 s30, s34, {mt*112*1024}\ns_add_u32 s31, s35, {mt*112*1024}\ns_add_u32 s32, s36, {mt*112*1024}")
            for pr in range(3):
                silu(mt, 2 * pr); silu(mt, 2 * pr + 1)
                self.pack(A, o, self.acc(mt, 2 * pr), self.acc(mt, 2 * pr + 1))
                if pr < 2: A.e(f"buffer_store_dwordx4 {v(o,4)}, v2, s[8:11], s30 offen offset:{pr*1024}")
                else: A.e(f"buffer_store_dwordx4 {v(o,4)}, v2, s[8:11], s31 offen")
                o = 56 + (o - 56 + 4) % 32
            silu(mt, 6)
            c = self.acc(mt, 6)
            A.e(f"v_cvt_pk_bf16_f32 v{o}, v{c}, v{c+1}\nv_cvt_pk_bf16_f32 v{o+1}, v{c+2}, v{c+3}")
            A.e(f"buffer_store_dwordx2 {v(o,2)}, v2, s[8:11], s32 offen")
            o = 56 + (o - 56 + 4) % 32

class W2(Gemm):
    def __init__(self): super().__init__("w2_kernel", 64, 3584, 4, WS_H1, KA_W2, 2048, True, 4, 8)
    def tiles(self): return [("F", (0, 0), (t, 2)) for t in range(2)]
    def b_cols(self, A): A.e("s_lshl_b32 s26, s24, 7")
    def cons_pro(self, A):
        X = self.VX
        srd(A, 44, 42, 4 * MB)
        rowmajor_voff(A, X + 16, X + 17)
        A.e(f"""
s_lshl_b32 s35, s23, 1
s_add_u32 s35, s35, s28
s_lshl_b32 s36, s24, 1
s_add_u32 s36, s36, s29              ; kb
s_lshl_b32 s30, s35, 17
s_lshl_b32 s31, s36, 10
s_add_u32 s30, s30, s31
s_add_u32 s30, s30, {WS_H}
v_lshlrev_b32 v{X+17}, 4, v1
""")
        for mt in range(self.MT):
            A.e(f"s_add_u32 s31, s30, {mt*32*1024}\nbuffer_load_dwordx4 {v(X+4*mt,4)}, v{X+17}, s[8:11], s31 offen")
    def epilogue(self, A):
        X = self.VX
        A.e("s_waitcnt vmcnt(0)")
        A.e("s_lshl_b32 s30, s35, 17\ns_lshl_b32 s31, s36, 6\ns_add_u32 s30, s30, s31")
        for mt in range(self.MT):
            x = X + 4 * mt
            self.pack(A, 8, self.acc(mt, 0), self.acc(mt, 1))
            for d in range(4):
                A.e(f"v_lshlrev_b32 v12, 16, v{8+d}\nv_and_b32 v13, 0xffff0000, v{8+d}")
                A.e(f"v_lshlrev_b32 v14, 16, v{x+d}\nv_and_b32 v15, 0xffff0000, v{x+d}")
                A.e(f"v_pk_add_f32 v[12:13], v[12:13], v[14:15]\nv_cvt_pk_bf16_f32 v{x+d}, v12, v13")
            A.e(f"v_permlane16_swap_b32 v{x}, v{x+2}\nv_permlane16_swap_b32 v{x+1}, v{x+3}")
            A.e(f"s_add_u32 s31, s30, {mt*16*2048}\nbuffer_store_dwordx4 {v(x,4)}, v{X+16}, s[44:47], s31 offen")

def gen_attn(A):
    n = "attn_kernel"
    A.begin_kernel(n)
    A.e(f"""
s_cmp_ge_u32 s2, 256
s_cbranch_scc1 {n}_end
s_load_dwordx2 s[4:5], s[0:1], {KA_WS}
v_lshrrev_b32 v2, 6, v0
v_and_b32 v1, 63, v0
v_readfirstlane_b32 s20, v2          ; wave
s_and_b32 s21, s2, 7
s_lshr_b32 s22, s2, 3
s_lshl_b32 s24, s21, 1
s_and_b32 s25, s22, 1
s_add_u32 s24, s24, s25              ; hp
s_lshr_b32 s23, s22, 1               ; rb
s_lshr_b32 s26, s20, 2
s_and_b32 s27, s20, 3                ; q32
s_lshl_b32 s28, s24, 1
s_add_u32 s28, s28, s26              ; head
v_lshlrev_b32 v2, 4, v1              ; lane*16
v_lshrrev_b32 v3, 4, v1              ; g
v_and_b32 v4, 15, v1                 ; m
s_waitcnt lgkmcnt(0)
""")
    srd(A, 8, 4, WS_BYTES)
    A.e(f"""
s_lshl_b32 s29, s28, 7               ; head*128
s_lshl_b32 s30, s23, 3               ; rb*8
s_add_u32 s29, s29, s30
s_lshl_b32 s31, s27, 1
s_add_u32 s31, s31, s29
s_lshl_b32 s31, s31, 10
s_add_u32 s31, s31, {WS_Q}
buffer_load_dwordx4 v[8:11], v2, s[8:11], s31 offen
buffer_load_dwordx4 v[12:15], v2, s[8:11], s31 offen offset:1024
s_mul_i32 s30, s27, 6
s_add_u32 s29, s29, s30
s_lshl_b32 s29, s29, 10
s_mul_i32 s32, s26, 24
s_add_u32 s32, s32, s30
s_lshl_b32 s32, s32, 10
s_add_u32 s33, s29, {WS_K - 16*1024}
s_add_u32 s34, s29, {WS_V - 16*1024}
""")
    for base_s, lo in (("s33", 0), ("s34", 49152)):
        A.e(f"s_add_u32 m0, s32, {lo}")
        for i in range(4):
            A.e(f"buffer_load_dwordx4 v2, s[8:11], {base_s} offen offset:{i*1024} lds")
        A.e(f"s_add_u32 m0, s32, {lo+4096}\ns_add_u32 s35, {base_s}, 4096")
        for i in range(2):
            A.e(f"buffer_load_dwordx4 v2, s[8:11], s35 offen offset:{i*1024} lds")
    A.e("v_lshlrev_b32 v5, 2, v3")
    for e in range(4):
        A.e(f"v_add_u32 v6, {e}, v5\nv_cmp_gt_u32 {s(40+2*e,2)}, v6, v4")
    A.e(f"""
s_lshl_b32 s36, s23, 2
s_add_u32 s36, s36, s27
s_sub_i32 s36, 8, s36
s_max_i32 s36, s36, 0
s_mul_i32 s37, s26, 24
s_lshl_b32 s38, s27, 1
s_add_u32 s37, s37, s38
s_lshl_b32 s37, s37, 10
v_add_u32 v5, s37, v2
v_mov_b32 v6, {f32(-1e30)}
v_add_u32 v7, 49152, v5
v_mov_b32 v16, 0x3f803f80
v_mov_b32 v17, 0x3f803f80
v_mov_b32 v18, 0x3f803f80
v_mov_b32 v19, 0x3f803f80
s_waitcnt vmcnt(6)
s_barrier
""")
    S = 64
    def sr(qt, u): return S + (qt * 18 + u) * 4
    KF = 24
    for u in range(8):
        A.e(f"ds_read_b128 {v(KF+4*u,4)}, v5 offset:{u*1024}")
    for p in range(9):
        lskip, ldone = f"{n}_sk{p}", f"{n}_sd{p}"
        issued = min(18, 2 * p + 8)
        A.e(f"s_waitcnt lgkmcnt({issued - (2*p+2)})")
        if p < 8:
            A.e(f"s_cmp_gt_u32 s36, {p}\ns_cbranch_scc1 {lskip}")
        for u in (2 * p, 2 * p + 1):
            for qt in range(2):
                if (qt == 0 and u == 17) or (qt == 1 and u == 0): continue
                A.e(f"v_mfma_f32_16x16x32_bf16 {v(sr(qt,u),4)}, {v(KF+4*(u%8),4)}, {v(8+4*qt,4)}, 0")
        if p < 8:
            A.e(f"s_branch {ldone}")
            A.label(lskip)
            for u in (2 * p, 2 * p + 1):
                for qt in range(2):
                    for e in range(4): A.e(f"v_mov_b32 v{sr(qt,u)+e}, v6")
            A.label(ldone)
        for u in (2 * p + 8, 2 * p + 9):
            if u < 18:
                A.e(f"ds_read_b128 {v(KF+4*(u%8),4)}, v5 offset:{u*1024}")
    for qt in range(2):
        for e in range(4):
            r = sr(qt, qt) + e
            A.e(f"v_cndmask_b32 v{r}, v6, v{r}, {s(40+2*e,2)}")
        for e in range(4):
            r = sr(qt, 16 + qt) + e
            A.e(f"v_cndmask_b32 v{r}, v{r}, v6, {s(40+2*e,2)}")
    A.e("s_waitcnt vmcnt(0)\ns_barrier")
    VF = 24
    CSC = (32 ** -0.5) * LOG2E
    A.e(f"s_mov_b32 s48, {f32(CSC)}\ns_mov_b32 s49, {f32(CSC)}")
    O = 208
    for r in range(O, O + 24, 2): A.e(f"v_mov_b64 {v(r,2)}, 0")
    for qt in range(2):
        us = list(range(qt, qt + 17))
        regs = [sr(qt, u) + e for u in us for e in range(4)]
        mx = 56 + 2 * qt
        A.e(f"v_max3_f32 v{mx}, v{regs[0]}, v{regs[1]}, v{regs[2]}")
        A.e(f"v_max3_f32 v{mx+1}, v{regs[3]}, v{regs[4]}, v{regs[5]}")
        i = 6; k = 0
        while i < len(regs):
            A.e(f"v_max3_f32 v{mx+k}, v{regs[i]}, v{regs[i+1]}, v{mx+k}"); i += 2; k ^= 1
        A.e(f"v_max_f32 v{mx}, v{mx}, v{mx+1}")
        xg_max(A, mx, mx + 1)
        A.e(f"v_mul_f32 v{mx}, {f32(-CSC)}, v{mx}")
    for q in range(4):
        A.e(f"ds_read_b128 {v(VF+4*q,4)}, v7 offset:{q*1024}")
    for p in range(9):
        for b in (2 * p + 4, 2 * p + 5):
            if b < 18: A.e(f"ds_read_b128 {v(VF+4*(b%8),4)}, v7 offset:{b*1024}")
        for qt in range(2):
            mx = 56 + 2 * qt
            for u in (2 * p, 2 * p + 1):
                r = sr(qt, u)
                dead = (qt == 0 and u == 17) or (qt == 1 and u == 0)
                dst = sr(qt, 2 * p) + 2 * (u & 1)
                if dead:
                    A.e(f"v_mov_b32 v{dst}, 0\nv_mov_b32 v{dst+1}, 0") if u & 1 else None
                    continue
                for h in range(2):
                    A.e(f"v_pk_fma_f32 {v(r+2*h,2)}, {v(r+2*h,2)}, s[48:49], {v(mx,2)} op_sel_hi:[1,1,0]")
                for e in range(4): A.e(f"v_exp_f32 v{r+e}, v{r+e}")
                A.e(f"v_cvt_pk_bf16_f32 v{dst}, v{r}, v{r+1}\nv_cvt_pk_bf16_f32 v{dst+1}, v{r+2}, v{r+3}")
            if qt == 1 and p == 0:
                d0 = sr(1, 0)
                A.e(f"v_mov_b32 v{d0}, 0\nv_mov_b32 v{d0+1}, 0")
        issued = min(18, 2 * p + 6)
        A.e(f"s_waitcnt lgkmcnt({issued - (2*p+2)})")
        lskip = f"{n}_pv{p}"
        if p < 8:
            A.e(f"s_cmp_gt_u32 s36, {p}\ns_cbranch_scc1 {lskip}")
        for qt in range(2):
            P = v(sr(qt, 2 * p), 4)
            for dt in range(2):
                o = v(O + 12 * qt + 4 * dt, 4)
                A.e(f"v_mfma_f32_16x16x32_bf16 {o}, {v(VF+4*((2*p+dt)%8),4)}, {P}, {o}")
            o = v(O + 12 * qt + 8, 4)
            A.e(f"v_mfma_f32_16x16x32_bf16 {o}, v[16:19], {P}, {o}")
        if p < 8: A.label(lskip)
    A.e(f"""
s_lshl_b32 s30, s23, 3
s_lshl_b32 s31, s27, 1
s_add_u32 s30, s30, s31
s_lshl_b32 s30, s30, 5
s_add_u32 s30, s30, s28
s_lshl_b32 s30, s30, 10
s_add_u32 s30, s30, {WS_O}
s_add_u32 s31, s30, {32*1024}
""")
    for qt in range(2):
        o = O + 12 * qt
        A.e(f"v_rcp_f32 v{o+8}, v{o+8}")
        for h in range(4):
            A.e(f"v_pk_mul_f32 {v(o+2*h,2)}, {v(o+2*h,2)}, {v(o+8,2)} op_sel_hi:[1,0]")
        for h in range(4):
            A.e(f"v_cvt_pk_bf16_f32 v{24+4*qt+h}, v{o+2*h}, v{o+2*h+1}")
        A.e(f"buffer_store_dwordx4 {v(24+4*qt,4)}, v2, s[8:11], s{30+qt} offen")
    A.label(f"{n}_end")
    A.e("s_endpgm")
    A.end_kernel(n, 232, 64)
    A.launch(n, (256, 1, 1), (512, 1, 1), 98304)

HEADER = open("sequential_preLN__sliding_block__dense_activation_silu__prompt.s.ref").read().split("; Override launch")[0]
def main():
    A = Asm()
    gen_pre(A)
    QKV().gen(A)
    gen_attn(A)
    WO().gen(A)
    W1().gen(A)
    W2().gen(A)
    A.lines = hazard.fix(A.lines)
    sys.stdout.write(A.text(HEADER))
if __name__ == "__main__":
    main()
```

```python
import sys, struct
from asmlib import Asm
import hazard

ARGS = sys.argv[1:]
def opt(name, default):
    for a in ARGS:
        if a.startswith("--" + name + "="): return type(default)(a.split("=", 1)[1])
    return default
STAMPS = "--stamps" in ARGS
STAMP_OP = "s_memtime" if "--cyc" in ARGS else "s_memrealtime"
SPLIT = opt("split", 4)
FIRST = opt("first", 2)
H0START = opt("h0start", -1)
H0C = opt("h0c", 1)
H1L = opt("h1l", 3)
DPRIO = opt("dprio", 3)
LOCAL = opt("local", 0)
HLIM = opt("hlim", 90)
XAT = opt("xat", -1)
WNT = opt("wnt", 0)
PSLEEP = opt("psleep", 2)
PFT = opt("pft", 8)
GAT = opt("gat", 13)
ONLY = opt("only", 0)
AFL = opt("afl", "sc1")
NOMFMA = opt("nomfma", 0)
WARM5 = opt("warm5", 1)
PUBN = opt("pubn", 16)
SCHK = opt("schk", 9)
SCHK2 = opt("schk2", 12)
NOHELP = opt("nohelp", 0)
DSLEEP = opt("dsleep", 1)
PF2 = opt("pf2", 4)
WSTAG = opt("wstag", 0)
FPOS = opt("fpos", 6)
BNT4 = opt("bnt4", 0)
BNT5 = opt("bnt5", 0)
AHEAD = opt("ahead", 0)
STOP = opt("stop", 99)
LS = "" if LOCAL else "sc1"
KN = "sequential_preLN__sliding_block__dense_activation_silu__prompt_kernel"

MB = 1 << 20; KB = 1024
WS_K, WS_V, WS_O, WS_H, WS_H1 = 8 * MB, 12 * MB, 16 * MB, 20 * MB, 24 * MB
WS_STAT = 40 * MB
WS_CS1 = 41 * MB
WS_CS2 = 41 * MB + 256 * KB
WS_RA = 41 * MB + 768 * KB
WS_RB = WS_RA + 8 * KB
WS_F1 = 41 * MB + 896 * KB
WS_F2 = WS_F1 + 4 * KB
WS_F3 = WS_F2 + 8 * KB
WS_F4 = WS_F3 + 4 * KB
WS_F5 = WS_F4 + 4 * KB
WS_F6 = WS_F5 + 8 * KB
WS_F7 = WS_F6 + 2 * KB
WS_F8 = WS_F7 + 1 * KB
WS_DBG = 48 * MB
WS_PART = 52 * MB
WS_BYTES = 256 * MB
LOG2E = 1.4426950408889634
LDS_BYTES = 160 * KB
MISC = LDS_BYTES - 4 * KB
L_RA, L_RB, L_CS = MISC, MISC + 512, MISC + 1024
L_DONE, L_FULL, L_HD = MISC + 2048, MISC + 3072, MISC + 3584
vDW, vFR, vCNT, vFV = 252, 253, 254, 255
sNEED = 73
L_SCR = 120 * KB
SPIN_MAX = 1 << 16
LSPIN_MAX = 1 << 22

def f32(x): return "0x%08x" % struct.unpack("<I", struct.pack("<f", x))[0]
def v(a, n=1): return f"v{a}" if n == 1 else f"v[{a}:{a+n-1}]"
def s(a, n=1): return f"s{a}" if n == 1 else f"s[{a}:{a+n-1}]"

SX, SWS, SB, SD = 4, 8, 12, 16
sWAVE, sW, sG, sR, sRB, sCB, sBC, sBH, sWM, sWN = 20, 21, 22, 23, 24, 25, 26, 27, 28, 29
pX, pWQKV, pWO, pW1, pW2, pOUT, pDBG, pWS = 48, 50, 52, 56, 58, 60, 62, 64
sAR, sBR, sM0A, sM0B, sM0H, sKS, sCNT, sC0 = 66, 67, 68, 69, 70, 71, 72, 74
sST = 76

A = Asm()
def e(t): A.e(t)

class Stamper:
    def __init__(self): self.n = 0
    def stamp(self):
        if not STAMPS: return
        e(f"{STAMP_OP} {s(sST,2)}\ns_waitcnt lgkmcnt(0)\ns_mov_b32 s{78+self.n}, s{sST}")
        self.n += 1
        assert self.n <= 24
    def flush(self):
        if not STAMPS: return
        self.stamp()
        e("s_waitcnt vmcnt(0)")
        for i in range(24): e(f"v_mov_b32 v{8+i}, s{78+min(i,self.n-1)}")
        e(f"s_lshl_b32 s30, s2, 10\ns_lshl_b32 s31, s{sWAVE}, 7\ns_add_u32 s30, s30, s31\ns_add_u32 s30, s30, {WS_DBG}")
        e("v_mov_b32 v2, 0\ns_mov_b64 exec, 1")
        for i in range(6): e(f"buffer_store_dwordx4 {v(8+4*i,4)}, v2, {s(SWS,4)}, s30 offen offset:{16*i}")
        e("s_mov_b64 exec, -1")

class VmQ:
    def __init__(self): self.q = []
    def add(self, tag, n=1): self.q += [tag] * n
    def wait(self, tag):
        idx = max(i for i, t in enumerate(self.q) if t == tag)
        n = len(self.q) - 1 - idx
        assert n <= 63, n
        e(f"s_waitcnt vmcnt({n})")
        self.q = self.q[idx + 1:]
    def wait_all(self):
        e("s_waitcnt vmcnt(0)"); self.q = []
    def has(self, tag): return tag in self.q
    def after(self, tag):
        if tag not in self.q: return 99
        return len(self.q) - 1 - max(i for i, t in enumerate(self.q) if t == tag)

def set_exec(mask):
    if mask == (1 << 64) - 1: e("s_mov_b64 exec, -1")
    elif mask <= 64: e(f"s_mov_b64 exec, {mask}")
    else: e(f"s_mov_b32 exec_lo, {hex(mask & 0xffffffff)}\ns_mov_b32 exec_hi, {hex(mask >> 32)}")
def srd(d, base, nbytes):
    e(f"s_mov_b32 s{d}, s{base}\ns_and_b32 s{d+1}, s{base+1}, 0xffff\ns_mov_b32 s{d+2}, {nbytes}\ns_mov_b32 s{d+3}, 0x20000")
def xg(op, r, t):
    e(f"v_mov_b32 v{t}, v{r}\nv_permlane16_swap_b32 v{r}, v{t}\n{op} v{r}, v{r}, v{t}")
    e(f"v_mov_b32 v{t}, v{r}\nv_permlane32_swap_b32 v{r}, v{t}\n{op} v{r}, v{r}, v{t}")
def round_bf16(r): e(f"v_cvt_pk_bf16_f32 v{r}, v{r}, v{r}\nv_and_b32 v{r}, 0xffff0000, v{r}")
def ln_finish(vsum, vm2, n):
    e(f"v_mul_f32 v{vsum}, {f32(1.0/n)}, v{vsum}"); round_bf16(vsum)
    e(f"v_mul_f32 v{vm2}, {f32(1.0/n)}, v{vm2}"); round_bf16(vm2)
    e(f"v_add_f32 v{vm2}, {f32(1e-5)}, v{vm2}"); round_bf16(vm2)
    e(f"v_sqrt_f32 v{vm2}, v{vm2}"); round_bf16(vm2)
    e(f"v_rcp_f32 v{vm2}, v{vm2}")
def pack(dst, c0, c1):
    e(f"v_cvt_pk_bf16_f32 v{dst}, v{c0}, v{c0+1}\nv_cvt_pk_bf16_f32 v{dst+1}, v{c0+2}, v{c0+3}")
    e(f"v_cvt_pk_bf16_f32 v{dst+2}, v{c1}, v{c1+1}\nv_cvt_pk_bf16_f32 v{dst+3}, v{c1+2}, v{c1+3}")
def unpack(lo, src): e(f"v_lshlrev_b32 v{lo}, 16, v{src}\nv_and_b32 v{lo+1}, 0xffff0000, v{src}")

def set_flag(soff, st="sc1"):
    e(f"v_mov_b32 v2, 0\nv_mov_b32 v5, 1\ns_mov_b64 exec, 1\nbuffer_store_dword v5, v2, {s(SWS,4)}, s{soff} offen {st}\ns_mov_b64 exec, -1")

def poll(soff, nlanes, voff=None, x2=False, srd_=SWS, mask=None, t=16, sleep=None):
    L = A.newlabel("poll"); X = A.newlabel("pollx")
    if voff is None:
        e(f"v_lshlrev_b32 v{t+2}, {3 if x2 else 2}, v1"); voff = t + 2
    if nlanes < 64: set_exec((1 << nlanes) - 1)
    e(f"s_mov_b32 s{sCNT}, 0")
    A.label(L)
    if x2: e(f"buffer_load_dwordx2 {v(t,2)}, v{voff}, {s(srd_,4)}, {soff} offen sc1")
    else: e(f"buffer_load_dword v{t}, v{voff}, {s(srd_,4)}, {soff} offen sc1")
    e(f"s_add_u32 s{sCNT}, s{sCNT}, 1\ns_cmp_gt_u32 s{sCNT}, {SPIN_MAX}\ns_waitcnt vmcnt(0)\ns_cbranch_scc1 {X}")
    if x2: e(f"v_and_b32 v{t}, v{t}, v{t+1}")
    if mask is None: e(f"v_cmp_eq_u32 vcc, 0, v{t}")
    else: e(f"v_and_b32 v{t}, {mask}, v{t}\nv_cmp_ne_u32 vcc, {mask}, v{t}")
    e(f"s_cbranch_vccz {X}\ns_sleep {PSLEEP if sleep is None else sleep}\ns_branch {L}")
    A.label(X)
    e("s_mov_b64 exec, -1")

def spoll(srd_, soff, n16, mask, base=32):
    X = A.newlabel("spx")
    e(f"s_mov_b32 s31, -1")
    for k in range(n16):
        e(f"s_add_u32 s30, {soff}, {64*k}\ns_buffer_load_dwordx16 {s(base,16)}, {s(srd_,4)}, s30\ns_waitcnt lgkmcnt(0)")
        for i in range(1, 8): e(f"s_and_b64 {s(base,2)}, {s(base,2)}, {s(base+2*i,2)}")
        e(f"s_and_b32 s31, s31, s{base}\ns_and_b32 s31, s31, s{base+1}")
    e(f"s_and_b32 s31, s31, {mask}\ns_cmp_eq_u32 s31, {mask}\ns_cbranch_scc1 {X}")
    poll(soff, 16 * n16, srd_=srd_, mask=mask, t=8, sleep=16)
    A.label(X)

def lds_wait(vaddr, need, vt, sleep=1):
    L = A.newlabel("lw"); X = A.newlabel("lwx")
    A.label(L)
    e(f"ds_read_b32 v{vt}, v{vaddr}\ns_waitcnt lgkmcnt(0)\nv_cmp_gt_u32 vcc, {need}, v{vt}\ns_cbranch_vccz {X}")
    if sleep: e(f"s_sleep {sleep}")
    e(f"s_add_u32 s3, s3, 1\ns_cmp_lt_u32 s3, {LSPIN_MAX}\ns_cbranch_scc1 {L}")
    A.label(X)
def lds_post(row, val, vt=2):
    e(f"v_lshlrev_b32 v{vt}, 2, v1\nv_add_u32 v{vt}, {row}, v{vt}\nv_mov_b32 v{vt+3}, {val}\nds_write_b32 v{vt}, v{vt+3}")

class HStream:
    def __init__(self): self.items = []
    def __enter__(self):
        self.saved = A.lines; A.lines = []; return self
    def _take(self, atomic=False):
        if A.lines:
            if atomic: self.items.append(("g", list(A.lines)))
            else: self.items += [("g", [ln]) for ln in A.lines if ln.strip()]
        A.lines = []
    def at(self, k): self._take(); self.items.append(("at", k))
    def by(self, k): self._take(); self.items.append(("by", k))
    def atomic(self, f):
        self._take(); f(); self._take(True)
    def __exit__(self, *a):
        self._take(); A.lines = self.saved
    @staticmethod
    def cost(ln):
        t = ln.strip()
        if t.startswith(("buffer_", "global_")): return 8
        if t.startswith("ds_"): return 3
        if t.startswith("v_pk"): return 1
        if t.startswith(("v_exp", "v_rcp", "v_sqrt", "v_rsq")): return 2
        if t.startswith("s_") or t.endswith(":"): return 0.5
        return 1
    def emit(self, nbar):
        b = 0; used = 0
        for kind, x in self.items:
            if kind == "at":
                while b <= x: e("s_barrier"); b += 1; used = 0
            elif kind == "by":
                assert b <= x, ("deadline missed", b, x)
            else:
                c = sum(self.cost(l) for l in x)
                if b > 0 and used > 0 and used + c > HLIM:
                    e("s_barrier"); b += 1; used = 0
                A.lines += x; used += c
        assert b <= nbar, b
        while b < nbar: e("s_barrier"); b += 1

class Gemm:
    def __init__(self, name, TM, TN, NK, NS, KBsrc, ldb, kperm, araw=False, a_lds=0, b_lds=None):
        self.name, self.TM, self.TN, self.NK, self.NS = name, TM, TN, NK, NS
        self.KB, self.ldb, self.kperm, self.araw = KBsrc, ldb, kperm, araw
        self.MT, self.NT = TM // 32, TN // 32
        self.nfull, self.half = TN // 64, (TN % 64) != 0
        self.a_stage = TM * 128
        self.a_lds = a_lds
        b0 = a_lds + NS * self.a_stage if b_lds is None else b_lds
        self.b_base = [b0 + j * NS * 8192 for j in range(self.nfull)]
        self.h_base = b0 + self.nfull * NS * 8192
        self.lds_end = self.h_base + (NS * 4096 if self.half else 0)
        assert self.lds_end <= MISC
        MT, NT = self.MT, self.NT
        self.FA = [8, 8 + 4 * MT + 4 * NT]
        self.FB = [self.FA[0] + 4 * MT, self.FA[1] + 4 * MT]
        nxt = self.FA[1] + 4 * MT + 4 * NT
        self.VA = nxt; nxt += 2
        self.VB = nxt; nxt += NT
        nxt = (nxt + 3) // 4 * 4
        self.ACC = nxt; nxt += MT * NT * 4
        self.VX = nxt
        assert nxt <= 256
        self.RTW = TM // 32
        self.LA = 2 * self.RTW
        self.LB = 4 * self.nfull + (2 if self.half else 0)
        self.a_flags = "" if araw else AFL.replace("_", " ").replace("none", "")
        self.b_flags = "nt" if ((araw and WNT) or (name == "w1" and BNT4) or (name == "w2" and BNT5)) else ""
    def acc(self, mt, nt): return self.ACC + (nt * self.MT + mt) * 4
    def swapped(self, nt): return True
    def blk_delta(self, j): return 128 * j

    def c_setup(self):
        MT, NS = self.MT, self.NS
        if self.araw:
            e(f"""
s_lshl_b32 s30, s{sWM}, 13
s_add_u32 s30, s30, {self.a_lds}
v_lshl_add_u32 v5, v4, 7, s30          ; (64wm+m)*128
v_lshrrev_b32 v6, 1, v4
v_xor_b32 v6, v6, v3
v_lshl_add_u32 v{self.VA}, v6, 4, v5
v_xor_b32 v6, 4, v6
v_lshl_add_u32 v{self.VA+1}, v6, 4, v5
""")
        else:
            e(f"s_mul_i32 s30, s{sWM}, {MT*2048}\ns_add_u32 s30, s30, {self.a_lds}\nv_lshl_add_u32 v{self.VA}, v1, 4, s30")
            e(f"v_add_u32 v{self.VA+1}, 0x10000, v{self.VA}")
        e("v_bfe_u32 v5, v1, 2, 2\nv_and_b32 v6, 3, v1")
        if self.kperm:
            e("v_lshl_add_u32 v7, v3, 2, v5\nv_bfe_u32 v2, v7, 1, 2")
        else:
            e("v_lshl_add_u32 v7, v3, 3, v5\nv_lshrrev_b32 v2, 1, v5\nv_and_b32 v8, 1, v3\nv_lshl_or_b32 v2, v8, 1, v2")
        e("v_mov_b32 v9, v7\nv_lshlrev_b32 v7, 7, v7\nv_lshl_add_u32 v7, v6, 3, v7")
        for t, (kind, blk, seg) in enumerate(self.tiles()):
            vb = self.VB + t
            if kind == "F":
                e(f"s_mul_i32 s30, s{sWN}, {seg[1]}\ns_add_u32 s30, s30, {seg[0]}")
                e(f"v_xor_b32 v8, s30, v2\nv_lshl_add_u32 v{vb}, v8, 5, v7")
                e(f"s_mul_i32 s30, s{sWN}, {blk[1]*NS*8192}\ns_add_u32 s30, s30, {self.b_base[0] + blk[0]*NS*8192}")
                e(f"v_add_u32 v{vb}, s30, v{vb}")
            else:
                e(f"v_bfe_u32 v8, v9, 2, 1\nv_xor_b32 v8, s{sWN}, v8\nv_lshlrev_b32 v8, 5, v8")
                e(f"v_lshl_add_u32 v8, v9, 6, v8\nv_lshl_add_u32 v8, v6, 3, v8\nv_add_u32 v{vb}, {self.h_base}, v8")
        for r in range(self.ACC, self.ACC + self.MT * self.NT * 4, 2): e(f"v_mov_b64 {v(r,2)}, 0")
    def reads(self, st, sub, fs):
        out = []
        kinds = [t[0] for t in self.tiles()]
        for t in range(self.NT):
            for hi in range(2):
                rows = 32 * sub + (16 if self.kperm else 4) * hi
                off = st * 8192 + rows * 128 if kinds[t] == "F" else st * 4096 + rows * 64
                out.append(f"ds_read_b64_tr_b16 {v(self.FB[fs]+4*t+2*hi,2)}, v{self.VB+t} offset:{off}")
            if t == 0:
                for mt in range(self.MT):
                    if self.araw:
                        base, off = self.VA + sub, st * self.a_stage + mt * 2048
                    else:
                        off = st * self.a_stage + mt * 2048 + sub * 1024
                        base = self.VA + (off >> 16); off &= 0xffff
                    out.append(f"ds_read_b128 {v(self.FA[fs]+4*mt,4)}, v{base} offset:{off}")
        return out
    def mfmas(self, fs):
        out = []
        for t in range(self.NT):
            for mt in (range(self.MT) if t % 2 == 0 else reversed(range(self.MT))):
                a, w, c = v(self.FA[fs] + 4 * mt, 4), v(self.FB[fs] + 4 * t, 4), v(self.acc(mt, t), 4)
                out.append(f"v_mfma_f32_16x16x32_bf16 {c}, {w}, {a}, {c}" if self.swapped(t) else
                           f"v_mfma_f32_16x16x32_bf16 {c}, {a}, {w}, {c}")
        if NOMFMA: out = ["s_nop 0"] * len(out)
        return out
    def c_loop(self, ST):
        NS, NK, n = self.NS, self.NK, self.name
        slow = []
        def step(st, last=False):
            e("s_waitcnt lgkmcnt(0)")
            m, r = self.mfmas(0), self.reads(st, 1, 1)
            pos = max(len(r), len(m) - FPOS)
            for i in range(max(len(m), len(r) + 1)):
                if i < len(m): e(m[i])
                if i < len(r): e(r[i])
                if i == min(pos, max(len(m), len(r) + 1) - 1) and not last: e(f"ds_read_b32 v{vFV}, v{vFR}")
            e(f"v_add_u32 v{vCNT}, 1, v{vCNT}\ns_add_u32 s{sNEED}, s{sNEED}, 1\ns_waitcnt lgkmcnt(0)")
            m = self.mfmas(1)
            e(f"ds_write_b32 v{vDW}, v{vCNT}")
            if last:
                for x in m: e(x)
                return
            r = self.reads((st + 1) % NS, 0, 0)
            S, B = A.newlabel("slow"), A.newlabel("back")
            slow.append((S, B))
            e(m[0])
            e(f"v_cmp_gt_u32 vcc, s{sNEED}, v{vFV}")
            e(m[1])
            e(f"s_cbranch_vccnz {S}")
            A.label(B)
            for i in range(max(len(m) - 2, len(r))):
                if i < len(r): e(r[i])
                if i + 2 < len(m): e(m[i + 2])
        ST.stamp()
        e(f"s_mov_b32 s{sNEED}, {self.base + 1}")
        lds_wait(vFR, f"s{sNEED}", vFV, sleep=0)
        ST.stamp()
        for r in self.reads(0, 0, 0): e(r)
        body = NK - 1
        st = 0
        for i in range(body % NS):
            step(st); st = (st + 1) % NS
        e(f"s_mov_b32 s{sCNT}, {body // NS}")
        A.label(f"{n}_cloop")
        for i in range(NS):
            step(st); st = (st + 1) % NS
        e(f"s_sub_u32 s{sCNT}, s{sCNT}, 1\ns_cmp_lg_u32 s{sCNT}, 0\ns_cbranch_scc1 {n}_cloop")
        step(st, last=True)
        X = A.newlabel("cdone")
        e(f"s_branch {X}")
        for S, B in slow:
            A.label(S)
            e(f"ds_read_b32 v{vFV}, v{vFR}\ns_waitcnt lgkmcnt(0)\nv_cmp_gt_u32 vcc, s{sNEED}, v{vFV}\ns_cbranch_vccz {B}\ns_add_u32 s3, s3, 1\ns_cmp_lt_u32 s3, {LSPIN_MAX}\ns_cbranch_scc1 {S}\ns_branch {B}")
        A.label(X)
        ST.stamp()

    PA, PB, PH = 232, 236, 240
    def p_setup_b(self):
        ldb = self.ldb
        e(f"""
s_lshl_b32 s{sM0B}, s{sW}, 12
s_lshl_b32 s{sM0H}, s{sW}, 11
v_lshrrev_b32 v6, 3, v1
s_lshl_b32 s30, s{sW}, 5
v_add_u32 v6, s30, v6
v_mul_u32_u24 v6, {ldb}, v6
v_and_b32 v7, 1, v1
v_lshl_add_u32 v6, v7, 4, v6
v_add_u32 v6, s{sBC}, v6
v_bfe_u32 v7, v1, 1, 2
""")
        PB = self.PB
        if self.kperm:
            e(f"v_xor_b32 v5, v7, v3\nv_lshl_add_u32 v{PB}, v5, 5, v6\nv_add_u32 v{PB+1}, {8*ldb-1024}, v{PB}")
        else:
            e(f"v_and_b32 v5, 1, v3\nv_xor_b32 v5, v7, v5\nv_lshl_add_u32 v{PB}, v5, 5, v6")
            e(f"v_xor_b32 v5, 2, v5\nv_lshl_add_u32 v{PB+1}, v5, 5, v6\nv_add_u32 v{PB+1}, {8*ldb-1024}, v{PB+1}")
        e(f"v_add_u32 v{PB+2}, {16*ldb-2048}, v{PB}\nv_add_u32 v{PB+3}, {16*ldb-2048}, v{PB+1}")
        if self.half:
            e(f"""
v_lshrrev_b32 v6, 2, v1
v_add_u32 v6, s30, v6
v_mul_u32_u24 v6, {ldb}, v6
v_and_b32 v7, 1, v1
v_lshl_add_u32 v6, v7, 4, v6
v_add_u32 v6, s{sBH}, v6
v_bfe_u32 v7, v1, 1, 1
v_and_b32 v5, 1, v3
v_xor_b32 v5, v7, v5
v_lshl_add_u32 v{self.PH}, v5, 5, v6
v_add_u32 v{self.PH+1}, {16*ldb-1024}, v{self.PH}
""")
    def p_setup_a(self):
        PA = self.PA
        if self.araw:
            e(f"""
s_lshl_b32 s{sM0A}, s{sW}, 13
v_lshrrev_b32 v6, 3, v1
s_lshl_b32 s30, s{sW}, 6
v_add_u32 v6, s30, v6
v_lshlrev_b32 v6, 11, v6
v_and_b32 v7, 7, v1
v_xor_b32 v7, v7, v3
v_lshl_add_u32 v{PA}, v7, 4, v6
v_xor_b32 v7, 4, v7
v_lshl_add_u32 v{PA+1}, v7, 4, v6
v_add_u32 v{PA+1}, {8*2048-1024}, v{PA+1}
v_add_u32 v{PA+2}, {16*2048-2048}, v{PA}
v_add_u32 v{PA+3}, {16*2048-2048}, v{PA+1}
""")
        else:
            e(f"s_mul_i32 s{sM0A}, s{sW}, {self.RTW*2048}\ns_mul_i32 s30, s{sW}, {self.RTW*self.KB*1024}\nv_lshl_add_u32 v{PA}, v1, 4, s30")
            e(f"v_add_u32 v{PA+1}, {self.KB*1024-2048}, v{PA}")
    def a_src(self, i, step):
        e(f"s_add_u32 s31, s{sAR}, {2*i*self.KB*1024 + step*2048}")
    def groups_a(self, step):
        st = step % self.NS
        out = []
        for gidx in range(self.RTW // 2):
            def fn(gidx=gidx):
                e(f"s_add_u32 m0, s{sM0A}, {self.a_lds + st*self.a_stage + gidx*4096}")
                if self.araw:
                    e(f"s_add_u32 s31, s{sAR}, {gidx*32*2048 + step*128}")
                    for i in range(4): e(f"buffer_load_dwordx4 v{self.PA+i}, {s(SX,4)}, s31 offen offset:{i*1024} lds")
                else:
                    self.a_src(gidx, step)
                    for i in range(4): e(f"buffer_load_dwordx4 v{self.PA+(i>>1)}, {s(SWS,4)}, s31 offen offset:{i*1024} {self.a_flags} lds")
            out.append((step, 4, fn))
        return out
    def groups_b(self, step):
        st = step % self.NS
        ko = step * 64 * self.ldb
        out = []
        for j in range(self.nfull):
            def fn(j=j):
                e(f"s_add_u32 m0, s{sM0B}, {self.b_base[j] + st*8192}\ns_add_u32 s31, s{sBR}, {ko + self.blk_delta(j)}")
                for i in range(4): e(f"buffer_load_dwordx4 v{self.PB+i}, {s(SB,4)}, s31 offen offset:{i*1024} {self.b_flags} lds")
            out.append((step, 4, fn))
        if self.half:
            def fn():
                e(f"s_add_u32 m0, s{sM0H}, {self.h_base + st*4096}\ns_add_u32 s31, s{sBR}, {ko}")
                for i in range(2): e(f"buffer_load_dwordx4 v{self.PH+i}, {s(SB,4)}, s31 offen offset:{i*1024} {self.b_flags} lds")
            out.append((step, 2, fn))
        return out
    def issue_b(self, Q, step):
        for tag, n, fn in self.groups_b(step):
            fn(); Q.add(tag, n)
    def p_loop(self, Q, ST, b_pre, after_first=None):
        NS, NK = self.NS, self.NK
        def wait(step):
            if Q.has(step): Q.wait(step)
        def publish(step):
            wait(step)
            e(f"v_mov_b32 v{vCNT}, {self.base + step + 1}\nds_write_b32 v{vDW}, v{vCNT}")
        def issue(step, pub=None):
            groups = (self.groups_b(step) if step >= b_pre else []) + self.groups_a(step)
            for tag, n, fn in groups:
                if pub is not None and Q.after(pub) >= PUBN:
                    publish(pub); pub = None
                fn(); Q.add(tag, n)
            if pub is not None: publish(pub)
        issue(0)
        if after_first: after_first()
        issue(1, 0)
        ST.stamp()
        for st in range(2, NS): issue(st, 1 if st == NS - 1 else None)
        pubd = 1
        for k in range(NS, NK):
            lds_wait(vFR, self.base + k - NS + 1, vFV, sleep=DSLEEP)
            issue(k, pubd + 1); pubd += 1
        for k in range(pubd + 1, NK): publish(k)
        lds_wait(vFR, self.base + NK, vFV)
        ST.stamp()

class QKV(Gemm):
    def __init__(self): super().__init__("qkv", 128, 192, 16, 3, 32, 6144, False, araw=True)
    def tiles(self): return [("F", (t >> 1, 0), (t & 1, 2)) for t in range(6)]
    def swapped(self, nt): return nt < 4
    def blk_delta(self, j): return 2048 * j
class WO(Gemm):
    def __init__(self): super().__init__("wo", 128, 64, 16, 4, 32, 2048, True, b_lds=104 * KB)
    def tiles(self): return [("F", (0, 0), (t, 2)) for t in range(2)]
class W1(Gemm):
    def __init__(self): super().__init__("w1", 128, 224, 16, 3, 32, 7168, True)
    def tiles(self): return [("F", (0, 2), (t, 0)) for t in range(4)] + [("F", (1, 0), (t, 2)) for t in range(2)] + [("H", None, None)]
class W2(Gemm):
    def __init__(self):
        if SPLIT == 4: super().__init__("w2", 256, 128, 14, 3, 112, 2048, True)
        else: super().__init__("w2", 128, 128, 28, 4, 112, 2048, True)
    def tiles(self): return [("F", (0, 1), (t, 0)) for t in range(4)]
    def p_setup_a(self):
        MT, RTW = self.MT, self.RTW
        assert MT // SPLIT == 2 and RTW == MT
        super().p_setup_a()
        for i in range(RTW // 2):
            e(f"s_add_u32 s30, s{sKS}, {i}\ns_and_b32 s30, s30, {MT//2-1}\ns_mul_i32 s30, s30, {2*self.KB*1024}\ns_add_u32 s{40+i}, s30, s{sAR}")
    def a_src(self, i, step): e(f"s_add_u32 s31, s{40+i}, {step*2048}")

G1, G3, G4, G5 = QKV(), WO(), W1(), W2()
G1.base, G3.base, G4.base, G5.base = 0, 16, 32, 48
L_K, L_V, L_Q = 0, 48 * KB, 96 * KB

def rowmajor_voff(dst, t):
    e(f"v_and_b32 v{t}, 1, v3\nv_lshlrev_b32 v{t}, 1, v{t}\nv_lshrrev_b32 v{dst}, 1, v3\nv_or_b32 v{t}, v{t}, v{dst}")
    e(f"v_lshlrev_b32 v{t}, 4, v{t}\nv_lshl_add_u32 v{dst}, v4, 11, v{t}")

def roles_84(rb=sRB, cb=sCB):
    e(f"s_and_b32 s{rb}, s{sG}, 1\ns_lshl_b32 s{rb}, s{rb}, 3\ns_and_b32 s30, s{sR}, 7\ns_add_u32 s{rb}, s{rb}, s30")
    e(f"s_lshr_b32 s{cb}, s{sG}, 1\ns_lshl_b32 s{cb}, s{cb}, 2\ns_lshr_b32 s30, s{sR}, 3\ns_add_u32 s{cb}, s{cb}, s30")
def roles_48(rb=sRB, cb=sCB):
    e(f"s_and_b32 s{rb}, s{sG}, 3\ns_lshl_b32 s{rb}, s{rb}, 2\ns_and_b32 s30, s{sR}, 3\ns_add_u32 s{rb}, s{rb}, s30")
    e(f"s_lshr_b32 s{cb}, s{sG}, 2\ns_lshl_b32 s{cb}, s{cb}, 3\ns_lshr_b32 s30, s{sR}, 2\ns_add_u32 s{cb}, s{cb}, s30")
def roles_w2(rb=sRB, cb=sCB, ks=sKS):
    assert SPLIT == 4
    e(f"s_and_b32 s{rb}, s{sG}, 1\ns_lshl_b32 s{rb}, s{rb}, 2\ns_and_b32 s30, s{sR}, 3\ns_add_u32 s{rb}, s{rb}, s30\ns_lshl_b32 s{rb}, s{rb}, 1")
    e(f"s_lshr_b32 s{cb}, s{sR}, 2\ns_lshr_b32 s{ks}, s{sG}, 1")
def dual(fn, cond):
    S, X = A.newlabel("slowst"), A.newlabel("stx")
    cond()
    e(f"s_cbranch_scc1 {S}")
    fn(LS)
    e(f"s_branch {X}")
    A.label(S)
    fn("sc1")
    A.label(X)
def w1_cols():
    e(f"""
s_mul_i32 s{sBH}, s{sCB}, 448
s_and_b32 s30, s{sCB}, 1
s_lshl_b32 s{sBC}, s30, 6
s_add_u32 s{sBC}, s{sBC}, s{sBH}
s_xor_b32 s30, s30, 1
s_mul_i32 s30, s30, 384
s_add_u32 s{sBH}, s{sBH}, s30
""")
def flag_addr(dst, base, hi, lo, nw, wave):
    e(f"s_lshl_b32 s{dst}, s{hi}, 4\ns_add_u32 s{dst}, s{dst}, s{lo}\ns_mul_i32 s{dst}, s{dst}, {nw}")
    if wave is not None: e(f"s_add_u32 s{dst}, s{dst}, s{wave}")
    e(f"s_lshl_b32 s{dst}, s{dst}, 2\ns_add_u32 s{dst}, s{dst}, {base}")

def attention(ST, is_p, Q=None):
    n = "attp" if is_p else "attc"
    e("v_lshlrev_b32 v5, 2, v3")
    for k in range(4): e(f"v_add_u32 v6, {k}, v5\nv_cmp_gt_u32 {s(40+2*k,2)}, v6, v4")
    e(f"""
s_lshl_b32 s36, s{sRB}, 2
s_add_u32 s36, s36, s38
s_sub_i32 s36, 8, s36
s_max_i32 s36, s36, 0
s_mul_i32 s37, s{sWN}, 24
s_lshl_b32 s39, s38, 1
s_add_u32 s37, s37, s39
s_lshl_b32 s37, s37, 10
v_lshl_add_u32 v5, v1, 4, s37
v_mov_b32 v6, {f32(-1e30)}
v_add_u32 v7, {L_V}, v5
v_mov_b32 v16, 0x3f803f80
v_mov_b32 v17, 0x3f803f80
v_mov_b32 v18, 0x3f803f80
v_mov_b32 v19, 0x3f803f80
""")
    ST.stamp()
    if is_p: Q.wait("nk")
    e("s_waitcnt lgkmcnt(0)\ns_barrier")
    if is_p:
        e(f"s_lshl_b32 s30, s{sW}, 11\ns_add_u32 s30, s30, {L_Q}\nv_lshl_add_u32 v2, v1, 4, s30\nds_read_b128 v[8:11], v2\nds_read_b128 v[12:15], v2 offset:1024")
    ST.stamp()
    S = 64
    def sr(qt, u): return S + (qt * 18 + u) * 4
    KF = 24
    for u in range(8): e(f"ds_read_b128 {v(KF+4*u,4)}, v5 offset:{L_K + u*1024}")
    for p in range(9):
        lskip, ldone = f"{n}_sk{p}", f"{n}_sd{p}"
        issued = min(18, 2 * p + 8)
        e(f"s_waitcnt lgkmcnt({issued - (2*p+2)})")
        if p < 8: e(f"s_cmp_gt_u32 s36, {p}\ns_cbranch_scc1 {lskip}")
        for u in (2 * p, 2 * p + 1):
            for qt in range(2):
                if (qt == 0 and u == 17) or (qt == 1 and u == 0): continue
                e(f"v_mfma_f32_16x16x32_bf16 {v(sr(qt,u),4)}, {v(KF+4*(u%8),4)}, {v(8+4*qt,4)}, 0")
        if p < 8:
            e(f"s_branch {ldone}")
            A.label(lskip)
            for u in (2 * p, 2 * p + 1):
                for qt in range(2):
                    for k in range(4): e(f"v_mov_b32 v{sr(qt,u)+k}, v6")
            A.label(ldone)
        for u in (2 * p + 8, 2 * p + 9):
            if u < 18: e(f"ds_read_b128 {v(KF+4*(u%8),4)}, v5 offset:{L_K + u*1024}")
    for qt in range(2):
        for k in range(4):
            r = sr(qt, qt) + k
            e(f"v_cndmask_b32 v{r}, v6, v{r}, {s(40+2*k,2)}")
        for k in range(4):
            r = sr(qt, 16 + qt) + k
            e(f"v_cndmask_b32 v{r}, v{r}, v6, {s(40+2*k,2)}")
    if is_p: Q.wait("nv")
    e("s_barrier")
    def pf(ptr, nbytes, rev, dst):
        srd(SB, ptr, nbytes)
        e(f"s_xor_b32 s30, s2, {255 if rev else 0}\ns_lshl_b32 s30, s30, 2\ns_add_u32 s30, s30, s{sW}\ns_lshl_b32 s30, s30, 13\nv_lshlrev_b32 v2, 7, v1")
        e(f"buffer_load_dword v{dst}, v2, {s(SB,4)}, s30 offen")
    if is_p:
        pf(pW1, 1024 * 7168, False, 248); pf(pWO, 2 * MB, True, 249)
        L = A.newlabel("nob3")
        e(f"s_cmp_ge_u32 s{sW}, 2\ns_cbranch_scc1 {L}\nv_mov_b32 v250, v5\nv_mov_b32 v251, v7\nv_mov_b32 v247, v6")
        roles_48(32, 33)
        e(f"s_lshl_b32 s{sBC}, s33, 7\ns_mov_b32 s{sBR}, 0")
        G3.p_setup_b()
        for st in range(G3.NS): G3.issue_b(Q, st)
        e("v_mov_b32 v5, v250\nv_mov_b32 v7, v251\nv_mov_b32 v6, v247")
        A.label(L)
    ST.stamp()
    VF = 24
    CSC = (32 ** -0.5) * LOG2E
    e(f"s_mov_b32 s{sC0}, {f32(CSC)}\ns_mov_b32 s{sC0+1}, {f32(CSC)}")
    O = 208
    for q in range(4): e(f"ds_read_b128 {v(VF+4*q,4)}, v7 offset:{q*1024}")
    for r in range(O, O + 24, 2): e(f"v_mov_b64 {v(r,2)}, 0")
    for qt in range(2):
        regs = [sr(qt, u) + k for u in range(qt, qt + 17) for k in range(4)]
        mx = 56 + 2 * qt
        e(f"v_max3_f32 v{mx}, v{regs[0]}, v{regs[1]}, v{regs[2]}\nv_max3_f32 v{mx+1}, v{regs[3]}, v{regs[4]}, v{regs[5]}")
        i = 6; k = 0
        while i < len(regs):
            e(f"v_max3_f32 v{mx+k}, v{regs[i]}, v{regs[i+1]}, v{mx+k}"); i += 2; k ^= 1
        e(f"v_max_f32 v{mx}, v{mx}, v{mx+1}")
        xg("v_max_f32", mx, mx + 1)
        e(f"v_mul_f32 v{mx}, {f32(-CSC)}, v{mx}")
    for p in range(9):
        for b in (2 * p + 4, 2 * p + 5):
            if b < 18: e(f"ds_read_b128 {v(VF+4*(b%8),4)}, v7 offset:{b*1024}")
        if is_p and p == PF2: pf(pW2, 3584 * 2048, False, 246)
        live = [(qt, u) for qt in range(2) for u in (2 * p, 2 * p + 1) if not ((qt == 0 and u == 17) or (qt == 1 and u == 0))]
        for qt, u in live:
            r = sr(qt, u)
            for h in range(2): e(f"v_pk_fma_f32 {v(r+2*h,2)}, {v(r+2*h,2)}, {s(sC0,2)}, {v(56+2*qt,2)} op_sel_hi:[1,1,0]")
        for qt, u in live:
            for k in range(4): e(f"v_exp_f32 v{sr(qt,u)+k}, v{sr(qt,u)+k}")
        for qt, u in live:
            r = sr(qt, u); dst = sr(qt, 2 * p) + 2 * (u & 1)
            e(f"v_cvt_pk_bf16_f32 v{dst}, v{r}, v{r+1}\nv_cvt_pk_bf16_f32 v{dst+1}, v{r+2}, v{r+3}")
        if p == 8: e(f"v_mov_b64 {v(sr(0,16)+2,2)}, 0")
        if p == 0: e(f"v_mov_b64 {v(sr(1,0),2)}, 0")
        issued = min(18, 2 * p + 6)
        e(f"s_waitcnt lgkmcnt({issued - (2*p+2)})")
        lskip = f"{n}_pv{p}"
        if p < 8: e(f"s_cmp_gt_u32 s36, {p}\ns_cbranch_scc1 {lskip}")
        for qt in range(2):
            P = v(sr(qt, 2 * p), 4)
            for dt in range(2):
                o = v(O + 12 * qt + 4 * dt, 4)
                e(f"v_mfma_f32_16x16x32_bf16 {o}, {v(VF+4*((2*p+dt)%8),4)}, {P}, {o}")
            o = v(O + 12 * qt + 8, 4)
            e(f"v_mfma_f32_16x16x32_bf16 {o}, v[16:19], {P}, {o}")
        if p < 8: A.label(lskip)
    ST.stamp()
    e(f"""
s_lshl_b32 s30, s{sRB}, 3
s_lshl_b32 s31, s38, 1
s_add_u32 s30, s30, s31
s_lshl_b32 s30, s30, 5
s_lshl_b32 s31, s{sCB}, 1
s_add_u32 s30, s30, s31
s_add_u32 s30, s30, s{sWN}
s_lshl_b32 s30, s30, 10
s_add_u32 s30, s30, {WS_O}
s_add_u32 s31, s30, {32*1024}
v_lshlrev_b32 v2, 4, v1
""")
    for qt in range(2):
        o = O + 12 * qt
        e(f"v_rcp_f32 v{o+8}, v{o+8}")
        for h in range(4): e(f"v_pk_mul_f32 {v(o+2*h,2)}, {v(o+2*h,2)}, {v(o+8,2)} op_sel_hi:[1,0]")
        for h in range(4): e(f"v_cvt_pk_bf16_f32 v{24+4*qt+h}, v{o+2*h}, v{o+2*h+1}")
        e(f"buffer_store_dwordx4 {v(24+4*qt,4)}, v2, {s(SWS,4)}, s{30+qt} offen sc1")
    flag_addr(32, WS_F2, sRB, sCB, 8, sWAVE)
    e("s_waitcnt vmcnt(0)")
    if Q: Q.q = []
    set_flag(32)
    if Q: Q.add("flag")
    e("s_barrier")
    ST.stamp()

def consumer():
    ST = Stamper(); ST.n = 1
    G = G1
    e(f"s_lshl_b32 s30, s{sW}, 8\ns_add_u32 s30, s30, {L_DONE}\nv_lshl_add_u32 v{vDW}, v1, 2, s30")
    e(f"v_and_b32 v{vFR}, 1, v1\nv_lshlrev_b32 v{vFR}, 8, v{vFR}\nv_add_u32 v{vFR}, {L_FULL}, v{vFR}\nv_mov_b32 v{vCNT}, 0")
    e(f"ds_write_b32 v{vDW}, v{vCNT}\nds_write_b32 v{vDW}, v{vCNT} offset:1024\ns_waitcnt lgkmcnt(0)\ns_barrier")
    G.c_setup()
    G.c_loop(ST)
    e(f"v_and_b32 v2, 3, v1\nv_lshlrev_b32 v2, 8, v2\nv_add_u32 v2, {L_DONE}, v2\nv_add_u32 v5, {L_HD - L_FULL}, v{vFR}")
    lds_wait(5, 3, 6, sleep=0)
    lds_wait(2, 16, 6, sleep=0)
    X = G.VX
    RA_, CSQ, VA_, VB_, CSV = X, X + 8, X + 24, X + 40, X + 56
    assert CSV + 4 <= vDW
    e(f"s_lshl_b32 s30, s{sWM}, 8\nv_lshl_add_u32 v2, v4, 2, s30\nv_lshl_add_u32 v5, v3, 4, s30")
    e(f"s_lshl_b32 s30, s{sWN}, 7\nv_lshl_add_u32 v6, v3, 4, s30\nv_lshl_add_u32 v7, v4, 2, s30")
    e(f"v_add_u32 v2, {MISC}, v2\nv_add_u32 v5, {MISC}, v5\nv_add_u32 v6, {MISC}, v6\nv_add_u32 v7, {MISC}, v7")
    for mt in range(4):
        e(f"ds_read_b32 v{RA_+2*mt}, v2 offset:{mt*64}\nds_read_b32 v{RA_+2*mt+1}, v2 offset:{512+mt*64}")
    for t in (2, 3, 0, 1): e(f"ds_read_b128 {v(CSQ+4*t,4)}, v6 offset:{1024 + (t>>1)*256 + (t&1)*64}")
    for mt in range(4):
        e(f"ds_read_b128 {v(VA_+4*mt,4)}, v5 offset:{mt*64}\nds_read_b128 {v(VB_+4*mt,4)}, v5 offset:{512+mt*64}")
    for dt in range(2): e(f"ds_read_b32 v{CSV+2*dt}, v7 offset:{1024 + 512 + dt*64}")
    e(f"""
s_lshl_b32 s30, s{sCB}, 1
s_add_u32 s30, s30, s{sWN}
s_lshl_b32 s30, s30, 7
s_lshl_b32 s31, s{sRB}, 3
s_add_u32 s30, s30, s31
s_lshl_b32 s31, s{sWM}, 2
s_add_u32 s30, s30, s31
s_lshl_b32 s30, s30, 10
s_add_u32 s33, s30, {WS_K}
s_add_u32 s34, s30, {WS_V}
s_mul_i32 s30, s{sWN}, 24
s_add_u32 s30, s30, s31
s_add_u32 s30, s30, 16
s_lshl_b32 s30, s30, 10
v_lshlrev_b32 v2, 4, v1
v_add_u32 v5, s30, v2
s_lshl_b32 s30, s{sW}, 11
s_add_u32 s30, s30, {L_Q}
v_add_u32 v6, s30, v2
s_waitcnt lgkmcnt(0)
""")
    def fold_rows(mt, t):
        c = G.acc(mt, t); k = RA_ + 2 * mt
        for h in range(2):
            p = v(c + 2 * h, 2)
            e(f"v_pk_mul_f32 {p}, {p}, {v(k,2)} op_sel_hi:[1,0]")
            e(f"v_pk_fma_f32 {p}, {v(CSQ+4*t+2*h,2)}, {v(k,2)}, {p} op_sel:[0,1,0] op_sel_hi:[1,1,1]")
    def fold_v(mt, dt):
        c = G.acc(mt, 4 + dt)
        for h in range(2):
            p = v(c + 2 * h, 2)
            e(f"v_pk_mul_f32 {p}, {p}, {v(VA_+4*mt+2*h,2)}")
            e(f"v_pk_fma_f32 {p}, {v(VB_+4*mt+2*h,2)}, {v(CSV+2*dt,2)}, {p} op_sel_hi:[1,0,1]")
    def epi1(fl):
        t = 24
        for mt in range(4):
            fold_rows(mt, 2); fold_rows(mt, 3)
            pack(t, G.acc(mt, 2), G.acc(mt, 3))
            e(f"buffer_store_dwordx4 {v(t,4)}, v2, {s(SWS,4)}, s33 offen offset:{mt*1024} {fl}")
            e(f"ds_write_b128 v5, {v(t,4)} offset:{L_K + mt*1024}"); t += 4
        for p in range(2):
            for dt in range(2):
                fold_v(2 * p, dt); fold_v(2 * p + 1, dt)
                pack(t, G.acc(2 * p, 4 + dt), G.acc(2 * p + 1, 4 + dt))
                e(f"buffer_store_dwordx4 {v(t,4)}, v2, {s(SWS,4)}, s34 offen offset:{(2*p+dt)*1024} {fl}")
                e(f"ds_write_b128 v5, {v(t,4)} offset:{L_V + (2*p+dt)*1024}"); t += 4
        for mt in (2, 3, 0, 1):
            fold_rows(mt, 0); fold_rows(mt, 1)
            d = 8 + 4 * mt
            pack(d, G.acc(mt, 0), G.acc(mt, 1))
            if mt >= 2: e(f"ds_write_b128 v6, {v(d,4)} offset:{(mt-2)*1024}")
        flag_addr(32, WS_F1, sCB, sRB, 4, sW)
        e("s_waitcnt vmcnt(0)")
        set_flag(32, fl)
    dual(epi1, lambda: e(f"s_lshr_b32 s30, s{sRB}, 1\ns_cmp_eq_u32 s30, 3"))
    e(f"s_lshl_b32 s38, s{sWM}, 1")
    attention(ST, False)
    if STOP <= 2: return ST
    G = G3
    roles_48()
    X = G.VX
    rowmajor_voff(X + 16, X + 17)
    e(f"""
s_lshl_b32 s35, s{sRB}, 1
s_add_u32 s35, s35, s{sWM}
s_lshl_b32 s36, s{sCB}, 1
s_add_u32 s36, s36, s{sWN}
s_lshl_b32 s30, s35, 17
s_lshl_b32 s31, s36, 6
s_add_u32 s30, s30, s31
""")
    for mt in range(4): e(f"s_add_u32 s31, s30, {mt*16*2048}\nbuffer_load_dwordx4 {v(X+4*mt,4)}, v{X+16}, {s(SX,4)}, s31 offen")
    G.c_setup()
    G.c_loop(ST)
    e(f"""
s_lshl_b32 s30, s35, 17
s_lshl_b32 s31, s36, 10
s_add_u32 s30, s30, s31
s_add_u32 s30, s30, {WS_H}
v_lshlrev_b32 v2, 4, v1
s_waitcnt vmcnt(0)
""")
    HU = X + 24
    for mt in range(4):
        x = X + 4 * mt
        e(f"v_permlane16_swap_b32 v{x}, v{x+2}\nv_permlane16_swap_b32 v{x+1}, v{x+3}")
        pack(8, G.acc(mt, 0), G.acc(mt, 1))
        for d in range(4):
            unpack(12, 8 + d); unpack(14, x + d)
            e(f"v_pk_add_f32 v[12:13], v[12:13], v[14:15]\nv_cvt_pk_bf16_f32 v{x+d}, v12, v13")
        e(f"s_add_u32 s31, s30, {mt*32*1024}\nbuffer_store_dwordx4 {v(x,4)}, v2, {s(SWS,4)}, s31 offen sc1")
    for mt in range(4):
        x = X + 4 * mt; u = HU + 8 * mt
        for d in range(4): unpack(u + 2 * d, x + d)
        sm = 32 + 2 * mt
        e(f"v_pk_add_f32 v[12:13], {v(u,2)}, {v(u+2,2)}\nv_pk_add_f32 v[14:15], {v(u+4,2)}, {v(u+6,2)}")
        e(f"v_pk_add_f32 v[12:13], v[12:13], v[14:15]\nv_add_f32 v{sm}, v12, v13")
    for mt in range(4): xg("v_add_f32", 32 + 2 * mt, 16 + mt)
    for mt in range(4):
        u = HU + 8 * mt; sm = 32 + 2 * mt
        e(f"v_mul_f32 v12, {f32(1/32)}, v{sm}")
        for d in range(4): e(f"v_pk_add_f32 {v(u+2*d,2)}, {v(u+2*d,2)}, v[12:13] op_sel_hi:[1,0] neg_lo:[0,1] neg_hi:[0,1]")
        e(f"v_pk_mul_f32 v[14:15], {v(u,2)}, {v(u,2)}")
        for d in range(1, 4): e(f"v_pk_fma_f32 v[14:15], {v(u+2*d,2)}, {v(u+2*d,2)}, v[14:15]")
        e(f"v_add_f32 v{sm+1}, v14, v15")
    for mt in range(4): xg("v_add_f32", 33 + 2 * mt, 16 + mt)
    for k in range(1, 4):
        e(f"v_cmp_eq_u32 vcc, {k}, v3\nv_cndmask_b32 v32, v32, v{32+2*k}, vcc\nv_cndmask_b32 v33, v33, v{33+2*k}, vcc")
    e(f"""
s_lshl_b32 s30, s35, 14
s_lshl_b32 s31, s36, 9
s_add_u32 s30, s30, s31
s_add_u32 s30, s30, {WS_STAT}
v_lshlrev_b32 v2, 3, v1
buffer_store_dwordx2 v[32:33], v2, {s(SWS,4)}, s30 offen sc1
""")
    flag_addr(32, WS_F3, sRB, sCB, 4, sW)
    e("s_waitcnt vmcnt(0)")
    set_flag(32)
    ST.stamp()
    if STOP <= 3: return ST
    G = G4
    roles_84()
    G.c_setup()
    G.c_loop(ST)
    e(f"v_add_u32 v5, {L_HD - L_FULL}, v{vFR}")
    lds_wait(5, 4, 6, sleep=0)
    e(f"s_lshl_b32 s30, s{sWM}, 9\ns_add_u32 s30, s30, {L_RA}\nv_lshl_add_u32 v2, v4, 3, s30")
    for mt in range(4): e(f"ds_read_b64 {v(8+2*mt,2)}, v2 offset:{mt*128}")
    e(f"""
s_and_b32 s30, s{sCB}, 1
s_lshl_b32 s31, s30, 7
s_lshl_b32 s32, s{sWN}, 9
s_add_u32 s32, s32, s31
s_add_u32 s32, s32, {L_CS}
v_lshl_add_u32 v5, v3, 4, s32
s_lshl_b32 s32, s{sWN}, 7
s_add_u32 s32, s32, s31
s_add_u32 s32, s32, {L_CS + 256}
v_lshl_add_u32 v6, v3, 4, s32
s_xor_b32 s33, s30, 1
s_mul_i32 s33, s33, 768
s_lshl_b32 s32, s{sWN}, 6
s_add_u32 s32, s32, s33
s_add_u32 s32, s32, {L_CS}
v_lshl_add_u32 v7, v3, 4, s32
""")
    CS = 16
    for t in range(4): e(f"ds_read_b128 {v(CS+4*t,4)}, v5 offset:{64*t}")
    for t in range(2): e(f"ds_read_b128 {v(CS+16+4*t,4)}, v6 offset:{64*t}")
    e(f"ds_read_b128 {v(CS+24,4)}, v7")
    e(f"""
s_mul_i32 s32, s{sCB}, 7
s_lshl_b32 s33, s{sRB}, 3
s_lshl_b32 s34, s{sWM}, 2
s_add_u32 s33, s33, s34
s_mul_i32 s33, s33, 112
s_add_u32 s32, s32, s33
s_add_u32 s33, s32, s30
s_lshl_b32 s34, s{sWN}, 2
s_add_u32 s34, s34, s33
s_add_u32 s35, s33, s{sWN}
s_add_u32 s35, s35, 2
s_xor_b32 s36, s30, 1
s_mul_i32 s36, s36, 6
s_add_u32 s36, s36, s32
s_lshl_b32 s34, s34, 10
s_lshl_b32 s35, s35, 10
s_lshl_b32 s36, s36, 10
s_add_u32 s34, s34, {WS_H1}
s_add_u32 s35, s35, {WS_H1}
s_add_u32 s36, s36, {WS_H1}
s_lshl_b32 s37, s{sWN}, 3
s_add_u32 s36, s36, s37
v_lshlrev_b32 v2, 4, v1
s_mov_b32 s{sC0}, {f32(-LOG2E)}
s_mov_b32 s{sC0+1}, {f32(-LOG2E)}
s_waitcnt lgkmcnt(0)
""")
    T = 48
    def silu(mt, ts):
        k = 8 + 2 * mt
        for i, t in enumerate(ts):
            c = G.acc(mt, t)
            for h in range(2):
                p = v(c + 2 * h, 2)
                e(f"v_pk_mul_f32 {p}, {p}, {v(k,2)} op_sel:[0,1] op_sel_hi:[1,1]")
                e(f"v_pk_fma_f32 {p}, {v(CS+4*t+2*h,2)}, {v(k,2)}, {p} op_sel_hi:[1,0,1]")
        for i, t in enumerate(ts):
            for k2 in range(4): e(f"v_exp_f32 v{T+4*i+k2}, v{G.acc(mt,t)+k2}")
        for i, t in enumerate(ts):
            for h in range(2): e(f"v_pk_fma_f32 {v(T+4*i+2*h,2)}, {v(T+4*i+2*h,2)}, {s(sC0,2)}, {s(sC0,2)}")
        for i, t in enumerate(ts):
            for k2 in range(4): e(f"v_rcp_f32 v{T+4*i+k2}, v{T+4*i+k2}")
        for i, t in enumerate(ts):
            c = G.acc(mt, t)
            for h in range(2): e(f"v_pk_mul_f32 {v(c+2*h,2)}, {v(c+2*h,2)}, {v(T+4*i+2*h,2)}")
    o = 56
    for mt in range(4):
        e(f"s_add_u32 s30, s34, {mt*112*1024}\ns_add_u32 s31, s35, {mt*112*1024}\ns_add_u32 s32, s36, {mt*112*1024}")
        for pr in range(3):
            silu(mt, (2 * pr, 2 * pr + 1))
            pack(o, G.acc(mt, 2 * pr), G.acc(mt, 2 * pr + 1))
            if pr < 2: e(f"buffer_store_dwordx4 {v(o,4)}, v2, {s(SWS,4)}, s30 offen offset:{pr*1024} {LS}")
            else: e(f"buffer_store_dwordx4 {v(o,4)}, v2, {s(SWS,4)}, s31 offen {LS}")
            o = 56 + (o - 56 + 4) % 32
        silu(mt, (6,))
        c = G.acc(mt, 6)
        e(f"v_cvt_pk_bf16_f32 v{o}, v{c}, v{c+1}\nv_cvt_pk_bf16_f32 v{o+1}, v{c+2}, v{c+3}")
        e(f"buffer_store_dwordx2 {v(o,2)}, v2, {s(SWS,4)}, s32 offen {LS}")
        o = 56 + (o - 56 + 4) % 32
    ST.stamp()
    flag_addr(32, WS_F4, sRB, sCB, 4, sW)
    e("s_waitcnt vmcnt(0)")
    set_flag(32, LS)
    ST.stamp()
    if STOP <= 4: return ST
    G = G5
    roles_w2()
    G.c_setup()
    srd(SD, pOUT, 4 * MB)
    G.c_loop(ST)
    MT = G.MT; keep = MT // SPLIT
    nb = keep * 2
    e(f"""
s_lshl_b32 s33, s{sRB}, 3
s_add_u32 s33, s33, s{sCB}
s_mul_i32 s34, s33, {SPLIT*SPLIT*4*nb*1024}
s_add_u32 s34, s34, {WS_PART}
s_mul_i32 s30, s{sW}, {nb*1024}
s_add_u32 s34, s34, s30
v_lshlrev_b32 v2, 4, v1
""")
    HR = 8
    e(f"""
s_lshl_b32 s35, s{sRB}, 3
s_mul_i32 s30, s{sWM}, {MT}
s_add_u32 s35, s35, s30
s_mul_i32 s30, s{sKS}, {keep}
s_add_u32 s35, s35, s30
s_lshl_b32 s36, s{sCB}, 2
s_lshl_b32 s30, s{sWN}, 1
s_add_u32 s36, s36, s30
s_lshl_b32 s30, s35, 15
s_lshl_b32 s31, s36, 10
s_add_u32 s30, s30, s31
s_add_u32 s30, s30, {WS_H}
""")
    o = 64
    for d in range(1, SPLIT):
        e(f"s_add_u32 s31, s{sKS}, {d}\ns_and_b32 s31, s31, {SPLIT-1}\ns_mul_i32 s31, s31, {SPLIT}\ns_add_u32 s31, s31, s{sKS}")
        e(f"s_mul_i32 s31, s31, {4*nb*1024}\ns_add_u32 s31, s31, s34")
        for i in range(keep):
            for pr in range(2):
                mt = d * keep + i
                pack(o, G.acc(mt, 2 * pr), G.acc(mt, 2 * pr + 1))
                e(f"buffer_store_dwordx4 {v(o,4)}, v2, {s(SWS,4)}, s31 offen offset:{(2*i+pr)*1024} sc1")
                o = 64 + (o - 64 + 4) % 32
    e(f"s_mul_i32 s32, s33, {SPLIT}\ns_lshl_b32 s32, s32, 4\ns_lshl_b32 s31, s{sW}, 2\ns_add_u32 s32, s32, s31\ns_add_u32 s37, s32, {WS_F5}")
    e(f"s_lshl_b32 s31, s{sKS}, 4\ns_add_u32 s32, s37, s31")
    e("s_waitcnt vmcnt(0)")
    set_flag(32)
    ST.stamp()
    e("v_lshlrev_b32 v2, 4, v1")
    for i in range(keep):
        e(f"s_add_u32 s31, s30, {i*32*1024}")
        for pr in range(2): e(f"buffer_load_dwordx4 {v(HR+4*(2*i+pr),4)}, v2, {s(SWS,4)}, s31 offen offset:{pr*1024} sc1")
    poll("s37", SPLIT, voff=2, t=60)
    ST.stamp()
    PR = 64
    e(f"s_mul_i32 s39, s{sKS}, {SPLIT}")
    for d in range(1, SPLIT):
        e(f"s_add_u32 s31, s{sKS}, {d}\ns_and_b32 s31, s31, {SPLIT-1}\ns_add_u32 s31, s31, s39")
        e(f"s_mul_i32 s31, s31, {4*nb*1024}\ns_add_u32 s31, s31, s34")
        for b in range(nb): e(f"buffer_load_dwordx4 {v(PR+4*((d-1)*nb+b),4)}, v2, {s(SWS,4)}, s31 offen offset:{b*1024} sc1")
    assert PR + 4 * (SPLIT - 1) * nb <= G.ACC, (PR, G.ACC)
    rowmajor_voff(5, 6)
    e("s_lshl_b32 s30, s35, 15\ns_lshl_b32 s31, s36, 6\ns_add_u32 s30, s30, s31")
    for d in range(1, SPLIT):
        e(f"s_waitcnt vmcnt({(SPLIT-1-d)*nb})")
        for i in range(keep):
            for pr in range(2):
                for q in range(4):
                    c = G.acc(i, 2 * pr + (q >> 1)) + 2 * (q & 1)
                    unpack(40, PR + 4 * ((d - 1) * nb + 2 * i + pr) + q)
                    e(f"v_pk_add_f32 {v(c,2)}, {v(c,2)}, v[40:41]")
    for i in range(keep):
        for pr in range(2):
            x = HR + 4 * (2 * i + pr)
            pack(44, G.acc(i, 2 * pr), G.acc(i, 2 * pr + 1))
            for q in range(4):
                unpack(40, 44 + q); unpack(42, x + q)
                e(f"v_pk_add_f32 v[40:41], v[40:41], v[42:43]\nv_cvt_pk_bf16_f32 v{x+q}, v40, v41")
            e(f"v_permlane16_swap_b32 v{x}, v{x+2}\nv_permlane16_swap_b32 v{x+1}, v{x+3}")
            e(f"s_add_u32 s31, s30, {i*16*2048}\nbuffer_store_dwordx4 {v(x,4)}, v5, {s(SD,4)}, s31 offen offset:{pr*64}")
    return ST

def neighbours_and_attention(ST, Q, name):
    e(f"s_lshr_b32 s{sWM}, s{sW}, 1\ns_and_b32 s{sWN}, s{sW}, 1")
    L = A.newlabel("nonb")
    e(f"s_add_u32 s34, s{sRB}, s{sWM}\ns_cmp_lt_u32 s34, 2\ns_cbranch_scc1 {L}\ns_sub_u32 s34, s34, 2")
    flag_addr(32, WS_F1, sCB, 34, 4, None)
    poll("s32", 4, t=8)
    e(f"""
s_lshl_b32 s30, s{sCB}, 1
s_add_u32 s30, s30, s{sWN}
s_lshl_b32 s30, s30, 7
s_lshl_b32 s31, s34, 3
s_add_u32 s30, s30, s31
s_lshl_b32 s30, s30, 10
s_mul_i32 s32, s{sWN}, 24
s_lshl_b32 s31, s{sWM}, 3
s_add_u32 s32, s32, s31
s_lshl_b32 s32, s32, 10
v_lshlrev_b32 v2, 4, v1
""")
    for wsb, lb in ((WS_K, L_K), (WS_V, L_V)):
        for h in range(2):
            e(f"s_add_u32 m0, s32, {lb + h*4096}\ns_add_u32 s31, s30, {wsb + h*4096}")
            for i in range(4): e(f"buffer_load_dwordx4 v2, {s(SWS,4)}, s31 offen offset:{i*1024} sc1 lds")
    A.label(L)
    Q.q = []; Q.add("nk", 8); Q.add("nv", 8)
    e(f"s_lshl_b32 s38, s{sWM}, 1\ns_add_u32 s38, s38, 1")
    attention(ST, True, Q)

def dma_sync_regs():
    e(f"s_lshl_b32 s30, s{sW}, 8\ns_add_u32 s30, s30, {L_FULL}\nv_lshl_add_u32 v{vDW}, v1, 2, s30")
    e(f"v_and_b32 v{vFR}, 3, v1\nv_lshlrev_b32 v{vFR}, 8, v{vFR}\nv_add_u32 v{vFR}, {L_DONE}, v{vFR}")

def dma_phase1(ST, Q):
    G = G1
    if DPRIO: e(f"s_setprio {DPRIO}")
    e(f"s_lshl_b32 s{sBC}, s{sCB}, 7\ns_mov_b32 s{sBR}, 0\ns_lshl_b32 s{sAR}, s{sRB}, 18")
    G.p_setup_a(); G.p_setup_b()
    dma_sync_regs()
    ST.stamp()
    G.p_loop(Q, ST, 0, after_first=lambda: e("s_barrier"))
    if DPRIO: e("s_setprio 0")

def dma_rest(ST, Q):
    G = G3
    if DPRIO: e(f"s_setprio {DPRIO}")
    roles_48()
    e(f"s_lshl_b32 s{sAR}, s{sRB}, 18\ns_add_u32 s{sAR}, s{sAR}, {WS_O}")
    srd(SB, pWO, 2 * MB)
    e(f"s_lshl_b32 s{sBC}, s{sCB}, 7\ns_mov_b32 s{sBR}, 0")
    G.p_setup_a(); G.p_setup_b(); dma_sync_regs()
    e(f"s_lshl_b32 s32, s{sRB}, 9\ns_add_u32 s32, s32, {WS_F2}")
    poll("s32", 64, x2=True, t=8); Q.q = []
    ST.stamp()
    G.p_loop(Q, ST, G.NS)
    if STOP <= 3: return
    G = G4
    roles_84()
    srd(SB, pW1, 1024 * 7168)
    w1_cols()
    e(f"s_mov_b32 s{sBR}, 0")
    G.p_setup_b()
    for st in range(G.NS): G.issue_b(Q, st)
    e(f"s_lshl_b32 s{sAR}, s{sRB}, 18\ns_add_u32 s{sAR}, s{sAR}, {WS_H}")
    G.p_setup_a()
    e(f"s_lshl_b32 s32, s{sRB}, 8\ns_add_u32 s32, s32, {WS_F3}")
    poll("s32", 64, t=8); Q.q = []
    ST.stamp()
    G.p_loop(Q, ST, G.NS)
    if STOP <= 4: return
    G = G5
    roles_w2()
    srd(SB, pW2, 3584 * 2048)
    nk = G.NK
    e(f"s_lshl_b32 s{sBC}, s{sCB}, 8\ns_mul_i32 s{sBR}, s{sKS}, {nk*64*2048}")
    G.p_setup_b()
    for st in range(G.NS): G.issue_b(Q, st)
    e(f"s_mul_i32 s{sAR}, s{sRB}, {8*112*1024}\ns_mul_i32 s30, s{sKS}, {nk*2048}\ns_add_u32 s{sAR}, s{sAR}, s30\ns_add_u32 s{sAR}, s{sAR}, {WS_H1}")
    G.p_setup_a()
    if SPLIT == 4:
        e(f"s_lshl_b32 s32, s{sRB}, 8\ns_lshl_b32 s30, s{sKS}, 6\ns_add_u32 s32, s32, s30\ns_add_u32 s32, s32, {WS_F4}")
        e("v_lshlrev_b32 v12, 2, v4\nv_lshl_add_u32 v12, v3, 8, v12")
        poll("s32", 32, voff=12, t=8)
    else:
        e(f"s_lshl_b32 s32, s{sRB}, 8\ns_lshl_b32 s30, s{sKS}, 7\ns_add_u32 s32, s32, s30\ns_add_u32 s32, s32, {WS_F4}")
        poll("s32", 32, t=8)
    Q.q = []
    ST.stamp()
    G.p_loop(Q, ST, G.NS)

U0 = 200
def colsum_block(j, src, nld, dpp):
    u = U0 + 8 * j
    for i in range(nld):
        for d in range(4):
            if i == 0: unpack(u + 2 * d, src + d)
            else:
                unpack(10 + 2 * (d & 1), src + 4 * i + d)
                e(f"v_pk_add_f32 {v(u+2*d,2)}, {v(u+2*d,2)}, {v(10+2*(d&1),2)}")
    for d in range(4): e(f"v_permlane32_swap_b32 v{u+d}, v{u+4+d}")
    for d in range(2): e(f"v_pk_add_f32 {v(u+2*d,2)}, {v(u+2*d,2)}, {v(u+4+2*d,2)}")
    for d in range(2): e(f"v_permlane16_swap_b32 v{u+d}, v{u+2+d}")
    e(f"v_pk_add_f32 {v(u,2)}, {v(u,2)}, {v(u+2,2)}")
    for k in dpp:
        for r in range(u, u + 2): e(f"v_add_f32_dpp v{r}, v{r}, v{r} row_ror:{k} row_mask:0xf bank_mask:0xf")
def colsum_store(Q, j, soff, nl, tag):
    u = U0 + 8 * j
    e("v_lshlrev_b32 v6, 5, v4\nv_lshl_add_u32 v6, v3, 3, v6")
    m = (1 << nl) - 1
    set_exec(m | m << 16 | m << 32 | m << 48)
    e(f"buffer_store_dwordx2 {v(u,2)}, v6, {s(SWS,4)}, s{soff} offen offset:{256*j} sc1\ns_mov_b64 exec, -1")
    Q.add(tag, 1)
def gather_cs(Q, nl, soff, kstride):
    e("v_lshlrev_b32 v6, 4, v1"); set_exec((1 << nl) - 1)
    for k in range(16): e(f"s_add_u32 s31, s{soff}, {k*kstride}\nbuffer_load_dwordx4 {v(16+4*k,4)}, v6, {s(SWS,4)}, s31 offen sc1")
    e("s_mov_b64 exec, -1")
    Q.add("gcs", 16)
def gather_cs_fin(Q, nl):
    Q.wait("gcs")
    for k in range(1, 16):
        e(f"v_pk_add_f32 v[16:17], v[16:17], {v(16+4*k,2)}\nv_pk_add_f32 v[18:19], v[18:19], {v(18+4*k,2)}")
    e(f"v_lshlrev_b32 v6, 4, v1\nv_add_u32 v6, {L_CS}, v6"); set_exec((1 << nl) - 1)
    e("ds_write_b128 v6, v[16:19]\ns_mov_b64 exec, -1\ns_waitcnt lgkmcnt(0)")

def zero_own_flags(Q):
    e("v_lshlrev_b32 v2, 2, v1\nv_mov_b32 v8, 0")
    def st(soff, nl):
        set_exec((1 << nl) - 1); e(f"buffer_store_dword v8, v2, {s(SWS,4)}, s{soff} offen sc1"); Q.add("zero")
    flag_addr(32, WS_F1, sCB, sRB, 4, None); st(32, 4)
    flag_addr(32, WS_F2, sRB, sCB, 8, None); st(32, 8)
    flag_addr(32, WS_F4, sRB, sCB, 4, None); st(32, 4)
    flag_addr(32, WS_F6, sCB, sRB, 2, None); st(32, 2)
    flag_addr(32, WS_F7, sRB, sCB, 1, None); st(32, 1)
    flag_addr(32, WS_F8, sCB, sRB, 1, None); st(32, 1)
    roles_48(36, 37)
    flag_addr(32, WS_F3, 36, 37, 4, None); st(32, 4)
    roles_w2(36, 37, 38)
    e(f"s_lshl_b32 s32, s36, 3\ns_add_u32 s32, s32, s37\ns_lshl_b32 s32, s32, 2\ns_add_u32 s32, s32, s38\ns_lshl_b32 s32, s32, 4\ns_add_u32 s32, s32, {WS_F5}"); st(32, 4)
    e("s_mov_b64 exec, -1")

def h_sync_regs():
    e(f"v_and_b32 v{vFR}, 3, v1\nv_lshlrev_b32 v{vFR}, 8, v{vFR}\nv_add_u32 v{vFR}, {L_DONE}, v{vFR}")
    e(f"v_and_b32 v{vDW}, 1, v1\nv_lshlrev_b32 v{vDW}, 8, v{vDW}\nv_add_u32 v{vDW}, {L_FULL}, v{vDW}")
def h_after_done(k): lds_wait(vFR, k, vFV, sleep=4)
def h_after_full(k): lds_wait(vDW, k, vFV, sleep=4)
def h_post(val):
    e(f"s_lshl_b32 s30, s{sWN}, 8\ns_add_u32 s30, s30, {L_HD}\ns_waitcnt lgkmcnt(0)")
    lds_post("s30", val)

def line_pf(ptr, nbytes, n, rev=False):
    srd(44, ptr, nbytes)
    e(f"v_lshlrev_b32 v5, 7, v1\ns_mul_i32 s30, s2, {n*8192}")
    for i in range(n): e(f"s_add_u32 s31, s30, {i*8192}\nbuffer_load_dword v{248+i}, v5, s[44:47], s31 offen")

def helper0_phase1(ST, Q):
    RS = 16
    h_sync_regs()
    e(f"""
s_lshl_b32 s35, s{sRB}, 4
s_add_u32 s35, s35, s{sCB}
s_lshl_b32 s34, s35, 14
v_lshrrev_b32 v6, 3, v1
v_lshlrev_b32 v5, 11, v6
v_and_b32 v7, 7, v1
v_lshl_add_u32 v5, v7, 4, v5
s_barrier
""")
    if NOHELP:
        h_post(3); ST.stamp(); ST.stamp()
        if NOHELP == 2: e("s_sleep 127\ns_sleep 127\ns_sleep 127")
        h_after_done(16); ST.stamp(); return
    def loads():
        for i in range(16): e(f"buffer_load_dwordx4 {v(RS+4*i,4)}, v5, {s(SX,4)}, s34 offen offset:{128*i}")
        Q.add("rs", 16)
    if XAT < 0: loads()
    zero_own_flags(Q)
    if XAT >= 0:
        h_after_full(XAT + 1); loads()
    Q.wait("zero")
    h_post(1)
    e(f"v_mov_b32 v8, 0x80\nv_mov_b32 v2, s2\ns_mov_b64 exec, 1\nbuffer_store_byte v8, v2, {s(SD,4)}, 0 offen sc1\ns_mov_b64 exec, -1")
    Q.add("byte")
    def red8(r):
        e(f"v_add_f32_dpp v{r}, v{r}, v{r} quad_perm:[1,0,3,2] row_mask:0xf bank_mask:0xf")
        e(f"v_add_f32_dpp v{r}, v{r}, v{r} quad_perm:[2,3,0,1] row_mask:0xf bank_mask:0xf")
        e(f"v_add_f32_dpp v{r}, v{r}, v{r} row_half_mirror row_mask:0xf bank_mask:0xf")
    if Q.has("rs"): Q.wait("rs")
    U = 80
    for i in range(64): unpack(U + 2 * i, RS + i)
    e(f"v_pk_add_f32 v[8:9], {v(U,2)}, {v(U+2,2)}\nv_pk_add_f32 v[14:15], {v(U+4,2)}, {v(U+6,2)}")
    for i in range(4, 64):
        a_ = 8 if i & 1 else 14
        e(f"v_pk_add_f32 {v(a_,2)}, {v(a_,2)}, {v(U+2*i,2)}")
    e("v_pk_add_f32 v[8:9], v[8:9], v[14:15]\nv_add_f32 v10, v8, v9")
    red8(10)
    e(f"v_mul_f32 v12, {f32(1/1024)}, v10\nv_mov_b64 v[8:9], 0\nv_mov_b64 v[14:15], 0")
    for i in range(64):
        a_ = 8 if i & 1 else 14
        e(f"v_pk_add_f32 {v(U+2*i,2)}, {v(U+2*i,2)}, v[12:13] op_sel_hi:[1,0] neg_lo:[0,1] neg_hi:[0,1]\nv_pk_fma_f32 {v(a_,2)}, {v(U+2*i,2)}, {v(U+2*i,2)}, {v(a_,2)}")
    e("v_pk_add_f32 v[8:9], v[8:9], v[14:15]\nv_add_f32 v11, v8, v9")
    red8(11)
    ln_finish(10, 11, 1024)
    e(f"v_mul_f32 v10, v10, v11\nv_sub_f32 v10, 0, v10")
    e(f"v_lshrrev_b32 v7, 3, v1\nv_lshlrev_b32 v7, 2, v7\ns_lshl_b32 s30, s35, 5\ns_add_u32 s30, s30, {WS_RA}\ns_add_u32 s31, s30, {WS_RB-WS_RA}")
    set_exec(0x0101010101010101)
    e(f"buffer_store_dword v11, v7, {s(SWS,4)}, s30 offen sc1\nbuffer_store_dword v10, v7, {s(SWS,4)}, s31 offen sc1\ns_mov_b64 exec, -1")
    flag_addr(32, WS_F7, sRB, sCB, 1, None)
    Q.wait_all(); set_flag(32)
    ST.stamp()
    h_after_done(SCHK)
    spoll(SD, "0", 4, "0x80808080", 32)
    h_post(2)
    h_after_done(SCHK2)
    e(f"s_lshl_b32 s{sAR}, s{sRB}, 6\ns_add_u32 s{sAR}, s{sAR}, {WS_F7}")
    spoll(SWS, f"s{sAR}", 1, 1, 32)
    h_after_done(GAT)
    e(f"v_and_b32 v6, 31, v1\nv_lshlrev_b32 v6, 4, v6\nv_lshrrev_b32 v7, 5, v1\nv_lshl_add_u32 v6, v7, 13, v6")
    e(f"s_lshl_b32 s30, s{sRB}, 9\ns_add_u32 s30, s30, {WS_RA}\ns_mov_b32 m0, {L_RA}\nbuffer_load_dwordx4 v6, {s(SWS,4)}, s30 offen sc1 lds")
    e("s_waitcnt vmcnt(0)")
    h_post(3)
    ST.stamp()
    h_after_done(16)
    ST.stamp()

def helper1_phase1(ST, Q):
    CSR = 80
    h_sync_regs()
    e(f"""
s_lshl_b32 s35, s{sRB}, 4
s_add_u32 s35, s35, s{sCB}
v_lshrrev_b32 v6, 3, v1
v_and_b32 v7, 7, v1
v_mul_u32_u24 v6, 6144, v6
v_lshl_add_u32 v6, v7, 4, v6
s_mul_i32 s32, s{sRB}, {64*6144}
s_lshl_b32 s33, s{sCB}, 7
s_add_u32 s32, s32, s33
s_add_u32 s34, s{sRB}, 13
s_and_b32 s34, s34, 15
s_mul_i32 s34, s34, {WSTAG}
s_lshr_b32 s34, s34, 4              ; stagger class = stages that must have landed first
s_barrier
""")
    if NOHELP:
        h_post(3); ST.stamp(); ST.stamp()
        if NOHELP == 2: e("s_sleep 127\ns_sleep 127\ns_sleep 127")
        h_after_done(16); ST.stamp(); return
    lds_wait(vDW, "s34", vFV, sleep=4)
    for j in range(3):
        for i in range(8):
            e(f"s_add_u32 s31, s32, {2048*j + 8*6144*i}\nbuffer_load_dwordx4 {v(CSR+4*(8*j+i),4)}, v6, {s(SB,4)}, s31 offen {G1.b_flags}")
        Q.add(("cs", j), 8)
    e(f"s_mul_i32 s33, s35, 768\ns_add_u32 s33, s33, {WS_CS1}")
    for j in range(3):
        Q.wait(("cs", j))
        colsum_block(j, CSR + 32 * j, 8, (8,))
        colsum_store(Q, j, 33, 8, "st1")
    flag_addr(32, WS_F8, sCB, sRB, 1, None)
    e(f"v_mov_b32 v9, {L_HD}")
    lds_wait(9, 1, vFV, sleep=4)
    Q.wait_all(); set_flag(32)
    ST.stamp()
    h_after_done(SCHK2)
    lds_wait(9, 2, vFV, sleep=4)
    e(f"s_lshl_b32 s{sAR}, s{sCB}, 6\ns_add_u32 s{sAR}, s{sAR}, {WS_F8}")
    spoll(SWS, f"s{sAR}", 1, 1, 32)
    h_after_done(GAT)
    e(f"s_mul_i32 s33, s{sCB}, 768\ns_add_u32 s33, s33, {WS_CS1}")
    gather_cs(Q, 48, 33, 16 * 768)
    gather_cs_fin(Q, 48)
    h_post(3)
    ST.stamp()
    h_after_done(16)
    ST.stamp()

def helper_rest(ST, Q):
    h_sync_regs()
    CSR = 16
    srd(40, pW1, 1024 * 7168)
    e(f"""
v_lshrrev_b32 v6, 3, v1
v_mul_u32_u24 v6, 7168, v6
v_and_b32 v7, 7, v1
v_lshl_add_u32 v6, v7, 4, v6
v_lshrrev_b32 v5, 2, v1
v_mul_u32_u24 v5, 7168, v5
v_and_b32 v7, 3, v1
v_lshl_add_u32 v5, v7, 4, v5
s_lshl_b32 s35, s{sRB}, 1
s_add_u32 s35, s35, s{sWN}
s_mul_i32 s32, s35, {32*7168}
s_mul_i32 s33, s{sCB}, 448
s_add_u32 s32, s32, s33
""")
    h_after_done(G3.base + 13)
    for j in range(3):
        for i in range(4):
            e(f"s_add_u32 s31, s32, {8*7168*i}\nbuffer_load_dwordx4 {v(CSR+4*(4*j+i),4)}, v6, s[40:43], s31 offen offset:{128*j}")
    for i in range(2):
        e(f"s_add_u32 s31, s32, {16*7168*i}\nbuffer_load_dwordx4 {v(CSR+48+4*i,4)}, v5, s[40:43], s31 offen offset:384")
    e("s_waitcnt vmcnt(0)")
    e(f"s_mul_i32 s33, s35, {3584*4}\ns_mul_i32 s34, s{sCB}, 896\ns_add_u32 s33, s33, s34\ns_add_u32 s33, s33, {WS_CS2}")
    for j in range(4):
        colsum_block(j, CSR + 16 * j, 4 if j < 3 else 2, (8,) if j < 3 else (4, 8))
        colsum_store(Q, j, 33, 8 if j < 3 else 4, "st2")
    e(f"s_lshl_b32 s32, s{sCB}, 5\ns_add_u32 s32, s32, s35\ns_lshl_b32 s32, s32, 2\ns_add_u32 s32, s32, {WS_F6}")
    Q.wait_all(); set_flag(32)
    if STOP <= 3: return
    h_after_done(G4.base + SCHK)
    e(f"s_mov_b32 s{sBR}, s35\ns_lshl_b32 s{sAR}, s{sCB}, 7\ns_add_u32 s{sAR}, s{sAR}, {WS_F6}")
    spoll(SWS, f"s{sAR}", 2, 1, 32)
    h_after_done(G4.base + GAT)
    e(f"v_lshlrev_b32 v11, 3, v1\ns_lshl_b32 s30, s{sBR}, 14\ns_add_u32 s30, s30, {WS_STAT}\ns_add_u32 s31, s30, 4096\ns_add_u32 s32, s30, 8192\ns_add_u32 s33, s30, 12288")
    for i in range(32): e(f"buffer_load_dwordx2 {v(96+2*i,2)}, v11, {s(SWS,4)}, s{30+i//8} offen offset:{512*(i%8)} sc1")
    e(f"s_mul_i32 s33, s{sCB}, 896\ns_mul_i32 s34, s{sWN}, 448\ns_add_u32 s33, s33, s34\ns_add_u32 s33, s33, {WS_CS2}\nv_lshlrev_b32 v6, 3, v1")
    set_exec((1 << 56) - 1)
    for k in range(32):
        if k == 31: e("s_waitcnt vmcnt(62)")
        e(f"s_add_u32 s31, s33, {k*3584*4}\nbuffer_load_dwordx2 {v(16+2*k,2)}, v6, {s(SWS,4)}, s31 offen sc1")
    e("s_mov_b64 exec, -1\ns_waitcnt vmcnt(32)")
    e("v_pk_add_f32 v[14:15], v[96:97], v[98:99]")
    for i in range(2, 32): e(f"v_pk_add_f32 v[14:15], v[14:15], {v(96+2*i,2)}")
    e(f"v_mul_f32 v12, {f32(1/32)}, v14")
    for i in range(32): e(f"v_sub_f32 v13, v{96+2*i}, v12\nv_mul_f32 v11, {f32(1/32)}, v13\nv_fma_f32 v15, v13, v11, v15")
    ln_finish(14, 15, 1024)
    e(f"v_mul_f32 v15, {f32(-LOG2E)}, v15\nv_mul_f32 v14, v14, v15\nv_sub_f32 v14, 0, v14")
    e(f"s_lshl_b32 s30, s{sWN}, 9\ns_add_u32 s30, s30, {L_RA}\nv_lshl_add_u32 v13, v1, 3, s30\nds_write_b64 v13, v[14:15]")
    e("s_waitcnt vmcnt(0)")
    for k in range(1, 32): e(f"v_pk_add_f32 v[16:17], v[16:17], {v(16+2*k,2)}")
    e(f"s_add_u32 s34, s34, {L_CS}\nv_add_u32 v6, s34, v6"); set_exec((1 << 56) - 1)
    e("ds_write_b64 v6, v[16:17]\ns_mov_b64 exec, -1")
    h_post(4)
    if STOP <= 4 or not WARM5: return
    srd(40, pW2, 3584 * 2048)
    e(f"""
s_lshr_b32 s36, s{sG}, 1
s_mul_i32 s36, s36, {896*2048}
s_lshl_b32 s37, s{sR}, 1
s_add_u32 s37, s37, s{sWN}
s_mul_i32 s37, s37, {224*128}
s_add_u32 s36, s36, s37
v_lshlrev_b32 v240, 7, v1
""")
    set_exec((1 << 56) - 1)
    for k in range(4): e(f"s_add_u32 s31, s36, {k*56*128}\nbuffer_load_dword v{244+k}, v240, s[40:43], s31 offen")
    e("s_mov_b64 exec, -1\ns_waitcnt vmcnt(0)")

def producer():
    ST = Stamper(); ST.n = 1
    Q = VmQ()
    e(f"s_cmp_eq_u32 s{sW}, 2\ns_cbranch_scc1 L_h0\ns_cmp_eq_u32 s{sW}, 3\ns_cbranch_scc1 L_h1")
    dma_phase1(ST, Q)
    e("s_branch L_att")
    A.label("L_h0")
    ST.n = 1; helper0_phase1(ST, VmQ())
    e("s_branch L_att")
    A.label("L_h1")
    ST.n = 1; helper1_phase1(ST, VmQ())
    A.label("L_att")
    neighbours_and_attention(ST, Q, "attp")
    if STOP <= 2: return ST
    n0 = ST.n
    e(f"s_cmp_ge_u32 s{sW}, 2\ns_cbranch_scc1 L_hrest")
    dma_rest(ST, Q)
    ST.flush()
    e("s_endpgm")
    A.label("L_hrest")
    ST.n = n0
    helper_rest(ST, VmQ())
    return ST

def only_phase():
    G = {1: G1, 3: G3, 4: G4, 5: G5}[ONLY]
    G.base = 0
    {1: roles_84, 3: roles_48, 4: roles_84, 5: roles_w2}[ONLY]()
    e(f"s_cmp_ge_u32 s{sWAVE}, 6\ns_cbranch_scc1 L_end\ns_cmp_ge_u32 s{sWAVE}, 4\ns_cbranch_scc1 L_prod")
    ST = Stamper(); ST.n = 1
    e(f"s_lshl_b32 s30, s{sW}, 8\ns_add_u32 s30, s30, {L_DONE}\nv_lshl_add_u32 v{vDW}, v1, 2, s30")
    e(f"v_and_b32 v{vFR}, 1, v1\nv_lshlrev_b32 v{vFR}, 8, v{vFR}\nv_add_u32 v{vFR}, {L_FULL}, v{vFR}\nv_mov_b32 v{vCNT}, 0")
    e(f"ds_write_b32 v{vDW}, v{vCNT}\nds_write_b32 v{vDW}, v{vCNT} offset:1024\ns_waitcnt lgkmcnt(0)\ns_barrier")
    G.c_setup(); G.c_loop(ST); ST.flush()
    e("s_endpgm")
    A.label("L_prod")
    ST = Stamper(); ST.n = 1; Q = VmQ()
    if DPRIO: e(f"s_setprio {DPRIO}")
    if ONLY == 1: e(f"s_lshl_b32 s{sBC}, s{sCB}, 7\ns_mov_b32 s{sBR}, 0\ns_lshl_b32 s{sAR}, s{sRB}, 18")
    if ONLY == 3:
        srd(SB, pWO, 2 * MB); e(f"s_lshl_b32 s{sAR}, s{sRB}, 18\ns_add_u32 s{sAR}, s{sAR}, {WS_O}\ns_lshl_b32 s{sBC}, s{sCB}, 7\ns_mov_b32 s{sBR}, 0")
    if ONLY == 4:
        srd(SB, pW1, 1024 * 7168); w1_cols(); e(f"s_mov_b32 s{sBR}, 0\ns_lshl_b32 s{sAR}, s{sRB}, 18\ns_add_u32 s{sAR}, s{sAR}, {WS_H}")
    if ONLY == 5:
        srd(SB, pW2, 3584 * 2048); nk = G.NK
        e(f"s_lshl_b32 s{sBC}, s{sCB}, 8\ns_mul_i32 s{sBR}, s{sKS}, {nk*64*2048}")
        e(f"s_mul_i32 s{sAR}, s{sRB}, {8*112*1024}\ns_mul_i32 s30, s{sKS}, {nk*2048}\ns_add_u32 s{sAR}, s{sAR}, s30\ns_add_u32 s{sAR}, s{sAR}, {WS_H1}")
    G.p_setup_a(); G.p_setup_b(); dma_sync_regs()
    ST.stamp()
    G.p_loop(Q, ST, 0, after_first=lambda: e("s_barrier"))
    ST.flush()

def main():
    A.begin_kernel(KN)
    if STAMPS: e(f"{STAMP_OP} {s(sST,2)}")
    e(f"""
s_cmp_ge_u32 s2, 256
s_cbranch_scc1 L_end
s_load_dwordx16 s[48:63], s[0:1], 0
s_load_dwordx2 s[64:65], s[0:1], 64
v_lshrrev_b32 v2, 6, v0
v_and_b32 v1, 63, v0
v_readfirstlane_b32 s{sWAVE}, v2
v_lshrrev_b32 v3, 4, v1
v_and_b32 v4, 15, v1
s_and_b32 s{sG}, s2, 7
s_mov_b32 s3, 0
s_lshr_b32 s{sR}, s2, 3
s_and_b32 s{sW}, s{sWAVE}, 3
s_lshr_b32 s{sWM}, s{sW}, 1
s_and_b32 s{sWN}, s{sW}, 1
""")
    roles_84()
    e("s_waitcnt lgkmcnt(0)")
    if STAMPS: e(f"s_mov_b32 s78, s{sST}")
    srd(SX, pX, 4 * MB); srd(SB, pWQKV, 6 * MB); srd(SWS, pWS, WS_BYTES); srd(SD, pDBG, 256)
    if ONLY: only_phase()
    else:
        e(f"s_cmp_ge_u32 s{sWAVE}, 4\ns_cbranch_scc1 L_prod")
        ST = consumer(); ST.flush()
        e("s_endpgm")
        A.label("L_prod")
        ST = producer(); ST.flush()
    A.label("L_end")
    e("s_endpgm")
    A.end_kernel(KN, 256, 102)
    A.lines = hazard.fix(A.lines)
    hdr = open("sequential_preLN__sliding_block__dense_activation_silu__prompt.s.ref").read().split("; Override launch")[0]
    hdr += f"; @launch grid=(256,1,1) block=(512,1,1) lds={LDS_BYTES}\n"
    sys.stdout.write(A.text(hdr))
main()
```

```python
import sys, struct
from asmlib import Asm
import hazard

ARGS = sys.argv[1:]
def opt(name, default):
    for a in ARGS:
        if a.startswith("--" + name + "="): return type(default)(a.split("=", 1)[1])
    return default
STAMPS = "--stamps" in ARGS
STAMP_OP = "s_memtime" if "--cyc" in ARGS else "s_memrealtime"
DPRIO = opt("dprio", 3)
FORCE = opt("force", -1)
PSLEEP = opt("psleep", 1)
SCHK = opt("schk", 8); SCHK2 = opt("schk2", 11); GAT = opt("gat", 12)
PUBN = opt("pubn", 16)
FPOS = opt("fpos", 8)
RP4 = opt("rp4", 0); RP5 = opt("rp5", 0)
CS2AT = opt("cs2at", 10)
NSB3 = opt("nsb3", 11)
PF2 = opt("pf2", 4)
XAT = opt("xat", -1)
ALIAS = opt("alias", 1)
TESTH1 = opt("testh1", 0)
TFL = opt("tfl", "nt")
TOUCH = opt("touch", 0)
LFL = opt("lfl", "").replace("_", " ")
PFL = opt("pfl", "sc1").replace("_", " ")
OFL = opt("ofl", "").replace("_", " ")
TS = opt("ts", 0)
SPFON = opt("spf", 1)
PFB = opt("pfb", 6)
MAP1 = opt("map1", 162)
WAKE = opt("wake", 0)
LCAP = opt("lcap", 10)
SPREAD = opt("spread", 0.8)
DPOS = opt("dpos", 0.25)
NOSY = opt("nosy", "")
EARLY = opt("early", 1)
DSLEEP = opt("dsleep", 1)
ONLY = opt("only", 0)
NOLOAD = opt("noload", "")
NOMFMA = opt("nomfma", 0)
KN = "sequential_preLN__sliding_block__dense_activation_silu__prompt_kernel"
SPLIT = 4

MB = 1 << 20; KB = 1024
WS_AR, WS_H, WS_AR2 = 0, 20 * MB, 24 * MB
AR_K, AR_V, AR_O = 0, 16 * KB, 32 * KB
WS_STAT = 40 * MB
WS_CS1 = 41 * MB
WS_CS2 = 41 * MB + 256 * KB
WS_RA = 41 * MB + 768 * KB
WS_RB = WS_RA + 8 * KB
WS_F1 = 41 * MB + 896 * KB
WS_F2 = WS_F1 + 4 * KB; WS_F3 = WS_F2 + 8 * KB; WS_F4 = WS_F3 + 4 * KB; WS_F5 = WS_F4 + 4 * KB
WS_F6 = WS_F5 + 8 * KB; WS_F7 = WS_F6 + 2 * KB; WS_F8 = WS_F7 + 1 * KB
WS_DBG = 48 * MB
WS_PART = 52 * MB
WS_BYTES = 256 * MB
LOG2E = 1.4426950408889634
LDS_BYTES = 160 * KB
MISC = LDS_BYTES - 6 * KB
L_RA, L_CS = MISC, MISC + 1024
L_DONE, L_FULL, L_HD, L_EP = MISC + 2048, MISC + 3072, MISC + 4096, MISC + 5120
L_MODE = L_HD + 512
vDW, vFR, vCNT, vFV = 252, 253, 254, 255
SPIN_MAX = 1 << 16
LSPIN_MAX = 1 << 22

def f32(x): return "0x%08x" % struct.unpack("<I", struct.pack("<f", x))[0]
def v(a, n=1): return f"v{a}" if n == 1 else f"v[{a}:{a+n-1}]"
def s(a, n=1): return f"s{a}" if n == 1 else f"s[{a}:{a+n-1}]"

SX, SWS, SB, SD = 4, 8, 12, 16
sWAVE, sW, sG, sR, sRB, sCB, sBC, sBH, sWM, sWN = 20, 21, 22, 23, 24, 25, 26, 27, 28, 29
pX, pWQKV, pWO, pW1, pW2, pOUT, pDBG, pWS = 48, 50, 52, 56, 58, 60, 62, 64
sMODE = 54; sT0 = 55
sAR, sBR, sM0A, sM0B, sM0H, sKS, sCNT, sNEED, sC0 = 66, 67, 68, 69, 70, 71, 72, 73, 74
sST = 76
sARENA = 19 + 0


A = Asm()
def e(t): A.e(t)
STAMP_NAMES = {}
class Stamper:
    def __init__(self, role): self.role = role; self.names = ["start"]
    def __call__(self, name):
        if not STAMPS: return
        if TS and name in ("att_v", "silu", "p_flag", "kv_flag"): return
        n = len(self.names)
        assert n < 24, self.names
        e(f"{STAMP_OP} {s(sST,2)}\ns_waitcnt lgkmcnt(0)\ns_mov_b32 s{78+n}, s{sST}")
        self.names.append(name)
    def fork(self, role):
        t = Stamper(role); t.names = list(self.names); return t
    def flush(self):
        if not STAMPS: return
        self("end")
        n = len(self.names); self.names.append("nslow")
        e(f"s_mul_i32 s0, s0, {1000 if STAMP_OP == 's_memtime' else 100}\ns_add_u32 s{78+n}, s78, s0\ns_add_u32 s{79+n}, s78, s1")
        self.names.append("tslow")
        STAMP_NAMES[self.role] = self.names
        e("s_waitcnt vmcnt(0)")
        for i in range(24): e(f"v_mov_b32 v{8+i}, s{78+min(i,len(self.names)-1)}")
        e(f"s_lshl_b32 s30, s2, 10\ns_lshl_b32 s31, s{sWAVE}, 7\ns_add_u32 s30, s30, s31\ns_add_u32 s30, s30, {WS_DBG}")
        e("v_mov_b32 v2, 0\ns_mov_b64 exec, 1")
        for i in range(6): e(f"buffer_store_dwordx4 {v(8+4*i,4)}, v2, {s(SWS,4)}, s30 offen offset:{16*i}")
        e("s_mov_b64 exec, -1")

class VmQ:
    def __init__(self): self.q = []
    def add(self, tag, n=1): self.q += [tag] * n
    def has(self, tag): return tag in self.q
    def after(self, tag):
        if tag not in self.q: return 99
        return len(self.q) - 1 - max(i for i, t in enumerate(self.q) if t == tag)
    def wait(self, tag):
        if tag not in self.q: return
        n = self.after(tag)
        assert n <= 63, n
        e(f"s_waitcnt vmcnt({n})")
        self.q = self.q[len(self.q) - n:]
    def wait_all(self):
        e("s_waitcnt vmcnt(0)"); self.q = []

def set_exec(mask):
    if mask == (1 << 64) - 1: e("s_mov_b64 exec, -1")
    elif mask <= 64: e(f"s_mov_b64 exec, {mask}")
    else: e(f"s_mov_b32 exec_lo, {hex(mask & 0xffffffff)}\ns_mov_b32 exec_hi, {hex(mask >> 32)}")
def srd(d, base, nbytes):
    e(f"s_mov_b32 s{d}, s{base}\ns_and_b32 s{d+1}, s{base+1}, 0xffff\ns_mov_b32 s{d+2}, {nbytes}\ns_mov_b32 s{d+3}, 0x20000")
def xg_multi(op, regs, tmps):
    for sw in ("v_permlane16_swap_b32", "v_permlane32_swap_b32"):
        for r, t in zip(regs, tmps): e(f"v_mov_b32 v{t}, v{r}")
        for r, t in zip(regs, tmps): e(f"{sw} v{r}, v{t}")
        for r, t in zip(regs, tmps): e(f"{op} v{r}, v{r}, v{t}")
def round_bf16(r): e(f"v_cvt_pk_bf16_f32 v{r}, v{r}, v{r}\nv_and_b32 v{r}, 0xffff0000, v{r}")
def ln_finish(vsum, vm2, n):
    e(f"v_mul_f32 v{vsum}, {f32(1.0/n)}, v{vsum}"); round_bf16(vsum)
    e(f"v_mul_f32 v{vm2}, {f32(1.0/n)}, v{vm2}"); round_bf16(vm2)
    e(f"v_add_f32 v{vm2}, {f32(1e-5)}, v{vm2}"); round_bf16(vm2)
    e(f"v_sqrt_f32 v{vm2}, v{vm2}"); round_bf16(vm2)
    e(f"v_rcp_f32 v{vm2}, v{vm2}")
def pack(dst, c0, c1):
    e(f"v_cvt_pk_bf16_f32 v{dst}, v{c0}, v{c0+1}\nv_cvt_pk_bf16_f32 v{dst+1}, v{c0+2}, v{c0+3}")
    e(f"v_cvt_pk_bf16_f32 v{dst+2}, v{c1}, v{c1+1}\nv_cvt_pk_bf16_f32 v{dst+3}, v{c1+2}, v{c1+3}")
def unpack(lo, src): e(f"v_lshlrev_b32 v{lo}, 16, v{src}\nv_and_b32 v{lo+1}, 0xffff0000, v{src}")

def set_flag(soff, st="sc1", val=1, t=5):
    e(f"v_mov_b32 v{t}, 0\nv_mov_b32 v{t+1}, {val}\ns_mov_b64 exec, 1\nbuffer_store_dword v{t+1}, v{t}, {s(SWS,4)}, s{soff} offen {st}\ns_mov_b64 exec, -1")

def poll(soff, nlanes, voff=None, x2=False, srd_=SWS, mask=1, t=8, sleep=None):
    L = A.newlabel("poll"); X = A.newlabel("pollx")
    if voff is None:
        e(f"v_lshlrev_b32 v{t+2}, {3 if x2 else 2}, v1"); voff = t + 2
    if nlanes < 64: set_exec((1 << nlanes) - 1)
    e(f"s_mov_b32 s{sCNT}, 0")
    A.label(L)
    if x2: e(f"buffer_load_dwordx2 {v(t,2)}, v{voff}, {s(srd_,4)}, {soff} offen sc1")
    else: e(f"buffer_load_dword v{t}, v{voff}, {s(srd_,4)}, {soff} offen sc1")
    e(f"s_add_u32 s{sCNT}, s{sCNT}, 1\ns_cmp_gt_u32 s{sCNT}, {SPIN_MAX}\ns_waitcnt vmcnt(0)\ns_cbranch_scc1 {X}")
    if x2: e(f"v_and_b32 v{t}, v{t}, v{t+1}")
    e(f"v_and_b32 v{t}, {mask}, v{t}\nv_cmp_ne_u32 vcc, {mask}, v{t}")
    e(f"s_cbranch_vccz {X}\ns_sleep {PSLEEP if sleep is None else sleep}\ns_branch {L}")
    A.label(X)
    e("s_mov_b64 exec, -1")

def spoll(srd_, soff, n16, mask, base=32):
    X = A.newlabel("spx")
    e("s_mov_b32 s31, -1")
    for k in range(2 * n16):
        e(f"s_add_u32 s30, {soff}, {32*k}\ns_buffer_load_dwordx8 {s(base,8)}, {s(srd_,4)}, s30\ns_waitcnt lgkmcnt(0)")
        for i in range(1, 4): e(f"s_and_b64 {s(base,2)}, {s(base,2)}, {s(base+2*i,2)}")
        e(f"s_and_b32 s31, s31, s{base}\ns_and_b32 s31, s31, s{base+1}")
    e(f"s_and_b32 s31, s31, {mask}\ns_cmp_eq_u32 s31, {mask}\ns_cbranch_scc1 {X}")
    poll(soff, 16 * n16, srd_=srd_, mask=mask, t=8, sleep=16)
    A.label(X)

def lds_wait(vaddr, need, vt, sleep=1, off=0):
    L = A.newlabel("lw"); X = A.newlabel("lwx")
    A.label(L)
    e(f"ds_read_b32 v{vt}, v{vaddr} offset:{off}\ns_waitcnt lgkmcnt(0)\nv_cmp_gt_u32 vcc, {need}, v{vt}\ns_cbranch_vccz {X}")
    if sleep: e(f"s_sleep {sleep}")
    e(f"s_add_u32 s3, s3, 1\ns_cmp_lt_u32 s3, {LSPIN_MAX}\ns_cbranch_scc1 {L}")
    A.label(X)
OFF_DONE, OFF_FULL, OFF_HD, OFF_EP = 0, 1024, 2048, 3072
def sync_regs():
    e(f"s_lshl_b32 s30, s{sW}, 8\ns_add_u32 s30, s30, {L_DONE}\nv_lshl_add_u32 v{vDW}, v1, 2, s30")
    e(f"v_and_b32 v{vFR}, 3, v1\nv_mul_u32_u24 v{vFR}, 260, v{vFR}\nv_add_u32 v{vFR}, {L_DONE}, v{vFR}")
def post(off, val, t=vFV):
    e(f"v_mov_b32 v{t}, {val}\nds_write_b32 v{vDW}, v{t} offset:{off}")
def wait_rows(off, need, sleep=1): lds_wait(vFR, need, vFV, sleep=sleep, off=off)

class Gemm:
    PA, PB, PH = 232, 236, 240
    def __init__(self, name, base, TM, TN, NK, NS, KBsrc, ldb, kperm, araw=False, NSB=None, bslot=None, RP=0, alay="rt"):
        self.alay = "raw" if araw else alay
        self.name, self.base, self.TM, self.TN, self.NK, self.NS = name, base, TM, TN, NK, NS
        self.KB, self.ldb, self.kperm, self.araw, self.RP = KBsrc, ldb, kperm, araw, RP
        self.NSB = NSB or NS
        self.MT, self.NT = TM // 32, TN // 32
        self.nfull, self.half = TN // 64, (TN % 64) != 0
        self.a_stage = TM * 128
        b0 = NS * self.a_stage
        self.b0 = b0
        self.b_base = [b0 + j * self.NSB * 8192 for j in range(self.nfull)]
        self.h_base = b0 + self.nfull * self.NSB * 8192
        self.bslot = bslot or (lambda step: step % self.NSB)
        assert self.h_base + (self.NSB * 4096 if self.half else 0) <= MISC
        MT, NT = self.MT, self.NT
        self.FA = [8, 8 + 4 * MT + 4 * NT]
        self.FB = [self.FA[0] + 4 * MT, self.FA[1] + 4 * MT]
        nxt = self.FA[1] + 4 * MT + 4 * NT
        self.VA = nxt; nxt += 8 if self.alay == "bm" else 2
        self.VB = nxt; nxt += NT
        self.bhi = self.NSB * 8192 > 65536
        self.VB2 = nxt
        if self.bhi: nxt += NT
        nxt = (nxt + 3) // 4 * 4
        self.ACC = nxt; nxt += MT * NT * 4
        self.VX = nxt
        assert nxt <= vDW
        self.RTW = TM // 32
    def acc(self, mt, nt): return self.ACC + (nt * self.MT + mt) * 4
    def swapped(self, nt): return True
    def blk_delta(self, j): return 128 * j

    def c_setup(self):
        MT = self.MT
        if self.araw:
            e(f"""
s_lshl_b32 s30, s{sWM}, 13
v_lshl_add_u32 v5, v4, 7, s30
v_lshrrev_b32 v6, 1, v4
v_xor_b32 v6, v6, v3
v_lshl_add_u32 v{self.VA}, v6, 4, v5
v_xor_b32 v6, 4, v6
v_lshl_add_u32 v{self.VA+1}, v6, 4, v5
""")
        elif self.alay == "bm":
            for p in range(4):
                e(f"s_add_u32 s30, s{sKS}, {p}\ns_and_b32 s30, s30, 3\ns_lshl_b32 s30, s30, 11\ns_lshl_b32 s31, s{sWM}, 14\ns_add_u32 s30, s30, s31")
                e(f"v_lshl_add_u32 v{self.VA+p}, v1, 4, s30\nv_add_u32 v{self.VA+4+p}, 0x10000, v{self.VA+p}")
        else:
            e(f"s_mul_i32 s30, s{sWM}, {MT*2048}\nv_lshl_add_u32 v{self.VA}, v1, 4, s30\nv_add_u32 v{self.VA+1}, 0x10000, v{self.VA}")
        e("v_bfe_u32 v5, v1, 2, 2\nv_and_b32 v6, 3, v1")
        if self.kperm: e("v_lshl_add_u32 v7, v3, 2, v5\nv_bfe_u32 v2, v7, 1, 2")
        else: e("v_lshl_add_u32 v7, v3, 3, v5\nv_lshrrev_b32 v2, 1, v5\nv_and_b32 v8, 1, v3\nv_lshl_or_b32 v2, v8, 1, v2")
        e("v_mov_b32 v9, v7\nv_lshlrev_b32 v7, 7, v7\nv_lshl_add_u32 v7, v6, 3, v7")
        for t, (kind, blk, seg) in enumerate(self.tiles()):
            vb = self.VB + t
            if kind == "F":
                e(f"s_mul_i32 s30, s{sWN}, {seg[1]}\ns_add_u32 s30, s30, {seg[0]}")
                e(f"v_xor_b32 v8, s30, v2\nv_lshl_add_u32 v{vb}, v8, 5, v7")
                e(f"s_mul_i32 s30, s{sWN}, {blk[1]*self.NSB*8192}\ns_add_u32 s30, s30, {self.b_base[0] + blk[0]*self.NSB*8192}")
                e(f"v_add_u32 v{vb}, s30, v{vb}")
            else:
                e(f"v_bfe_u32 v8, v9, 2, 1\nv_xor_b32 v8, s{sWN}, v8\nv_lshlrev_b32 v8, 5, v8")
                e(f"v_lshl_add_u32 v8, v9, 6, v8\nv_lshl_add_u32 v8, v6, 3, v8\nv_add_u32 v{vb}, {self.h_base}, v8")
            if self.bhi: e(f"v_add_u32 v{self.VB2+t}, 0x10000, v{vb}")
        for r in range(self.ACC, self.ACC + self.MT * self.NT * 4, 2): e(f"v_mov_b64 {v(r,2)}, 0")
    def reads(self, step, sub, fs):
        out = []
        kinds = [t[0] for t in self.tiles()]
        sa, sb = step % self.NS, self.bslot(step)
        for t in range(self.NT):
            for hi in range(2):
                rows = 32 * sub + (16 if self.kperm else 4) * hi
                off = sb * 8192 + rows * 128 if kinds[t] == "F" else sb * 4096 + rows * 64
                base = self.VB + t
                if off > 0xffff: base, off = self.VB2 + t, off - 0x10000
                out.append(f"ds_read_b64_tr_b16 {v(self.FB[fs]+4*t+2*hi,2)}, v{base} offset:{off}")
            if t == 0:
                for mt in range(self.MT):
                    if self.araw: base, off = self.VA + sub, sa * self.a_stage + mt * 2048
                    elif self.alay == "bm":
                        off = sa * self.a_stage + sub * 8192 + (mt & 1) * 1024
                        base = self.VA + (mt >> 1) + 4 * (off >> 16); off &= 0xffff
                    else:
                        off = sa * self.a_stage + mt * 2048 + sub * 1024
                        base = self.VA + (off >> 16); off &= 0xffff
                    out.append(f"ds_read_b128 {v(self.FA[fs]+4*mt,4)}, v{base} offset:{off}")
        return out
    def mfmas(self, fs):
        out = []
        for t in range(self.NT):
            for mt in (range(self.MT) if t % 2 == 0 else reversed(range(self.MT))):
                a, w, c = v(self.FA[fs] + 4 * mt, 4), v(self.FB[fs] + 4 * t, 4), v(self.acc(mt, t), 4)
                out.append(f"v_mfma_f32_16x16x32_bf16 {c}, {w}, {a}, {c}" if self.swapped(t) else
                           f"v_mfma_f32_16x16x32_bf16 {c}, {a}, {w}, {c}")
        if NOMFMA: out = ["s_nop 0"] * len(out)
        return out
    def mfma_needs(self):
        out = []
        for t in range(self.NT):
            for mt in (range(self.MT) if t % 2 == 0 else reversed(range(self.MT))):
                wi = 1 if t == 0 else 2 + self.MT + 2 * (t - 1) + 1
                out.append(max(wi, 2 + mt))
        return out
    def c_loop(self, ST, pre_last=None, last_fill=()):
        NS, NK, n = self.NS, self.NK, self.name
        slow = []
        need = self.mfma_needs()
        nm = self.MT * self.NT
        nr = self.MT + 2 * self.NT
        def sched(first):
            span = max(nr, int((nm - first) * SPREAD))
            return [min(nm - 1, first + (i * span) // nr) for i in range(nr)]
        def half(q, fs, rd, first, extra):
            m = self.mfmas(fs); sc = sched(first) if rd else []
            done = -1
            def wait_tag(tag):
                if tag in q:
                    k = len(q) - 1 - q.index(tag)
                    e(f"s_waitcnt lgkmcnt({min(k, LCAP)})")
                    del q[:len(q) - min(k, LCAP)]
            for j in range(nm):
                if need[j] > done:
                    done = need[j]; wait_tag((fs, done))
                for f in extra.get(j, []): f(wait_tag)
                e(m[j])
                for i, p in enumerate(sc):
                    if p == j:
                        e(rd[i]); q.append((1 - fs, i))
        def steady_q():
            q = []; sc = sched(2)
            for j in range(nm):
                if j == dpos: q.append("dw")
                for i, p in enumerate(sc):
                    if p == j: q.append((0, i))
            return q
        dpos = min(nm - 1, max(2, int(nm * DPOS)))
        fpos = max(0, nm - FPOS)
        def step(k, last=False):
            q = steady_q()
            def rdfull(w):
                e(f"ds_read_b32 v{vFV}, v{vFR} offset:{OFF_FULL}"); q.append("full")
            def cnt(w): e(f"v_add_u32 v{vCNT}, 1, v{vCNT}\ns_add_u32 s{sNEED}, s{sNEED}, 1")
            ex = {1: [cnt]}
            if not last: ex.setdefault(fpos, []).append(rdfull)
            half(q, 0, self.reads(k, 1, 1), 0, ex)
            def dw(w):
                w((1, nr - 1)); e(f"ds_write_b32 v{vDW}, v{vCNT}"); q.append("dw")
            if last:
                f = list(last_fill)
                ex = {0: [dw]}
                if WAKE: ex[WAKE] = [lambda w: e("s_wakeup")]
                for i, x in enumerate(f): ex.setdefault(min(nm - 1, i + 1), []).append(lambda w, x=x: e(x))
                half(q, 1, None, 0, ex)
                return
            r = self.reads(k + 1, 0, 0)
            S, B = A.newlabel("slow"), A.newlabel("back")
            slow.append((S, B, self.mfmas(1)[2:], r))
            def cmp_(w):
                w("full"); e(f"v_cmp_gt_u32 vcc, s{sNEED}, v{vFV}")
            ex = {1: [cmp_], 2: [lambda w: e(f"s_cbranch_vccnz {S}")]}
            ex.setdefault(dpos, []).append(dw)
            if WAKE: ex.setdefault(min(nm - 1, dpos + WAKE), []).append(lambda w: e("s_wakeup"))
            half(q, 1, r, 2, ex)
            A.label(B)
        e(f"s_mov_b32 s{sNEED}, {self.base + 1}")
        wait_rows(OFF_FULL, f"s{sNEED}" if not NOSY else 64, sleep=0)
        ST(n + "_go")
        for r in self.reads(0, 0, 0): e(r)
        e("s_waitcnt lgkmcnt(0)")
        body = NK - 1
        if self.NSB != NS:
            for k in range(body): step(k)
        else:
            k = 0
            for i in range(body % NS):
                step(k); k += 1
            e(f"s_mov_b32 s{sCNT}, {body // NS}")
            A.label(f"{n}_cloop")
            for i in range(NS):
                step(k); k += 1
            e(f"s_sub_u32 s{sCNT}, s{sCNT}, 1\ns_cmp_lg_u32 s{sCNT}, 0\ns_cbranch_scc1 {n}_cloop")
        if pre_last: pre_last()
        step(NK - 1, last=True)
        self.slow = slow
        ST(n + "_end")
        if STAMPS and TS:
            k_ = len(ST.names); ST.names.append(n + "_ts"); e(f"s_add_u32 s{78+k_}, s78, s1\ns_mov_b32 s1, 0")
    def c_slow(self):
        for S, B, m, r in self.slow:
            A.label(S)
            if STAMPS: e("s_add_u32 s0, s0, 1")
            e(f"s_waitcnt lgkmcnt(0)\nds_write_b32 v{vDW}, v{vCNT}")
            for i, x in enumerate(m):
                e(x)
                if WAKE and i == WAKE: e("s_wakeup")
            if STAMPS: e(f"{STAMP_OP} {s(sST,2)}\ns_waitcnt lgkmcnt(0)\ns_sub_u32 s1, s1, s{sST}")
            wait_rows(OFF_FULL, f"s{sNEED}", sleep=0)
            for x in r: e(x)
            e("s_waitcnt lgkmcnt(0)")
            if STAMPS: e(f"{STAMP_OP} {s(sST,2)}\ns_waitcnt lgkmcnt(0)\ns_add_u32 s1, s1, s{sST}")
            e(f"s_branch {B}")

    def p_setup_b(self, w=sW):
        ldb, PB = self.ldb, self.PB
        e(f"""
s_lshl_b32 s{sM0B}, s{w}, 12
s_lshl_b32 s{sM0H}, s{w}, 11
v_lshrrev_b32 v246, 3, v1
s_lshl_b32 s30, s{w}, 5
v_add_u32 v246, s30, v246
v_mul_u32_u24 v246, {ldb}, v246
v_and_b32 v247, 1, v1
v_lshl_add_u32 v246, v247, 4, v246
v_add_u32 v246, s{sBC}, v246
v_bfe_u32 v247, v1, 1, 2
""")
        if self.kperm:
            e(f"v_xor_b32 v245, v247, v3\nv_lshl_add_u32 v{PB}, v245, 5, v246\nv_add_u32 v{PB+1}, {8*ldb-1024}, v{PB}")
        else:
            e(f"v_and_b32 v245, 1, v3\nv_xor_b32 v245, v247, v245\nv_lshl_add_u32 v{PB}, v245, 5, v246")
            e(f"v_xor_b32 v245, 2, v245\nv_lshl_add_u32 v{PB+1}, v245, 5, v246\nv_add_u32 v{PB+1}, {8*ldb-1024}, v{PB+1}")
        e(f"v_add_u32 v{PB+2}, {16*ldb-2048}, v{PB}\nv_add_u32 v{PB+3}, {16*ldb-2048}, v{PB+1}")
        if self.half:
            e(f"""
v_lshrrev_b32 v246, 2, v1
v_add_u32 v246, s30, v246
v_mul_u32_u24 v246, {ldb}, v246
v_and_b32 v247, 1, v1
v_lshl_add_u32 v246, v247, 4, v246
v_add_u32 v246, s{sBH}, v246
v_bfe_u32 v247, v1, 1, 1
v_and_b32 v245, 1, v3
v_xor_b32 v245, v247, v245
v_lshl_add_u32 v{self.PH}, v245, 5, v246
v_add_u32 v{self.PH+1}, {16*ldb-1024}, v{self.PH}
""")
    def p_setup_a(self):
        PA = self.PA
        if self.araw:
            e(f"""
s_lshl_b32 s{sM0A}, s{sW}, 13
v_lshrrev_b32 v246, 3, v1
s_lshl_b32 s30, s{sW}, 6
v_add_u32 v246, s30, v246
v_lshlrev_b32 v246, 11, v246
v_and_b32 v247, 7, v1
v_xor_b32 v247, v247, v3
v_lshl_add_u32 v{PA}, v247, 4, v246
v_xor_b32 v247, 4, v247
v_lshl_add_u32 v{PA+1}, v247, 4, v246
v_add_u32 v{PA+1}, {8*2048-1024}, v{PA+1}
v_add_u32 v{PA+2}, {16*2048-2048}, v{PA}
v_add_u32 v{PA+3}, {16*2048-2048}, v{PA+1}
""")
        else:
            e(f"s_mul_i32 s{sM0A}, s{sW}, {self.RTW*2048}\ns_mul_i32 s30, s{sW}, {self.RTW*self.KB*1024}\nv_lshl_add_u32 v{PA}, v1, 4, s30")
            e(f"v_add_u32 v{PA+1}, {self.KB*1024-2048}, v{PA}")
    def a_src(self, i, step): e(f"s_add_u32 s31, s{sAR}, {2*i*self.KB*1024 + step*2048}")
    def groups_a(self, step):
        st = step % self.NS
        out = []
        for gi in range(self.RTW // 2):
            def fn(gi=gi):
                e(f"s_add_u32 m0, s{sM0A}, {st*self.a_stage + gi*4096}")
                if self.araw:
                    e(f"s_add_u32 s31, s{sAR}, {gi*32*2048 + step*128}")
                    for i in range(4): e(f"buffer_load_dwordx4 v{self.PA+i}, {s(SX,4)}, s31 offen offset:{i*1024} lds")
                else:
                    self.a_src(gi, step)
                    for i in range(4): e(f"buffer_load_dwordx4 v{self.PA+(i>>1)}, {s(SWS,4)}, s31 offen offset:{i*1024} sc1 lds")
            out.append((step, 4, fn))
        return out
    def b_parts(self, step):
        sb = self.bslot(step); ko = step * 64 * self.ldb
        out = [(sM0B, self.b_base[j] + sb * 8192, ko + self.blk_delta(j), self.PB, 4) for j in range(self.nfull)]
        if self.half: out.append((sM0H, self.h_base + sb * 4096, ko, self.PH, 2))
        return out
    def groups_b(self, step):
        out = []
        for m0s, lc, sc, vb, n in self.b_parts(step):
            def fn(m0s=m0s, lc=lc, sc=sc, vb=vb, n=n):
                e(f"s_add_u32 m0, s{m0s}, {lc}\ns_add_u32 s31, s{sBR}, {sc}")
                for i in range(n): e(f"buffer_load_dwordx4 v{vb+i}, {s(SB,4)}, s31 offen offset:{i*1024} lds")
            out.append((step, n, fn))
        return out
    def issue_b(self, Q, step):
        for tag, n, fn in self.groups_b(step):
            fn(); Q.add(tag, n)
    def p_loop(self, Q, ST, b_pre, after_first=None, tail=None):
        NS, NK, NSB = self.NS, self.NK, self.NSB
        def publish(step):
            Q.wait(step); e(f"v_mov_b32 v{vCNT}, {self.base + step + 1}\nds_max_u32 v{vDW}, v{vCNT} offset:{OFF_FULL}")
        st = {"pub": 0, "iss": 0}
        def try_pub():
            p = st["pub"]
            if p < st["iss"] and Q.after(p) >= (4 if p == 0 else PUBN):
                publish(p); st["pub"] += 1
                if p == 0: ST(self.name + "_pub0")
        def force_pub(upto):
            while st["pub"] <= upto:
                publish(st["pub"]); st["pub"] += 1
                if st["pub"] == 1: ST(self.name + "_pub0")
        def issue(groups):
            for tag, n, fn in groups:
                try_pub()
                fn(); Q.add(tag, n)
            st["iss"] += 1
        def gr(k):
            kb = k - NS + NSB
            return (self.groups_b(kb) if b_pre <= kb < NK and "B" not in NOLOAD else []) + (self.groups_a(k) if "A" not in NOLOAD else [])
        first = lambda k: (self.groups_b(k) if k >= b_pre else []) + self.groups_a(k)
        issue(first(0))
        if after_first: after_first()
        for k in range(1, NS): issue(first(k))
        if NOSY:
            Q.wait_all(); e(f"v_mov_b32 v{vCNT}, 99\nds_max_u32 v{vDW}, v{vCNT} offset:{OFF_FULL}\ns_endpgm")
        for k in range(NS, NK):
            force_pub(k - NS + 1)
            X = A.newlabel("go")
            if EARLY:
                saved = list(Q.q)
                for p in range(st["pub"], k):
                    e(f"ds_read_b32 v{vFV}, v{vFR}\ns_waitcnt lgkmcnt(0)\nv_cmp_gt_u32 vcc, {self.base + k - NS + 1}, v{vFV}\ns_cbranch_vccz {X}")
                    publish(p)
                Q.q = saved
            wait_rows(OFF_DONE, self.base + k - NS + 1, sleep=DSLEEP)
            A.label(X)
            issue(gr(k))
        if tail: tail()
        force_pub(NK - 1)
        ST(self.name + "_lpub")
        wait_rows(OFF_DONE, self.base + NK)
        ST(self.name + "_dend")
    def rp_regs(self, i): return 16 + i * (16 * self.nfull + (8 if self.half else 0))
    def rp_load(self, Q):
        for i in range(self.RP):
            r = self.rp_regs(i)
            for m0s, lc, sc, vb, n in self.b_parts(self.NS + i):
                e(f"s_add_u32 s31, s{sBR}, {sc}")
                for k in range(n):
                    e(f"buffer_load_dwordx4 {v(r,4)}, v{vb+k}, {s(SB,4)}, s31 offen offset:{k*1024}"); r += 4
                Q.add(("rp", i), n)
            assert r <= 232
    def rp_drain(self, Q):
        e(f"v_lshlrev_b32 v8, 4, v1\nv_add_u32 v9, s{sM0B}, v8\nv_add_u32 v10, s{sM0H}, v8")
        e(f"v_add_u32 v9, {self.b0}, v9\nv_add_u32 v11, 0x10000, v9\nv_add_u32 v10, {self.h_base}, v10")
        for i in range(self.RP):
            step = self.NS + i
            Q.wait(("rp", i))
            wait_rows(OFF_DONE, self.base + step - self.NS + 1)
            r = self.rp_regs(i)
            for m0s, lc, sc, vb, n in self.b_parts(step):
                for k in range(n):
                    if m0s == sM0B:
                        off = lc - self.b0 + k * 1024; a = 9
                        if off > 0xffff: off -= 0x10000; a = 11
                    else: off = lc - self.h_base + k * 1024; a = 10
                    e(f"ds_write_b128 v{a}, {v(r,4)} offset:{off}"); r += 4
            e("s_waitcnt lgkmcnt(0)")
            if i < self.RP - 1: post(OFF_FULL, self.base + step + 1)

class QKV(Gemm):
    def __init__(self): super().__init__("qkv", 0, 128, 192, 16, 3, 32, 6144, False, araw=True)
    def tiles(self): return [("F", (t >> 1, 0), (t & 1, 2)) for t in range(6)]
    def swapped(self, nt): return nt < 4
    def blk_delta(self, j): return 2048 * j
class WO(Gemm):
    def __init__(self): super().__init__("wo", 16, 128, 64, 16, 4, 32, 2048, True, NSB=NSB3, bslot=lambda k: (k + 5) % NSB3)
    def tiles(self): return [("F", (0, 0), (t, 2)) for t in range(2)]
    def p_setup_a(self):
        e(f"s_lshl_b32 s{sM0A}, s{sW}, 13\nv_lshl_add_u32 v{self.PA}, v1, 4, s{sM0A}\nv_mov_b32 v{self.PA+1}, v{self.PA}")
        e(f"s_lshl_b32 s{sAR}, s{sRB}, 17\ns_add_u32 s{sAR}, s{sAR}, {WS_AR + AR_O}")
    def a_src(self, i, step): e(f"s_add_u32 s31, s{sAR}, {(step>>1)*2*MB + (step&1)*64*KB + i*4096}")
class W1(Gemm):
    def __init__(self): super().__init__("w1", 32, 128, 224, 16, 3, 32, 7168, True, RP=RP4)
    def tiles(self): return [("F", (0, 2), (t, 0)) for t in range(4)] + [("F", (1, 0), (t, 2)) for t in range(2)] + [("H", None, None)]
class W2(Gemm):
    def __init__(self): super().__init__("w2", 48, 256, 128, 14, 3, 112, 2048, True, RP=RP5, alay="bm")
    def tiles(self): return [("F", (0, 1), (t, 0)) for t in range(4)]
    def p_setup_a(self):
        e(f"s_lshl_b32 s{sM0A}, s{sW}, 14\nv_lshlrev_b32 v{self.PA}, 4, v1\nv_mov_b32 v{self.PA+1}, v{self.PA}")
        h1_base(sAR)
        e(f"s_lshl_b32 s30, s{sG}, 5\ns_and_b32 s31, s{sRB}, 7\ns_add_u32 s30, s30, s31\ns_add_u32 s30, s30, s{sW}\ns_lshl_b32 s30, s30, 16\ns_add_u32 s{sAR}, s{sAR}, s30")
    def a_src(self, i, step):
        q = 2 * step + (i >> 1)
        e(f"s_add_u32 s31, s{sAR}, {(q//7)*512*KB + (q%7)*8192 + (i&1)*4096}")
G1, G3, G4, G5 = QKV(), WO(), W1(), W2()
_pf = opt("pfs", "X,X,X").split(",")
PFS = [(_pf[0][0], _pf[0][1:], pWO, 2 * MB, True, 249), (_pf[1][0], _pf[1][1:], pW1, 1024 * 7168, False, 248), (_pf[2][0], _pf[2][1:], pW2, 3584 * 2048, False, 250)]
L_K, L_V, L_Q = 0, 48 * KB, 96 * KB

def own_arena(dst, add=0):
    e(f"s_lshl_b32 s{dst}, s{sG}, 5\ns_add_u32 s{dst}, s{dst}, s{sR}\ns_lshl_b32 s{dst}, s{dst}, 16\ns_add_u32 s{dst}, s{dst}, {WS_AR + add}")
def h1_base(dst):
    e(f"s_cmp_lg_u32 s{sMODE}, 0\ns_cselect_b32 s{dst}, {WS_AR2}, {WS_AR if ALIAS else WS_AR2}")
def rowmajor_voff(dst, t):
    e(f"v_and_b32 v{t}, 1, v3\nv_lshlrev_b32 v{t}, 1, v{t}\nv_lshrrev_b32 v{dst}, 1, v3\nv_or_b32 v{t}, v{t}, v{dst}")
    e(f"v_lshlrev_b32 v{t}, 4, v{t}\nv_lshl_add_u32 v{dst}, v4, 11, v{t}")
def roles_84(rb=sRB, cb=sCB):
    e(f"s_and_b32 s{rb}, s{sG}, 1\ns_lshl_b32 s{rb}, s{rb}, 3\ns_and_b32 s30, s{sR}, 7\ns_add_u32 s{rb}, s{rb}, s30")
    e(f"s_lshr_b32 s{cb}, s{sG}, 1\ns_lshl_b32 s{cb}, s{cb}, 2\ns_lshr_b32 s30, s{sR}, 3\ns_add_u32 s{cb}, s{cb}, s30")
def roles_p1(rb=sRB, cb=sCB):
    if MAP1 == 84: return roles_84(rb, cb)
    e(f"s_lshr_b32 s{rb}, s{sR}, 1\ns_and_b32 s30, s{sR}, 1\ns_lshl_b32 s{cb}, s{sG}, 1\ns_add_u32 s{cb}, s{cb}, s30")
def roles_48(rb=sRB, cb=sCB):
    e(f"s_and_b32 s{rb}, s{sG}, 3\ns_lshl_b32 s{rb}, s{rb}, 2\ns_and_b32 s30, s{sR}, 3\ns_add_u32 s{rb}, s{rb}, s30")
    e(f"s_lshr_b32 s{cb}, s{sG}, 2\ns_lshl_b32 s{cb}, s{cb}, 3\ns_lshr_b32 s30, s{sR}, 2\ns_add_u32 s{cb}, s{cb}, s30")
def roles_w2(rb=sRB, cb=sCB, ks=sKS):
    e(f"s_and_b32 s{rb}, s{sG}, 1\ns_lshl_b32 s{rb}, s{rb}, 2\ns_and_b32 s30, s{sR}, 3\ns_add_u32 s{rb}, s{rb}, s30\ns_lshl_b32 s{rb}, s{rb}, 1")
    e(f"s_lshr_b32 s{cb}, s{sR}, 2\ns_lshr_b32 s{ks}, s{sG}, 1")
def b_src_wo(cb=sCB):
    srd(SB, pWO, 2 * MB); e(f"s_lshl_b32 s{sBC}, s{cb}, 7\ns_mov_b32 s{sBR}, 0")
def b_src_w1():
    srd(SB, pW1, 1024 * 7168)
    e(f"""
s_mul_i32 s{sBH}, s{sCB}, 448
s_and_b32 s30, s{sCB}, 1
s_lshl_b32 s{sBC}, s30, 6
s_add_u32 s{sBC}, s{sBC}, s{sBH}
s_xor_b32 s30, s30, 1
s_mul_i32 s30, s30, 384
s_add_u32 s{sBH}, s{sBH}, s30
s_mov_b32 s{sBR}, 0
""")
def b_src_w2():
    srd(SB, pW2, 3584 * 2048); e(f"s_lshl_b32 s{sBC}, s{sCB}, 8\ns_mul_i32 s{sBR}, s{sKS}, {G5.NK*64*2048}")
def flag_addr(dst, base, hi, lo, nw, wave):
    e(f"s_lshl_b32 s{dst}, s{hi}, 4\ns_add_u32 s{dst}, s{dst}, s{lo}\ns_mul_i32 s{dst}, s{dst}, {nw}")
    if wave is not None: e(f"s_add_u32 s{dst}, s{dst}, s{wave}")
    e(f"s_lshl_b32 s{dst}, s{dst}, 2\ns_add_u32 s{dst}, s{dst}, {base}")
def dual(fn, sreg):
    S, X = A.newlabel("slowst"), A.newlabel("stx")
    e(f"s_cmp_lg_u32 s{sreg}, 0\ns_cbranch_scc1 {S}")
    fn(LFL)
    e(f"s_branch {X}")
    A.label(S)
    fn("sc1")
    A.label(X)

def attn_setup():
    e(f"v_lshlrev_b32 v5, 2, v3\nv_mov_b32 v6, {f32(-1e30)}")
    for k in range(4):
        e(f"v_add_u32 v7, {k}, v5\nv_cmp_gt_u32 vcc, v7, v4\nv_cndmask_b32 v{56+k}, v6, 0, vcc\nv_cndmask_b32 v{60+k}, 0, v6, vcc".replace("v_cndmask_b32 v%d, v6, 0, vcc" % (56 + k), "v_cndmask_b32_e64 v%d, v6, 0, vcc" % (56 + k)))
    e(f"""
s_lshl_b32 s36, s{sRB}, 2
s_add_u32 s36, s36, s38
s_sub_i32 s36, 8, s36
s_max_i32 s36, s36, 0
s_mul_i32 s37, s{sWN}, 24
s_lshl_b32 s39, s38, 1
s_add_u32 s37, s37, s39
s_lshl_b32 s37, s37, 10
v_lshl_add_u32 v5, v1, 4, s37
v_add_u32 v7, {L_V}, v5
""")
    own_arena(34, AR_O)
    e(f"s_lshl_b32 s35, s38, 12\ns_add_u32 s34, s34, s35\ns_lshl_b32 s35, s{sWN}, 10\ns_add_u32 s34, s34, s35\ns_add_u32 s35, s34, 2048")
    flag_addr(33, WS_F2, sRB, sCB, 8, sWAVE)

def attention(ST, is_p, Q=None):
    n = "attp" if is_p else "attc"
    S = 64; KF = 24; VF = 24; O = 208; MX = 232
    def sr(qt, u): return S + (qt * 18 + u) * 4
    dead = lambda qt, u: (qt == 0 and u == 17) or (qt == 1 and u == 0)
    def PF(pos):
        for role, at, ptr, nbytes, rev, dst in PFS:
            if role == ("P" if is_p else "C") and at == pos:
                srd(SB, ptr, nbytes)
                e(f"s_xor_b32 s30, s2, {255 if rev else 0}\ns_lshl_b32 s30, s30, 2\ns_add_u32 s30, s30, s{sW}\ns_lshl_b32 s30, s30, 13\nv_lshlrev_b32 v251, 7, v1")
                e(f"buffer_load_dword v{dst}, v251, {s(SB,4)}, s30 offen")
                if is_p: Q.add("pf")
    PF("nb")
    if is_p: Q.wait("nk")
    e("s_waitcnt lgkmcnt(0)\ns_barrier")
    if is_p:
        e(f"s_lshl_b32 s30, s{sW}, 11\ns_add_u32 s30, s30, {L_Q}\nv_lshl_add_u32 v2, v1, 4, s30\nds_read_b128 v[8:11], v2\nds_read_b128 v[12:15], v2 offset:1024")
    ST("att_k")
    for u in range(8): e(f"ds_read_b128 {v(KF+4*u,4)}, v5 offset:{L_K + u*1024}")
    for k in range(4): e(f"v_mov_b32 v{16+k}, 0x3f803f80")
    for k in range(4): e(f"v_mov_b32 v{MX+k}, v6")
    for r in range(O, O + 24, 2): e(f"v_mov_b64 {v(r,2)}, 0")
    def s_phase(generic):
        pend = []
        def maxes(k):
            for _ in range(k):
                if pend: e(pend.pop(0))
        for u in range(18):
            issued = min(18, u + 8)
            e(f"s_waitcnt lgkmcnt({issued - (u+1)})")
            if generic and u % 2 == 0 and u < 16:
                e(f"s_cmp_gt_u32 s36, {u//2}\ns_cselect_b32 s30, {f32(-1e30)}, 0")
                for k in range(4): e(f"v_mov_b32 v{20+k}, s30")
            for qt in range(2):
                if dead(qt, u): continue
                c = "v[56:59]" if u == qt else "v[60:63]" if u == 16 + qt else "0"
                if generic and u < 16: c = "v[20:23]"
                e(f"v_mfma_f32_16x16x32_bf16 {v(sr(qt,u),4)}, {v(KF+4*(u%8),4)}, {v(8+4*qt,4)}, {c}")
                if len(pend) >= 8: maxes(2)
                r = sr(qt, u)
                pend.append(f"v_max3_f32 v{MX+2*qt}, v{r}, v{r+1}, v{MX+2*qt}")
                pend.append(f"v_max3_f32 v{MX+2*qt+1}, v{r+2}, v{r+3}, v{MX+2*qt+1}")
            if u + 8 < 18: e(f"ds_read_b128 {v(KF+4*(u%8),4)}, v5 offset:{L_K + (u+8)*1024}")
        maxes(99)
    Lg, Lx = A.newlabel("sgen"), A.newlabel("sx")
    e(f"s_cmp_lg_u32 s36, 0\ns_cbranch_scc1 {Lg}")
    s_phase(False)
    e(f"s_branch {Lx}")
    A.label(Lg)
    s_phase(True)
    A.label(Lx)
    if is_p: Q.wait("nv")
    e("s_barrier")
    ST("att_v")
    PF("v")
    CSC = (32 ** -0.5) * LOG2E
    e(f"s_mov_b32 s{sC0}, {f32(CSC)}\ns_mov_b32 s{sC0+1}, {f32(CSC)}")
    for q in range(6): e(f"ds_read_b128 {v(VF+4*q,4)}, v7 offset:{q*1024}")
    e(f"v_max_f32 v{MX}, v{MX}, v{MX+1}\nv_max_f32 v{MX+2}, v{MX+2}, v{MX+3}")
    xg_multi("v_max_f32", [MX, MX + 2], [MX + 1, MX + 3])
    e(f"v_mul_f32 v{MX}, {f32(-CSC)}, v{MX}\nv_mul_f32 v{MX+2}, {f32(-CSC)}, v{MX+2}")
    def pv(p):
        out = []
        for qt in range(2):
            P = v(sr(qt, 2 * p), 4)
            for dt in range(2):
                o = v(O + 12 * qt + 4 * dt, 4)
                out.append(f"v_mfma_f32_16x16x32_bf16 {o}, {v(VF+4*((2*p+dt)%8),4)}, {P}, {o}")
            o = v(O + 12 * qt + 8, 4)
            out.append(f"v_mfma_f32_16x16x32_bf16 {o}, v[16:19], {P}, {o}")
        return out
    for p in range(10):
        va = []
        if p < 9:
            live = [(qt, u) for qt in range(2) for u in (2 * p, 2 * p + 1) if not dead(qt, u)]
            for qt, u in live:
                r = sr(qt, u)
                for h in range(2): va.append(f"v_pk_fma_f32 {v(r+2*h,2)}, {v(r+2*h,2)}, {s(sC0,2)}, {v(MX+2*qt,2)} op_sel_hi:[1,1,0]")
            for qt, u in live:
                for k in range(4): va.append(f"v_exp_f32 v{sr(qt,u)+k}, v{sr(qt,u)+k}")
            for qt, u in live:
                r = sr(qt, u); dst = sr(qt, 2 * p) + 2 * (u & 1)
                va.append(f"v_cvt_pk_bf16_f32 v{dst}, v{r}, v{r+1}"); va.append(f"v_cvt_pk_bf16_f32 v{dst+1}, v{r+2}, v{r+3}")
            if p == 8: va.append(f"v_mov_b64 {v(sr(0,16)+2,2)}, 0")
            if p == 0: va.append(f"v_mov_b64 {v(sr(1,0),2)}, 0")
        mm = pv(p - 1) if p > 0 else []
        if p > 0:
            issued = min(18, 2 * (p - 1) + 6)
            e(f"s_waitcnt lgkmcnt({issued - 2*p})")
        PF(f'pv{p}')
        gap = max(1, len(va) // 7)
        for i, x in enumerate(va):
            e(x)
            if i >= 1 and (i - 1) % gap == 0 and mm: e(mm.pop(0))
        for x in mm: e(x)
        if p > 0:
            for b in (2 * p + 4, 2 * p + 5):
                if b < 18: e(f"ds_read_b128 {v(VF+4*(b%8),4)}, v7 offset:{b*1024}")
    ST("att_pv")
    e("v_lshlrev_b32 v2, 4, v1")
    for qt in range(2):
        o = O + 12 * qt
        e(f"v_rcp_f32 v{o+8}, v{o+8}")
        for h in range(4): e(f"v_pk_mul_f32 {v(o+2*h,2)}, {v(o+2*h,2)}, {v(o+8,2)} op_sel_hi:[1,0]")
        for h in range(4): e(f"v_cvt_pk_bf16_f32 v{24+4*qt+h}, v{o+2*h}, v{o+2*h+1}")
        e(f"buffer_store_dwordx4 {v(24+4*qt,4)}, v2, {s(SWS,4)}, s{34+qt} offen sc1")

def consumer(ST):
    G = G1
    e(f"v_mov_b32 v{vCNT}, 0")
    for off in (OFF_DONE, OFF_FULL, OFF_HD, OFF_EP): e(f"ds_write_b32 v{vDW}, v{vCNT} offset:{off}")
    e("s_waitcnt lgkmcnt(0)\ns_barrier")
    G.c_setup()
    X = G.VX
    RA_, CSQ, VA_, VB_, CSV = X, X + 8, X + 24, X + 40, X + 56
    assert CSV + 4 <= vDW
    def pre_last1():
        e(f"v_and_b32 v2, 1, v1\nv_lshlrev_b32 v2, 8, v2\nv_add_u32 v2, {L_HD + 512}, v2")
        lds_wait(2, 3, vFV, sleep=0)
        e(f"s_lshl_b32 s30, s{sWM}, 8\ns_add_u32 s30, s30, {MISC}\nv_lshl_add_u32 v2, v4, 2, s30\nv_lshl_add_u32 v5, v3, 4, s30")
        e(f"s_lshl_b32 s30, s{sWN}, 7\ns_add_u32 s30, s30, {MISC}\nv_lshl_add_u32 v6, v3, 4, s30\nv_lshl_add_u32 v7, v4, 2, s30")
    fill = []
    for mt in range(4): fill += [f"ds_read_b32 v{RA_+2*mt}, v2 offset:{mt*64}", f"ds_read_b32 v{RA_+2*mt+1}, v2 offset:{512+mt*64}"]
    for t in (2, 3, 0, 1): fill.append(f"ds_read_b128 {v(CSQ+4*t,4)}, v6 offset:{1024 + (t>>1)*256 + (t&1)*64}")
    for mt in range(4): fill += [f"ds_read_b128 {v(VA_+4*mt,4)}, v5 offset:{mt*64}", f"ds_read_b128 {v(VB_+4*mt,4)}, v5 offset:{512+mt*64}"]
    for dt in range(2): fill.append(f"ds_read_b32 v{CSV+2*dt}, v7 offset:{1024 + 512 + dt*64}")
    fill.append(f"ds_read_b32 v{CSV+1}, v{vFR} offset:{OFF_HD}")
    own_arena(33, AR_K)
    e(f"""
s_lshl_b32 s30, s{sWN}, 13
s_add_u32 s33, s33, s30
s_lshl_b32 s30, s{sWM}, 12
s_add_u32 s33, s33, s30
s_add_u32 s34, s33, {AR_V - AR_K}
s_lshl_b32 s31, s{sWM}, 2
s_mul_i32 s35, s{sWN}, 24
s_add_u32 s35, s35, s31
s_add_u32 s35, s35, 16
s_lshl_b32 s35, s35, 10
s_lshl_b32 s36, s{sW}, 11
s_add_u32 s36, s36, {L_Q}
""")
    flag_addr(32, WS_F1, sCB, sRB, 4, sW)
    G.c_loop(ST, pre_last1, fill)
    e(f"s_waitcnt lgkmcnt(0)\nv_readfirstlane_b32 s{sMODE}, v{CSV+1}\nv_lshlrev_b32 v2, 4, v1\nv_add_u32 v5, s35, v2\nv_add_u32 v6, s36, v2")
    e(f"s_lshr_b32 s30, s{sRB}, 1\ns_cmp_eq_u32 s30, {3 if MAP1 == 84 else 99}\ns_cselect_b32 s{sT0}, 1, s{sMODE}")
    def fold_rows(mt, t):
        c = G.acc(mt, t); k = RA_ + 2 * mt
        for h in range(2): e(f"v_pk_mul_f32 {v(c+2*h,2)}, {v(c+2*h,2)}, {v(k,2)} op_sel_hi:[1,0]")
        for h in range(2): e(f"v_pk_fma_f32 {v(c+2*h,2)}, {v(CSQ+4*t+2*h,2)}, {v(k,2)}, {v(c+2*h,2)} op_sel:[0,1,0] op_sel_hi:[1,1,1]")
    def fold_v(mt, dt):
        c = G.acc(mt, 4 + dt)
        for h in range(2): e(f"v_pk_mul_f32 {v(c+2*h,2)}, {v(c+2*h,2)}, {v(VA_+4*mt+2*h,2)}")
        for h in range(2): e(f"v_pk_fma_f32 {v(c+2*h,2)}, {v(VB_+4*mt+2*h,2)}, {v(CSV+2*dt,2)}, {v(c+2*h,2)} op_sel_hi:[1,0,1]")
    def epi1(fl):
        t = 24
        for mt in range(4):
            fold_rows(mt, 2); fold_rows(mt, 3)
            pack(t, G.acc(mt, 2), G.acc(mt, 3))
            e(f"buffer_store_dwordx4 {v(t,4)}, v2, {s(SWS,4)}, s33 offen offset:{mt*1024} {fl}"); t += 4
        for p in range(2):
            for dt in range(2):
                fold_v(2 * p, dt); fold_v(2 * p + 1, dt)
                pack(t, G.acc(2 * p, 4 + dt), G.acc(2 * p + 1, 4 + dt))
                e(f"buffer_store_dwordx4 {v(t,4)}, v2, {s(SWS,4)}, s34 offen offset:{(2*p+dt)*1024} {fl}"); t += 4
        wait_rows(OFF_DONE, 16, sleep=0)
        for i in range(4): e(f"ds_write_b128 v5, {v(24+4*i,4)} offset:{L_K + i*1024}")
        for i in range(4): e(f"ds_write_b128 v5, {v(40+4*i,4)} offset:{L_V + i*1024}")
        for mt in (2, 3, 0, 1):
            fold_rows(mt, 0); fold_rows(mt, 1)
            d = 8 + 4 * mt
            pack(d, G.acc(mt, 0), G.acc(mt, 1))
            if mt >= 2: e(f"ds_write_b128 v6, {v(d,4)} offset:{(mt-2)*1024}")
        e("s_waitcnt vmcnt(0)")
        set_flag(32, fl.replace("nt", ""), t=64)
    dual(epi1, sT0)
    ST("kv_flag")
    e(f"s_lshl_b32 s38, s{sWM}, 1")
    attn_setup()
    attention(ST, False)
    G = G3
    roles_48()
    b_src_wo()
    G.p_setup_b(sWN)
    e(f"s_mul_i32 s{sBR}, s{sWM}, {3*64*2048}\ns_mul_i32 s30, s{sWM}, {3*8192}\ns_add_u32 s{sM0B}, s{sM0B}, s30")
    X = G.VX
    rowmajor_voff(X + 16, X + 17)
    e(f"""
s_lshl_b32 s35, s{sRB}, 1
s_add_u32 s35, s35, s{sWM}
s_lshl_b32 s36, s{sCB}, 1
s_add_u32 s36, s36, s{sWN}
s_lshl_b32 s32, s35, 17
s_lshl_b32 s31, s36, 6
s_add_u32 s32, s32, s31
""")
    G.c_setup()
    e("s_waitcnt vmcnt(0)")
    set_flag(33)
    ST("o_flag")
    e("s_barrier")
    Qc = VmQ()
    for st in range(3): G.issue_b(Qc, st)
    for mt in range(4): e(f"s_add_u32 s31, s32, {mt*16*2048}\nbuffer_load_dwordx4 {v(X+4*mt,4)}, v{X+16}, {s(SX,4)}, s31 offen")
    e("s_waitcnt vmcnt(4)")
    post(OFF_EP, 1)
    wait_rows(OFF_EP, 1, sleep=0)
    e(f"""
s_lshl_b32 s37, s35, 17
s_lshl_b32 s31, s36, 10
s_add_u32 s37, s37, s31
s_add_u32 s37, s37, {WS_H}
s_lshl_b32 s38, s35, 14
s_lshl_b32 s31, s36, 9
s_add_u32 s38, s38, s31
s_add_u32 s38, s38, {WS_STAT}
""")
    flag_addr(32, WS_F3, sRB, sCB, 4, sW)
    HX = X + 24
    def pre_last3():
        e("s_waitcnt vmcnt(0)\nv_lshlrev_b32 v2, 4, v1")
        for mt in range(4):
            x = X + 4 * mt
            e(f"v_permlane16_swap_b32 v{x}, v{x+2}\nv_permlane16_swap_b32 v{x+1}, v{x+3}")
        for mt in range(4):
            for d in range(4): unpack(HX + 8 * mt + 2 * d, X + 4 * mt + d)
    G.c_loop(ST, pre_last3)
    for mt in range(4):
        x = X + 4 * mt; u = HX + 8 * mt
        pack(8, G.acc(mt, 0), G.acc(mt, 1))
        for d in range(4): unpack(12 + 2 * d, 8 + d)
        for d in range(4): e(f"v_pk_add_f32 {v(12+2*d,2)}, {v(12+2*d,2)}, {v(u+2*d,2)}")
        for d in range(4): e(f"v_cvt_pk_bf16_f32 v{x+d}, v{12+2*d}, v{13+2*d}")
        e(f"s_add_u32 s31, s37, {mt*32*1024}\nbuffer_store_dwordx4 {v(x,4)}, v2, {s(SWS,4)}, s31 offen sc1")
    for mt in range(4):
        x = X + 4 * mt; u = HX + 8 * mt
        for d in range(4): unpack(u + 2 * d, x + d)
        e(f"v_pk_add_f32 v[12:13], {v(u,2)}, {v(u+2,2)}\nv_pk_add_f32 v[14:15], {v(u+4,2)}, {v(u+6,2)}")
        e(f"v_pk_add_f32 v[12:13], v[12:13], v[14:15]\nv_add_f32 v{32+2*mt}, v12, v13")
    xg_multi("v_add_f32", [32, 34, 36, 38], [16, 17, 18, 19])
    for mt in range(4):
        u = HX + 8 * mt; sm = 32 + 2 * mt
        e(f"v_mul_f32 v12, {f32(1/32)}, v{sm}")
        for d in range(4): e(f"v_pk_add_f32 {v(u+2*d,2)}, {v(u+2*d,2)}, v[12:13] op_sel_hi:[1,0] neg_lo:[0,1] neg_hi:[0,1]")
        e(f"v_pk_mul_f32 v[14:15], {v(u,2)}, {v(u,2)}")
        for d in range(1, 4): e(f"v_pk_fma_f32 v[14:15], {v(u+2*d,2)}, {v(u+2*d,2)}, v[14:15]")
        e(f"v_add_f32 v{sm+1}, v14, v15")
    xg_multi("v_add_f32", [33, 35, 37, 39], [16, 17, 18, 19])
    for k in range(1, 4):
        e(f"v_cmp_eq_u32 vcc, {k}, v3\nv_cndmask_b32 v32, v32, v{32+2*k}, vcc\nv_cndmask_b32 v33, v33, v{33+2*k}, vcc")
    e(f"v_lshlrev_b32 v2, 3, v1\nbuffer_store_dwordx2 v[32:33], v2, {s(SWS,4)}, s38 offen sc1\ns_waitcnt vmcnt(1)")
    set_flag(32)
    post(OFF_EP, 2)
    ST("h_flag")
    G = G4
    roles_84()
    G.c_setup()
    e("s_waitcnt vmcnt(0)")
    set_flag(32, val=3)
    h1_base(37)
    e(f"""
s_and_b32 s39, s{sCB}, 1
s_lshl_b32 s32, s{sG}, 5
s_add_u32 s32, s32, s{sR}
s_lshl_b32 s32, s32, 16
s_add_u32 s32, s32, s37
s_lshl_b32 s33, s{sWM}, 12
s_add_u32 s32, s32, s33
s_lshl_b32 s34, s{sWN}, 2
s_add_u32 s34, s34, s39
s_add_u32 s35, s39, s{sWN}
s_add_u32 s35, s35, 2
s_xor_b32 s36, s39, 1
s_mul_i32 s36, s36, 6
s_lshl_b32 s34, s34, 13
s_lshl_b32 s35, s35, 13
s_lshl_b32 s36, s36, 13
s_add_u32 s34, s34, s32
s_add_u32 s35, s35, s32
s_add_u32 s36, s36, s32
s_lshl_b32 s37, s{sWN}, 3
s_add_u32 s36, s36, s37
s_add_u32 s37, s34, 8192
s_mov_b32 s{sC0}, {f32(-LOG2E)}
s_mov_b32 s{sC0+1}, {f32(-LOG2E)}
""")
    flag_addr(38, WS_F4, sRB, sCB, 4, sW)
    def pre_last4():
        e(f"v_and_b32 v2, 1, v1\nv_lshlrev_b32 v2, 8, v2\nv_add_u32 v2, {L_HD + 512}, v2")
        lds_wait(2, 4, vFV, sleep=0)
        e(f"""
s_lshl_b32 s30, s{sWM}, 9
s_add_u32 s30, s30, {L_RA}
v_lshl_add_u32 v2, v4, 3, s30
s_lshl_b32 s31, s39, 7
s_lshl_b32 s32, s{sWN}, 9
s_add_u32 s32, s32, s31
s_add_u32 s32, s32, {L_CS}
v_lshl_add_u32 v5, v3, 4, s32
s_lshl_b32 s32, s{sWN}, 7
s_add_u32 s32, s32, s31
s_add_u32 s32, s32, {L_CS + 256}
v_lshl_add_u32 v6, v3, 4, s32
s_xor_b32 s33, s39, 1
s_mul_i32 s33, s33, 768
s_lshl_b32 s32, s{sWN}, 6
s_add_u32 s32, s32, s33
s_add_u32 s32, s32, {L_CS}
v_lshl_add_u32 v7, v3, 4, s32
""")
    CS = 16
    fill = [f"ds_read_b64 {v(8+2*mt,2)}, v2 offset:{mt*128}" for mt in range(4)]
    fill += [f"ds_read_b128 {v(CS+4*t,4)}, v5 offset:{64*t}" for t in range(4)]
    fill += [f"ds_read_b128 {v(CS+16+4*t,4)}, v6 offset:{64*t}" for t in range(2)] + [f"ds_read_b128 {v(CS+24,4)}, v7"]
    G.c_loop(ST, pre_last4, fill)
    e("s_waitcnt lgkmcnt(0)\nv_lshlrev_b32 v2, 4, v1")
    def epi4(fl):
        units = []
        for pr in range(4):
            for mt in range(4): units.append((mt, (2 * pr, 2 * pr + 1) if pr < 3 else (6,), pr))
        T0, O0 = 56, 80
        def sA(i):
            mt, ts, pr = units[i]; k = 8 + 2 * mt; o = []
            for t in ts:
                c = G.acc(mt, t)
                for h in range(2): o.append(f"v_pk_mul_f32 {v(c+2*h,2)}, {v(c+2*h,2)}, {v(k,2)} op_sel:[0,1] op_sel_hi:[1,1]")
            for t in ts:
                c = G.acc(mt, t)
                for h in range(2): o.append(f"v_pk_fma_f32 {v(c+2*h,2)}, {v(CS+4*t+2*h,2)}, {v(k,2)}, {v(c+2*h,2)} op_sel_hi:[1,0,1]")
            return o
        def sB(i):
            mt, ts, pr = units[i]; T = T0 + 8 * (i % 3)
            return [f"v_exp_f32 v{T+4*j+k}, v{G.acc(mt,t)+k}" for j, t in enumerate(ts) for k in range(4)]
        def sC(i):
            mt, ts, pr = units[i]; T = T0 + 8 * (i % 3)
            return [f"v_pk_fma_f32 {v(T+2*h,2)}, {v(T+2*h,2)}, {s(sC0,2)}, {s(sC0,2)}" for h in range(2 * len(ts))]
        def sD(i):
            mt, ts, pr = units[i]; T = T0 + 8 * (i % 3)
            return [f"v_rcp_f32 v{T+k}, v{T+k}" for k in range(4 * len(ts))]
        def sE(i):
            mt, ts, pr = units[i]; T = T0 + 8 * (i % 3); o = []; d = O0 + 4 * (i % 4)
            for j, t in enumerate(ts):
                c = G.acc(mt, t)
                for h in range(2): o.append(f"v_pk_mul_f32 {v(c+2*h,2)}, {v(c+2*h,2)}, {v(T+4*j+2*h,2)}")
            for j, t in enumerate(ts):
                c = G.acc(mt, t)
                for h in range(2): o.append(f"v_cvt_pk_bf16_f32 v{d+2*j+h}, v{c+2*h}, v{c+2*h+1}")
            base = (34, 37, 35, 36)[pr]
            o.append(f"buffer_store_dwordx4 {v(d,4)}, v2, {s(SWS,4)}, s{base} offen offset:{mt*1024} {fl}" if pr < 3 else f"buffer_store_dwordx2 {v(d,2)}, v2, {s(SWS,4)}, s{base} offen offset:{mt*1024} {fl}")
            return o
        N = len(units)
        for x in sA(0): e(x)
        for i in range(N + 1):
            seq = []
            if i < N: seq += sB(i)
            if i + 1 < N: seq += sA(i + 1)
            if i < N: seq += sC(i)
            if i >= 1: seq += sE(i - 1)
            if i < N: seq += sD(i)
            for x in seq: e(x)
        ST("silu")
        e("s_waitcnt vmcnt(0)")
        set_flag(38, fl.replace("nt", ""))
    n0 = list(ST.names)
    def epi4w(fl):
        ST.names = list(n0); epi4(fl)
    dual(epi4w, sMODE)
    ST("h1_flag")
    G = G5
    roles_w2()
    G.c_setup()
    srd(SD, pOUT, 4 * MB)
    MT = G.MT; keep = 2; nb = 4
    e(f"""
s_lshl_b32 s33, s{sRB}, 3
s_add_u32 s33, s33, s{sCB}
s_mul_i32 s34, s33, {16*4*nb*1024}
s_add_u32 s34, s34, {WS_PART}
s_mul_i32 s30, s{sW}, {nb*1024}
s_add_u32 s34, s34, s30
s_lshl_b32 s35, s{sRB}, 3
s_lshl_b32 s30, s{sWM}, 3
s_add_u32 s35, s35, s30
s_lshl_b32 s30, s{sKS}, 1
s_add_u32 s35, s35, s30
s_lshl_b32 s36, s{sCB}, 2
s_lshl_b32 s30, s{sWN}, 1
s_add_u32 s36, s36, s30
s_lshl_b32 s38, s35, 15
s_lshl_b32 s31, s36, 10
s_add_u32 s38, s38, s31
s_add_u32 s38, s38, {WS_H}
s_lshl_b32 s37, s33, 6
s_lshl_b32 s31, s{sW}, 2
s_add_u32 s37, s37, s31
s_add_u32 s37, s37, {WS_F5}
s_lshl_b32 s31, s{sKS}, 4
s_add_u32 s32, s37, s31
s_lshl_b32 s39, s{sKS}, 2
""")
    for d in range(1, 4):
        e(f"s_add_u32 s31, s{sKS}, {d}\ns_and_b32 s31, s31, 3\ns_lshl_b32 s30, s31, 2\ns_add_u32 s30, s30, s{sKS}\ns_mul_i32 s30, s30, {4*nb*1024}\ns_add_u32 s{39+d}, s30, s34")
        e(f"s_add_u32 s31, s31, s39\ns_mul_i32 s31, s31, {4*nb*1024}\ns_add_u32 s{42+d}, s31, s34")
    e(f"s_lshl_b32 s46, s35, 15\ns_lshl_b32 s31, s36, 6\ns_add_u32 s46, s46, s31\ns_add_u32 s47, s38, {32*1024}")
    HR = 8
    fill = ["v_lshlrev_b32 v2, 4, v1"]
    fill += [f"buffer_load_dwordx4 {v(HR+4*(2*i+pr),4)}, v2, {s(SWS,4)}, s{38 if i == 0 else 47} offen offset:{pr*1024} sc1" for i in range(2) for pr in range(2)]
    G.c_loop(ST, None, fill)
    o = 24
    for d in range(1, 4):
        for i in range(keep):
            for pr in range(2):
                mt = d * keep + i
                pack(o, G.acc(mt, 2 * pr), G.acc(mt, 2 * pr + 1))
                e(f"buffer_store_dwordx4 {v(o,4)}, v2, {s(SWS,4)}, s{39+d} offen offset:{(2*i+pr)*1024} {PFL}")
                o = 24 + (o - 24 + 4) % 32
    rowmajor_voff(62, 63)
    e("s_waitcnt vmcnt(0)")
    set_flag(32)
    ST("p_flag")
    poll("s37", 4, voff=2, t=60)
    ST("p_seen")
    PR = 64
    for d in range(1, 4):
        for b in range(nb): e(f"buffer_load_dwordx4 {v(PR+4*((d-1)*nb+b),4)}, v2, {s(SWS,4)}, s{42+d} offen offset:{b*1024} sc1")
    assert PR + 48 <= G.ACC
    for d in range(1, 4):
        e(f"s_waitcnt vmcnt({(3-d)*nb})")
        for i in range(keep):
            for pr in range(2):
                for q in range(4): unpack(40 + 2 * q, PR + 4 * ((d - 1) * nb + 2 * i + pr) + q)
                for q in range(4):
                    c = G.acc(i, 2 * pr + (q >> 1)) + 2 * (q & 1)
                    e(f"v_pk_add_f32 {v(c,2)}, {v(c,2)}, {v(40+2*q,2)}")
    for i in range(keep):
        for pr in range(2):
            x = HR + 4 * (2 * i + pr)
            pack(24, G.acc(i, 2 * pr), G.acc(i, 2 * pr + 1))
            for q in range(4): unpack(40 + 2 * q, 24 + q); unpack(48 + 2 * q, x + q)
            for q in range(4): e(f"v_pk_add_f32 {v(40+2*q,2)}, {v(40+2*q,2)}, {v(48+2*q,2)}")
            for q in range(4): e(f"v_cvt_pk_bf16_f32 v{x+q}, v{40+2*q}, v{41+2*q}")
            e(f"v_permlane16_swap_b32 v{x}, v{x+2}\nv_permlane16_swap_b32 v{x+1}, v{x+3}")
            e(f"s_add_u32 s31, s46, {i*16*2048}\nbuffer_store_dwordx4 {v(x,4)}, v62, {s(SD,4)}, s31 offen offset:{pr*64} {OFL}")
    ST.flush()
    e("s_endpgm")
    for G in (G1, G3, G4, G5): G.c_slow()

def neighbours_and_attention(ST, Q):
    e(f"s_lshl_b32 s38, s{sWM}, 1\ns_add_u32 s38, s38, 1")
    attn_setup()
    L = A.newlabel("nonb")
    assert MAP1 == 162
    own_arena(42)
    e(f"""
s_add_u32 s40, s{sRB}, s{sWM}
s_sub_u32 s41, s40, 2
s_lshl_b32 s31, s{sWM}, 17
s_add_u32 s42, s42, s31
s_sub_u32 s42, s42, {4*64*KB}
s_lshl_b32 s31, s{sWN}, 13
s_add_u32 s42, s42, s31
s_mul_i32 s43, s{sWN}, 24
s_lshl_b32 s31, s{sWM}, 3
s_add_u32 s43, s43, s31
s_lshl_b32 s43, s43, 10
v_lshlrev_b32 v2, 4, v1
s_cmp_lt_u32 s40, 2
s_cselect_b32 s42, {WS_BYTES}, s42
s_cbranch_scc1 {L}
""")
    flag_addr(32, WS_F1, sCB, 41, 4, None)
    poll("s32", 4, t=8)
    A.label(L)
    ST("nb_seen")
    for wsb, lb in ((AR_K, L_K), (AR_V, L_V)):
        for h in range(2):
            e(f"s_add_u32 m0, s43, {lb + h*4096}\ns_add_u32 s31, s42, {wsb + h*4096}")
            for i in range(4): e(f"buffer_load_dwordx4 v2, {s(SWS,4)}, s31 offen offset:{i*1024} sc1 lds")
    Q.q = []; Q.add("nk", 8); Q.add("nv", 8)
    attention(ST, True, Q)
    e("s_waitcnt vmcnt(0)")
    set_flag(33)
    e("s_barrier")
    Q.q = []
    ST("o_flag")

def dma_phase1(ST, Q):
    G = G1
    if DPRIO: e(f"s_setprio {DPRIO}")
    e(f"s_lshl_b32 s{sBC}, s{sCB}, 7\ns_mov_b32 s{sBR}, 0\ns_lshl_b32 s{sAR}, s{sRB}, 18")
    G.p_setup_a(); G.p_setup_b()
    def touch_kv():
        own_arena(30)
        e(f"s_lshl_b32 s31, s{sW}, 14\ns_add_u32 s30, s30, s31\ns_add_u32 s31, s30, 8192\nv_lshlrev_b32 v8, 7, v1")
        for i in range(2): e(f"buffer_load_dword v{248+i}, v8, {s(SWS,4)}, s{30+i} offen {TFL}")
        Q.add("touch", 2)
    G.p_loop(Q, ST, 0, after_first=lambda: e("s_barrier"), tail=touch_kv if TOUCH else None)
    if DPRIO: e("s_setprio 0")

def dma_rest(ST, Q):
    G = G3
    if DPRIO: e(f"s_setprio {DPRIO}")
    roles_48()
    b_src_wo()
    e(f"ds_read_b32 v8, v{vFR} offset:{OFF_HD}")
    G.p_setup_a(); G.p_setup_b()
    e(f"s_waitcnt lgkmcnt(0)\nv_readfirstlane_b32 s{sMODE}, v8")
    for st in range(6, G.NSB): G.issue_b(Q, st)
    e(f"s_lshl_b32 s32, s{sRB}, 9\ns_add_u32 s32, s32, {WS_F2}")
    poll("s32", 64, x2=True, t=8); Q.q = []
    ST("o_seen")
    G.p_loop(Q, ST, G.NSB)
    G = G4
    roles_84()
    b_src_w1()
    e(f"s_lshl_b32 s{sAR}, s{sRB}, 18\ns_add_u32 s{sAR}, s{sAR}, {WS_H}")
    G.p_setup_b(); G.p_setup_a()
    e(f"s_lshl_b32 s32, s{sRB}, 8\ns_add_u32 s32, s32, {WS_F3}")
    wait_rows(OFF_EP, 2)
    for st in range(G.NS): G.issue_b(Q, st)
    poll("s32", 64, t=8); Q.q = []
    ST("h_seen")
    G.p_loop(Q, ST, G.NS + G.RP)
    G = G5
    roles_w2()
    b_src_w2()
    G.p_setup_b()
    for st in range(G.NS): G.issue_b(Q, st)
    G.p_setup_a()
    e(f"s_lshl_b32 s32, s{sRB}, 8\ns_lshl_b32 s30, s{sKS}, 6\ns_add_u32 s32, s32, s30\ns_add_u32 s32, s32, {WS_F4}")
    e("v_lshlrev_b32 v12, 2, v4\nv_lshl_add_u32 v12, v3, 8, v12")
    poll("s32", 32, voff=12, t=8); Q.q = []
    ST("h1_seen")
    G.p_loop(Q, ST, G.NS + G.RP)

U0 = 200
def colsum_block(j, src, nld, dpp):
    u = U0 + 8 * j
    for i in range(nld):
        for d in range(4):
            if i == 0: unpack(u + 2 * d, src + d)
            else:
                unpack(10 + 2 * (d & 1), src + 4 * i + d)
                e(f"v_pk_add_f32 {v(u+2*d,2)}, {v(u+2*d,2)}, {v(10+2*(d&1),2)}")
    for d in range(4): e(f"v_permlane32_swap_b32 v{u+d}, v{u+4+d}")
    for d in range(2): e(f"v_pk_add_f32 {v(u+2*d,2)}, {v(u+2*d,2)}, {v(u+4+2*d,2)}")
    for d in range(2): e(f"v_permlane16_swap_b32 v{u+d}, v{u+2+d}")
    e(f"v_pk_add_f32 {v(u,2)}, {v(u,2)}, {v(u+2,2)}")
    for k in dpp:
        for r in range(u, u + 2): e(f"v_add_f32_dpp v{r}, v{r}, v{r} row_ror:{k} row_mask:0xf bank_mask:0xf")
def colsum_store(Q, j, soff, nl, tag):
    u = U0 + 8 * j
    e("v_lshlrev_b32 v6, 5, v4\nv_lshl_add_u32 v6, v3, 3, v6")
    m = (1 << nl) - 1
    set_exec(m | m << 16 | m << 32 | m << 48)
    e(f"buffer_store_dwordx2 {v(u,2)}, v6, {s(SWS,4)}, s{soff} offen offset:{256*j} sc1\ns_mov_b64 exec, -1")
    Q.add(tag, 1)

def zero_own_flags(Q):
    e("v_lshlrev_b32 v2, 2, v1\nv_mov_b32 v8, 0")
    def st(soff, nl):
        set_exec((1 << nl) - 1); e(f"buffer_store_dword v8, v2, {s(SWS,4)}, s{soff} offen sc1"); Q.add("zero")
    flag_addr(32, WS_F1, sCB, sRB, 4, None); st(32, 4)
    flag_addr(32, WS_F2, sRB, sCB, 8, None); st(32, 8)
    flag_addr(32, WS_F7, sRB, sCB, 1, None); st(32, 1)
    flag_addr(32, WS_F8, sCB, sRB, 1, None); st(32, 1)
    roles_84(36, 37)
    flag_addr(32, WS_F4, 36, 37, 4, None); st(32, 4)
    flag_addr(32, WS_F6, 37, 36, 2, None); st(32, 2)
    roles_48(36, 37)
    flag_addr(32, WS_F3, 36, 37, 4, None); st(32, 4)
    roles_w2(36, 37, 38)
    e(f"s_lshl_b32 s32, s36, 3\ns_add_u32 s32, s32, s37\ns_lshl_b32 s32, s32, 2\ns_add_u32 s32, s32, s38\ns_lshl_b32 s32, s32, 4\ns_add_u32 s32, s32, {WS_F5}"); st(32, 4)
    e("s_mov_b64 exec, -1")
sPFO, sPFE, sPFI, SPF = sM0A, sNEED, sC0, 44
def pf_init():
    srd(SPF, pWO, 2 * MB)
    e(f"s_lshl_b32 s{sC0+1}, s2, 1\ns_add_u32 s{sC0+1}, s{sC0+1}, s{sWN}\ns_lshl_b32 s{sC0+1}, s{sC0+1}, 8\ns_mov_b32 s{sPFO}, s{sC0+1}\ns_mov_b32 s{sPFE}, {2*MB}\ns_mov_b32 s{sPFI}, 0")
def pf_chunk(wait=True):
    if not SPFON: return
    if wait: e("s_waitcnt lgkmcnt(10)")
    for i in range(4): e(f"s_buffer_load_dword s{sMODE}, {s(SPF,4)}, s{sPFO} offset:{64*i}")
    e(f"s_add_u32 s{sPFO}, s{sPFO}, {512*256}")
def pf_next():
    if not SPFON: return
    X, W2L = A.newlabel("pfx"), A.newlabel("pfw2")
    e(f"s_cmp_lt_u32 s{sPFO}, s{sPFE}\ns_cbranch_scc1 {X}\ns_cmp_ge_u32 s{sPFI}, 2\ns_cbranch_scc1 {X}")
    e(f"s_mov_b32 s{sPFO}, s{sC0+1}\ns_mov_b32 s{sPFE}, {7*MB}\ns_add_u32 s{sPFI}, s{sPFI}, 1\ns_cmp_eq_u32 s{sPFI}, 2\ns_cbranch_scc1 {W2L}")
    srd(SPF, pW1, 7 * MB)
    e(f"s_branch {X}")
    A.label(W2L)
    srd(SPF, pW2, 7 * MB)
    A.label(X)
def pf_until(k, off=OFF_DONE):
    if not SPFON:
        wait_rows(off, k, sleep=4); return
    L, X, N = A.newlabel("pu"), A.newlabel("pux"), A.newlabel("pun")
    A.label(L)
    e(f"ds_read_b32 v{vFV}, v{vFR} offset:{off}\ns_waitcnt lgkmcnt(0)\nv_cmp_gt_u32 vcc, {k}, v{vFV}\ns_cbranch_vccz {X}")
    pf_next()
    e(f"s_cmp_ge_u32 s{sPFO}, s{sPFE}\ns_cbranch_scc1 {N}")
    for i in range(PFB): pf_chunk(wait=(i >= 3))
    A.label(N)
    e(f"s_sleep 2\ns_add_u32 s3, s3, 1\ns_cmp_lt_u32 s3, {LSPIN_MAX}\ns_cbranch_scc1 {L}")
    A.label(X)
def pf_stamp(ST):
    if not STAMPS: return
    k_ = len(ST.names); ST.names.append("pfMB")
    e(f"s_mul_i32 s30, s{sPFI}, 1000\ns_lshr_b32 s31, s{sPFO}, 13\ns_mul_i32 s31, s31, 25\ns_lshr_b32 s31, s31, 5\ns_add_u32 s30, s30, s31\ns_add_u32 s{78+k_}, s78, s30")
def pf_save(): e(f"s_mov_b32 s{sM0B}, s{sC0}\ns_mov_b32 s{sM0H}, s{sC0+1}")
def pf_restore(): e(f"s_mov_b32 s{sC0}, s{sM0B}\ns_mov_b32 s{sC0+1}, s{sM0H}")
class Sprinkle:
    def __init__(self, n): self.n = n
    def __enter__(self): self.saved = A.lines; A.lines = []; return self
    def __exit__(self, *a):
        body = A.lines; A.lines = self.saved
        for i, ln in enumerate(body):
            A.lines.append(ln)
            if i % self.n == self.n - 1:
                if (i // self.n) % 4 == 0: pf_next()
                pf_chunk()
def h_post(val):
    e("s_waitcnt lgkmcnt(0)"); post(OFF_HD, val)
def after_done(k): wait_rows(OFF_DONE, k, sleep=4)
H_FULL0 = G4.base + (G4.NS if G4.RP else G4.NK + (G5.NS if G5.RP else G5.NK))

def helper0_phase1(ST, Q):
    RS = 16
    e(f"""
s_lshl_b32 s35, s{sRB}, 4
s_add_u32 s35, s35, s{sCB}
s_lshl_b32 s34, s35, 14
v_lshrrev_b32 v6, 3, v1
v_lshlrev_b32 v5, 11, v6
v_and_b32 v7, 7, v1
v_lshl_add_u32 v5, v7, 4, v5
s_getreg_b32 s{sT0}, hwreg(HW_REG_XCC_ID)
s_barrier
""")
    post(OFF_FULL, H_FULL0)
    for i in range(16): e(f"buffer_load_dwordx4 {v(RS+4*i,4)}, v5, {s(SX,4)}, s34 offen offset:{128*i}")
    Q.add("rs", 16)
    zero_own_flags(Q)
    e(f"s_and_b32 s{sT0}, s{sT0}, 15\ns_or_b32 s{sT0}, s{sT0}, 0x80\ns_lshl_b32 s30, s{sG}, 5\ns_add_u32 s30, s30, s{sR}")
    e(f"v_mov_b32 v8, s{sT0}\nv_mov_b32 v2, s30")
    Q.wait("zero")
    e(f"s_mov_b64 exec, 1\nbuffer_store_byte v8, v2, {s(SD,4)}, 0 offen sc1\ns_mov_b64 exec, -1")
    h_post(1)
    def red8(r):
        e(f"v_add_f32_dpp v{r}, v{r}, v{r} quad_perm:[1,0,3,2] row_mask:0xf bank_mask:0xf")
        e(f"v_add_f32_dpp v{r}, v{r}, v{r} quad_perm:[2,3,0,1] row_mask:0xf bank_mask:0xf")
        e(f"v_add_f32_dpp v{r}, v{r}, v{r} row_half_mirror row_mask:0xf bank_mask:0xf")
    U = 80
    pf_init()
    sp = Sprinkle(24); sp.__enter__()
    for i in range(64): unpack(U + 2 * i, RS + i)
    e(f"v_pk_add_f32 v[8:9], {v(U,2)}, {v(U+2,2)}\nv_pk_add_f32 v[14:15], {v(U+4,2)}, {v(U+6,2)}")
    for i in range(4, 64):
        a_ = 8 if i & 1 else 14
        e(f"v_pk_add_f32 {v(a_,2)}, {v(a_,2)}, {v(U+2*i,2)}")
    e("v_pk_add_f32 v[8:9], v[8:9], v[14:15]\nv_add_f32 v10, v8, v9")
    red8(10)
    e(f"v_mul_f32 v12, {f32(1/1024)}, v10\nv_mov_b64 v[8:9], 0\nv_mov_b64 v[14:15], 0")
    for i in range(64):
        a_ = 8 if i & 1 else 14
        e(f"v_pk_add_f32 {v(U+2*i,2)}, {v(U+2*i,2)}, v[12:13] op_sel_hi:[1,0] neg_lo:[0,1] neg_hi:[0,1]\nv_pk_fma_f32 {v(a_,2)}, {v(U+2*i,2)}, {v(U+2*i,2)}, {v(a_,2)}")
    e("v_pk_add_f32 v[8:9], v[8:9], v[14:15]\nv_add_f32 v11, v8, v9")
    sp.__exit__()
    red8(11)
    ln_finish(10, 11, 1024)
    e("v_mul_f32 v10, v10, v11\nv_sub_f32 v10, 0, v10")
    e(f"v_lshrrev_b32 v7, 3, v1\nv_lshlrev_b32 v7, 2, v7\ns_lshl_b32 s30, s35, 5\ns_add_u32 s30, s30, {WS_RA}\ns_add_u32 s31, s30, {WS_RB-WS_RA}")
    set_exec(0x0101010101010101)
    e(f"buffer_store_dword v11, v7, {s(SWS,4)}, s30 offen sc1\nbuffer_store_dword v10, v7, {s(SWS,4)}, s31 offen sc1\ns_mov_b64 exec, -1")
    flag_addr(32, WS_F7, sRB, sCB, 1, None)
    Q.wait_all(); set_flag(32)
    ST("st_pub")
    pf_until(SCHK)
    spoll(SD, "0", 4, "0x80808080")
    h_post(2)
    pf_until(SCHK2)
    e(f"s_lshl_b32 s{sAR}, s{sRB}, 6\ns_add_u32 s{sAR}, s{sAR}, {WS_F7}")
    spoll(SWS, f"s{sAR}", 1, 1)
    after_done(GAT)
    e(f"v_and_b32 v6, 31, v1\nv_lshlrev_b32 v6, 4, v6\nv_lshrrev_b32 v7, 5, v1\nv_lshl_add_u32 v6, v7, 13, v6")
    e(f"s_lshl_b32 s30, s{sRB}, 9\ns_add_u32 s30, s30, {WS_RA}\ns_mov_b32 m0, {L_RA}\nbuffer_load_dwordx4 v6, {s(SWS,4)}, s30 offen sc1 lds")
    e(f"v_and_b32 v7, 7, v1\nv_lshlrev_b32 v7, 2, v7\ns_lshl_b32 s30, s{sG}, 5\nbuffer_load_dword v8, v7, {s(SD,4)}, s30 offen sc1\ns_mul_i32 s31, s{sT0}, 0x01010101")
    e(f"s_waitcnt vmcnt(0)\nv_cmp_ne_u32 vcc, s31, v8\ns_cmp_lg_u64 vcc, 0\ns_cselect_b32 s30, 1, 0")
    if FORCE >= 0: e(f"s_mov_b32 s30, {FORCE}")
    e(f"v_mov_b32 v8, s30\nv_mov_b32 v7, {L_HD}\ns_mov_b64 exec, 1\nds_write_b32 v7, v8\ns_mov_b64 exec, -1")
    h_post(3)
    ST("st_in")
    pf_until(15)
    pf_stamp(ST)
    pf_save()
    wait_rows(OFF_DONE, 16, sleep=1)

def helper1_phase1(ST, Q):
    CSR = 80
    e(f"""
s_lshl_b32 s35, s{sRB}, 4
s_add_u32 s35, s35, s{sCB}
v_lshrrev_b32 v6, 3, v1
v_and_b32 v7, 7, v1
v_mul_u32_u24 v6, 6144, v6
v_lshl_add_u32 v6, v7, 4, v6
s_mul_i32 s32, s{sRB}, {64*6144}
s_lshl_b32 s33, s{sCB}, 7
s_add_u32 s32, s32, s33
s_barrier
""")
    post(OFF_FULL, H_FULL0)
    for j in range(3):
        for i in range(8):
            e(f"s_add_u32 s31, s32, {2048*j + 8*6144*i}\nbuffer_load_dwordx4 {v(CSR+4*(8*j+i),4)}, v6, {s(SB,4)}, s31 offen")
        Q.add(("cs", j), 8)
    e(f"s_mul_i32 s33, s35, 768\ns_add_u32 s33, s33, {WS_CS1}")
    pf_init()
    for j in range(3):
        Q.wait(("cs", j))
        with Sprinkle(24): colsum_block(j, CSR + 32 * j, 8, (8,))
        colsum_store(Q, j, 33, 8, "st1")
    flag_addr(32, WS_F8, sCB, sRB, 1, None)
    e(f"v_mov_b32 v14, {L_HD + 512}")
    lds_wait(14, 1, vFV, sleep=4)
    Q.wait_all(); set_flag(32)
    ST("st_pub")
    pf_until(SCHK2)
    lds_wait(14, 2, vFV, sleep=4)
    e(f"s_lshl_b32 s{sAR}, s{sCB}, 6\ns_add_u32 s{sAR}, s{sAR}, {WS_F8}")
    spoll(SWS, f"s{sAR}", 1, 1)
    after_done(GAT)
    e(f"s_mul_i32 s33, s{sCB}, 768\ns_add_u32 s33, s33, {WS_CS1}\nv_lshlrev_b32 v6, 4, v1"); set_exec((1 << 48) - 1)
    for k in range(16): e(f"s_add_u32 s31, s33, {k*16*768}\nbuffer_load_dwordx4 {v(16+4*k,4)}, v6, {s(SWS,4)}, s31 offen sc1")
    e("s_waitcnt vmcnt(0)")
    for k in range(1, 16): e(f"v_pk_add_f32 v[16:17], v[16:17], {v(16+4*k,2)}\nv_pk_add_f32 v[18:19], v[18:19], {v(18+4*k,2)}")
    e(f"v_add_u32 v6, {L_CS}, v6\nds_write_b128 v6, v[16:19]\ns_mov_b64 exec, -1")
    h_post(3)
    ST("st_in")
    pf_until(15)
    pf_stamp(ST)
    pf_save()
    wait_rows(OFF_DONE, 16, sleep=1)

def helper_rest(ST, Q):
    CSR = 16
    pf_restore()
    roles_84()
    b_src_w1()
    e(f"""
v_lshrrev_b32 v6, 3, v1
v_mul_u32_u24 v6, 7168, v6
v_and_b32 v7, 7, v1
v_lshl_add_u32 v6, v7, 4, v6
v_lshrrev_b32 v5, 2, v1
v_mul_u32_u24 v5, 7168, v5
v_and_b32 v7, 3, v1
v_lshl_add_u32 v5, v7, 4, v5
s_lshl_b32 s{sKS}, s{sRB}, 1
s_add_u32 s{sKS}, s{sKS}, s{sWN}
s_mul_i32 s32, s{sKS}, {32*7168}
s_mul_i32 s33, s{sCB}, 448
s_add_u32 s32, s32, s33
""")
    pf_until(G3.base + CS2AT)
    for j in range(3):
        for i in range(4):
            e(f"s_add_u32 s31, s32, {8*7168*i}\nbuffer_load_dwordx4 {v(CSR+4*(4*j+i),4)}, v6, {s(SB,4)}, s31 offen offset:{128*j}")
    for i in range(2):
        e(f"s_add_u32 s31, s32, {16*7168*i}\nbuffer_load_dwordx4 {v(CSR+48+4*i,4)}, v5, {s(SB,4)}, s31 offen offset:384")
    G4.p_setup_b(sWN)
    e("s_waitcnt vmcnt(0)")
    e(f"s_mul_i32 s33, s{sKS}, {3584*4}\ns_mul_i32 s34, s{sCB}, 896\ns_add_u32 s33, s33, s34\ns_add_u32 s33, s33, {WS_CS2}")
    for j in range(4):
        colsum_block(j, CSR + 16 * j, 4 if j < 3 else 2, (8,) if j < 3 else (4, 8))
        colsum_store(Q, j, 33, 8 if j < 3 else 4, "st2")
    e(f"s_lshl_b32 s32, s{sCB}, 5\ns_add_u32 s32, s32, s{sKS}\ns_lshl_b32 s32, s32, 2\ns_add_u32 s32, s32, {WS_F6}")
    Q.wait_all(); set_flag(32); Q.add("flag")
    ST("cs2_pub"); pf_stamp(ST)
    if G4.RP:
        wait_rows(OFF_EP, 2, sleep=4)
        G4.rp_load(Q)
        G4.rp_drain(Q)
        post(OFF_FULL, G5.base + (G5.NS if G5.RP else G5.NK))
    ST("rp4")
    pf_until(G4.base + SCHK)
    e(f"s_lshl_b32 s{sAR}, s{sCB}, 7\ns_add_u32 s{sAR}, s{sAR}, {WS_F6}")
    spoll(SWS, f"s{sAR}", 2, 1)
    e(f"s_lshl_b32 s{sAR}, s{sRB}, 8\ns_add_u32 s{sAR}, s{sAR}, {WS_F3}")
    spoll(SWS, f"s{sAR}", 4, 2)
    for d in range(3):
        e(f"s_lshr_b32 s{sAR}, s{sR}, 1\ns_add_u32 s{sAR}, s{sAR}, {d}\ns_min_u32 s{sAR}, s{sAR}, 15\ns_lshl_b32 s{sAR}, s{sAR}, 8\ns_add_u32 s{sAR}, s{sAR}, {WS_F3}")
        spoll(SWS, f"s{sAR}", 4, 1)
    pf_until(G4.base + GAT - 1)
    e(f"v_lshlrev_b32 v11, 3, v1\ns_lshl_b32 s30, s{sKS}, 14\ns_add_u32 s30, s30, {WS_STAT}\ns_add_u32 s31, s30, 4096\ns_add_u32 s32, s30, 8192\ns_add_u32 s33, s30, 12288")
    for i in range(32): e(f"buffer_load_dwordx2 {v(96+2*i,2)}, v11, {s(SWS,4)}, s{30+i//8} offen offset:{512*(i%8)} sc1")
    e(f"s_mul_i32 s33, s{sCB}, 896\ns_mul_i32 s34, s{sWN}, 448\ns_add_u32 s33, s33, s34\ns_add_u32 s33, s33, {WS_CS2}\nv_lshlrev_b32 v6, 3, v1")
    set_exec((1 << 56) - 1)
    for k in range(32):
        if k == 30: e("s_waitcnt vmcnt(60)")
        e(f"s_add_u32 s31, s33, {k*3584*4}\nbuffer_load_dwordx2 {v(16+2*k,2)}, v6, {s(SWS,4)}, s31 offen sc1")
    e("s_mov_b64 exec, -1\ns_waitcnt vmcnt(32)")
    e("v_pk_add_f32 v[14:15], v[96:97], v[98:99]")
    for i in range(2, 32): e(f"v_pk_add_f32 v[14:15], v[14:15], {v(96+2*i,2)}")
    e(f"v_mul_f32 v12, {f32(1/32)}, v14\nv_mov_b32 v10, 0")
    for i in range(32): e(f"v_sub_f32 v{96+2*i}, v{96+2*i}, v12\nv_fma_f32 v10, v{96+2*i}, v{96+2*i}, v10")
    e(f"v_mov_b32 v13, {f32(1/32)}\nv_fma_f32 v15, v10, v13, v15")
    ln_finish(14, 15, 1024)
    e(f"v_mul_f32 v15, {f32(-LOG2E)}, v15\nv_mul_f32 v14, v14, v15\nv_sub_f32 v14, 0, v14")
    e(f"s_lshl_b32 s30, s{sWN}, 9\ns_add_u32 s30, s30, {L_RA}\nv_lshl_add_u32 v13, v1, 3, s30\nds_write_b64 v13, v[14:15]")
    e("s_waitcnt vmcnt(0)")
    for k in range(1, 32): e(f"v_pk_add_f32 v[16:17], v[16:17], {v(16+2*k,2)}")
    e(f"s_add_u32 s34, s34, {L_CS}\nv_add_u32 v6, s34, v6"); set_exec((1 << 56) - 1)
    e("ds_write_b64 v6, v[16:17]\ns_mov_b64 exec, -1")
    h_post(4)
    ST("st2_in"); pf_stamp(ST)
    pf_until(G5.base + 1); pf_stamp(ST)
    if not G5.RP: pf_until(G5.base + 8)
    if G5.RP:
        roles_w2(); b_src_w2(); G5.p_setup_b(sWN)
        Q.q = []
        after_done(G4.base + 14)
        G5.rp_load(Q)
        G5.rp_drain(Q)
        post(OFF_FULL, G5.base + G5.NK)

def producer(ST):
    Q = VmQ()
    e(f"s_cmp_eq_u32 s{sW}, 2\ns_cbranch_scc1 L_h0\ns_cmp_eq_u32 s{sW}, 3\ns_cbranch_scc1 L_h1")
    SD_ = ST.fork("D"); dma_phase1(SD_, Q)
    srd(SPF, pWO, 2 * MB)
    e("s_branch L_att")
    A.label("L_h0")
    SH = ST.fork("H"); helper0_phase1(SH, VmQ())
    e("s_branch L_att")
    A.label("L_h1")
    SH = ST.fork("H"); helper1_phase1(SH, VmQ())
    while len(SH.names) < len(SD_.names): SH.names.append("-")
    A.label("L_att")
    n0 = len(SD_.names)
    neighbours_and_attention(SD_, Q)
    SH.names += SD_.names[n0:]
    e(f"s_cmp_ge_u32 s{sW}, 2\ns_cbranch_scc1 L_hrest")
    dma_rest(SD_, Q)
    SD_.flush()
    e("s_endpgm")
    A.label("L_hrest")
    helper_rest(SH, VmQ())
    SH.flush()

def only_phase():
    G = {1: G1, 3: G3, 4: G4, 5: G5}[ONLY]
    G.base = 0
    {1: roles_p1, 3: roles_48, 4: roles_84, 5: roles_w2}[ONLY]()
    e(f"s_cmp_ge_u32 s{sWAVE}, 4\ns_cbranch_scc1 L_prod")
    ST = Stamper("C")
    e(f"v_mov_b32 v{vCNT}, 0")
    for off in (OFF_DONE, OFF_FULL, OFF_HD, OFF_EP): e(f"ds_write_b32 v{vDW}, v{vCNT} offset:{off}")
    e("s_waitcnt lgkmcnt(0)\ns_barrier")
    G.c_setup(); G.c_loop(ST); ST.flush()
    e("s_endpgm")
    G.c_slow()
    A.label("L_prod")
    e(f"s_cmp_lt_u32 s{sWAVE}, 6\ns_cbranch_scc1 L_d\ns_barrier")
    post(OFF_FULL, 99)
    e("s_endpgm")
    A.label("L_d")
    ST = Stamper("D"); Q = VmQ()
    if DPRIO: e(f"s_setprio {DPRIO}")
    if ONLY == 1: e(f"s_lshl_b32 s{sBC}, s{sCB}, 7\ns_mov_b32 s{sBR}, 0\ns_lshl_b32 s{sAR}, s{sRB}, 18")
    if ONLY == 3:
        b_src_wo()
    if ONLY == 4:
        b_src_w1(); e(f"s_lshl_b32 s{sAR}, s{sRB}, 18\ns_add_u32 s{sAR}, s{sAR}, {WS_H}")
    if ONLY == 5:
        b_src_w2()
        e(f"s_mov_b32 s{sMODE}, 0")
    G.p_setup_a(); G.p_setup_b()
    bp = 0
    if ONLY == 3:
        for st in range(G.NSB): G.issue_b(Q, st)
        Q.wait_all(); bp = G.NSB
    G.p_loop(Q, ST, bp, after_first=lambda: e("s_barrier"))
    ST.flush()

def main():
    A.begin_kernel(KN)
    if STAMPS: e(f"{STAMP_OP} {s(sST,2)}")
    e(f"""
s_cmp_ge_u32 s2, 256
s_cbranch_scc1 L_end
s_load_dwordx16 s[48:63], s[0:1], 0
s_load_dwordx2 s[64:65], s[0:1], 64
v_lshrrev_b32 v2, 6, v0
v_and_b32 v1, 63, v0
v_readfirstlane_b32 s{sWAVE}, v2
v_lshrrev_b32 v3, 4, v1
v_and_b32 v4, 15, v1
s_and_b32 s{sG}, s2, 7
s_mov_b32 s3, 0
s_lshr_b32 s{sR}, s2, 3
s_and_b32 s{sW}, s{sWAVE}, 3
s_lshr_b32 s{sWM}, s{sW}, 1
s_and_b32 s{sWN}, s{sW}, 1
""")
    roles_p1()
    sync_regs()
    e("s_waitcnt lgkmcnt(0)")
    if STAMPS: e(f"s_mov_b32 s78, s{sST}\ns_mov_b32 s0, 0\ns_mov_b32 s1, 0")
    srd(SX, pX, 4 * MB); srd(SB, pWQKV, 6 * MB); srd(SWS, pWS, WS_BYTES); srd(SD, pDBG, 256)
    if ONLY: only_phase()
    else:
        e(f"s_cmp_ge_u32 s{sWAVE}, 4\ns_cbranch_scc1 L_prod")
        consumer(Stamper("C"))
        A.label("L_prod")
        producer(Stamper("P"))
    A.label("L_end")
    e("s_endpgm")
    A.end_kernel(KN, 256, 102)
    A.lines = hazard.fix(A.lines)
    hdr = open("sequential_preLN__sliding_block__dense_activation_silu__prompt.s.ref").read().split("; Override launch")[0]
    hdr += f"; @launch grid=(256,1,1) block=(512,1,1) lds={LDS_BYTES}\n"
    for k, nm in STAMP_NAMES.items(): hdr += f"; stamps {k}: {' '.join(nm)}\n"
    sys.stdout.write(A.text(hdr))
main()
```

```python
import sys, struct
from asmlib import Asm
import hazard

ARGS = sys.argv[1:]
def opt(name, default):
    for a in ARGS:
        if a.startswith("--" + name + "="): return type(default)(a.split("=", 1)[1])
    return default
STAMPS = "--stamps" in ARGS
STAMP_OP = "s_memtime" if "--cyc" in ARGS else "s_memrealtime"
DPRIO = opt("dprio", 1)
FORCE = opt("force", -1)
PSLEEP = opt("psleep", 1)
GAT = opt("gat", 13); H0AT = opt("h0at", 5)
PUBN = opt("pubn", 16)
FPOS = opt("fpos", 8)
RP4 = opt("rp4", 0); RP5 = opt("rp5", 0)
CS2AT = opt("cs2at", 11)
CHKAT = opt("chkat", 2)
HLIM4 = opt("hlim4", 42)
DOTC = opt("dotc", 1.0)
NOST4 = opt("nost4", 0)
NSB3 = opt("nsb3", 11)
PF2 = opt("pf2", 4)
XAT = opt("xat", -1)
CANARY = opt("canary", 0)
BSEEN = opt("bseen", 0)
PFILL = opt("pfill", 0)
ASY5 = opt("asy5", 1)
WARM4 = opt("warm4", 0)
ASYNC = opt("async", 0)
NTK = opt("ntk", 4)
EARLY5 = opt("early5", 1)
E5LAG = opt("e5lag", 2)
LAG = opt("lag", 1)
H1FL = opt("h1fl", "")
B1FL = opt("b1fl", "")
W2NT = opt("w2nt", "")
W2AT = opt("w2at", 14)
KORD = opt("kord", 1)
CWARM = opt("cwarm", 1)
NCODE = opt("ncode", 11)
TAILD = opt("taild", 0)
TOUCH4 = opt("touch4", 0)
HB = [int(x) for x in opt("hb", "3,5,7").split(",")]
DOT = opt("dot", 1)
PFH = opt("pfh", 0)
PFD0 = opt("pfd0", 3)
BEARLY = opt("bearly", 0)
BLATE = opt("blate", 0)
B3LATE = opt("b3late", 0)
KVFL = opt("kvfl", "sc1")
FINE = opt("fine", 1)
G4AT = opt("g4at", 9)
NPF = opt("npf", 1)
PFW1 = opt("pfw1", 0)
PFBUB = opt("pfbub", 0)
DST = opt("dst", "")
DW = eval(opt("dw", "()")); DB = eval(opt("db", "(0,1,2,3,4,5,6,7,8,9,10,12,14)"))
VMC = opt("vmc", 5)
PRE0 = opt("pre0", 999)
DBGH = opt("dbgh", 0)
P1G = opt("p1g", 2)
HLIM = opt("hlim", 120)
HPRIO = opt("hprio", 0)
SENT = 0xFFFFFFFF
SKIP = opt("skip", "att_v,p_flag").split(",")
ROT1 = opt("rot1", 0); ROT3 = opt("rot3", 0); ROT4 = opt("rot4", 0)
BAR = opt("bar", 0)
NS1 = opt("ns1", 3)
ALIAS = opt("alias", 1)
TESTH1 = opt("testh1", 0)
TFL = opt("tfl", "nt")
TOUCH = opt("touch", 0)
LFL = opt("lfl", "").replace("_", " ")
PFL = opt("pfl", "sc1").replace("_", " ")
OFL = opt("ofl", "").replace("_", " ")
TS = opt("ts", 0)
SPFON = opt("spf", 1)
PFB = opt("pfb", 6)
MAP1 = opt("map1", 162)
WAKE = opt("wake", 0)
LCAP = opt("lcap", 10)
SPREAD = opt("spread", 0.8)
DPOS = opt("dpos", 0.25)
NOSY = opt("nosy", "")
EARLY = opt("early", 1)
DSLEEP = opt("dsleep", 1)
ONLY = opt("only", 0)
NOLOAD = opt("noload", "")
NOMFMA = opt("nomfma", 0)
KN = "sequential_preLN__sliding_block__dense_activation_silu__prompt_kernel"
SPLIT = 4

MB = 1 << 20; KB = 1024
WS_AR, WS_H, WS_AR2 = 0, 20 * MB, 24 * MB
AR_K, AR_V, AR_O = 0, 16 * KB, 32 * KB
WS_STAT = 40 * MB
WS_CS1 = 41 * MB
WS_CS2 = 41 * MB + 256 * KB
WS_RA = 41 * MB + 768 * KB
WS_RB = WS_RA + 8 * KB
WS_F1 = 41 * MB + 896 * KB
WS_F2 = WS_F1 + 4 * KB; WS_F3 = WS_F2 + 8 * KB; WS_F4 = WS_F3 + 4 * KB; WS_F5 = WS_F4 + 4 * KB
WS_F6 = WS_F5 + 8 * KB; WS_F7 = WS_F6 + 2 * KB; WS_F8 = WS_F7 + 1 * KB
WS_DBG = 48 * MB
WS_PART = 52 * MB
WS_BYTES = 256 * MB
LOG2E = 1.4426950408889634
LDS_BYTES = 160 * KB
MISC = LDS_BYTES - 6 * KB
L_RA, L_CS = MISC, MISC + 1024
L_DONE, L_FULL, L_HD, L_EP = MISC + 2048, MISC + 3072, MISC + 4096, MISC + 5120
L_MODE = L_HD + 512
vDW, vFR, vCNT, vFV = 252, 253, 254, 255
SPIN_MAX = 1 << 16
LSPIN_MAX = 1 << 22

def f32(x): return "0x%08x" % struct.unpack("<I", struct.pack("<f", x))[0]
def v(a, n=1): return f"v{a}" if n == 1 else f"v[{a}:{a+n-1}]"
def s(a, n=1): return f"s{a}" if n == 1 else f"s[{a}:{a+n-1}]"

SX, SWS, SB, SD = 4, 8, 12, 16
sWAVE, sW, sG, sR, sRB, sCB, sBC, sBH, sWM, sWN = 20, 21, 22, 23, 24, 25, 26, 27, 28, 29
pX, pWQKV, pWO, pW1, pW2, pOUT, pDBG, pWS = 48, 50, 52, 56, 58, 60, 62, 64
sMODE = 54; sT0 = 55
sAR, sBR, sM0A, sM0B, sM0H, sKS, sCNT, sNEED, sC0 = 66, 67, 68, 69, 70, 71, 72, 73, 74
sST = 76
sOWN, sROT, sAK, sBK = 60 + 40, 60 + 41, 98, 99


A = Asm()
def e(t): A.e(t)
STAMP_NAMES = {}
class Stamper:
    def __init__(self, role): self.role = role; self.names = ["start"]
    def __call__(self, name):
        if not STAMPS: return
        if name in SKIP: return
        n = len(self.names)
        assert n < 19, self.names
        e(f"{STAMP_OP} {s(sST,2)}\ns_waitcnt lgkmcnt(0)\ns_mov_b32 s{78+n}, s{sST}")
        self.names.append(name)
    def fork(self, role):
        t = Stamper(role); t.names = list(self.names); return t
    def flush(self):
        if not STAMPS: return
        self("end")
        n = len(self.names); self.names.append("nslow")
        e(f"s_mul_i32 s0, s0, {1000 if STAMP_OP == 's_memtime' else 100}\ns_add_u32 s{78+n}, s78, s0")
        STAMP_NAMES[self.role] = self.names
        e("s_waitcnt vmcnt(0)")
        for i in range(24): e(f"v_mov_b32 v{8+i}, s{78+min(i,len(self.names)-1)}")
        e(f"s_lshl_b32 s30, s2, 10\ns_lshl_b32 s31, s{sWAVE}, 7\ns_add_u32 s30, s30, s31\ns_add_u32 s30, s30, {WS_DBG}")
        e("v_mov_b32 v2, 0\ns_mov_b64 exec, 1")
        for i in range(6): e(f"buffer_store_dwordx4 {v(8+4*i,4)}, v2, {s(SWS,4)}, s30 offen offset:{16*i}")
        e("s_mov_b64 exec, -1")

class VmQ:
    def __init__(self): self.q = []
    def add(self, tag, n=1): self.q += [tag] * n
    def has(self, tag): return tag in self.q
    def after(self, tag):
        if tag not in self.q: return 99
        return len(self.q) - 1 - max(i for i, t in enumerate(self.q) if t == tag)
    def wait(self, tag):
        if tag not in self.q: return
        n = self.after(tag)
        assert n <= 63, n
        e(f"s_waitcnt vmcnt({n})")
        self.q = self.q[len(self.q) - n:]
    def wait_all(self):
        e("s_waitcnt vmcnt(0)"); self.q = []

def set_exec(mask):
    if mask == (1 << 64) - 1: e("s_mov_b64 exec, -1")
    elif mask <= 64: e(f"s_mov_b64 exec, {mask}")
    else: e(f"s_mov_b32 exec_lo, {hex(mask & 0xffffffff)}\ns_mov_b32 exec_hi, {hex(mask >> 32)}")
def srd(d, base, nbytes):
    e(f"s_mov_b32 s{d}, s{base}\ns_and_b32 s{d+1}, s{base+1}, 0xffff\ns_mov_b32 s{d+2}, {nbytes}\ns_mov_b32 s{d+3}, 0x20000")
def xg_multi(op, regs, tmps):
    for sw in ("v_permlane16_swap_b32", "v_permlane32_swap_b32"):
        for r, t in zip(regs, tmps): e(f"v_mov_b32 v{t}, v{r}")
        for r, t in zip(regs, tmps): e(f"{sw} v{r}, v{t}")
        for r, t in zip(regs, tmps): e(f"{op} v{r}, v{r}, v{t}")
def round_bf16(r): e(f"v_cvt_pk_bf16_f32 v{r}, v{r}, v{r}\nv_and_b32 v{r}, 0xffff0000, v{r}")
def ln_finish(vsum, vm2, n):
    e(f"v_mul_f32 v{vsum}, {f32(1.0/n)}, v{vsum}"); round_bf16(vsum)
    e(f"v_mul_f32 v{vm2}, {f32(1.0/n)}, v{vm2}"); round_bf16(vm2)
    e(f"v_add_f32 v{vm2}, {f32(1e-5)}, v{vm2}"); round_bf16(vm2)
    e(f"v_sqrt_f32 v{vm2}, v{vm2}"); round_bf16(vm2)
    e(f"v_rcp_f32 v{vm2}, v{vm2}")
def pack(dst, c0, c1):
    e(f"v_cvt_pk_bf16_f32 v{dst}, v{c0}, v{c0+1}\nv_cvt_pk_bf16_f32 v{dst+1}, v{c0+2}, v{c0+3}")
    e(f"v_cvt_pk_bf16_f32 v{dst+2}, v{c1}, v{c1+1}\nv_cvt_pk_bf16_f32 v{dst+3}, v{c1+2}, v{c1+3}")
def unpack(lo, src): e(f"v_lshlrev_b32 v{lo}, 16, v{src}\nv_and_b32 v{lo+1}, 0xffff0000, v{src}")

def set_flag(soff, st="sc1", val=1, t=5):
    e(f"v_mov_b32 v{t}, 0\nv_mov_b32 v{t+1}, {val}\ns_mov_b64 exec, 1\nbuffer_store_dword v{t+1}, v{t}, {s(SWS,4)}, s{soff} offen {st}\ns_mov_b64 exec, -1")

def poll(soff, nlanes, voff=None, x2=False, srd_=SWS, mask=1, t=8, sleep=None):
    L = A.newlabel("poll"); X = A.newlabel("pollx")
    if voff is None:
        e(f"v_lshlrev_b32 v{t+2}, {3 if x2 else 2}, v1"); voff = t + 2
    if nlanes < 64: set_exec((1 << nlanes) - 1)
    e(f"s_mov_b32 s{sCNT}, 0")
    A.label(L)
    if x2: e(f"buffer_load_dwordx2 {v(t,2)}, v{voff}, {s(srd_,4)}, {soff} offen sc1")
    else: e(f"buffer_load_dword v{t}, v{voff}, {s(srd_,4)}, {soff} offen sc1")
    e(f"s_add_u32 s{sCNT}, s{sCNT}, 1\ns_cmp_gt_u32 s{sCNT}, {SPIN_MAX}\ns_waitcnt vmcnt(0)\ns_cbranch_scc1 {X}")
    if x2: e(f"v_and_b32 v{t}, v{t}, v{t+1}")
    e(f"v_and_b32 v{t}, {mask}, v{t}\nv_cmp_ne_u32 vcc, {mask}, v{t}")
    e(f"s_cbranch_vccz {X}\ns_sleep {PSLEEP if sleep is None else sleep}\ns_branch {L}")
    A.label(X)
    e("s_mov_b64 exec, -1")

sRDY = 40
def flags_refresh(Q, soff, voff, x2, shift=None):
    if flags_refresh.pending and not Q.has("look"):
        if x2: e("v_and_b32 v14, v14, v15")
        if shift: e(f"v_lshrrev_b32 v14, v{shift}, v14")
        e(f"v_and_b32 v14, 1, v14\nv_cmp_ne_u32 vcc, 1, v14\ns_and_b64 {s(sRDY,2)}, {s(sRDY,2)}, vcc")
        flags_refresh.pending = False
    if not flags_refresh.pending:
        e(f"s_cmp_eq_u64 {s(sRDY,2)}, 0\ns_cselect_b32 s30, {WS_BYTES}, s{soff}")
        e(f"buffer_load_dwordx2 v[14:15], v{voff}, {s(SWS,4)}, s30 offen sc1" if x2 else f"buffer_load_dword v14, v{voff}, {s(SWS,4)}, s30 offen sc1")
        Q.add("look"); flags_refresh.pending = True
flags_refresh.pending = False
def need_flags(bits, soff, voff, x2, shift=None):
    L, X = A.newlabel("nf"), A.newlabel("nfx")
    lo, hi = bits & 0xffffffff, bits >> 32
    def test():
        if lo and hi: e(f"s_and_b32 s30, s{sRDY}, {hex(lo)}\ns_and_b32 s31, s{sRDY+1}, {hex(hi)}\ns_or_b32 s30, s30, s31")
        elif lo: e(f"s_and_b32 s30, s{sRDY}, {hex(lo)}")
        else: e(f"s_and_b32 s30, s{sRDY+1}, {hex(hi)}")
    test()
    e(f"s_cbranch_scc0 {X}")
    A.label(L)
    if x2: e(f"buffer_load_dwordx2 v[8:9], v{voff}, {s(SWS,4)}, s{soff} offen sc1\ns_waitcnt vmcnt(0)\nv_and_b32 v8, v8, v9")
    else: e(f"buffer_load_dword v8, v{voff}, {s(SWS,4)}, s{soff} offen sc1\ns_waitcnt vmcnt(0)")
    if shift: e(f"v_lshrrev_b32 v8, v{shift}, v8")
    e(f"v_and_b32 v8, 1, v8\nv_cmp_ne_u32 {s(sRDY,2)}, 1, v8\ns_add_u32 s{sCNT}, s{sCNT}, 1\ns_cmp_gt_u32 s{sCNT}, {SPIN_MAX}\ns_cbranch_scc1 {X}")
    test()
    e(f"s_cbranch_scc1 {L}")
    A.label(X)

def spoll(srd_, soff, n16, mask, base=32):
    X = A.newlabel("spx")
    e("s_mov_b32 s31, -1")
    for k in range(2 * n16):
        e(f"s_add_u32 s30, {soff}, {32*k}\ns_buffer_load_dwordx8 {s(base,8)}, {s(srd_,4)}, s30\ns_waitcnt lgkmcnt(0)")
        for i in range(1, 4): e(f"s_and_b64 {s(base,2)}, {s(base,2)}, {s(base+2*i,2)}")
        e(f"s_and_b32 s31, s31, s{base}\ns_and_b32 s31, s31, s{base+1}")
    e(f"s_and_b32 s31, s31, {mask}\ns_cmp_eq_u32 s31, {mask}\ns_cbranch_scc1 {X}")
    poll(soff, 16 * n16, srd_=srd_, mask=mask, t=8, sleep=16)
    A.label(X)

def lds_wait(vaddr, need, vt, sleep=1, off=0):
    L = A.newlabel("lw"); X = A.newlabel("lwx")
    A.label(L)
    e(f"ds_read_b32 v{vt}, v{vaddr} offset:{off}\ns_waitcnt lgkmcnt(0)\nv_cmp_gt_u32 vcc, {need}, v{vt}\ns_cbranch_vccz {X}")
    if sleep: e(f"s_sleep {sleep}")
    e(f"s_add_u32 s3, s3, 1\ns_cmp_lt_u32 s3, {LSPIN_MAX}\ns_cbranch_scc1 {L}")
    A.label(X)
OFF_DONE, OFF_FULL, OFF_HD, OFF_EP = 0, 1024, 2048, 3072
def sync_regs():
    e(f"s_lshl_b32 s30, s{sW}, 8\ns_add_u32 s30, s30, {L_DONE}\nv_lshl_add_u32 v{vDW}, v1, 2, s30")
    e(f"v_and_b32 v{vFR}, 3, v1\nv_mul_u32_u24 v{vFR}, 260, v{vFR}\nv_add_u32 v{vFR}, {L_DONE}, v{vFR}")
def post(off, val, t=vFV):
    e(f"v_mov_b32 v{t}, {val}\nds_write_b32 v{vDW}, v{t} offset:{off}")
def wait_rows(off, need, sleep=1): lds_wait(vFR, need, vFV, sleep=sleep, off=off)

class Gemm:
    PA, PB, PH = 232, 236, 240
    def __init__(self, name, base, TM, TN, NK, NS, KBsrc, ldb, kperm, araw=False, NSB=None, bslot=None, RP=0, alay="rt"):
        self.alay = "raw" if araw else alay
        self.name, self.base, self.TM, self.TN, self.NK, self.NS = name, base, TM, TN, NK, NS
        self.KB, self.ldb, self.kperm, self.araw, self.RP = KBsrc, ldb, kperm, araw, RP
        self.NSB = NSB or NS
        self.MT, self.NT = TM // 32, TN // 32
        self.nfull, self.half = TN // 64, (TN % 64) != 0
        self.a_stage = TM * 128
        b0 = NS * self.a_stage
        self.b0 = b0
        self.b_base = [b0 + j * self.NSB * 8192 for j in range(self.nfull)]
        self.h_base = b0 + self.nfull * self.NSB * 8192
        self.bslot = bslot or (lambda step: step % self.NSB)
        assert self.h_base + (self.NSB * 4096 if self.half else 0) <= MISC
        MT, NT = self.MT, self.NT
        self.FA = [8, 8 + 4 * MT + 4 * NT]
        self.FB = [self.FA[0] + 4 * MT, self.FA[1] + 4 * MT]
        nxt = self.FA[1] + 4 * MT + 4 * NT
        self.VA = nxt; nxt += 8 if self.alay == "bm" else 2
        self.VB = nxt; nxt += NT
        self.bhi = self.NSB * 8192 > 65536
        self.VB2 = nxt
        if self.bhi: nxt += NT
        nxt = (nxt + 3) // 4 * 4
        self.ACC = nxt; nxt += MT * NT * 4
        self.VX = nxt
        assert nxt <= vDW
        self.RTW = TM // 32
    def acc(self, mt, nt): return self.ACC + (nt * self.MT + mt) * 4
    def swapped(self, nt): return True
    def blk_delta(self, j): return 128 * j

    def c_setup(self):
        MT = self.MT
        if self.araw:
            e(f"""
s_lshl_b32 s30, s{sWM}, 13
v_lshl_add_u32 v5, v4, 7, s30
v_lshrrev_b32 v6, 1, v4
v_xor_b32 v6, v6, v3
v_lshl_add_u32 v{self.VA}, v6, 4, v5
v_xor_b32 v6, 4, v6
v_lshl_add_u32 v{self.VA+1}, v6, 4, v5
""")
        elif self.alay == "bm":
            for p in range(4):
                e(f"s_add_u32 s30, s{sKS}, {p}\ns_and_b32 s30, s30, 3\ns_lshl_b32 s30, s30, 11\ns_lshl_b32 s31, s{sWM}, 14\ns_add_u32 s30, s30, s31")
                e(f"v_lshl_add_u32 v{self.VA+p}, v1, 4, s30\nv_add_u32 v{self.VA+4+p}, 0x10000, v{self.VA+p}")
        else:
            e(f"s_mul_i32 s30, s{sWM}, {MT*2048}\nv_lshl_add_u32 v{self.VA}, v1, 4, s30\nv_add_u32 v{self.VA+1}, 0x10000, v{self.VA}")
        e("v_bfe_u32 v5, v1, 2, 2\nv_and_b32 v6, 3, v1")
        if self.kperm: e("v_lshl_add_u32 v7, v3, 2, v5\nv_bfe_u32 v2, v7, 1, 2")
        else: e("v_lshl_add_u32 v7, v3, 3, v5\nv_lshrrev_b32 v2, 1, v5\nv_and_b32 v8, 1, v3\nv_lshl_or_b32 v2, v8, 1, v2")
        e("v_mov_b32 v9, v7\nv_lshlrev_b32 v7, 7, v7\nv_lshl_add_u32 v7, v6, 3, v7")
        for t, (kind, blk, seg) in enumerate(self.tiles()):
            vb = self.VB + t
            if kind == "F":
                e(f"s_mul_i32 s30, s{sWN}, {seg[1]}\ns_add_u32 s30, s30, {seg[0]}")
                e(f"v_xor_b32 v8, s30, v2\nv_lshl_add_u32 v{vb}, v8, 5, v7")
                e(f"s_mul_i32 s30, s{sWN}, {blk[1]*self.NSB*8192}\ns_add_u32 s30, s30, {self.b_base[0] + blk[0]*self.NSB*8192}")
                e(f"v_add_u32 v{vb}, s30, v{vb}")
            else:
                e(f"v_bfe_u32 v8, v9, 2, 1\nv_xor_b32 v8, s{sWN}, v8\nv_lshlrev_b32 v8, 5, v8")
                e(f"v_lshl_add_u32 v8, v9, 6, v8\nv_lshl_add_u32 v8, v6, 3, v8\nv_add_u32 v{vb}, {self.h_base}, v8")
            if self.bhi: e(f"v_add_u32 v{self.VB2+t}, 0x10000, v{vb}")
        if not self.czero():
            for r in range(self.ACC, self.ACC + self.MT * self.NT * 4, 2): e(f"v_mov_b64 {v(r,2)}, 0")
    def reads(self, step, sub, fs):
        out = []
        kinds = [t[0] for t in self.tiles()]
        sa, sb = step % self.NS, self.bslot(step)
        for t in range(self.NT):
            for hi in range(2):
                rows = 32 * sub + (16 if self.kperm else 4) * hi
                off = sb * 8192 + rows * 128 if kinds[t] == "F" else sb * 4096 + rows * 64
                base = self.VB + t
                if off > 0xffff: base, off = self.VB2 + t, off - 0x10000
                out.append(f"ds_read_b64_tr_b16 {v(self.FB[fs]+4*t+2*hi,2)}, v{base} offset:{off}")
            if t == 0:
                for mt in range(self.MT):
                    if self.araw: base, off = self.VA + sub, sa * self.a_stage + mt * 2048
                    elif self.alay == "bm":
                        off = sa * self.a_stage + sub * 8192 + (mt & 1) * 1024
                        base = self.VA + (mt >> 1) + 4 * (off >> 16); off &= 0xffff
                    else:
                        off = sa * self.a_stage + mt * 2048 + sub * 1024
                        base = self.VA + (off >> 16); off &= 0xffff
                    out.append(f"ds_read_b128 {v(self.FA[fs]+4*mt,4)}, v{base} offset:{off}")
        return out
    def czero(self): return self.NSB != self.NS or (self.NK - 1) % self.NS != 0
    def mfmas(self, fs, zero=False):
        out = []
        for t in range(self.NT):
            for mt in (range(self.MT) if t % 2 == 0 else reversed(range(self.MT))):
                a, w, c = v(self.FA[fs] + 4 * mt, 4), v(self.FB[fs] + 4 * t, 4), v(self.acc(mt, t), 4)
                ci = "0" if zero else c
                out.append(f"v_mfma_f32_16x16x32_bf16 {c}, {w}, {a}, {ci}" if self.swapped(t) else
                           f"v_mfma_f32_16x16x32_bf16 {c}, {a}, {w}, {ci}")
        if NOMFMA: out = ["s_nop 0"] * len(out)
        return out
    def c_loop(self, ST, pre_last=None, last_fill=()):
        NS, NK, n = self.NS, self.NK, self.name
        def inter(m, r):
            for i in range(max(len(m), len(r))):
                if i < len(m): e(m[i])
                if i < len(r): e(r[i])
        def step(k, last=False):
            e("s_waitcnt lgkmcnt(0)")
            inter(self.mfmas(0, k == 0 and self.czero()), self.reads(k, 1, 1))
            e("s_waitcnt lgkmcnt(0)\ns_barrier")
            inter(self.mfmas(1), list(last_fill) if last else self.reads(k + 1, 0, 0))
        e("s_barrier")
        ST(n + "_go")
        for r in self.reads(0, 0, 0): e(r)
        body = NK - 1
        if self.NSB != NS:
            for k in range(body): step(k)
        else:
            k = 0
            for i in range(body % NS):
                step(k); k += 1
            e(f"s_mov_b32 s{sCNT}, {body // NS}")
            A.label(f"{n}_cloop")
            for i in range(NS):
                step(k); k += 1
            e(f"s_sub_u32 s{sCNT}, s{sCNT}, 1\ns_cmp_lg_u32 s{sCNT}, 0\ns_cbranch_scc1 {n}_cloop")
        if pre_last: pre_last()
        step(NK - 1, last=True)
        ST(n + "_end")

    def p_setup_b(self, w=sW):
        ldb, PB = self.ldb, self.PB
        e(f"""
s_lshl_b32 s{sM0B}, s{w}, 12
s_lshl_b32 s{sM0H}, s{w}, 11
v_lshrrev_b32 v246, 3, v1
s_lshl_b32 s30, s{w}, 5
v_add_u32 v246, s30, v246
v_mul_u32_u24 v246, {ldb}, v246
v_and_b32 v247, 1, v1
v_lshl_add_u32 v246, v247, 4, v246
v_add_u32 v246, s{sBC}, v246
v_bfe_u32 v247, v1, 1, 2
""")
        if self.kperm:
            e(f"v_xor_b32 v245, v247, v3\nv_lshl_add_u32 v{PB}, v245, 5, v246\nv_add_u32 v{PB+1}, {8*ldb-1024}, v{PB}")
        else:
            e(f"v_and_b32 v245, 1, v3\nv_xor_b32 v245, v247, v245\nv_lshl_add_u32 v{PB}, v245, 5, v246")
            e(f"v_xor_b32 v245, 2, v245\nv_lshl_add_u32 v{PB+1}, v245, 5, v246\nv_add_u32 v{PB+1}, {8*ldb-1024}, v{PB+1}")
        e(f"v_add_u32 v{PB+2}, {16*ldb-2048}, v{PB}\nv_add_u32 v{PB+3}, {16*ldb-2048}, v{PB+1}")
        if self.half:
            e(f"""
v_lshrrev_b32 v246, 2, v1
v_add_u32 v246, s30, v246
v_mul_u32_u24 v246, {ldb}, v246
v_and_b32 v247, 1, v1
v_lshl_add_u32 v246, v247, 4, v246
v_add_u32 v246, s{sBH}, v246
v_bfe_u32 v247, v1, 1, 1
v_and_b32 v245, 1, v3
v_xor_b32 v245, v247, v245
v_lshl_add_u32 v{self.PH}, v245, 5, v246
v_add_u32 v{self.PH+1}, {16*ldb-1024}, v{self.PH}
""")
    def p_setup_a(self):
        PA = self.PA
        if self.araw:
            e(f"""
s_lshl_b32 s{sM0A}, s{sW}, 13
v_lshrrev_b32 v246, 3, v1
s_lshl_b32 s30, s{sW}, 6
v_add_u32 v246, s30, v246
v_lshlrev_b32 v246, 11, v246
v_and_b32 v247, 7, v1
v_xor_b32 v247, v247, v3
v_lshl_add_u32 v{PA}, v247, 4, v246
v_xor_b32 v247, 4, v247
v_lshl_add_u32 v{PA+1}, v247, 4, v246
v_add_u32 v{PA+1}, {8*2048-1024}, v{PA+1}
v_add_u32 v{PA+2}, {16*2048-2048}, v{PA}
v_add_u32 v{PA+3}, {16*2048-2048}, v{PA+1}
""")
        else:
            e(f"s_mul_i32 s{sM0A}, s{sW}, {self.RTW*2048}\ns_mul_i32 s30, s{sW}, {self.RTW*self.KB*1024}\nv_lshl_add_u32 v{PA}, v1, 4, s30")
            e(f"v_add_u32 v{PA+1}, {self.KB*1024-2048}, v{PA}")
    astride = 2048
    rot = True
    arot = True
    korder = list(range(16))
    def kbase(self, dst, base, step, stride):
        e(f"s_add_u32 s{dst}, s{base}, {self.korder[step] * stride}")
    def a_src(self, i, step): e(f"s_add_u32 s31, s{sAK}, {2*i*self.KB*1024}")
    def groups_a(self, step):
        st = step % self.NS
        out = []
        for gi in range(self.RTW // 2):
            def fn(gi=gi):
                if gi == 0 and self.arot: self.kbase(sAK, sAR, step, 128 if self.araw else self.astride)
                e(f"s_add_u32 m0, s{sM0A}, {st*self.a_stage + gi*4096}")
                if self.araw:
                    e(f"s_add_u32 s31, s{sAK}, {gi*32*2048}")
                    for i in range(4): e(f"buffer_load_dwordx4 v{self.PA+i}, {s(SX,4)}, s31 offen offset:{i*1024} lds")
                else:
                    self.a_src(gi, step)
                    for i in range(4): e(f"buffer_load_dwordx4 v{self.PA+(i>>1)}, {s(SWS,4)}, s31 offen offset:{i*1024} sc1 lds")
            out.append((step, 4, fn))
        return out
    def b_parts(self, step):
        sb = self.bslot(step); ko = 0 if self.rot else step * 64 * self.ldb
        out = [(sM0B, self.b_base[j] + sb * 8192, ko + self.blk_delta(j), self.PB, 4) for j in range(self.nfull)]
        if self.half: out.append((sM0H, self.h_base + sb * 4096, ko, self.PH, 2))
        return out
    def groups_b(self, step):
        out = []
        for idx, (m0s, lc, sc, vb, n) in enumerate(self.b_parts(step)):
            def fn(m0s=m0s, lc=lc, sc=sc, vb=vb, n=n, idx=idx):
                if idx == 0 and self.rot: self.kbase(sBK, sBR, step, 64 * self.ldb)
                e(f"s_add_u32 m0, s{m0s}, {lc}\ns_add_u32 s31, s{sBK if self.rot else sBR}, {sc}")
                for i in range(n): e(f"buffer_load_dwordx4 v{vb+i}, {s(SB,4)}, s31 offen offset:{i*1024} {'nt' if self.name == 'qkv' and step < 2 * NTK else ''} lds")
            out.append((step, n, fn))
        return out
    def issue_b(self, Q, step):
        for tag, n, fn in self.groups_b(step):
            fn(); Q.add(tag, n)
    def p_loop(self, Q, ST, b_pre, npf=0, every=1, gate=None, tail=None, look=None):
        NS, NK, NSB = self.NS, self.NK, self.NSB
        def iss(g):
            for tag, n, fn in g:
                fn(); Q.add(tag, n)
        ga = lambda k: ([(k, 0, lambda: gate(k))] if gate else []) + self.groups_a(k)
        def gr(k):
            kb = k - NS + NSB
            return (self.groups_b(kb) if b_pre <= kb < NK else []) + ga(k)
        first = lambda k: (self.groups_b(k) if k >= b_pre else []) + ga(k)
        if gate: e(f"s_mov_b64 {s(sRDY,2)}, -1\ns_mov_b32 s{sCNT}, 0")
        flags_refresh.pending = False
        iss(first(0))
        if gate: ST(self.name + "_seen")
        if BSEEN and self.name == "w1": post(OFF_FULL, 1)
        g1 = first(1)
        P1G_ = (99 if self.name == 'w2' else 0) if gate else P1G
        iss(g1[:P1G_])
        for i in range(NK):
            Q.wait(i)
            if self.name == DST and i in DW: ST(f"w{i}")
            e("s_barrier")
            if self.name == DST and i in DB: ST(f"b{i}")
            if look and (ASYNC or self.name == 'w2') and i in look[0]: flags_refresh(Q, *look[1])
            if i == 0:
                iss(g1[P1G_:])
                for k in range(2, NS): iss(first(k))
            elif i - 1 + NS < NK: iss(gr(i - 1 + NS))
            if tail and i - 1 + NS == NK - 1 + TAILD: tail()
            if (self.name == "qkv" and i == 0) or (CWARM > 1 and i == NK - 2): code_warm()
            if npf and (PFD0 if self.name == 'qkv' else 1) <= i < NK - 2 and i % every == 0: pf_step(npf + (1 if self.name == 'w1' and i % 3 != 0 else 0))
        e("s_barrier")
        ST(self.name + "_dend")

class QKV(Gemm):
    def __init__(self): super().__init__("qkv", 0, 128, 192, 16, NS1, 32, 6144, False, araw=True)
    def tiles(self): return [("F", (t >> 1, 0), (t & 1, 2)) for t in range(6)]
    def swapped(self, nt): return nt < 4
    def blk_delta(self, j): return 2048 * j
class WO(Gemm):
    def __init__(self): super().__init__("wo", 16, 128, 64, 16, 4, 32, 2048, True, NSB=NSB3, bslot=lambda k: (k + 5) % NSB3)
    def tiles(self): return [("F", (0, 0), (t, 2)) for t in range(2)]
    def p_setup_a(self):
        e(f"s_lshl_b32 s{sM0A}, s{sW}, 13\nv_lshl_add_u32 v{self.PA}, v1, 4, s{sM0A}\nv_mov_b32 v{self.PA+1}, v{self.PA}")
        e(f"s_lshl_b32 s{sAR}, s{sRB}, 16\ns_add_u32 s{sAR}, s{sAR}, {WS_AR + AR_O}")
    astride = MB
    korder = [k for k in range(16) if k % 8 != 3] + [3, 11] if KORD else list(range(16))
    def a_src(self, i, step): e(f"s_add_u32 s31, s{sAK}, {i*4096}")
class W1(Gemm):
    def __init__(self): super().__init__("w1", 32, 128, 224, 16, 3, 32, 7168, True)
    korder = list(range(0, 16, 2)) + list(range(1, 16, 2)) if KORD else list(range(16))
    def tiles(self): return [("F", (0, 2), (t, 0)) for t in range(4)] + [("F", (1, 0), (t, 2)) for t in range(2)] + [("H", None, None)]
class W2(Gemm):
    def __init__(self): super().__init__("w2", 48, 256, 128, 14, 3, 112, 2048, True, alay="bm")
    arot = False
    def tiles(self): return [("F", (0, 1), (t, 0)) for t in range(4)]
    def p_setup_a(self):
        e(f"s_lshl_b32 s{sM0A}, s{sW}, 14\nv_lshlrev_b32 v{self.PA}, 4, v1\nv_mov_b32 v{self.PA+1}, v{self.PA}")
        h1_base(sAR)
        e(f"s_lshl_b32 s30, s{sG}, 5\ns_bfe_u32 s31, s{sRB}, 0x20001\ns_add_u32 s30, s30, s31\ns_lshl_b32 s31, s{sW}, 4\ns_add_u32 s30, s30, s31\ns_lshl_b32 s30, s30, 16\ns_add_u32 s{sAR}, s{sAR}, s30")
    def blocks(self):
        if not EARLY5: return [(q // 7, q % 7, 1) for q in range(28)]
        early = [(c, (c & 1) + k, 1) for c in range(4) for k in (0, 4, 1, 5)]
        late = [(c, kb, 2) for c in range(4) for kb in range(7) if (c, kb, 1) not in early]
        return early + late
    def a_src(self, i, step):
        c, kb, _ = self.blocks()[2 * step + (i >> 1)]
        e(f"s_add_u32 s31, s{sAR}, {c*256*KB + kb*8192 + (i&1)*4096}")
    def kbase(self, dst, base, step, stride):
        o = [(c * 7 + kb) * 32 * self.ldb for c, kb, _ in self.blocks()[2 * step:2 * step + 2]]
        e(f"s_mul_i32 s{dst}, s{sWN}, {o[1] - o[0] - 32*self.ldb}\ns_add_u32 s{dst}, s{dst}, {o[0]}\ns_add_u32 s{dst}, s{dst}, s{base}")
G1, G3, G4, G5 = QKV(), WO(), W1(), W2()
_pf = opt("pfs", "X,Pv,X").split(",")
PFS = [(_pf[0][0], _pf[0][1:], pWO, 2 * MB, True, 249), (_pf[1][0], _pf[1][1:], pW1, 1024 * 7168, False, 248), (_pf[2][0], _pf[2][1:], pW2, 3584 * 2048, False, 250)]
L_K, L_V, L_Q = 0, 48 * KB, 96 * KB

def own_arena(dst, add=0):
    e(f"s_add_u32 s{dst}, s{sOWN}, {WS_AR + add}")
def h1_base(dst):
    e(f"s_cmp_lg_u32 s{sMODE}, 0\ns_cselect_b32 s{dst}, {WS_AR2}, {WS_AR if ALIAS else WS_AR2}")
def rowmajor_voff(dst, t):
    e(f"v_and_b32 v{t}, 1, v3\nv_lshlrev_b32 v{t}, 1, v{t}\nv_lshrrev_b32 v{dst}, 1, v3\nv_or_b32 v{t}, v{t}, v{dst}")
    e(f"v_lshlrev_b32 v{t}, 4, v{t}\nv_lshl_add_u32 v{dst}, v4, 11, v{t}")
def roles_84(rb=sRB, cb=sCB):
    e(f"s_and_b32 s{rb}, s{sG}, 1\ns_lshl_b32 s{rb}, s{rb}, 3\ns_and_b32 s30, s{sR}, 7\ns_add_u32 s{rb}, s{rb}, s30")
    e(f"s_lshr_b32 s{cb}, s{sG}, 1\ns_lshl_b32 s{cb}, s{cb}, 2\ns_lshr_b32 s30, s{sR}, 3\ns_add_u32 s{cb}, s{cb}, s30")
def roles_p1(rb=sRB, cb=sCB):
    if MAP1 == 84: return roles_84(rb, cb)
    e(f"s_lshr_b32 s{rb}, s{sR}, 1\ns_and_b32 s30, s{sR}, 1\ns_lshl_b32 s{cb}, s{sG}, 1\ns_add_u32 s{cb}, s{cb}, s30")
def roles_48(rb=sRB, cb=sCB):
    if not KORD:
        e(f"s_and_b32 s{rb}, s{sG}, 3\ns_lshl_b32 s{rb}, s{rb}, 2\ns_and_b32 s30, s{sR}, 3\ns_add_u32 s{rb}, s{rb}, s30")
        e(f"s_lshr_b32 s{cb}, s{sG}, 2\ns_lshl_b32 s{cb}, s{cb}, 3\ns_lshr_b32 s30, s{sR}, 2\ns_add_u32 s{cb}, s{cb}, s30")
        return
    e(f"s_and_b32 s{rb}, s{sG}, 3\ns_lshl_b32 s{rb}, s{rb}, 2\ns_bfe_u32 s30, s{sR}, 0x20001\ns_add_u32 s{rb}, s{rb}, s30")
    e(f"s_lshr_b32 s{cb}, s{sG}, 2\ns_lshl_b32 s{cb}, s{cb}, 2\ns_lshr_b32 s30, s{sR}, 3\ns_add_u32 s{cb}, s{cb}, s30\ns_lshl_b32 s{cb}, s{cb}, 1\ns_and_b32 s30, s{sR}, 1\ns_add_u32 s{cb}, s{cb}, s30")
def roles_w2(rb=sRB, cb=sCB, ks=sKS):
    e(f"s_and_b32 s{rb}, s{sG}, 1\ns_lshl_b32 s{rb}, s{rb}, 2\ns_and_b32 s30, s{sR}, 3\ns_add_u32 s{rb}, s{rb}, s30\ns_lshl_b32 s{rb}, s{rb}, 1")
    e(f"s_lshr_b32 s{cb}, s{sR}, 2\ns_lshr_b32 s{ks}, s{sG}, 1")
def b_src_wo(cb=sCB):
    srd(SB, pWO, 2 * MB); e(f"s_lshl_b32 s{sBC}, s{cb}, 7\ns_mov_b32 s{sBR}, 0\ns_lshl_b32 s{sROT}, s{cb}, 1\ns_and_b32 s{sROT}, s{sROT}, {15 if ROT3 else 0}")
def b_src_w1():
    srd(SB, pW1, 1024 * 7168)
    e(f"""
s_mul_i32 s{sBH}, s{sCB}, 448
s_and_b32 s30, s{sCB}, 1
s_lshl_b32 s{sBC}, s30, 6
s_add_u32 s{sBC}, s{sBC}, s{sBH}
s_xor_b32 s30, s30, 1
s_mul_i32 s30, s30, 384
s_add_u32 s{sBH}, s{sBH}, s30
s_mov_b32 s{sBR}, 0
s_lshl_b32 s{sROT}, s{sCB}, 2
s_and_b32 s{sROT}, s{sROT}, {15 if ROT4 else 0}
""")
def b_src_w2():
    srd(SB, pW2, 3584 * 2048); e(f"s_lshl_b32 s{sBC}, s{sCB}, 8\ns_mul_i32 s{sBR}, s{sKS}, {G5.NK*64*2048}")
def flag_addr(dst, base, hi, lo, nw, wave):
    e(f"s_lshl_b32 s{dst}, s{hi}, 4\ns_add_u32 s{dst}, s{dst}, s{lo}\ns_mul_i32 s{dst}, s{dst}, {nw}")
    if wave is not None: e(f"s_add_u32 s{dst}, s{dst}, s{wave}")
    e(f"s_lshl_b32 s{dst}, s{dst}, 2\ns_add_u32 s{dst}, s{dst}, {base}")
def dual(fn, sreg):
    S, X = A.newlabel("slowst"), A.newlabel("stx")
    e(f"s_cmp_lg_u32 s{sreg}, 0\ns_cbranch_scc1 {S}")
    fn(LFL)
    e(f"s_branch {X}")
    A.label(S)
    fn("sc1")
    A.label(X)

def attn_setup():
    e(f"v_lshlrev_b32 v5, 2, v3\nv_mov_b32 v6, {f32(-1e30)}")
    for k in range(4):
        e(f"v_add_u32 v7, {k}, v5\nv_cmp_gt_u32 vcc, v7, v4\nv_cndmask_b32 v{56+k}, v6, 0, vcc\nv_cndmask_b32 v{60+k}, 0, v6, vcc".replace("v_cndmask_b32 v%d, v6, 0, vcc" % (56 + k), "v_cndmask_b32_e64 v%d, v6, 0, vcc" % (56 + k)))
    e(f"""
s_lshl_b32 s36, s{sRB}, 2
s_add_u32 s36, s36, s38
s_sub_i32 s36, 8, s36
s_max_i32 s36, s36, 0
s_mul_i32 s37, s{sWN}, 24
s_lshl_b32 s39, s38, 1
s_add_u32 s37, s37, s39
s_lshl_b32 s37, s37, 10
v_lshl_add_u32 v5, v1, 4, s37
v_add_u32 v7, {L_V}, v5
""")
    own_arena(34, AR_O)
    e(f"s_lshl_b32 s35, s38, 12\ns_add_u32 s34, s34, s35\ns_lshl_b32 s35, s{sWN}, 10\ns_add_u32 s34, s34, s35\ns_add_u32 s35, s34, 2048")
    flag_addr(33, WS_F2, sRB, sCB, 8, sWAVE)

def attention(ST, is_p, Q=None):
    n = "attp" if is_p else "attc"
    S = 64; KF = 24; VF = 24; O = 208; MX = 232
    def sr(qt, u): return S + (qt * 18 + u) * 4
    dead = lambda qt, u: (qt == 0 and u == 17) or (qt == 1 and u == 0)
    def PF(pos):
        for role, at, ptr, nbytes, rev, dst in PFS:
            if role == ("P" if is_p else "C") and at == pos:
                srd(SB, ptr, nbytes)
                e(f"s_xor_b32 s30, s2, {255 if rev else 0}\ns_lshl_b32 s30, s30, 2\ns_add_u32 s30, s30, s{sW}\ns_lshl_b32 s30, s30, 13\nv_lshlrev_b32 v251, 7, v1")
                e(f"buffer_load_dword v{dst}, v251, {s(SB,4)}, s30 offen")
                if is_p: Q.add("pf")
    PF("nb")
    if is_p: Q.wait("nk")
    e("s_waitcnt lgkmcnt(0)\ns_barrier")
    if is_p:
        e(f"s_lshl_b32 s30, s{sW}, 11\ns_add_u32 s30, s30, {L_Q}\nv_lshl_add_u32 v2, v1, 4, s30\nds_read_b128 v[8:11], v2\nds_read_b128 v[12:15], v2 offset:1024")
    ST("att_k")
    for u in range(8): e(f"ds_read_b128 {v(KF+4*u,4)}, v5 offset:{L_K + u*1024}")
    for k in range(4): e(f"v_mov_b32 v{16+k}, 0x3f803f80")
    for k in range(4): e(f"v_mov_b32 v{MX+k}, v6")
    for r in range(O, O + 24, 2): e(f"v_mov_b64 {v(r,2)}, 0")
    def s_phase(generic):
        pend = []
        def maxes(k):
            for _ in range(k):
                if pend: e(pend.pop(0))
        for u in range(18):
            issued = min(18, u + 8)
            e(f"s_waitcnt lgkmcnt({issued - (u+1)})")
            if generic and u % 2 == 0 and u < 16:
                e(f"s_cmp_gt_u32 s36, {u//2}\ns_cselect_b32 s30, {f32(-1e30)}, 0")
                for k in range(4): e(f"v_mov_b32 v{20+k}, s30")
            for qt in range(2):
                if dead(qt, u): continue
                c = "v[56:59]" if u == qt else "v[60:63]" if u == 16 + qt else "0"
                if generic and u < 16: c = "v[20:23]"
                e(f"v_mfma_f32_16x16x32_bf16 {v(sr(qt,u),4)}, {v(KF+4*(u%8),4)}, {v(8+4*qt,4)}, {c}")
                if len(pend) >= 8: maxes(2)
                r = sr(qt, u)
                pend.append(f"v_max3_f32 v{MX+2*qt}, v{r}, v{r+1}, v{MX+2*qt}")
                pend.append(f"v_max3_f32 v{MX+2*qt+1}, v{r+2}, v{r+3}, v{MX+2*qt+1}")
            if u + 8 < 18: e(f"ds_read_b128 {v(KF+4*(u%8),4)}, v5 offset:{L_K + (u+8)*1024}")
        maxes(99)
    Lg, Lx = A.newlabel("sgen"), A.newlabel("sx")
    e(f"s_cmp_lg_u32 s36, 0\ns_cbranch_scc1 {Lg}")
    s_phase(False)
    e(f"s_branch {Lx}")
    A.label(Lg)
    s_phase(True)
    A.label(Lx)
    if is_p: Q.wait("nv")
    e("s_barrier")
    ST("att_v")
    PF("v")
    CSC = (32 ** -0.5) * LOG2E
    e(f"s_mov_b32 s{sC0}, {f32(CSC)}\ns_mov_b32 s{sC0+1}, {f32(CSC)}")
    for q in range(6): e(f"ds_read_b128 {v(VF+4*q,4)}, v7 offset:{q*1024}")
    e(f"v_max_f32 v{MX}, v{MX}, v{MX+1}\nv_max_f32 v{MX+2}, v{MX+2}, v{MX+3}")
    xg_multi("v_max_f32", [MX, MX + 2], [MX + 1, MX + 3])
    e(f"v_mul_f32 v{MX}, {f32(-CSC)}, v{MX}\nv_mul_f32 v{MX+2}, {f32(-CSC)}, v{MX+2}")
    def pv(p):
        out = []
        for qt in range(2):
            P = v(sr(qt, 2 * p), 4)
            for dt in range(2):
                o = v(O + 12 * qt + 4 * dt, 4)
                out.append(f"v_mfma_f32_16x16x32_bf16 {o}, {v(VF+4*((2*p+dt)%8),4)}, {P}, {o}")
            o = v(O + 12 * qt + 8, 4)
            out.append(f"v_mfma_f32_16x16x32_bf16 {o}, v[16:19], {P}, {o}")
        return out
    for p in range(10):
        va = []
        if p < 9:
            live = [(qt, u) for qt in range(2) for u in (2 * p, 2 * p + 1) if not dead(qt, u)]
            for qt, u in live:
                r = sr(qt, u)
                for h in range(2): va.append(f"v_pk_fma_f32 {v(r+2*h,2)}, {v(r+2*h,2)}, {s(sC0,2)}, {v(MX+2*qt,2)} op_sel_hi:[1,1,0]")
            for qt, u in live:
                for k in range(4): va.append(f"v_exp_f32 v{sr(qt,u)+k}, v{sr(qt,u)+k}")
            for qt, u in live:
                r = sr(qt, u); dst = sr(qt, 2 * p) + 2 * (u & 1)
                va.append(f"v_cvt_pk_bf16_f32 v{dst}, v{r}, v{r+1}"); va.append(f"v_cvt_pk_bf16_f32 v{dst+1}, v{r+2}, v{r+3}")
            if p == 8: va.append(f"v_mov_b64 {v(sr(0,16)+2,2)}, 0")
            if p == 0: va.append(f"v_mov_b64 {v(sr(1,0),2)}, 0")
        mm = pv(p - 1) if p > 0 else []
        if p > 0:
            issued = min(18, 2 * (p - 1) + 6)
            e(f"s_waitcnt lgkmcnt({issued - 2*p})")
        PF(f'pv{p}')
        gap = max(1, len(va) // 7)
        for i, x in enumerate(va):
            e(x)
            if i >= 1 and (i - 1) % gap == 0 and mm: e(mm.pop(0))
        for x in mm: e(x)
        if p > 0:
            for b in (2 * p + 4, 2 * p + 5):
                if b < 18: e(f"ds_read_b128 {v(VF+4*(b%8),4)}, v7 offset:{b*1024}")
    ST("att_pv")
    e("v_lshlrev_b32 v2, 4, v1")
    for qt in range(2):
        o = O + 12 * qt
        e(f"v_rcp_f32 v{o+8}, v{o+8}")
        for h in range(4): e(f"v_pk_mul_f32 {v(o+2*h,2)}, {v(o+2*h,2)}, {v(o+8,2)} op_sel_hi:[1,0]")
        for h in range(4): e(f"v_cvt_pk_bf16_f32 v{24+4*qt+h}, v{o+2*h}, v{o+2*h+1}")
        e(f"buffer_store_dwordx4 {v(24+4*qt,4)}, v2, {s(SWS,4)}, s{34+qt} offen sc1")

def consumer(ST):
    G = G1
    e(f"v_mov_b32 v{vCNT}, 0")
    e(f"ds_write_b32 v{vDW}, v{vCNT} offset:{OFF_EP}\nds_write_b32 v{vDW}, v{vCNT} offset:{OFF_FULL}")
    G.c_setup()
    X = G.VX
    RA_, CSQ, VA_, VB_, CSV = X, X + 8, X + 24, X + 40, X + 56
    assert CSV + 4 <= vDW
    def pre_last1():
        e(f"s_lshl_b32 s30, s{sWM}, 8\ns_add_u32 s30, s30, {MISC}\nv_lshl_add_u32 v2, v4, 2, s30\nv_lshl_add_u32 v5, v3, 4, s30")
        e(f"s_lshl_b32 s30, s{sWN}, 7\ns_add_u32 s30, s30, {MISC}\nv_lshl_add_u32 v6, v3, 4, s30\nv_lshl_add_u32 v7, v4, 2, s30")
    fill = []
    for mt in range(4): fill += [f"ds_read_b32 v{RA_+2*mt}, v2 offset:{mt*64}", f"ds_read_b32 v{RA_+2*mt+1}, v2 offset:{512+mt*64}"]
    for t in (2, 3, 0, 1): fill.append(f"ds_read_b128 {v(CSQ+4*t,4)}, v6 offset:{1024 + (t>>1)*256 + (t&1)*64}")
    for mt in range(4): fill += [f"ds_read_b128 {v(VA_+4*mt,4)}, v5 offset:{mt*64}", f"ds_read_b128 {v(VB_+4*mt,4)}, v5 offset:{512+mt*64}"]
    for dt in range(2): fill.append(f"ds_read_b32 v{CSV+2*dt}, v7 offset:{1024 + 512 + dt*64}")
    fill.append(f"ds_read_b32 v{CSV+1}, v{vFR} offset:{OFF_HD}")
    own_arena(33, AR_K)
    e(f"""
s_lshl_b32 s30, s{sWN}, 13
s_add_u32 s33, s33, s30
s_lshl_b32 s30, s{sWM}, 12
s_add_u32 s33, s33, s30
s_add_u32 s34, s33, {AR_V - AR_K}
s_lshl_b32 s31, s{sWM}, 2
s_mul_i32 s35, s{sWN}, 24
s_add_u32 s35, s35, s31
s_add_u32 s35, s35, 16
s_lshl_b32 s35, s35, 10
s_lshl_b32 s36, s{sW}, 11
s_add_u32 s36, s36, {L_Q}
""")
    flag_addr(32, WS_F1, sCB, sRB, 4, sW)
    G.c_loop(ST, pre_last1, fill)
    e(f"s_waitcnt lgkmcnt(0)\nv_readfirstlane_b32 s{sMODE}, v{CSV+1}\nv_lshlrev_b32 v2, 4, v1\nv_add_u32 v5, s35, v2\nv_add_u32 v6, s36, v2")
    e(f"s_lshr_b32 s30, s{sRB}, 1\ns_cmp_eq_u32 s30, {3 if MAP1 == 84 else 99}\ns_cselect_b32 s{sT0}, 1, s{sMODE}")
    def fold_rows(mt, t):
        c = G.acc(mt, t); k = RA_ + 2 * mt
        for h in range(2): e(f"v_pk_mul_f32 {v(c+2*h,2)}, {v(c+2*h,2)}, {v(k,2)} op_sel_hi:[1,0]")
        for h in range(2): e(f"v_pk_fma_f32 {v(c+2*h,2)}, {v(CSQ+4*t+2*h,2)}, {v(k,2)}, {v(c+2*h,2)} op_sel:[0,1,0] op_sel_hi:[1,1,1]")
    def fold_v(mt, dt):
        c = G.acc(mt, 4 + dt)
        for h in range(2): e(f"v_pk_mul_f32 {v(c+2*h,2)}, {v(c+2*h,2)}, {v(VA_+4*mt+2*h,2)}")
        for h in range(2): e(f"v_pk_fma_f32 {v(c+2*h,2)}, {v(VB_+4*mt+2*h,2)}, {v(CSV+2*dt,2)}, {v(c+2*h,2)} op_sel_hi:[1,0,1]")
    def epi1(fl):
        t = 24
        for mt in range(4):
            fold_rows(mt, 2); fold_rows(mt, 3)
            pack(t, G.acc(mt, 2), G.acc(mt, 3))
            e(f"buffer_store_dwordx4 {v(t,4)}, v2, {s(SWS,4)}, s33 offen offset:{mt*1024} {fl or KVFL}"); t += 4
        for p in range(2):
            for dt in range(2):
                fold_v(2 * p, dt); fold_v(2 * p + 1, dt)
                pack(t, G.acc(2 * p, 4 + dt), G.acc(2 * p + 1, 4 + dt))
                e(f"buffer_store_dwordx4 {v(t,4)}, v2, {s(SWS,4)}, s34 offen offset:{(2*p+dt)*1024} {fl or KVFL}"); t += 4
        for i in range(4): e(f"ds_write_b128 v5, {v(24+4*i,4)} offset:{L_K + i*1024}")
        for i in range(4): e(f"ds_write_b128 v5, {v(40+4*i,4)} offset:{L_V + i*1024}")
        for mt in (2, 3, 0, 1):
            fold_rows(mt, 0); fold_rows(mt, 1)
            d = 8 + 4 * mt
            pack(d, G.acc(mt, 0), G.acc(mt, 1))
            if mt >= 2: e(f"ds_write_b128 v6, {v(d,4)} offset:{(mt-2)*1024}")
        e("s_waitcnt vmcnt(0)")
        set_flag(32, fl.replace("nt", ""), t=64)
    dual(epi1, sT0)
    ST("kv_flag")
    e(f"s_lshl_b32 s38, s{sWM}, 1")
    attn_setup()
    attention(ST, False)
    G = G3
    roles_48()
    b_src_wo()
    G.p_setup_b(sWN)
    X = G.VX
    rowmajor_voff(X + 16, X + 17)
    e(f"""
s_lshl_b32 s35, s{sRB}, 1
s_add_u32 s35, s35, s{sWM}
s_lshl_b32 s36, s{sCB}, 1
s_add_u32 s36, s36, s{sWN}
s_lshl_b32 s32, s35, 17
s_lshl_b32 s31, s36, 6
s_add_u32 s32, s32, s31
""")
    G.c_setup()
    e("s_waitcnt vmcnt(0)")
    set_flag(33)
    ST("o_flag")
    Qc = VmQ()
    L1, L2 = A.newlabel("b3a"), A.newlabel("b3b")
    e(f"s_cmp_lg_u32 s{sWM}, 0\ns_cbranch_scc1 {L1}")
    for st in range(3): G.issue_b(Qc, st)
    e(f"s_branch {L2}")
    A.label(L1)
    for st in range(3, 6): G.issue_b(Qc, st)
    A.label(L2)
    e("s_barrier")
    for mt in range(4): e(f"s_add_u32 s31, s32, {mt*16*2048}\nbuffer_load_dwordx4 {v(X+4*mt,4)}, v{X+16}, {s(SX,4)}, s31 offen")
    e("s_waitcnt vmcnt(4)")
    e(f"""
s_lshl_b32 s37, s35, 17
s_lshl_b32 s31, s36, 10
s_add_u32 s37, s37, s31
s_add_u32 s37, s37, {WS_H}
s_lshl_b32 s38, s35, 14
s_lshl_b32 s31, s36, 9
s_add_u32 s38, s38, s31
s_add_u32 s38, s38, {WS_STAT}
""")
    flag_addr(32, WS_F3, sRB, sCB, 4, sW)
    HX = X + 24
    def pre_last3():
        e("s_waitcnt vmcnt(0)\nv_lshlrev_b32 v2, 4, v1")
        for mt in range(4):
            x = X + 4 * mt
            e(f"v_permlane16_swap_b32 v{x}, v{x+2}\nv_permlane16_swap_b32 v{x+1}, v{x+3}")
        for mt in range(4):
            for d in range(4): unpack(HX + 8 * mt + 2 * d, X + 4 * mt + d)
    G.c_loop(ST, pre_last3)
    for mt in range(4):
        x = X + 4 * mt; u = HX + 8 * mt
        pack(8, G.acc(mt, 0), G.acc(mt, 1))
        for d in range(4): unpack(12 + 2 * d, 8 + d)
        for d in range(4): e(f"v_pk_add_f32 {v(12+2*d,2)}, {v(12+2*d,2)}, {v(u+2*d,2)}")
        for d in range(4): e(f"v_cvt_pk_bf16_f32 v{x+d}, v{12+2*d}, v{13+2*d}")
        e(f"s_add_u32 s31, s37, {mt*32*1024}\nbuffer_store_dwordx4 {v(x,4)}, v2, {s(SWS,4)}, s31 offen sc1")
    for mt in range(4):
        x = X + 4 * mt; u = HX + 8 * mt
        for d in range(4): unpack(u + 2 * d, x + d)
        e(f"v_pk_add_f32 v[12:13], {v(u,2)}, {v(u+2,2)}\nv_pk_add_f32 v[14:15], {v(u+4,2)}, {v(u+6,2)}")
        e(f"v_pk_add_f32 v[12:13], v[12:13], v[14:15]\nv_add_f32 v{32+2*mt}, v12, v13")
    xg_multi("v_add_f32", [32, 34, 36, 38], [16, 17, 18, 19])
    for mt in range(4):
        u = HX + 8 * mt; sm = 32 + 2 * mt
        e(f"v_mul_f32 v12, {f32(1/32)}, v{sm}")
        for d in range(4): e(f"v_pk_add_f32 {v(u+2*d,2)}, {v(u+2*d,2)}, v[12:13] op_sel_hi:[1,0] neg_lo:[0,1] neg_hi:[0,1]")
        e(f"v_pk_mul_f32 v[14:15], {v(u,2)}, {v(u,2)}")
        for d in range(1, 4): e(f"v_pk_fma_f32 v[14:15], {v(u+2*d,2)}, {v(u+2*d,2)}, v[14:15]")
        e(f"v_add_f32 v{sm+1}, v14, v15")
    xg_multi("v_add_f32", [33, 35, 37, 39], [16, 17, 18, 19])
    for k in range(1, 4):
        e(f"v_cmp_eq_u32 vcc, {k}, v3\nv_cndmask_b32 v32, v32, v{32+2*k}, vcc\nv_cndmask_b32 v33, v33, v{33+2*k}, vcc")
    e(f"v_lshlrev_b32 v2, 3, v1\nbuffer_store_dwordx2 v[32:33], v2, {s(SWS,4)}, s38 offen sc1\ns_waitcnt vmcnt(1)")
    set_flag(32)
    post(OFF_EP, 2)
    ST("h_flag")
    G = G4
    roles_84()
    G.c_setup()
    e("s_waitcnt vmcnt(0)")
    set_flag(32, val=3)
    h1_base(37)
    e(f"""
s_and_b32 s39, s{sCB}, 1
s_add_u32 s32, s{sOWN}, s37
s_lshl_b32 s33, s{sWM}, 12
s_add_u32 s32, s32, s33
s_lshl_b32 s34, s{sWN}, 2
s_add_u32 s34, s34, s39
s_add_u32 s35, s39, s{sWN}
s_add_u32 s35, s35, 2
s_xor_b32 s36, s39, 1
s_mul_i32 s36, s36, 6
s_lshl_b32 s34, s34, 13
s_lshl_b32 s35, s35, 13
s_lshl_b32 s36, s36, 13
s_add_u32 s34, s34, s32
s_add_u32 s35, s35, s32
s_add_u32 s36, s36, s32
s_lshl_b32 s37, s{sWN}, 3
s_add_u32 s36, s36, s37
s_add_u32 s37, s34, 8192
s_mov_b32 s{sC0}, {f32(-LOG2E)}
s_mov_b32 s{sC0+1}, {f32(-LOG2E)}
""")
    flag_addr(38, WS_F4, sRB, sCB, 4, sW)
    def pre_last4():
        e(f"""
s_lshl_b32 s30, s{sWM}, 9
s_add_u32 s30, s30, {L_RA}
v_lshl_add_u32 v2, v4, 3, s30
s_lshl_b32 s31, s39, 7
s_lshl_b32 s32, s{sWN}, 9
s_add_u32 s32, s32, s31
s_add_u32 s32, s32, {L_CS}
v_lshl_add_u32 v5, v3, 4, s32
s_lshl_b32 s32, s{sWN}, 7
s_add_u32 s32, s32, s31
s_add_u32 s32, s32, {L_CS + 256}
v_lshl_add_u32 v6, v3, 4, s32
s_xor_b32 s33, s39, 1
s_mul_i32 s33, s33, 768
s_lshl_b32 s32, s{sWN}, 6
s_add_u32 s32, s32, s33
s_add_u32 s32, s32, {L_CS}
v_lshl_add_u32 v7, v3, 4, s32
""")
    CS = 16
    fill = [f"ds_read_b64 {v(8+2*mt,2)}, v2 offset:{mt*128}" for mt in range(4)]
    fill += [f"ds_read_b128 {v(CS+4*t,4)}, v5 offset:{64*t}" for t in range(4)]
    fill += [f"ds_read_b128 {v(CS+16+4*t,4)}, v6 offset:{64*t}" for t in range(2)] + [f"ds_read_b128 {v(CS+24,4)}, v7"]
    G.c_loop(ST, pre_last4, fill)
    e("s_waitcnt lgkmcnt(0)\nv_lshlrev_b32 v2, 4, v1")
    def epi4(fl):
        units = []
        for pr in range(4):
            for mt in range(4): units.append((mt, (2 * pr, 2 * pr + 1) if pr < 3 else (6,), pr))
        T0, O0 = 56, 80
        def sA(i):
            mt, ts, pr = units[i]; k = 8 + 2 * mt; o = []
            for t in ts:
                c = G.acc(mt, t)
                for h in range(2): o.append(f"v_pk_mul_f32 {v(c+2*h,2)}, {v(c+2*h,2)}, {v(k,2)} op_sel:[0,1] op_sel_hi:[1,1]")
            for t in ts:
                c = G.acc(mt, t)
                for h in range(2): o.append(f"v_pk_fma_f32 {v(c+2*h,2)}, {v(CS+4*t+2*h,2)}, {v(k,2)}, {v(c+2*h,2)} op_sel_hi:[1,0,1]")
            return o
        def sB(i):
            mt, ts, pr = units[i]; T = T0 + 8 * (i % 3)
            return [f"v_exp_f32 v{T+4*j+k}, v{G.acc(mt,t)+k}" for j, t in enumerate(ts) for k in range(4)]
        def sC(i):
            mt, ts, pr = units[i]; T = T0 + 8 * (i % 3)
            return [f"v_pk_fma_f32 {v(T+2*h,2)}, {v(T+2*h,2)}, {s(sC0,2)}, {s(sC0,2)}" for h in range(2 * len(ts))]
        def sD(i):
            mt, ts, pr = units[i]; T = T0 + 8 * (i % 3)
            return [f"v_rcp_f32 v{T+k}, v{T+k}" for k in range(4 * len(ts))]
        def sE(i):
            mt, ts, pr = units[i]; T = T0 + 8 * (i % 3); o = []; d = O0 + 4 * (i % 4)
            for j, t in enumerate(ts):
                c = G.acc(mt, t)
                for h in range(2): o.append(f"v_pk_mul_f32 {v(c+2*h,2)}, {v(c+2*h,2)}, {v(T+4*j+2*h,2)}")
            for j, t in enumerate(ts):
                c = G.acc(mt, t)
                for h in range(2): o.append(f"v_cvt_pk_bf16_f32 v{d+2*j+h}, v{c+2*h}, v{c+2*h+1}")
            base = (34, 37, 35, 36)[pr]
            if NOST4: return o
            o.append(f"buffer_store_dwordx4 {v(d,4)}, v2, {s(SWS,4)}, s{base} offen offset:{mt*1024} {fl}" if pr < 3 else f"buffer_store_dwordx2 {v(d,2)}, v2, {s(SWS,4)}, s{base} offen offset:{mt*1024} {fl}")
            return o
        N = len(units)
        for x in sA(0): e(x)
        for i in range(N + 1):
            seq = []
            if i < N: seq += sB(i)
            if i + 1 < N: seq += sA(i + 1)
            if i < N: seq += sC(i)
            if i >= 1: seq += sE(i - 1)
            if i < N: seq += sD(i)
            for x in seq: e(x)
            if EARLY5 and i == 8 + E5LAG:
                e(f"s_waitcnt vmcnt({E5LAG})"); set_flag(38, fl.replace("nt", ""))
        ST("silu")
        roles_w2()
        G5.c_setup()
        e("s_waitcnt vmcnt(0)")
        set_flag(38, fl.replace("nt", ""), val=3)
    n0 = list(ST.names)
    def epi4w(fl):
        ST.names = list(n0); epi4(fl)
    dual(epi4w, sMODE)
    ST("h1_flag")
    G = G5
    MT = G.MT; keep = 2; nb = 4
    def pre_last5():
        srd(SD, pOUT, 4 * MB)
        e(f"""
s_lshl_b32 s33, s{sRB}, 3
s_add_u32 s33, s33, s{sCB}
s_mul_i32 s34, s33, {16*4*nb*1024}
s_add_u32 s34, s34, {WS_PART}
s_mul_i32 s30, s{sW}, {nb*1024}
s_add_u32 s34, s34, s30
s_lshl_b32 s35, s{sRB}, 3
s_lshl_b32 s30, s{sWM}, 3
s_add_u32 s35, s35, s30
s_lshl_b32 s30, s{sKS}, 1
s_add_u32 s35, s35, s30
s_lshl_b32 s36, s{sCB}, 2
s_lshl_b32 s30, s{sWN}, 1
s_add_u32 s36, s36, s30
s_lshl_b32 s38, s35, 15
s_lshl_b32 s31, s36, 10
s_add_u32 s38, s38, s31
s_add_u32 s38, s38, {WS_H}
s_lshl_b32 s37, s33, 6
s_lshl_b32 s31, s{sW}, 2
s_add_u32 s37, s37, s31
s_add_u32 s37, s37, {WS_F5}
s_lshl_b32 s31, s{sKS}, 4
s_add_u32 s32, s37, s31
s_lshl_b32 s39, s{sKS}, 2
""")
        for d in range(1, 4):
            e(f"s_add_u32 s31, s{sKS}, {d}\ns_and_b32 s31, s31, 3\ns_lshl_b32 s30, s31, 2\ns_add_u32 s30, s30, s{sKS}\ns_mul_i32 s30, s30, {4*nb*1024}\ns_add_u32 s{39+d}, s30, s34")
            e(f"s_add_u32 s31, s31, s39\ns_mul_i32 s31, s31, {4*nb*1024}\ns_add_u32 s{42+d}, s31, s34")
        e(f"s_lshl_b32 s46, s35, 15\ns_lshl_b32 s31, s36, 6\ns_add_u32 s46, s46, s31\ns_add_u32 s47, s38, {32*1024}")
    HR = 8
    fill = ["v_lshlrev_b32 v2, 4, v1"]
    fill += [f"buffer_load_dwordx4 {v(HR+4*(2*i+pr),4)}, v2, {s(SWS,4)}, s{38 if i == 0 else 47} offen offset:{pr*1024} sc1" for i in range(2) for pr in range(2)]
    if CANARY: fill.append(f"buffer_load_dword v248, v2, {s(SWS,4)}, s37 offen sc1")
    G.c_loop(ST, pre_last5, fill)
    o = 24
    for d in range(1, 4):
        for i in range(keep):
            for pr in range(2):
                mt = d * keep + i
                pack(o, G.acc(mt, 2 * pr), G.acc(mt, 2 * pr + 1))
                e(f"buffer_store_dwordx4 {v(o,4)}, v2, {s(SWS,4)}, s{39+d} offen offset:{(2*i+pr)*1024} {PFL}")
                o = 24 + (o - 24 + 4) % 32
    PR = 64
    assert PR + 48 <= G.ACC
    def add_partial(d):
        for i in range(keep):
            for pr in range(2):
                for q in range(4): unpack(40 + 2 * q, PR + 4 * ((d - 1) * nb + 2 * i + pr) + q)
                for q in range(4):
                    c = G.acc(i, 2 * pr + (q >> 1)) + 2 * (q & 1)
                    e(f"v_pk_add_f32 {v(c,2)}, {v(c,2)}, {v(40+2*q,2)}")
    def ld_partial(d):
        for b in range(nb): e(f"buffer_load_dwordx4 {v(PR+4*((d-1)*nb+b),4)}, v2, {s(SWS,4)}, s{42+d} offen offset:{b*1024} sc1")
    rowmajor_voff(62, 63)
    if CANARY:
        e("v_mov_b32 v58, s43\nv_mov_b32 v59, s44\nv_cmp_eq_u32 vcc, 1, v1\nv_cndmask_b32 v58, v58, v59, vcc\nv_mov_b32 v59, s45\nv_cmp_eq_u32 vcc, 2, v1\nv_cndmask_b32 v58, v58, v59, vcc")
        e("s_waitcnt vmcnt(0)")
        ST("p_flag")
        X0 = A.newlabel("pfok")
        e(f"s_mov_b64 exec, 0xf\nv_and_b32 v248, 1, v248\nv_cmp_ne_u32 vcc, 1, v248\ns_mov_b64 exec, -1\ns_cbranch_vccz {X0}")
        poll("s37", 4, voff=2, t=60)
        A.label(X0)
        L, X = A.newlabel("can"), A.newlabel("canx")
        e(f"s_mov_b64 exec, 7\ns_mov_b32 s{sCNT}, 0")
        A.label(L)
        e(f"buffer_load_dword v60, v58, {s(SWS,4)}, 0 offen offset:4092 sc1\ns_add_u32 s{sCNT}, s{sCNT}, 1\ns_cmp_gt_u32 s{sCNT}, {SPIN_MAX}\ns_waitcnt vmcnt(0)\ns_cbranch_scc1 {X}")
        e(f"v_cmp_eq_u32 vcc, -1, v60\ns_cbranch_vccnz {L}")
        A.label(X)
        e("s_mov_b64 exec, -1")
        ST("p_seen")
        for d in range(1, 4): ld_partial(d)
        for d in range(1, 4):
            L, X = A.newlabel("pv"), A.newlabel("pvx")
            r0 = PR + 16 * (d - 1)
            e(f"s_waitcnt vmcnt({(3-d)*nb})")
            A.label(L)
            e(f"v_max_u32 v60, v{r0}, v{r0+1}")
            for i in range(2, 16, 2): e(f"v_max3_u32 v60, v{r0+i}, v{r0+i+1}, v60")
            e(f"v_cmp_eq_u32 vcc, -1, v60\ns_cbranch_vccz {X}\ns_add_u32 s{sCNT}, s{sCNT}, 1\ns_cmp_gt_u32 s{sCNT}, {SPIN_MAX}\ns_cbranch_scc1 {X}")
            ld_partial(d)
            e(f"s_waitcnt vmcnt(0)\ns_branch {L}")
            A.label(X)
            add_partial(d)
    else:
        e("s_waitcnt vmcnt(0)")
        set_flag(32)
        ST("p_flag")
        poll("s37", 4, voff=2, t=60)
        ST("p_seen")
        for d in range(1, 4): ld_partial(d)
        for d in range(1, 4):
            e(f"s_waitcnt vmcnt({(3-d)*nb})")
            add_partial(d)
    for i in range(keep):
        for pr in range(2):
            x = HR + 4 * (2 * i + pr)
            pack(24, G.acc(i, 2 * pr), G.acc(i, 2 * pr + 1))
            for q in range(4): unpack(40 + 2 * q, 24 + q); unpack(48 + 2 * q, x + q)
            for q in range(4): e(f"v_pk_add_f32 {v(40+2*q,2)}, {v(40+2*q,2)}, {v(48+2*q,2)}")
            for q in range(4): e(f"v_cvt_pk_bf16_f32 v{x+q}, v{40+2*q}, v{41+2*q}")
            e(f"v_permlane16_swap_b32 v{x}, v{x+2}\nv_permlane16_swap_b32 v{x+1}, v{x+3}")
            e(f"s_add_u32 s31, s46, {i*16*2048}\nbuffer_store_dwordx4 {v(x,4)}, v62, {s(SD,4)}, s31 offen offset:{pr*64} {OFL}")
    ST.flush()
    e("s_endpgm")

def neighbours_and_attention(ST, Q):
    e(f"s_lshl_b32 s38, s{sWM}, 1\ns_add_u32 s38, s38, 1")
    attn_setup()
    L = A.newlabel("nonb")
    assert MAP1 == 162
    own_arena(42)
    e(f"""
s_add_u32 s40, s{sRB}, s{sWM}
s_sub_u32 s41, s40, 2
s_lshl_b32 s31, s{sWM}, 16
s_add_u32 s42, s42, s31
s_sub_u32 s42, s42, {2*64*KB}
s_lshl_b32 s31, s{sWN}, 13
s_add_u32 s42, s42, s31
s_mul_i32 s43, s{sWN}, 24
s_lshl_b32 s31, s{sWM}, 3
s_add_u32 s43, s43, s31
s_lshl_b32 s43, s43, 10
v_lshlrev_b32 v2, 4, v1
s_cmp_lt_u32 s40, 2
s_cselect_b32 s42, {WS_BYTES}, s42
s_cbranch_scc1 {L}
""")
    flag_addr(32, WS_F1, sCB, 41, 4, None)
    poll("s32", 4, t=8)
    A.label(L)
    ST("nb_seen")
    for wsb, lb in ((AR_K, L_K), (AR_V, L_V)):
        for h in range(2):
            e(f"s_add_u32 m0, s43, {lb + h*4096}\ns_add_u32 s31, s42, {wsb + h*4096}")
            for i in range(4): e(f"buffer_load_dwordx4 v2, {s(SWS,4)}, s31 offen offset:{i*1024} sc1 lds")
    Q.q = []; Q.add("nk", 8); Q.add("nv", 8)
    attention(ST, True, Q)
    roles_48()
    b_src_wo()
    e(f"ds_read_b32 v8, v{vFR} offset:{OFF_HD}")
    G3.p_setup_a(); G3.p_setup_b(sWN)
    e(f"s_waitcnt lgkmcnt(0)\nv_readfirstlane_b32 s{sMODE}, v8")
    e("s_waitcnt vmcnt(0)")
    set_flag(33)
    e("s_barrier")
    Q.q = []
    ST("o_flag")

def dma_phase1(ST, Q):
    G = G1
    if DPRIO: e(f"s_setprio {DPRIO}")
    e(f"s_lshl_b32 s{sBC}, s{sCB}, 7\ns_mov_b32 s{sBR}, 0\ns_lshl_b32 s{sAR}, s{sRB}, 18")
    G.p_setup_a(); G.p_setup_b()
    def touch(nk, fl):
        def f():
            e(f"s_mul_i32 s30, s{sW}, {nk*1024}\ns_add_u32 s30, s30, s{sOWN}\nv_lshlrev_b32 v12, 7, v1")
            for i in range(0, nk, 8):
                if nk - i < 8: set_exec((1 << ((nk - i) * 8)) - 1)
                e(f"s_add_u32 s31, s30, {WS_AR + i*1024}\nbuffer_load_dword v{248+i//8}, v12, {s(SWS,4)}, s31 offen {fl}")
                Q.add("touch")
            e("s_mov_b64 exec, -1")
        return f
    dma_phase1.touch = touch
    G.p_loop(Q, ST, 0, NPF, tail=touch(16, TFL.replace("none", "")) if TOUCH else None)
    if DPRIO: e("s_setprio 0")
    e("s_waitcnt lgkmcnt(0)")

def dma_rest(ST, Q):
    G = G3
    if DPRIO: e(f"s_setprio {DPRIO}")
    e(f"s_lshl_b32 s32, s{sRB}, 9\ns_add_u32 s32, s32, {WS_F2}")
    pf_step(PFBUB)
    e("v_lshlrev_b32 v10, 3, v1")
    G.p_loop(Q, ST, G.NSB, 1, 3, gate=lambda k: need_flags(0xf << (4 * G3.korder[k]) if FINE else (1 << 64) - 1, 32, 10, True) if (FINE or k == 0) else None, look=(range(0, 12), (32, 10, True)))
    G = G4
    roles_84()
    b_src_w1()
    e(f"s_lshl_b32 s{sAR}, s{sRB}, 18\ns_add_u32 s{sAR}, s{sAR}, {WS_H}")
    G.p_setup_b(); G.p_setup_a()
    e(f"s_lshl_b32 s32, s{sRB}, 8\ns_add_u32 s32, s32, {WS_F3}")
    if BEARLY: G.issue_b(Q, 0)
    wait_rows(OFF_EP, 2)
    if not BEARLY: G.issue_b(Q, 0)
    pf_step(PFBUB)
    e("v_lshlrev_b32 v10, 2, v1")
    G.p_loop(Q, ST, 1 if BLATE else G.NS, NPF, gate=lambda k: need_flags(0xf << (4 * G4.korder[k]) if FINE else (1 << 64) - 1, 32, 10, False) if (FINE or k == 0) else None, tail=dma_phase1.touch(28, '') if TOUCH4 else None, look=(range(0, 12), (32, 10, False)))
    pf_finish()
    G = G5
    roles_w2()
    b_src_w2()
    G.p_setup_b()
    for st in range(G.NS): G.issue_b(Q, st)
    G.p_setup_a()
    e(f"s_lshl_b32 s32, s{sRB}, 8\ns_lshl_b32 s30, s{sKS}, 6\ns_add_u32 s32, s32, s30\ns_add_u32 s32, s32, {WS_F4}")
    e(f"s_lshl_b32 s30, s{sW}, 8\ns_add_u32 s32, s32, s30\nv_lshlrev_b32 v10, 2, v4")
    e("v_and_b32 v11, 1, v3")
    seen5 = set()
    def gate5(k):
        want = {(c, lv) for c, kb, lv in G5.blocks()[2 * k:2 * k + 2]} - seen5
        if want:
            seen5.update(want)
            need_flags(sum(0xf << (4 * c + 16 * (lv - 1)) for c, lv in want), 32, 10, False, shift=11)
    G.p_loop(Q, ST, G.NS, gate=gate5, look=(range(0, 10), (32, 10, False, 11)) if ASY5 else None)

U0 = 200
def colsum_block(j, src, nld, dpp):
    u = U0 + 8 * j
    if DOT:
        e("v_mov_b32 v10, 0x00003f80\nv_mov_b32 v11, 0x3f800000")
        for i in range(nld):
            for d in range(4):
                if i == 0: unpack(u + 2 * d, src + d)
                else: e(f"v_dot2_f32_bf16 v{u+2*d}, v{src+4*i+d}, v10, v{u+2*d}\nv_dot2_f32_bf16 v{u+2*d+1}, v{src+4*i+d}, v11, v{u+2*d+1}")
    else:
        for i in range(nld):
            for d in range(4):
                if i == 0: unpack(u + 2 * d, src + d)
                else:
                    unpack(10 + 2 * (d & 1), src + 4 * i + d)
                    e(f"v_pk_add_f32 {v(u+2*d,2)}, {v(u+2*d,2)}, {v(10+2*(d&1),2)}")
    for d in range(4): e(f"v_permlane32_swap_b32 v{u+d}, v{u+4+d}")
    for d in range(2): e(f"v_pk_add_f32 {v(u+2*d,2)}, {v(u+2*d,2)}, {v(u+4+2*d,2)}")
    for d in range(2): e(f"v_permlane16_swap_b32 v{u+d}, v{u+2+d}")
    e(f"v_pk_add_f32 {v(u,2)}, {v(u,2)}, {v(u+2,2)}")
    for k in dpp:
        for r in range(u, u + 2): e(f"v_add_f32_dpp v{r}, v{r}, v{r} row_ror:{k} row_mask:0xf bank_mask:0xf")
def colsum_store(Q, j, soff, nl, tag):
    u = U0 + 8 * j
    e("v_lshlrev_b32 v6, 5, v4\nv_lshl_add_u32 v6, v3, 3, v6")
    m = (1 << nl) - 1
    set_exec(m | m << 16 | m << 32 | m << 48)
    e(f"buffer_store_dwordx2 {v(u,2)}, v6, {s(SWS,4)}, s{soff} offen offset:{256*j} sc1\ns_mov_b64 exec, -1")
    Q.add(tag, 1)

def zero_own_flags(Q):
    e("v_lshlrev_b32 v2, 2, v1\nv_mov_b32 v8, 0")
    def st(soff, nl):
        set_exec((1 << nl) - 1); e(f"buffer_store_dword v8, v2, {s(SWS,4)}, s{soff} offen sc1"); Q.add("zero")
    flag_addr(32, WS_F1, sCB, sRB, 4, None); st(32, 4)
    flag_addr(32, WS_F2, sRB, sCB, 8, None); st(32, 8)
    roles_48(36, 37)
    flag_addr(32, WS_F3, 36, 37, 4, None); st(32, 4)
    roles_w2(36, 37, 38)
    e(f"s_lshl_b32 s32, s36, 3\ns_add_u32 s32, s32, s37\ns_lshl_b32 s32, s32, 2\ns_add_u32 s32, s32, s38\ns_lshl_b32 s32, s32, 4\ns_add_u32 s32, s32, {WS_F5}"); st(32, 4)
    roles_84(36, 37)
    flag_addr(32, WS_F4, 36, 37, 4, None); st(32, 4)
    e("s_mov_b64 exec, -1\nv_mov_b32 v8, -1\nv_mov_b32 v9, -1\nv_mov_b32 v10, -1\nv_mov_b32 v11, -1\nv_lshlrev_b32 v7, 4, v1")
    e(f"s_lshl_b32 s32, s35, 5\ns_add_u32 s32, s32, {WS_RA}"); st(32, 8)
    e(f"s_add_u32 s32, s32, {WS_RB - WS_RA}"); st(32, 8)
    def st4(soff, nl):
        set_exec((1 << nl) - 1); e(f"buffer_store_dwordx4 v[8:11], v7, {s(SWS,4)}, s{soff} offen sc1"); Q.add("zero")
    e(f"s_mul_i32 s32, s35, 768\ns_add_u32 s32, s32, {WS_CS1}"); st4(32, 48)
    e(f"s_mul_i32 s32, s36, {2*3584*4}\ns_mul_i32 s33, s37, 896\ns_add_u32 s32, s32, s33\ns_add_u32 s32, s32, {WS_CS2}"); st4(32, 56)
    e(f"s_add_u32 s32, s32, {3584*4}"); st4(32, 56)
    e("s_mov_b64 exec, -1")

sPFO, sPFE, sPFI, SPF = sNEED, pOUT, sT0, 44
sPFS = pOUT + 1
def pf_init():
    srd(SPF, pWO, 2 * MB)
    e(f"s_lshl_b32 s{sPFS}, s2, 2\ns_add_u32 s{sPFS}, s{sPFS}, s{sW}\ns_lshl_b32 s{sPFS}, s{sPFS}, 8\ns_mov_b32 s{sPFO}, s{sPFS}\ns_mov_b32 s{sPFE}, {2*MB}\ns_mov_b32 s{sPFI}, {2 if W2NT else 0 if PFW1 else 1}")
def pf_chunk():
    for i in range(4): e(f"s_buffer_load_dword s{sC0}, {s(SPF,4)}, s{sPFO} offset:{64*i}")
    e(f"s_add_u32 s{sPFO}, s{sPFO}, {1024*256}")
def pf_step(n):
    if not SPFON or n == 0: return
    G_, X, W2L = A.newlabel("pfg"), A.newlabel("pfx"), A.newlabel("pfw2")
    e(f"s_cmp_lt_u32 s{sPFO}, s{sPFE}\ns_cbranch_scc1 {G_}\ns_cmp_ge_u32 s{sPFI}, 2\ns_cbranch_scc1 {X}")
    e(f"s_mov_b32 s{sPFO}, s{sPFS}\ns_mov_b32 s{sPFE}, {7*MB}\ns_add_u32 s{sPFI}, s{sPFI}, 1\ns_cmp_eq_u32 s{sPFI}, 2\ns_cbranch_scc1 {W2L}")
    srd(SPF, pW1, 7 * MB)
    e(f"s_branch {G_}")
    A.label(W2L)
    srd(SPF, pW2, 7 * MB)
    A.label(G_)
    for i in range(n): pf_chunk()
    A.label(X)
CODE_MAX = 96 * KB
def code_warm():
    if not CWARM: return
    L = A.newlabel("pc")
    e(f"s_getpc_b64 s[42:43]")
    A.label(L)
    e(f"s_sub_u32 s42, s42, {L}-{KN}\ns_subb_u32 s43, s43, 0\ns_lshl_b32 s{sC0+1}, s{sR}, 2\ns_add_u32 s{sC0+1}, s{sC0+1}, s{sW}\ns_lshl_b32 s{sC0+1}, s{sC0+1}, 6")
    for i in range(NCODE): e(f"s_load_dword s{sC0}, s[42:43], s{sC0+1} offset:{i*8192}")
def pf_until_ep(k):
    L, X = A.newlabel("pu"), A.newlabel("pux")
    A.label(L)
    e(f"ds_read_b32 v{vFV}, v{vFR} offset:{OFF_EP}\ns_waitcnt lgkmcnt(0)\nv_cmp_gt_u32 vcc, {k}, v{vFV}\ns_cbranch_vccz {X}")
    e(f"s_sleep 1\ns_add_u32 s3, s3, 1\ns_cmp_lt_u32 s3, {LSPIN_MAX}\ns_cbranch_scc1 {L}")
    A.label(X)
def pf_finish():
    if not SPFON: return
    L = A.newlabel("pfin")
    A.label(L)
    pf_step(2)
    e(f"s_waitcnt lgkmcnt(6)\ns_cmp_lt_u32 s{sPFI}, 2\ns_cbranch_scc1 {L}\ns_cmp_lt_u32 s{sPFO}, s{sPFE}\ns_cbranch_scc1 {L}")
def pf_stamp(ST):
    if not STAMPS: return
    k_ = len(ST.names); ST.names.append("pfMB")
    e(f"s_mul_i32 s30, s{sPFI}, 1000\ns_lshr_b32 s31, s{sPFO}, 13\ns_mul_i32 s31, s31, 25\ns_lshr_b32 s31, s31, 5\ns_add_u32 s30, s30, s31\ns_add_u32 s{78+k_}, s78, s30")

class HStream:
    def __init__(self): self.items = []
    def __enter__(self):
        self.saved = A.lines; A.lines = []; return self
    def _take(self, atomic=False):
        if A.lines:
            if atomic: self.items.append(("g", list(A.lines)))
            else: self.items += [("g", [ln]) for ln in A.lines if ln.strip()]
        A.lines = []
    def at(self, k): self._take(); self.items.append(("at", k))
    def by(self, k): self._take(); self.items.append(("by", k))
    def atomic(self, f, cost=None):
        self._take(); f()
        if not A.lines: return
        self._take(True)
        if cost is not None: self.items[-1] = ("g", self.items[-1][1], cost)
    def __exit__(self, *a):
        self._take(); A.lines = self.saved
    @staticmethod
    def cost(ln):
        t = ln.strip()
        if t.startswith(("buffer_", "global_")): return VMC
        if t.startswith("ds_"): return 2
        if t.startswith("v_dot"): return DOTC
        if t.startswith(("v_exp", "v_rcp", "v_sqrt", "v_rsq")): return 2
        if t.startswith("s_") or t.endswith(":"): return 0.5
        return 1
    def emit(self, nbar, lim, npf, pf_from=0, pf_to=99, pre0=999, every=1, cw=(), more=False):
        st = {"b": 0, "used": 0}
        def bar():
            e("s_barrier")
            if st["b"] in cw: code_warm()
            if pf_from <= st["b"] < min(pf_to, nbar - 1) and st["b"] % every == every - 1: pf_step(npf + (1 if more and st["b"] % 3 != 1 else 0))
            st["b"] += 1; st["used"] = 0
        for kind, x, *oc in self.items:
            if kind == "at":
                while st["b"] <= x: bar()
            elif kind == "by":
                if DBGH: print("by", x, "at", st["b"], file=sys.stderr)
                assert st["b"] <= x, ("deadline missed", st["b"], x)
            else:
                c = oc[0] if oc else sum(self.cost(l) for l in x)
                if st["used"] > 8 and st["used"] + c > (lim if st["b"] > 0 else pre0) and not (len(x) == 1 and x[0].strip().startswith("s_")): bar()
                A.lines += x; st["used"] += c
        assert st["b"] <= nbar, st
        while st["b"] < nbar: bar()

def retry(loads, regs, nl):
    L, X = A.newlabel("rt"), A.newlabel("rtx")
    set_exec((1 << nl) - 1 if nl <= 64 else nl)
    e(f"s_mov_b32 s{sCNT}, 0")
    A.label(L)
    e("s_waitcnt vmcnt(0)")
    e(f"v_max_u32 v8, v{regs[0]}, v{regs[1]}")
    for i in range(2, len(regs), 2): e(f"v_max3_u32 v8, v{regs[i]}, v{regs[i+1]}, v8")
    e(f"v_cmp_eq_u32 vcc, -1, v8\ns_cbranch_vccz {X}\ns_add_u32 s{sCNT}, s{sCNT}, 1\ns_cmp_gt_u32 s{sCNT}, {SPIN_MAX}\ns_cbranch_scc1 {X}\ns_sleep 8")
    loads()
    e(f"s_branch {L}")
    A.label(X)

def helper0_phase1(ST, Q):
    RS = 16
    with HStream() as H:
        e(f"""
s_lshl_b32 s35, s{sRB}, 4
s_add_u32 s35, s35, s{sCB}
s_lshl_b32 s34, s35, 14
v_lshrrev_b32 v6, 3, v1
v_lshlrev_b32 v5, 11, v6
v_and_b32 v7, 7, v1
v_lshl_add_u32 v5, v7, 4, v5
s_getreg_b32 s39, hwreg(HW_REG_XCC_ID)
""")
        bounds = [0] + [2 * x for x in HB] + [16]
        def red8(r):
            e(f"v_add_f32_dpp v{r}, v{r}, v{r} quad_perm:[1,0,3,2] row_mask:0xf bank_mask:0xf")
            e(f"v_add_f32_dpp v{r}, v{r}, v{r} quad_perm:[2,3,0,1] row_mask:0xf bank_mask:0xf")
            e(f"v_add_f32_dpp v{r}, v{r}, v{r} row_half_mirror row_mask:0xf bank_mask:0xf")
        def dots(bt):
            Q.wait(("rs", bt))
            for i in range(4 * bounds[bt], 4 * bounds[bt + 1]):
                e(f"v_dot2_f32_bf16 v{80+(i&1)}, v{RS+i}, v84, v{80+(i&1)}\nv_dot2_f32_bf16 v{82+(i&1)}, v{RS+i}, v{RS+i}, v{82+(i&1)}")
        e("v_mov_b32 v84, 0x3f803f80\nv_mov_b64 v[80:81], 0\nv_mov_b64 v[82:83], 0")
        for bt in range(len(bounds) - 1):
            if bt: H.at(bt - 1)
            for i in range(bounds[bt], bounds[bt + 1]): e(f"buffer_load_dwordx4 {v(RS+4*i,4)}, v5, {s(SX,4)}, s34 offen offset:{128*i}")
            Q.add(("rs", bt), bounds[bt + 1] - bounds[bt])
            if bt == 1: zero_own_flags(Q)
            if bt >= LAG: dots(bt - LAG)
        e(f"s_and_b32 s39, s39, 15\ns_or_b32 s39, s39, 0x80\ns_lshl_b32 s30, s{sG}, 5\ns_add_u32 s30, s30, s{sR}")
        e(f"v_mov_b32 v8, s39\nv_mov_b32 v2, s30")
        nb_ = len(bounds) - 1
        for bt in range(nb_ - LAG, nb_):
            H.at(bt + LAG - 1); dots(bt)
        H.by(H0AT + 1)
        e(f"s_mov_b64 exec, 1\nbuffer_store_byte v8, v2, {s(SD,4)}, 0 offen sc1\ns_mov_b64 exec, -1")
        e("v_add_f32 v10, v80, v81\nv_add_f32 v11, v82, v83")
        red8(10)
        red8(11)
        if DOT: e(f"v_mul_f32 v12, {f32(-1/1024)}, v10\nv_fma_f32 v11, v12, v10, v11\nv_max_f32 v11, 0, v11")
        ln_finish(10, 11, 1024)
        e("v_mul_f32 v10, v10, v11\nv_sub_f32 v10, 0, v10")
        e(f"v_lshrrev_b32 v7, 3, v1\nv_lshlrev_b32 v7, 2, v7\ns_lshl_b32 s32, s35, 5\ns_add_u32 s32, s32, {WS_RA}\ns_add_u32 s33, s32, {WS_RB-WS_RA}")
        set_exec(0x0101010101010101)
        e(f"buffer_store_dword v11, v7, {s(SWS,4)}, s32 offen sc1\nbuffer_store_dword v10, v7, {s(SWS,4)}, s33 offen sc1\ns_mov_b64 exec, -1")
        ST("st_pub")
        H.by(GAT - 1); H.at(GAT - 3)
        e(f"v_lshlrev_b32 v12, 2, v1\nbuffer_load_dword v13, v12, {s(SD,4)}, 0 offen sc1")
        H.at(GAT - 1)
        def handshake():
            X = A.newlabel("hsx")
            e(f"s_waitcnt vmcnt(0)\nv_and_b32 v8, 0x80808080, v13\nv_cmp_ne_u32 vcc, 0x80808080, v8\ns_cbranch_vccz {X}")
            poll("0", 64, srd_=SD, mask="0x80808080", t=8, sleep=16)
            e(f"buffer_load_dword v13, v12, {s(SD,4)}, 0 offen sc1\ns_waitcnt vmcnt(0)")
            A.label(X)
            e(f"s_mul_i32 s31, s39, 0x01010101\nv_cmp_ne_u32 vcc, s31, v13\ns_lshl_b32 s30, s{sG}, 3\ns_lshr_b64 s[32:33], vcc, s30\ns_and_b32 s30, s32, 0xff")
            if FORCE >= 0: e(f"s_mov_b32 s30, {FORCE}")
            e(f"v_mov_b32 v8, s30\nv_mov_b32 v7, {L_HD}\ns_mov_b64 exec, 1\nds_write_b32 v7, v8\ns_mov_b64 exec, -1")
        H.atomic(handshake)
        H.at(GAT)
        e(f"v_and_b32 v6, 31, v1\nv_lshlrev_b32 v6, 4, v6\nv_lshrrev_b32 v7, 5, v1\nv_lshl_add_u32 v6, v7, 13, v6\ns_lshl_b32 s34, s{sRB}, 9\ns_add_u32 s34, s34, {WS_RA}")
        ld = lambda: e(f"buffer_load_dwordx4 v[16:19], v6, {s(SWS,4)}, s34 offen sc1")
        ld()
        H.at(GAT + 2)
        def fin():
            retry(ld, [16, 17, 18, 19], 64)
            e(f"v_lshlrev_b32 v6, 4, v1\nv_add_u32 v6, {L_RA}, v6\nds_write_b128 v6, v[16:19]\ns_waitcnt lgkmcnt(0)")
        H.atomic(fin)
        ST("st_in")
        H.by(16)
    H.emit(17, HLIM, NPF, pf_from=PFD0, pf_to=GAT + 1, pre0=PRE0, cw=(0, 14) if CWARM > 1 else (0,))
    e("s_waitcnt lgkmcnt(0)")
    pf_stamp(ST)

def helper1_phase1(ST, Q):
    CSR = 80
    with HStream() as H:
        e(f"""
s_lshl_b32 s35, s{sRB}, 4
s_add_u32 s35, s35, s{sCB}
v_bfe_u32 v6, v1, 3, 2
v_lshrrev_b32 v7, 5, v1
v_lshl_add_u32 v6, v7, 6, v6
v_and_b32 v7, 7, v1
v_mul_u32_u24 v6, 6144, v6
v_lshl_add_u32 v6, v7, 4, v6
s_mul_i32 s32, s{sRB}, {4*6144}
s_lshl_b32 s33, s{sCB}, 7
s_add_u32 s32, s32, s33
""")
        bounds = [0] + HB + [8]
        e("v_mov_b32 v10, 0x00003f80\nv_mov_b32 v11, 0x3f800000")
        for r in range(U0, U0 + 24, 2): e(f"v_mov_b64 {v(r,2)}, 0")
        def dots(bt):
            Q.wait(("cs", bt))
            for i in range(bounds[bt], bounds[bt + 1]):
                for j in range(3):
                    for d in range(4):
                        u, r = U0 + 8 * j + 2 * d, CSR + 4 * (8 * j + i) + d
                        e(f"v_dot2_f32_bf16 v{u}, v{r}, v10, v{u}\nv_dot2_f32_bf16 v{u+1}, v{r}, v11, v{u+1}")
        nb_ = len(bounds) - 1
        for bt in range(nb_):
            if bt: H.at(bt - 1)
            for i in range(bounds[bt], bounds[bt + 1]):
                for j in range(3):
                    e(f"s_add_u32 s31, s32, {2048*j + 128*6144*i}\nbuffer_load_dwordx4 {v(CSR+4*(8*j+i),4)}, v6, {s(SB,4)}, s31 offen {'nt' if i < NTK else ''}")
            Q.add(("cs", bt), 3 * (bounds[bt + 1] - bounds[bt]))
            if bt >= LAG: dots(bt - LAG)
        for bt in range(nb_ - LAG, nb_):
            H.at(bt + LAG - 1); dots(bt)
        e(f"s_mul_i32 s33, s35, 768\ns_add_u32 s33, s33, {WS_CS1}")
        for j in range(3): colsum_block(j, 0, 0, (8,))
        H.at(H0AT + 1)
        for j in range(3): colsum_store(Q, j, 33, 8, "st1")
        ST("st_pub")
        H.by(GAT - 1); H.at(GAT)
        e(f"s_mul_i32 s33, s{sCB}, 768\ns_add_u32 s33, s33, {WS_CS1}\nv_lshlrev_b32 v6, 4, v1")
        def ld():
            for k in range(16): e(f"s_add_u32 s31, s33, {k*16*768}\nbuffer_load_dwordx4 {v(16+4*k,4)}, v6, {s(SWS,4)}, s31 offen sc1")
        def ld0():
            set_exec((1 << 48) - 1); ld(); e("s_mov_b64 exec, -1")
        H.atomic(ld0)
        H.at(GAT + 2)
        def fin():
            retry(ld, list(range(16, 80)), 48)
            for k in range(1, 16): e(f"v_pk_add_f32 v[16:17], v[16:17], {v(16+4*k,2)}\nv_pk_add_f32 v[18:19], v[18:19], {v(18+4*k,2)}")
            e(f"v_add_u32 v6, {L_CS}, v6\nds_write_b128 v6, v[16:19]\ns_mov_b64 exec, -1\ns_waitcnt lgkmcnt(0)")
        H.atomic(fin)
        ST("st_in")
        H.by(16)
    H.emit(17, HLIM, NPF, pf_from=PFD0, pf_to=GAT + 1, pre0=PRE0, cw=(0, 14) if CWARM > 1 else (0,))
    e("s_waitcnt lgkmcnt(0)")
    pf_stamp(ST)

def helper_rest(ST, Q):
    CSR = 16
    with HStream() as H:
        if B3LATE: H.at(0)
        for st in range(6, G3.NSB): G3.issue_b(Q, st)
        H.at(5)
        Q.wait_all()
        H.by(6)
        roles_84()
        b_src_w1()
        G4.p_setup_b(sWN)
        e(f"""
v_lshrrev_b32 v6, 3, v1
v_mul_u32_u24 v6, 7168, v6
v_and_b32 v7, 7, v1
v_lshl_add_u32 v6, v7, 4, v6
v_lshrrev_b32 v5, 2, v1
v_mul_u32_u24 v5, 7168, v5
v_and_b32 v7, 3, v1
v_lshl_add_u32 v5, v7, 4, v5
s_lshl_b32 s35, s{sRB}, 1
s_add_u32 s35, s35, s{sWN}
s_mul_i32 s32, s35, {32*7168}
s_mul_i32 s33, s{sCB}, 448
s_add_u32 s32, s32, s33
""")
        e(f"s_mul_i32 s33, s35, {3584*4}\ns_mul_i32 s34, s{sCB}, 896\ns_add_u32 s33, s33, s34\ns_add_u32 s33, s33, {WS_CS2}")
        if WARM4:
            e(f"s_and_b32 s36, s35, 15\ns_mul_i32 s36, s36, {4*7168}\ns_mul_i32 s37, s{sCB}, 448\ns_and_b32 s37, s37, {hex(0xffffff80)}\ns_add_u32 s36, s36, s37")
            e(f"v_bfe_u32 v8, v1, 2, 2\nv_mul_u32_u24 v8, 7168, v8\nv_and_b32 v9, 3, v1\nv_lshl_add_u32 v8, v9, 7, v8\ns_mov_b32 s37, {(G4.korder[1]-G4.korder[0])*64*7168}\nv_mul_lo_u32 v9, v3, s37\nv_add_u32 v8, v8, v9")
            assert G4.korder[0] == 0 and G4.korder[2] == 2 * G4.korder[1]
            H.at(CS2AT - 1)
            e(f"buffer_load_dword v244, v8, {s(SB,4)}, s36 offen"); Q.add("warm")
        H.at(CS2AT)
        for j in range(3):
            for i in range(4):
                e(f"s_add_u32 s31, s32, {8*7168*i}\nbuffer_load_dwordx4 {v(CSR+4*(4*j+i),4)}, v6, {s(SB,4)}, s31 offen offset:{128*j}")
            Q.add(("w", j), 4)
        for i in range(2):
            e(f"s_add_u32 s31, s32, {16*7168*i}\nbuffer_load_dwordx4 {v(CSR+48+4*i,4)}, v5, {s(SB,4)}, s31 offen offset:384")
        Q.add(("w", 3), 2)
    H.emit(17, 34, 1, every=3, pf_to=CS2AT, cw=(14,) if CWARM > 1 else ())
    pf_stamp(ST)
    for j in range(4):
        Q.wait(("w", j))
        colsum_block(j, CSR + 16 * j, 4 if j < 3 else 2, (8,) if j < 3 else (4, 8))
    pf_until_ep(2)
    if BSEEN:
        for j in range(4): colsum_store(Q, j, 33, 8 if j < 3 else 4, "st2")
        if BSEEN == 2: G4.issue_b(Q, 1)
        e(f"v_mov_b32 v12, {L_FULL}")
        lds_wait(12, 1, vFV, sleep=1)
        if BSEEN == 1: G4.issue_b(Q, 1)
    else:
        if not BLATE:
            for st in (1, 2): G4.issue_b(Q, st)
        for j in range(4): colsum_store(Q, j, 33, 8 if j < 3 else 4, "st2")
    ST("cs2_pub")
    with HStream() as H:
        e(f"s_lshl_b32 s36, s{sRB}, 8\ns_add_u32 s36, s36, {WS_F3}\ns_lshr_b32 s37, s{sR}, 1\ns_min_u32 s37, s37, 13\ns_lshl_b32 s37, s37, 8\ns_add_u32 s37, s37, {WS_F3}")
        H.at(0)
        if BSEEN:
            H.atomic(lambda: G4.issue_b(Q, 2), 0)
            Q.wait(1)
            H.at(1)
        Q.wait(2)
        e("v_lshlrev_b32 v240, 2, v1\nv_mul_u32_u24 v241, 12, v1")
        H.at(CHKAT)
        e(f"buffer_load_dword v232, v240, {s(SWS,4)}, s36 offen sc1\nbuffer_load_dwordx3 v[234:236], v241, {s(SWS,4)}, s37 offen sc1")
        Q.add("chk", 2)
        H.at(CHKAT + 2)
        def chk():
            X = A.newlabel("ckx")
            Q.wait("chk")
            e(f"v_lshrrev_b32 v232, 1, v232\nv_and_b32 v232, v232, v236\nv_and_b32 v234, v234, v235\nv_and_b32 v232, v232, v234\nv_and_b32 v232, 1, v232\nv_cmp_ne_u32 vcc, 1, v232\ns_cbranch_vccz {X}")
            poll("s36", 64, mask=2, t=8, sleep=8)
            for d in range(3):
                e(f"s_add_u32 s38, s37, {256*d}"); poll("s38", 64, mask=1, t=8, sleep=8)
            A.label(X)
        H.atomic(chk, 10)
        e(f"v_lshlrev_b32 v11, 4, v1\ns_lshl_b32 s36, s35, 14\ns_add_u32 s36, s36, {WS_STAT}\ns_add_u32 s37, s36, 4096\ns_add_u32 s38, s36, 8192\ns_add_u32 s39, s36, 12288")
        for i in range(16): e(f"buffer_load_dwordx4 {v(96+4*i,4)}, v11, {s(SWS,4)}, s{36+i//4} offen offset:{1024*(i%4)} sc1")
        Q.add("stat", 16)
        e(f"s_mul_i32 s33, s{sCB}, 896\ns_mul_i32 s34, s{sWN}, 448\ns_add_u32 s33, s33, s34\ns_add_u32 s33, s33, {WS_CS2}")
        e(f"v_and_b32 v7, 31, v1\nv_lshlrev_b32 v7, 4, v7\nv_lshrrev_b32 v6, 5, v1\nv_mul_u32_u24 v6, {3584*4}, v6\nv_add_u32 v6, v6, v7")
        M28 = ((1 << 28) - 1) | (((1 << 28) - 1) << 32)
        def ld(ks=range(16)):
            for k in ks: e(f"s_add_u32 s31, s33, {k*2*3584*4}\nbuffer_load_dwordx4 {v(16+4*k,4)}, v6, {s(SWS,4)}, s31 offen sc1")
        for c in range(4):
            def ldc(c=c):
                set_exec(M28); ld(range(4 * c, 4 * c + 4)); e("s_mov_b64 exec, -1")
            H.atomic(ldc, 4 * VMC)
        Q.add("cs", 16)
        Q.wait("stat")
        for h in range(2):
            e(f"v_pk_add_f32 {v(160+2*h,2)}, {v(96+2*h,2)}, {v(100+2*h,2)}")
            for i in range(2, 16): e(f"v_pk_add_f32 {v(160+2*h,2)}, {v(160+2*h,2)}, {v(96+4*i+2*h,2)}")
        for h in range(2): e(f"v_mov_b32 v{164+h}, v{160+2*h}")
        for h in range(2): e(f"v_permlane32_swap_b32 v{160+2*h}, v{164+h}")
        for h in range(2): e(f"v_add_f32 v{160+2*h}, v{160+2*h}, v{164+h}\nv_mul_f32 v{166+h}, {f32(1/32)}, v{160+2*h}\nv_mov_b32 v{168+h}, 0")
        for i in range(16):
            for h in range(2):
                r = 96 + 4 * i + 2 * h
                e(f"v_sub_f32 v{r}, v{r}, v{166+h}\nv_fma_f32 v{168+h}, v{r}, v{r}, v{168+h}")
        e(f"v_mov_b32 v13, {f32(1/32)}")
        for h in range(2): e(f"v_fma_f32 v{161+2*h}, v{168+h}, v13, v{161+2*h}\nv_mov_b32 v{164+h}, v{161+2*h}")
        for h in range(2): e(f"v_permlane32_swap_b32 v{161+2*h}, v{164+h}")
        for h in range(2):
            a_, b_ = 160 + 2 * h, 161 + 2 * h
            e(f"v_add_f32 v{b_}, v{b_}, v{164+h}")
            ln_finish(a_, b_, 1024)
            e(f"v_mul_f32 v{b_}, {f32(-LOG2E)}, v{b_}\nv_mul_f32 v{a_}, v{a_}, v{b_}\nv_sub_f32 v{a_}, 0, v{a_}")
        e(f"s_lshl_b32 s30, s{sWN}, 9\ns_add_u32 s30, s30, {L_RA}\nv_add_u32 v13, s30, v7\nds_write_b128 v13, v[160:163]")
        def fin():
            retry(ld, list(range(16, 80)), M28)
            e("s_mov_b64 exec, -1")
        H.atomic(fin, 36)
        for k in range(1, 16): e(f"v_pk_add_f32 v[16:17], v[16:17], {v(16+4*k,2)}\nv_pk_add_f32 v[18:19], v[18:19], {v(18+4*k,2)}")
        for h in range(4): e(f"v_mov_b32 v{20+h}, v{16+h}")
        for h in range(4): e(f"v_permlane32_swap_b32 v{16+h}, v{20+h}")
        e("v_pk_add_f32 v[16:17], v[16:17], v[20:21]\nv_pk_add_f32 v[18:19], v[18:19], v[22:23]")
        e(f"s_add_u32 s34, s34, {L_CS}\nv_add_u32 v7, s34, v7"); set_exec((1 << 28) - 1)
        e("ds_write_b128 v7, v[16:19]\ns_mov_b64 exec, -1\ns_waitcnt lgkmcnt(0)")
        ST("st2_in")
        H.by(16)
        if W2NT:
            H.at(W2AT)
            def w2pf():
                srd(SB, pW2, 7 * MB)
                e(f"s_lshr_b32 s36, s{sG}, 1\ns_mul_i32 s36, s36, {896*2048}\ns_lshl_b32 s37, s{sR}, 1\ns_add_u32 s37, s37, s{sWN}\ns_mul_i32 s37, s37, {56*128}\ns_add_u32 s36, s36, s37\nv_lshlrev_b32 v240, 7, v1")
                set_exec((1 << 56) - 1)
                for k in range(2): e(f"s_add_u32 s31, s36, {k*64*56*128}\nbuffer_load_dword v{244+k}, v240, {s(SB,4)}, s31 offen {W2NT.replace('none','')}")
                e("s_mov_b64 exec, -1")
            H.atomic(w2pf, 0)
    H.emit(17, HLIM4, NPF, more=True, pf_to=14, cw=(14,) if CWARM > 1 else ())
    pf_stamp(ST)
    pf_finish()
    if CANARY:
        roles_w2()
        Q.q = []
        with HStream() as H:
            e(f"s_lshl_b32 s33, s{sRB}, 3\ns_add_u32 s33, s33, s{sCB}\ns_mul_i32 s34, s33, {256*KB}\ns_add_u32 s34, s34, {WS_PART}\ns_lshl_b32 s30, s{sWN}, 13\ns_add_u32 s34, s34, s30")
            e(f"s_lshl_b32 s30, s{sKS}, 14\ns_add_u32 s34, s34, s30\nv_lshlrev_b32 v2, 4, v1")
            for k in range(4): e(f"v_mov_b32 v{8+k}, -1")
            e(f"s_lshl_b32 s37, s33, 6\ns_lshl_b32 s30, s{sKS}, 4\ns_add_u32 s37, s37, s30\ns_lshl_b32 s30, s{sWN}, 3\ns_add_u32 s37, s37, s30\ns_add_u32 s37, s37, {WS_F5}")
            H.at(PFILL)
            for d in range(1, 4):
                for hb in range(2):
                    e(f"s_add_u32 s31, s{sKS}, {d}\ns_and_b32 s31, s31, 3\ns_lshl_b32 s31, s31, 16\ns_add_u32 s31, s31, s34\ns_add_u32 s31, s31, {hb*4096}")
                    for b in range(4): e(f"buffer_store_dwordx4 v[8:11], v2, {s(SWS,4)}, s31 offen offset:{b*1024} sc1")
            H.by(PFILL + 7); H.at(PFILL + 8)
            e(f"s_waitcnt vmcnt(0)\nv_mov_b32 v12, 1\nv_lshlrev_b32 v13, 2, v1\ns_mov_b64 exec, 3\nbuffer_store_dword v12, v13, {s(SWS,4)}, s37 offen sc1\ns_mov_b64 exec, -1")
        H.emit(PFILL + 10, 24, 0)
    if W2NT:
        set_exec((1 << 56) - 1)
        for k in range(2, 4): e(f"s_add_u32 s31, s36, {k*64*56*128}\nbuffer_load_dword v{244+k}, v240, {s(SB,4)}, s31 offen {W2NT.replace('none','')}")
        e("s_mov_b64 exec, -1")

def producer(ST):
    Q = VmQ()
    pf_init()
    e(f"s_cmp_eq_u32 s{sW}, 2\ns_cbranch_scc1 L_h0\ns_cmp_eq_u32 s{sW}, 3\ns_cbranch_scc1 L_h1")
    SD_ = ST.fork("D"); dma_phase1(SD_, Q)
    e("s_branch L_att")
    A.label("L_h0")
    if HPRIO: e(f"s_setprio {HPRIO}")
    SH = ST.fork("H"); helper0_phase1(SH, VmQ())
    e("s_branch L_att")
    A.label("L_h1")
    if HPRIO: e(f"s_setprio {HPRIO}")
    SH = ST.fork("H"); helper1_phase1(SH, VmQ())
    while len(SH.names) < len(SD_.names): SH.names.append("-")
    while len(SD_.names) < len(SH.names): SD_.names.append("-")
    A.label("L_att")
    e("s_setprio 0")
    n0 = len(SD_.names)
    neighbours_and_attention(SD_, Q)
    SH.names += SD_.names[n0:]
    e(f"s_cmp_ge_u32 s{sW}, 2\ns_cbranch_scc1 L_hrest")
    dma_rest(SD_, Q)
    SD_.flush()
    e("s_endpgm")
    A.label("L_hrest")
    if HPRIO: e(f"s_setprio {HPRIO}")
    helper_rest(SH, VmQ())
    SH.flush()

def main():
    A.begin_kernel(KN)
    if STAMPS: e(f"{STAMP_OP} {s(sST,2)}")
    e(f"""
s_cmp_ge_u32 s2, 256
s_cbranch_scc1 L_end
s_load_dwordx16 s[48:63], s[0:1], 0
s_load_dwordx2 s[64:65], s[0:1], 64
v_lshrrev_b32 v2, 6, v0
v_and_b32 v1, 63, v0
v_readfirstlane_b32 s{sWAVE}, v2
v_lshrrev_b32 v3, 4, v1
v_and_b32 v4, 15, v1
s_and_b32 s{sG}, s2, 7
s_mov_b32 s3, 0
s_lshr_b32 s{sR}, s2, 3
s_and_b32 s{sW}, s{sWAVE}, 3
s_lshr_b32 s{sWM}, s{sW}, 1
s_and_b32 s{sWN}, s{sW}, 1
""")
    roles_p1()
    e(f"s_lshl_b32 s{sOWN}, s{sCB}, 4\ns_add_u32 s{sOWN}, s{sOWN}, s{sRB}\ns_lshl_b32 s{sOWN}, s{sOWN}, 16")
    e(f"s_add_u32 s{sROT}, s{sRB}, s{sCB}\ns_and_b32 s{sROT}, s{sROT}, {15 if ROT1 else 0}")
    sync_regs()
    e("s_waitcnt lgkmcnt(0)")
    if STAMPS: e(f"s_mov_b32 s78, s{sST}\ns_mov_b32 s0, 0\ns_mov_b32 s1, 0")
    srd(SX, pX, 4 * MB); srd(SB, pWQKV, 6 * MB); srd(SWS, pWS, WS_BYTES); srd(SD, pDBG, 256)
    e(f"s_cmp_ge_u32 s{sWAVE}, 4\ns_cbranch_scc1 L_prod")
    consumer(Stamper("C"))
    A.label("L_prod")
    producer(Stamper("P"))
    A.label("L_end")
    e("s_endpgm")
    A.lines.append(f".fill ({NCODE*8192} - (. - {KN})) / 4, 4, 0xbf810000")
    A.end_kernel(KN, 256, 102)
    A.lines = hazard.fix(A.lines)
    hdr = open("sequential_preLN__sliding_block__dense_activation_silu__prompt.s.ref").read().split("; Override launch")[0]
    hdr += f"; @launch grid=(256,1,1) block=(512,1,1) lds={LDS_BYTES}\n"
    for k, nm in STAMP_NAMES.items(): hdr += f"; stamps {k}: {' '.join(nm)}\n"
    sys.stdout.write(A.text(hdr))
main()
```

```python
import sys, struct
from asmlib import Asm
import hazard

ARGS = sys.argv[1:]
def opt(name, default):
    for a in ARGS:
        if a.startswith("--" + name + "="): return type(default)(a.split("=", 1)[1])
    return default
STAMPS = "--stamps" in ARGS
STAMP_OP = "s_memtime" if "--cyc" in ARGS else "s_memrealtime"
DPRIO = opt("dprio", 1)
FORCE = opt("force", -1)
PSLEEP = opt("psleep", 1)
GAT = opt("gat", 13); H0AT = opt("h0at", 5)
PUBN = opt("pubn", 16)
FPOS = opt("fpos", 8)
RP4 = opt("rp4", 0); RP5 = opt("rp5", 0)
CS2AT = opt("cs2at", 11)
CHKAT = opt("chkat", 2)
HLIM4 = opt("hlim4", 42)
DOTC = opt("dotc", 1.0)
NOST4 = opt("nost4", 0)
NSB3 = opt("nsb3", 11)
PF2 = opt("pf2", 4)
XAT = opt("xat", -1)
DBGOUT = opt("dbgout", -1)
CANARY = opt("canary", 0)
BSEEN = opt("bseen", 0)
PFILL = opt("pfill", 0)
ASY5 = opt("asy5", 1)
WARM4 = opt("warm4", 0)
ASYNC = opt("async", 0)
NTK = opt("ntk", 4)
EARLY5 = opt("early5", 1)
E5LAG = opt("e5lag", 2)
LAG = opt("lag", 1)
H1FL = opt("h1fl", "")
B1FL = opt("b1fl", "")
W2NT = opt("w2nt", "")
W2AT = opt("w2at", 14)
KORD = opt("kord", 1)
CWARM = opt("cwarm", 1)
NCODE = opt("ncode", 11)
TAILD = opt("taild", 0)
TOUCH4 = opt("touch4", 0)
HB = [int(x) for x in opt("hb", "3,5,7").split(",")]
DOT = opt("dot", 1)
PFH = opt("pfh", 0)
PFD0 = opt("pfd0", 3)
BEARLY = opt("bearly", 0)
BLATE = opt("blate", 0)
B3LATE = opt("b3late", 0)
KVFL = opt("kvfl", "sc1")
FINE = opt("fine", 1)
G4AT = opt("g4at", 9)
NPF = opt("npf", 1)
PFW1 = opt("pfw1", 0)
PFBUB = opt("pfbub", 0)
DST = opt("dst", "")
DW = eval(opt("dw", "()")); DB = eval(opt("db", "(0,1,2,3,4,5,6,7,8,9,10,12,14)"))
VMC = opt("vmc", 5)
PRE0 = opt("pre0", 999)
DBGH = opt("dbgh", 0)
P1G = opt("p1g", 2)
HLIM = opt("hlim", 120)
HPRIO = opt("hprio", 0)
SENT = 0xFFFFFFFF
SKIP = opt("skip", "att_v,p_flag").split(",")
ROT1 = opt("rot1", 0); ROT3 = opt("rot3", 0); ROT4 = opt("rot4", 0)
BAR = opt("bar", 0)
NS1 = opt("ns1", 3)
ALIAS = opt("alias", 1)
TESTH1 = opt("testh1", 0)
TFL = opt("tfl", "nt")
TOUCH = opt("touch", 0)
LFL = opt("lfl", "").replace("_", " ")
PFL = opt("pfl", "sc1").replace("_", " ")
OFL = opt("ofl", "").replace("_", " ")
TS = opt("ts", 0)
SPFON = opt("spf", 1)
PFB = opt("pfb", 6)
MAP1 = opt("map1", 162)
WAKE = opt("wake", 0)
LCAP = opt("lcap", 10)
SPREAD = opt("spread", 0.8)
DPOS = opt("dpos", 0.25)
NOSY = opt("nosy", "")
EARLY = opt("early", 1)
DSLEEP = opt("dsleep", 1)
ONLY = opt("only", 0)
NOLOAD = opt("noload", "")
NOMFMA = opt("nomfma", 0)
KN = "sequential_preLN__sliding_block__dense_activation_silu__prompt_kernel"
SPLIT = 4

MB = 1 << 20; KB = 1024
WS_AR, WS_H, WS_AR2 = 0, 20 * MB, 24 * MB
AR_K, AR_V, AR_O = 0, 16 * KB, 32 * KB
WS_STAT = 40 * MB
WS_CS1 = 41 * MB
WS_CS2 = 41 * MB + 256 * KB
WS_RA = 41 * MB + 768 * KB
WS_RB = WS_RA + 8 * KB
WS_F1 = 41 * MB + 896 * KB
WS_F2 = WS_F1 + 4 * KB; WS_F3 = WS_F2 + 8 * KB; WS_F4 = WS_F3 + 4 * KB; WS_F5 = WS_F4 + 4 * KB
WS_F6 = WS_F5 + 8 * KB; WS_F7 = WS_F6 + 2 * KB; WS_F8 = WS_F7 + 1 * KB
WS_DBG = 48 * MB
WS_PART = 52 * MB
WS_BYTES = 256 * MB
LOG2E = 1.4426950408889634
LDS_BYTES = 160 * KB
MISC = LDS_BYTES - 6 * KB
L_RA, L_CS = MISC, MISC + 1024
L_DONE, L_FULL, L_HD, L_EP = MISC + 2048, MISC + 3072, MISC + 4096, MISC + 5120
L_MODE = L_HD + 512
vDW, vFR, vCNT, vFV = 252, 253, 254, 255
SPIN_MAX = 1 << 16
LSPIN_MAX = 1 << 22

def f32(x): return "0x%08x" % struct.unpack("<I", struct.pack("<f", x))[0]
def v(a, n=1): return f"v{a}" if n == 1 else f"v[{a}:{a+n-1}]"
def s(a, n=1): return f"s{a}" if n == 1 else f"s[{a}:{a+n-1}]"

SX, SWS, SB, SD = 4, 8, 12, 16
sWAVE, sW, sG, sR, sRB, sCB, sBC, sBH, sWM, sWN = 20, 21, 22, 23, 24, 25, 26, 27, 28, 29
pX, pWQKV, pWO, pW1, pW2, pOUT, pDBG, pWS = 48, 50, 52, 56, 58, 60, 62, 64
sMODE = 54; sT0 = 55
sAR, sBR, sM0A, sM0B, sM0H, sKS, sCNT, sNEED, sC0 = 66, 67, 68, 69, 70, 71, 72, 73, 74
sST = 76
sOWN, sROT, sAK, sBK = 60 + 40, 60 + 41, 98, 99


A = Asm()
def e(t): A.e(t)
STAMP_NAMES = {}
class Stamper:
    def __init__(self, role): self.role = role; self.names = ["start"]
    def __call__(self, name):
        if not STAMPS: return
        if name in SKIP: return
        n = len(self.names)
        assert n < 19, self.names
        e(f"{STAMP_OP} {s(sST,2)}\ns_waitcnt lgkmcnt(0)\ns_mov_b32 s{78+n}, s{sST}")
        self.names.append(name)
    def fork(self, role):
        t = Stamper(role); t.names = list(self.names); return t
    def flush(self):
        if not STAMPS: return
        self("end")
        n = len(self.names); self.names.append("nslow")
        e(f"s_mul_i32 s0, s0, {1000 if STAMP_OP == 's_memtime' else 100}\ns_add_u32 s{78+n}, s78, s0")
        STAMP_NAMES[self.role] = self.names
        e("s_waitcnt vmcnt(0)")
        for i in range(24): e(f"v_mov_b32 v{8+i}, s{78+min(i,len(self.names)-1)}")
        e(f"s_lshl_b32 s30, s2, 10\ns_lshl_b32 s31, s{sWAVE}, 7\ns_add_u32 s30, s30, s31\ns_add_u32 s30, s30, {WS_DBG}")
        e("v_mov_b32 v2, 0\ns_mov_b64 exec, 1")
        for i in range(6): e(f"buffer_store_dwordx4 {v(8+4*i,4)}, v2, {s(SWS,4)}, s30 offen offset:{16*i}")
        e("s_mov_b64 exec, -1")
        if DBGOUT >= 0 and self.role == "C":
            L = A.newlabel("nodbg")
            e(f"s_cmp_lg_u32 s2, {DBGOUT}\ns_cbranch_scc1 {L}\ns_cmp_lg_u32 s{sWAVE}, 0\ns_cbranch_scc1 {L}")
            srd(SD, pDBG, 256)
            for i in range(16): e(f"v_sub_u32 v{40+i}, v{8+2+i}, v8")
            e("s_mov_b64 exec, 1")
            for i in range(4): e(f"buffer_store_dwordx4 {v(40+4*i,4)}, v2, {s(SD,4)}, 0 offen offset:{16*i} sc1")
            e("s_mov_b64 exec, -1")
            A.label(L)

class VmQ:
    def __init__(self): self.q = []
    def add(self, tag, n=1): self.q += [tag] * n
    def has(self, tag): return tag in self.q
    def after(self, tag):
        if tag not in self.q: return 99
        return len(self.q) - 1 - max(i for i, t in enumerate(self.q) if t == tag)
    def wait(self, tag):
        if tag not in self.q: return
        n = self.after(tag)
        assert n <= 63, n
        e(f"s_waitcnt vmcnt({n})")
        self.q = self.q[len(self.q) - n:]
    def wait_all(self):
        e("s_waitcnt vmcnt(0)"); self.q = []

def set_exec(mask):
    if mask == (1 << 64) - 1: e("s_mov_b64 exec, -1")
    elif mask <= 64: e(f"s_mov_b64 exec, {mask}")
    else: e(f"s_mov_b32 exec_lo, {hex(mask & 0xffffffff)}\ns_mov_b32 exec_hi, {hex(mask >> 32)}")
def srd(d, base, nbytes):
    e(f"s_mov_b32 s{d}, s{base}\ns_and_b32 s{d+1}, s{base+1}, 0xffff\ns_mov_b32 s{d+2}, {nbytes}\ns_mov_b32 s{d+3}, 0x20000")
def xg_multi(op, regs, tmps):
    for sw in ("v_permlane16_swap_b32", "v_permlane32_swap_b32"):
        for r, t in zip(regs, tmps): e(f"v_mov_b32 v{t}, v{r}")
        for r, t in zip(regs, tmps): e(f"{sw} v{r}, v{t}")
        for r, t in zip(regs, tmps): e(f"{op} v{r}, v{r}, v{t}")
def round_bf16(r): e(f"v_cvt_pk_bf16_f32 v{r}, v{r}, v{r}\nv_and_b32 v{r}, 0xffff0000, v{r}")
def ln_finish(vsum, vm2, n):
    e(f"v_mul_f32 v{vsum}, {f32(1.0/n)}, v{vsum}"); round_bf16(vsum)
    e(f"v_mul_f32 v{vm2}, {f32(1.0/n)}, v{vm2}"); round_bf16(vm2)
    e(f"v_add_f32 v{vm2}, {f32(1e-5)}, v{vm2}"); round_bf16(vm2)
    e(f"v_sqrt_f32 v{vm2}, v{vm2}"); round_bf16(vm2)
    e(f"v_rcp_f32 v{vm2}, v{vm2}")
def pack(dst, c0, c1):
    e(f"v_cvt_pk_bf16_f32 v{dst}, v{c0}, v{c0+1}\nv_cvt_pk_bf16_f32 v{dst+1}, v{c0+2}, v{c0+3}")
    e(f"v_cvt_pk_bf16_f32 v{dst+2}, v{c1}, v{c1+1}\nv_cvt_pk_bf16_f32 v{dst+3}, v{c1+2}, v{c1+3}")
def unpack(lo, src): e(f"v_lshlrev_b32 v{lo}, 16, v{src}\nv_and_b32 v{lo+1}, 0xffff0000, v{src}")

def set_flag(soff, st="sc1", val=1, t=5):
    e(f"v_mov_b32 v{t}, 0\nv_mov_b32 v{t+1}, {val}\ns_mov_b64 exec, 1\nbuffer_store_dword v{t+1}, v{t}, {s(SWS,4)}, s{soff} offen {st}\ns_mov_b64 exec, -1")

def poll(soff, nlanes, voff=None, x2=False, srd_=SWS, mask=1, t=8, sleep=None):
    L = A.newlabel("poll"); X = A.newlabel("pollx")
    if voff is None:
        e(f"v_lshlrev_b32 v{t+2}, {3 if x2 else 2}, v1"); voff = t + 2
    if nlanes < 64: set_exec((1 << nlanes) - 1)
    e(f"s_mov_b32 s{sCNT}, 0")
    A.label(L)
    if x2: e(f"buffer_load_dwordx2 {v(t,2)}, v{voff}, {s(srd_,4)}, {soff} offen sc1")
    else: e(f"buffer_load_dword v{t}, v{voff}, {s(srd_,4)}, {soff} offen sc1")
    e(f"s_add_u32 s{sCNT}, s{sCNT}, 1\ns_cmp_gt_u32 s{sCNT}, {SPIN_MAX}\ns_waitcnt vmcnt(0)\ns_cbranch_scc1 {X}")
    if x2: e(f"v_and_b32 v{t}, v{t}, v{t+1}")
    e(f"v_and_b32 v{t}, {mask}, v{t}\nv_cmp_ne_u32 vcc, {mask}, v{t}")
    e(f"s_cbranch_vccz {X}\ns_sleep {PSLEEP if sleep is None else sleep}\ns_branch {L}")
    A.label(X)
    e("s_mov_b64 exec, -1")

sRDY = 40
def flags_refresh(Q, soff, voff, x2, shift=None):
    if flags_refresh.pending and not Q.has("look"):
        if x2: e("v_and_b32 v14, v14, v15")
        if shift: e(f"v_lshrrev_b32 v14, v{shift}, v14")
        e(f"v_and_b32 v14, 1, v14\nv_cmp_ne_u32 vcc, 1, v14\ns_and_b64 {s(sRDY,2)}, {s(sRDY,2)}, vcc")
        flags_refresh.pending = False
    if not flags_refresh.pending:
        e(f"s_cmp_eq_u64 {s(sRDY,2)}, 0\ns_cselect_b32 s30, {WS_BYTES}, s{soff}")
        e(f"buffer_load_dwordx2 v[14:15], v{voff}, {s(SWS,4)}, s30 offen sc1" if x2 else f"buffer_load_dword v14, v{voff}, {s(SWS,4)}, s30 offen sc1")
        Q.add("look"); flags_refresh.pending = True
flags_refresh.pending = False
def need_flags(bits, soff, voff, x2, shift=None):
    L, X = A.newlabel("nf"), A.newlabel("nfx")
    lo, hi = bits & 0xffffffff, bits >> 32
    def test():
        if lo and hi: e(f"s_and_b32 s30, s{sRDY}, {hex(lo)}\ns_and_b32 s31, s{sRDY+1}, {hex(hi)}\ns_or_b32 s30, s30, s31")
        elif lo: e(f"s_and_b32 s30, s{sRDY}, {hex(lo)}")
        else: e(f"s_and_b32 s30, s{sRDY+1}, {hex(hi)}")
    test()
    e(f"s_cbranch_scc0 {X}")
    A.label(L)
    if x2: e(f"buffer_load_dwordx2 v[8:9], v{voff}, {s(SWS,4)}, s{soff} offen sc1\ns_waitcnt vmcnt(0)\nv_and_b32 v8, v8, v9")
    else: e(f"buffer_load_dword v8, v{voff}, {s(SWS,4)}, s{soff} offen sc1\ns_waitcnt vmcnt(0)")
    if shift: e(f"v_lshrrev_b32 v8, v{shift}, v8")
    e(f"v_and_b32 v8, 1, v8\nv_cmp_ne_u32 {s(sRDY,2)}, 1, v8\ns_add_u32 s{sCNT}, s{sCNT}, 1\ns_cmp_gt_u32 s{sCNT}, {SPIN_MAX}\ns_cbranch_scc1 {X}")
    test()
    e(f"s_cbranch_scc1 {L}")
    A.label(X)

def spoll(srd_, soff, n16, mask, base=32):
    X = A.newlabel("spx")
    e("s_mov_b32 s31, -1")
    for k in range(2 * n16):
        e(f"s_add_u32 s30, {soff}, {32*k}\ns_buffer_load_dwordx8 {s(base,8)}, {s(srd_,4)}, s30\ns_waitcnt lgkmcnt(0)")
        for i in range(1, 4): e(f"s_and_b64 {s(base,2)}, {s(base,2)}, {s(base+2*i,2)}")
        e(f"s_and_b32 s31, s31, s{base}\ns_and_b32 s31, s31, s{base+1}")
    e(f"s_and_b32 s31, s31, {mask}\ns_cmp_eq_u32 s31, {mask}\ns_cbranch_scc1 {X}")
    poll(soff, 16 * n16, srd_=srd_, mask=mask, t=8, sleep=16)
    A.label(X)

def lds_wait(vaddr, need, vt, sleep=1, off=0):
    L = A.newlabel("lw"); X = A.newlabel("lwx")
    A.label(L)
    e(f"ds_read_b32 v{vt}, v{vaddr} offset:{off}\ns_waitcnt lgkmcnt(0)\nv_cmp_gt_u32 vcc, {need}, v{vt}\ns_cbranch_vccz {X}")
    if sleep: e(f"s_sleep {sleep}")
    e(f"s_add_u32 s3, s3, 1\ns_cmp_lt_u32 s3, {LSPIN_MAX}\ns_cbranch_scc1 {L}")
    A.label(X)
OFF_DONE, OFF_FULL, OFF_HD, OFF_EP = 0, 1024, 2048, 3072
def sync_regs():
    e(f"s_lshl_b32 s30, s{sW}, 8\ns_add_u32 s30, s30, {L_DONE}\nv_lshl_add_u32 v{vDW}, v1, 2, s30")
    e(f"v_and_b32 v{vFR}, 3, v1\nv_mul_u32_u24 v{vFR}, 260, v{vFR}\nv_add_u32 v{vFR}, {L_DONE}, v{vFR}")
def post(off, val, t=vFV):
    e(f"v_mov_b32 v{t}, {val}\nds_write_b32 v{vDW}, v{t} offset:{off}")
def wait_rows(off, need, sleep=1): lds_wait(vFR, need, vFV, sleep=sleep, off=off)

class Gemm:
    PA, PB, PH = 232, 236, 240
    def __init__(self, name, base, TM, TN, NK, NS, KBsrc, ldb, kperm, araw=False, NSB=None, bslot=None, RP=0, alay="rt"):
        self.alay = "raw" if araw else alay
        self.name, self.base, self.TM, self.TN, self.NK, self.NS = name, base, TM, TN, NK, NS
        self.KB, self.ldb, self.kperm, self.araw, self.RP = KBsrc, ldb, kperm, araw, RP
        self.NSB = NSB or NS
        self.MT, self.NT = TM // 32, TN // 32
        self.nfull, self.half = TN // 64, (TN % 64) != 0
        self.a_stage = TM * 128
        b0 = NS * self.a_stage
        self.b0 = b0
        self.b_base = [b0 + j * self.NSB * 8192 for j in range(self.nfull)]
        self.h_base = b0 + self.nfull * self.NSB * 8192
        self.bslot = bslot or (lambda step: step % self.NSB)
        assert self.h_base + (self.NSB * 4096 if self.half else 0) <= MISC
        MT, NT = self.MT, self.NT
        self.FA = [8, 8 + 4 * MT + 4 * NT]
        self.FB = [self.FA[0] + 4 * MT, self.FA[1] + 4 * MT]
        nxt = self.FA[1] + 4 * MT + 4 * NT
        self.VA = nxt; nxt += 8 if self.alay == "bm" else 2
        self.VB = nxt; nxt += NT
        self.bhi = self.NSB * 8192 > 65536
        self.VB2 = nxt
        if self.bhi: nxt += NT
        nxt = (nxt + 3) // 4 * 4
        self.ACC = nxt; nxt += MT * NT * 4
        self.VX = nxt
        assert nxt <= vDW
        self.RTW = TM // 32
    def acc(self, mt, nt): return self.ACC + (nt * self.MT + mt) * 4
    def swapped(self, nt): return True
    def blk_delta(self, j): return 128 * j

    def c_setup(self):
        MT = self.MT
        if self.araw:
            e(f"""
s_lshl_b32 s30, s{sWM}, 13
v_lshl_add_u32 v5, v4, 7, s30
v_lshrrev_b32 v6, 1, v4
v_xor_b32 v6, v6, v3
v_lshl_add_u32 v{self.VA}, v6, 4, v5
v_xor_b32 v6, 4, v6
v_lshl_add_u32 v{self.VA+1}, v6, 4, v5
""")
        elif self.alay == "bm":
            for p in range(4):
                e(f"s_add_u32 s30, s{sKS}, {p}\ns_and_b32 s30, s30, 3\ns_lshl_b32 s30, s30, 11\ns_lshl_b32 s31, s{sWM}, 14\ns_add_u32 s30, s30, s31")
                e(f"v_lshl_add_u32 v{self.VA+p}, v1, 4, s30\nv_add_u32 v{self.VA+4+p}, 0x10000, v{self.VA+p}")
        else:
            e(f"s_mul_i32 s30, s{sWM}, {MT*2048}\nv_lshl_add_u32 v{self.VA}, v1, 4, s30\nv_add_u32 v{self.VA+1}, 0x10000, v{self.VA}")
        e("v_bfe_u32 v5, v1, 2, 2\nv_and_b32 v6, 3, v1")
        if self.kperm: e("v_lshl_add_u32 v7, v3, 2, v5\nv_bfe_u32 v2, v7, 1, 2")
        else: e("v_lshl_add_u32 v7, v3, 3, v5\nv_lshrrev_b32 v2, 1, v5\nv_and_b32 v8, 1, v3\nv_lshl_or_b32 v2, v8, 1, v2")
        e("v_mov_b32 v9, v7\nv_lshlrev_b32 v7, 7, v7\nv_lshl_add_u32 v7, v6, 3, v7")
        for t, (kind, blk, seg) in enumerate(self.tiles()):
            vb = self.VB + t
            if kind == "F":
                e(f"s_mul_i32 s30, s{sWN}, {seg[1]}\ns_add_u32 s30, s30, {seg[0]}")
                e(f"v_xor_b32 v8, s30, v2\nv_lshl_add_u32 v{vb}, v8, 5, v7")
                e(f"s_mul_i32 s30, s{sWN}, {blk[1]*self.NSB*8192}\ns_add_u32 s30, s30, {self.b_base[0] + blk[0]*self.NSB*8192}")
                e(f"v_add_u32 v{vb}, s30, v{vb}")
            else:
                e(f"v_bfe_u32 v8, v9, 2, 1\nv_xor_b32 v8, s{sWN}, v8\nv_lshlrev_b32 v8, 5, v8")
                e(f"v_lshl_add_u32 v8, v9, 6, v8\nv_lshl_add_u32 v8, v6, 3, v8\nv_add_u32 v{vb}, {self.h_base}, v8")
            if self.bhi: e(f"v_add_u32 v{self.VB2+t}, 0x10000, v{vb}")
        if not self.czero():
            for r in range(self.ACC, self.ACC + self.MT * self.NT * 4, 2): e(f"v_mov_b64 {v(r,2)}, 0")
    def reads(self, step, sub, fs):
        out = []
        kinds = [t[0] for t in self.tiles()]
        sa, sb = step % self.NS, self.bslot(step)
        for t in range(self.NT):
            for hi in range(2):
                rows = 32 * sub + (16 if self.kperm else 4) * hi
                off = sb * 8192 + rows * 128 if kinds[t] == "F" else sb * 4096 + rows * 64
                base = self.VB + t
                if off > 0xffff: base, off = self.VB2 + t, off - 0x10000
                out.append(f"ds_read_b64_tr_b16 {v(self.FB[fs]+4*t+2*hi,2)}, v{base} offset:{off}")
            if t == 0:
                for mt in range(self.MT):
                    if self.araw: base, off = self.VA + sub, sa * self.a_stage + mt * 2048
                    elif self.alay == "bm":
                        off = sa * self.a_stage + sub * 8192 + (mt & 1) * 1024
                        base = self.VA + (mt >> 1) + 4 * (off >> 16); off &= 0xffff
                    else:
                        off = sa * self.a_stage + mt * 2048 + sub * 1024
                        base = self.VA + (off >> 16); off &= 0xffff
                    out.append(f"ds_read_b128 {v(self.FA[fs]+4*mt,4)}, v{base} offset:{off}")
        return out
    def czero(self): return self.NSB != self.NS or (self.NK - 1) % self.NS != 0
    def mfmas(self, fs, zero=False):
        out = []
        for t in range(self.NT):
            for mt in (range(self.MT) if t % 2 == 0 else reversed(range(self.MT))):
                a, w, c = v(self.FA[fs] + 4 * mt, 4), v(self.FB[fs] + 4 * t, 4), v(self.acc(mt, t), 4)
                ci = "0" if zero else c
                out.append(f"v_mfma_f32_16x16x32_bf16 {c}, {w}, {a}, {ci}" if self.swapped(t) else
                           f"v_mfma_f32_16x16x32_bf16 {c}, {a}, {w}, {ci}")
        if NOMFMA: out = ["s_nop 0"] * len(out)
        return out
    def c_loop(self, ST, pre_last=None, last_fill=()):
        NS, NK, n = self.NS, self.NK, self.name
        def inter(m, r):
            for i in range(max(len(m), len(r))):
                if i < len(m): e(m[i])
                if i < len(r): e(r[i])
        def step(k, last=False):
            e("s_waitcnt lgkmcnt(0)")
            inter(self.mfmas(0, k == 0 and self.czero()), self.reads(k, 1, 1))
            e("s_waitcnt lgkmcnt(0)\ns_barrier")
            inter(self.mfmas(1), list(last_fill) if last else self.reads(k + 1, 0, 0))
        e("s_barrier")
        ST(n + "_go")
        for r in self.reads(0, 0, 0): e(r)
        body = NK - 1
        if self.NSB != NS:
            for k in range(body): step(k)
        else:
            k = 0
            for i in range(body % NS):
                step(k); k += 1
            e(f"s_mov_b32 s{sCNT}, {body // NS}")
            A.label(f"{n}_cloop")
            for i in range(NS):
                step(k); k += 1
            e(f"s_sub_u32 s{sCNT}, s{sCNT}, 1\ns_cmp_lg_u32 s{sCNT}, 0\ns_cbranch_scc1 {n}_cloop")
        if pre_last: pre_last()
        step(NK - 1, last=True)
        ST(n + "_end")

    def p_setup_b(self, w=sW):
        ldb, PB = self.ldb, self.PB
        e(f"""
s_lshl_b32 s{sM0B}, s{w}, 12
s_lshl_b32 s{sM0H}, s{w}, 11
v_lshrrev_b32 v246, 3, v1
s_lshl_b32 s30, s{w}, 5
v_add_u32 v246, s30, v246
v_mul_u32_u24 v246, {ldb}, v246
v_and_b32 v247, 1, v1
v_lshl_add_u32 v246, v247, 4, v246
v_add_u32 v246, s{sBC}, v246
v_bfe_u32 v247, v1, 1, 2
""")
        if self.kperm:
            e(f"v_xor_b32 v245, v247, v3\nv_lshl_add_u32 v{PB}, v245, 5, v246\nv_add_u32 v{PB+1}, {8*ldb-1024}, v{PB}")
        else:
            e(f"v_and_b32 v245, 1, v3\nv_xor_b32 v245, v247, v245\nv_lshl_add_u32 v{PB}, v245, 5, v246")
            e(f"v_xor_b32 v245, 2, v245\nv_lshl_add_u32 v{PB+1}, v245, 5, v246\nv_add_u32 v{PB+1}, {8*ldb-1024}, v{PB+1}")
        e(f"v_add_u32 v{PB+2}, {16*ldb-2048}, v{PB}\nv_add_u32 v{PB+3}, {16*ldb-2048}, v{PB+1}")
        if self.half:
            e(f"""
v_lshrrev_b32 v246, 2, v1
v_add_u32 v246, s30, v246
v_mul_u32_u24 v246, {ldb}, v246
v_and_b32 v247, 1, v1
v_lshl_add_u32 v246, v247, 4, v246
v_add_u32 v246, s{sBH}, v246
v_bfe_u32 v247, v1, 1, 1
v_and_b32 v245, 1, v3
v_xor_b32 v245, v247, v245
v_lshl_add_u32 v{self.PH}, v245, 5, v246
v_add_u32 v{self.PH+1}, {16*ldb-1024}, v{self.PH}
""")
    def p_setup_a(self):
        PA = self.PA
        if self.araw:
            e(f"""
s_lshl_b32 s{sM0A}, s{sW}, 13
v_lshrrev_b32 v246, 3, v1
s_lshl_b32 s30, s{sW}, 6
v_add_u32 v246, s30, v246
v_lshlrev_b32 v246, 11, v246
v_and_b32 v247, 7, v1
v_xor_b32 v247, v247, v3
v_lshl_add_u32 v{PA}, v247, 4, v246
v_xor_b32 v247, 4, v247
v_lshl_add_u32 v{PA+1}, v247, 4, v246
v_add_u32 v{PA+1}, {8*2048-1024}, v{PA+1}
v_add_u32 v{PA+2}, {16*2048-2048}, v{PA}
v_add_u32 v{PA+3}, {16*2048-2048}, v{PA+1}
""")
        else:
            e(f"s_mul_i32 s{sM0A}, s{sW}, {self.RTW*2048}\ns_mul_i32 s30, s{sW}, {self.RTW*self.KB*1024}\nv_lshl_add_u32 v{PA}, v1, 4, s30")
            e(f"v_add_u32 v{PA+1}, {self.KB*1024-2048}, v{PA}")
    astride = 2048
    rot = True
    arot = True
    korder = list(range(16))
    def kbase(self, dst, base, step, stride):
        e(f"s_add_u32 s{dst}, s{base}, {self.korder[step] * stride}")
    def a_src(self, i, step): e(f"s_add_u32 s31, s{sAK}, {2*i*self.KB*1024}")
    def groups_a(self, step):
        st = step % self.NS
        out = []
        for gi in range(self.RTW // 2):
            def fn(gi=gi):
                if gi == 0 and self.arot: self.kbase(sAK, sAR, step, 128 if self.araw else self.astride)
                e(f"s_add_u32 m0, s{sM0A}, {st*self.a_stage + gi*4096}")
                if self.araw:
                    e(f"s_add_u32 s31, s{sAK}, {gi*32*2048}")
                    for i in range(4): e(f"buffer_load_dwordx4 v{self.PA+i}, {s(SX,4)}, s31 offen offset:{i*1024} lds")
                else:
                    self.a_src(gi, step)
                    for i in range(4): e(f"buffer_load_dwordx4 v{self.PA+(i>>1)}, {s(SWS,4)}, s31 offen offset:{i*1024} sc1 lds")
            out.append((step, 4, fn))
        return out
    def b_parts(self, step):
        sb = self.bslot(step); ko = 0 if self.rot else step * 64 * self.ldb
        out = [(sM0B, self.b_base[j] + sb * 8192, ko + self.blk_delta(j), self.PB, 4) for j in range(self.nfull)]
        if self.half: out.append((sM0H, self.h_base + sb * 4096, ko, self.PH, 2))
        return out
    def groups_b(self, step):
        out = []
        for idx, (m0s, lc, sc, vb, n) in enumerate(self.b_parts(step)):
            def fn(m0s=m0s, lc=lc, sc=sc, vb=vb, n=n, idx=idx):
                if idx == 0 and self.rot: self.kbase(sBK, sBR, step, 64 * self.ldb)
                e(f"s_add_u32 m0, s{m0s}, {lc}\ns_add_u32 s31, s{sBK if self.rot else sBR}, {sc}")
                for i in range(n): e(f"buffer_load_dwordx4 v{vb+i}, {s(SB,4)}, s31 offen offset:{i*1024} {'nt' if self.name == 'qkv' and step < 2 * NTK else ''} lds")
            out.append((step, n, fn))
        return out
    def issue_b(self, Q, step):
        for tag, n, fn in self.groups_b(step):
            fn(); Q.add(tag, n)
    def p_loop(self, Q, ST, b_pre, npf=0, every=1, gate=None, tail=None, look=None):
        NS, NK, NSB = self.NS, self.NK, self.NSB
        def iss(g):
            for tag, n, fn in g:
                fn(); Q.add(tag, n)
        ga = lambda k: ([(k, 0, lambda: gate(k))] if gate else []) + self.groups_a(k)
        def gr(k):
            kb = k - NS + NSB
            return (self.groups_b(kb) if b_pre <= kb < NK else []) + ga(k)
        first = lambda k: (self.groups_b(k) if k >= b_pre else []) + ga(k)
        if gate: e(f"s_mov_b64 {s(sRDY,2)}, -1\ns_mov_b32 s{sCNT}, 0")
        flags_refresh.pending = False
        iss(first(0))
        if gate: ST(self.name + "_seen")
        if BSEEN and self.name == "w1": post(OFF_FULL, 1)
        g1 = first(1)
        P1G_ = (99 if self.name == 'w2' else 0) if gate else P1G
        iss(g1[:P1G_])
        for i in range(NK):
            Q.wait(i)
            if self.name == DST and i in DW: ST(f"w{i}")
            e("s_barrier")
            if self.name == DST and i in DB: ST(f"b{i}")
            if look and (ASYNC or self.name == 'w2') and i in look[0]: flags_refresh(Q, *look[1])
            if i == 0:
                iss(g1[P1G_:])
                for k in range(2, NS): iss(first(k))
            elif i - 1 + NS < NK: iss(gr(i - 1 + NS))
            if tail and i - 1 + NS == NK - 1 + TAILD: tail()
            if (self.name == "qkv" and i == 0) or (CWARM > 1 and i == NK - 2): code_warm()
            if npf and (PFD0 if self.name == 'qkv' else 1) <= i < NK - 2 and i % every == 0: pf_step(npf + (1 if self.name == 'w1' and i % 3 != 0 else 0))
        e("s_barrier")
        ST(self.name + "_dend")

class QKV(Gemm):
    def __init__(self): super().__init__("qkv", 0, 128, 192, 16, NS1, 32, 6144, False, araw=True)
    def tiles(self): return [("F", (t >> 1, 0), (t & 1, 2)) for t in range(6)]
    def swapped(self, nt): return nt < 4
    def blk_delta(self, j): return 2048 * j
class WO(Gemm):
    def __init__(self): super().__init__("wo", 16, 128, 64, 16, 4, 32, 2048, True, NSB=NSB3, bslot=lambda k: (k + 5) % NSB3)
    def tiles(self): return [("F", (0, 0), (t, 2)) for t in range(2)]
    def p_setup_a(self):
        e(f"s_lshl_b32 s{sM0A}, s{sW}, 13\nv_lshl_add_u32 v{self.PA}, v1, 4, s{sM0A}\nv_mov_b32 v{self.PA+1}, v{self.PA}")
        e(f"s_lshl_b32 s{sAR}, s{sRB}, 16\ns_add_u32 s{sAR}, s{sAR}, {WS_AR + AR_O}")
    astride = MB
    korder = [k for k in range(16) if k % 8 != 3] + [3, 11] if KORD else list(range(16))
    def a_src(self, i, step): e(f"s_add_u32 s31, s{sAK}, {i*4096}")
class W1(Gemm):
    def __init__(self): super().__init__("w1", 32, 128, 224, 16, 3, 32, 7168, True)
    korder = list(range(0, 16, 2)) + list(range(1, 16, 2)) if KORD else list(range(16))
    def tiles(self): return [("F", (0, 2), (t, 0)) for t in range(4)] + [("F", (1, 0), (t, 2)) for t in range(2)] + [("H", None, None)]
class W2(Gemm):
    def __init__(self): super().__init__("w2", 48, 256, 128, 14, 3, 112, 2048, True, alay="bm")
    arot = False
    def tiles(self): return [("F", (0, 1), (t, 0)) for t in range(4)]
    def p_setup_a(self):
        e(f"s_lshl_b32 s{sM0A}, s{sW}, 14\nv_lshlrev_b32 v{self.PA}, 4, v1\nv_mov_b32 v{self.PA+1}, v{self.PA}")
        h1_base(sAR)
        e(f"s_lshl_b32 s30, s{sG}, 5\ns_bfe_u32 s31, s{sRB}, 0x20001\ns_add_u32 s30, s30, s31\ns_lshl_b32 s31, s{sW}, 4\ns_add_u32 s30, s30, s31\ns_lshl_b32 s30, s30, 16\ns_add_u32 s{sAR}, s{sAR}, s30")
    def blocks(self):
        if not EARLY5: return [(q // 7, q % 7, 1) for q in range(28)]
        early = [(c, (c & 1) + k, 1) for c in range(4) for k in (0, 4, 1, 5)]
        late = [(c, kb, 2) for c in range(4) for kb in range(7) if (c, kb, 1) not in early]
        return early + late
    def a_src(self, i, step):
        c, kb, _ = self.blocks()[2 * step + (i >> 1)]
        e(f"s_add_u32 s31, s{sAR}, {c*256*KB + kb*8192 + (i&1)*4096}")
    def kbase(self, dst, base, step, stride):
        o = [(c * 7 + kb) * 32 * self.ldb for c, kb, _ in self.blocks()[2 * step:2 * step + 2]]
        e(f"s_mul_i32 s{dst}, s{sWN}, {o[1] - o[0] - 32*self.ldb}\ns_add_u32 s{dst}, s{dst}, {o[0]}\ns_add_u32 s{dst}, s{dst}, s{base}")
G1, G3, G4, G5 = QKV(), WO(), W1(), W2()
_pf = opt("pfs", "X,Pv,X").split(",")
PFS = [(_pf[0][0], _pf[0][1:], pWO, 2 * MB, True, 249), (_pf[1][0], _pf[1][1:], pW1, 1024 * 7168, False, 248), (_pf[2][0], _pf[2][1:], pW2, 3584 * 2048, False, 250)]
L_K, L_V, L_Q = 0, 48 * KB, 96 * KB

def own_arena(dst, add=0):
    e(f"s_add_u32 s{dst}, s{sOWN}, {WS_AR + add}")
def h1_base(dst):
    e(f"s_cmp_lg_u32 s{sMODE}, 0\ns_cselect_b32 s{dst}, {WS_AR2}, {WS_AR if ALIAS else WS_AR2}")
def rowmajor_voff(dst, t):
    e(f"v_and_b32 v{t}, 1, v3\nv_lshlrev_b32 v{t}, 1, v{t}\nv_lshrrev_b32 v{dst}, 1, v3\nv_or_b32 v{t}, v{t}, v{dst}")
    e(f"v_lshlrev_b32 v{t}, 4, v{t}\nv_lshl_add_u32 v{dst}, v4, 11, v{t}")
def roles_84(rb=sRB, cb=sCB):
    e(f"s_and_b32 s{rb}, s{sG}, 1\ns_lshl_b32 s{rb}, s{rb}, 3\ns_and_b32 s30, s{sR}, 7\ns_add_u32 s{rb}, s{rb}, s30")
    e(f"s_lshr_b32 s{cb}, s{sG}, 1\ns_lshl_b32 s{cb}, s{cb}, 2\ns_lshr_b32 s30, s{sR}, 3\ns_add_u32 s{cb}, s{cb}, s30")
def roles_p1(rb=sRB, cb=sCB):
    if MAP1 == 84: return roles_84(rb, cb)
    e(f"s_lshr_b32 s{rb}, s{sR}, 1\ns_and_b32 s30, s{sR}, 1\ns_lshl_b32 s{cb}, s{sG}, 1\ns_add_u32 s{cb}, s{cb}, s30")
def roles_48(rb=sRB, cb=sCB):
    if not KORD:
        e(f"s_and_b32 s{rb}, s{sG}, 3\ns_lshl_b32 s{rb}, s{rb}, 2\ns_and_b32 s30, s{sR}, 3\ns_add_u32 s{rb}, s{rb}, s30")
        e(f"s_lshr_b32 s{cb}, s{sG}, 2\ns_lshl_b32 s{cb}, s{cb}, 3\ns_lshr_b32 s30, s{sR}, 2\ns_add_u32 s{cb}, s{cb}, s30")
        return
    e(f"s_and_b32 s{rb}, s{sG}, 3\ns_lshl_b32 s{rb}, s{rb}, 2\ns_bfe_u32 s30, s{sR}, 0x20001\ns_add_u32 s{rb}, s{rb}, s30")
    e(f"s_lshr_b32 s{cb}, s{sG}, 2\ns_lshl_b32 s{cb}, s{cb}, 2\ns_lshr_b32 s30, s{sR}, 3\ns_add_u32 s{cb}, s{cb}, s30\ns_lshl_b32 s{cb}, s{cb}, 1\ns_and_b32 s30, s{sR}, 1\ns_add_u32 s{cb}, s{cb}, s30")
def roles_w2(rb=sRB, cb=sCB, ks=sKS):
    e(f"s_and_b32 s{rb}, s{sG}, 1\ns_lshl_b32 s{rb}, s{rb}, 2\ns_and_b32 s30, s{sR}, 3\ns_add_u32 s{rb}, s{rb}, s30\ns_lshl_b32 s{rb}, s{rb}, 1")
    e(f"s_lshr_b32 s{cb}, s{sR}, 2\ns_lshr_b32 s{ks}, s{sG}, 1")
def b_src_wo(cb=sCB):
    srd(SB, pWO, 2 * MB); e(f"s_lshl_b32 s{sBC}, s{cb}, 7\ns_mov_b32 s{sBR}, 0\ns_lshl_b32 s{sROT}, s{cb}, 1\ns_and_b32 s{sROT}, s{sROT}, {15 if ROT3 else 0}")
def b_src_w1():
    srd(SB, pW1, 1024 * 7168)
    e(f"""
s_mul_i32 s{sBH}, s{sCB}, 448
s_and_b32 s30, s{sCB}, 1
s_lshl_b32 s{sBC}, s30, 6
s_add_u32 s{sBC}, s{sBC}, s{sBH}
s_xor_b32 s30, s30, 1
s_mul_i32 s30, s30, 384
s_add_u32 s{sBH}, s{sBH}, s30
s_mov_b32 s{sBR}, 0
s_lshl_b32 s{sROT}, s{sCB}, 2
s_and_b32 s{sROT}, s{sROT}, {15 if ROT4 else 0}
""")
def b_src_w2():
    srd(SB, pW2, 3584 * 2048); e(f"s_lshl_b32 s{sBC}, s{sCB}, 8\ns_mul_i32 s{sBR}, s{sKS}, {G5.NK*64*2048}")
def flag_addr(dst, base, hi, lo, nw, wave):
    e(f"s_lshl_b32 s{dst}, s{hi}, 4\ns_add_u32 s{dst}, s{dst}, s{lo}\ns_mul_i32 s{dst}, s{dst}, {nw}")
    if wave is not None: e(f"s_add_u32 s{dst}, s{dst}, s{wave}")
    e(f"s_lshl_b32 s{dst}, s{dst}, 2\ns_add_u32 s{dst}, s{dst}, {base}")
def dual(fn, sreg):
    S, X = A.newlabel("slowst"), A.newlabel("stx")
    e(f"s_cmp_lg_u32 s{sreg}, 0\ns_cbranch_scc1 {S}")
    fn(LFL)
    e(f"s_branch {X}")
    A.label(S)
    fn("sc1")
    A.label(X)

def attn_setup():
    e(f"v_lshlrev_b32 v5, 2, v3\nv_mov_b32 v6, {f32(-1e30)}")
    for k in range(4):
        e(f"v_add_u32 v7, {k}, v5\nv_cmp_gt_u32 vcc, v7, v4\nv_cndmask_b32 v{56+k}, v6, 0, vcc\nv_cndmask_b32 v{60+k}, 0, v6, vcc".replace("v_cndmask_b32 v%d, v6, 0, vcc" % (56 + k), "v_cndmask_b32_e64 v%d, v6, 0, vcc" % (56 + k)))
    e(f"""
s_lshl_b32 s36, s{sRB}, 2
s_add_u32 s36, s36, s38
s_sub_i32 s36, 8, s36
s_max_i32 s36, s36, 0
s_mul_i32 s37, s{sWN}, 24
s_lshl_b32 s39, s38, 1
s_add_u32 s37, s37, s39
s_lshl_b32 s37, s37, 10
v_lshl_add_u32 v5, v1, 4, s37
v_add_u32 v7, {L_V}, v5
""")
    own_arena(34, AR_O)
    e(f"s_lshl_b32 s35, s38, 12\ns_add_u32 s34, s34, s35\ns_lshl_b32 s35, s{sWN}, 10\ns_add_u32 s34, s34, s35\ns_add_u32 s35, s34, 2048")
    flag_addr(33, WS_F2, sRB, sCB, 8, sWAVE)

def attention(ST, is_p, Q=None):
    n = "attp" if is_p else "attc"
    S = 64; KF = 24; VF = 24; O = 208; MX = 232
    def sr(qt, u): return S + (qt * 18 + u) * 4
    dead = lambda qt, u: (qt == 0 and u == 17) or (qt == 1 and u == 0)
    def PF(pos):
        for role, at, ptr, nbytes, rev, dst in PFS:
            if role == ("P" if is_p else "C") and at == pos:
                srd(SB, ptr, nbytes)
                e(f"s_xor_b32 s30, s2, {255 if rev else 0}\ns_lshl_b32 s30, s30, 2\ns_add_u32 s30, s30, s{sW}\ns_lshl_b32 s30, s30, 13\nv_lshlrev_b32 v251, 7, v1")
                e(f"buffer_load_dword v{dst}, v251, {s(SB,4)}, s30 offen")
                if is_p: Q.add("pf")
    PF("nb")
    if is_p: Q.wait("nk")
    e("s_waitcnt lgkmcnt(0)\ns_barrier")
    if is_p:
        e(f"s_lshl_b32 s30, s{sW}, 11\ns_add_u32 s30, s30, {L_Q}\nv_lshl_add_u32 v2, v1, 4, s30\nds_read_b128 v[8:11], v2\nds_read_b128 v[12:15], v2 offset:1024")
    ST("att_k")
    for u in range(8): e(f"ds_read_b128 {v(KF+4*u,4)}, v5 offset:{L_K + u*1024}")
    for k in range(4): e(f"v_mov_b32 v{16+k}, 0x3f803f80")
    for k in range(4): e(f"v_mov_b32 v{MX+k}, v6")
    for r in range(O, O + 24, 2): e(f"v_mov_b64 {v(r,2)}, 0")
    def s_phase(generic):
        pend = []
        def maxes(k):
            for _ in range(k):
                if pend: e(pend.pop(0))
        for u in range(18):
            issued = min(18, u + 8)
            e(f"s_waitcnt lgkmcnt({issued - (u+1)})")
            if generic and u % 2 == 0 and u < 16:
                e(f"s_cmp_gt_u32 s36, {u//2}\ns_cselect_b32 s30, {f32(-1e30)}, 0")
                for k in range(4): e(f"v_mov_b32 v{20+k}, s30")
            for qt in range(2):
                if dead(qt, u): continue
                c = "v[56:59]" if u == qt else "v[60:63]" if u == 16 + qt else "0"
                if generic and u < 16: c = "v[20:23]"
                e(f"v_mfma_f32_16x16x32_bf16 {v(sr(qt,u),4)}, {v(KF+4*(u%8),4)}, {v(8+4*qt,4)}, {c}")
                if len(pend) >= 8: maxes(2)
                r = sr(qt, u)
                pend.append(f"v_max3_f32 v{MX+2*qt}, v{r}, v{r+1}, v{MX+2*qt}")
                pend.append(f"v_max3_f32 v{MX+2*qt+1}, v{r+2}, v{r+3}, v{MX+2*qt+1}")
            if u + 8 < 18: e(f"ds_read_b128 {v(KF+4*(u%8),4)}, v5 offset:{L_K + (u+8)*1024}")
        maxes(99)
    Lg, Lx = A.newlabel("sgen"), A.newlabel("sx")
    e(f"s_cmp_lg_u32 s36, 0\ns_cbranch_scc1 {Lg}")
    s_phase(False)
    e(f"s_branch {Lx}")
    A.label(Lg)
    s_phase(True)
    A.label(Lx)
    if is_p: Q.wait("nv")
    e("s_barrier")
    ST("att_v")
    PF("v")
    CSC = (32 ** -0.5) * LOG2E
    e(f"s_mov_b32 s{sC0}, {f32(CSC)}\ns_mov_b32 s{sC0+1}, {f32(CSC)}")
    for q in range(6): e(f"ds_read_b128 {v(VF+4*q,4)}, v7 offset:{q*1024}")
    e(f"v_max_f32 v{MX}, v{MX}, v{MX+1}\nv_max_f32 v{MX+2}, v{MX+2}, v{MX+3}")
    xg_multi("v_max_f32", [MX, MX + 2], [MX + 1, MX + 3])
    e(f"v_mul_f32 v{MX}, {f32(-CSC)}, v{MX}\nv_mul_f32 v{MX+2}, {f32(-CSC)}, v{MX+2}")
    def pv(p):
        out = []
        for qt in range(2):
            P = v(sr(qt, 2 * p), 4)
            for dt in range(2):
                o = v(O + 12 * qt + 4 * dt, 4)
                out.append(f"v_mfma_f32_16x16x32_bf16 {o}, {v(VF+4*((2*p+dt)%8),4)}, {P}, {o}")
            o = v(O + 12 * qt + 8, 4)
            out.append(f"v_mfma_f32_16x16x32_bf16 {o}, v[16:19], {P}, {o}")
        return out
    for p in range(10):
        va = []
        if p < 9:
            live = [(qt, u) for qt in range(2) for u in (2 * p, 2 * p + 1) if not dead(qt, u)]
            for qt, u in live:
                r = sr(qt, u)
                for h in range(2): va.append(f"v_pk_fma_f32 {v(r+2*h,2)}, {v(r+2*h,2)}, {s(sC0,2)}, {v(MX+2*qt,2)} op_sel_hi:[1,1,0]")
            for qt, u in live:
                for k in range(4): va.append(f"v_exp_f32 v{sr(qt,u)+k}, v{sr(qt,u)+k}")
            for qt, u in live:
                r = sr(qt, u); dst = sr(qt, 2 * p) + 2 * (u & 1)
                va.append(f"v_cvt_pk_bf16_f32 v{dst}, v{r}, v{r+1}"); va.append(f"v_cvt_pk_bf16_f32 v{dst+1}, v{r+2}, v{r+3}")
            if p == 8: va.append(f"v_mov_b64 {v(sr(0,16)+2,2)}, 0")
            if p == 0: va.append(f"v_mov_b64 {v(sr(1,0),2)}, 0")
        mm = pv(p - 1) if p > 0 else []
        if p > 0:
            issued = min(18, 2 * (p - 1) + 6)
            e(f"s_waitcnt lgkmcnt({issued - 2*p})")
        PF(f'pv{p}')
        gap = max(1, len(va) // 7)
        for i, x in enumerate(va):
            e(x)
            if i >= 1 and (i - 1) % gap == 0 and mm: e(mm.pop(0))
        for x in mm: e(x)
        if p > 0:
            for b in (2 * p + 4, 2 * p + 5):
                if b < 18: e(f"ds_read_b128 {v(VF+4*(b%8),4)}, v7 offset:{b*1024}")
    ST("att_pv")
    e("v_lshlrev_b32 v2, 4, v1")
    for qt in range(2):
        o = O + 12 * qt
        e(f"v_rcp_f32 v{o+8}, v{o+8}")
        for h in range(4): e(f"v_pk_mul_f32 {v(o+2*h,2)}, {v(o+2*h,2)}, {v(o+8,2)} op_sel_hi:[1,0]")
        for h in range(4): e(f"v_cvt_pk_bf16_f32 v{24+4*qt+h}, v{o+2*h}, v{o+2*h+1}")
        e(f"buffer_store_dwordx4 {v(24+4*qt,4)}, v2, {s(SWS,4)}, s{34+qt} offen sc1")

def consumer(ST):
    G = G1
    e(f"v_mov_b32 v{vCNT}, 0")
    e(f"ds_write_b32 v{vDW}, v{vCNT} offset:{OFF_EP}\nds_write_b32 v{vDW}, v{vCNT} offset:{OFF_FULL}")
    G.c_setup()
    X = G.VX
    RA_, CSQ, VA_, VB_, CSV = X, X + 8, X + 24, X + 40, X + 56
    assert CSV + 4 <= vDW
    def pre_last1():
        e(f"s_lshl_b32 s30, s{sWM}, 8\ns_add_u32 s30, s30, {MISC}\nv_lshl_add_u32 v2, v4, 2, s30\nv_lshl_add_u32 v5, v3, 4, s30")
        e(f"s_lshl_b32 s30, s{sWN}, 7\ns_add_u32 s30, s30, {MISC}\nv_lshl_add_u32 v6, v3, 4, s30\nv_lshl_add_u32 v7, v4, 2, s30")
    fill = []
    for mt in range(4): fill += [f"ds_read_b32 v{RA_+2*mt}, v2 offset:{mt*64}", f"ds_read_b32 v{RA_+2*mt+1}, v2 offset:{512+mt*64}"]
    for t in (2, 3, 0, 1): fill.append(f"ds_read_b128 {v(CSQ+4*t,4)}, v6 offset:{1024 + (t>>1)*256 + (t&1)*64}")
    for mt in range(4): fill += [f"ds_read_b128 {v(VA_+4*mt,4)}, v5 offset:{mt*64}", f"ds_read_b128 {v(VB_+4*mt,4)}, v5 offset:{512+mt*64}"]
    for dt in range(2): fill.append(f"ds_read_b32 v{CSV+2*dt}, v7 offset:{1024 + 512 + dt*64}")
    fill.append(f"ds_read_b32 v{CSV+1}, v{vFR} offset:{OFF_HD}")
    own_arena(33, AR_K)
    e(f"""
s_lshl_b32 s30, s{sWN}, 13
s_add_u32 s33, s33, s30
s_lshl_b32 s30, s{sWM}, 12
s_add_u32 s33, s33, s30
s_add_u32 s34, s33, {AR_V - AR_K}
s_lshl_b32 s31, s{sWM}, 2
s_mul_i32 s35, s{sWN}, 24
s_add_u32 s35, s35, s31
s_add_u32 s35, s35, 16
s_lshl_b32 s35, s35, 10
s_lshl_b32 s36, s{sW}, 11
s_add_u32 s36, s36, {L_Q}
""")
    flag_addr(32, WS_F1, sCB, sRB, 4, sW)
    G.c_loop(ST, pre_last1, fill)
    e(f"s_waitcnt lgkmcnt(0)\nv_readfirstlane_b32 s{sMODE}, v{CSV+1}\nv_lshlrev_b32 v2, 4, v1\nv_add_u32 v5, s35, v2\nv_add_u32 v6, s36, v2")
    e(f"s_lshr_b32 s30, s{sRB}, 1\ns_cmp_eq_u32 s30, {3 if MAP1 == 84 else 99}\ns_cselect_b32 s{sT0}, 1, s{sMODE}")
    def fold_rows(mt, t):
        c = G.acc(mt, t); k = RA_ + 2 * mt
        for h in range(2): e(f"v_pk_mul_f32 {v(c+2*h,2)}, {v(c+2*h,2)}, {v(k,2)} op_sel_hi:[1,0]")
        for h in range(2): e(f"v_pk_fma_f32 {v(c+2*h,2)}, {v(CSQ+4*t+2*h,2)}, {v(k,2)}, {v(c+2*h,2)} op_sel:[0,1,0] op_sel_hi:[1,1,1]")
    def fold_v(mt, dt):
        c = G.acc(mt, 4 + dt)
        for h in range(2): e(f"v_pk_mul_f32 {v(c+2*h,2)}, {v(c+2*h,2)}, {v(VA_+4*mt+2*h,2)}")
        for h in range(2): e(f"v_pk_fma_f32 {v(c+2*h,2)}, {v(VB_+4*mt+2*h,2)}, {v(CSV+2*dt,2)}, {v(c+2*h,2)} op_sel_hi:[1,0,1]")
    def epi1(fl):
        t = 24
        for mt in range(4):
            fold_rows(mt, 2); fold_rows(mt, 3)
            pack(t, G.acc(mt, 2), G.acc(mt, 3))
            e(f"buffer_store_dwordx4 {v(t,4)}, v2, {s(SWS,4)}, s33 offen offset:{mt*1024} {fl or KVFL}"); t += 4
        for p in range(2):
            for dt in range(2):
                fold_v(2 * p, dt); fold_v(2 * p + 1, dt)
                pack(t, G.acc(2 * p, 4 + dt), G.acc(2 * p + 1, 4 + dt))
                e(f"buffer_store_dwordx4 {v(t,4)}, v2, {s(SWS,4)}, s34 offen offset:{(2*p+dt)*1024} {fl or KVFL}"); t += 4
        for i in range(4): e(f"ds_write_b128 v5, {v(24+4*i,4)} offset:{L_K + i*1024}")
        for i in range(4): e(f"ds_write_b128 v5, {v(40+4*i,4)} offset:{L_V + i*1024}")
        for mt in (2, 3, 0, 1):
            fold_rows(mt, 0); fold_rows(mt, 1)
            d = 8 + 4 * mt
            pack(d, G.acc(mt, 0), G.acc(mt, 1))
            if mt >= 2: e(f"ds_write_b128 v6, {v(d,4)} offset:{(mt-2)*1024}")
        e("s_waitcnt vmcnt(0)")
        set_flag(32, fl.replace("nt", ""), t=64)
    dual(epi1, sT0)
    ST("kv_flag")
    e(f"s_lshl_b32 s38, s{sWM}, 1")
    attn_setup()
    attention(ST, False)
    G = G3
    roles_48()
    b_src_wo()
    G.p_setup_b(sWN)
    X = G.VX
    rowmajor_voff(X + 16, X + 17)
    e(f"""
s_lshl_b32 s35, s{sRB}, 1
s_add_u32 s35, s35, s{sWM}
s_lshl_b32 s36, s{sCB}, 1
s_add_u32 s36, s36, s{sWN}
s_lshl_b32 s32, s35, 17
s_lshl_b32 s31, s36, 6
s_add_u32 s32, s32, s31
""")
    G.c_setup()
    e("s_waitcnt vmcnt(0)")
    set_flag(33)
    ST("o_flag")
    Qc = VmQ()
    L1, L2 = A.newlabel("b3a"), A.newlabel("b3b")
    e(f"s_cmp_lg_u32 s{sWM}, 0\ns_cbranch_scc1 {L1}")
    for st in range(3): G.issue_b(Qc, st)
    e(f"s_branch {L2}")
    A.label(L1)
    for st in range(3, 6): G.issue_b(Qc, st)
    A.label(L2)
    e("s_barrier")
    for mt in range(4): e(f"s_add_u32 s31, s32, {mt*16*2048}\nbuffer_load_dwordx4 {v(X+4*mt,4)}, v{X+16}, {s(SX,4)}, s31 offen")
    e("s_waitcnt vmcnt(4)")
    e(f"""
s_lshl_b32 s37, s35, 17
s_lshl_b32 s31, s36, 10
s_add_u32 s37, s37, s31
s_add_u32 s37, s37, {WS_H}
s_lshl_b32 s38, s35, 14
s_lshl_b32 s31, s36, 9
s_add_u32 s38, s38, s31
s_add_u32 s38, s38, {WS_STAT}
""")
    flag_addr(32, WS_F3, sRB, sCB, 4, sW)
    HX = X + 24
    def pre_last3():
        e("s_waitcnt vmcnt(0)\nv_lshlrev_b32 v2, 4, v1")
        for mt in range(4):
            x = X + 4 * mt
            e(f"v_permlane16_swap_b32 v{x}, v{x+2}\nv_permlane16_swap_b32 v{x+1}, v{x+3}")
        for mt in range(4):
            for d in range(4): unpack(HX + 8 * mt + 2 * d, X + 4 * mt + d)
    G.c_loop(ST, pre_last3)
    for mt in range(4):
        x = X + 4 * mt; u = HX + 8 * mt
        pack(8, G.acc(mt, 0), G.acc(mt, 1))
        for d in range(4): unpack(12 + 2 * d, 8 + d)
        for d in range(4): e(f"v_pk_add_f32 {v(12+2*d,2)}, {v(12+2*d,2)}, {v(u+2*d,2)}")
        for d in range(4): e(f"v_cvt_pk_bf16_f32 v{x+d}, v{12+2*d}, v{13+2*d}")
        e(f"s_add_u32 s31, s37, {mt*32*1024}\nbuffer_store_dwordx4 {v(x,4)}, v2, {s(SWS,4)}, s31 offen sc1")
    for mt in range(4):
        x = X + 4 * mt; u = HX + 8 * mt
        for d in range(4): unpack(u + 2 * d, x + d)
        e(f"v_pk_add_f32 v[12:13], {v(u,2)}, {v(u+2,2)}\nv_pk_add_f32 v[14:15], {v(u+4,2)}, {v(u+6,2)}")
        e(f"v_pk_add_f32 v[12:13], v[12:13], v[14:15]\nv_add_f32 v{32+2*mt}, v12, v13")
    xg_multi("v_add_f32", [32, 34, 36, 38], [16, 17, 18, 19])
    for mt in range(4):
        u = HX + 8 * mt; sm = 32 + 2 * mt
        e(f"v_mul_f32 v12, {f32(1/32)}, v{sm}")
        for d in range(4): e(f"v_pk_add_f32 {v(u+2*d,2)}, {v(u+2*d,2)}, v[12:13] op_sel_hi:[1,0] neg_lo:[0,1] neg_hi:[0,1]")
        e(f"v_pk_mul_f32 v[14:15], {v(u,2)}, {v(u,2)}")
        for d in range(1, 4): e(f"v_pk_fma_f32 v[14:15], {v(u+2*d,2)}, {v(u+2*d,2)}, v[14:15]")
        e(f"v_add_f32 v{sm+1}, v14, v15")
    xg_multi("v_add_f32", [33, 35, 37, 39], [16, 17, 18, 19])
    for k in range(1, 4):
        e(f"v_cmp_eq_u32 vcc, {k}, v3\nv_cndmask_b32 v32, v32, v{32+2*k}, vcc\nv_cndmask_b32 v33, v33, v{33+2*k}, vcc")
    e(f"v_lshlrev_b32 v2, 3, v1\nbuffer_store_dwordx2 v[32:33], v2, {s(SWS,4)}, s38 offen sc1\ns_waitcnt vmcnt(1)")
    set_flag(32)
    post(OFF_EP, 2)
    ST("h_flag")
    G = G4
    roles_84()
    G.c_setup()
    e("s_waitcnt vmcnt(0)")
    set_flag(32, val=3)
    h1_base(37)
    e(f"""
s_and_b32 s39, s{sCB}, 1
s_add_u32 s32, s{sOWN}, s37
s_lshl_b32 s33, s{sWM}, 12
s_add_u32 s32, s32, s33
s_lshl_b32 s34, s{sWN}, 2
s_add_u32 s34, s34, s39
s_add_u32 s35, s39, s{sWN}
s_add_u32 s35, s35, 2
s_xor_b32 s36, s39, 1
s_mul_i32 s36, s36, 6
s_lshl_b32 s34, s34, 13
s_lshl_b32 s35, s35, 13
s_lshl_b32 s36, s36, 13
s_add_u32 s34, s34, s32
s_add_u32 s35, s35, s32
s_add_u32 s36, s36, s32
s_lshl_b32 s37, s{sWN}, 3
s_add_u32 s36, s36, s37
s_add_u32 s37, s34, 8192
s_mov_b32 s{sC0}, {f32(-LOG2E)}
s_mov_b32 s{sC0+1}, {f32(-LOG2E)}
""")
    flag_addr(38, WS_F4, sRB, sCB, 4, sW)
    def pre_last4():
        e(f"""
s_lshl_b32 s30, s{sWM}, 9
s_add_u32 s30, s30, {L_RA}
v_lshl_add_u32 v2, v4, 3, s30
s_lshl_b32 s31, s39, 7
s_lshl_b32 s32, s{sWN}, 9
s_add_u32 s32, s32, s31
s_add_u32 s32, s32, {L_CS}
v_lshl_add_u32 v5, v3, 4, s32
s_lshl_b32 s32, s{sWN}, 7
s_add_u32 s32, s32, s31
s_add_u32 s32, s32, {L_CS + 256}
v_lshl_add_u32 v6, v3, 4, s32
s_xor_b32 s33, s39, 1
s_mul_i32 s33, s33, 768
s_lshl_b32 s32, s{sWN}, 6
s_add_u32 s32, s32, s33
s_add_u32 s32, s32, {L_CS}
v_lshl_add_u32 v7, v3, 4, s32
""")
    CS = 16
    fill = [f"ds_read_b64 {v(8+2*mt,2)}, v2 offset:{mt*128}" for mt in range(4)]
    fill += [f"ds_read_b128 {v(CS+4*t,4)}, v5 offset:{64*t}" for t in range(4)]
    fill += [f"ds_read_b128 {v(CS+16+4*t,4)}, v6 offset:{64*t}" for t in range(2)] + [f"ds_read_b128 {v(CS+24,4)}, v7"]
    G.c_loop(ST, pre_last4, fill)
    e("s_waitcnt lgkmcnt(0)\nv_lshlrev_b32 v2, 4, v1")
    def epi4(fl):
        units = []
        for pr in range(4):
            for mt in range(4): units.append((mt, (2 * pr, 2 * pr + 1) if pr < 3 else (6,), pr))
        T0, O0 = 56, 80
        def sA(i):
            mt, ts, pr = units[i]; k = 8 + 2 * mt; o = []
            for t in ts:
                c = G.acc(mt, t)
                for h in range(2): o.append(f"v_pk_mul_f32 {v(c+2*h,2)}, {v(c+2*h,2)}, {v(k,2)} op_sel:[0,1] op_sel_hi:[1,1]")
            for t in ts:
                c = G.acc(mt, t)
                for h in range(2): o.append(f"v_pk_fma_f32 {v(c+2*h,2)}, {v(CS+4*t+2*h,2)}, {v(k,2)}, {v(c+2*h,2)} op_sel_hi:[1,0,1]")
            return o
        def sB(i):
            mt, ts, pr = units[i]; T = T0 + 8 * (i % 3)
            return [f"v_exp_f32 v{T+4*j+k}, v{G.acc(mt,t)+k}" for j, t in enumerate(ts) for k in range(4)]
        def sC(i):
            mt, ts, pr = units[i]; T = T0 + 8 * (i % 3)
            return [f"v_pk_fma_f32 {v(T+2*h,2)}, {v(T+2*h,2)}, {s(sC0,2)}, {s(sC0,2)}" for h in range(2 * len(ts))]
        def sD(i):
            mt, ts, pr = units[i]; T = T0 + 8 * (i % 3)
            return [f"v_rcp_f32 v{T+k}, v{T+k}" for k in range(4 * len(ts))]
        def sE(i):
            mt, ts, pr = units[i]; T = T0 + 8 * (i % 3); o = []; d = O0 + 4 * (i % 4)
            for j, t in enumerate(ts):
                c = G.acc(mt, t)
                for h in range(2): o.append(f"v_pk_mul_f32 {v(c+2*h,2)}, {v(c+2*h,2)}, {v(T+4*j+2*h,2)}")
            for j, t in enumerate(ts):
                c = G.acc(mt, t)
                for h in range(2): o.append(f"v_cvt_pk_bf16_f32 v{d+2*j+h}, v{c+2*h}, v{c+2*h+1}")
            base = (34, 37, 35, 36)[pr]
            if NOST4: return o
            o.append(f"buffer_store_dwordx4 {v(d,4)}, v2, {s(SWS,4)}, s{base} offen offset:{mt*1024} {fl}" if pr < 3 else f"buffer_store_dwordx2 {v(d,2)}, v2, {s(SWS,4)}, s{base} offen offset:{mt*1024} {fl}")
            return o
        N = len(units)
        for x in sA(0): e(x)
        for i in range(N + 1):
            seq = []
            if i < N: seq += sB(i)
            if i + 1 < N: seq += sA(i + 1)
            if i < N: seq += sC(i)
            if i >= 1: seq += sE(i - 1)
            if i < N: seq += sD(i)
            for x in seq: e(x)
            if EARLY5 and i == 8 + E5LAG:
                e(f"s_waitcnt vmcnt({E5LAG})"); set_flag(38, fl.replace("nt", ""))
        ST("silu")
        roles_w2()
        G5.c_setup()
        e("s_waitcnt vmcnt(0)")
        set_flag(38, fl.replace("nt", ""), val=3)
    n0 = list(ST.names)
    def epi4w(fl):
        ST.names = list(n0); epi4(fl)
    dual(epi4w, sMODE)
    ST("h1_flag")
    G = G5
    MT = G.MT; keep = 2; nb = 4
    def pre_last5():
        srd(SD, pOUT, 4 * MB)
        e(f"""
s_lshl_b32 s33, s{sRB}, 3
s_add_u32 s33, s33, s{sCB}
s_mul_i32 s34, s33, {16*4*nb*1024}
s_add_u32 s34, s34, {WS_PART}
s_mul_i32 s30, s{sW}, {nb*1024}
s_add_u32 s34, s34, s30
s_lshl_b32 s35, s{sRB}, 3
s_lshl_b32 s30, s{sWM}, 3
s_add_u32 s35, s35, s30
s_lshl_b32 s30, s{sKS}, 1
s_add_u32 s35, s35, s30
s_lshl_b32 s36, s{sCB}, 2
s_lshl_b32 s30, s{sWN}, 1
s_add_u32 s36, s36, s30
s_lshl_b32 s38, s35, 15
s_lshl_b32 s31, s36, 10
s_add_u32 s38, s38, s31
s_add_u32 s38, s38, {WS_H}
s_lshl_b32 s37, s33, 6
s_lshl_b32 s31, s{sW}, 2
s_add_u32 s37, s37, s31
s_add_u32 s37, s37, {WS_F5}
s_lshl_b32 s31, s{sKS}, 4
s_add_u32 s32, s37, s31
s_lshl_b32 s39, s{sKS}, 2
""")
        for d in range(1, 4):
            e(f"s_add_u32 s31, s{sKS}, {d}\ns_and_b32 s31, s31, 3\ns_lshl_b32 s30, s31, 2\ns_add_u32 s30, s30, s{sKS}\ns_mul_i32 s30, s30, {4*nb*1024}\ns_add_u32 s{39+d}, s30, s34")
            e(f"s_add_u32 s31, s31, s39\ns_mul_i32 s31, s31, {4*nb*1024}\ns_add_u32 s{42+d}, s31, s34")
        e(f"s_lshl_b32 s46, s35, 15\ns_lshl_b32 s31, s36, 6\ns_add_u32 s46, s46, s31\ns_add_u32 s47, s38, {32*1024}")
    HR = 8
    fill = ["v_lshlrev_b32 v2, 4, v1"]
    fill += [f"buffer_load_dwordx4 {v(HR+4*(2*i+pr),4)}, v2, {s(SWS,4)}, s{38 if i == 0 else 47} offen offset:{pr*1024} sc1" for i in range(2) for pr in range(2)]
    if CANARY: fill.append(f"buffer_load_dword v248, v2, {s(SWS,4)}, s37 offen sc1")
    G.c_loop(ST, pre_last5, fill)
    o = 24
    for d in range(1, 4):
        for i in range(keep):
            for pr in range(2):
                mt = d * keep + i
                pack(o, G.acc(mt, 2 * pr), G.acc(mt, 2 * pr + 1))
                e(f"buffer_store_dwordx4 {v(o,4)}, v2, {s(SWS,4)}, s{39+d} offen offset:{(2*i+pr)*1024} {PFL}")
                o = 24 + (o - 24 + 4) % 32
    PR = 64
    assert PR + 48 <= G.ACC
    def add_partial(d):
        for i in range(keep):
            for pr in range(2):
                for q in range(4): unpack(40 + 2 * q, PR + 4 * ((d - 1) * nb + 2 * i + pr) + q)
                for q in range(4):
                    c = G.acc(i, 2 * pr + (q >> 1)) + 2 * (q & 1)
                    e(f"v_pk_add_f32 {v(c,2)}, {v(c,2)}, {v(40+2*q,2)}")
    def ld_partial(d):
        for b in range(nb): e(f"buffer_load_dwordx4 {v(PR+4*((d-1)*nb+b),4)}, v2, {s(SWS,4)}, s{42+d} offen offset:{b*1024} sc1")
    rowmajor_voff(62, 63)
    if CANARY:
        e("v_mov_b32 v58, s43\nv_mov_b32 v59, s44\nv_cmp_eq_u32 vcc, 1, v1\nv_cndmask_b32 v58, v58, v59, vcc\nv_mov_b32 v59, s45\nv_cmp_eq_u32 vcc, 2, v1\nv_cndmask_b32 v58, v58, v59, vcc")
        e("s_waitcnt vmcnt(0)")
        ST("p_flag")
        X0 = A.newlabel("pfok")
        e(f"s_mov_b64 exec, 0xf\nv_and_b32 v248, 1, v248\nv_cmp_ne_u32 vcc, 1, v248\ns_mov_b64 exec, -1\ns_cbranch_vccz {X0}")
        poll("s37", 4, voff=2, t=60)
        A.label(X0)
        L, X = A.newlabel("can"), A.newlabel("canx")
        e(f"s_mov_b64 exec, 7\ns_mov_b32 s{sCNT}, 0")
        A.label(L)
        e(f"buffer_load_dword v60, v58, {s(SWS,4)}, 0 offen offset:4092 sc1\ns_add_u32 s{sCNT}, s{sCNT}, 1\ns_cmp_gt_u32 s{sCNT}, {SPIN_MAX}\ns_waitcnt vmcnt(0)\ns_cbranch_scc1 {X}")
        e(f"v_cmp_eq_u32 vcc, -1, v60\ns_cbranch_vccnz {L}")
        A.label(X)
        e("s_mov_b64 exec, -1")
        ST("p_seen")
        for d in range(1, 4): ld_partial(d)
        for d in range(1, 4):
            L, X = A.newlabel("pv"), A.newlabel("pvx")
            r0 = PR + 16 * (d - 1)
            e(f"s_waitcnt vmcnt({(3-d)*nb})")
            A.label(L)
            e(f"v_max_u32 v60, v{r0}, v{r0+1}")
            for i in range(2, 16, 2): e(f"v_max3_u32 v60, v{r0+i}, v{r0+i+1}, v60")
            e(f"v_cmp_eq_u32 vcc, -1, v60\ns_cbranch_vccz {X}\ns_add_u32 s{sCNT}, s{sCNT}, 1\ns_cmp_gt_u32 s{sCNT}, {SPIN_MAX}\ns_cbranch_scc1 {X}")
            ld_partial(d)
            e(f"s_waitcnt vmcnt(0)\ns_branch {L}")
            A.label(X)
            add_partial(d)
    else:
        e("s_waitcnt vmcnt(0)")
        set_flag(32)
        ST("p_flag")
        poll("s37", 4, voff=2, t=60)
        ST("p_seen")
        for d in range(1, 4): ld_partial(d)
        for d in range(1, 4):
            e(f"s_waitcnt vmcnt({(3-d)*nb})")
            add_partial(d)
    for i in range(keep):
        for pr in range(2):
            x = HR + 4 * (2 * i + pr)
            pack(24, G.acc(i, 2 * pr), G.acc(i, 2 * pr + 1))
            for q in range(4): unpack(40 + 2 * q, 24 + q); unpack(48 + 2 * q, x + q)
            for q in range(4): e(f"v_pk_add_f32 {v(40+2*q,2)}, {v(40+2*q,2)}, {v(48+2*q,2)}")
            for q in range(4): e(f"v_cvt_pk_bf16_f32 v{x+q}, v{40+2*q}, v{41+2*q}")
            e(f"v_permlane16_swap_b32 v{x}, v{x+2}\nv_permlane16_swap_b32 v{x+1}, v{x+3}")
            e(f"s_add_u32 s31, s46, {i*16*2048}\nbuffer_store_dwordx4 {v(x,4)}, v62, {s(SD,4)}, s31 offen offset:{pr*64} {OFL}")
    ST.flush()
    e("s_endpgm")

def neighbours_and_attention(ST, Q):
    e(f"s_lshl_b32 s38, s{sWM}, 1\ns_add_u32 s38, s38, 1")
    attn_setup()
    L = A.newlabel("nonb")
    assert MAP1 == 162
    own_arena(42)
    e(f"""
s_add_u32 s40, s{sRB}, s{sWM}
s_sub_u32 s41, s40, 2
s_lshl_b32 s31, s{sWM}, 16
s_add_u32 s42, s42, s31
s_sub_u32 s42, s42, {2*64*KB}
s_lshl_b32 s31, s{sWN}, 13
s_add_u32 s42, s42, s31
s_mul_i32 s43, s{sWN}, 24
s_lshl_b32 s31, s{sWM}, 3
s_add_u32 s43, s43, s31
s_lshl_b32 s43, s43, 10
v_lshlrev_b32 v2, 4, v1
s_cmp_lt_u32 s40, 2
s_cselect_b32 s42, {WS_BYTES}, s42
s_cbranch_scc1 {L}
""")
    flag_addr(32, WS_F1, sCB, 41, 4, None)
    poll("s32", 4, t=8)
    A.label(L)
    ST("nb_seen")
    for wsb, lb in ((AR_K, L_K), (AR_V, L_V)):
        for h in range(2):
            e(f"s_add_u32 m0, s43, {lb + h*4096}\ns_add_u32 s31, s42, {wsb + h*4096}")
            for i in range(4): e(f"buffer_load_dwordx4 v2, {s(SWS,4)}, s31 offen offset:{i*1024} sc1 lds")
    Q.q = []; Q.add("nk", 8); Q.add("nv", 8)
    attention(ST, True, Q)
    roles_48()
    b_src_wo()
    e(f"ds_read_b32 v8, v{vFR} offset:{OFF_HD}")
    G3.p_setup_a(); G3.p_setup_b(sWN)
    e(f"s_waitcnt lgkmcnt(0)\nv_readfirstlane_b32 s{sMODE}, v8")
    e("s_waitcnt vmcnt(0)")
    set_flag(33)
    e("s_barrier")
    Q.q = []
    ST("o_flag")

def dma_phase1(ST, Q):
    G = G1
    if DPRIO: e(f"s_setprio {DPRIO}")
    e(f"s_lshl_b32 s{sBC}, s{sCB}, 7\ns_mov_b32 s{sBR}, 0\ns_lshl_b32 s{sAR}, s{sRB}, 18")
    G.p_setup_a(); G.p_setup_b()
    def touch(nk, fl):
        def f():
            e(f"s_mul_i32 s30, s{sW}, {nk*1024}\ns_add_u32 s30, s30, s{sOWN}\nv_lshlrev_b32 v12, 7, v1")
            for i in range(0, nk, 8):
                if nk - i < 8: set_exec((1 << ((nk - i) * 8)) - 1)
                e(f"s_add_u32 s31, s30, {WS_AR + i*1024}\nbuffer_load_dword v{248+i//8}, v12, {s(SWS,4)}, s31 offen {fl}")
                Q.add("touch")
            e("s_mov_b64 exec, -1")
        return f
    dma_phase1.touch = touch
    G.p_loop(Q, ST, 0, NPF, tail=touch(16, TFL.replace("none", "")) if TOUCH else None)
    if DPRIO: e("s_setprio 0")
    e("s_waitcnt lgkmcnt(0)")

def dma_rest(ST, Q):
    G = G3
    if DPRIO: e(f"s_setprio {DPRIO}")
    e(f"s_lshl_b32 s32, s{sRB}, 9\ns_add_u32 s32, s32, {WS_F2}")
    pf_step(PFBUB)
    e("v_lshlrev_b32 v10, 3, v1")
    G.p_loop(Q, ST, G.NSB, 1, 3, gate=lambda k: need_flags(0xf << (4 * G3.korder[k]) if FINE else (1 << 64) - 1, 32, 10, True) if (FINE or k == 0) else None, look=(range(0, 12), (32, 10, True)))
    G = G4
    roles_84()
    b_src_w1()
    e(f"s_lshl_b32 s{sAR}, s{sRB}, 18\ns_add_u32 s{sAR}, s{sAR}, {WS_H}")
    G.p_setup_b(); G.p_setup_a()
    e(f"s_lshl_b32 s32, s{sRB}, 8\ns_add_u32 s32, s32, {WS_F3}")
    if BEARLY: G.issue_b(Q, 0)
    wait_rows(OFF_EP, 2)
    if not BEARLY: G.issue_b(Q, 0)
    pf_step(PFBUB)
    e("v_lshlrev_b32 v10, 2, v1")
    G.p_loop(Q, ST, 1 if BLATE else G.NS, NPF, gate=lambda k: need_flags(0xf << (4 * G4.korder[k]) if FINE else (1 << 64) - 1, 32, 10, False) if (FINE or k == 0) else None, tail=dma_phase1.touch(28, '') if TOUCH4 else None, look=(range(0, 12), (32, 10, False)))
    pf_finish()
    G = G5
    roles_w2()
    b_src_w2()
    G.p_setup_b()
    for st in range(G.NS): G.issue_b(Q, st)
    G.p_setup_a()
    e(f"s_lshl_b32 s32, s{sRB}, 8\ns_lshl_b32 s30, s{sKS}, 6\ns_add_u32 s32, s32, s30\ns_add_u32 s32, s32, {WS_F4}")
    e(f"s_lshl_b32 s30, s{sW}, 8\ns_add_u32 s32, s32, s30\nv_lshlrev_b32 v10, 2, v4")
    e("v_and_b32 v11, 1, v3")
    seen5 = set()
    def gate5(k):
        want = {(c, lv) for c, kb, lv in G5.blocks()[2 * k:2 * k + 2]} - seen5
        if want:
            seen5.update(want)
            need_flags(sum(0xf << (4 * c + 16 * (lv - 1)) for c, lv in want), 32, 10, False, shift=11)
    G.p_loop(Q, ST, G.NS, gate=gate5, look=(range(0, 10), (32, 10, False, 11)) if ASY5 else None)

U0 = 200
def colsum_block(j, src, nld, dpp):
    u = U0 + 8 * j
    if DOT:
        e("v_mov_b32 v10, 0x00003f80\nv_mov_b32 v11, 0x3f800000")
        for i in range(nld):
            for d in range(4):
                if i == 0: unpack(u + 2 * d, src + d)
                else: e(f"v_dot2_f32_bf16 v{u+2*d}, v{src+4*i+d}, v10, v{u+2*d}\nv_dot2_f32_bf16 v{u+2*d+1}, v{src+4*i+d}, v11, v{u+2*d+1}")
    else:
        for i in range(nld):
            for d in range(4):
                if i == 0: unpack(u + 2 * d, src + d)
                else:
                    unpack(10 + 2 * (d & 1), src + 4 * i + d)
                    e(f"v_pk_add_f32 {v(u+2*d,2)}, {v(u+2*d,2)}, {v(10+2*(d&1),2)}")
    for d in range(4): e(f"v_permlane32_swap_b32 v{u+d}, v{u+4+d}")
    for d in range(2): e(f"v_pk_add_f32 {v(u+2*d,2)}, {v(u+2*d,2)}, {v(u+4+2*d,2)}")
    for d in range(2): e(f"v_permlane16_swap_b32 v{u+d}, v{u+2+d}")
    e(f"v_pk_add_f32 {v(u,2)}, {v(u,2)}, {v(u+2,2)}")
    for k in dpp:
        for r in range(u, u + 2): e(f"v_add_f32_dpp v{r}, v{r}, v{r} row_ror:{k} row_mask:0xf bank_mask:0xf")
def colsum_store(Q, j, soff, nl, tag):
    u = U0 + 8 * j
    e("v_lshlrev_b32 v6, 5, v4\nv_lshl_add_u32 v6, v3, 3, v6")
    m = (1 << nl) - 1
    set_exec(m | m << 16 | m << 32 | m << 48)
    e(f"buffer_store_dwordx2 {v(u,2)}, v6, {s(SWS,4)}, s{soff} offen offset:{256*j} sc1\ns_mov_b64 exec, -1")
    Q.add(tag, 1)

def zero_own_flags(Q):
    e("v_lshlrev_b32 v2, 2, v1\nv_mov_b32 v8, 0")
    def st(soff, nl):
        set_exec((1 << nl) - 1); e(f"buffer_store_dword v8, v2, {s(SWS,4)}, s{soff} offen sc1"); Q.add("zero")
    flag_addr(32, WS_F1, sCB, sRB, 4, None); st(32, 4)
    flag_addr(32, WS_F2, sRB, sCB, 8, None); st(32, 8)
    roles_48(36, 37)
    flag_addr(32, WS_F3, 36, 37, 4, None); st(32, 4)
    roles_w2(36, 37, 38)
    e(f"s_lshl_b32 s32, s36, 3\ns_add_u32 s32, s32, s37\ns_lshl_b32 s32, s32, 2\ns_add_u32 s32, s32, s38\ns_lshl_b32 s32, s32, 4\ns_add_u32 s32, s32, {WS_F5}"); st(32, 4)
    roles_84(36, 37)
    flag_addr(32, WS_F4, 36, 37, 4, None); st(32, 4)
    e("s_mov_b64 exec, -1\nv_mov_b32 v8, -1\nv_mov_b32 v9, -1\nv_mov_b32 v10, -1\nv_mov_b32 v11, -1\nv_lshlrev_b32 v7, 4, v1")
    e(f"s_lshl_b32 s32, s35, 5\ns_add_u32 s32, s32, {WS_RA}"); st(32, 8)
    e(f"s_add_u32 s32, s32, {WS_RB - WS_RA}"); st(32, 8)
    def st4(soff, nl):
        set_exec((1 << nl) - 1); e(f"buffer_store_dwordx4 v[8:11], v7, {s(SWS,4)}, s{soff} offen sc1"); Q.add("zero")
    e(f"s_mul_i32 s32, s35, 768\ns_add_u32 s32, s32, {WS_CS1}"); st4(32, 48)
    e(f"s_mul_i32 s32, s36, {2*3584*4}\ns_mul_i32 s33, s37, 896\ns_add_u32 s32, s32, s33\ns_add_u32 s32, s32, {WS_CS2}"); st4(32, 56)
    e(f"s_add_u32 s32, s32, {3584*4}"); st4(32, 56)
    e("s_mov_b64 exec, -1")

sPFO, sPFE, sPFI, SPF = sNEED, pOUT, sT0, 44
sPFS = pOUT + 1
def pf_init():
    srd(SPF, pWO, 2 * MB)
    e(f"s_lshl_b32 s{sPFS}, s2, 2\ns_add_u32 s{sPFS}, s{sPFS}, s{sW}\ns_lshl_b32 s{sPFS}, s{sPFS}, 8\ns_mov_b32 s{sPFO}, s{sPFS}\ns_mov_b32 s{sPFE}, {2*MB}\ns_mov_b32 s{sPFI}, {2 if W2NT else 0 if PFW1 else 1}")
def pf_chunk():
    for i in range(4): e(f"s_buffer_load_dword s{sC0}, {s(SPF,4)}, s{sPFO} offset:{64*i}")
    e(f"s_add_u32 s{sPFO}, s{sPFO}, {1024*256}")
def pf_step(n):
    if not SPFON or n == 0: return
    G_, X, W2L = A.newlabel("pfg"), A.newlabel("pfx"), A.newlabel("pfw2")
    e(f"s_cmp_lt_u32 s{sPFO}, s{sPFE}\ns_cbranch_scc1 {G_}\ns_cmp_ge_u32 s{sPFI}, 2\ns_cbranch_scc1 {X}")
    e(f"s_mov_b32 s{sPFO}, s{sPFS}\ns_mov_b32 s{sPFE}, {7*MB}\ns_add_u32 s{sPFI}, s{sPFI}, 1\ns_cmp_eq_u32 s{sPFI}, 2\ns_cbranch_scc1 {W2L}")
    srd(SPF, pW1, 7 * MB)
    e(f"s_branch {G_}")
    A.label(W2L)
    srd(SPF, pW2, 7 * MB)
    A.label(G_)
    for i in range(n): pf_chunk()
    A.label(X)
CODE_MAX = 96 * KB
def code_warm():
    if not CWARM: return
    L = A.newlabel("pc")
    e(f"s_getpc_b64 s[42:43]")
    A.label(L)
    e(f"s_sub_u32 s42, s42, {L}-{KN}\ns_subb_u32 s43, s43, 0\ns_lshl_b32 s{sC0+1}, s{sR}, 2\ns_add_u32 s{sC0+1}, s{sC0+1}, s{sW}\ns_lshl_b32 s{sC0+1}, s{sC0+1}, 6")
    for i in range(NCODE): e(f"s_load_dword s{sC0}, s[42:43], s{sC0+1} offset:{i*8192}")
def pf_until_ep(k):
    L, X = A.newlabel("pu"), A.newlabel("pux")
    A.label(L)
    e(f"ds_read_b32 v{vFV}, v{vFR} offset:{OFF_EP}\ns_waitcnt lgkmcnt(0)\nv_cmp_gt_u32 vcc, {k}, v{vFV}\ns_cbranch_vccz {X}")
    e(f"s_sleep 1\ns_add_u32 s3, s3, 1\ns_cmp_lt_u32 s3, {LSPIN_MAX}\ns_cbranch_scc1 {L}")
    A.label(X)
def pf_finish():
    if not SPFON: return
    L = A.newlabel("pfin")
    A.label(L)
    pf_step(2)
    e(f"s_waitcnt lgkmcnt(6)\ns_cmp_lt_u32 s{sPFI}, 2\ns_cbranch_scc1 {L}\ns_cmp_lt_u32 s{sPFO}, s{sPFE}\ns_cbranch_scc1 {L}")
def pf_stamp(ST):
    if not STAMPS: return
    k_ = len(ST.names); ST.names.append("pfMB")
    e(f"s_mul_i32 s30, s{sPFI}, 1000\ns_lshr_b32 s31, s{sPFO}, 13\ns_mul_i32 s31, s31, 25\ns_lshr_b32 s31, s31, 5\ns_add_u32 s30, s30, s31\ns_add_u32 s{78+k_}, s78, s30")

class HStream:
    def __init__(self): self.items = []
    def __enter__(self):
        self.saved = A.lines; A.lines = []; return self
    def _take(self, atomic=False):
        if A.lines:
            if atomic: self.items.append(("g", list(A.lines)))
            else: self.items += [("g", [ln]) for ln in A.lines if ln.strip()]
        A.lines = []
    def at(self, k): self._take(); self.items.append(("at", k))
    def by(self, k): self._take(); self.items.append(("by", k))
    def atomic(self, f, cost=None):
        self._take(); f()
        if not A.lines: return
        self._take(True)
        if cost is not None: self.items[-1] = ("g", self.items[-1][1], cost)
    def __exit__(self, *a):
        self._take(); A.lines = self.saved
    @staticmethod
    def cost(ln):
        t = ln.strip()
        if t.startswith(("buffer_", "global_")): return VMC
        if t.startswith("ds_"): return 2
        if t.startswith("v_dot"): return DOTC
        if t.startswith(("v_exp", "v_rcp", "v_sqrt", "v_rsq")): return 2
        if t.startswith("s_") or t.endswith(":"): return 0.5
        return 1
    def emit(self, nbar, lim, npf, pf_from=0, pf_to=99, pre0=999, every=1, cw=(), more=False):
        st = {"b": 0, "used": 0}
        def bar():
            e("s_barrier")
            if st["b"] in cw: code_warm()
            if pf_from <= st["b"] < min(pf_to, nbar - 1) and st["b"] % every == every - 1: pf_step(npf + (1 if more and st["b"] % 3 != 1 else 0))
            st["b"] += 1; st["used"] = 0
        for kind, x, *oc in self.items:
            if kind == "at":
                while st["b"] <= x: bar()
            elif kind == "by":
                if DBGH: print("by", x, "at", st["b"], file=sys.stderr)
                assert st["b"] <= x, ("deadline missed", st["b"], x)
            else:
                c = oc[0] if oc else sum(self.cost(l) for l in x)
                if st["used"] > 8 and st["used"] + c > (lim if st["b"] > 0 else pre0) and not (len(x) == 1 and x[0].strip().startswith("s_")): bar()
                A.lines += x; st["used"] += c
        assert st["b"] <= nbar, st
        while st["b"] < nbar: bar()

def retry(loads, regs, nl):
    L, X = A.newlabel("rt"), A.newlabel("rtx")
    set_exec((1 << nl) - 1 if nl <= 64 else nl)
    e(f"s_mov_b32 s{sCNT}, 0")
    A.label(L)
    e("s_waitcnt vmcnt(0)")
    e(f"v_max_u32 v8, v{regs[0]}, v{regs[1]}")
    for i in range(2, len(regs), 2): e(f"v_max3_u32 v8, v{regs[i]}, v{regs[i+1]}, v8")
    e(f"v_cmp_eq_u32 vcc, -1, v8\ns_cbranch_vccz {X}\ns_add_u32 s{sCNT}, s{sCNT}, 1\ns_cmp_gt_u32 s{sCNT}, {SPIN_MAX}\ns_cbranch_scc1 {X}\ns_sleep 8")
    loads()
    e(f"s_branch {L}")
    A.label(X)

def helper0_phase1(ST, Q):
    RS = 16
    with HStream() as H:
        e(f"""
s_lshl_b32 s35, s{sRB}, 4
s_add_u32 s35, s35, s{sCB}
s_lshl_b32 s34, s35, 14
v_lshrrev_b32 v6, 3, v1
v_lshlrev_b32 v5, 11, v6
v_and_b32 v7, 7, v1
v_lshl_add_u32 v5, v7, 4, v5
s_getreg_b32 s39, hwreg(HW_REG_XCC_ID)
""")
        bounds = [0] + [2 * x for x in HB] + [16]
        def red8(r):
            e(f"v_add_f32_dpp v{r}, v{r}, v{r} quad_perm:[1,0,3,2] row_mask:0xf bank_mask:0xf")
            e(f"v_add_f32_dpp v{r}, v{r}, v{r} quad_perm:[2,3,0,1] row_mask:0xf bank_mask:0xf")
            e(f"v_add_f32_dpp v{r}, v{r}, v{r} row_half_mirror row_mask:0xf bank_mask:0xf")
        def dots(bt):
            Q.wait(("rs", bt))
            for i in range(4 * bounds[bt], 4 * bounds[bt + 1]):
                e(f"v_dot2_f32_bf16 v{80+(i&1)}, v{RS+i}, v84, v{80+(i&1)}\nv_dot2_f32_bf16 v{82+(i&1)}, v{RS+i}, v{RS+i}, v{82+(i&1)}")
        e("v_mov_b32 v84, 0x3f803f80\nv_mov_b64 v[80:81], 0\nv_mov_b64 v[82:83], 0")
        for bt in range(len(bounds) - 1):
            if bt: H.at(bt - 1)
            for i in range(bounds[bt], bounds[bt + 1]): e(f"buffer_load_dwordx4 {v(RS+4*i,4)}, v5, {s(SX,4)}, s34 offen offset:{128*i}")
            Q.add(("rs", bt), bounds[bt + 1] - bounds[bt])
            if bt == 1: zero_own_flags(Q)
            if bt >= LAG: dots(bt - LAG)
        e(f"s_and_b32 s39, s39, 15\ns_or_b32 s39, s39, 0x80\ns_lshl_b32 s30, s{sG}, 5\ns_add_u32 s30, s30, s{sR}")
        e(f"v_mov_b32 v8, s39\nv_mov_b32 v2, s30")
        nb_ = len(bounds) - 1
        for bt in range(nb_ - LAG, nb_):
            H.at(bt + LAG - 1); dots(bt)
        H.by(H0AT + 1)
        e(f"s_mov_b64 exec, 1\nbuffer_store_byte v8, v2, {s(SD,4)}, 0 offen sc1\ns_mov_b64 exec, -1")
        e("v_add_f32 v10, v80, v81\nv_add_f32 v11, v82, v83")
        red8(10)
        red8(11)
        if DOT: e(f"v_mul_f32 v12, {f32(-1/1024)}, v10\nv_fma_f32 v11, v12, v10, v11\nv_max_f32 v11, 0, v11")
        ln_finish(10, 11, 1024)
        e("v_mul_f32 v10, v10, v11\nv_sub_f32 v10, 0, v10")
        e(f"v_lshrrev_b32 v7, 3, v1\nv_lshlrev_b32 v7, 2, v7\ns_lshl_b32 s32, s35, 5\ns_add_u32 s32, s32, {WS_RA}\ns_add_u32 s33, s32, {WS_RB-WS_RA}")
        set_exec(0x0101010101010101)
        e(f"buffer_store_dword v11, v7, {s(SWS,4)}, s32 offen sc1\nbuffer_store_dword v10, v7, {s(SWS,4)}, s33 offen sc1\ns_mov_b64 exec, -1")
        ST("st_pub")
        H.by(GAT - 1); H.at(GAT - 3)
        e(f"v_lshlrev_b32 v12, 2, v1\nbuffer_load_dword v13, v12, {s(SD,4)}, 0 offen sc1")
        H.at(GAT - 1)
        def handshake():
            X = A.newlabel("hsx")
            e(f"s_waitcnt vmcnt(0)\nv_and_b32 v8, 0x80808080, v13\nv_cmp_ne_u32 vcc, 0x80808080, v8\ns_cbranch_vccz {X}")
            poll("0", 64, srd_=SD, mask="0x80808080", t=8, sleep=16)
            e(f"buffer_load_dword v13, v12, {s(SD,4)}, 0 offen sc1\ns_waitcnt vmcnt(0)")
            A.label(X)
            e(f"s_mul_i32 s31, s39, 0x01010101\nv_cmp_ne_u32 vcc, s31, v13\ns_lshl_b32 s30, s{sG}, 3\ns_lshr_b64 s[32:33], vcc, s30\ns_and_b32 s30, s32, 0xff")
            if FORCE >= 0: e(f"s_mov_b32 s30, {FORCE}")
            e(f"v_mov_b32 v8, s30\nv_mov_b32 v7, {L_HD}\ns_mov_b64 exec, 1\nds_write_b32 v7, v8\ns_mov_b64 exec, -1")
        H.atomic(handshake)
        H.at(GAT)
        e(f"v_and_b32 v6, 31, v1\nv_lshlrev_b32 v6, 4, v6\nv_lshrrev_b32 v7, 5, v1\nv_lshl_add_u32 v6, v7, 13, v6\ns_lshl_b32 s34, s{sRB}, 9\ns_add_u32 s34, s34, {WS_RA}")
        ld = lambda: e(f"buffer_load_dwordx4 v[16:19], v6, {s(SWS,4)}, s34 offen sc1")
        ld()
        H.at(GAT + 2)
        def fin():
            retry(ld, [16, 17, 18, 19], 64)
            e(f"v_lshlrev_b32 v6, 4, v1\nv_add_u32 v6, {L_RA}, v6\nds_write_b128 v6, v[16:19]\ns_waitcnt lgkmcnt(0)")
        H.atomic(fin)
        ST("st_in")
        H.by(16)
    H.emit(17, HLIM, NPF, pf_from=PFD0, pf_to=GAT + 1, pre0=PRE0, cw=(0, 14) if CWARM > 1 else (0,))
    e("s_waitcnt lgkmcnt(0)")
    pf_stamp(ST)

def helper1_phase1(ST, Q):
    CSR = 80
    with HStream() as H:
        e(f"""
s_lshl_b32 s35, s{sRB}, 4
s_add_u32 s35, s35, s{sCB}
v_bfe_u32 v6, v1, 3, 2
v_lshrrev_b32 v7, 5, v1
v_lshl_add_u32 v6, v7, 6, v6
v_and_b32 v7, 7, v1
v_mul_u32_u24 v6, 6144, v6
v_lshl_add_u32 v6, v7, 4, v6
s_mul_i32 s32, s{sRB}, {4*6144}
s_lshl_b32 s33, s{sCB}, 7
s_add_u32 s32, s32, s33
""")
        bounds = [0] + HB + [8]
        e("v_mov_b32 v10, 0x00003f80\nv_mov_b32 v11, 0x3f800000")
        for r in range(U0, U0 + 24, 2): e(f"v_mov_b64 {v(r,2)}, 0")
        def dots(bt):
            Q.wait(("cs", bt))
            for i in range(bounds[bt], bounds[bt + 1]):
                for j in range(3):
                    for d in range(4):
                        u, r = U0 + 8 * j + 2 * d, CSR + 4 * (8 * j + i) + d
                        e(f"v_dot2_f32_bf16 v{u}, v{r}, v10, v{u}\nv_dot2_f32_bf16 v{u+1}, v{r}, v11, v{u+1}")
        nb_ = len(bounds) - 1
        for bt in range(nb_):
            if bt: H.at(bt - 1)
            for i in range(bounds[bt], bounds[bt + 1]):
                for j in range(3):
                    e(f"s_add_u32 s31, s32, {2048*j + 128*6144*i}\nbuffer_load_dwordx4 {v(CSR+4*(8*j+i),4)}, v6, {s(SB,4)}, s31 offen {'nt' if i < NTK else ''}")
            Q.add(("cs", bt), 3 * (bounds[bt + 1] - bounds[bt]))
            if bt >= LAG: dots(bt - LAG)
        for bt in range(nb_ - LAG, nb_):
            H.at(bt + LAG - 1); dots(bt)
        e(f"s_mul_i32 s33, s35, 768\ns_add_u32 s33, s33, {WS_CS1}")
        for j in range(3): colsum_block(j, 0, 0, (8,))
        H.at(H0AT + 1)
        for j in range(3): colsum_store(Q, j, 33, 8, "st1")
        ST("st_pub")
        H.by(GAT - 1); H.at(GAT)
        e(f"s_mul_i32 s33, s{sCB}, 768\ns_add_u32 s33, s33, {WS_CS1}\nv_lshlrev_b32 v6, 4, v1")
        def ld():
            for k in range(16): e(f"s_add_u32 s31, s33, {k*16*768}\nbuffer_load_dwordx4 {v(16+4*k,4)}, v6, {s(SWS,4)}, s31 offen sc1")
        def ld0():
            set_exec((1 << 48) - 1); ld(); e("s_mov_b64 exec, -1")
        H.atomic(ld0)
        H.at(GAT + 2)
        def fin():
            retry(ld, list(range(16, 80)), 48)
            for k in range(1, 16): e(f"v_pk_add_f32 v[16:17], v[16:17], {v(16+4*k,2)}\nv_pk_add_f32 v[18:19], v[18:19], {v(18+4*k,2)}")
            e(f"v_add_u32 v6, {L_CS}, v6\nds_write_b128 v6, v[16:19]\ns_mov_b64 exec, -1\ns_waitcnt lgkmcnt(0)")
        H.atomic(fin)
        ST("st_in")
        H.by(16)
    H.emit(17, HLIM, NPF, pf_from=PFD0, pf_to=GAT + 1, pre0=PRE0, cw=(0, 14) if CWARM > 1 else (0,))
    e("s_waitcnt lgkmcnt(0)")
    pf_stamp(ST)

def helper_rest(ST, Q):
    CSR = 16
    with HStream() as H:
        if B3LATE: H.at(0)
        for st in range(6, G3.NSB): G3.issue_b(Q, st)
        H.at(5)
        Q.wait_all()
        H.by(6)
        roles_84()
        b_src_w1()
        G4.p_setup_b(sWN)
        e(f"""
v_lshrrev_b32 v6, 3, v1
v_mul_u32_u24 v6, 7168, v6
v_and_b32 v7, 7, v1
v_lshl_add_u32 v6, v7, 4, v6
v_lshrrev_b32 v5, 2, v1
v_mul_u32_u24 v5, 7168, v5
v_and_b32 v7, 3, v1
v_lshl_add_u32 v5, v7, 4, v5
s_lshl_b32 s35, s{sRB}, 1
s_add_u32 s35, s35, s{sWN}
s_mul_i32 s32, s35, {32*7168}
s_mul_i32 s33, s{sCB}, 448
s_add_u32 s32, s32, s33
""")
        e(f"s_mul_i32 s33, s35, {3584*4}\ns_mul_i32 s34, s{sCB}, 896\ns_add_u32 s33, s33, s34\ns_add_u32 s33, s33, {WS_CS2}")
        if WARM4:
            e(f"s_and_b32 s36, s35, 15\ns_mul_i32 s36, s36, {4*7168}\ns_mul_i32 s37, s{sCB}, 448\ns_and_b32 s37, s37, {hex(0xffffff80)}\ns_add_u32 s36, s36, s37")
            e(f"v_bfe_u32 v8, v1, 2, 2\nv_mul_u32_u24 v8, 7168, v8\nv_and_b32 v9, 3, v1\nv_lshl_add_u32 v8, v9, 7, v8\ns_mov_b32 s37, {(G4.korder[1]-G4.korder[0])*64*7168}\nv_mul_lo_u32 v9, v3, s37\nv_add_u32 v8, v8, v9")
            assert G4.korder[0] == 0 and G4.korder[2] == 2 * G4.korder[1]
            H.at(CS2AT - 1)
            e(f"buffer_load_dword v244, v8, {s(SB,4)}, s36 offen"); Q.add("warm")
        H.at(CS2AT)
        for j in range(3):
            for i in range(4):
                e(f"s_add_u32 s31, s32, {8*7168*i}\nbuffer_load_dwordx4 {v(CSR+4*(4*j+i),4)}, v6, {s(SB,4)}, s31 offen offset:{128*j}")
            Q.add(("w", j), 4)
        for i in range(2):
            e(f"s_add_u32 s31, s32, {16*7168*i}\nbuffer_load_dwordx4 {v(CSR+48+4*i,4)}, v5, {s(SB,4)}, s31 offen offset:384")
        Q.add(("w", 3), 2)
    H.emit(17, 34, 1, every=3, pf_to=CS2AT, cw=(14,) if CWARM > 1 else ())
    pf_stamp(ST)
    for j in range(4):
        Q.wait(("w", j))
        colsum_block(j, CSR + 16 * j, 4 if j < 3 else 2, (8,) if j < 3 else (4, 8))
    pf_until_ep(2)
    if BSEEN:
        for j in range(4): colsum_store(Q, j, 33, 8 if j < 3 else 4, "st2")
        if BSEEN == 2: G4.issue_b(Q, 1)
        e(f"v_mov_b32 v12, {L_FULL}")
        lds_wait(12, 1, vFV, sleep=1)
        if BSEEN == 1: G4.issue_b(Q, 1)
    else:
        if not BLATE:
            for st in (1, 2): G4.issue_b(Q, st)
        for j in range(4): colsum_store(Q, j, 33, 8 if j < 3 else 4, "st2")
    ST("cs2_pub")
    with HStream() as H:
        e(f"s_lshl_b32 s36, s{sRB}, 8\ns_add_u32 s36, s36, {WS_F3}\ns_lshr_b32 s37, s{sR}, 1\ns_min_u32 s37, s37, 13\ns_lshl_b32 s37, s37, 8\ns_add_u32 s37, s37, {WS_F3}")
        H.at(0)
        if BSEEN:
            H.atomic(lambda: G4.issue_b(Q, 2), 0)
            Q.wait(1)
            H.at(1)
        Q.wait(2)
        e("v_lshlrev_b32 v240, 2, v1\nv_mul_u32_u24 v241, 12, v1")
        H.at(CHKAT)
        e(f"buffer_load_dword v232, v240, {s(SWS,4)}, s36 offen sc1\nbuffer_load_dwordx3 v[234:236], v241, {s(SWS,4)}, s37 offen sc1")
        Q.add("chk", 2)
        H.at(CHKAT + 2)
        def chk():
            X = A.newlabel("ckx")
            Q.wait("chk")
            e(f"v_lshrrev_b32 v232, 1, v232\nv_and_b32 v232, v232, v236\nv_and_b32 v234, v234, v235\nv_and_b32 v232, v232, v234\nv_and_b32 v232, 1, v232\nv_cmp_ne_u32 vcc, 1, v232\ns_cbranch_vccz {X}")
            poll("s36", 64, mask=2, t=8, sleep=8)
            for d in range(3):
                e(f"s_add_u32 s38, s37, {256*d}"); poll("s38", 64, mask=1, t=8, sleep=8)
            A.label(X)
        H.atomic(chk, 10)
        e(f"v_lshlrev_b32 v11, 4, v1\ns_lshl_b32 s36, s35, 14\ns_add_u32 s36, s36, {WS_STAT}\ns_add_u32 s37, s36, 4096\ns_add_u32 s38, s36, 8192\ns_add_u32 s39, s36, 12288")
        for i in range(16): e(f"buffer_load_dwordx4 {v(96+4*i,4)}, v11, {s(SWS,4)}, s{36+i//4} offen offset:{1024*(i%4)} sc1")
        Q.add("stat", 16)
        e(f"s_mul_i32 s33, s{sCB}, 896\ns_mul_i32 s34, s{sWN}, 448\ns_add_u32 s33, s33, s34\ns_add_u32 s33, s33, {WS_CS2}")
        e(f"v_and_b32 v7, 31, v1\nv_lshlrev_b32 v7, 4, v7\nv_lshrrev_b32 v6, 5, v1\nv_mul_u32_u24 v6, {3584*4}, v6\nv_add_u32 v6, v6, v7")
        M28 = ((1 << 28) - 1) | (((1 << 28) - 1) << 32)
        def ld(ks=range(16)):
            for k in ks: e(f"s_add_u32 s31, s33, {k*2*3584*4}\nbuffer_load_dwordx4 {v(16+4*k,4)}, v6, {s(SWS,4)}, s31 offen sc1")
        for c in range(4):
            def ldc(c=c):
                set_exec(M28); ld(range(4 * c, 4 * c + 4)); e("s_mov_b64 exec, -1")
            H.atomic(ldc, 4 * VMC)
        Q.add("cs", 16)
        Q.wait("stat")
        for h in range(2):
            e(f"v_pk_add_f32 {v(160+2*h,2)}, {v(96+2*h,2)}, {v(100+2*h,2)}")
            for i in range(2, 16): e(f"v_pk_add_f32 {v(160+2*h,2)}, {v(160+2*h,2)}, {v(96+4*i+2*h,2)}")
        for h in range(2): e(f"v_mov_b32 v{164+h}, v{160+2*h}")
        for h in range(2): e(f"v_permlane32_swap_b32 v{160+2*h}, v{164+h}")
        for h in range(2): e(f"v_add_f32 v{160+2*h}, v{160+2*h}, v{164+h}\nv_mul_f32 v{166+h}, {f32(1/32)}, v{160+2*h}\nv_mov_b32 v{168+h}, 0")
        for i in range(16):
            for h in range(2):
                r = 96 + 4 * i + 2 * h
                e(f"v_sub_f32 v{r}, v{r}, v{166+h}\nv_fma_f32 v{168+h}, v{r}, v{r}, v{168+h}")
        e(f"v_mov_b32 v13, {f32(1/32)}")
        for h in range(2): e(f"v_fma_f32 v{161+2*h}, v{168+h}, v13, v{161+2*h}\nv_mov_b32 v{164+h}, v{161+2*h}")
        for h in range(2): e(f"v_permlane32_swap_b32 v{161+2*h}, v{164+h}")
        for h in range(2):
            a_, b_ = 160 + 2 * h, 161 + 2 * h
            e(f"v_add_f32 v{b_}, v{b_}, v{164+h}")
            ln_finish(a_, b_, 1024)
            e(f"v_mul_f32 v{b_}, {f32(-LOG2E)}, v{b_}\nv_mul_f32 v{a_}, v{a_}, v{b_}\nv_sub_f32 v{a_}, 0, v{a_}")
        e(f"s_lshl_b32 s30, s{sWN}, 9\ns_add_u32 s30, s30, {L_RA}\nv_add_u32 v13, s30, v7\nds_write_b128 v13, v[160:163]")
        def fin():
            retry(ld, list(range(16, 80)), M28)
            e("s_mov_b64 exec, -1")
        H.atomic(fin, 36)
        for k in range(1, 16): e(f"v_pk_add_f32 v[16:17], v[16:17], {v(16+4*k,2)}\nv_pk_add_f32 v[18:19], v[18:19], {v(18+4*k,2)}")
        for h in range(4): e(f"v_mov_b32 v{20+h}, v{16+h}")
        for h in range(4): e(f"v_permlane32_swap_b32 v{16+h}, v{20+h}")
        e("v_pk_add_f32 v[16:17], v[16:17], v[20:21]\nv_pk_add_f32 v[18:19], v[18:19], v[22:23]")
        e(f"s_add_u32 s34, s34, {L_CS}\nv_add_u32 v7, s34, v7"); set_exec((1 << 28) - 1)
        e("ds_write_b128 v7, v[16:19]\ns_mov_b64 exec, -1\ns_waitcnt lgkmcnt(0)")
        ST("st2_in")
        H.by(16)
        if W2NT:
            H.at(W2AT)
            def w2pf():
                srd(SB, pW2, 7 * MB)
                e(f"s_lshr_b32 s36, s{sG}, 1\ns_mul_i32 s36, s36, {896*2048}\ns_lshl_b32 s37, s{sR}, 1\ns_add_u32 s37, s37, s{sWN}\ns_mul_i32 s37, s37, {56*128}\ns_add_u32 s36, s36, s37\nv_lshlrev_b32 v240, 7, v1")
                set_exec((1 << 56) - 1)
                for k in range(2): e(f"s_add_u32 s31, s36, {k*64*56*128}\nbuffer_load_dword v{244+k}, v240, {s(SB,4)}, s31 offen {W2NT.replace('none','')}")
                e("s_mov_b64 exec, -1")
            H.atomic(w2pf, 0)
    H.emit(17, HLIM4, NPF, more=True, pf_to=14, cw=(14,) if CWARM > 1 else ())
    pf_stamp(ST)
    pf_finish()
    if CANARY:
        roles_w2()
        Q.q = []
        with HStream() as H:
            e(f"s_lshl_b32 s33, s{sRB}, 3\ns_add_u32 s33, s33, s{sCB}\ns_mul_i32 s34, s33, {256*KB}\ns_add_u32 s34, s34, {WS_PART}\ns_lshl_b32 s30, s{sWN}, 13\ns_add_u32 s34, s34, s30")
            e(f"s_lshl_b32 s30, s{sKS}, 14\ns_add_u32 s34, s34, s30\nv_lshlrev_b32 v2, 4, v1")
            for k in range(4): e(f"v_mov_b32 v{8+k}, -1")
            e(f"s_lshl_b32 s37, s33, 6\ns_lshl_b32 s30, s{sKS}, 4\ns_add_u32 s37, s37, s30\ns_lshl_b32 s30, s{sWN}, 3\ns_add_u32 s37, s37, s30\ns_add_u32 s37, s37, {WS_F5}")
            H.at(PFILL)
            for d in range(1, 4):
                for hb in range(2):
                    e(f"s_add_u32 s31, s{sKS}, {d}\ns_and_b32 s31, s31, 3\ns_lshl_b32 s31, s31, 16\ns_add_u32 s31, s31, s34\ns_add_u32 s31, s31, {hb*4096}")
                    for b in range(4): e(f"buffer_store_dwordx4 v[8:11], v2, {s(SWS,4)}, s31 offen offset:{b*1024} sc1")
            H.by(PFILL + 7); H.at(PFILL + 8)
            e(f"s_waitcnt vmcnt(0)\nv_mov_b32 v12, 1\nv_lshlrev_b32 v13, 2, v1\ns_mov_b64 exec, 3\nbuffer_store_dword v12, v13, {s(SWS,4)}, s37 offen sc1\ns_mov_b64 exec, -1")
        H.emit(PFILL + 10, 24, 0)
    if W2NT:
        set_exec((1 << 56) - 1)
        for k in range(2, 4): e(f"s_add_u32 s31, s36, {k*64*56*128}\nbuffer_load_dword v{244+k}, v240, {s(SB,4)}, s31 offen {W2NT.replace('none','')}")
        e("s_mov_b64 exec, -1")

def producer(ST):
    Q = VmQ()
    pf_init()
    e(f"s_cmp_eq_u32 s{sW}, 2\ns_cbranch_scc1 L_h0\ns_cmp_eq_u32 s{sW}, 3\ns_cbranch_scc1 L_h1")
    SD_ = ST.fork("D"); dma_phase1(SD_, Q)
    e("s_branch L_att")
    A.label("L_h0")
    if HPRIO: e(f"s_setprio {HPRIO}")
    SH = ST.fork("H"); helper0_phase1(SH, VmQ())
    e("s_branch L_att")
    A.label("L_h1")
    if HPRIO: e(f"s_setprio {HPRIO}")
    SH = ST.fork("H"); helper1_phase1(SH, VmQ())
    while len(SH.names) < len(SD_.names): SH.names.append("-")
    while len(SD_.names) < len(SH.names): SD_.names.append("-")
    A.label("L_att")
    e("s_setprio 0")
    n0 = len(SD_.names)
    neighbours_and_attention(SD_, Q)
    SH.names += SD_.names[n0:]
    e(f"s_cmp_ge_u32 s{sW}, 2\ns_cbranch_scc1 L_hrest")
    dma_rest(SD_, Q)
    SD_.flush()
    e("s_endpgm")
    A.label("L_hrest")
    if HPRIO: e(f"s_setprio {HPRIO}")
    helper_rest(SH, VmQ())
    SH.flush()

def main():
    A.begin_kernel(KN)
    if STAMPS: e(f"{STAMP_OP} {s(sST,2)}")
    e(f"""
s_cmp_ge_u32 s2, 256
s_cbranch_scc1 L_end
s_load_dwordx16 s[48:63], s[0:1], 0
s_load_dwordx2 s[64:65], s[0:1], 64
v_lshrrev_b32 v2, 6, v0
v_and_b32 v1, 63, v0
v_readfirstlane_b32 s{sWAVE}, v2
v_lshrrev_b32 v3, 4, v1
v_and_b32 v4, 15, v1
s_and_b32 s{sG}, s2, 7
s_mov_b32 s3, 0
s_lshr_b32 s{sR}, s2, 3
s_and_b32 s{sW}, s{sWAVE}, 3
s_lshr_b32 s{sWM}, s{sW}, 1
s_and_b32 s{sWN}, s{sW}, 1
""")
    roles_p1()
    e(f"s_lshl_b32 s{sOWN}, s{sCB}, 4\ns_add_u32 s{sOWN}, s{sOWN}, s{sRB}\ns_lshl_b32 s{sOWN}, s{sOWN}, 16")
    e(f"s_add_u32 s{sROT}, s{sRB}, s{sCB}\ns_and_b32 s{sROT}, s{sROT}, {15 if ROT1 else 0}")
    sync_regs()
    e("s_waitcnt lgkmcnt(0)")
    if STAMPS: e(f"s_mov_b32 s78, s{sST}\ns_mov_b32 s0, 0\ns_mov_b32 s1, 0")
    srd(SX, pX, 4 * MB); srd(SB, pWQKV, 6 * MB); srd(SWS, pWS, WS_BYTES); srd(SD, pDBG, 256)
    e(f"s_cmp_ge_u32 s{sWAVE}, 4\ns_cbranch_scc1 L_prod")
    consumer(Stamper("C"))
    A.label("L_prod")
    producer(Stamper("P"))
    A.label("L_end")
    e("s_endpgm")
    A.lines.append(f".fill ({NCODE*8192} - (. - {KN})) / 4, 4, 0xbf810000")
    A.end_kernel(KN, 256, 102)
    A.lines = hazard.fix(A.lines)
    hdr = open("sequential_preLN__sliding_block__dense_activation_silu__prompt.s.ref").read().split("; Override launch")[0]
    hdr += f"; @launch grid=(256,1,1) block=(512,1,1) lds={LDS_BYTES}\n"
    for k, nm in STAMP_NAMES.items(): hdr += f"; stamps {k}: {' '.join(nm)}\n"
    sys.stdout.write(A.text(hdr))
main()
```

```python
import sys, struct
from asmlib import Asm
import hazard

ARGS = sys.argv[1:]
def opt(name, default):
    for a in ARGS:
        if a.startswith("--" + name + "="): return type(default)(a.split("=", 1)[1])
    return default
STAMPS = "--stamps" in ARGS
STAMP_OP = "s_memtime" if "--cyc" in ARGS else "s_memrealtime"
DPRIO = opt("dprio", 1)
FORCE = opt("force", -1)
PSLEEP = opt("psleep", 1)
GAT = opt("gat", 13); H0AT = opt("h0at", 5)
PUBN = opt("pubn", 16)
FPOS = opt("fpos", 8)
RP4 = opt("rp4", 0); RP5 = opt("rp5", 0)
CS2AT = opt("cs2at", 11)
CHKAT = opt("chkat", 2)
HLIM4 = opt("hlim4", 42)
DOTC = opt("dotc", 1.0)
NOST4 = opt("nost4", 0)
NSB3 = opt("nsb3", 11)
PF2 = opt("pf2", 4)
XAT = opt("xat", -1)
KFLAG = opt("kflag", 1)
SLOWPF = opt("slowpf", 1)
GATEN = {"wo": opt("g3n", 2), "w1": opt("g4n", 2)}
APK = opt("apk", 1)
AMIX = opt("amix", 0)
APRIO = opt("aprio", 0)
TAILPM = opt("tailpm", 1)
DBGOUT = opt("dbgout", -1)
CANARY = opt("canary", 0)
BSEEN = opt("bseen", 0)
PFILL = opt("pfill", 0)
ASY5 = opt("asy5", 1)
WARM4 = opt("warm4", 0)
ASYNC = opt("async", 0)
NTK = opt("ntk", 4)
EARLY5 = opt("early5", 1)
E5LAG = opt("e5lag", 2)
LAG = opt("lag", 1)
H1FL = opt("h1fl", "")
B1FL = opt("b1fl", "")
W2NT = opt("w2nt", "")
W2AT = opt("w2at", 14)
KORD = opt("kord", 1)
CWARM = opt("cwarm", 1)
NCODE = opt("ncode", 11)
TAILD = opt("taild", 0)
TOUCH4 = opt("touch4", 0)
HB = [int(x) for x in opt("hb", "3,5,7").split(",")]
DOT = opt("dot", 1)
PFH = opt("pfh", 0)
PFD0 = opt("pfd0", 3)
BEARLY = opt("bearly", 0)
BLATE = opt("blate", 0)
B3LATE = opt("b3late", 0)
KVFL = opt("kvfl", "sc1")
FINE = opt("fine", 1)
G4AT = opt("g4at", 9)
NPF = opt("npf", 1)
PFW1 = opt("pfw1", 0)
PFBUB = opt("pfbub", 0)
DST = opt("dst", "")
DW = eval(opt("dw", "()")); DB = eval(opt("db", "(0,1,2,3,4,5,6,7,8,9,10,12,14)"))
VMC = opt("vmc", 5)
PRE0 = opt("pre0", 999)
DBGH = opt("dbgh", 0)
P1G = opt("p1g", 2)
HLIM = opt("hlim", 120)
HPRIO = opt("hprio", 0)
SENT = 0xFFFFFFFF
SKIP = opt("skip", "att_v,p_flag").split(",")
ROT1 = opt("rot1", 0); ROT3 = opt("rot3", 0); ROT4 = opt("rot4", 0)
BAR = opt("bar", 0)
NS1 = opt("ns1", 3)
ALIAS = opt("alias", 1)
TESTH1 = opt("testh1", 0)
TFL = opt("tfl", "nt")
TOUCH = opt("touch", 0)
LFL = opt("lfl", "").replace("_", " ")
PFL = opt("pfl", "sc1").replace("_", " ")
OFL = opt("ofl", "").replace("_", " ")
TS = opt("ts", 0)
SPFON = opt("spf", 1)
PFB = opt("pfb", 6)
MAP1 = opt("map1", 162)
WAKE = opt("wake", 0)
LCAP = opt("lcap", 10)
SPREAD = opt("spread", 0.8)
DPOS = opt("dpos", 0.25)
NOSY = opt("nosy", "")
EARLY = opt("early", 1)
DSLEEP = opt("dsleep", 1)
ONLY = opt("only", 0)
NOLOAD = opt("noload", "")
NOMFMA = opt("nomfma", 0)
KN = "sequential_preLN__sliding_block__dense_activation_silu__prompt_kernel"
SPLIT = 4

MB = 1 << 20; KB = 1024
WS_AR, WS_H, WS_AR2 = 0, 20 * MB, 24 * MB
AR_K, AR_V, AR_O = 0, 16 * KB, 32 * KB
WS_STAT = 40 * MB
WS_CS1 = 41 * MB
WS_CS2 = 41 * MB + 256 * KB
WS_RA = 41 * MB + 768 * KB
WS_RB = WS_RA + 8 * KB
WS_F1 = 41 * MB + 896 * KB
WS_F2 = WS_F1 + 4 * KB; WS_F3 = WS_F2 + 8 * KB; WS_F4 = WS_F3 + 4 * KB; WS_F5 = WS_F4 + 4 * KB
WS_F6 = WS_F5 + 8 * KB; WS_F7 = WS_F6 + 2 * KB; WS_F8 = WS_F7 + 1 * KB
WS_DBG = 48 * MB
WS_PART = 52 * MB
WSOFF = opt("wsoff", 0)
WS_BYTES = (256 - WSOFF) * MB
LOG2E = 1.4426950408889634
LDS_BYTES = 160 * KB
MISC = LDS_BYTES - 6 * KB
L_RA, L_CS = MISC, MISC + 1024
L_DONE, L_FULL, L_HD, L_EP = MISC + 2048, MISC + 3072, MISC + 4096, MISC + 5120
L_MODE = L_HD + 512
vDW, vFR, vCNT, vFV = 252, 253, 254, 255
SPIN_MAX = 1 << 16
LSPIN_MAX = 1 << 22

def f32(x): return "0x%08x" % struct.unpack("<I", struct.pack("<f", x))[0]
def v(a, n=1): return f"v{a}" if n == 1 else f"v[{a}:{a+n-1}]"
def s(a, n=1): return f"s{a}" if n == 1 else f"s[{a}:{a+n-1}]"

SX, SWS, SB, SD = 4, 8, 12, 16
sWAVE, sW, sG, sR, sRB, sCB, sBC, sBH, sWM, sWN = 20, 21, 22, 23, 24, 25, 26, 27, 28, 29
pX, pWQKV, pWO, pW1, pW2, pOUT, pDBG, pWS = 48, 50, 52, 56, 58, 60, 62, 64
sMODE = 54; sT0 = 55
sAR, sBR, sM0A, sM0B, sM0H, sKS, sCNT, sNEED, sC0 = 66, 67, 68, 69, 70, 71, 72, 73, 74
sST = 76
sOWN, sROT, sAK, sBK = 60 + 40, 60 + 41, 98, 99


A = Asm()
def e(t): A.e(t)
STAMP_NAMES = {}
class Stamper:
    def __init__(self, role): self.role = role; self.names = ["start"]
    def __call__(self, name):
        if not STAMPS: return
        if name in SKIP: return
        n = len(self.names)
        assert n < 19, self.names
        e(f"{STAMP_OP} {s(sST,2)}\ns_waitcnt lgkmcnt(0)\ns_mov_b32 s{78+n}, s{sST}")
        self.names.append(name)
    def fork(self, role):
        t = Stamper(role); t.names = list(self.names); return t
    def flush(self):
        if not STAMPS: return
        self("end")
        n = len(self.names); self.names.append("nslow")
        e(f"s_mul_i32 s0, s0, {1000 if STAMP_OP == 's_memtime' else 100}\ns_add_u32 s{78+n}, s78, s0")
        STAMP_NAMES[self.role] = self.names
        e("s_waitcnt vmcnt(0)")
        for i in range(24): e(f"v_mov_b32 v{8+i}, s{78+min(i,len(self.names)-1)}")
        e(f"s_lshl_b32 s30, s2, 10\ns_lshl_b32 s31, s{sWAVE}, 7\ns_add_u32 s30, s30, s31\ns_add_u32 s30, s30, {WS_DBG}")
        e("v_mov_b32 v2, 0\ns_mov_b64 exec, 1")
        for i in range(6): e(f"buffer_store_dwordx4 {v(8+4*i,4)}, v2, {s(SWS,4)}, s30 offen offset:{16*i}")
        e("s_mov_b64 exec, -1")
        if DBGOUT >= 0 and self.role == "C":
            L = A.newlabel("nodbg")
            e(f"s_cmp_lg_u32 s2, {DBGOUT}\ns_cbranch_scc1 {L}\ns_cmp_lg_u32 s{sWAVE}, 0\ns_cbranch_scc1 {L}")
            srd(SD, pDBG, 256)
            for i in range(16): e(f"v_sub_u32 v{40+i}, v{8+2+i}, v8")
            e("s_mov_b64 exec, 1")
            for i in range(4): e(f"buffer_store_dwordx4 {v(40+4*i,4)}, v2, {s(SD,4)}, 0 offen offset:{16*i} sc1")
            e("s_mov_b64 exec, -1")
            A.label(L)

class VmQ:
    def __init__(self): self.q = []
    def add(self, tag, n=1): self.q += [tag] * n
    def has(self, tag): return tag in self.q
    def after(self, tag):
        if tag not in self.q: return 99
        return len(self.q) - 1 - max(i for i, t in enumerate(self.q) if t == tag)
    def wait(self, tag):
        if tag not in self.q: return
        n = self.after(tag)
        assert n <= 63, n
        e(f"s_waitcnt vmcnt({n})")
        self.q = self.q[len(self.q) - n:]
    def wait_all(self):
        e("s_waitcnt vmcnt(0)"); self.q = []

def set_exec(mask):
    if mask == (1 << 64) - 1: e("s_mov_b64 exec, -1")
    elif mask <= 64: e(f"s_mov_b64 exec, {mask}")
    else: e(f"s_mov_b32 exec_lo, {hex(mask & 0xffffffff)}\ns_mov_b32 exec_hi, {hex(mask >> 32)}")
def srd(d, base, nbytes):
    e(f"s_mov_b32 s{d}, s{base}\ns_and_b32 s{d+1}, s{base+1}, 0xffff\ns_mov_b32 s{d+2}, {nbytes}\ns_mov_b32 s{d+3}, 0x20000")
def xg_multi(op, regs, tmps):
    for sw in ("v_permlane16_swap_b32", "v_permlane32_swap_b32"):
        for r, t in zip(regs, tmps): e(f"v_mov_b32 v{t}, v{r}")
        for r, t in zip(regs, tmps): e(f"{sw} v{r}, v{t}")
        for r, t in zip(regs, tmps): e(f"{op} v{r}, v{r}, v{t}")
def round_bf16(r): e(f"v_cvt_pk_bf16_f32 v{r}, v{r}, v{r}\nv_and_b32 v{r}, 0xffff0000, v{r}")
def ln_finish(vsum, vm2, n):
    e(f"v_mul_f32 v{vsum}, {f32(1.0/n)}, v{vsum}"); round_bf16(vsum)
    e(f"v_mul_f32 v{vm2}, {f32(1.0/n)}, v{vm2}"); round_bf16(vm2)
    e(f"v_add_f32 v{vm2}, {f32(1e-5)}, v{vm2}"); round_bf16(vm2)
    e(f"v_sqrt_f32 v{vm2}, v{vm2}"); round_bf16(vm2)
    e(f"v_rcp_f32 v{vm2}, v{vm2}")
def pack(dst, c0, c1):
    e(f"v_cvt_pk_bf16_f32 v{dst}, v{c0}, v{c0+1}\nv_cvt_pk_bf16_f32 v{dst+1}, v{c0+2}, v{c0+3}")
    e(f"v_cvt_pk_bf16_f32 v{dst+2}, v{c1}, v{c1+1}\nv_cvt_pk_bf16_f32 v{dst+3}, v{c1+2}, v{c1+3}")
def unpack(lo, src): e(f"v_lshlrev_b32 v{lo}, 16, v{src}\nv_and_b32 v{lo+1}, 0xffff0000, v{src}")

def set_flag(soff, st="sc1", val=1, t=5):
    e(f"v_mov_b32 v{t}, 0\nv_mov_b32 v{t+1}, {val}\ns_mov_b64 exec, 1\nbuffer_store_dword v{t+1}, v{t}, {s(SWS,4)}, s{soff} offen {st}\ns_mov_b64 exec, -1")

def poll(soff, nlanes, voff=None, x2=False, srd_=SWS, mask=1, t=8, sleep=None):
    L = A.newlabel("poll"); X = A.newlabel("pollx")
    if voff is None:
        e(f"v_lshlrev_b32 v{t+2}, {3 if x2 else 2}, v1"); voff = t + 2
    if nlanes < 64: set_exec((1 << nlanes) - 1)
    e(f"s_mov_b32 s{sCNT}, 0")
    A.label(L)
    if x2: e(f"buffer_load_dwordx2 {v(t,2)}, v{voff}, {s(srd_,4)}, {soff} offen sc1")
    else: e(f"buffer_load_dword v{t}, v{voff}, {s(srd_,4)}, {soff} offen sc1")
    e(f"s_add_u32 s{sCNT}, s{sCNT}, 1\ns_cmp_gt_u32 s{sCNT}, {SPIN_MAX}\ns_waitcnt vmcnt(0)\ns_cbranch_scc1 {X}")
    if x2: e(f"v_and_b32 v{t}, v{t}, v{t+1}")
    e(f"v_and_b32 v{t}, {mask}, v{t}\nv_cmp_ne_u32 vcc, {mask}, v{t}")
    e(f"s_cbranch_vccz {X}\ns_sleep {PSLEEP if sleep is None else sleep}\ns_branch {L}")
    A.label(X)
    e("s_mov_b64 exec, -1")

sRDY = 40
def flags_refresh(Q, soff, voff, x2, shift=None):
    if flags_refresh.pending and not Q.has("look"):
        if x2: e("v_and_b32 v14, v14, v15")
        if shift: e(f"v_lshrrev_b32 v14, v{shift}, v14")
        e(f"v_and_b32 v14, 1, v14\nv_cmp_ne_u32 vcc, 1, v14\ns_and_b64 {s(sRDY,2)}, {s(sRDY,2)}, vcc")
        flags_refresh.pending = False
    if not flags_refresh.pending:
        e(f"s_cmp_eq_u64 {s(sRDY,2)}, 0\ns_cselect_b32 s30, {WS_BYTES}, s{soff}")
        e(f"buffer_load_dwordx2 v[14:15], v{voff}, {s(SWS,4)}, s30 offen sc1" if x2 else f"buffer_load_dword v14, v{voff}, {s(SWS,4)}, s30 offen sc1")
        Q.add("look"); flags_refresh.pending = True
flags_refresh.pending = False
def need_flags(bits, soff, voff, x2, shift=None):
    L, X = A.newlabel("nf"), A.newlabel("nfx")
    lo, hi = bits & 0xffffffff, bits >> 32
    def test():
        if lo and hi: e(f"s_and_b32 s30, s{sRDY}, {hex(lo)}\ns_and_b32 s31, s{sRDY+1}, {hex(hi)}\ns_or_b32 s30, s30, s31")
        elif lo: e(f"s_and_b32 s30, s{sRDY}, {hex(lo)}")
        else: e(f"s_and_b32 s30, s{sRDY+1}, {hex(hi)}")
    test()
    e(f"s_cbranch_scc0 {X}")
    A.label(L)
    if x2: e(f"buffer_load_dwordx2 v[8:9], v{voff}, {s(SWS,4)}, s{soff} offen sc1\ns_waitcnt vmcnt(0)\nv_and_b32 v8, v8, v9")
    else: e(f"buffer_load_dword v8, v{voff}, {s(SWS,4)}, s{soff} offen sc1\ns_waitcnt vmcnt(0)")
    if shift: e(f"v_lshrrev_b32 v8, v{shift}, v8")
    e(f"v_and_b32 v8, 1, v8\nv_cmp_ne_u32 {s(sRDY,2)}, 1, v8\ns_add_u32 s{sCNT}, s{sCNT}, 1\ns_cmp_gt_u32 s{sCNT}, {SPIN_MAX}\ns_cbranch_scc1 {X}")
    test()
    e(f"s_cbranch_scc1 {L}")
    A.label(X)

def gate_k(G, k, x2):
    n0 = GATEN[G.name]
    if k == 0: need_flags(sum(0xf << (4 * G.korder[j]) for j in range(n0)), 32, 10, x2)
    elif k >= n0: need_flags(0xf << (4 * G.korder[k]), 32, 10, x2)
def spoll(srd_, soff, n16, mask, base=32):
    X = A.newlabel("spx")
    e("s_mov_b32 s31, -1")
    for k in range(2 * n16):
        e(f"s_add_u32 s30, {soff}, {32*k}\ns_buffer_load_dwordx8 {s(base,8)}, {s(srd_,4)}, s30\ns_waitcnt lgkmcnt(0)")
        for i in range(1, 4): e(f"s_and_b64 {s(base,2)}, {s(base,2)}, {s(base+2*i,2)}")
        e(f"s_and_b32 s31, s31, s{base}\ns_and_b32 s31, s31, s{base+1}")
    e(f"s_and_b32 s31, s31, {mask}\ns_cmp_eq_u32 s31, {mask}\ns_cbranch_scc1 {X}")
    poll(soff, 16 * n16, srd_=srd_, mask=mask, t=8, sleep=16)
    A.label(X)

def lds_wait(vaddr, need, vt, sleep=1, off=0):
    L = A.newlabel("lw"); X = A.newlabel("lwx")
    A.label(L)
    e(f"ds_read_b32 v{vt}, v{vaddr} offset:{off}\ns_waitcnt lgkmcnt(0)\nv_cmp_gt_u32 vcc, {need}, v{vt}\ns_cbranch_vccz {X}")
    if sleep: e(f"s_sleep {sleep}")
    e(f"s_add_u32 s3, s3, 1\ns_cmp_lt_u32 s3, {LSPIN_MAX}\ns_cbranch_scc1 {L}")
    A.label(X)
OFF_DONE, OFF_FULL, OFF_HD, OFF_EP = 0, 1024, 2048, 3072
def sync_regs():
    e(f"s_lshl_b32 s30, s{sW}, 8\ns_add_u32 s30, s30, {L_DONE}\nv_lshl_add_u32 v{vDW}, v1, 2, s30")
    e(f"v_and_b32 v{vFR}, 3, v1\nv_mul_u32_u24 v{vFR}, 260, v{vFR}\nv_add_u32 v{vFR}, {L_DONE}, v{vFR}")
def post(off, val, t=vFV):
    e(f"v_mov_b32 v{t}, {val}\nds_write_b32 v{vDW}, v{t} offset:{off}")
def wait_rows(off, need, sleep=1): lds_wait(vFR, need, vFV, sleep=sleep, off=off)

class Gemm:
    PA, PB, PH = 232, 236, 240
    def __init__(self, name, base, TM, TN, NK, NS, KBsrc, ldb, kperm, araw=False, NSB=None, bslot=None, RP=0, alay="rt"):
        self.alay = "raw" if araw else alay
        self.name, self.base, self.TM, self.TN, self.NK, self.NS = name, base, TM, TN, NK, NS
        self.KB, self.ldb, self.kperm, self.araw, self.RP = KBsrc, ldb, kperm, araw, RP
        self.NSB = NSB or NS
        self.MT, self.NT = TM // 32, TN // 32
        self.nfull, self.half = TN // 64, (TN % 64) != 0
        self.a_stage = TM * 128
        b0 = NS * self.a_stage
        self.b0 = b0
        self.b_base = [b0 + j * self.NSB * 8192 for j in range(self.nfull)]
        self.h_base = b0 + self.nfull * self.NSB * 8192
        self.bslot = bslot or (lambda step: step % self.NSB)
        assert self.h_base + (self.NSB * 4096 if self.half else 0) <= MISC
        MT, NT = self.MT, self.NT
        self.FA = [8, 8 + 4 * MT + 4 * NT]
        self.FB = [self.FA[0] + 4 * MT, self.FA[1] + 4 * MT]
        nxt = self.FA[1] + 4 * MT + 4 * NT
        self.VA = nxt; nxt += 8 if self.alay == "bm" else 2
        self.VB = nxt; nxt += NT
        self.bhi = self.NSB * 8192 > 65536
        self.VB2 = nxt
        if self.bhi: nxt += NT
        nxt = (nxt + 3) // 4 * 4
        self.ACC = nxt; nxt += MT * NT * 4
        self.VX = nxt
        assert nxt <= vDW
        self.RTW = TM // 32
    def acc(self, mt, nt): return self.ACC + (nt * self.MT + mt) * 4
    def swapped(self, nt): return True
    def blk_delta(self, j): return 128 * j

    def c_setup(self):
        MT = self.MT
        if self.araw:
            e(f"""
s_lshl_b32 s30, s{sWM}, 13
v_lshl_add_u32 v5, v4, 7, s30
v_lshrrev_b32 v6, 1, v4
v_xor_b32 v6, v6, v3
v_lshl_add_u32 v{self.VA}, v6, 4, v5
v_xor_b32 v6, 4, v6
v_lshl_add_u32 v{self.VA+1}, v6, 4, v5
""")
        elif self.alay == "bm":
            for p in range(4):
                e(f"s_add_u32 s30, s{sKS}, {p}\ns_and_b32 s30, s30, 3\ns_lshl_b32 s30, s30, 11\ns_lshl_b32 s31, s{sWM}, 14\ns_add_u32 s30, s30, s31")
                e(f"v_lshl_add_u32 v{self.VA+p}, v1, 4, s30\nv_add_u32 v{self.VA+4+p}, 0x10000, v{self.VA+p}")
        else:
            e(f"s_mul_i32 s30, s{sWM}, {MT*2048}\nv_lshl_add_u32 v{self.VA}, v1, 4, s30\nv_add_u32 v{self.VA+1}, 0x10000, v{self.VA}")
        e("v_bfe_u32 v5, v1, 2, 2\nv_and_b32 v6, 3, v1")
        if self.kperm: e("v_lshl_add_u32 v7, v3, 2, v5\nv_bfe_u32 v2, v7, 1, 2")
        else: e("v_lshl_add_u32 v7, v3, 3, v5\nv_lshrrev_b32 v2, 1, v5\nv_and_b32 v8, 1, v3\nv_lshl_or_b32 v2, v8, 1, v2")
        e("v_mov_b32 v9, v7\nv_lshlrev_b32 v7, 7, v7\nv_lshl_add_u32 v7, v6, 3, v7")
        for t, (kind, blk, seg) in enumerate(self.tiles()):
            vb = self.VB + t
            if kind == "F":
                e(f"s_mul_i32 s30, s{sWN}, {seg[1]}\ns_add_u32 s30, s30, {seg[0]}")
                e(f"v_xor_b32 v8, s30, v2\nv_lshl_add_u32 v{vb}, v8, 5, v7")
                e(f"s_mul_i32 s30, s{sWN}, {blk[1]*self.NSB*8192}\ns_add_u32 s30, s30, {self.b_base[0] + blk[0]*self.NSB*8192}")
                e(f"v_add_u32 v{vb}, s30, v{vb}")
            else:
                e(f"v_bfe_u32 v8, v9, 2, 1\nv_xor_b32 v8, s{sWN}, v8\nv_lshlrev_b32 v8, 5, v8")
                e(f"v_lshl_add_u32 v8, v9, 6, v8\nv_lshl_add_u32 v8, v6, 3, v8\nv_add_u32 v{vb}, {self.h_base}, v8")
            if self.bhi: e(f"v_add_u32 v{self.VB2+t}, 0x10000, v{vb}")
        if not self.czero():
            for r in range(self.ACC, self.ACC + self.MT * self.NT * 4, 2): e(f"v_mov_b64 {v(r,2)}, 0")
    def b_read(self, step, sub, t, dst):
        kind = self.tiles()[t][0]; sb = self.bslot(step); out = []
        for hi in range(2):
            rows = 32 * sub + (16 if self.kperm else 4) * hi
            off = sb * 8192 + rows * 128 if kind == "F" else sb * 4096 + rows * 64
            base = self.VB + t
            if off > 0xffff: base, off = self.VB2 + t, off - 0x10000
            out.append(f"ds_read_b64_tr_b16 {v(dst+2*hi,2)}, v{base} offset:{off}")
        return out
    def a_read(self, step, sub, mt, dst):
        sa = step % self.NS
        if self.araw: base, off = self.VA + sub, sa * self.a_stage + mt * 2048
        elif self.alay == "bm":
            off = sa * self.a_stage + sub * 8192 + (mt & 1) * 1024
            base = self.VA + (mt >> 1) + 4 * (off >> 16); off &= 0xffff
        else:
            off = sa * self.a_stage + mt * 2048 + sub * 1024
            base = self.VA + (off >> 16); off &= 0xffff
        return f"ds_read_b128 {v(dst,4)}, v{base} offset:{off}"
    def reads(self, step, sub, fs):
        out = []
        for t in range(self.NT):
            out += self.b_read(step, sub, t, self.FB[fs] + 4 * t)
            if t == 0: out += [self.a_read(step, sub, mt, self.FA[fs] + 4 * mt) for mt in range(self.MT)]
        return out
    def czero(self): return self.NSB != self.NS or (self.NK - 1) % self.NS != 0
    def mfmas(self, fs, zero=False):
        out = []
        for t in range(self.NT):
            for mt in (range(self.MT) if t % 2 == 0 else reversed(range(self.MT))):
                a, w, c = v(self.FA[fs] + 4 * mt, 4), v(self.FB[fs] + 4 * t, 4), v(self.acc(mt, t), 4)
                ci = "0" if zero else c
                out.append(f"v_mfma_f32_16x16x32_bf16 {c}, {w}, {a}, {ci}" if self.swapped(t) else
                           f"v_mfma_f32_16x16x32_bf16 {c}, {a}, {w}, {ci}")
        if NOMFMA: out = ["s_nop 0"] * len(out)
        return out
    def c_loop(self, ST, pre_last=None, last_fill=(), nsteps=None):
        NS, NK, n = self.NS, nsteps or self.NK, self.name
        def inter(m, r, extra=()):
            extra = list(extra); per = -(-len(extra) // len(m)) if extra else 0
            for i in range(max(len(m), len(r))):
                if i < len(m): e(m[i])
                if i < len(r): e(r[i])
                for x in extra[i * per:(i + 1) * per]: e(x)
        def captured(f):
            saved = A.lines; A.lines = []
            if f: f()
            out = [ln for ln in A.lines if ln.strip()]; A.lines = saved
            return out
        def step(k, last=False):
            e("s_waitcnt lgkmcnt(0)")
            inter(self.mfmas(0, k == 0 and self.czero()), self.reads(k, 1, 1), captured(pre_last) if last else ())
            e("s_waitcnt lgkmcnt(0)\ns_barrier")
            inter(self.mfmas(1), list(last_fill) if last else self.reads(k + 1, 0, 0))
        e("s_barrier")
        ST(n + "_go")
        for r in self.reads(0, 0, 0): e(r)
        body = NK - 1
        if self.NSB != NS:
            for k in range(body): step(k)
        else:
            k = 0
            for i in range(body % NS):
                step(k); k += 1
            e(f"s_mov_b32 s{sCNT}, {body // NS}")
            A.label(f"{n}_cloop")
            for i in range(NS):
                step(k); k += 1
            e(f"s_sub_u32 s{sCNT}, s{sCNT}, 1\ns_cmp_lg_u32 s{sCNT}, 0\ns_cbranch_scc1 {n}_cloop")
        step(NK - 1, last=True)
        if not nsteps: ST(n + "_end")

    def p_setup_b(self, w=sW):
        ldb, PB = self.ldb, self.PB
        e(f"""
s_lshl_b32 s{sM0B}, s{w}, 12
s_lshl_b32 s{sM0H}, s{w}, 11
v_lshrrev_b32 v246, 3, v1
s_lshl_b32 s30, s{w}, 5
v_add_u32 v246, s30, v246
v_mul_u32_u24 v246, {ldb}, v246
v_and_b32 v247, 1, v1
v_lshl_add_u32 v246, v247, 4, v246
v_add_u32 v246, s{sBC}, v246
v_bfe_u32 v247, v1, 1, 2
""")
        if self.kperm:
            e(f"v_xor_b32 v245, v247, v3\nv_lshl_add_u32 v{PB}, v245, 5, v246\nv_add_u32 v{PB+1}, {8*ldb-1024}, v{PB}")
        else:
            e(f"v_and_b32 v245, 1, v3\nv_xor_b32 v245, v247, v245\nv_lshl_add_u32 v{PB}, v245, 5, v246")
            e(f"v_xor_b32 v245, 2, v245\nv_lshl_add_u32 v{PB+1}, v245, 5, v246\nv_add_u32 v{PB+1}, {8*ldb-1024}, v{PB+1}")
        e(f"v_add_u32 v{PB+2}, {16*ldb-2048}, v{PB}\nv_add_u32 v{PB+3}, {16*ldb-2048}, v{PB+1}")
        if self.half:
            e(f"""
v_lshrrev_b32 v246, 2, v1
v_add_u32 v246, s30, v246
v_mul_u32_u24 v246, {ldb}, v246
v_and_b32 v247, 1, v1
v_lshl_add_u32 v246, v247, 4, v246
v_add_u32 v246, s{sBH}, v246
v_bfe_u32 v247, v1, 1, 1
v_and_b32 v245, 1, v3
v_xor_b32 v245, v247, v245
v_lshl_add_u32 v{self.PH}, v245, 5, v246
v_add_u32 v{self.PH+1}, {16*ldb-1024}, v{self.PH}
""")
    def p_setup_a(self):
        PA = self.PA
        if self.araw:
            e(f"""
s_lshl_b32 s{sM0A}, s{sW}, 13
v_lshrrev_b32 v246, 3, v1
s_lshl_b32 s30, s{sW}, 6
v_add_u32 v246, s30, v246
v_lshlrev_b32 v246, 11, v246
v_and_b32 v247, 7, v1
v_xor_b32 v247, v247, v3
v_lshl_add_u32 v{PA}, v247, 4, v246
v_xor_b32 v247, 4, v247
v_lshl_add_u32 v{PA+1}, v247, 4, v246
v_add_u32 v{PA+1}, {8*2048-1024}, v{PA+1}
v_add_u32 v{PA+2}, {16*2048-2048}, v{PA}
v_add_u32 v{PA+3}, {16*2048-2048}, v{PA+1}
""")
        else:
            e(f"s_mul_i32 s{sM0A}, s{sW}, {self.RTW*2048}\ns_mul_i32 s30, s{sW}, {self.RTW*self.KB*1024}\nv_lshl_add_u32 v{PA}, v1, 4, s30")
            e(f"v_add_u32 v{PA+1}, {self.KB*1024-2048}, v{PA}")
    astride = 2048
    rot = True
    arot = True
    korder = list(range(16))
    def kbase(self, dst, base, step, stride):
        e(f"s_add_u32 s{dst}, s{base}, {self.korder[step] * stride}")
    def a_src(self, i, step): e(f"s_add_u32 s31, s{sAK}, {2*i*self.KB*1024}")
    def groups_a(self, step):
        st = step % self.NS
        out = []
        for gi in range(self.RTW // 2):
            def fn(gi=gi):
                if gi == 0 and self.arot: self.kbase(sAK, sAR, step, 128 if self.araw else self.astride)
                e(f"s_add_u32 m0, s{sM0A}, {st*self.a_stage + gi*4096}")
                if self.araw:
                    e(f"s_add_u32 s31, s{sAK}, {gi*32*2048}")
                    for i in range(4): e(f"buffer_load_dwordx4 v{self.PA+i}, {s(SX,4)}, s31 offen offset:{i*1024} lds")
                else:
                    self.a_src(gi, step)
                    for i in range(4): e(f"buffer_load_dwordx4 v{self.PA+(i>>1)}, {s(SWS,4)}, s31 offen offset:{i*1024} sc1 lds")
            out.append((step, 4, fn))
        return out
    def b_parts(self, step):
        sb = self.bslot(step); ko = 0 if self.rot else step * 64 * self.ldb
        out = [(sM0B, self.b_base[j] + sb * 8192, ko + self.blk_delta(j), self.PB, 4) for j in range(self.nfull)]
        if self.half: out.append((sM0H, self.h_base + sb * 4096, ko, self.PH, 2))
        return out
    def groups_b(self, step):
        out = []
        for idx, (m0s, lc, sc, vb, n) in enumerate(self.b_parts(step)):
            def fn(m0s=m0s, lc=lc, sc=sc, vb=vb, n=n, idx=idx):
                if idx == 0 and self.rot: self.kbase(sBK, sBR, step, 64 * self.ldb)
                e(f"s_add_u32 m0, s{m0s}, {lc}\ns_add_u32 s31, s{sBK if self.rot else sBR}, {sc}")
                for i in range(n): e(f"buffer_load_dwordx4 v{vb+i}, {s(SB,4)}, s31 offen offset:{i*1024} {'nt' if self.name == 'qkv' and step < 2 * NTK else ''} lds")
            out.append((step, n, fn))
        return out
    def issue_b(self, Q, step):
        for tag, n, fn in self.groups_b(step):
            fn(); Q.add(tag, n)
    def p_loop(self, Q, ST, b_pre, npf=0, every=1, gate=None, tail=None, look=None, merge=False):
        NS, NK, NSB = self.NS, self.NK, self.NSB
        def iss(g):
            for tag, n, fn in g:
                fn(); Q.add(tag, n)
        ga = lambda k: ([(k, 0, lambda: gate(k))] if gate else []) + self.groups_a(k)
        def gr(k):
            kb = k - NS + NSB
            return (self.groups_b(kb) if b_pre <= kb < NK else []) + ga(k)
        first = lambda k: (self.groups_b(k) if k >= b_pre else []) + ga(k)
        if gate: e(f"s_mov_b64 {s(sRDY,2)}, -1\ns_mov_b32 s{sCNT}, 0")
        flags_refresh.pending = False
        iss(first(0))
        if gate: ST(self.name + "_seen")
        if BSEEN and self.name == "w1": post(OFF_FULL, 1)
        g1 = first(1)
        P1G_ = (99 if GATEN.get(self.name, 2) > 1 else 0) if gate else P1G
        iss(g1[:P1G_])
        for i in range(NK):
            if merge and i == NK - 2:
                Q.wait(NK - 1); e("s_barrier"); return
            Q.wait(i)
            if self.name == DST and i in DW: ST(f"w{i}")
            e("s_barrier")
            if self.name == DST and i in DB: ST(f"b{i}")
            if look and (ASYNC or self.name == 'w2') and i in look[0]: flags_refresh(Q, *look[1])
            if i == 0:
                iss(g1[P1G_:])
                for k in range(2, NS): iss(first(k))
            elif i - 1 + NS < NK: iss(gr(i - 1 + NS))
            if tail and i - 1 + NS == NK - 1 + TAILD: tail()
            if (self.name == "qkv" and i == 0) or (CWARM > 1 and i == NK - 2): code_warm()
            if npf and (PFD0 if self.name == 'qkv' else 1) <= i < NK - 2 and i % every == 0: pf_step(npf + (1 if self.name == 'w1' and i % 3 != 0 else 0))
        e("s_barrier")
        ST(self.name + "_dend")

class QKV(Gemm):
    def __init__(self): super().__init__("qkv", 0, 128, 192, 16, NS1, 32, 6144, False, araw=True)
    def tiles(self): return [("F", (t >> 1, 0), (t & 1, 2)) for t in range(6)]
    def swapped(self, nt): return nt < 4
    def blk_delta(self, j): return 2048 * j
class WO(Gemm):
    def __init__(self): super().__init__("wo", 16, 128, 64, 16, 4, 32, 2048, True, NSB=NSB3, bslot=lambda k: (k + 5) % NSB3)
    def tiles(self): return [("F", (0, 0), (t, 2)) for t in range(2)]
    def p_setup_a(self):
        e(f"s_lshl_b32 s{sM0A}, s{sW}, 13\nv_lshl_add_u32 v{self.PA}, v1, 4, s{sM0A}\nv_mov_b32 v{self.PA+1}, v{self.PA}")
        e(f"s_lshl_b32 s{sAR}, s{sRB}, 16\ns_add_u32 s{sAR}, s{sAR}, {WS_AR + AR_O}")
    astride = MB
    korder = [k for k in range(16) if k % 8 != 3] + [3, 11] if KORD else list(range(16))
    def a_src(self, i, step): e(f"s_add_u32 s31, s{sAK}, {i*4096}")
class W1(Gemm):
    def __init__(self): super().__init__("w1", 32, 128, 224, 16, 3, 32, 7168, True)
    korder = list(range(0, 16, 2)) + list(range(1, 16, 2)) if KORD else list(range(16))
    def tiles(self): return [("F", (0, 2), (t, 0)) for t in range(4)] + [("F", (1, 0), (t, 2)) for t in range(2)] + [("H", None, None)]
class W2(Gemm):
    def __init__(self): super().__init__("w2", 48, 256, 128, 14, 3, 112, 2048, True, alay="bm")
    arot = False
    def tiles(self): return [("F", (0, 1), (t, 0)) for t in range(4)]
    def p_setup_a(self):
        e(f"s_lshl_b32 s{sM0A}, s{sW}, 14\nv_lshlrev_b32 v{self.PA}, 4, v1\nv_mov_b32 v{self.PA+1}, v{self.PA}")
        h1_base(sAR)
        e(f"s_lshl_b32 s30, s{sG}, 5\ns_bfe_u32 s31, s{sRB}, 0x20001\ns_add_u32 s30, s30, s31\ns_lshl_b32 s31, s{sW}, 4\ns_add_u32 s30, s30, s31\ns_lshl_b32 s30, s30, 16\ns_add_u32 s{sAR}, s{sAR}, s30")
    def blocks(self):
        if not EARLY5: return [(q // 7, q % 7, 1) for q in range(28)]
        early = [(c, (c & 1) + k, 1) for c in range(4) for k in (0, 4, 1, 5)]
        late = [(c, kb, 2) for c in range(4) for kb in range(7) if (c, kb, 1) not in early]
        return early + late
    def a_src(self, i, step):
        c, kb, _ = self.blocks()[2 * step + (i >> 1)]
        e(f"s_add_u32 s31, s{sAR}, {c*256*KB + kb*8192 + (i&1)*4096}")
    def kbase(self, dst, base, step, stride):
        o = [(c * 7 + kb) * 32 * self.ldb for c, kb, _ in self.blocks()[2 * step:2 * step + 2]]
        e(f"s_mul_i32 s{dst}, s{sWN}, {o[1] - o[0] - 32*self.ldb}\ns_add_u32 s{dst}, s{dst}, {o[0]}\ns_add_u32 s{dst}, s{dst}, s{base}")
G1, G3, G4, G5 = QKV(), WO(), W1(), W2()
_pf = opt("pfs", "X,Pv,X").split(",")
PFS = [(_pf[0][0], _pf[0][1:], pWO, 2 * MB, True, 249), (_pf[1][0], _pf[1][1:], pW1, 1024 * 7168, False, 248), (_pf[2][0], _pf[2][1:], pW2, 3584 * 2048, False, 250)]
L_K, L_V, L_Q = 0, 48 * KB, 96 * KB

def own_arena(dst, add=0):
    e(f"s_add_u32 s{dst}, s{sOWN}, {WS_AR + add}")
def h1_base(dst):
    e(f"s_cmp_lg_u32 s{sMODE}, 0\ns_cselect_b32 s{dst}, {WS_AR2}, {WS_AR if ALIAS else WS_AR2}")
def rowmajor_voff(dst, t):
    e(f"v_and_b32 v{t}, 1, v3\nv_lshlrev_b32 v{t}, 1, v{t}\nv_lshrrev_b32 v{dst}, 1, v3\nv_or_b32 v{t}, v{t}, v{dst}")
    e(f"v_lshlrev_b32 v{t}, 4, v{t}\nv_lshl_add_u32 v{dst}, v4, 11, v{t}")
def roles_84(rb=sRB, cb=sCB):
    e(f"s_and_b32 s{rb}, s{sG}, 1\ns_lshl_b32 s{rb}, s{rb}, 3\ns_and_b32 s30, s{sR}, 7\ns_add_u32 s{rb}, s{rb}, s30")
    e(f"s_lshr_b32 s{cb}, s{sG}, 1\ns_lshl_b32 s{cb}, s{cb}, 2\ns_lshr_b32 s30, s{sR}, 3\ns_add_u32 s{cb}, s{cb}, s30")
def roles_p1(rb=sRB, cb=sCB):
    if MAP1 == 84: return roles_84(rb, cb)
    e(f"s_lshr_b32 s{rb}, s{sR}, 1\ns_and_b32 s30, s{sR}, 1\ns_lshl_b32 s{cb}, s{sG}, 1\ns_add_u32 s{cb}, s{cb}, s30")
def roles_48(rb=sRB, cb=sCB):
    if not KORD:
        e(f"s_and_b32 s{rb}, s{sG}, 3\ns_lshl_b32 s{rb}, s{rb}, 2\ns_and_b32 s30, s{sR}, 3\ns_add_u32 s{rb}, s{rb}, s30")
        e(f"s_lshr_b32 s{cb}, s{sG}, 2\ns_lshl_b32 s{cb}, s{cb}, 3\ns_lshr_b32 s30, s{sR}, 2\ns_add_u32 s{cb}, s{cb}, s30")
        return
    e(f"s_and_b32 s{rb}, s{sG}, 3\ns_lshl_b32 s{rb}, s{rb}, 2\ns_bfe_u32 s30, s{sR}, 0x20001\ns_add_u32 s{rb}, s{rb}, s30")
    e(f"s_lshr_b32 s{cb}, s{sG}, 2\ns_lshl_b32 s{cb}, s{cb}, 2\ns_lshr_b32 s30, s{sR}, 3\ns_add_u32 s{cb}, s{cb}, s30\ns_lshl_b32 s{cb}, s{cb}, 1\ns_and_b32 s30, s{sR}, 1\ns_add_u32 s{cb}, s{cb}, s30")
def roles_w2(rb=sRB, cb=sCB, ks=sKS):
    e(f"s_and_b32 s{rb}, s{sG}, 1\ns_lshl_b32 s{rb}, s{rb}, 2\ns_and_b32 s30, s{sR}, 3\ns_add_u32 s{rb}, s{rb}, s30\ns_lshl_b32 s{rb}, s{rb}, 1")
    e(f"s_lshr_b32 s{cb}, s{sR}, 2\ns_lshr_b32 s{ks}, s{sG}, 1")
def b_src_wo(cb=sCB):
    srd(SB, pWO, 2 * MB); e(f"s_lshl_b32 s{sBC}, s{cb}, 7\ns_mov_b32 s{sBR}, 0\ns_lshl_b32 s{sROT}, s{cb}, 1\ns_and_b32 s{sROT}, s{sROT}, {15 if ROT3 else 0}")
def b_src_w1():
    srd(SB, pW1, 1024 * 7168)
    e(f"""
s_mul_i32 s{sBH}, s{sCB}, 448
s_and_b32 s30, s{sCB}, 1
s_lshl_b32 s{sBC}, s30, 6
s_add_u32 s{sBC}, s{sBC}, s{sBH}
s_xor_b32 s30, s30, 1
s_mul_i32 s30, s30, 384
s_add_u32 s{sBH}, s{sBH}, s30
s_mov_b32 s{sBR}, 0
s_lshl_b32 s{sROT}, s{sCB}, 2
s_and_b32 s{sROT}, s{sROT}, {15 if ROT4 else 0}
""")
def b_src_w2():
    srd(SB, pW2, 3584 * 2048); e(f"s_lshl_b32 s{sBC}, s{sCB}, 8\ns_mul_i32 s{sBR}, s{sKS}, {G5.NK*64*2048}")
def flag_addr(dst, base, hi, lo, nw, wave):
    e(f"s_lshl_b32 s{dst}, s{hi}, 4\ns_add_u32 s{dst}, s{dst}, s{lo}\ns_mul_i32 s{dst}, s{dst}, {nw}")
    if wave is not None: e(f"s_add_u32 s{dst}, s{dst}, s{wave}")
    e(f"s_lshl_b32 s{dst}, s{dst}, 2\ns_add_u32 s{dst}, s{dst}, {base}")
def dual(fn, sreg):
    S, X = A.newlabel("slowst"), A.newlabel("stx")
    e(f"s_cmp_lg_u32 s{sreg}, 0\ns_cbranch_scc1 {S}")
    fn(LFL)
    e(f"s_branch {X}")
    A.label(S)
    fn("sc1")
    A.label(X)

def attn_setup():
    e(f"v_lshlrev_b32 v5, 2, v3\nv_mov_b32 v6, {f32(-1e30)}")
    for k in range(4):
        e(f"v_add_u32 v7, {k}, v5\nv_cmp_gt_u32 vcc, v7, v4\nv_cndmask_b32 v{56+k}, v6, 0, vcc\nv_cndmask_b32 v{60+k}, 0, v6, vcc".replace("v_cndmask_b32 v%d, v6, 0, vcc" % (56 + k), "v_cndmask_b32_e64 v%d, v6, 0, vcc" % (56 + k)))
    e(f"""
s_lshl_b32 s36, s{sRB}, 2
s_add_u32 s36, s36, s38
s_sub_i32 s36, 8, s36
s_max_i32 s36, s36, 0
s_mul_i32 s37, s{sWN}, 24
s_lshl_b32 s39, s38, 1
s_add_u32 s37, s37, s39
s_lshl_b32 s37, s37, 10
v_lshl_add_u32 v5, v1, 4, s37
v_add_u32 v7, {L_V}, v5
""")
    own_arena(34, AR_O)
    e(f"s_lshl_b32 s35, s38, 12\ns_add_u32 s34, s34, s35\ns_lshl_b32 s35, s{sWN}, 10\ns_add_u32 s34, s34, s35\ns_add_u32 s35, s34, 2048")
    flag_addr(33, WS_F2, sRB, sCB, 8, sWAVE)

def attention(ST, is_p, Q=None):
    n = "attp" if is_p else "attc"
    S = 64; KF = 24; VF = 24; O = 208; MX = 232
    def sr(qt, u): return S + (qt * 18 + u) * 4
    dead = lambda qt, u: (qt == 0 and u == 17) or (qt == 1 and u == 0)
    def PF(pos):
        for role, at, ptr, nbytes, rev, dst in PFS:
            if role == ("P" if is_p else "C") and at == pos:
                srd(SB, ptr, nbytes)
                e(f"s_xor_b32 s30, s2, {255 if rev else 0}\ns_lshl_b32 s30, s30, 2\ns_add_u32 s30, s30, s{sW}\ns_lshl_b32 s30, s30, 13\nv_lshlrev_b32 v251, 7, v1")
                e(f"buffer_load_dword v{dst}, v251, {s(SB,4)}, s30 offen")
                if is_p: Q.add("pf")
    PF("nb")
    if is_p: Q.wait("nk")
    e("s_waitcnt lgkmcnt(0)\ns_barrier")
    if is_p:
        e(f"s_lshl_b32 s30, s{sW}, 11\ns_add_u32 s30, s30, {L_Q}\nv_lshl_add_u32 v2, v1, 4, s30\nds_read_b128 v[8:11], v2\nds_read_b128 v[12:15], v2 offset:1024")
    ST("att_k")
    for u in range(8): e(f"ds_read_b128 {v(KF+4*u,4)}, v5 offset:{L_K + u*1024}")
    for k in range(4): e(f"v_mov_b32 v{16+k}, 0x3f803f80")
    for k in range(4): e(f"v_mov_b32 v{MX+k}, v6")
    for r in range(O, O + 24, 2): e(f"v_mov_b64 {v(r,2)}, 0")
    def s_phase(generic):
        pend = []
        def maxes(k):
            for _ in range(k):
                if pend: e(pend.pop(0))
        for u in range(18):
            issued = min(18, u + 8)
            e(f"s_waitcnt lgkmcnt({issued - (u+1)})")
            if generic and u % 2 == 0 and u < 16:
                e(f"s_cmp_gt_u32 s36, {u//2}\ns_cselect_b32 s30, {f32(-1e30)}, 0")
                for k in range(4): e(f"v_mov_b32 v{20+k}, s30")
            for qt in range(2):
                if dead(qt, u): continue
                c = "v[56:59]" if u == qt else "v[60:63]" if u == 16 + qt else "0"
                if generic and u < 16: c = "v[20:23]"
                e(f"v_mfma_f32_16x16x32_bf16 {v(sr(qt,u),4)}, {v(KF+4*(u%8),4)}, {v(8+4*qt,4)}, {c}")
                if len(pend) >= 8: maxes(2)
                r = sr(qt, u)
                pend.append(f"v_max3_f32 v{MX+2*qt}, v{r}, v{r+1}, v{MX+2*qt}")
                pend.append(f"v_max3_f32 v{MX+2*qt+1}, v{r+2}, v{r+3}, v{MX+2*qt+1}")
            if u + 8 < 18: e(f"ds_read_b128 {v(KF+4*(u%8),4)}, v5 offset:{L_K + (u+8)*1024}")
        maxes(99)
    Lg, Lx = A.newlabel("sgen"), A.newlabel("sx")
    e(f"s_cmp_lg_u32 s36, 0\ns_cbranch_scc1 {Lg}")
    s_phase(False)
    e(f"s_branch {Lx}")
    A.label(Lg)
    s_phase(True)
    A.label(Lx)
    if is_p: Q.wait("nv")
    e("s_barrier")
    ST("att_v")
    PF("v")
    CSC = (32 ** -0.5) * LOG2E
    e(f"s_mov_b32 s{sC0}, {f32(CSC)}\ns_mov_b32 s{sC0+1}, {f32(CSC)}")
    for q in range(6): e(f"ds_read_b128 {v(VF+4*q,4)}, v7 offset:{q*1024}")
    e(f"v_max_f32 v{MX}, v{MX}, v{MX+1}\nv_max_f32 v{MX+2}, v{MX+2}, v{MX+3}")
    xg_multi("v_max_f32", [MX, MX + 2], [MX + 1, MX + 3])
    e(f"v_mul_f32 v{MX}, {f32(-CSC)}, v{MX}\nv_mul_f32 v{MX+2}, {f32(-CSC)}, v{MX+2}")
    def pv(p):
        out = []
        for qt in range(2):
            P = v(sr(qt, 2 * p), 4)
            for dt in range(2):
                o = v(O + 12 * qt + 4 * dt, 4)
                out.append(f"v_mfma_f32_16x16x32_bf16 {o}, {v(VF+4*((2*p+dt)%8),4)}, {P}, {o}")
            o = v(O + 12 * qt + 8, 4)
            out.append(f"v_mfma_f32_16x16x32_bf16 {o}, v[16:19], {P}, {o}")
        return out
    for p in range(10):
        va = []
        if p < 9:
            live = [(qt, u) for qt in range(2) for u in (2 * p, 2 * p + 1) if not dead(qt, u)]
            for qt, u in live:
                r = sr(qt, u)
                if APK:
                    for h in range(2): va.append(f"v_pk_fma_f32 {v(r+2*h,2)}, {v(r+2*h,2)}, {s(sC0,2)}, {v(MX+2*qt,2)} op_sel_hi:[1,1,0]")
                else:
                    for k in range(4): va.append(f"v_fma_f32 v{r+k}, v{r+k}, s{sC0}, v{MX+2*qt}")
            for qt, u in live:
                for k in range(4): va.append(f"v_exp_f32 v{sr(qt,u)+k}, v{sr(qt,u)+k}")
            for qt, u in live:
                r = sr(qt, u); dst = sr(qt, 2 * p) + 2 * (u & 1)
                va.append(f"v_cvt_pk_bf16_f32 v{dst}, v{r}, v{r+1}"); va.append(f"v_cvt_pk_bf16_f32 v{dst+1}, v{r+2}, v{r+3}")
            if AMIX:
                nf = 2 if APK else 4; n_ = len(live)
                F = [va[i*nf:(i+1)*nf] for i in range(n_)]; E = [va[n_*nf+i*4:n_*nf+(i+1)*4] for i in range(n_)]; C_ = [va[n_*(nf+4)+i*2:n_*(nf+4)+(i+1)*2] for i in range(n_)]
                va = list(F[0])
                for i in range(n_):
                    other = (F[i+1] if i + 1 < n_ else []) + (C_[i-1] if i else [])
                    for k in range(4):
                        va.append(E[i][k]); va += other[k*len(other)//4:(k+1)*len(other)//4]
                va += C_[-1]
            if p == 8: va.append(f"v_mov_b64 {v(sr(0,16)+2,2)}, 0")
            if p == 0: va.append(f"v_mov_b64 {v(sr(1,0),2)}, 0")
        mm = pv(p - 1) if p > 0 else []
        if p > 0:
            issued = min(18, 2 * (p - 1) + 6)
            e(f"s_waitcnt lgkmcnt({issued - 2*p})")
        PF(f'pv{p}')
        gap = max(1, len(va) // 7)
        for i, x in enumerate(va):
            e(x)
            if i >= 1 and (i - 1) % gap == 0 and mm: e(mm.pop(0))
        for x in mm: e(x)
        if p > 0:
            for b in (2 * p + 4, 2 * p + 5):
                if b < 18: e(f"ds_read_b128 {v(VF+4*(b%8),4)}, v7 offset:{b*1024}")
    ST("att_pv")
    e("v_lshlrev_b32 v2, 4, v1")
    for qt in range(2):
        o = O + 12 * qt
        e(f"v_rcp_f32 v{o+8}, v{o+8}")
        for h in range(4): e(f"v_pk_mul_f32 {v(o+2*h,2)}, {v(o+2*h,2)}, {v(o+8,2)} op_sel_hi:[1,0]")
        for h in range(4): e(f"v_cvt_pk_bf16_f32 v{24+4*qt+h}, v{o+2*h}, v{o+2*h+1}")
        e(f"buffer_store_dwordx4 {v(24+4*qt,4)}, v2, {s(SWS,4)}, s{34+qt} offen sc1")

def consumer(ST):
    G = G1
    if SLOWPF:
        e(f"s_lshl_b32 s30, s2, 2\ns_add_u32 s30, s30, s{sW}\ns_mul_i32 s31, s30, 6144\ns_lshl_b32 s30, s30, 12\nv_lshlrev_b32 v5, 10, v1")
        e(f"s_mov_b64 exec, 0x3f\nbuffer_load_dword v250, v5, {s(SB,4)}, s31 offen offset:384")
        if SLOWPF > 1: e(f"s_mov_b64 exec, 0xf\nbuffer_load_dword v251, v5, {s(SX,4)}, s30 offen offset:384")
        e("s_mov_b64 exec, -1")
    e(f"v_mov_b32 v{vCNT}, 0")
    e(f"ds_write_b32 v{vDW}, v{vCNT} offset:{OFF_EP}\nds_write_b32 v{vDW}, v{vCNT} offset:{OFF_FULL}")
    G.c_setup()
    X = G.VX
    RA_, CSQ, VA_, VB_, CSV = X, X + 8, X + 24, X + 40, X + 56
    assert CSV + 4 <= vDW
    def pre_last1():
        if SLOWPF: e("s_waitcnt vmcnt(0)")
        e(f"s_lshl_b32 s30, s{sWM}, 8\ns_add_u32 s30, s30, {MISC}\nv_lshl_add_u32 v2, v4, 2, s30\nv_lshl_add_u32 v5, v3, 4, s30")
        e(f"s_lshl_b32 s30, s{sWN}, 7\ns_add_u32 s30, s30, {MISC}\nv_lshl_add_u32 v6, v3, 4, s30\nv_lshl_add_u32 v7, v4, 2, s30")
    fill = []
    for mt in range(4): fill += [f"ds_read_b32 v{RA_+2*mt}, v2 offset:{mt*64}", f"ds_read_b32 v{RA_+2*mt+1}, v2 offset:{512+mt*64}"]
    for t in (2, 3, 0, 1): fill.append(f"ds_read_b128 {v(CSQ+4*t,4)}, v6 offset:{1024 + (t>>1)*256 + (t&1)*64}")
    for mt in range(4): fill += [f"ds_read_b128 {v(VA_+4*mt,4)}, v5 offset:{mt*64}", f"ds_read_b128 {v(VB_+4*mt,4)}, v5 offset:{512+mt*64}"]
    for dt in range(2): fill.append(f"ds_read_b32 v{CSV+2*dt}, v7 offset:{1024 + 512 + dt*64}")
    fill.append(f"ds_read_b32 v{CSV+1}, v{vFR} offset:{OFF_HD}")
    own_arena(33, AR_K)
    e(f"""
s_lshl_b32 s30, s{sWN}, 13
s_add_u32 s33, s33, s30
s_lshl_b32 s30, s{sWM}, 12
s_add_u32 s33, s33, s30
s_add_u32 s34, s33, {AR_V - AR_K}
s_lshl_b32 s31, s{sWM}, 2
s_mul_i32 s35, s{sWN}, 24
s_add_u32 s35, s35, s31
s_add_u32 s35, s35, 16
s_lshl_b32 s35, s35, 10
s_lshl_b32 s36, s{sW}, 11
s_add_u32 s36, s36, {L_Q}
""")
    flag_addr(32, WS_F1, sCB, sRB, 4, sW)
    G.c_loop(ST, pre_last1, fill)
    e(f"s_waitcnt lgkmcnt(0)\nv_readfirstlane_b32 s{sMODE}, v{CSV+1}\nv_lshlrev_b32 v2, 4, v1\nv_add_u32 v5, s35, v2\nv_add_u32 v6, s36, v2")
    e(f"s_lshr_b32 s30, s{sRB}, 1\ns_cmp_eq_u32 s30, {3 if MAP1 == 84 else 99}\ns_cselect_b32 s{sT0}, 1, s{sMODE}")
    def fold_rows(mt, t):
        c = G.acc(mt, t); k = RA_ + 2 * mt
        for h in range(2): e(f"v_pk_mul_f32 {v(c+2*h,2)}, {v(c+2*h,2)}, {v(k,2)} op_sel_hi:[1,0]")
        for h in range(2): e(f"v_pk_fma_f32 {v(c+2*h,2)}, {v(CSQ+4*t+2*h,2)}, {v(k,2)}, {v(c+2*h,2)} op_sel:[0,1,0] op_sel_hi:[1,1,1]")
    def fold_v(mt, dt):
        c = G.acc(mt, 4 + dt)
        for h in range(2): e(f"v_pk_mul_f32 {v(c+2*h,2)}, {v(c+2*h,2)}, {v(VA_+4*mt+2*h,2)}")
        for h in range(2): e(f"v_pk_fma_f32 {v(c+2*h,2)}, {v(VB_+4*mt+2*h,2)}, {v(CSV+2*dt,2)}, {v(c+2*h,2)} op_sel_hi:[1,0,1]")
    def epi1(fl):
        t = 24
        for mt in range(4):
            fold_rows(mt, 2); fold_rows(mt, 3)
            pack(t, G.acc(mt, 2), G.acc(mt, 3))
            e(f"buffer_store_dwordx4 {v(t,4)}, v2, {s(SWS,4)}, s33 offen offset:{mt*1024} {fl or KVFL}"); t += 4
        for p in range(2):
            for dt in range(2):
                fold_v(2 * p, dt); fold_v(2 * p + 1, dt)
                pack(t, G.acc(2 * p, 4 + dt), G.acc(2 * p + 1, 4 + dt))
                e(f"buffer_store_dwordx4 {v(t,4)}, v2, {s(SWS,4)}, s34 offen offset:{(2*p+dt)*1024} {fl or KVFL}"); t += 4
        if KFLAG:
            e("s_waitcnt vmcnt(4)"); set_flag(32, fl.replace("nt", ""), t=64)
        for i in range(4): e(f"ds_write_b128 v5, {v(24+4*i,4)} offset:{L_K + i*1024}")
        for i in range(4): e(f"ds_write_b128 v5, {v(40+4*i,4)} offset:{L_V + i*1024}")
        for mt in (2, 3, 0, 1):
            fold_rows(mt, 0); fold_rows(mt, 1)
            d = 8 + 4 * mt
            pack(d, G.acc(mt, 0), G.acc(mt, 1))
            if mt >= 2: e(f"ds_write_b128 v6, {v(d,4)} offset:{(mt-2)*1024}")
        e("s_waitcnt vmcnt(0)")
        set_flag(32, fl.replace("nt", ""), val=3, t=64)
    dual(epi1, sT0)
    ST("kv_flag")
    e(f"s_lshl_b32 s38, s{sWM}, 1")
    attn_setup()
    attention(ST, False)
    G = G3
    roles_48()
    b_src_wo()
    G.p_setup_b(sWN)
    X = G.VX
    rowmajor_voff(X + 16, X + 17)
    e(f"""
s_lshl_b32 s35, s{sRB}, 1
s_add_u32 s35, s35, s{sWM}
s_lshl_b32 s36, s{sCB}, 1
s_add_u32 s36, s36, s{sWN}
s_lshl_b32 s32, s35, 17
s_lshl_b32 s31, s36, 6
s_add_u32 s32, s32, s31
""")
    G.c_setup()
    e("s_waitcnt vmcnt(0)")
    set_flag(33)
    ST("o_flag")
    Qc = VmQ()
    L1, L2 = A.newlabel("b3a"), A.newlabel("b3b")
    e(f"s_cmp_lg_u32 s{sWM}, 0\ns_cbranch_scc1 {L1}")
    for st in range(3): G.issue_b(Qc, st)
    e(f"s_branch {L2}")
    A.label(L1)
    for st in range(3, 6): G.issue_b(Qc, st)
    A.label(L2)
    e("s_barrier")
    for mt in range(4): e(f"s_add_u32 s31, s32, {mt*16*2048}\nbuffer_load_dwordx4 {v(X+4*mt,4)}, v{X+16}, {s(SX,4)}, s31 offen")
    e("s_waitcnt vmcnt(4)")
    e(f"""
s_lshl_b32 s37, s35, 17
s_lshl_b32 s31, s36, 10
s_add_u32 s37, s37, s31
s_add_u32 s37, s37, {WS_H}
s_lshl_b32 s38, s35, 14
s_lshl_b32 s31, s36, 9
s_add_u32 s38, s38, s31
s_add_u32 s38, s38, {WS_STAT}
""")
    flag_addr(32, WS_F3, sRB, sCB, 4, sW)
    HX = X + 24
    def pre_last3():
        e("s_waitcnt vmcnt(0)\nv_lshlrev_b32 v2, 4, v1")
        for mt in range(4):
            x = X + 4 * mt
            e(f"v_permlane16_swap_b32 v{x}, v{x+2}\nv_permlane16_swap_b32 v{x+1}, v{x+3}")
        for mt in range(4):
            for d in range(4): unpack(HX + 8 * mt + 2 * d, X + 4 * mt + d)
    G.c_loop(ST, pre_last3)
    for mt in range(4):
        x = X + 4 * mt; u = HX + 8 * mt
        pack(8, G.acc(mt, 0), G.acc(mt, 1))
        for d in range(4): unpack(12 + 2 * d, 8 + d)
        for d in range(4): e(f"v_pk_add_f32 {v(12+2*d,2)}, {v(12+2*d,2)}, {v(u+2*d,2)}")
        for d in range(4): e(f"v_cvt_pk_bf16_f32 v{x+d}, v{12+2*d}, v{13+2*d}")
        e(f"s_add_u32 s31, s37, {mt*32*1024}\nbuffer_store_dwordx4 {v(x,4)}, v2, {s(SWS,4)}, s31 offen sc1")
    for mt in range(4):
        x = X + 4 * mt; u = HX + 8 * mt
        for d in range(4): unpack(u + 2 * d, x + d)
        e(f"v_pk_add_f32 v[12:13], {v(u,2)}, {v(u+2,2)}\nv_pk_add_f32 v[14:15], {v(u+4,2)}, {v(u+6,2)}")
        e(f"v_pk_add_f32 v[12:13], v[12:13], v[14:15]\nv_add_f32 v{32+2*mt}, v12, v13")
    xg_multi("v_add_f32", [32, 34, 36, 38], [16, 17, 18, 19])
    for mt in range(4):
        u = HX + 8 * mt; sm = 32 + 2 * mt
        e(f"v_mul_f32 v12, {f32(1/32)}, v{sm}")
        for d in range(4): e(f"v_pk_add_f32 {v(u+2*d,2)}, {v(u+2*d,2)}, v[12:13] op_sel_hi:[1,0] neg_lo:[0,1] neg_hi:[0,1]")
        e(f"v_pk_mul_f32 v[14:15], {v(u,2)}, {v(u,2)}")
        for d in range(1, 4): e(f"v_pk_fma_f32 v[14:15], {v(u+2*d,2)}, {v(u+2*d,2)}, v[14:15]")
        e(f"v_add_f32 v{sm+1}, v14, v15")
    xg_multi("v_add_f32", [33, 35, 37, 39], [16, 17, 18, 19])
    for k in range(1, 4):
        e(f"v_cmp_eq_u32 vcc, {k}, v3\nv_cndmask_b32 v32, v32, v{32+2*k}, vcc\nv_cndmask_b32 v33, v33, v{33+2*k}, vcc")
    e(f"v_lshlrev_b32 v2, 3, v1\nbuffer_store_dwordx2 v[32:33], v2, {s(SWS,4)}, s38 offen sc1\ns_waitcnt vmcnt(1)")
    set_flag(32)
    post(OFF_EP, 2)
    ST("h_flag")
    G = G4
    roles_84()
    G.c_setup()
    e("s_waitcnt vmcnt(0)")
    set_flag(32, val=3)
    h1_base(37)
    e(f"""
s_and_b32 s39, s{sCB}, 1
s_add_u32 s32, s{sOWN}, s37
s_lshl_b32 s33, s{sWM}, 12
s_add_u32 s32, s32, s33
s_lshl_b32 s34, s{sWN}, 2
s_add_u32 s34, s34, s39
s_add_u32 s35, s39, s{sWN}
s_add_u32 s35, s35, 2
s_xor_b32 s36, s39, 1
s_mul_i32 s36, s36, 6
s_lshl_b32 s34, s34, 13
s_lshl_b32 s35, s35, 13
s_lshl_b32 s36, s36, 13
s_add_u32 s34, s34, s32
s_add_u32 s35, s35, s32
s_add_u32 s36, s36, s32
s_lshl_b32 s37, s{sWN}, 3
s_add_u32 s36, s36, s37
s_add_u32 s37, s34, 8192
s_mov_b32 s{sC0}, {f32(-LOG2E)}
s_mov_b32 s{sC0+1}, {f32(-LOG2E)}
""")
    flag_addr(38, WS_F4, sRB, sCB, 4, sW)
    def pre_last4():
        e(f"""
s_lshl_b32 s30, s{sWM}, 9
s_add_u32 s30, s30, {L_RA}
v_lshl_add_u32 v2, v4, 3, s30
s_lshl_b32 s31, s39, 7
s_lshl_b32 s32, s{sWN}, 9
s_add_u32 s32, s32, s31
s_add_u32 s32, s32, {L_CS}
v_lshl_add_u32 v5, v3, 4, s32
s_lshl_b32 s32, s{sWN}, 7
s_add_u32 s32, s32, s31
s_add_u32 s32, s32, {L_CS + 256}
v_lshl_add_u32 v6, v3, 4, s32
s_xor_b32 s33, s39, 1
s_mul_i32 s33, s33, 768
s_lshl_b32 s32, s{sWN}, 6
s_add_u32 s32, s32, s33
s_add_u32 s32, s32, {L_CS}
v_lshl_add_u32 v7, v3, 4, s32
""")
    CS = 16
    fill = [f"ds_read_b64 {v(8+2*mt,2)}, v2 offset:{mt*128}" for mt in range(4)]
    fill += [f"ds_read_b128 {v(CS+4*t,4)}, v5 offset:{64*t}" for t in range(4)]
    fill += [f"ds_read_b128 {v(CS+16+4*t,4)}, v6 offset:{64*t}" for t in range(2)] + [f"ds_read_b128 {v(CS+24,4)}, v7"]
    G.c_loop(ST, pre_last4, fill)
    e("s_waitcnt lgkmcnt(0)\nv_lshlrev_b32 v2, 4, v1")
    def epi4(fl):
        units = []
        for pr in range(4):
            for mt in range(4): units.append((mt, (2 * pr, 2 * pr + 1) if pr < 3 else (6,), pr))
        T0, O0 = 56, 80
        def sA(i):
            mt, ts, pr = units[i]; k = 8 + 2 * mt; o = []
            for t in ts:
                c = G.acc(mt, t)
                for h in range(2): o.append(f"v_pk_mul_f32 {v(c+2*h,2)}, {v(c+2*h,2)}, {v(k,2)} op_sel:[0,1] op_sel_hi:[1,1]")
            for t in ts:
                c = G.acc(mt, t)
                for h in range(2): o.append(f"v_pk_fma_f32 {v(c+2*h,2)}, {v(CS+4*t+2*h,2)}, {v(k,2)}, {v(c+2*h,2)} op_sel_hi:[1,0,1]")
            return o
        def sB(i):
            mt, ts, pr = units[i]; T = T0 + 8 * (i % 3)
            return [f"v_exp_f32 v{T+4*j+k}, v{G.acc(mt,t)+k}" for j, t in enumerate(ts) for k in range(4)]
        def sC(i):
            mt, ts, pr = units[i]; T = T0 + 8 * (i % 3)
            return [f"v_pk_fma_f32 {v(T+2*h,2)}, {v(T+2*h,2)}, {s(sC0,2)}, {s(sC0,2)}" for h in range(2 * len(ts))]
        def sD(i):
            mt, ts, pr = units[i]; T = T0 + 8 * (i % 3)
            return [f"v_rcp_f32 v{T+k}, v{T+k}" for k in range(4 * len(ts))]
        def sE(i):
            mt, ts, pr = units[i]; T = T0 + 8 * (i % 3); o = []; d = O0 + 4 * (i % 4)
            for j, t in enumerate(ts):
                c = G.acc(mt, t)
                for h in range(2): o.append(f"v_pk_mul_f32 {v(c+2*h,2)}, {v(c+2*h,2)}, {v(T+4*j+2*h,2)}")
            for j, t in enumerate(ts):
                c = G.acc(mt, t)
                for h in range(2): o.append(f"v_cvt_pk_bf16_f32 v{d+2*j+h}, v{c+2*h}, v{c+2*h+1}")
            base = (34, 37, 35, 36)[pr]
            if NOST4: return o
            o.append(f"buffer_store_dwordx4 {v(d,4)}, v2, {s(SWS,4)}, s{base} offen offset:{mt*1024} {fl}" if pr < 3 else f"buffer_store_dwordx2 {v(d,2)}, v2, {s(SWS,4)}, s{base} offen offset:{mt*1024} {fl}")
            return o
        N = len(units)
        for x in sA(0): e(x)
        for i in range(N + 1):
            seq = []
            if i < N: seq += sB(i)
            if i + 1 < N: seq += sA(i + 1)
            if i < N: seq += sC(i)
            if i >= 1: seq += sE(i - 1)
            if i < N: seq += sD(i)
            for x in seq: e(x)
            if EARLY5 and i == 8 + E5LAG:
                e(f"s_waitcnt vmcnt({E5LAG})"); set_flag(38, fl.replace("nt", ""))
        ST("silu")
        roles_w2()
        G5.c_setup()
        e("s_waitcnt vmcnt(0)")
        set_flag(38, fl.replace("nt", ""), val=3)
    n0 = list(ST.names)
    def epi4w(fl):
        ST.names = list(n0); epi4(fl)
    dual(epi4w, sMODE)
    ST("h1_flag")
    G = G5
    MT = G.MT; keep = 2; nb = 4
    def pre_last5():
        srd(SD, pOUT, 4 * MB)
        e(f"""
s_lshl_b32 s33, s{sRB}, 3
s_add_u32 s33, s33, s{sCB}
s_mul_i32 s34, s33, {16*4*nb*1024}
s_add_u32 s34, s34, {WS_PART}
s_mul_i32 s30, s{sW}, {nb*1024}
s_add_u32 s34, s34, s30
s_lshl_b32 s35, s{sRB}, 3
s_lshl_b32 s30, s{sWM}, 3
s_add_u32 s35, s35, s30
s_lshl_b32 s30, s{sKS}, 1
s_add_u32 s35, s35, s30
s_lshl_b32 s36, s{sCB}, 2
s_lshl_b32 s30, s{sWN}, 1
s_add_u32 s36, s36, s30
s_lshl_b32 s38, s35, 15
s_lshl_b32 s31, s36, 10
s_add_u32 s38, s38, s31
s_add_u32 s38, s38, {WS_H}
s_lshl_b32 s37, s33, 6
s_lshl_b32 s31, s{sW}, 2
s_add_u32 s37, s37, s31
s_add_u32 s37, s37, {WS_F5}
s_lshl_b32 s31, s{sKS}, 4
s_add_u32 s32, s37, s31
s_lshl_b32 s39, s{sKS}, 2
""")
        for d in range(1, 4):
            e(f"s_add_u32 s31, s{sKS}, {d}\ns_and_b32 s31, s31, 3\ns_lshl_b32 s30, s31, 2\ns_add_u32 s30, s30, s{sKS}\ns_mul_i32 s30, s30, {4*nb*1024}\ns_add_u32 s{39+d}, s30, s34")
            e(f"s_add_u32 s31, s31, s39\ns_mul_i32 s31, s31, {4*nb*1024}\ns_add_u32 s{42+d}, s31, s34")
        e(f"s_lshl_b32 s46, s35, 15\ns_lshl_b32 s31, s36, 6\ns_add_u32 s46, s46, s31\ns_add_u32 s47, s38, {32*1024}")
    if TAILPM:
        assert not CANARY
        BQ, AB = [8, 24, 56, 72], [40, 88]
        sub4 = [(12, 0), (12, 1), (13, 0), (13, 1)]
        order = [2, 3, 4, 5, 6, 7, 0, 1]
        HRS = [G.acc(2, 1), G.acc(2, 3), G.acc(3, 1), G.acc(3, 3)]
        brd = lambda j: [x for t in range(4) for x in G.b_read(*sub4[j], t, BQ[j] + 4 * t)]
        ard = lambda n_: [G.a_read(*sub4[j], order[n_], AB[n_ & 1] + 4 * j) for j in range(4)]
        G.c_loop(ST, pre_last5, ["v_lshlrev_b32 v2, 4, v1"] + ard(0) + brd(0) + brd(1), nsteps=12)
        def send(mt):
            out = []
            for pr in range(2):
                c0, c1 = G.acc(mt, 2 * pr), G.acc(mt, 2 * pr + 1)
                out += [f"v_cvt_pk_bf16_f32 v{c0}, v{c0}, v{c0+1}", f"v_cvt_pk_bf16_f32 v{c0+1}, v{c0+2}, v{c0+3}",
                        f"v_cvt_pk_bf16_f32 v{c0+2}, v{c1}, v{c1+1}", f"v_cvt_pk_bf16_f32 v{c0+3}, v{c1+2}, v{c1+3}",
                        f"buffer_store_dwordx4 {v(c0,4)}, v2, {s(SWS,4)}, s{39+mt//2} offen offset:{(2*(mt&1)+pr)*1024} {PFL}"]
            return out
        for n_, mt in enumerate(order):
            mm = lambda t, j: f"v_mfma_f32_16x16x32_bf16 {v(G.acc(mt,t),4)}, {v(BQ[j]+4*t,4)}, {v(AB[n_&1]+4*j,4)}, {v(G.acc(mt,t),4)}"
            e("s_waitcnt lgkmcnt(0)")
            if n_ == 0:
                side = brd(2) + brd(3)
                for i, (t, j) in enumerate([(t, j) for t in range(4) for j in range(2)]):
                    e(mm(t, j)); e(side[2 * i]); e(side[2 * i + 1])
                side = ard(1)
                for i, (t, j) in enumerate([(t, j) for j in (2, 3) for t in range(4)]):
                    if i == 0: e("s_waitcnt lgkmcnt(8)")
                    if i == 4: e("s_waitcnt lgkmcnt(4)")
                    e(mm(t, j))
                    if i < 4: e(side[i])
                continue
            side = (ard(n_ + 1) if n_ + 1 < 8 else []) + (send(order[n_ - 1]) if order[n_ - 1] >= 2 else [])
            if n_ == 3: side += [f"buffer_load_dwordx4 {v(HRS[2*i+pr],4)}, v2, {s(SWS,4)}, s{38 if i == 0 else 47} offen offset:{pr*1024} sc1" for i in range(2) for pr in range(2)]
            for i, (t, j) in enumerate([(t, j) for t in range(4) for j in range(4)]):
                e(mm(t, j))
                for x in side[i:i + 1] + (side[16:] if i == 15 else []): e(x)
        ST("w2_end")
    else:
        HRS = [8, 12, 16, 20]
        HR = 8
        fill = ["v_lshlrev_b32 v2, 4, v1"]
        fill += [f"buffer_load_dwordx4 {v(HR+4*(2*i+pr),4)}, v2, {s(SWS,4)}, s{38 if i == 0 else 47} offen offset:{pr*1024} sc1" for i in range(2) for pr in range(2)]
        if CANARY: fill.append(f"buffer_load_dword v248, v2, {s(SWS,4)}, s37 offen sc1")
        G.c_loop(ST, pre_last5, fill)
        o = 24
        for d in range(1, 4):
            for i in range(keep):
                for pr in range(2):
                    mt = d * keep + i
                    pack(o, G.acc(mt, 2 * pr), G.acc(mt, 2 * pr + 1))
                    e(f"buffer_store_dwordx4 {v(o,4)}, v2, {s(SWS,4)}, s{39+d} offen offset:{(2*i+pr)*1024} {PFL}")
                    o = 24 + (o - 24 + 4) % 32
    PR = 64
    assert PR + 48 <= G.ACC
    def add_partial(d):
        for i in range(keep):
            for pr in range(2):
                for q in range(4): unpack(40 + 2 * q, PR + 4 * ((d - 1) * nb + 2 * i + pr) + q)
                for q in range(4):
                    c = G.acc(i, 2 * pr + (q >> 1)) + 2 * (q & 1)
                    e(f"v_pk_add_f32 {v(c,2)}, {v(c,2)}, {v(40+2*q,2)}")
    def ld_partial(d):
        for b in range(nb): e(f"buffer_load_dwordx4 {v(PR+4*((d-1)*nb+b),4)}, v2, {s(SWS,4)}, s{42+d} offen offset:{b*1024} sc1")
    rowmajor_voff(62, 63)
    if CANARY:
        e("v_mov_b32 v58, s43\nv_mov_b32 v59, s44\nv_cmp_eq_u32 vcc, 1, v1\nv_cndmask_b32 v58, v58, v59, vcc\nv_mov_b32 v59, s45\nv_cmp_eq_u32 vcc, 2, v1\nv_cndmask_b32 v58, v58, v59, vcc")
        e("s_waitcnt vmcnt(0)")
        ST("p_flag")
        X0 = A.newlabel("pfok")
        e(f"s_mov_b64 exec, 0xf\nv_and_b32 v248, 1, v248\nv_cmp_ne_u32 vcc, 1, v248\ns_mov_b64 exec, -1\ns_cbranch_vccz {X0}")
        poll("s37", 4, voff=2, t=60)
        A.label(X0)
        L, X = A.newlabel("can"), A.newlabel("canx")
        e(f"s_mov_b64 exec, 7\ns_mov_b32 s{sCNT}, 0")
        A.label(L)
        e(f"buffer_load_dword v60, v58, {s(SWS,4)}, 0 offen offset:4092 sc1\ns_add_u32 s{sCNT}, s{sCNT}, 1\ns_cmp_gt_u32 s{sCNT}, {SPIN_MAX}\ns_waitcnt vmcnt(0)\ns_cbranch_scc1 {X}")
        e(f"v_cmp_eq_u32 vcc, -1, v60\ns_cbranch_vccnz {L}")
        A.label(X)
        e("s_mov_b64 exec, -1")
        ST("p_seen")
        for d in range(1, 4): ld_partial(d)
        for d in range(1, 4):
            L, X = A.newlabel("pv"), A.newlabel("pvx")
            r0 = PR + 16 * (d - 1)
            e(f"s_waitcnt vmcnt({(3-d)*nb})")
            A.label(L)
            e(f"v_max_u32 v60, v{r0}, v{r0+1}")
            for i in range(2, 16, 2): e(f"v_max3_u32 v60, v{r0+i}, v{r0+i+1}, v60")
            e(f"v_cmp_eq_u32 vcc, -1, v60\ns_cbranch_vccz {X}\ns_add_u32 s{sCNT}, s{sCNT}, 1\ns_cmp_gt_u32 s{sCNT}, {SPIN_MAX}\ns_cbranch_scc1 {X}")
            ld_partial(d)
            e(f"s_waitcnt vmcnt(0)\ns_branch {L}")
            A.label(X)
            add_partial(d)
    else:
        e("s_waitcnt vmcnt(0)")
        set_flag(32)
        ST("p_flag")
        poll("s37", 4, voff=2, t=60)
        ST("p_seen")
        for d in range(1, 4): ld_partial(d)
        for d in range(1, 4):
            e(f"s_waitcnt vmcnt({(3-d)*nb})")
            add_partial(d)
    for i in range(keep):
        for pr in range(2):
            x = HRS[2 * i + pr]
            pack(24, G.acc(i, 2 * pr), G.acc(i, 2 * pr + 1))
            for q in range(4): unpack(40 + 2 * q, 24 + q); unpack(48 + 2 * q, x + q)
            for q in range(4): e(f"v_pk_add_f32 {v(40+2*q,2)}, {v(40+2*q,2)}, {v(48+2*q,2)}")
            for q in range(4): e(f"v_cvt_pk_bf16_f32 v{x+q}, v{40+2*q}, v{41+2*q}")
            e(f"v_permlane16_swap_b32 v{x}, v{x+2}\nv_permlane16_swap_b32 v{x+1}, v{x+3}")
            e(f"s_add_u32 s31, s46, {i*16*2048}\nbuffer_store_dwordx4 {v(x,4)}, v62, {s(SD,4)}, s31 offen offset:{pr*64} {OFL}")
    ST.flush()
    e("s_endpgm")

def neighbours_and_attention(ST, Q):
    e(f"s_lshl_b32 s38, s{sWM}, 1\ns_add_u32 s38, s38, 1")
    attn_setup()
    L = A.newlabel("nonb")
    assert MAP1 == 162
    own_arena(42)
    e(f"""
s_add_u32 s40, s{sRB}, s{sWM}
s_sub_u32 s41, s40, 2
s_lshl_b32 s31, s{sWM}, 16
s_add_u32 s42, s42, s31
s_sub_u32 s42, s42, {2*64*KB}
s_lshl_b32 s31, s{sWN}, 13
s_add_u32 s42, s42, s31
s_mul_i32 s43, s{sWN}, 24
s_lshl_b32 s31, s{sWM}, 3
s_add_u32 s43, s43, s31
s_lshl_b32 s43, s43, 10
v_lshlrev_b32 v2, 4, v1
s_cmp_lt_u32 s40, 2
s_cselect_b32 s42, {WS_BYTES}, s42
s_cbranch_scc1 {L}
""")
    flag_addr(32, WS_F1, sCB, 41, 4, None)
    poll("s32", 4, t=8)
    A.label(L)
    ST("nb_seen")
    for wsb, lb in ((AR_K, L_K), (AR_V, L_V)):
        if wsb == AR_V and KFLAG:
            L2 = A.newlabel("nonv")
            e(f"s_cmp_lt_u32 s40, 2\ns_cbranch_scc1 {L2}")
            poll("s32", 4, t=8, mask=2)
            A.label(L2)
        for h in range(2):
            e(f"s_add_u32 m0, s43, {lb + h*4096}\ns_add_u32 s31, s42, {wsb + h*4096}")
            for i in range(4): e(f"buffer_load_dwordx4 v2, {s(SWS,4)}, s31 offen offset:{i*1024} sc1 lds")
    Q.q = []; Q.add("nk", 8); Q.add("nv", 8)
    attention(ST, True, Q)
    roles_48()
    b_src_wo()
    e(f"ds_read_b32 v8, v{vFR} offset:{OFF_HD}")
    G3.p_setup_a(); G3.p_setup_b(sWN)
    e(f"s_waitcnt lgkmcnt(0)\nv_readfirstlane_b32 s{sMODE}, v8")
    e("s_waitcnt vmcnt(0)")
    set_flag(33)
    e("s_barrier")
    Q.q = []
    ST("o_flag")

def dma_phase1(ST, Q):
    G = G1
    if DPRIO: e(f"s_setprio {DPRIO}")
    def touch(nk, fl):
        def f():
            e(f"s_mul_i32 s30, s{sW}, {nk*1024}\ns_add_u32 s30, s30, s{sOWN}\nv_lshlrev_b32 v12, 7, v1")
            for i in range(0, nk, 8):
                if nk - i < 8: set_exec((1 << ((nk - i) * 8)) - 1)
                e(f"s_add_u32 s31, s30, {WS_AR + i*1024}\nbuffer_load_dword v{248+i//8}, v12, {s(SWS,4)}, s31 offen {fl}")
                Q.add("touch")
            e("s_mov_b64 exec, -1")
        return f
    dma_phase1.touch = touch
    G.p_loop(Q, ST, 0, NPF, tail=touch(16, TFL.replace("none", "")) if TOUCH else None)
    if DPRIO: e("s_setprio 0")
    e("s_waitcnt lgkmcnt(0)")

def dma_rest(ST, Q):
    G = G3
    if DPRIO: e(f"s_setprio {DPRIO}")
    e(f"s_lshl_b32 s32, s{sRB}, 9\ns_add_u32 s32, s32, {WS_F2}")
    pf_step(PFBUB)
    e("v_lshlrev_b32 v10, 3, v1")
    G.p_loop(Q, ST, G.NSB, 1, 3, gate=lambda k: gate_k(G3, k, True), look=(range(0, 12), (32, 10, True)))
    G = G4
    roles_84()
    b_src_w1()
    e(f"s_lshl_b32 s{sAR}, s{sRB}, 18\ns_add_u32 s{sAR}, s{sAR}, {WS_H}")
    G.p_setup_b(); G.p_setup_a()
    e(f"s_lshl_b32 s32, s{sRB}, 8\ns_add_u32 s32, s32, {WS_F3}")
    if BEARLY: G.issue_b(Q, 0)
    wait_rows(OFF_EP, 2)
    if not BEARLY: G.issue_b(Q, 0)
    pf_step(PFBUB)
    e("v_lshlrev_b32 v10, 2, v1")
    G.p_loop(Q, ST, 1 if BLATE else G.NS, NPF, gate=lambda k: gate_k(G4, k, False), tail=dma_phase1.touch(28, '') if TOUCH4 else None, look=(range(0, 12), (32, 10, False)))
    pf_finish()
    G = G5
    roles_w2()
    b_src_w2()
    G.p_setup_b()
    for st in range(G.NS): G.issue_b(Q, st)
    G.p_setup_a()
    e(f"s_lshl_b32 s32, s{sRB}, 8\ns_lshl_b32 s30, s{sKS}, 6\ns_add_u32 s32, s32, s30\ns_add_u32 s32, s32, {WS_F4}")
    e(f"s_lshl_b32 s30, s{sW}, 8\ns_add_u32 s32, s32, s30\nv_lshlrev_b32 v10, 2, v4")
    e("v_and_b32 v11, 1, v3")
    seen5 = set()
    def gate5(k):
        want = {(c, lv) for c, kb, lv in G5.blocks()[2 * k:2 * k + 2]} - seen5
        if want:
            seen5.update(want)
            need_flags(sum(0xf << (4 * c + 16 * (lv - 1)) for c, lv in want), 32, 10, False, shift=11)
    G.p_loop(Q, ST, G.NS, gate=gate5, look=(range(0, 10), (32, 10, False, 11)) if ASY5 else None, merge=bool(TAILPM))

U0 = 200
def colsum_block(j, src, nld, dpp):
    u = U0 + 8 * j
    if DOT:
        e("v_mov_b32 v10, 0x00003f80\nv_mov_b32 v11, 0x3f800000")
        for i in range(nld):
            for d in range(4):
                if i == 0: unpack(u + 2 * d, src + d)
                else: e(f"v_dot2_f32_bf16 v{u+2*d}, v{src+4*i+d}, v10, v{u+2*d}\nv_dot2_f32_bf16 v{u+2*d+1}, v{src+4*i+d}, v11, v{u+2*d+1}")
    else:
        for i in range(nld):
            for d in range(4):
                if i == 0: unpack(u + 2 * d, src + d)
                else:
                    unpack(10 + 2 * (d & 1), src + 4 * i + d)
                    e(f"v_pk_add_f32 {v(u+2*d,2)}, {v(u+2*d,2)}, {v(10+2*(d&1),2)}")
    for d in range(4): e(f"v_permlane32_swap_b32 v{u+d}, v{u+4+d}")
    for d in range(2): e(f"v_pk_add_f32 {v(u+2*d,2)}, {v(u+2*d,2)}, {v(u+4+2*d,2)}")
    for d in range(2): e(f"v_permlane16_swap_b32 v{u+d}, v{u+2+d}")
    e(f"v_pk_add_f32 {v(u,2)}, {v(u,2)}, {v(u+2,2)}")
    for k in dpp:
        for r in range(u, u + 2): e(f"v_add_f32_dpp v{r}, v{r}, v{r} row_ror:{k} row_mask:0xf bank_mask:0xf")
def colsum_store(Q, j, soff, nl, tag):
    u = U0 + 8 * j
    e("v_lshlrev_b32 v6, 5, v4\nv_lshl_add_u32 v6, v3, 3, v6")
    m = (1 << nl) - 1
    set_exec(m | m << 16 | m << 32 | m << 48)
    e(f"buffer_store_dwordx2 {v(u,2)}, v6, {s(SWS,4)}, s{soff} offen offset:{256*j} sc1\ns_mov_b64 exec, -1")
    Q.add(tag, 1)

def zero_own_flags(Q):
    e("v_lshlrev_b32 v2, 2, v1\nv_mov_b32 v8, 0")
    def st(soff, nl):
        set_exec((1 << nl) - 1); e(f"buffer_store_dword v8, v2, {s(SWS,4)}, s{soff} offen sc1"); Q.add("zero")
    flag_addr(32, WS_F1, sCB, sRB, 4, None); st(32, 4)
    flag_addr(32, WS_F2, sRB, sCB, 8, None); st(32, 8)
    roles_48(36, 37)
    flag_addr(32, WS_F3, 36, 37, 4, None); st(32, 4)
    roles_w2(36, 37, 38)
    e(f"s_lshl_b32 s32, s36, 3\ns_add_u32 s32, s32, s37\ns_lshl_b32 s32, s32, 2\ns_add_u32 s32, s32, s38\ns_lshl_b32 s32, s32, 4\ns_add_u32 s32, s32, {WS_F5}"); st(32, 4)
    roles_84(36, 37)
    flag_addr(32, WS_F4, 36, 37, 4, None); st(32, 4)
    e("s_mov_b64 exec, -1\nv_mov_b32 v8, -1\nv_mov_b32 v9, -1\nv_mov_b32 v10, -1\nv_mov_b32 v11, -1\nv_lshlrev_b32 v7, 4, v1")
    e(f"s_lshl_b32 s32, s35, 5\ns_add_u32 s32, s32, {WS_RA}"); st(32, 8)
    e(f"s_add_u32 s32, s32, {WS_RB - WS_RA}"); st(32, 8)
    def st4(soff, nl):
        set_exec((1 << nl) - 1); e(f"buffer_store_dwordx4 v[8:11], v7, {s(SWS,4)}, s{soff} offen sc1"); Q.add("zero")
    e(f"s_mul_i32 s32, s35, 768\ns_add_u32 s32, s32, {WS_CS1}"); st4(32, 48)
    e(f"s_mul_i32 s32, s36, {2*3584*4}\ns_mul_i32 s33, s37, 896\ns_add_u32 s32, s32, s33\ns_add_u32 s32, s32, {WS_CS2}"); st4(32, 56)
    e(f"s_add_u32 s32, s32, {3584*4}"); st4(32, 56)
    e("s_mov_b64 exec, -1")

sPFO, sPFE, sPFI, SPF = sNEED, pOUT, sT0, 44
sPFS = pOUT + 1
def pf_init():
    srd(SPF, pWO, 2 * MB)
    e(f"s_lshl_b32 s{sPFS}, s2, 2\ns_add_u32 s{sPFS}, s{sPFS}, s{sW}\ns_lshl_b32 s{sPFS}, s{sPFS}, 8\ns_mov_b32 s{sPFO}, s{sPFS}\ns_mov_b32 s{sPFE}, {2*MB}\ns_mov_b32 s{sPFI}, {2 if W2NT else 0 if PFW1 else 1}")
def pf_chunk():
    for i in range(4): e(f"s_buffer_load_dword s{sC0}, {s(SPF,4)}, s{sPFO} offset:{64*i}")
    e(f"s_add_u32 s{sPFO}, s{sPFO}, {1024*256}")
def pf_step(n):
    if not SPFON or n == 0: return
    G_, X, W2L = A.newlabel("pfg"), A.newlabel("pfx"), A.newlabel("pfw2")
    e(f"s_cmp_lt_u32 s{sPFO}, s{sPFE}\ns_cbranch_scc1 {G_}\ns_cmp_ge_u32 s{sPFI}, 2\ns_cbranch_scc1 {X}")
    e(f"s_mov_b32 s{sPFO}, s{sPFS}\ns_mov_b32 s{sPFE}, {7*MB}\ns_add_u32 s{sPFI}, s{sPFI}, 1\ns_cmp_eq_u32 s{sPFI}, 2\ns_cbranch_scc1 {W2L}")
    srd(SPF, pW1, 7 * MB)
    e(f"s_branch {G_}")
    A.label(W2L)
    srd(SPF, pW2, 7 * MB)
    A.label(G_)
    for i in range(n): pf_chunk()
    A.label(X)
CODE_MAX = 96 * KB
def code_warm():
    if not CWARM: return
    L = A.newlabel("pc")
    e(f"s_getpc_b64 s[42:43]")
    A.label(L)
    e(f"s_sub_u32 s42, s42, {L}-{KN}\ns_subb_u32 s43, s43, 0\ns_lshl_b32 s{sC0+1}, s{sR}, 2\ns_add_u32 s{sC0+1}, s{sC0+1}, s{sW}\ns_lshl_b32 s{sC0+1}, s{sC0+1}, 6")
    for i in range(NCODE): e(f"s_load_dword s{sC0}, s[42:43], s{sC0+1} offset:{i*8192}")
def pf_until_ep(k):
    L, X = A.newlabel("pu"), A.newlabel("pux")
    A.label(L)
    e(f"ds_read_b32 v{vFV}, v{vFR} offset:{OFF_EP}\ns_waitcnt lgkmcnt(0)\nv_cmp_gt_u32 vcc, {k}, v{vFV}\ns_cbranch_vccz {X}")
    e(f"s_sleep 1\ns_add_u32 s3, s3, 1\ns_cmp_lt_u32 s3, {LSPIN_MAX}\ns_cbranch_scc1 {L}")
    A.label(X)
def pf_finish():
    if not SPFON: return
    L = A.newlabel("pfin")
    A.label(L)
    pf_step(2)
    e(f"s_waitcnt lgkmcnt(6)\ns_cmp_lt_u32 s{sPFI}, 2\ns_cbranch_scc1 {L}\ns_cmp_lt_u32 s{sPFO}, s{sPFE}\ns_cbranch_scc1 {L}")
def pf_stamp(ST):
    if not STAMPS: return
    k_ = len(ST.names); ST.names.append("pfMB")
    e(f"s_mul_i32 s30, s{sPFI}, 1000\ns_lshr_b32 s31, s{sPFO}, 13\ns_mul_i32 s31, s31, 25\ns_lshr_b32 s31, s31, 5\ns_add_u32 s30, s30, s31\ns_add_u32 s{78+k_}, s78, s30")

class HStream:
    def __init__(self): self.items = []
    def __enter__(self):
        self.saved = A.lines; A.lines = []; return self
    def _take(self, atomic=False):
        if A.lines:
            if atomic: self.items.append(("g", list(A.lines)))
            else: self.items += [("g", [ln]) for ln in A.lines if ln.strip()]
        A.lines = []
    def at(self, k): self._take(); self.items.append(("at", k))
    def by(self, k): self._take(); self.items.append(("by", k))
    def atomic(self, f, cost=None):
        self._take(); f()
        if not A.lines: return
        self._take(True)
        if cost is not None: self.items[-1] = ("g", self.items[-1][1], cost)
    def __exit__(self, *a):
        self._take(); A.lines = self.saved
    @staticmethod
    def cost(ln):
        t = ln.strip()
        if t.startswith(("buffer_", "global_")): return VMC
        if t.startswith("ds_"): return 2
        if t.startswith("v_dot"): return DOTC
        if t.startswith(("v_exp", "v_rcp", "v_sqrt", "v_rsq")): return 2
        if t.startswith("s_") or t.endswith(":"): return 0.5
        return 1
    def emit(self, nbar, lim, npf, pf_from=0, pf_to=99, pre0=999, every=1, cw=(), more=False):
        st = {"b": 0, "used": 0}
        def bar():
            e("s_barrier")
            if st["b"] in cw: code_warm()
            if pf_from <= st["b"] < min(pf_to, nbar - 1) and st["b"] % every == every - 1: pf_step(npf + (1 if more and st["b"] % 3 != 1 else 0))
            st["b"] += 1; st["used"] = 0
        for kind, x, *oc in self.items:
            if kind == "at":
                while st["b"] <= x: bar()
            elif kind == "by":
                if DBGH: print("by", x, "at", st["b"], file=sys.stderr)
                assert st["b"] <= x, ("deadline missed", st["b"], x)
            else:
                c = oc[0] if oc else sum(self.cost(l) for l in x)
                if st["used"] > 8 and st["used"] + c > (lim if st["b"] > 0 else pre0) and not (len(x) == 1 and x[0].strip().startswith("s_")): bar()
                A.lines += x; st["used"] += c
        assert st["b"] <= nbar, st
        while st["b"] < nbar: bar()

def retry(loads, regs, nl):
    L, X = A.newlabel("rt"), A.newlabel("rtx")
    set_exec((1 << nl) - 1 if nl <= 64 else nl)
    e(f"s_mov_b32 s{sCNT}, 0")
    A.label(L)
    e("s_waitcnt vmcnt(0)")
    e(f"v_max_u32 v8, v{regs[0]}, v{regs[1]}")
    for i in range(2, len(regs), 2): e(f"v_max3_u32 v8, v{regs[i]}, v{regs[i+1]}, v8")
    e(f"v_cmp_eq_u32 vcc, -1, v8\ns_cbranch_vccz {X}\ns_add_u32 s{sCNT}, s{sCNT}, 1\ns_cmp_gt_u32 s{sCNT}, {SPIN_MAX}\ns_cbranch_scc1 {X}\ns_sleep 8")
    loads()
    e(f"s_branch {L}")
    A.label(X)

def helper0_phase1(ST, Q):
    RS = 16
    with HStream() as H:
        e(f"""
s_lshl_b32 s35, s{sRB}, 4
s_add_u32 s35, s35, s{sCB}
s_lshl_b32 s34, s35, 14
v_lshrrev_b32 v6, 3, v1
v_lshlrev_b32 v5, 11, v6
v_and_b32 v7, 7, v1
v_lshl_add_u32 v5, v7, 4, v5
s_getreg_b32 s39, hwreg(HW_REG_XCC_ID)
""")
        bounds = [0] + [2 * x for x in HB] + [16]
        def red8(r):
            e(f"v_add_f32_dpp v{r}, v{r}, v{r} quad_perm:[1,0,3,2] row_mask:0xf bank_mask:0xf")
            e(f"v_add_f32_dpp v{r}, v{r}, v{r} quad_perm:[2,3,0,1] row_mask:0xf bank_mask:0xf")
            e(f"v_add_f32_dpp v{r}, v{r}, v{r} row_half_mirror row_mask:0xf bank_mask:0xf")
        def dots(bt):
            Q.wait(("rs", bt))
            for i in range(4 * bounds[bt], 4 * bounds[bt + 1]):
                e(f"v_dot2_f32_bf16 v{80+(i&1)}, v{RS+i}, v84, v{80+(i&1)}\nv_dot2_f32_bf16 v{82+(i&1)}, v{RS+i}, v{RS+i}, v{82+(i&1)}")
        e("v_mov_b32 v84, 0x3f803f80\nv_mov_b64 v[80:81], 0\nv_mov_b64 v[82:83], 0")
        for bt in range(len(bounds) - 1):
            if bt: H.at(bt - 1)
            for i in range(bounds[bt], bounds[bt + 1]): e(f"buffer_load_dwordx4 {v(RS+4*i,4)}, v5, {s(SX,4)}, s34 offen offset:{128*i}")
            Q.add(("rs", bt), bounds[bt + 1] - bounds[bt])
            if bt == 1: zero_own_flags(Q)
            if bt >= LAG: dots(bt - LAG)
        e(f"s_and_b32 s39, s39, 15\ns_or_b32 s39, s39, 0x80\ns_lshl_b32 s30, s{sG}, 5\ns_add_u32 s30, s30, s{sR}")
        e(f"v_mov_b32 v8, s39\nv_mov_b32 v2, s30")
        nb_ = len(bounds) - 1
        for bt in range(nb_ - LAG, nb_):
            H.at(bt + LAG - 1); dots(bt)
        H.by(H0AT + 1)
        e(f"s_mov_b64 exec, 1\nbuffer_store_byte v8, v2, {s(SD,4)}, 0 offen sc1\ns_mov_b64 exec, -1")
        e("v_add_f32 v10, v80, v81\nv_add_f32 v11, v82, v83")
        red8(10)
        red8(11)
        if DOT: e(f"v_mul_f32 v12, {f32(-1/1024)}, v10\nv_fma_f32 v11, v12, v10, v11\nv_max_f32 v11, 0, v11")
        ln_finish(10, 11, 1024)
        e("v_mul_f32 v10, v10, v11\nv_sub_f32 v10, 0, v10")
        e(f"v_lshrrev_b32 v7, 3, v1\nv_lshlrev_b32 v7, 2, v7\ns_lshl_b32 s32, s35, 5\ns_add_u32 s32, s32, {WS_RA}\ns_add_u32 s33, s32, {WS_RB-WS_RA}")
        set_exec(0x0101010101010101)
        e(f"buffer_store_dword v11, v7, {s(SWS,4)}, s32 offen sc1\nbuffer_store_dword v10, v7, {s(SWS,4)}, s33 offen sc1\ns_mov_b64 exec, -1")
        ST("st_pub")
        H.by(GAT - 1); H.at(GAT - 3)
        e(f"v_lshlrev_b32 v12, 2, v1\nbuffer_load_dword v13, v12, {s(SD,4)}, 0 offen sc1")
        H.at(GAT - 1)
        def handshake():
            X = A.newlabel("hsx")
            e(f"s_waitcnt vmcnt(0)\nv_and_b32 v8, 0x80808080, v13\nv_cmp_ne_u32 vcc, 0x80808080, v8\ns_cbranch_vccz {X}")
            poll("0", 64, srd_=SD, mask="0x80808080", t=8, sleep=16)
            e(f"buffer_load_dword v13, v12, {s(SD,4)}, 0 offen sc1\ns_waitcnt vmcnt(0)")
            A.label(X)
            e(f"s_mul_i32 s31, s39, 0x01010101\nv_cmp_ne_u32 vcc, s31, v13\ns_lshl_b32 s30, s{sG}, 3\ns_lshr_b64 s[32:33], vcc, s30\ns_and_b32 s30, s32, 0xff")
            if FORCE >= 0: e(f"s_mov_b32 s30, {FORCE}")
            e(f"v_mov_b32 v8, s30\nv_mov_b32 v7, {L_HD}\ns_mov_b64 exec, 1\nds_write_b32 v7, v8\ns_mov_b64 exec, -1")
        H.atomic(handshake)
        H.at(GAT)
        e(f"v_and_b32 v6, 31, v1\nv_lshlrev_b32 v6, 4, v6\nv_lshrrev_b32 v7, 5, v1\nv_lshl_add_u32 v6, v7, 13, v6\ns_lshl_b32 s34, s{sRB}, 9\ns_add_u32 s34, s34, {WS_RA}")
        ld = lambda: e(f"buffer_load_dwordx4 v[16:19], v6, {s(SWS,4)}, s34 offen sc1")
        ld()
        H.at(GAT + 2)
        def fin():
            retry(ld, [16, 17, 18, 19], 64)
            e(f"v_lshlrev_b32 v6, 4, v1\nv_add_u32 v6, {L_RA}, v6\nds_write_b128 v6, v[16:19]\ns_waitcnt lgkmcnt(0)")
        H.atomic(fin)
        ST("st_in")
        H.by(16)
    H.emit(17, HLIM, NPF, pf_from=PFD0, pf_to=GAT + 1, pre0=PRE0, cw=(0, 14) if CWARM > 1 else (0,))
    e("s_waitcnt lgkmcnt(0)")
    pf_stamp(ST)

def helper1_phase1(ST, Q):
    CSR = 80
    with HStream() as H:
        e(f"""
s_lshl_b32 s35, s{sRB}, 4
s_add_u32 s35, s35, s{sCB}
v_bfe_u32 v6, v1, 3, 2
v_lshrrev_b32 v7, 5, v1
v_lshl_add_u32 v6, v7, 6, v6
v_and_b32 v7, 7, v1
v_mul_u32_u24 v6, 6144, v6
v_lshl_add_u32 v6, v7, 4, v6
s_mul_i32 s32, s{sRB}, {4*6144}
s_lshl_b32 s33, s{sCB}, 7
s_add_u32 s32, s32, s33
""")
        bounds = [0] + HB + [8]
        e("v_mov_b32 v10, 0x00003f80\nv_mov_b32 v11, 0x3f800000")
        for r in range(U0, U0 + 24, 2): e(f"v_mov_b64 {v(r,2)}, 0")
        def dots(bt):
            Q.wait(("cs", bt))
            for i in range(bounds[bt], bounds[bt + 1]):
                for j in range(3):
                    for d in range(4):
                        u, r = U0 + 8 * j + 2 * d, CSR + 4 * (8 * j + i) + d
                        e(f"v_dot2_f32_bf16 v{u}, v{r}, v10, v{u}\nv_dot2_f32_bf16 v{u+1}, v{r}, v11, v{u+1}")
        nb_ = len(bounds) - 1
        for bt in range(nb_):
            if bt: H.at(bt - 1)
            for i in range(bounds[bt], bounds[bt + 1]):
                for j in range(3):
                    e(f"s_add_u32 s31, s32, {2048*j + 128*6144*i}\nbuffer_load_dwordx4 {v(CSR+4*(8*j+i),4)}, v6, {s(SB,4)}, s31 offen {'nt' if i < NTK else ''}")
            Q.add(("cs", bt), 3 * (bounds[bt + 1] - bounds[bt]))
            if bt >= LAG: dots(bt - LAG)
        for bt in range(nb_ - LAG, nb_):
            H.at(bt + LAG - 1); dots(bt)
        e(f"s_mul_i32 s33, s35, 768\ns_add_u32 s33, s33, {WS_CS1}")
        for j in range(3): colsum_block(j, 0, 0, (8,))
        H.at(H0AT + 1)
        for j in range(3): colsum_store(Q, j, 33, 8, "st1")
        ST("st_pub")
        H.by(GAT - 1); H.at(GAT)
        e(f"s_mul_i32 s33, s{sCB}, 768\ns_add_u32 s33, s33, {WS_CS1}\nv_lshlrev_b32 v6, 4, v1")
        def ld():
            for k in range(16): e(f"s_add_u32 s31, s33, {k*16*768}\nbuffer_load_dwordx4 {v(16+4*k,4)}, v6, {s(SWS,4)}, s31 offen sc1")
        def ld0():
            set_exec((1 << 48) - 1); ld(); e("s_mov_b64 exec, -1")
        H.atomic(ld0)
        H.at(GAT + 2)
        def fin():
            retry(ld, list(range(16, 80)), 48)
            for k in range(1, 16): e(f"v_pk_add_f32 v[16:17], v[16:17], {v(16+4*k,2)}\nv_pk_add_f32 v[18:19], v[18:19], {v(18+4*k,2)}")
            e(f"v_add_u32 v6, {L_CS}, v6\nds_write_b128 v6, v[16:19]\ns_mov_b64 exec, -1\ns_waitcnt lgkmcnt(0)")
        H.atomic(fin)
        ST("st_in")
        H.by(16)
    H.emit(17, HLIM, NPF, pf_from=PFD0, pf_to=GAT + 1, pre0=PRE0, cw=(0, 14) if CWARM > 1 else (0,))
    e("s_waitcnt lgkmcnt(0)")
    pf_stamp(ST)

def helper_rest(ST, Q):
    CSR = 16
    with HStream() as H:
        if B3LATE: H.at(0)
        for st in range(6, G3.NSB): G3.issue_b(Q, st)
        H.at(5)
        Q.wait_all()
        H.by(6)
        roles_84()
        b_src_w1()
        G4.p_setup_b(sWN)
        e(f"""
v_lshrrev_b32 v6, 3, v1
v_mul_u32_u24 v6, 7168, v6
v_and_b32 v7, 7, v1
v_lshl_add_u32 v6, v7, 4, v6
v_lshrrev_b32 v5, 2, v1
v_mul_u32_u24 v5, 7168, v5
v_and_b32 v7, 3, v1
v_lshl_add_u32 v5, v7, 4, v5
s_lshl_b32 s35, s{sRB}, 1
s_add_u32 s35, s35, s{sWN}
s_mul_i32 s32, s35, {32*7168}
s_mul_i32 s33, s{sCB}, 448
s_add_u32 s32, s32, s33
""")
        e(f"s_mul_i32 s33, s35, {3584*4}\ns_mul_i32 s34, s{sCB}, 896\ns_add_u32 s33, s33, s34\ns_add_u32 s33, s33, {WS_CS2}")
        if WARM4:
            e(f"s_and_b32 s36, s35, 15\ns_mul_i32 s36, s36, {4*7168}\ns_mul_i32 s37, s{sCB}, 448\ns_and_b32 s37, s37, {hex(0xffffff80)}\ns_add_u32 s36, s36, s37")
            e(f"v_bfe_u32 v8, v1, 2, 2\nv_mul_u32_u24 v8, 7168, v8\nv_and_b32 v9, 3, v1\nv_lshl_add_u32 v8, v9, 7, v8\ns_mov_b32 s37, {(G4.korder[1]-G4.korder[0])*64*7168}\nv_mul_lo_u32 v9, v3, s37\nv_add_u32 v8, v8, v9")
            assert G4.korder[0] == 0 and G4.korder[2] == 2 * G4.korder[1]
            H.at(CS2AT - 1)
            e(f"buffer_load_dword v244, v8, {s(SB,4)}, s36 offen"); Q.add("warm")
        H.at(CS2AT)
        for j in range(3):
            for i in range(4):
                e(f"s_add_u32 s31, s32, {8*7168*i}\nbuffer_load_dwordx4 {v(CSR+4*(4*j+i),4)}, v6, {s(SB,4)}, s31 offen offset:{128*j}")
            Q.add(("w", j), 4)
        for i in range(2):
            e(f"s_add_u32 s31, s32, {16*7168*i}\nbuffer_load_dwordx4 {v(CSR+48+4*i,4)}, v5, {s(SB,4)}, s31 offen offset:384")
        Q.add(("w", 3), 2)
    H.emit(17, 34, 1, every=3, pf_to=CS2AT, cw=(14,) if CWARM > 1 else ())
    pf_stamp(ST)
    for j in range(4):
        Q.wait(("w", j))
        colsum_block(j, CSR + 16 * j, 4 if j < 3 else 2, (8,) if j < 3 else (4, 8))
    pf_until_ep(2)
    if BSEEN:
        for j in range(4): colsum_store(Q, j, 33, 8 if j < 3 else 4, "st2")
        if BSEEN == 2: G4.issue_b(Q, 1)
        e(f"v_mov_b32 v12, {L_FULL}")
        lds_wait(12, 1, vFV, sleep=1)
        if BSEEN == 1: G4.issue_b(Q, 1)
    else:
        if not BLATE:
            for st in (1, 2): G4.issue_b(Q, st)
        for j in range(4): colsum_store(Q, j, 33, 8 if j < 3 else 4, "st2")
    ST("cs2_pub")
    with HStream() as H:
        e(f"s_lshl_b32 s36, s{sRB}, 8\ns_add_u32 s36, s36, {WS_F3}\ns_lshr_b32 s37, s{sR}, 1\ns_min_u32 s37, s37, 13\ns_lshl_b32 s37, s37, 8\ns_add_u32 s37, s37, {WS_F3}")
        H.at(0)
        if BSEEN:
            H.atomic(lambda: G4.issue_b(Q, 2), 0)
            Q.wait(1)
            H.at(1)
        Q.wait(2)
        e("v_lshlrev_b32 v240, 2, v1\nv_mul_u32_u24 v241, 12, v1")
        H.at(CHKAT)
        e(f"buffer_load_dword v232, v240, {s(SWS,4)}, s36 offen sc1\nbuffer_load_dwordx3 v[234:236], v241, {s(SWS,4)}, s37 offen sc1")
        Q.add("chk", 2)
        H.at(CHKAT + 2)
        def chk():
            X = A.newlabel("ckx")
            Q.wait("chk")
            e(f"v_lshrrev_b32 v232, 1, v232\nv_and_b32 v232, v232, v236\nv_and_b32 v234, v234, v235\nv_and_b32 v232, v232, v234\nv_and_b32 v232, 1, v232\nv_cmp_ne_u32 vcc, 1, v232\ns_cbranch_vccz {X}")
            poll("s36", 64, mask=2, t=8, sleep=8)
            for d in range(3):
                e(f"s_add_u32 s38, s37, {256*d}"); poll("s38", 64, mask=1, t=8, sleep=8)
            A.label(X)
        H.atomic(chk, 10)
        e(f"v_lshlrev_b32 v11, 4, v1\ns_lshl_b32 s36, s35, 14\ns_add_u32 s36, s36, {WS_STAT}\ns_add_u32 s37, s36, 4096\ns_add_u32 s38, s36, 8192\ns_add_u32 s39, s36, 12288")
        for i in range(16): e(f"buffer_load_dwordx4 {v(96+4*i,4)}, v11, {s(SWS,4)}, s{36+i//4} offen offset:{1024*(i%4)} sc1")
        Q.add("stat", 16)
        e(f"s_mul_i32 s33, s{sCB}, 896\ns_mul_i32 s34, s{sWN}, 448\ns_add_u32 s33, s33, s34\ns_add_u32 s33, s33, {WS_CS2}")
        e(f"v_and_b32 v7, 31, v1\nv_lshlrev_b32 v7, 4, v7\nv_lshrrev_b32 v6, 5, v1\nv_mul_u32_u24 v6, {3584*4}, v6\nv_add_u32 v6, v6, v7")
        M28 = ((1 << 28) - 1) | (((1 << 28) - 1) << 32)
        def ld(ks=range(16)):
            for k in ks: e(f"s_add_u32 s31, s33, {k*2*3584*4}\nbuffer_load_dwordx4 {v(16+4*k,4)}, v6, {s(SWS,4)}, s31 offen sc1")
        for c in range(4):
            def ldc(c=c):
                set_exec(M28); ld(range(4 * c, 4 * c + 4)); e("s_mov_b64 exec, -1")
            H.atomic(ldc, 4 * VMC)
        Q.add("cs", 16)
        Q.wait("stat")
        for h in range(2):
            e(f"v_pk_add_f32 {v(160+2*h,2)}, {v(96+2*h,2)}, {v(100+2*h,2)}")
            for i in range(2, 16): e(f"v_pk_add_f32 {v(160+2*h,2)}, {v(160+2*h,2)}, {v(96+4*i+2*h,2)}")
        for h in range(2): e(f"v_mov_b32 v{164+h}, v{160+2*h}")
        for h in range(2): e(f"v_permlane32_swap_b32 v{160+2*h}, v{164+h}")
        for h in range(2): e(f"v_add_f32 v{160+2*h}, v{160+2*h}, v{164+h}\nv_mul_f32 v{166+h}, {f32(1/32)}, v{160+2*h}\nv_mov_b32 v{168+h}, 0")
        for i in range(16):
            for h in range(2):
                r = 96 + 4 * i + 2 * h
                e(f"v_sub_f32 v{r}, v{r}, v{166+h}\nv_fma_f32 v{168+h}, v{r}, v{r}, v{168+h}")
        e(f"v_mov_b32 v13, {f32(1/32)}")
        for h in range(2): e(f"v_fma_f32 v{161+2*h}, v{168+h}, v13, v{161+2*h}\nv_mov_b32 v{164+h}, v{161+2*h}")
        for h in range(2): e(f"v_permlane32_swap_b32 v{161+2*h}, v{164+h}")
        for h in range(2):
            a_, b_ = 160 + 2 * h, 161 + 2 * h
            e(f"v_add_f32 v{b_}, v{b_}, v{164+h}")
            ln_finish(a_, b_, 1024)
            e(f"v_mul_f32 v{b_}, {f32(-LOG2E)}, v{b_}\nv_mul_f32 v{a_}, v{a_}, v{b_}\nv_sub_f32 v{a_}, 0, v{a_}")
        e(f"s_lshl_b32 s30, s{sWN}, 9\ns_add_u32 s30, s30, {L_RA}\nv_add_u32 v13, s30, v7\nds_write_b128 v13, v[160:163]")
        def fin():
            retry(ld, list(range(16, 80)), M28)
            e("s_mov_b64 exec, -1")
        H.atomic(fin, 36)
        for k in range(1, 16): e(f"v_pk_add_f32 v[16:17], v[16:17], {v(16+4*k,2)}\nv_pk_add_f32 v[18:19], v[18:19], {v(18+4*k,2)}")
        for h in range(4): e(f"v_mov_b32 v{20+h}, v{16+h}")
        for h in range(4): e(f"v_permlane32_swap_b32 v{16+h}, v{20+h}")
        e("v_pk_add_f32 v[16:17], v[16:17], v[20:21]\nv_pk_add_f32 v[18:19], v[18:19], v[22:23]")
        e(f"s_add_u32 s34, s34, {L_CS}\nv_add_u32 v7, s34, v7"); set_exec((1 << 28) - 1)
        e("ds_write_b128 v7, v[16:19]\ns_mov_b64 exec, -1\ns_waitcnt lgkmcnt(0)")
        ST("st2_in")
        H.by(16)
        if W2NT:
            H.at(W2AT)
            def w2pf():
                srd(SB, pW2, 7 * MB)
                e(f"s_lshr_b32 s36, s{sG}, 1\ns_mul_i32 s36, s36, {896*2048}\ns_lshl_b32 s37, s{sR}, 1\ns_add_u32 s37, s37, s{sWN}\ns_mul_i32 s37, s37, {56*128}\ns_add_u32 s36, s36, s37\nv_lshlrev_b32 v240, 7, v1")
                set_exec((1 << 56) - 1)
                for k in range(2): e(f"s_add_u32 s31, s36, {k*64*56*128}\nbuffer_load_dword v{244+k}, v240, {s(SB,4)}, s31 offen {W2NT.replace('none','')}")
                e("s_mov_b64 exec, -1")
            H.atomic(w2pf, 0)
    H.emit(17, HLIM4, NPF, more=True, pf_to=14, cw=(14,) if CWARM > 1 else ())
    pf_stamp(ST)
    pf_finish()
    if CANARY:
        roles_w2()
        Q.q = []
        with HStream() as H:
            e(f"s_lshl_b32 s33, s{sRB}, 3\ns_add_u32 s33, s33, s{sCB}\ns_mul_i32 s34, s33, {256*KB}\ns_add_u32 s34, s34, {WS_PART}\ns_lshl_b32 s30, s{sWN}, 13\ns_add_u32 s34, s34, s30")
            e(f"s_lshl_b32 s30, s{sKS}, 14\ns_add_u32 s34, s34, s30\nv_lshlrev_b32 v2, 4, v1")
            for k in range(4): e(f"v_mov_b32 v{8+k}, -1")
            e(f"s_lshl_b32 s37, s33, 6\ns_lshl_b32 s30, s{sKS}, 4\ns_add_u32 s37, s37, s30\ns_lshl_b32 s30, s{sWN}, 3\ns_add_u32 s37, s37, s30\ns_add_u32 s37, s37, {WS_F5}")
            H.at(PFILL)
            for d in range(1, 4):
                for hb in range(2):
                    e(f"s_add_u32 s31, s{sKS}, {d}\ns_and_b32 s31, s31, 3\ns_lshl_b32 s31, s31, 16\ns_add_u32 s31, s31, s34\ns_add_u32 s31, s31, {hb*4096}")
                    for b in range(4): e(f"buffer_store_dwordx4 v[8:11], v2, {s(SWS,4)}, s31 offen offset:{b*1024} sc1")
            H.by(PFILL + 7); H.at(PFILL + 8)
            e(f"s_waitcnt vmcnt(0)\nv_mov_b32 v12, 1\nv_lshlrev_b32 v13, 2, v1\ns_mov_b64 exec, 3\nbuffer_store_dword v12, v13, {s(SWS,4)}, s37 offen sc1\ns_mov_b64 exec, -1")
        H.emit(PFILL + 10, 24, 0)
    if W2NT:
        set_exec((1 << 56) - 1)
        for k in range(2, 4): e(f"s_add_u32 s31, s36, {k*64*56*128}\nbuffer_load_dword v{244+k}, v240, {s(SB,4)}, s31 offen {W2NT.replace('none','')}")
        e("s_mov_b64 exec, -1")

def producer(ST):
    Q = VmQ()
    pf_init()
    e(f"s_cmp_eq_u32 s{sW}, 2\ns_cbranch_scc1 L_h0\ns_cmp_eq_u32 s{sW}, 3\ns_cbranch_scc1 L_h1")
    SD_ = ST.fork("D"); dma_phase1(SD_, Q)
    e("s_branch L_att")
    A.label("L_h0")
    if HPRIO: e(f"s_setprio {HPRIO}")
    SH = ST.fork("H"); helper0_phase1(SH, VmQ())
    e("s_branch L_att")
    A.label("L_h1")
    if HPRIO: e(f"s_setprio {HPRIO}")
    SH = ST.fork("H"); helper1_phase1(SH, VmQ())
    while len(SH.names) < len(SD_.names): SH.names.append("-")
    while len(SD_.names) < len(SH.names): SD_.names.append("-")
    A.label("L_att")
    e(f"s_setprio {APRIO}")
    n0 = len(SD_.names)
    neighbours_and_attention(SD_, Q)
    SH.names += SD_.names[n0:]
    e(f"s_cmp_ge_u32 s{sW}, 2\ns_cbranch_scc1 L_hrest")
    dma_rest(SD_, Q)
    SD_.flush()
    e("s_endpgm")
    A.label("L_hrest")
    e(f"s_setprio {HPRIO}")
    helper_rest(SH, VmQ())
    SH.flush()

def main():
    A.begin_kernel(KN)
    if STAMPS: e(f"{STAMP_OP} {s(sST,2)}")
    e(f"""
s_cmp_ge_u32 s2, 256
s_cbranch_scc1 L_end
s_load_dwordx16 s[48:63], s[0:1], 0
s_load_dwordx2 s[64:65], s[0:1], 64
v_lshrrev_b32 v2, 6, v0
v_and_b32 v1, 63, v0
v_readfirstlane_b32 s{sWAVE}, v2
v_lshrrev_b32 v3, 4, v1
v_and_b32 v4, 15, v1
s_and_b32 s{sG}, s2, 7
s_mov_b32 s3, 0
s_lshr_b32 s{sR}, s2, 3
s_and_b32 s{sW}, s{sWAVE}, 3
s_lshr_b32 s{sWM}, s{sW}, 1
s_and_b32 s{sWN}, s{sW}, 1
""")
    roles_p1()
    e(f"s_lshl_b32 s{sOWN}, s{sCB}, 4\ns_add_u32 s{sOWN}, s{sOWN}, s{sRB}\ns_lshl_b32 s{sOWN}, s{sOWN}, 16")
    e(f"s_add_u32 s{sROT}, s{sRB}, s{sCB}\ns_and_b32 s{sROT}, s{sROT}, {15 if ROT1 else 0}")
    e(f"s_lshl_b32 s{sBC}, s{sCB}, 7\ns_mov_b32 s{sBR}, 0\ns_lshl_b32 s{sAR}, s{sRB}, 18")
    G1.p_setup_a(); G1.p_setup_b()
    sync_regs()
    e("s_waitcnt lgkmcnt(0)")
    if STAMPS: e(f"s_mov_b32 s78, s{sST}\ns_mov_b32 s0, 0\ns_mov_b32 s1, 0")
    srd(SX, pX, 4 * MB); srd(SB, pWQKV, 6 * MB)
    if WSOFF: e(f"s_add_u32 s{pWS}, s{pWS}, {WSOFF*MB}\ns_addc_u32 s{pWS+1}, s{pWS+1}, 0")
    srd(SWS, pWS, WS_BYTES); srd(SD, pDBG, 256)
    e(f"s_cmp_lt_u32 s{sWAVE}, 4\ns_cbranch_scc1 L_cons")
    producer(Stamper("P"))
    A.label("L_end")
    e("s_endpgm")
    A.label("L_cons")
    consumer(Stamper("C"))
    A.lines.append(f".fill ({NCODE*8192} - (. - {KN})) / 4, 4, 0xbf810000")
    A.end_kernel(KN, 256, 102)
    A.lines = hazard.fix(A.lines)
    hdr = open("sequential_preLN__sliding_block__dense_activation_silu__prompt.s.ref").read().split("; Override launch")[0]
    hdr += f"; @launch grid=(256,1,1) block=(512,1,1) lds={LDS_BYTES}\n"
    for k, nm in STAMP_NAMES.items(): hdr += f"; stamps {k}: {' '.join(nm)}\n"
    sys.stdout.write(A.text(hdr))
main()
```

```python
import sys, struct
from asmlib import Asm
import hazard

ARGS = sys.argv[1:]
def opt(name, default):
    for a in ARGS:
        if a.startswith("--" + name + "="): return type(default)(a.split("=", 1)[1])
    return default
STAMPS = "--stamps" in ARGS
STAMP_OP = "s_memtime" if "--cyc" in ARGS else "s_memrealtime"
DPRIO = opt("dprio", 1)
FORCE = opt("force", -1)
PSLEEP = opt("psleep", 1)
GAT = opt("gat", 13); H0AT = opt("h0at", 5)
PUBN = opt("pubn", 16)
FPOS = opt("fpos", 8)
RP4 = opt("rp4", 0); RP5 = opt("rp5", 0)
CS2AT = opt("cs2at", 11)
CHKAT = opt("chkat", 2)
HLIM4 = opt("hlim4", 42)
DOTC = opt("dotc", 1.0)
NOST4 = opt("nost4", 0)
NSB3 = opt("nsb3", 11)
PF2 = opt("pf2", 4)
XAT = opt("xat", -1)
PERT = opt("pert", 0.0); PERTN = opt("pertn", 1); PERTL = opt("pertl", 1)
KFLAG = opt("kflag", 1)
SLOWPF = opt("slowpf", 1)
GATEN = {"wo": opt("g3n", 2), "w1": opt("g4n", 2)}
APK = opt("apk", 1)
AMIX = opt("amix", 0)
APRIO = opt("aprio", 0)
TAILPM = opt("tailpm", 1)
DBGOUT = opt("dbgout", -1)
CANARY = opt("canary", 0)
BSEEN = opt("bseen", 0)
PFILL = opt("pfill", 0)
ASY5 = opt("asy5", 1)
WARM4 = opt("warm4", 0)
ASYNC = opt("async", 0)
NTK = opt("ntk", 4)
EARLY5 = opt("early5", 1)
E5LAG = opt("e5lag", 2)
LAG = opt("lag", 1)
H1FL = opt("h1fl", "")
B1FL = opt("b1fl", "")
W2NT = opt("w2nt", "")
W2AT = opt("w2at", 14)
KORD = opt("kord", 1)
CWARM = opt("cwarm", 1)
NCODE = opt("ncode", 11)
TAILD = opt("taild", 0)
TOUCH4 = opt("touch4", 0)
HB = [int(x) for x in opt("hb", "3,5,7").split(",")]
DOT = opt("dot", 1)
PFH = opt("pfh", 0)
PFD0 = opt("pfd0", 3)
BEARLY = opt("bearly", 0)
BLATE = opt("blate", 0)
B3LATE = opt("b3late", 0)
KVFL = opt("kvfl", "sc1")
FINE = opt("fine", 1)
G4AT = opt("g4at", 9)
NPF = opt("npf", 1)
PFW1 = opt("pfw1", 0)
PFBUB = opt("pfbub", 0)
DST = opt("dst", "")
DW = eval(opt("dw", "()")); DB = eval(opt("db", "(0,1,2,3,4,5,6,7,8,9,10,12,14)"))
VMC = opt("vmc", 5)
PRE0 = opt("pre0", 999)
DBGH = opt("dbgh", 0)
P1G = opt("p1g", 2)
HLIM = opt("hlim", 120)
HPRIO = opt("hprio", 0)
SENT = 0xFFFFFFFF
SKIP = opt("skip", "att_v,p_flag").split(",")
ROT1 = opt("rot1", 0); ROT3 = opt("rot3", 0); ROT4 = opt("rot4", 0)
BAR = opt("bar", 0)
NS1 = opt("ns1", 3)
ALIAS = opt("alias", 1)
TESTH1 = opt("testh1", 0)
TFL = opt("tfl", "nt")
TOUCH = opt("touch", 0)
LFL = opt("lfl", "").replace("_", " ")
PFL = opt("pfl", "sc1").replace("_", " ")
OFL = opt("ofl", "").replace("_", " ")
TS = opt("ts", 0)
SPFON = opt("spf", 1)
PFB = opt("pfb", 6)
MAP1 = opt("map1", 162)
WAKE = opt("wake", 0)
LCAP = opt("lcap", 10)
SPREAD = opt("spread", 0.8)
DPOS = opt("dpos", 0.25)
NOSY = opt("nosy", "")
EARLY = opt("early", 1)
DSLEEP = opt("dsleep", 1)
ONLY = opt("only", 0)
NOLOAD = opt("noload", "")
NOMFMA = opt("nomfma", 0)
KN = "sequential_preLN__sliding_block__dense_activation_silu__prompt_kernel"
SPLIT = 4

MB = 1 << 20; KB = 1024
WS_AR, WS_H, WS_AR2 = 0, 20 * MB, 24 * MB
AR_K, AR_V, AR_O = 0, 16 * KB, 32 * KB
WS_STAT = 40 * MB
WS_CS1 = 41 * MB
WS_CS2 = 41 * MB + 256 * KB
WS_RA = 41 * MB + 768 * KB
WS_RB = WS_RA + 8 * KB
WS_F1 = 41 * MB + 896 * KB
WS_F2 = WS_F1 + 4 * KB; WS_F3 = WS_F2 + 8 * KB; WS_F4 = WS_F3 + 4 * KB; WS_F5 = WS_F4 + 4 * KB
WS_F6 = WS_F5 + 8 * KB; WS_F7 = WS_F6 + 2 * KB; WS_F8 = WS_F7 + 1 * KB
WS_DBG = 48 * MB
WS_PART = 52 * MB
WSOFF = opt("wsoff", 0)
WS_BYTES = (256 - WSOFF) * MB
LOG2E = 1.4426950408889634
LDS_BYTES = 160 * KB
MISC = LDS_BYTES - 6 * KB
L_RA, L_CS = MISC, MISC + 1024
L_DONE, L_FULL, L_HD, L_EP = MISC + 2048, MISC + 3072, MISC + 4096, MISC + 5120
L_MODE = L_HD + 512
vDW, vFR, vCNT, vFV = 252, 253, 254, 255
SPIN_MAX = 1 << 16
LSPIN_MAX = 1 << 22

def f32(x): return "0x%08x" % struct.unpack("<I", struct.pack("<f", x))[0]
def v(a, n=1): return f"v{a}" if n == 1 else f"v[{a}:{a+n-1}]"
def s(a, n=1): return f"s{a}" if n == 1 else f"s[{a}:{a+n-1}]"

SX, SWS, SB, SD = 4, 8, 12, 16
sWAVE, sW, sG, sR, sRB, sCB, sBC, sBH, sWM, sWN = 20, 21, 22, 23, 24, 25, 26, 27, 28, 29
pX, pWQKV, pWO, pW1, pW2, pOUT, pDBG, pWS = 48, 50, 52, 56, 58, 60, 62, 64
sMODE = 54; sT0 = 55
sAR, sBR, sM0A, sM0B, sM0H, sKS, sCNT, sNEED, sC0 = 66, 67, 68, 69, 70, 71, 72, 73, 74
sST = 76
sOWN, sROT, sAK, sBK = 60 + 40, 60 + 41, 98, 99


A = Asm()
def e(t): A.e(t)
STAMP_NAMES = {}
class Stamper:
    def __init__(self, role): self.role = role; self.names = ["start"]
    def __call__(self, name):
        if not STAMPS: return
        if name in SKIP: return
        n = len(self.names)
        assert n < 19, self.names
        e(f"{STAMP_OP} {s(sST,2)}\ns_waitcnt lgkmcnt(0)\ns_mov_b32 s{78+n}, s{sST}")
        self.names.append(name)
    def fork(self, role):
        t = Stamper(role); t.names = list(self.names); return t
    def flush(self):
        if not STAMPS: return
        self("end")
        n = len(self.names); self.names.append("nslow")
        e(f"s_mul_i32 s0, s0, {1000 if STAMP_OP == 's_memtime' else 100}\ns_add_u32 s{78+n}, s78, s0")
        STAMP_NAMES[self.role] = self.names
        e("s_waitcnt vmcnt(0)")
        for i in range(24): e(f"v_mov_b32 v{8+i}, s{78+min(i,len(self.names)-1)}")
        e(f"s_lshl_b32 s30, s2, 10\ns_lshl_b32 s31, s{sWAVE}, 7\ns_add_u32 s30, s30, s31\ns_add_u32 s30, s30, {WS_DBG}")
        e("v_mov_b32 v2, 0\ns_mov_b64 exec, 1")
        for i in range(6): e(f"buffer_store_dwordx4 {v(8+4*i,4)}, v2, {s(SWS,4)}, s30 offen offset:{16*i}")
        e("s_mov_b64 exec, -1")
        if DBGOUT >= 0 and self.role == "C":
            L = A.newlabel("nodbg")
            e(f"s_cmp_lg_u32 s2, {DBGOUT}\ns_cbranch_scc1 {L}\ns_cmp_lg_u32 s{sWAVE}, 0\ns_cbranch_scc1 {L}")
            srd(SD, pDBG, 256)
            for i in range(16): e(f"v_sub_u32 v{40+i}, v{8+2+i}, v8")
            e("s_mov_b64 exec, 1")
            for i in range(4): e(f"buffer_store_dwordx4 {v(40+4*i,4)}, v2, {s(SD,4)}, 0 offen offset:{16*i} sc1")
            e("s_mov_b64 exec, -1")
            A.label(L)

class VmQ:
    def __init__(self): self.q = []
    def add(self, tag, n=1): self.q += [tag] * n
    def has(self, tag): return tag in self.q
    def after(self, tag):
        if tag not in self.q: return 99
        return len(self.q) - 1 - max(i for i, t in enumerate(self.q) if t == tag)
    def wait(self, tag):
        if tag not in self.q: return
        n = self.after(tag)
        assert n <= 63, n
        e(f"s_waitcnt vmcnt({n})")
        self.q = self.q[len(self.q) - n:]
    def wait_all(self):
        e("s_waitcnt vmcnt(0)"); self.q = []

def set_exec(mask):
    if mask == (1 << 64) - 1: e("s_mov_b64 exec, -1")
    elif mask <= 64: e(f"s_mov_b64 exec, {mask}")
    else: e(f"s_mov_b32 exec_lo, {hex(mask & 0xffffffff)}\ns_mov_b32 exec_hi, {hex(mask >> 32)}")
def srd(d, base, nbytes):
    e(f"s_mov_b32 s{d}, s{base}\ns_and_b32 s{d+1}, s{base+1}, 0xffff\ns_mov_b32 s{d+2}, {nbytes}\ns_mov_b32 s{d+3}, 0x20000")
def xg_multi(op, regs, tmps):
    for sw in ("v_permlane16_swap_b32", "v_permlane32_swap_b32"):
        for r, t in zip(regs, tmps): e(f"v_mov_b32 v{t}, v{r}")
        for r, t in zip(regs, tmps): e(f"{sw} v{r}, v{t}")
        for r, t in zip(regs, tmps): e(f"{op} v{r}, v{r}, v{t}")
def round_bf16(r): e(f"v_cvt_pk_bf16_f32 v{r}, v{r}, v{r}\nv_and_b32 v{r}, 0xffff0000, v{r}")
def ln_finish(vsum, vm2, n):
    e(f"v_mul_f32 v{vsum}, {f32(1.0/n)}, v{vsum}"); round_bf16(vsum)
    e(f"v_mul_f32 v{vm2}, {f32(1.0/n)}, v{vm2}"); round_bf16(vm2)
    e(f"v_add_f32 v{vm2}, {f32(1e-5)}, v{vm2}"); round_bf16(vm2)
    e(f"v_sqrt_f32 v{vm2}, v{vm2}"); round_bf16(vm2)
    e(f"v_rcp_f32 v{vm2}, v{vm2}")
def pack(dst, c0, c1):
    e(f"v_cvt_pk_bf16_f32 v{dst}, v{c0}, v{c0+1}\nv_cvt_pk_bf16_f32 v{dst+1}, v{c0+2}, v{c0+3}")
    e(f"v_cvt_pk_bf16_f32 v{dst+2}, v{c1}, v{c1+1}\nv_cvt_pk_bf16_f32 v{dst+3}, v{c1+2}, v{c1+3}")
def unpack(lo, src): e(f"v_lshlrev_b32 v{lo}, 16, v{src}\nv_and_b32 v{lo+1}, 0xffff0000, v{src}")

def set_flag(soff, st="sc1", val=1, t=5):
    e(f"v_mov_b32 v{t}, 0\nv_mov_b32 v{t+1}, {val}\ns_mov_b64 exec, 1\nbuffer_store_dword v{t+1}, v{t}, {s(SWS,4)}, s{soff} offen {st}\ns_mov_b64 exec, -1")

def poll(soff, nlanes, voff=None, x2=False, srd_=SWS, mask=1, t=8, sleep=None):
    L = A.newlabel("poll"); X = A.newlabel("pollx")
    if voff is None:
        e(f"v_lshlrev_b32 v{t+2}, {3 if x2 else 2}, v1"); voff = t + 2
    if nlanes < 64: set_exec((1 << nlanes) - 1)
    e(f"s_mov_b32 s{sCNT}, 0")
    A.label(L)
    if x2: e(f"buffer_load_dwordx2 {v(t,2)}, v{voff}, {s(srd_,4)}, {soff} offen sc1")
    else: e(f"buffer_load_dword v{t}, v{voff}, {s(srd_,4)}, {soff} offen sc1")
    e(f"s_add_u32 s{sCNT}, s{sCNT}, 1\ns_cmp_gt_u32 s{sCNT}, {SPIN_MAX}\ns_waitcnt vmcnt(0)\ns_cbranch_scc1 {X}")
    if x2: e(f"v_and_b32 v{t}, v{t}, v{t+1}")
    e(f"v_and_b32 v{t}, {mask}, v{t}\nv_cmp_ne_u32 vcc, {mask}, v{t}")
    e(f"s_cbranch_vccz {X}\ns_sleep {PSLEEP if sleep is None else sleep}\ns_branch {L}")
    A.label(X)
    e("s_mov_b64 exec, -1")

sRDY = 40
def flags_refresh(Q, soff, voff, x2, shift=None):
    if flags_refresh.pending and not Q.has("look"):
        if x2: e("v_and_b32 v14, v14, v15")
        if shift: e(f"v_lshrrev_b32 v14, v{shift}, v14")
        e(f"v_and_b32 v14, 1, v14\nv_cmp_ne_u32 vcc, 1, v14\ns_and_b64 {s(sRDY,2)}, {s(sRDY,2)}, vcc")
        flags_refresh.pending = False
    if not flags_refresh.pending:
        e(f"s_cmp_eq_u64 {s(sRDY,2)}, 0\ns_cselect_b32 s30, {WS_BYTES}, s{soff}")
        e(f"buffer_load_dwordx2 v[14:15], v{voff}, {s(SWS,4)}, s30 offen sc1" if x2 else f"buffer_load_dword v14, v{voff}, {s(SWS,4)}, s30 offen sc1")
        Q.add("look"); flags_refresh.pending = True
flags_refresh.pending = False
def need_flags(bits, soff, voff, x2, shift=None):
    L, X = A.newlabel("nf"), A.newlabel("nfx")
    lo, hi = bits & 0xffffffff, bits >> 32
    def test():
        if lo and hi: e(f"s_and_b32 s30, s{sRDY}, {hex(lo)}\ns_and_b32 s31, s{sRDY+1}, {hex(hi)}\ns_or_b32 s30, s30, s31")
        elif lo: e(f"s_and_b32 s30, s{sRDY}, {hex(lo)}")
        else: e(f"s_and_b32 s30, s{sRDY+1}, {hex(hi)}")
    test()
    e(f"s_cbranch_scc0 {X}")
    A.label(L)
    if x2: e(f"buffer_load_dwordx2 v[8:9], v{voff}, {s(SWS,4)}, s{soff} offen sc1\ns_waitcnt vmcnt(0)\nv_and_b32 v8, v8, v9")
    else: e(f"buffer_load_dword v8, v{voff}, {s(SWS,4)}, s{soff} offen sc1\ns_waitcnt vmcnt(0)")
    if shift: e(f"v_lshrrev_b32 v8, v{shift}, v8")
    e(f"v_and_b32 v8, 1, v8\nv_cmp_ne_u32 {s(sRDY,2)}, 1, v8\ns_add_u32 s{sCNT}, s{sCNT}, 1\ns_cmp_gt_u32 s{sCNT}, {SPIN_MAX}\ns_cbranch_scc1 {X}")
    test()
    e(f"s_cbranch_scc1 {L}")
    A.label(X)

def gate_k(G, k, x2):
    n0 = GATEN[G.name]
    if k == 0: need_flags(sum(0xf << (4 * G.korder[j]) for j in range(n0)), 32, 10, x2)
    elif k >= n0: need_flags(0xf << (4 * G.korder[k]), 32, 10, x2)
def spoll(srd_, soff, n16, mask, base=32):
    X = A.newlabel("spx")
    e("s_mov_b32 s31, -1")
    for k in range(2 * n16):
        e(f"s_add_u32 s30, {soff}, {32*k}\ns_buffer_load_dwordx8 {s(base,8)}, {s(srd_,4)}, s30\ns_waitcnt lgkmcnt(0)")
        for i in range(1, 4): e(f"s_and_b64 {s(base,2)}, {s(base,2)}, {s(base+2*i,2)}")
        e(f"s_and_b32 s31, s31, s{base}\ns_and_b32 s31, s31, s{base+1}")
    e(f"s_and_b32 s31, s31, {mask}\ns_cmp_eq_u32 s31, {mask}\ns_cbranch_scc1 {X}")
    poll(soff, 16 * n16, srd_=srd_, mask=mask, t=8, sleep=16)
    A.label(X)

def lds_wait(vaddr, need, vt, sleep=1, off=0):
    L = A.newlabel("lw"); X = A.newlabel("lwx")
    A.label(L)
    e(f"ds_read_b32 v{vt}, v{vaddr} offset:{off}\ns_waitcnt lgkmcnt(0)\nv_cmp_gt_u32 vcc, {need}, v{vt}\ns_cbranch_vccz {X}")
    if sleep: e(f"s_sleep {sleep}")
    e(f"s_add_u32 s3, s3, 1\ns_cmp_lt_u32 s3, {LSPIN_MAX}\ns_cbranch_scc1 {L}")
    A.label(X)
OFF_DONE, OFF_FULL, OFF_HD, OFF_EP = 0, 1024, 2048, 3072
def sync_regs():
    e(f"s_lshl_b32 s30, s{sW}, 8\ns_add_u32 s30, s30, {L_DONE}\nv_lshl_add_u32 v{vDW}, v1, 2, s30")
    e(f"v_and_b32 v{vFR}, 3, v1\nv_mul_u32_u24 v{vFR}, 260, v{vFR}\nv_add_u32 v{vFR}, {L_DONE}, v{vFR}")
def post(off, val, t=vFV):
    e(f"v_mov_b32 v{t}, {val}\nds_write_b32 v{vDW}, v{t} offset:{off}")
def wait_rows(off, need, sleep=1): lds_wait(vFR, need, vFV, sleep=sleep, off=off)

class Gemm:
    PA, PB, PH = 232, 236, 240
    def __init__(self, name, base, TM, TN, NK, NS, KBsrc, ldb, kperm, araw=False, NSB=None, bslot=None, RP=0, alay="rt"):
        self.alay = "raw" if araw else alay
        self.name, self.base, self.TM, self.TN, self.NK, self.NS = name, base, TM, TN, NK, NS
        self.KB, self.ldb, self.kperm, self.araw, self.RP = KBsrc, ldb, kperm, araw, RP
        self.NSB = NSB or NS
        self.MT, self.NT = TM // 32, TN // 32
        self.nfull, self.half = TN // 64, (TN % 64) != 0
        self.a_stage = TM * 128
        b0 = NS * self.a_stage
        self.b0 = b0
        self.b_base = [b0 + j * self.NSB * 8192 for j in range(self.nfull)]
        self.h_base = b0 + self.nfull * self.NSB * 8192
        self.bslot = bslot or (lambda step: step % self.NSB)
        assert self.h_base + (self.NSB * 4096 if self.half else 0) <= MISC
        MT, NT = self.MT, self.NT
        self.FA = [8, 8 + 4 * MT + 4 * NT]
        self.FB = [self.FA[0] + 4 * MT, self.FA[1] + 4 * MT]
        nxt = self.FA[1] + 4 * MT + 4 * NT
        self.VA = nxt; nxt += 8 if self.alay == "bm" else 2
        self.VB = nxt; nxt += NT
        self.bhi = self.NSB * 8192 > 65536
        self.VB2 = nxt
        if self.bhi: nxt += NT
        nxt = (nxt + 3) // 4 * 4
        self.ACC = nxt; nxt += MT * NT * 4
        self.VX = nxt
        assert nxt <= vDW
        self.RTW = TM // 32
    def acc(self, mt, nt): return self.ACC + (nt * self.MT + mt) * 4
    def swapped(self, nt): return True
    def blk_delta(self, j): return 128 * j

    def c_setup(self):
        MT = self.MT
        if self.araw:
            e(f"""
s_lshl_b32 s30, s{sWM}, 13
v_lshl_add_u32 v5, v4, 7, s30
v_lshrrev_b32 v6, 1, v4
v_xor_b32 v6, v6, v3
v_lshl_add_u32 v{self.VA}, v6, 4, v5
v_xor_b32 v6, 4, v6
v_lshl_add_u32 v{self.VA+1}, v6, 4, v5
""")
        elif self.alay == "bm":
            for p in range(4):
                e(f"s_add_u32 s30, s{sKS}, {p}\ns_and_b32 s30, s30, 3\ns_lshl_b32 s30, s30, 11\ns_lshl_b32 s31, s{sWM}, 14\ns_add_u32 s30, s30, s31")
                e(f"v_lshl_add_u32 v{self.VA+p}, v1, 4, s30\nv_add_u32 v{self.VA+4+p}, 0x10000, v{self.VA+p}")
        else:
            e(f"s_mul_i32 s30, s{sWM}, {MT*2048}\nv_lshl_add_u32 v{self.VA}, v1, 4, s30\nv_add_u32 v{self.VA+1}, 0x10000, v{self.VA}")
        e("v_bfe_u32 v5, v1, 2, 2\nv_and_b32 v6, 3, v1")
        if self.kperm: e("v_lshl_add_u32 v7, v3, 2, v5\nv_bfe_u32 v2, v7, 1, 2")
        else: e("v_lshl_add_u32 v7, v3, 3, v5\nv_lshrrev_b32 v2, 1, v5\nv_and_b32 v8, 1, v3\nv_lshl_or_b32 v2, v8, 1, v2")
        e("v_mov_b32 v9, v7\nv_lshlrev_b32 v7, 7, v7\nv_lshl_add_u32 v7, v6, 3, v7")
        for t, (kind, blk, seg) in enumerate(self.tiles()):
            vb = self.VB + t
            if kind == "F":
                e(f"s_mul_i32 s30, s{sWN}, {seg[1]}\ns_add_u32 s30, s30, {seg[0]}")
                e(f"v_xor_b32 v8, s30, v2\nv_lshl_add_u32 v{vb}, v8, 5, v7")
                e(f"s_mul_i32 s30, s{sWN}, {blk[1]*self.NSB*8192}\ns_add_u32 s30, s30, {self.b_base[0] + blk[0]*self.NSB*8192}")
                e(f"v_add_u32 v{vb}, s30, v{vb}")
            else:
                e(f"v_bfe_u32 v8, v9, 2, 1\nv_xor_b32 v8, s{sWN}, v8\nv_lshlrev_b32 v8, 5, v8")
                e(f"v_lshl_add_u32 v8, v9, 6, v8\nv_lshl_add_u32 v8, v6, 3, v8\nv_add_u32 v{vb}, {self.h_base}, v8")
            if self.bhi: e(f"v_add_u32 v{self.VB2+t}, 0x10000, v{vb}")
        if not self.czero():
            for r in range(self.ACC, self.ACC + self.MT * self.NT * 4, 2): e(f"v_mov_b64 {v(r,2)}, 0")
    def b_read(self, step, sub, t, dst):
        kind = self.tiles()[t][0]; sb = self.bslot(step); out = []
        for hi in range(2):
            rows = 32 * sub + (16 if self.kperm else 4) * hi
            off = sb * 8192 + rows * 128 if kind == "F" else sb * 4096 + rows * 64
            base = self.VB + t
            if off > 0xffff: base, off = self.VB2 + t, off - 0x10000
            out.append(f"ds_read_b64_tr_b16 {v(dst+2*hi,2)}, v{base} offset:{off}")
        return out
    def a_read(self, step, sub, mt, dst):
        sa = step % self.NS
        if self.araw: base, off = self.VA + sub, sa * self.a_stage + mt * 2048
        elif self.alay == "bm":
            off = sa * self.a_stage + sub * 8192 + (mt & 1) * 1024
            base = self.VA + (mt >> 1) + 4 * (off >> 16); off &= 0xffff
        else:
            off = sa * self.a_stage + mt * 2048 + sub * 1024
            base = self.VA + (off >> 16); off &= 0xffff
        return f"ds_read_b128 {v(dst,4)}, v{base} offset:{off}"
    def reads(self, step, sub, fs):
        out = []
        for t in range(self.NT):
            out += self.b_read(step, sub, t, self.FB[fs] + 4 * t)
            if t == 0: out += [self.a_read(step, sub, mt, self.FA[fs] + 4 * mt) for mt in range(self.MT)]
        return out
    def czero(self): return self.NSB != self.NS or (self.NK - 1) % self.NS != 0
    def mfmas(self, fs, zero=False):
        out = []
        for t in range(self.NT):
            for mt in (range(self.MT) if t % 2 == 0 else reversed(range(self.MT))):
                a, w, c = v(self.FA[fs] + 4 * mt, 4), v(self.FB[fs] + 4 * t, 4), v(self.acc(mt, t), 4)
                ci = "0" if zero else c
                out.append(f"v_mfma_f32_16x16x32_bf16 {c}, {w}, {a}, {ci}" if self.swapped(t) else
                           f"v_mfma_f32_16x16x32_bf16 {c}, {a}, {w}, {ci}")
        if NOMFMA: out = ["s_nop 0"] * len(out)
        return out
    def c_loop(self, ST, pre_last=None, last_fill=(), nsteps=None):
        NS, NK, n = self.NS, nsteps or self.NK, self.name
        def inter(m, r, extra=()):
            extra = list(extra); per = -(-len(extra) // len(m)) if extra else 0
            for i in range(max(len(m), len(r))):
                if i < len(m): e(m[i])
                if i < len(r): e(r[i])
                for x in extra[i * per:(i + 1) * per]: e(x)
        def captured(f):
            saved = A.lines; A.lines = []
            if f: f()
            out = [ln for ln in A.lines if ln.strip()]; A.lines = saved
            return out
        def step(k, last=False):
            e("s_waitcnt lgkmcnt(0)")
            inter(self.mfmas(0, k == 0 and self.czero()), self.reads(k, 1, 1), captured(pre_last) if last else ())
            e("s_waitcnt lgkmcnt(0)\ns_barrier")
            inter(self.mfmas(1), list(last_fill) if last else self.reads(k + 1, 0, 0))
        e("s_barrier")
        ST(n + "_go")
        for r in self.reads(0, 0, 0): e(r)
        body = NK - 1
        if self.NSB != NS:
            for k in range(body): step(k)
        else:
            k = 0
            for i in range(body % NS):
                step(k); k += 1
            e(f"s_mov_b32 s{sCNT}, {body // NS}")
            A.label(f"{n}_cloop")
            for i in range(NS):
                step(k); k += 1
            e(f"s_sub_u32 s{sCNT}, s{sCNT}, 1\ns_cmp_lg_u32 s{sCNT}, 0\ns_cbranch_scc1 {n}_cloop")
        step(NK - 1, last=True)
        if not nsteps: ST(n + "_end")

    def p_setup_b(self, w=sW):
        ldb, PB = self.ldb, self.PB
        e(f"""
s_lshl_b32 s{sM0B}, s{w}, 12
s_lshl_b32 s{sM0H}, s{w}, 11
v_lshrrev_b32 v246, 3, v1
s_lshl_b32 s30, s{w}, 5
v_add_u32 v246, s30, v246
v_mul_u32_u24 v246, {ldb}, v246
v_and_b32 v247, 1, v1
v_lshl_add_u32 v246, v247, 4, v246
v_add_u32 v246, s{sBC}, v246
v_bfe_u32 v247, v1, 1, 2
""")
        if self.kperm:
            e(f"v_xor_b32 v245, v247, v3\nv_lshl_add_u32 v{PB}, v245, 5, v246\nv_add_u32 v{PB+1}, {8*ldb-1024}, v{PB}")
        else:
            e(f"v_and_b32 v245, 1, v3\nv_xor_b32 v245, v247, v245\nv_lshl_add_u32 v{PB}, v245, 5, v246")
            e(f"v_xor_b32 v245, 2, v245\nv_lshl_add_u32 v{PB+1}, v245, 5, v246\nv_add_u32 v{PB+1}, {8*ldb-1024}, v{PB+1}")
        e(f"v_add_u32 v{PB+2}, {16*ldb-2048}, v{PB}\nv_add_u32 v{PB+3}, {16*ldb-2048}, v{PB+1}")
        if self.half:
            e(f"""
v_lshrrev_b32 v246, 2, v1
v_add_u32 v246, s30, v246
v_mul_u32_u24 v246, {ldb}, v246
v_and_b32 v247, 1, v1
v_lshl_add_u32 v246, v247, 4, v246
v_add_u32 v246, s{sBH}, v246
v_bfe_u32 v247, v1, 1, 1
v_and_b32 v245, 1, v3
v_xor_b32 v245, v247, v245
v_lshl_add_u32 v{self.PH}, v245, 5, v246
v_add_u32 v{self.PH+1}, {16*ldb-1024}, v{self.PH}
""")
    def p_setup_a(self):
        PA = self.PA
        if self.araw:
            e(f"""
s_lshl_b32 s{sM0A}, s{sW}, 13
v_lshrrev_b32 v246, 3, v1
s_lshl_b32 s30, s{sW}, 6
v_add_u32 v246, s30, v246
v_lshlrev_b32 v246, 11, v246
v_and_b32 v247, 7, v1
v_xor_b32 v247, v247, v3
v_lshl_add_u32 v{PA}, v247, 4, v246
v_xor_b32 v247, 4, v247
v_lshl_add_u32 v{PA+1}, v247, 4, v246
v_add_u32 v{PA+1}, {8*2048-1024}, v{PA+1}
v_add_u32 v{PA+2}, {16*2048-2048}, v{PA}
v_add_u32 v{PA+3}, {16*2048-2048}, v{PA+1}
""")
        else:
            e(f"s_mul_i32 s{sM0A}, s{sW}, {self.RTW*2048}\ns_mul_i32 s30, s{sW}, {self.RTW*self.KB*1024}\nv_lshl_add_u32 v{PA}, v1, 4, s30")
            e(f"v_add_u32 v{PA+1}, {self.KB*1024-2048}, v{PA}")
    astride = 2048
    rot = True
    arot = True
    korder = list(range(16))
    def kbase(self, dst, base, step, stride):
        e(f"s_add_u32 s{dst}, s{base}, {self.korder[step] * stride}")
    def a_src(self, i, step): e(f"s_add_u32 s31, s{sAK}, {2*i*self.KB*1024}")
    def groups_a(self, step):
        st = step % self.NS
        out = []
        for gi in range(self.RTW // 2):
            def fn(gi=gi):
                if gi == 0 and self.arot: self.kbase(sAK, sAR, step, 128 if self.araw else self.astride)
                e(f"s_add_u32 m0, s{sM0A}, {st*self.a_stage + gi*4096}")
                if self.araw:
                    e(f"s_add_u32 s31, s{sAK}, {gi*32*2048}")
                    for i in range(4): e(f"buffer_load_dwordx4 v{self.PA+i}, {s(SX,4)}, s31 offen offset:{i*1024} lds")
                else:
                    self.a_src(gi, step)
                    for i in range(4): e(f"buffer_load_dwordx4 v{self.PA+(i>>1)}, {s(SWS,4)}, s31 offen offset:{i*1024} sc1 lds")
            out.append((step, 4, fn))
        return out
    def b_parts(self, step):
        sb = self.bslot(step); ko = 0 if self.rot else step * 64 * self.ldb
        out = [(sM0B, self.b_base[j] + sb * 8192, ko + self.blk_delta(j), self.PB, 4) for j in range(self.nfull)]
        if self.half: out.append((sM0H, self.h_base + sb * 4096, ko, self.PH, 2))
        return out
    def groups_b(self, step):
        out = []
        for idx, (m0s, lc, sc, vb, n) in enumerate(self.b_parts(step)):
            def fn(m0s=m0s, lc=lc, sc=sc, vb=vb, n=n, idx=idx):
                if idx == 0 and self.rot: self.kbase(sBK, sBR, step, 64 * self.ldb)
                e(f"s_add_u32 m0, s{m0s}, {lc}\ns_add_u32 s31, s{sBK if self.rot else sBR}, {sc}")
                for i in range(n): e(f"buffer_load_dwordx4 v{vb+i}, {s(SB,4)}, s31 offen offset:{i*1024} {'nt' if self.name == 'qkv' and step < 2 * NTK else ''} lds")
            out.append((step, n, fn))
        return out
    def issue_b(self, Q, step):
        for tag, n, fn in self.groups_b(step):
            fn(); Q.add(tag, n)
    def p_loop(self, Q, ST, b_pre, npf=0, every=1, gate=None, tail=None, look=None, merge=False):
        NS, NK, NSB = self.NS, self.NK, self.NSB
        def iss(g):
            for tag, n, fn in g:
                fn(); Q.add(tag, n)
        ga = lambda k: ([(k, 0, lambda: gate(k))] if gate else []) + self.groups_a(k)
        def gr(k):
            kb = k - NS + NSB
            return (self.groups_b(kb) if b_pre <= kb < NK else []) + ga(k)
        first = lambda k: (self.groups_b(k) if k >= b_pre else []) + ga(k)
        if gate: e(f"s_mov_b64 {s(sRDY,2)}, -1\ns_mov_b32 s{sCNT}, 0")
        flags_refresh.pending = False
        iss(first(0))
        if gate: ST(self.name + "_seen")
        if BSEEN and self.name == "w1": post(OFF_FULL, 1)
        g1 = first(1)
        P1G_ = (99 if GATEN.get(self.name, 2) > 1 else 0) if gate else P1G
        iss(g1[:P1G_])
        for i in range(NK):
            if merge and i == NK - 2:
                Q.wait(NK - 1); e("s_barrier"); return
            Q.wait(i)
            if self.name == DST and i in DW: ST(f"w{i}")
            e("s_barrier")
            if self.name == DST and i in DB: ST(f"b{i}")
            if look and (ASYNC or self.name == 'w2') and i in look[0]: flags_refresh(Q, *look[1])
            if i == 0:
                iss(g1[P1G_:])
                for k in range(2, NS): iss(first(k))
            elif i - 1 + NS < NK: iss(gr(i - 1 + NS))
            if tail and i - 1 + NS == NK - 1 + TAILD: tail()
            if (self.name == "qkv" and i == 0) or (CWARM > 1 and i == NK - 2): code_warm()
            if npf and (PFD0 if self.name == 'qkv' else 1) <= i < NK - 2 and i % every == 0: pf_step(npf + (1 if self.name == 'w1' and i % 3 != 0 else 0))
        e("s_barrier")
        ST(self.name + "_dend")

class QKV(Gemm):
    def __init__(self): super().__init__("qkv", 0, 128, 192, 16, NS1, 32, 6144, False, araw=True)
    def tiles(self): return [("F", (t >> 1, 0), (t & 1, 2)) for t in range(6)]
    def swapped(self, nt): return nt < 4
    def blk_delta(self, j): return 2048 * j
class WO(Gemm):
    def __init__(self): super().__init__("wo", 16, 128, 64, 16, 4, 32, 2048, True, NSB=NSB3, bslot=lambda k: (k + 5) % NSB3)
    def tiles(self): return [("F", (0, 0), (t, 2)) for t in range(2)]
    def p_setup_a(self):
        e(f"s_lshl_b32 s{sM0A}, s{sW}, 13\nv_lshl_add_u32 v{self.PA}, v1, 4, s{sM0A}\nv_mov_b32 v{self.PA+1}, v{self.PA}")
        e(f"s_lshl_b32 s{sAR}, s{sRB}, 16\ns_add_u32 s{sAR}, s{sAR}, {WS_AR + AR_O}")
    astride = MB
    korder = [k for k in range(16) if k % 8 != 3] + [3, 11] if KORD else list(range(16))
    def a_src(self, i, step): e(f"s_add_u32 s31, s{sAK}, {i*4096}")
class W1(Gemm):
    def __init__(self): super().__init__("w1", 32, 128, 224, 16, 3, 32, 7168, True)
    korder = list(range(0, 16, 2)) + list(range(1, 16, 2)) if KORD else list(range(16))
    def tiles(self): return [("F", (0, 2), (t, 0)) for t in range(4)] + [("F", (1, 0), (t, 2)) for t in range(2)] + [("H", None, None)]
class W2(Gemm):
    def __init__(self): super().__init__("w2", 48, 256, 128, 14, 3, 112, 2048, True, alay="bm")
    arot = False
    def tiles(self): return [("F", (0, 1), (t, 0)) for t in range(4)]
    def p_setup_a(self):
        e(f"s_lshl_b32 s{sM0A}, s{sW}, 14\nv_lshlrev_b32 v{self.PA}, 4, v1\nv_mov_b32 v{self.PA+1}, v{self.PA}")
        h1_base(sAR)
        e(f"s_lshl_b32 s30, s{sG}, 5\ns_bfe_u32 s31, s{sRB}, 0x20001\ns_add_u32 s30, s30, s31\ns_lshl_b32 s31, s{sW}, 4\ns_add_u32 s30, s30, s31\ns_lshl_b32 s30, s30, 16\ns_add_u32 s{sAR}, s{sAR}, s30")
    def blocks(self):
        if not EARLY5: return [(q // 7, q % 7, 1) for q in range(28)]
        early = [(c, (c & 1) + k, 1) for c in range(4) for k in (0, 4, 1, 5)]
        late = [(c, kb, 2) for c in range(4) for kb in range(7) if (c, kb, 1) not in early]
        return early + late
    def a_src(self, i, step):
        c, kb, _ = self.blocks()[2 * step + (i >> 1)]
        e(f"s_add_u32 s31, s{sAR}, {c*256*KB + kb*8192 + (i&1)*4096}")
    def kbase(self, dst, base, step, stride):
        o = [(c * 7 + kb) * 32 * self.ldb for c, kb, _ in self.blocks()[2 * step:2 * step + 2]]
        e(f"s_mul_i32 s{dst}, s{sWN}, {o[1] - o[0] - 32*self.ldb}\ns_add_u32 s{dst}, s{dst}, {o[0]}\ns_add_u32 s{dst}, s{dst}, s{base}")
G1, G3, G4, G5 = QKV(), WO(), W1(), W2()
_pf = opt("pfs", "X,Pv,X").split(",")
PFS = [(_pf[0][0], _pf[0][1:], pWO, 2 * MB, True, 249), (_pf[1][0], _pf[1][1:], pW1, 1024 * 7168, False, 248), (_pf[2][0], _pf[2][1:], pW2, 3584 * 2048, False, 250)]
L_K, L_V, L_Q = 0, 48 * KB, 96 * KB

def own_arena(dst, add=0):
    e(f"s_add_u32 s{dst}, s{sOWN}, {WS_AR + add}")
def h1_base(dst):
    e(f"s_cmp_lg_u32 s{sMODE}, 0\ns_cselect_b32 s{dst}, {WS_AR2}, {WS_AR if ALIAS else WS_AR2}")
def rowmajor_voff(dst, t):
    e(f"v_and_b32 v{t}, 1, v3\nv_lshlrev_b32 v{t}, 1, v{t}\nv_lshrrev_b32 v{dst}, 1, v3\nv_or_b32 v{t}, v{t}, v{dst}")
    e(f"v_lshlrev_b32 v{t}, 4, v{t}\nv_lshl_add_u32 v{dst}, v4, 11, v{t}")
def roles_84(rb=sRB, cb=sCB):
    e(f"s_and_b32 s{rb}, s{sG}, 1\ns_lshl_b32 s{rb}, s{rb}, 3\ns_and_b32 s30, s{sR}, 7\ns_add_u32 s{rb}, s{rb}, s30")
    e(f"s_lshr_b32 s{cb}, s{sG}, 1\ns_lshl_b32 s{cb}, s{cb}, 2\ns_lshr_b32 s30, s{sR}, 3\ns_add_u32 s{cb}, s{cb}, s30")
def roles_p1(rb=sRB, cb=sCB):
    if MAP1 == 84: return roles_84(rb, cb)
    e(f"s_lshr_b32 s{rb}, s{sR}, 1\ns_and_b32 s30, s{sR}, 1\ns_lshl_b32 s{cb}, s{sG}, 1\ns_add_u32 s{cb}, s{cb}, s30")
def roles_48(rb=sRB, cb=sCB):
    if not KORD:
        e(f"s_and_b32 s{rb}, s{sG}, 3\ns_lshl_b32 s{rb}, s{rb}, 2\ns_and_b32 s30, s{sR}, 3\ns_add_u32 s{rb}, s{rb}, s30")
        e(f"s_lshr_b32 s{cb}, s{sG}, 2\ns_lshl_b32 s{cb}, s{cb}, 3\ns_lshr_b32 s30, s{sR}, 2\ns_add_u32 s{cb}, s{cb}, s30")
        return
    e(f"s_and_b32 s{rb}, s{sG}, 3\ns_lshl_b32 s{rb}, s{rb}, 2\ns_bfe_u32 s30, s{sR}, 0x20001\ns_add_u32 s{rb}, s{rb}, s30")
    e(f"s_lshr_b32 s{cb}, s{sG}, 2\ns_lshl_b32 s{cb}, s{cb}, 2\ns_lshr_b32 s30, s{sR}, 3\ns_add_u32 s{cb}, s{cb}, s30\ns_lshl_b32 s{cb}, s{cb}, 1\ns_and_b32 s30, s{sR}, 1\ns_add_u32 s{cb}, s{cb}, s30")
def roles_w2(rb=sRB, cb=sCB, ks=sKS):
    e(f"s_and_b32 s{rb}, s{sG}, 1\ns_lshl_b32 s{rb}, s{rb}, 2\ns_and_b32 s30, s{sR}, 3\ns_add_u32 s{rb}, s{rb}, s30\ns_lshl_b32 s{rb}, s{rb}, 1")
    e(f"s_lshr_b32 s{cb}, s{sR}, 2\ns_lshr_b32 s{ks}, s{sG}, 1")
def b_src_wo(cb=sCB):
    srd(SB, pWO, 2 * MB); e(f"s_lshl_b32 s{sBC}, s{cb}, 7\ns_mov_b32 s{sBR}, 0\ns_lshl_b32 s{sROT}, s{cb}, 1\ns_and_b32 s{sROT}, s{sROT}, {15 if ROT3 else 0}")
def b_src_w1():
    srd(SB, pW1, 1024 * 7168)
    e(f"""
s_mul_i32 s{sBH}, s{sCB}, 448
s_and_b32 s30, s{sCB}, 1
s_lshl_b32 s{sBC}, s30, 6
s_add_u32 s{sBC}, s{sBC}, s{sBH}
s_xor_b32 s30, s30, 1
s_mul_i32 s30, s30, 384
s_add_u32 s{sBH}, s{sBH}, s30
s_mov_b32 s{sBR}, 0
s_lshl_b32 s{sROT}, s{sCB}, 2
s_and_b32 s{sROT}, s{sROT}, {15 if ROT4 else 0}
""")
def b_src_w2():
    srd(SB, pW2, 3584 * 2048); e(f"s_lshl_b32 s{sBC}, s{sCB}, 8\ns_mul_i32 s{sBR}, s{sKS}, {G5.NK*64*2048}")
def flag_addr(dst, base, hi, lo, nw, wave):
    e(f"s_lshl_b32 s{dst}, s{hi}, 4\ns_add_u32 s{dst}, s{dst}, s{lo}\ns_mul_i32 s{dst}, s{dst}, {nw}")
    if wave is not None: e(f"s_add_u32 s{dst}, s{dst}, s{wave}")
    e(f"s_lshl_b32 s{dst}, s{dst}, 2\ns_add_u32 s{dst}, s{dst}, {base}")
def dual(fn, sreg):
    S, X = A.newlabel("slowst"), A.newlabel("stx")
    e(f"s_cmp_lg_u32 s{sreg}, 0\ns_cbranch_scc1 {S}")
    fn(LFL)
    e(f"s_branch {X}")
    A.label(S)
    fn("sc1")
    A.label(X)

def attn_setup():
    e(f"v_lshlrev_b32 v5, 2, v3\nv_mov_b32 v6, {f32(-1e30)}")
    for k in range(4):
        e(f"v_add_u32 v7, {k}, v5\nv_cmp_gt_u32 vcc, v7, v4\nv_cndmask_b32 v{56+k}, v6, 0, vcc\nv_cndmask_b32 v{60+k}, 0, v6, vcc".replace("v_cndmask_b32 v%d, v6, 0, vcc" % (56 + k), "v_cndmask_b32_e64 v%d, v6, 0, vcc" % (56 + k)))
    e(f"""
s_lshl_b32 s36, s{sRB}, 2
s_add_u32 s36, s36, s38
s_sub_i32 s36, 8, s36
s_max_i32 s36, s36, 0
s_mul_i32 s37, s{sWN}, 24
s_lshl_b32 s39, s38, 1
s_add_u32 s37, s37, s39
s_lshl_b32 s37, s37, 10
v_lshl_add_u32 v5, v1, 4, s37
v_add_u32 v7, {L_V}, v5
""")
    own_arena(34, AR_O)
    e(f"s_lshl_b32 s35, s38, 12\ns_add_u32 s34, s34, s35\ns_lshl_b32 s35, s{sWN}, 10\ns_add_u32 s34, s34, s35\ns_add_u32 s35, s34, 2048")
    flag_addr(33, WS_F2, sRB, sCB, 8, sWAVE)

def attention(ST, is_p, Q=None):
    n = "attp" if is_p else "attc"
    S = 64; KF = 24; VF = 24; O = 208; MX = 232
    def sr(qt, u): return S + (qt * 18 + u) * 4
    dead = lambda qt, u: (qt == 0 and u == 17) or (qt == 1 and u == 0)
    def PF(pos):
        for role, at, ptr, nbytes, rev, dst in PFS:
            if role == ("P" if is_p else "C") and at == pos:
                srd(SB, ptr, nbytes)
                e(f"s_xor_b32 s30, s2, {255 if rev else 0}\ns_lshl_b32 s30, s30, 2\ns_add_u32 s30, s30, s{sW}\ns_lshl_b32 s30, s30, 13\nv_lshlrev_b32 v251, 7, v1")
                e(f"buffer_load_dword v{dst}, v251, {s(SB,4)}, s30 offen")
                if is_p: Q.add("pf")
    PF("nb")
    if is_p: Q.wait("nk")
    e("s_waitcnt lgkmcnt(0)\ns_barrier")
    if is_p:
        e(f"s_lshl_b32 s30, s{sW}, 11\ns_add_u32 s30, s30, {L_Q}\nv_lshl_add_u32 v2, v1, 4, s30\nds_read_b128 v[8:11], v2\nds_read_b128 v[12:15], v2 offset:1024")
    ST("att_k")
    for u in range(8): e(f"ds_read_b128 {v(KF+4*u,4)}, v5 offset:{L_K + u*1024}")
    for k in range(4): e(f"v_mov_b32 v{16+k}, 0x3f803f80")
    for k in range(4): e(f"v_mov_b32 v{MX+k}, v6")
    for r in range(O, O + 24, 2): e(f"v_mov_b64 {v(r,2)}, 0")
    def s_phase(generic):
        pend = []
        def maxes(k):
            for _ in range(k):
                if pend: e(pend.pop(0))
        for u in range(18):
            issued = min(18, u + 8)
            e(f"s_waitcnt lgkmcnt({issued - (u+1)})")
            if generic and u % 2 == 0 and u < 16:
                e(f"s_cmp_gt_u32 s36, {u//2}\ns_cselect_b32 s30, {f32(-1e30)}, 0")
                for k in range(4): e(f"v_mov_b32 v{20+k}, s30")
            for qt in range(2):
                if dead(qt, u): continue
                c = "v[56:59]" if u == qt else "v[60:63]" if u == 16 + qt else "0"
                if generic and u < 16: c = "v[20:23]"
                e(f"v_mfma_f32_16x16x32_bf16 {v(sr(qt,u),4)}, {v(KF+4*(u%8),4)}, {v(8+4*qt,4)}, {c}")
                if len(pend) >= 8: maxes(2)
                r = sr(qt, u)
                pend.append(f"v_max3_f32 v{MX+2*qt}, v{r}, v{r+1}, v{MX+2*qt}")
                pend.append(f"v_max3_f32 v{MX+2*qt+1}, v{r+2}, v{r+3}, v{MX+2*qt+1}")
            if u + 8 < 18: e(f"ds_read_b128 {v(KF+4*(u%8),4)}, v5 offset:{L_K + (u+8)*1024}")
        maxes(99)
    Lg, Lx = A.newlabel("sgen"), A.newlabel("sx")
    e(f"s_cmp_lg_u32 s36, 0\ns_cbranch_scc1 {Lg}")
    s_phase(False)
    e(f"s_branch {Lx}")
    A.label(Lg)
    s_phase(True)
    A.label(Lx)
    if is_p: Q.wait("nv")
    e("s_barrier")
    ST("att_v")
    PF("v")
    CSC = (32 ** -0.5) * LOG2E
    e(f"s_mov_b32 s{sC0}, {f32(CSC)}\ns_mov_b32 s{sC0+1}, {f32(CSC)}")
    for q in range(6): e(f"ds_read_b128 {v(VF+4*q,4)}, v7 offset:{q*1024}")
    e(f"v_max_f32 v{MX}, v{MX}, v{MX+1}\nv_max_f32 v{MX+2}, v{MX+2}, v{MX+3}")
    xg_multi("v_max_f32", [MX, MX + 2], [MX + 1, MX + 3])
    e(f"v_mul_f32 v{MX}, {f32(-CSC)}, v{MX}\nv_mul_f32 v{MX+2}, {f32(-CSC)}, v{MX+2}")
    def pv(p):
        out = []
        for qt in range(2):
            P = v(sr(qt, 2 * p), 4)
            for dt in range(2):
                o = v(O + 12 * qt + 4 * dt, 4)
                out.append(f"v_mfma_f32_16x16x32_bf16 {o}, {v(VF+4*((2*p+dt)%8),4)}, {P}, {o}")
            o = v(O + 12 * qt + 8, 4)
            out.append(f"v_mfma_f32_16x16x32_bf16 {o}, v[16:19], {P}, {o}")
        return out
    for p in range(10):
        va = []
        if p < 9:
            live = [(qt, u) for qt in range(2) for u in (2 * p, 2 * p + 1) if not dead(qt, u)]
            for qt, u in live:
                r = sr(qt, u)
                if APK:
                    for h in range(2): va.append(f"v_pk_fma_f32 {v(r+2*h,2)}, {v(r+2*h,2)}, {s(sC0,2)}, {v(MX+2*qt,2)} op_sel_hi:[1,1,0]")
                else:
                    for k in range(4): va.append(f"v_fma_f32 v{r+k}, v{r+k}, s{sC0}, v{MX+2*qt}")
            for qt, u in live:
                for k in range(4): va.append(f"v_exp_f32 v{sr(qt,u)+k}, v{sr(qt,u)+k}")
            for qt, u in live:
                r = sr(qt, u); dst = sr(qt, 2 * p) + 2 * (u & 1)
                va.append(f"v_cvt_pk_bf16_f32 v{dst}, v{r}, v{r+1}"); va.append(f"v_cvt_pk_bf16_f32 v{dst+1}, v{r+2}, v{r+3}")
            if AMIX:
                nf = 2 if APK else 4; n_ = len(live)
                F = [va[i*nf:(i+1)*nf] for i in range(n_)]; E = [va[n_*nf+i*4:n_*nf+(i+1)*4] for i in range(n_)]; C_ = [va[n_*(nf+4)+i*2:n_*(nf+4)+(i+1)*2] for i in range(n_)]
                va = list(F[0])
                for i in range(n_):
                    other = (F[i+1] if i + 1 < n_ else []) + (C_[i-1] if i else [])
                    for k in range(4):
                        va.append(E[i][k]); va += other[k*len(other)//4:(k+1)*len(other)//4]
                va += C_[-1]
            if p == 8: va.append(f"v_mov_b64 {v(sr(0,16)+2,2)}, 0")
            if p == 0: va.append(f"v_mov_b64 {v(sr(1,0),2)}, 0")
        mm = pv(p - 1) if p > 0 else []
        if p > 0:
            issued = min(18, 2 * (p - 1) + 6)
            e(f"s_waitcnt lgkmcnt({issued - 2*p})")
        PF(f'pv{p}')
        gap = max(1, len(va) // 7)
        for i, x in enumerate(va):
            e(x)
            if i >= 1 and (i - 1) % gap == 0 and mm: e(mm.pop(0))
        for x in mm: e(x)
        if p > 0:
            for b in (2 * p + 4, 2 * p + 5):
                if b < 18: e(f"ds_read_b128 {v(VF+4*(b%8),4)}, v7 offset:{b*1024}")
    ST("att_pv")
    e("v_lshlrev_b32 v2, 4, v1")
    for qt in range(2):
        o = O + 12 * qt
        e(f"v_rcp_f32 v{o+8}, v{o+8}")
        for h in range(4): e(f"v_pk_mul_f32 {v(o+2*h,2)}, {v(o+2*h,2)}, {v(o+8,2)} op_sel_hi:[1,0]")
        for h in range(4): e(f"v_cvt_pk_bf16_f32 v{24+4*qt+h}, v{o+2*h}, v{o+2*h+1}")
        e(f"buffer_store_dwordx4 {v(24+4*qt,4)}, v2, {s(SWS,4)}, s{34+qt} offen sc1")

def consumer(ST):
    G = G1
    if SLOWPF:
        e(f"s_lshl_b32 s30, s2, 2\ns_add_u32 s30, s30, s{sW}\ns_mul_i32 s31, s30, 6144\ns_lshl_b32 s30, s30, 12\nv_lshlrev_b32 v5, 10, v1")
        e(f"s_mov_b64 exec, 0x3f\nbuffer_load_dword v250, v5, {s(SB,4)}, s31 offen offset:384")
        if SLOWPF > 1: e(f"s_mov_b64 exec, 0xf\nbuffer_load_dword v251, v5, {s(SX,4)}, s30 offen offset:384")
        e("s_mov_b64 exec, -1")
    e(f"v_mov_b32 v{vCNT}, 0")
    e(f"ds_write_b32 v{vDW}, v{vCNT} offset:{OFF_EP}\nds_write_b32 v{vDW}, v{vCNT} offset:{OFF_FULL}")
    G.c_setup()
    X = G.VX
    RA_, CSQ, VA_, VB_, CSV = X, X + 8, X + 24, X + 40, X + 56
    assert CSV + 4 <= vDW
    def pre_last1():
        if SLOWPF: e("s_waitcnt vmcnt(0)")
        e(f"s_lshl_b32 s30, s{sWM}, 8\ns_add_u32 s30, s30, {MISC}\nv_lshl_add_u32 v2, v4, 2, s30\nv_lshl_add_u32 v5, v3, 4, s30")
        e(f"s_lshl_b32 s30, s{sWN}, 7\ns_add_u32 s30, s30, {MISC}\nv_lshl_add_u32 v6, v3, 4, s30\nv_lshl_add_u32 v7, v4, 2, s30")
    fill = []
    for mt in range(4): fill += [f"ds_read_b32 v{RA_+2*mt}, v2 offset:{mt*64}", f"ds_read_b32 v{RA_+2*mt+1}, v2 offset:{512+mt*64}"]
    for t in (2, 3, 0, 1): fill.append(f"ds_read_b128 {v(CSQ+4*t,4)}, v6 offset:{1024 + (t>>1)*256 + (t&1)*64}")
    for mt in range(4): fill += [f"ds_read_b128 {v(VA_+4*mt,4)}, v5 offset:{mt*64}", f"ds_read_b128 {v(VB_+4*mt,4)}, v5 offset:{512+mt*64}"]
    for dt in range(2): fill.append(f"ds_read_b32 v{CSV+2*dt}, v7 offset:{1024 + 512 + dt*64}")
    fill.append(f"ds_read_b32 v{CSV+1}, v{vFR} offset:{OFF_HD}")
    own_arena(33, AR_K)
    e(f"""
s_lshl_b32 s30, s{sWN}, 13
s_add_u32 s33, s33, s30
s_lshl_b32 s30, s{sWM}, 12
s_add_u32 s33, s33, s30
s_add_u32 s34, s33, {AR_V - AR_K}
s_lshl_b32 s31, s{sWM}, 2
s_mul_i32 s35, s{sWN}, 24
s_add_u32 s35, s35, s31
s_add_u32 s35, s35, 16
s_lshl_b32 s35, s35, 10
s_lshl_b32 s36, s{sW}, 11
s_add_u32 s36, s36, {L_Q}
""")
    flag_addr(32, WS_F1, sCB, sRB, 4, sW)
    G.c_loop(ST, pre_last1, fill)
    e(f"s_waitcnt lgkmcnt(0)\nv_readfirstlane_b32 s{sMODE}, v{CSV+1}\nv_lshlrev_b32 v2, 4, v1\nv_add_u32 v5, s35, v2\nv_add_u32 v6, s36, v2")
    e(f"s_lshr_b32 s30, s{sRB}, 1\ns_cmp_eq_u32 s30, {3 if MAP1 == 84 else 99}\ns_cselect_b32 s{sT0}, 1, s{sMODE}")
    def fold_rows(mt, t):
        c = G.acc(mt, t); k = RA_ + 2 * mt
        for h in range(2): e(f"v_pk_mul_f32 {v(c+2*h,2)}, {v(c+2*h,2)}, {v(k,2)} op_sel_hi:[1,0]")
        for h in range(2): e(f"v_pk_fma_f32 {v(c+2*h,2)}, {v(CSQ+4*t+2*h,2)}, {v(k,2)}, {v(c+2*h,2)} op_sel:[0,1,0] op_sel_hi:[1,1,1]")
    def fold_v(mt, dt):
        c = G.acc(mt, 4 + dt)
        for h in range(2): e(f"v_pk_mul_f32 {v(c+2*h,2)}, {v(c+2*h,2)}, {v(VA_+4*mt+2*h,2)}")
        for h in range(2): e(f"v_pk_fma_f32 {v(c+2*h,2)}, {v(VB_+4*mt+2*h,2)}, {v(CSV+2*dt,2)}, {v(c+2*h,2)} op_sel_hi:[1,0,1]")
    def epi1(fl):
        t = 24
        for mt in range(4):
            fold_rows(mt, 2); fold_rows(mt, 3)
            pack(t, G.acc(mt, 2), G.acc(mt, 3))
            e(f"buffer_store_dwordx4 {v(t,4)}, v2, {s(SWS,4)}, s33 offen offset:{mt*1024} {fl or KVFL}"); t += 4
        for p in range(2):
            for dt in range(2):
                fold_v(2 * p, dt); fold_v(2 * p + 1, dt)
                pack(t, G.acc(2 * p, 4 + dt), G.acc(2 * p + 1, 4 + dt))
                e(f"buffer_store_dwordx4 {v(t,4)}, v2, {s(SWS,4)}, s34 offen offset:{(2*p+dt)*1024} {fl or KVFL}"); t += 4
        if KFLAG:
            e("s_waitcnt vmcnt(4)"); set_flag(32, fl.replace("nt", ""), t=64)
        for i in range(4): e(f"ds_write_b128 v5, {v(24+4*i,4)} offset:{L_K + i*1024}")
        for i in range(4): e(f"ds_write_b128 v5, {v(40+4*i,4)} offset:{L_V + i*1024}")
        for mt in (2, 3, 0, 1):
            fold_rows(mt, 0); fold_rows(mt, 1)
            d = 8 + 4 * mt
            pack(d, G.acc(mt, 0), G.acc(mt, 1))
            if mt >= 2: e(f"ds_write_b128 v6, {v(d,4)} offset:{(mt-2)*1024}")
        e("s_waitcnt vmcnt(0)")
        set_flag(32, fl.replace("nt", ""), val=3, t=64)
    dual(epi1, sT0)
    ST("kv_flag")
    e(f"s_lshl_b32 s38, s{sWM}, 1")
    attn_setup()
    attention(ST, False)
    G = G3
    roles_48()
    b_src_wo()
    G.p_setup_b(sWN)
    X = G.VX
    rowmajor_voff(X + 16, X + 17)
    e(f"""
s_lshl_b32 s35, s{sRB}, 1
s_add_u32 s35, s35, s{sWM}
s_lshl_b32 s36, s{sCB}, 1
s_add_u32 s36, s36, s{sWN}
s_lshl_b32 s32, s35, 17
s_lshl_b32 s31, s36, 6
s_add_u32 s32, s32, s31
""")
    G.c_setup()
    e("s_waitcnt vmcnt(0)")
    set_flag(33)
    ST("o_flag")
    Qc = VmQ()
    L1, L2 = A.newlabel("b3a"), A.newlabel("b3b")
    e(f"s_cmp_lg_u32 s{sWM}, 0\ns_cbranch_scc1 {L1}")
    for st in range(3): G.issue_b(Qc, st)
    e(f"s_branch {L2}")
    A.label(L1)
    for st in range(3, 6): G.issue_b(Qc, st)
    A.label(L2)
    e("s_barrier")
    for mt in range(4): e(f"s_add_u32 s31, s32, {mt*16*2048}\nbuffer_load_dwordx4 {v(X+4*mt,4)}, v{X+16}, {s(SX,4)}, s31 offen")
    e("s_waitcnt vmcnt(4)")
    e(f"""
s_lshl_b32 s37, s35, 17
s_lshl_b32 s31, s36, 10
s_add_u32 s37, s37, s31
s_add_u32 s37, s37, {WS_H}
s_lshl_b32 s38, s35, 14
s_lshl_b32 s31, s36, 9
s_add_u32 s38, s38, s31
s_add_u32 s38, s38, {WS_STAT}
""")
    flag_addr(32, WS_F3, sRB, sCB, 4, sW)
    HX = X + 24
    def pre_last3():
        e("s_waitcnt vmcnt(0)\nv_lshlrev_b32 v2, 4, v1")
        for mt in range(4):
            x = X + 4 * mt
            e(f"v_permlane16_swap_b32 v{x}, v{x+2}\nv_permlane16_swap_b32 v{x+1}, v{x+3}")
        for mt in range(4):
            for d in range(4): unpack(HX + 8 * mt + 2 * d, X + 4 * mt + d)
    G.c_loop(ST, pre_last3)
    for mt in range(4):
        x = X + 4 * mt; u = HX + 8 * mt
        pack(8, G.acc(mt, 0), G.acc(mt, 1))
        for d in range(4): unpack(12 + 2 * d, 8 + d)
        for d in range(4): e(f"v_pk_add_f32 {v(12+2*d,2)}, {v(12+2*d,2)}, {v(u+2*d,2)}")
        for d in range(4): e(f"v_cvt_pk_bf16_f32 v{x+d}, v{12+2*d}, v{13+2*d}")
        e(f"s_add_u32 s31, s37, {mt*32*1024}\nbuffer_store_dwordx4 {v(x,4)}, v2, {s(SWS,4)}, s31 offen sc1")
    for mt in range(4):
        x = X + 4 * mt; u = HX + 8 * mt
        for d in range(4): unpack(u + 2 * d, x + d)
        e(f"v_pk_add_f32 v[12:13], {v(u,2)}, {v(u+2,2)}\nv_pk_add_f32 v[14:15], {v(u+4,2)}, {v(u+6,2)}")
        e(f"v_pk_add_f32 v[12:13], v[12:13], v[14:15]\nv_add_f32 v{32+2*mt}, v12, v13")
    xg_multi("v_add_f32", [32, 34, 36, 38], [16, 17, 18, 19])
    for mt in range(4):
        u = HX + 8 * mt; sm = 32 + 2 * mt
        e(f"v_mul_f32 v12, {f32(1/32)}, v{sm}")
        for d in range(4): e(f"v_pk_add_f32 {v(u+2*d,2)}, {v(u+2*d,2)}, v[12:13] op_sel_hi:[1,0] neg_lo:[0,1] neg_hi:[0,1]")
        e(f"v_pk_mul_f32 v[14:15], {v(u,2)}, {v(u,2)}")
        for d in range(1, 4): e(f"v_pk_fma_f32 v[14:15], {v(u+2*d,2)}, {v(u+2*d,2)}, v[14:15]")
        e(f"v_add_f32 v{sm+1}, v14, v15")
    xg_multi("v_add_f32", [33, 35, 37, 39], [16, 17, 18, 19])
    for k in range(1, 4):
        e(f"v_cmp_eq_u32 vcc, {k}, v3\nv_cndmask_b32 v32, v32, v{32+2*k}, vcc\nv_cndmask_b32 v33, v33, v{33+2*k}, vcc")
    e(f"v_lshlrev_b32 v2, 3, v1\nbuffer_store_dwordx2 v[32:33], v2, {s(SWS,4)}, s38 offen sc1\ns_waitcnt vmcnt(1)")
    set_flag(32)
    post(OFF_EP, 2)
    ST("h_flag")
    G = G4
    roles_84()
    G.c_setup()
    e("s_waitcnt vmcnt(0)")
    set_flag(32, val=3)
    h1_base(37)
    e(f"""
s_and_b32 s39, s{sCB}, 1
s_add_u32 s32, s{sOWN}, s37
s_lshl_b32 s33, s{sWM}, 12
s_add_u32 s32, s32, s33
s_lshl_b32 s34, s{sWN}, 2
s_add_u32 s34, s34, s39
s_add_u32 s35, s39, s{sWN}
s_add_u32 s35, s35, 2
s_xor_b32 s36, s39, 1
s_mul_i32 s36, s36, 6
s_lshl_b32 s34, s34, 13
s_lshl_b32 s35, s35, 13
s_lshl_b32 s36, s36, 13
s_add_u32 s34, s34, s32
s_add_u32 s35, s35, s32
s_add_u32 s36, s36, s32
s_lshl_b32 s37, s{sWN}, 3
s_add_u32 s36, s36, s37
s_add_u32 s37, s34, 8192
s_mov_b32 s{sC0}, {f32(-LOG2E)}
s_mov_b32 s{sC0+1}, {f32(-LOG2E)}
""")
    flag_addr(38, WS_F4, sRB, sCB, 4, sW)
    def pre_last4():
        e(f"""
s_lshl_b32 s30, s{sWM}, 9
s_add_u32 s30, s30, {L_RA}
v_lshl_add_u32 v2, v4, 3, s30
s_lshl_b32 s31, s39, 7
s_lshl_b32 s32, s{sWN}, 9
s_add_u32 s32, s32, s31
s_add_u32 s32, s32, {L_CS}
v_lshl_add_u32 v5, v3, 4, s32
s_lshl_b32 s32, s{sWN}, 7
s_add_u32 s32, s32, s31
s_add_u32 s32, s32, {L_CS + 256}
v_lshl_add_u32 v6, v3, 4, s32
s_xor_b32 s33, s39, 1
s_mul_i32 s33, s33, 768
s_lshl_b32 s32, s{sWN}, 6
s_add_u32 s32, s32, s33
s_add_u32 s32, s32, {L_CS}
v_lshl_add_u32 v7, v3, 4, s32
""")
    CS = 16
    fill = [f"ds_read_b64 {v(8+2*mt,2)}, v2 offset:{mt*128}" for mt in range(4)]
    fill += [f"ds_read_b128 {v(CS+4*t,4)}, v5 offset:{64*t}" for t in range(4)]
    fill += [f"ds_read_b128 {v(CS+16+4*t,4)}, v6 offset:{64*t}" for t in range(2)] + [f"ds_read_b128 {v(CS+24,4)}, v7"]
    G.c_loop(ST, pre_last4, fill)
    e("s_waitcnt lgkmcnt(0)\nv_lshlrev_b32 v2, 4, v1")
    def epi4(fl):
        units = []
        for pr in range(4):
            for mt in range(4): units.append((mt, (2 * pr, 2 * pr + 1) if pr < 3 else (6,), pr))
        T0, O0 = 56, 80
        def sA(i):
            mt, ts, pr = units[i]; k = 8 + 2 * mt; o = []
            for t in ts:
                c = G.acc(mt, t)
                for h in range(2): o.append(f"v_pk_mul_f32 {v(c+2*h,2)}, {v(c+2*h,2)}, {v(k,2)} op_sel:[0,1] op_sel_hi:[1,1]")
            for t in ts:
                c = G.acc(mt, t)
                for h in range(2): o.append(f"v_pk_fma_f32 {v(c+2*h,2)}, {v(CS+4*t+2*h,2)}, {v(k,2)}, {v(c+2*h,2)} op_sel_hi:[1,0,1]")
            return o
        def sB(i):
            mt, ts, pr = units[i]; T = T0 + 8 * (i % 3)
            return [f"v_exp_f32 v{T+4*j+k}, v{G.acc(mt,t)+k}" for j, t in enumerate(ts) for k in range(4)]
        def sC(i):
            mt, ts, pr = units[i]; T = T0 + 8 * (i % 3)
            return [f"v_pk_fma_f32 {v(T+2*h,2)}, {v(T+2*h,2)}, {s(sC0,2)}, {s(sC0,2)}" for h in range(2 * len(ts))]
        def sD(i):
            mt, ts, pr = units[i]; T = T0 + 8 * (i % 3)
            return [f"v_rcp_f32 v{T+k}, v{T+k}" for k in range(4 * len(ts))]
        def sE(i):
            mt, ts, pr = units[i]; T = T0 + 8 * (i % 3); o = []; d = O0 + 4 * (i % 4)
            for j, t in enumerate(ts):
                c = G.acc(mt, t)
                for h in range(2): o.append(f"v_pk_mul_f32 {v(c+2*h,2)}, {v(c+2*h,2)}, {v(T+4*j+2*h,2)}")
            for j, t in enumerate(ts):
                c = G.acc(mt, t)
                for h in range(2): o.append(f"v_cvt_pk_bf16_f32 v{d+2*j+h}, v{c+2*h}, v{c+2*h+1}")
            base = (34, 37, 35, 36)[pr]
            if NOST4: return o
            o.append(f"buffer_store_dwordx4 {v(d,4)}, v2, {s(SWS,4)}, s{base} offen offset:{mt*1024} {fl}" if pr < 3 else f"buffer_store_dwordx2 {v(d,2)}, v2, {s(SWS,4)}, s{base} offen offset:{mt*1024} {fl}")
            return o
        N = len(units)
        for x in sA(0): e(x)
        for i in range(N + 1):
            seq = []
            if i < N: seq += sB(i)
            if i + 1 < N: seq += sA(i + 1)
            if i < N: seq += sC(i)
            if i >= 1: seq += sE(i - 1)
            if i < N: seq += sD(i)
            for x in seq: e(x)
            if EARLY5 and i == 8 + E5LAG:
                e(f"s_waitcnt vmcnt({E5LAG})"); set_flag(38, fl.replace("nt", ""))
        ST("silu")
        roles_w2()
        G5.c_setup()
        e("s_waitcnt vmcnt(0)")
        set_flag(38, fl.replace("nt", ""), val=3)
    n0 = list(ST.names)
    def epi4w(fl):
        ST.names = list(n0); epi4(fl)
    dual(epi4w, sMODE)
    ST("h1_flag")
    G = G5
    MT = G.MT; keep = 2; nb = 4
    def pre_last5():
        srd(SD, pOUT, 4 * MB)
        e(f"""
s_lshl_b32 s33, s{sRB}, 3
s_add_u32 s33, s33, s{sCB}
s_mul_i32 s34, s33, {16*4*nb*1024}
s_add_u32 s34, s34, {WS_PART}
s_mul_i32 s30, s{sW}, {nb*1024}
s_add_u32 s34, s34, s30
s_lshl_b32 s35, s{sRB}, 3
s_lshl_b32 s30, s{sWM}, 3
s_add_u32 s35, s35, s30
s_lshl_b32 s30, s{sKS}, 1
s_add_u32 s35, s35, s30
s_lshl_b32 s36, s{sCB}, 2
s_lshl_b32 s30, s{sWN}, 1
s_add_u32 s36, s36, s30
s_lshl_b32 s38, s35, 15
s_lshl_b32 s31, s36, 10
s_add_u32 s38, s38, s31
s_add_u32 s38, s38, {WS_H}
s_lshl_b32 s37, s33, 6
s_lshl_b32 s31, s{sW}, 2
s_add_u32 s37, s37, s31
s_add_u32 s37, s37, {WS_F5}
s_lshl_b32 s31, s{sKS}, 4
s_add_u32 s32, s37, s31
s_lshl_b32 s39, s{sKS}, 2
""")
        for d in range(1, 4):
            e(f"s_add_u32 s31, s{sKS}, {d}\ns_and_b32 s31, s31, 3\ns_lshl_b32 s30, s31, 2\ns_add_u32 s30, s30, s{sKS}\ns_mul_i32 s30, s30, {4*nb*1024}\ns_add_u32 s{39+d}, s30, s34")
            e(f"s_add_u32 s31, s31, s39\ns_mul_i32 s31, s31, {4*nb*1024}\ns_add_u32 s{42+d}, s31, s34")
        e(f"s_lshl_b32 s46, s35, 15\ns_lshl_b32 s31, s36, 6\ns_add_u32 s46, s46, s31\ns_add_u32 s47, s38, {32*1024}")
    if TAILPM:
        assert not CANARY
        BQ, AB = [8, 24, 56, 72], [40, 88]
        sub4 = [(12, 0), (12, 1), (13, 0), (13, 1)]
        order = [2, 3, 4, 5, 6, 7, 0, 1]
        HRS = [G.acc(2, 1), G.acc(2, 3), G.acc(3, 1), G.acc(3, 3)]
        brd = lambda j: [x for t in range(4) for x in G.b_read(*sub4[j], t, BQ[j] + 4 * t)]
        ard = lambda n_: [G.a_read(*sub4[j], order[n_], AB[n_ & 1] + 4 * j) for j in range(4)]
        G.c_loop(ST, pre_last5, ["v_lshlrev_b32 v2, 4, v1"] + ard(0) + brd(0) + brd(1), nsteps=12)
        def send(mt):
            out = []
            for pr in range(2):
                c0, c1 = G.acc(mt, 2 * pr), G.acc(mt, 2 * pr + 1)
                out += [f"v_cvt_pk_bf16_f32 v{c0}, v{c0}, v{c0+1}", f"v_cvt_pk_bf16_f32 v{c0+1}, v{c0+2}, v{c0+3}",
                        f"v_cvt_pk_bf16_f32 v{c0+2}, v{c1}, v{c1+1}", f"v_cvt_pk_bf16_f32 v{c0+3}, v{c1+2}, v{c1+3}",
                        f"buffer_store_dwordx4 {v(c0,4)}, v2, {s(SWS,4)}, s{39+mt//2} offen offset:{(2*(mt&1)+pr)*1024} {PFL}"]
            return out
        for n_, mt in enumerate(order):
            mm = lambda t, j: f"v_mfma_f32_16x16x32_bf16 {v(G.acc(mt,t),4)}, {v(BQ[j]+4*t,4)}, {v(AB[n_&1]+4*j,4)}, {v(G.acc(mt,t),4)}"
            e("s_waitcnt lgkmcnt(0)")
            if n_ == 0:
                side = brd(2) + brd(3)
                for i, (t, j) in enumerate([(t, j) for t in range(4) for j in range(2)]):
                    e(mm(t, j)); e(side[2 * i]); e(side[2 * i + 1])
                side = ard(1)
                for i, (t, j) in enumerate([(t, j) for j in (2, 3) for t in range(4)]):
                    if i == 0: e("s_waitcnt lgkmcnt(8)")
                    if i == 4: e("s_waitcnt lgkmcnt(4)")
                    e(mm(t, j))
                    if i < 4: e(side[i])
                continue
            side = (ard(n_ + 1) if n_ + 1 < 8 else []) + (send(order[n_ - 1]) if order[n_ - 1] >= 2 else [])
            if n_ == 3: side += [f"buffer_load_dwordx4 {v(HRS[2*i+pr],4)}, v2, {s(SWS,4)}, s{38 if i == 0 else 47} offen offset:{pr*1024} sc1" for i in range(2) for pr in range(2)]
            for i, (t, j) in enumerate([(t, j) for t in range(4) for j in range(4)]):
                e(mm(t, j))
                for x in side[i:i + 1] + (side[16:] if i == 15 else []): e(x)
        ST("w2_end")
    else:
        HRS = [8, 12, 16, 20]
        HR = 8
        fill = ["v_lshlrev_b32 v2, 4, v1"]
        fill += [f"buffer_load_dwordx4 {v(HR+4*(2*i+pr),4)}, v2, {s(SWS,4)}, s{38 if i == 0 else 47} offen offset:{pr*1024} sc1" for i in range(2) for pr in range(2)]
        if CANARY: fill.append(f"buffer_load_dword v248, v2, {s(SWS,4)}, s37 offen sc1")
        G.c_loop(ST, pre_last5, fill)
        o = 24
        for d in range(1, 4):
            for i in range(keep):
                for pr in range(2):
                    mt = d * keep + i
                    pack(o, G.acc(mt, 2 * pr), G.acc(mt, 2 * pr + 1))
                    e(f"buffer_store_dwordx4 {v(o,4)}, v2, {s(SWS,4)}, s{39+d} offen offset:{(2*i+pr)*1024} {PFL}")
                    o = 24 + (o - 24 + 4) % 32
    PR = 64
    assert PR + 48 <= G.ACC
    def add_partial(d):
        for i in range(keep):
            for pr in range(2):
                for q in range(4): unpack(40 + 2 * q, PR + 4 * ((d - 1) * nb + 2 * i + pr) + q)
                for q in range(4):
                    c = G.acc(i, 2 * pr + (q >> 1)) + 2 * (q & 1)
                    e(f"v_pk_add_f32 {v(c,2)}, {v(c,2)}, {v(40+2*q,2)}")
    def ld_partial(d):
        for b in range(nb): e(f"buffer_load_dwordx4 {v(PR+4*((d-1)*nb+b),4)}, v2, {s(SWS,4)}, s{42+d} offen offset:{b*1024} sc1")
    rowmajor_voff(62, 63)
    if CANARY:
        e("v_mov_b32 v58, s43\nv_mov_b32 v59, s44\nv_cmp_eq_u32 vcc, 1, v1\nv_cndmask_b32 v58, v58, v59, vcc\nv_mov_b32 v59, s45\nv_cmp_eq_u32 vcc, 2, v1\nv_cndmask_b32 v58, v58, v59, vcc")
        e("s_waitcnt vmcnt(0)")
        ST("p_flag")
        X0 = A.newlabel("pfok")
        e(f"s_mov_b64 exec, 0xf\nv_and_b32 v248, 1, v248\nv_cmp_ne_u32 vcc, 1, v248\ns_mov_b64 exec, -1\ns_cbranch_vccz {X0}")
        poll("s37", 4, voff=2, t=60)
        A.label(X0)
        L, X = A.newlabel("can"), A.newlabel("canx")
        e(f"s_mov_b64 exec, 7\ns_mov_b32 s{sCNT}, 0")
        A.label(L)
        e(f"buffer_load_dword v60, v58, {s(SWS,4)}, 0 offen offset:4092 sc1\ns_add_u32 s{sCNT}, s{sCNT}, 1\ns_cmp_gt_u32 s{sCNT}, {SPIN_MAX}\ns_waitcnt vmcnt(0)\ns_cbranch_scc1 {X}")
        e(f"v_cmp_eq_u32 vcc, -1, v60\ns_cbranch_vccnz {L}")
        A.label(X)
        e("s_mov_b64 exec, -1")
        ST("p_seen")
        for d in range(1, 4): ld_partial(d)
        for d in range(1, 4):
            L, X = A.newlabel("pv"), A.newlabel("pvx")
            r0 = PR + 16 * (d - 1)
            e(f"s_waitcnt vmcnt({(3-d)*nb})")
            A.label(L)
            e(f"v_max_u32 v60, v{r0}, v{r0+1}")
            for i in range(2, 16, 2): e(f"v_max3_u32 v60, v{r0+i}, v{r0+i+1}, v60")
            e(f"v_cmp_eq_u32 vcc, -1, v60\ns_cbranch_vccz {X}\ns_add_u32 s{sCNT}, s{sCNT}, 1\ns_cmp_gt_u32 s{sCNT}, {SPIN_MAX}\ns_cbranch_scc1 {X}")
            ld_partial(d)
            e(f"s_waitcnt vmcnt(0)\ns_branch {L}")
            A.label(X)
            add_partial(d)
    else:
        e("s_waitcnt vmcnt(0)")
        set_flag(32)
        ST("p_flag")
        poll("s37", 4, voff=2, t=60)
        ST("p_seen")
        for d in range(1, 4): ld_partial(d)
        for d in range(1, 4):
            e(f"s_waitcnt vmcnt({(3-d)*nb})")
            add_partial(d)
    if PERT:
        L = A.newlabel("nopert")
        e(f"s_cmp_ge_u32 s2, {PERTN}\ns_cbranch_scc1 {L}\ns_mov_b64 exec, {PERTL}\nv_add_f32 v{G.acc(0,0)}, {f32(PERT)}, v{G.acc(0,0)}\ns_mov_b64 exec, -1")
        A.label(L)
    for i in range(keep):
        for pr in range(2):
            x = HRS[2 * i + pr]
            pack(24, G.acc(i, 2 * pr), G.acc(i, 2 * pr + 1))
            for q in range(4): unpack(40 + 2 * q, 24 + q); unpack(48 + 2 * q, x + q)
            for q in range(4): e(f"v_pk_add_f32 {v(40+2*q,2)}, {v(40+2*q,2)}, {v(48+2*q,2)}")
            for q in range(4): e(f"v_cvt_pk_bf16_f32 v{x+q}, v{40+2*q}, v{41+2*q}")
            e(f"v_permlane16_swap_b32 v{x}, v{x+2}\nv_permlane16_swap_b32 v{x+1}, v{x+3}")
            e(f"s_add_u32 s31, s46, {i*16*2048}\nbuffer_store_dwordx4 {v(x,4)}, v62, {s(SD,4)}, s31 offen offset:{pr*64} {OFL}")
    ST.flush()
    e("s_endpgm")

def neighbours_and_attention(ST, Q):
    e(f"s_lshl_b32 s38, s{sWM}, 1\ns_add_u32 s38, s38, 1")
    attn_setup()
    L = A.newlabel("nonb")
    assert MAP1 == 162
    own_arena(42)
    e(f"""
s_add_u32 s40, s{sRB}, s{sWM}
s_sub_u32 s41, s40, 2
s_lshl_b32 s31, s{sWM}, 16
s_add_u32 s42, s42, s31
s_sub_u32 s42, s42, {2*64*KB}
s_lshl_b32 s31, s{sWN}, 13
s_add_u32 s42, s42, s31
s_mul_i32 s43, s{sWN}, 24
s_lshl_b32 s31, s{sWM}, 3
s_add_u32 s43, s43, s31
s_lshl_b32 s43, s43, 10
v_lshlrev_b32 v2, 4, v1
s_cmp_lt_u32 s40, 2
s_cselect_b32 s42, {WS_BYTES}, s42
s_cbranch_scc1 {L}
""")
    flag_addr(32, WS_F1, sCB, 41, 4, None)
    poll("s32", 4, t=8)
    A.label(L)
    ST("nb_seen")
    for wsb, lb in ((AR_K, L_K), (AR_V, L_V)):
        if wsb == AR_V and KFLAG:
            L2 = A.newlabel("nonv")
            e(f"s_cmp_lt_u32 s40, 2\ns_cbranch_scc1 {L2}")
            poll("s32", 4, t=8, mask=2)
            A.label(L2)
        for h in range(2):
            e(f"s_add_u32 m0, s43, {lb + h*4096}\ns_add_u32 s31, s42, {wsb + h*4096}")
            for i in range(4): e(f"buffer_load_dwordx4 v2, {s(SWS,4)}, s31 offen offset:{i*1024} sc1 lds")
    Q.q = []; Q.add("nk", 8); Q.add("nv", 8)
    attention(ST, True, Q)
    roles_48()
    b_src_wo()
    e(f"ds_read_b32 v8, v{vFR} offset:{OFF_HD}")
    G3.p_setup_a(); G3.p_setup_b(sWN)
    e(f"s_waitcnt lgkmcnt(0)\nv_readfirstlane_b32 s{sMODE}, v8")
    e("s_waitcnt vmcnt(0)")
    set_flag(33)
    e("s_barrier")
    Q.q = []
    ST("o_flag")

def dma_phase1(ST, Q):
    G = G1
    if DPRIO: e(f"s_setprio {DPRIO}")
    def touch(nk, fl):
        def f():
            e(f"s_mul_i32 s30, s{sW}, {nk*1024}\ns_add_u32 s30, s30, s{sOWN}\nv_lshlrev_b32 v12, 7, v1")
            for i in range(0, nk, 8):
                if nk - i < 8: set_exec((1 << ((nk - i) * 8)) - 1)
                e(f"s_add_u32 s31, s30, {WS_AR + i*1024}\nbuffer_load_dword v{248+i//8}, v12, {s(SWS,4)}, s31 offen {fl}")
                Q.add("touch")
            e("s_mov_b64 exec, -1")
        return f
    dma_phase1.touch = touch
    G.p_loop(Q, ST, 0, NPF, tail=touch(16, TFL.replace("none", "")) if TOUCH else None)
    if DPRIO: e("s_setprio 0")
    e("s_waitcnt lgkmcnt(0)")

def dma_rest(ST, Q):
    G = G3
    if DPRIO: e(f"s_setprio {DPRIO}")
    e(f"s_lshl_b32 s32, s{sRB}, 9\ns_add_u32 s32, s32, {WS_F2}")
    pf_step(PFBUB)
    e("v_lshlrev_b32 v10, 3, v1")
    G.p_loop(Q, ST, G.NSB, 1, 3, gate=lambda k: gate_k(G3, k, True), look=(range(0, 12), (32, 10, True)))
    G = G4
    roles_84()
    b_src_w1()
    e(f"s_lshl_b32 s{sAR}, s{sRB}, 18\ns_add_u32 s{sAR}, s{sAR}, {WS_H}")
    G.p_setup_b(); G.p_setup_a()
    e(f"s_lshl_b32 s32, s{sRB}, 8\ns_add_u32 s32, s32, {WS_F3}")
    if BEARLY: G.issue_b(Q, 0)
    wait_rows(OFF_EP, 2)
    if not BEARLY: G.issue_b(Q, 0)
    pf_step(PFBUB)
    e("v_lshlrev_b32 v10, 2, v1")
    G.p_loop(Q, ST, 1 if BLATE else G.NS, NPF, gate=lambda k: gate_k(G4, k, False), tail=dma_phase1.touch(28, '') if TOUCH4 else None, look=(range(0, 12), (32, 10, False)))
    pf_finish()
    G = G5
    roles_w2()
    b_src_w2()
    G.p_setup_b()
    for st in range(G.NS): G.issue_b(Q, st)
    G.p_setup_a()
    e(f"s_lshl_b32 s32, s{sRB}, 8\ns_lshl_b32 s30, s{sKS}, 6\ns_add_u32 s32, s32, s30\ns_add_u32 s32, s32, {WS_F4}")
    e(f"s_lshl_b32 s30, s{sW}, 8\ns_add_u32 s32, s32, s30\nv_lshlrev_b32 v10, 2, v4")
    e("v_and_b32 v11, 1, v3")
    seen5 = set()
    def gate5(k):
        want = {(c, lv) for c, kb, lv in G5.blocks()[2 * k:2 * k + 2]} - seen5
        if want:
            seen5.update(want)
            need_flags(sum(0xf << (4 * c + 16 * (lv - 1)) for c, lv in want), 32, 10, False, shift=11)
    G.p_loop(Q, ST, G.NS, gate=gate5, look=(range(0, 10), (32, 10, False, 11)) if ASY5 else None, merge=bool(TAILPM))

U0 = 200
def colsum_block(j, src, nld, dpp):
    u = U0 + 8 * j
    if DOT:
        e("v_mov_b32 v10, 0x00003f80\nv_mov_b32 v11, 0x3f800000")
        for i in range(nld):
            for d in range(4):
                if i == 0: unpack(u + 2 * d, src + d)
                else: e(f"v_dot2_f32_bf16 v{u+2*d}, v{src+4*i+d}, v10, v{u+2*d}\nv_dot2_f32_bf16 v{u+2*d+1}, v{src+4*i+d}, v11, v{u+2*d+1}")
    else:
        for i in range(nld):
            for d in range(4):
                if i == 0: unpack(u + 2 * d, src + d)
                else:
                    unpack(10 + 2 * (d & 1), src + 4 * i + d)
                    e(f"v_pk_add_f32 {v(u+2*d,2)}, {v(u+2*d,2)}, {v(10+2*(d&1),2)}")
    for d in range(4): e(f"v_permlane32_swap_b32 v{u+d}, v{u+4+d}")
    for d in range(2): e(f"v_pk_add_f32 {v(u+2*d,2)}, {v(u+2*d,2)}, {v(u+4+2*d,2)}")
    for d in range(2): e(f"v_permlane16_swap_b32 v{u+d}, v{u+2+d}")
    e(f"v_pk_add_f32 {v(u,2)}, {v(u,2)}, {v(u+2,2)}")
    for k in dpp:
        for r in range(u, u + 2): e(f"v_add_f32_dpp v{r}, v{r}, v{r} row_ror:{k} row_mask:0xf bank_mask:0xf")
def colsum_store(Q, j, soff, nl, tag):
    u = U0 + 8 * j
    e("v_lshlrev_b32 v6, 5, v4\nv_lshl_add_u32 v6, v3, 3, v6")
    m = (1 << nl) - 1
    set_exec(m | m << 16 | m << 32 | m << 48)
    e(f"buffer_store_dwordx2 {v(u,2)}, v6, {s(SWS,4)}, s{soff} offen offset:{256*j} sc1\ns_mov_b64 exec, -1")
    Q.add(tag, 1)

def zero_own_flags(Q):
    e("v_lshlrev_b32 v2, 2, v1\nv_mov_b32 v8, 0")
    def st(soff, nl):
        set_exec((1 << nl) - 1); e(f"buffer_store_dword v8, v2, {s(SWS,4)}, s{soff} offen sc1"); Q.add("zero")
    flag_addr(32, WS_F1, sCB, sRB, 4, None); st(32, 4)
    flag_addr(32, WS_F2, sRB, sCB, 8, None); st(32, 8)
    roles_48(36, 37)
    flag_addr(32, WS_F3, 36, 37, 4, None); st(32, 4)
    roles_w2(36, 37, 38)
    e(f"s_lshl_b32 s32, s36, 3\ns_add_u32 s32, s32, s37\ns_lshl_b32 s32, s32, 2\ns_add_u32 s32, s32, s38\ns_lshl_b32 s32, s32, 4\ns_add_u32 s32, s32, {WS_F5}"); st(32, 4)
    roles_84(36, 37)
    flag_addr(32, WS_F4, 36, 37, 4, None); st(32, 4)
    e("s_mov_b64 exec, -1\nv_mov_b32 v8, -1\nv_mov_b32 v9, -1\nv_mov_b32 v10, -1\nv_mov_b32 v11, -1\nv_lshlrev_b32 v7, 4, v1")
    e(f"s_lshl_b32 s32, s35, 5\ns_add_u32 s32, s32, {WS_RA}"); st(32, 8)
    e(f"s_add_u32 s32, s32, {WS_RB - WS_RA}"); st(32, 8)
    def st4(soff, nl):
        set_exec((1 << nl) - 1); e(f"buffer_store_dwordx4 v[8:11], v7, {s(SWS,4)}, s{soff} offen sc1"); Q.add("zero")
    e(f"s_mul_i32 s32, s35, 768\ns_add_u32 s32, s32, {WS_CS1}"); st4(32, 48)
    e(f"s_mul_i32 s32, s36, {2*3584*4}\ns_mul_i32 s33, s37, 896\ns_add_u32 s32, s32, s33\ns_add_u32 s32, s32, {WS_CS2}"); st4(32, 56)
    e(f"s_add_u32 s32, s32, {3584*4}"); st4(32, 56)
    e("s_mov_b64 exec, -1")

sPFO, sPFE, sPFI, SPF = sNEED, pOUT, sT0, 44
sPFS = pOUT + 1
def pf_init():
    srd(SPF, pWO, 2 * MB)
    e(f"s_lshl_b32 s{sPFS}, s2, 2\ns_add_u32 s{sPFS}, s{sPFS}, s{sW}\ns_lshl_b32 s{sPFS}, s{sPFS}, 8\ns_mov_b32 s{sPFO}, s{sPFS}\ns_mov_b32 s{sPFE}, {2*MB}\ns_mov_b32 s{sPFI}, {2 if W2NT else 0 if PFW1 else 1}")
def pf_chunk():
    for i in range(4): e(f"s_buffer_load_dword s{sC0}, {s(SPF,4)}, s{sPFO} offset:{64*i}")
    e(f"s_add_u32 s{sPFO}, s{sPFO}, {1024*256}")
def pf_step(n):
    if not SPFON or n == 0: return
    G_, X, W2L = A.newlabel("pfg"), A.newlabel("pfx"), A.newlabel("pfw2")
    e(f"s_cmp_lt_u32 s{sPFO}, s{sPFE}\ns_cbranch_scc1 {G_}\ns_cmp_ge_u32 s{sPFI}, 2\ns_cbranch_scc1 {X}")
    e(f"s_mov_b32 s{sPFO}, s{sPFS}\ns_mov_b32 s{sPFE}, {7*MB}\ns_add_u32 s{sPFI}, s{sPFI}, 1\ns_cmp_eq_u32 s{sPFI}, 2\ns_cbranch_scc1 {W2L}")
    srd(SPF, pW1, 7 * MB)
    e(f"s_branch {G_}")
    A.label(W2L)
    srd(SPF, pW2, 7 * MB)
    A.label(G_)
    for i in range(n): pf_chunk()
    A.label(X)
CODE_MAX = 96 * KB
def code_warm():
    if not CWARM: return
    L = A.newlabel("pc")
    e(f"s_getpc_b64 s[42:43]")
    A.label(L)
    e(f"s_sub_u32 s42, s42, {L}-{KN}\ns_subb_u32 s43, s43, 0\ns_lshl_b32 s{sC0+1}, s{sR}, 2\ns_add_u32 s{sC0+1}, s{sC0+1}, s{sW}\ns_lshl_b32 s{sC0+1}, s{sC0+1}, 6")
    for i in range(NCODE): e(f"s_load_dword s{sC0}, s[42:43], s{sC0+1} offset:{i*8192}")
def pf_until_ep(k):
    L, X = A.newlabel("pu"), A.newlabel("pux")
    A.label(L)
    e(f"ds_read_b32 v{vFV}, v{vFR} offset:{OFF_EP}\ns_waitcnt lgkmcnt(0)\nv_cmp_gt_u32 vcc, {k}, v{vFV}\ns_cbranch_vccz {X}")
    e(f"s_sleep 1\ns_add_u32 s3, s3, 1\ns_cmp_lt_u32 s3, {LSPIN_MAX}\ns_cbranch_scc1 {L}")
    A.label(X)
def pf_finish():
    if not SPFON: return
    L = A.newlabel("pfin")
    A.label(L)
    pf_step(2)
    e(f"s_waitcnt lgkmcnt(6)\ns_cmp_lt_u32 s{sPFI}, 2\ns_cbranch_scc1 {L}\ns_cmp_lt_u32 s{sPFO}, s{sPFE}\ns_cbranch_scc1 {L}")
def pf_stamp(ST):
    if not STAMPS: return
    k_ = len(ST.names); ST.names.append("pfMB")
    e(f"s_mul_i32 s30, s{sPFI}, 1000\ns_lshr_b32 s31, s{sPFO}, 13\ns_mul_i32 s31, s31, 25\ns_lshr_b32 s31, s31, 5\ns_add_u32 s30, s30, s31\ns_add_u32 s{78+k_}, s78, s30")

class HStream:
    def __init__(self): self.items = []
    def __enter__(self):
        self.saved = A.lines; A.lines = []; return self
    def _take(self, atomic=False):
        if A.lines:
            if atomic: self.items.append(("g", list(A.lines)))
            else: self.items += [("g", [ln]) for ln in A.lines if ln.strip()]
        A.lines = []
    def at(self, k): self._take(); self.items.append(("at", k))
    def by(self, k): self._take(); self.items.append(("by", k))
    def atomic(self, f, cost=None):
        self._take(); f()
        if not A.lines: return
        self._take(True)
        if cost is not None: self.items[-1] = ("g", self.items[-1][1], cost)
    def __exit__(self, *a):
        self._take(); A.lines = self.saved
    @staticmethod
    def cost(ln):
        t = ln.strip()
        if t.startswith(("buffer_", "global_")): return VMC
        if t.startswith("ds_"): return 2
        if t.startswith("v_dot"): return DOTC
        if t.startswith(("v_exp", "v_rcp", "v_sqrt", "v_rsq")): return 2
        if t.startswith("s_") or t.endswith(":"): return 0.5
        return 1
    def emit(self, nbar, lim, npf, pf_from=0, pf_to=99, pre0=999, every=1, cw=(), more=False):
        st = {"b": 0, "used": 0}
        def bar():
            e("s_barrier")
            if st["b"] in cw: code_warm()
            if pf_from <= st["b"] < min(pf_to, nbar - 1) and st["b"] % every == every - 1: pf_step(npf + (1 if more and st["b"] % 3 != 1 else 0))
            st["b"] += 1; st["used"] = 0
        for kind, x, *oc in self.items:
            if kind == "at":
                while st["b"] <= x: bar()
            elif kind == "by":
                if DBGH: print("by", x, "at", st["b"], file=sys.stderr)
                assert st["b"] <= x, ("deadline missed", st["b"], x)
            else:
                c = oc[0] if oc else sum(self.cost(l) for l in x)
                if st["used"] > 8 and st["used"] + c > (lim if st["b"] > 0 else pre0) and not (len(x) == 1 and x[0].strip().startswith("s_")): bar()
                A.lines += x; st["used"] += c
        assert st["b"] <= nbar, st
        while st["b"] < nbar: bar()

def retry(loads, regs, nl):
    L, X = A.newlabel("rt"), A.newlabel("rtx")
    set_exec((1 << nl) - 1 if nl <= 64 else nl)
    e(f"s_mov_b32 s{sCNT}, 0")
    A.label(L)
    e("s_waitcnt vmcnt(0)")
    e(f"v_max_u32 v8, v{regs[0]}, v{regs[1]}")
    for i in range(2, len(regs), 2): e(f"v_max3_u32 v8, v{regs[i]}, v{regs[i+1]}, v8")
    e(f"v_cmp_eq_u32 vcc, -1, v8\ns_cbranch_vccz {X}\ns_add_u32 s{sCNT}, s{sCNT}, 1\ns_cmp_gt_u32 s{sCNT}, {SPIN_MAX}\ns_cbranch_scc1 {X}\ns_sleep 8")
    loads()
    e(f"s_branch {L}")
    A.label(X)

def helper0_phase1(ST, Q):
    RS = 16
    with HStream() as H:
        e(f"""
s_lshl_b32 s35, s{sRB}, 4
s_add_u32 s35, s35, s{sCB}
s_lshl_b32 s34, s35, 14
v_lshrrev_b32 v6, 3, v1
v_lshlrev_b32 v5, 11, v6
v_and_b32 v7, 7, v1
v_lshl_add_u32 v5, v7, 4, v5
s_getreg_b32 s39, hwreg(HW_REG_XCC_ID)
""")
        bounds = [0] + [2 * x for x in HB] + [16]
        def red8(r):
            e(f"v_add_f32_dpp v{r}, v{r}, v{r} quad_perm:[1,0,3,2] row_mask:0xf bank_mask:0xf")
            e(f"v_add_f32_dpp v{r}, v{r}, v{r} quad_perm:[2,3,0,1] row_mask:0xf bank_mask:0xf")
            e(f"v_add_f32_dpp v{r}, v{r}, v{r} row_half_mirror row_mask:0xf bank_mask:0xf")
        def dots(bt):
            Q.wait(("rs", bt))
            for i in range(4 * bounds[bt], 4 * bounds[bt + 1]):
                e(f"v_dot2_f32_bf16 v{80+(i&1)}, v{RS+i}, v84, v{80+(i&1)}\nv_dot2_f32_bf16 v{82+(i&1)}, v{RS+i}, v{RS+i}, v{82+(i&1)}")
        e("v_mov_b32 v84, 0x3f803f80\nv_mov_b64 v[80:81], 0\nv_mov_b64 v[82:83], 0")
        for bt in range(len(bounds) - 1):
            if bt: H.at(bt - 1)
            for i in range(bounds[bt], bounds[bt + 1]): e(f"buffer_load_dwordx4 {v(RS+4*i,4)}, v5, {s(SX,4)}, s34 offen offset:{128*i}")
            Q.add(("rs", bt), bounds[bt + 1] - bounds[bt])
            if bt == 1: zero_own_flags(Q)
            if bt >= LAG: dots(bt - LAG)
        e(f"s_and_b32 s39, s39, 15\ns_or_b32 s39, s39, 0x80\ns_lshl_b32 s30, s{sG}, 5\ns_add_u32 s30, s30, s{sR}")
        e(f"v_mov_b32 v8, s39\nv_mov_b32 v2, s30")
        nb_ = len(bounds) - 1
        for bt in range(nb_ - LAG, nb_):
            H.at(bt + LAG - 1); dots(bt)
        H.by(H0AT + 1)
        e(f"s_mov_b64 exec, 1\nbuffer_store_byte v8, v2, {s(SD,4)}, 0 offen sc1\ns_mov_b64 exec, -1")
        e("v_add_f32 v10, v80, v81\nv_add_f32 v11, v82, v83")
        red8(10)
        red8(11)
        if DOT: e(f"v_mul_f32 v12, {f32(-1/1024)}, v10\nv_fma_f32 v11, v12, v10, v11\nv_max_f32 v11, 0, v11")
        ln_finish(10, 11, 1024)
        e("v_mul_f32 v10, v10, v11\nv_sub_f32 v10, 0, v10")
        e(f"v_lshrrev_b32 v7, 3, v1\nv_lshlrev_b32 v7, 2, v7\ns_lshl_b32 s32, s35, 5\ns_add_u32 s32, s32, {WS_RA}\ns_add_u32 s33, s32, {WS_RB-WS_RA}")
        set_exec(0x0101010101010101)
        e(f"buffer_store_dword v11, v7, {s(SWS,4)}, s32 offen sc1\nbuffer_store_dword v10, v7, {s(SWS,4)}, s33 offen sc1\ns_mov_b64 exec, -1")
        ST("st_pub")
        H.by(GAT - 1); H.at(GAT - 3)
        e(f"v_lshlrev_b32 v12, 2, v1\nbuffer_load_dword v13, v12, {s(SD,4)}, 0 offen sc1")
        H.at(GAT - 1)
        def handshake():
            X = A.newlabel("hsx")
            e(f"s_waitcnt vmcnt(0)\nv_and_b32 v8, 0x80808080, v13\nv_cmp_ne_u32 vcc, 0x80808080, v8\ns_cbranch_vccz {X}")
            poll("0", 64, srd_=SD, mask="0x80808080", t=8, sleep=16)
            e(f"buffer_load_dword v13, v12, {s(SD,4)}, 0 offen sc1\ns_waitcnt vmcnt(0)")
            A.label(X)
            e(f"s_mul_i32 s31, s39, 0x01010101\nv_cmp_ne_u32 vcc, s31, v13\ns_lshl_b32 s30, s{sG}, 3\ns_lshr_b64 s[32:33], vcc, s30\ns_and_b32 s30, s32, 0xff")
            if FORCE >= 0: e(f"s_mov_b32 s30, {FORCE}")
            e(f"v_mov_b32 v8, s30\nv_mov_b32 v7, {L_HD}\ns_mov_b64 exec, 1\nds_write_b32 v7, v8\ns_mov_b64 exec, -1")
        H.atomic(handshake)
        H.at(GAT)
        e(f"v_and_b32 v6, 31, v1\nv_lshlrev_b32 v6, 4, v6\nv_lshrrev_b32 v7, 5, v1\nv_lshl_add_u32 v6, v7, 13, v6\ns_lshl_b32 s34, s{sRB}, 9\ns_add_u32 s34, s34, {WS_RA}")
        ld = lambda: e(f"buffer_load_dwordx4 v[16:19], v6, {s(SWS,4)}, s34 offen sc1")
        ld()
        H.at(GAT + 2)
        def fin():
            retry(ld, [16, 17, 18, 19], 64)
            e(f"v_lshlrev_b32 v6, 4, v1\nv_add_u32 v6, {L_RA}, v6\nds_write_b128 v6, v[16:19]\ns_waitcnt lgkmcnt(0)")
        H.atomic(fin)
        ST("st_in")
        H.by(16)
    H.emit(17, HLIM, NPF, pf_from=PFD0, pf_to=GAT + 1, pre0=PRE0, cw=(0, 14) if CWARM > 1 else (0,))
    e("s_waitcnt lgkmcnt(0)")
    pf_stamp(ST)

def helper1_phase1(ST, Q):
    CSR = 80
    with HStream() as H:
        e(f"""
s_lshl_b32 s35, s{sRB}, 4
s_add_u32 s35, s35, s{sCB}
v_bfe_u32 v6, v1, 3, 2
v_lshrrev_b32 v7, 5, v1
v_lshl_add_u32 v6, v7, 6, v6
v_and_b32 v7, 7, v1
v_mul_u32_u24 v6, 6144, v6
v_lshl_add_u32 v6, v7, 4, v6
s_mul_i32 s32, s{sRB}, {4*6144}
s_lshl_b32 s33, s{sCB}, 7
s_add_u32 s32, s32, s33
""")
        bounds = [0] + HB + [8]
        e("v_mov_b32 v10, 0x00003f80\nv_mov_b32 v11, 0x3f800000")
        for r in range(U0, U0 + 24, 2): e(f"v_mov_b64 {v(r,2)}, 0")
        def dots(bt):
            Q.wait(("cs", bt))
            for i in range(bounds[bt], bounds[bt + 1]):
                for j in range(3):
                    for d in range(4):
                        u, r = U0 + 8 * j + 2 * d, CSR + 4 * (8 * j + i) + d
                        e(f"v_dot2_f32_bf16 v{u}, v{r}, v10, v{u}\nv_dot2_f32_bf16 v{u+1}, v{r}, v11, v{u+1}")
        nb_ = len(bounds) - 1
        for bt in range(nb_):
            if bt: H.at(bt - 1)
            for i in range(bounds[bt], bounds[bt + 1]):
                for j in range(3):
                    e(f"s_add_u32 s31, s32, {2048*j + 128*6144*i}\nbuffer_load_dwordx4 {v(CSR+4*(8*j+i),4)}, v6, {s(SB,4)}, s31 offen {'nt' if i < NTK else ''}")
            Q.add(("cs", bt), 3 * (bounds[bt + 1] - bounds[bt]))
            if bt >= LAG: dots(bt - LAG)
        for bt in range(nb_ - LAG, nb_):
            H.at(bt + LAG - 1); dots(bt)
        e(f"s_mul_i32 s33, s35, 768\ns_add_u32 s33, s33, {WS_CS1}")
        for j in range(3): colsum_block(j, 0, 0, (8,))
        H.at(H0AT + 1)
        for j in range(3): colsum_store(Q, j, 33, 8, "st1")
        ST("st_pub")
        H.by(GAT - 1); H.at(GAT)
        e(f"s_mul_i32 s33, s{sCB}, 768\ns_add_u32 s33, s33, {WS_CS1}\nv_lshlrev_b32 v6, 4, v1")
        def ld():
            for k in range(16): e(f"s_add_u32 s31, s33, {k*16*768}\nbuffer_load_dwordx4 {v(16+4*k,4)}, v6, {s(SWS,4)}, s31 offen sc1")
        def ld0():
            set_exec((1 << 48) - 1); ld(); e("s_mov_b64 exec, -1")
        H.atomic(ld0)
        H.at(GAT + 2)
        def fin():
            retry(ld, list(range(16, 80)), 48)
            for k in range(1, 16): e(f"v_pk_add_f32 v[16:17], v[16:17], {v(16+4*k,2)}\nv_pk_add_f32 v[18:19], v[18:19], {v(18+4*k,2)}")
            e(f"v_add_u32 v6, {L_CS}, v6\nds_write_b128 v6, v[16:19]\ns_mov_b64 exec, -1\ns_waitcnt lgkmcnt(0)")
        H.atomic(fin)
        ST("st_in")
        H.by(16)
    H.emit(17, HLIM, NPF, pf_from=PFD0, pf_to=GAT + 1, pre0=PRE0, cw=(0, 14) if CWARM > 1 else (0,))
    e("s_waitcnt lgkmcnt(0)")
    pf_stamp(ST)

def helper_rest(ST, Q):
    CSR = 16
    with HStream() as H:
        if B3LATE: H.at(0)
        for st in range(6, G3.NSB): G3.issue_b(Q, st)
        H.at(5)
        Q.wait_all()
        H.by(6)
        roles_84()
        b_src_w1()
        G4.p_setup_b(sWN)
        e(f"""
v_lshrrev_b32 v6, 3, v1
v_mul_u32_u24 v6, 7168, v6
v_and_b32 v7, 7, v1
v_lshl_add_u32 v6, v7, 4, v6
v_lshrrev_b32 v5, 2, v1
v_mul_u32_u24 v5, 7168, v5
v_and_b32 v7, 3, v1
v_lshl_add_u32 v5, v7, 4, v5
s_lshl_b32 s35, s{sRB}, 1
s_add_u32 s35, s35, s{sWN}
s_mul_i32 s32, s35, {32*7168}
s_mul_i32 s33, s{sCB}, 448
s_add_u32 s32, s32, s33
""")
        e(f"s_mul_i32 s33, s35, {3584*4}\ns_mul_i32 s34, s{sCB}, 896\ns_add_u32 s33, s33, s34\ns_add_u32 s33, s33, {WS_CS2}")
        if WARM4:
            e(f"s_and_b32 s36, s35, 15\ns_mul_i32 s36, s36, {4*7168}\ns_mul_i32 s37, s{sCB}, 448\ns_and_b32 s37, s37, {hex(0xffffff80)}\ns_add_u32 s36, s36, s37")
            e(f"v_bfe_u32 v8, v1, 2, 2\nv_mul_u32_u24 v8, 7168, v8\nv_and_b32 v9, 3, v1\nv_lshl_add_u32 v8, v9, 7, v8\ns_mov_b32 s37, {(G4.korder[1]-G4.korder[0])*64*7168}\nv_mul_lo_u32 v9, v3, s37\nv_add_u32 v8, v8, v9")
            assert G4.korder[0] == 0 and G4.korder[2] == 2 * G4.korder[1]
            H.at(CS2AT - 1)
            e(f"buffer_load_dword v244, v8, {s(SB,4)}, s36 offen"); Q.add("warm")
        H.at(CS2AT)
        for j in range(3):
            for i in range(4):
                e(f"s_add_u32 s31, s32, {8*7168*i}\nbuffer_load_dwordx4 {v(CSR+4*(4*j+i),4)}, v6, {s(SB,4)}, s31 offen offset:{128*j}")
            Q.add(("w", j), 4)
        for i in range(2):
            e(f"s_add_u32 s31, s32, {16*7168*i}\nbuffer_load_dwordx4 {v(CSR+48+4*i,4)}, v5, {s(SB,4)}, s31 offen offset:384")
        Q.add(("w", 3), 2)
    H.emit(17, 34, 1, every=3, pf_to=CS2AT, cw=(14,) if CWARM > 1 else ())
    pf_stamp(ST)
    for j in range(4):
        Q.wait(("w", j))
        colsum_block(j, CSR + 16 * j, 4 if j < 3 else 2, (8,) if j < 3 else (4, 8))
    pf_until_ep(2)
    if BSEEN:
        for j in range(4): colsum_store(Q, j, 33, 8 if j < 3 else 4, "st2")
        if BSEEN == 2: G4.issue_b(Q, 1)
        e(f"v_mov_b32 v12, {L_FULL}")
        lds_wait(12, 1, vFV, sleep=1)
        if BSEEN == 1: G4.issue_b(Q, 1)
    else:
        if not BLATE:
            for st in (1, 2): G4.issue_b(Q, st)
        for j in range(4): colsum_store(Q, j, 33, 8 if j < 3 else 4, "st2")
    ST("cs2_pub")
    with HStream() as H:
        e(f"s_lshl_b32 s36, s{sRB}, 8\ns_add_u32 s36, s36, {WS_F3}\ns_lshr_b32 s37, s{sR}, 1\ns_min_u32 s37, s37, 13\ns_lshl_b32 s37, s37, 8\ns_add_u32 s37, s37, {WS_F3}")
        H.at(0)
        if BSEEN:
            H.atomic(lambda: G4.issue_b(Q, 2), 0)
            Q.wait(1)
            H.at(1)
        Q.wait(2)
        e("v_lshlrev_b32 v240, 2, v1\nv_mul_u32_u24 v241, 12, v1")
        H.at(CHKAT)
        e(f"buffer_load_dword v232, v240, {s(SWS,4)}, s36 offen sc1\nbuffer_load_dwordx3 v[234:236], v241, {s(SWS,4)}, s37 offen sc1")
        Q.add("chk", 2)
        H.at(CHKAT + 2)
        def chk():
            X = A.newlabel("ckx")
            Q.wait("chk")
            e(f"v_lshrrev_b32 v232, 1, v232\nv_and_b32 v232, v232, v236\nv_and_b32 v234, v234, v235\nv_and_b32 v232, v232, v234\nv_and_b32 v232, 1, v232\nv_cmp_ne_u32 vcc, 1, v232\ns_cbranch_vccz {X}")
            poll("s36", 64, mask=2, t=8, sleep=8)
            for d in range(3):
                e(f"s_add_u32 s38, s37, {256*d}"); poll("s38", 64, mask=1, t=8, sleep=8)
            A.label(X)
        H.atomic(chk, 10)
        e(f"v_lshlrev_b32 v11, 4, v1\ns_lshl_b32 s36, s35, 14\ns_add_u32 s36, s36, {WS_STAT}\ns_add_u32 s37, s36, 4096\ns_add_u32 s38, s36, 8192\ns_add_u32 s39, s36, 12288")
        for i in range(16): e(f"buffer_load_dwordx4 {v(96+4*i,4)}, v11, {s(SWS,4)}, s{36+i//4} offen offset:{1024*(i%4)} sc1")
        Q.add("stat", 16)
        e(f"s_mul_i32 s33, s{sCB}, 896\ns_mul_i32 s34, s{sWN}, 448\ns_add_u32 s33, s33, s34\ns_add_u32 s33, s33, {WS_CS2}")
        e(f"v_and_b32 v7, 31, v1\nv_lshlrev_b32 v7, 4, v7\nv_lshrrev_b32 v6, 5, v1\nv_mul_u32_u24 v6, {3584*4}, v6\nv_add_u32 v6, v6, v7")
        M28 = ((1 << 28) - 1) | (((1 << 28) - 1) << 32)
        def ld(ks=range(16)):
            for k in ks: e(f"s_add_u32 s31, s33, {k*2*3584*4}\nbuffer_load_dwordx4 {v(16+4*k,4)}, v6, {s(SWS,4)}, s31 offen sc1")
        for c in range(4):
            def ldc(c=c):
                set_exec(M28); ld(range(4 * c, 4 * c + 4)); e("s_mov_b64 exec, -1")
            H.atomic(ldc, 4 * VMC)
        Q.add("cs", 16)
        Q.wait("stat")
        for h in range(2):
            e(f"v_pk_add_f32 {v(160+2*h,2)}, {v(96+2*h,2)}, {v(100+2*h,2)}")
            for i in range(2, 16): e(f"v_pk_add_f32 {v(160+2*h,2)}, {v(160+2*h,2)}, {v(96+4*i+2*h,2)}")
        for h in range(2): e(f"v_mov_b32 v{164+h}, v{160+2*h}")
        for h in range(2): e(f"v_permlane32_swap_b32 v{160+2*h}, v{164+h}")
        for h in range(2): e(f"v_add_f32 v{160+2*h}, v{160+2*h}, v{164+h}\nv_mul_f32 v{166+h}, {f32(1/32)}, v{160+2*h}\nv_mov_b32 v{168+h}, 0")
        for i in range(16):
            for h in range(2):
                r = 96 + 4 * i + 2 * h
                e(f"v_sub_f32 v{r}, v{r}, v{166+h}\nv_fma_f32 v{168+h}, v{r}, v{r}, v{168+h}")
        e(f"v_mov_b32 v13, {f32(1/32)}")
        for h in range(2): e(f"v_fma_f32 v{161+2*h}, v{168+h}, v13, v{161+2*h}\nv_mov_b32 v{164+h}, v{161+2*h}")
        for h in range(2): e(f"v_permlane32_swap_b32 v{161+2*h}, v{164+h}")
        for h in range(2):
            a_, b_ = 160 + 2 * h, 161 + 2 * h
            e(f"v_add_f32 v{b_}, v{b_}, v{164+h}")
            ln_finish(a_, b_, 1024)
            e(f"v_mul_f32 v{b_}, {f32(-LOG2E)}, v{b_}\nv_mul_f32 v{a_}, v{a_}, v{b_}\nv_sub_f32 v{a_}, 0, v{a_}")
        e(f"s_lshl_b32 s30, s{sWN}, 9\ns_add_u32 s30, s30, {L_RA}\nv_add_u32 v13, s30, v7\nds_write_b128 v13, v[160:163]")
        def fin():
            retry(ld, list(range(16, 80)), M28)
            e("s_mov_b64 exec, -1")
        H.atomic(fin, 36)
        for k in range(1, 16): e(f"v_pk_add_f32 v[16:17], v[16:17], {v(16+4*k,2)}\nv_pk_add_f32 v[18:19], v[18:19], {v(18+4*k,2)}")
        for h in range(4): e(f"v_mov_b32 v{20+h}, v{16+h}")
        for h in range(4): e(f"v_permlane32_swap_b32 v{16+h}, v{20+h}")
        e("v_pk_add_f32 v[16:17], v[16:17], v[20:21]\nv_pk_add_f32 v[18:19], v[18:19], v[22:23]")
        e(f"s_add_u32 s34, s34, {L_CS}\nv_add_u32 v7, s34, v7"); set_exec((1 << 28) - 1)
        e("ds_write_b128 v7, v[16:19]\ns_mov_b64 exec, -1\ns_waitcnt lgkmcnt(0)")
        ST("st2_in")
        H.by(16)
        if W2NT:
            H.at(W2AT)
            def w2pf():
                srd(SB, pW2, 7 * MB)
                e(f"s_lshr_b32 s36, s{sG}, 1\ns_mul_i32 s36, s36, {896*2048}\ns_lshl_b32 s37, s{sR}, 1\ns_add_u32 s37, s37, s{sWN}\ns_mul_i32 s37, s37, {56*128}\ns_add_u32 s36, s36, s37\nv_lshlrev_b32 v240, 7, v1")
                set_exec((1 << 56) - 1)
                for k in range(2): e(f"s_add_u32 s31, s36, {k*64*56*128}\nbuffer_load_dword v{244+k}, v240, {s(SB,4)}, s31 offen {W2NT.replace('none','')}")
                e("s_mov_b64 exec, -1")
            H.atomic(w2pf, 0)
    H.emit(17, HLIM4, NPF, more=True, pf_to=14, cw=(14,) if CWARM > 1 else ())
    pf_stamp(ST)
    pf_finish()
    if CANARY:
        roles_w2()
        Q.q = []
        with HStream() as H:
            e(f"s_lshl_b32 s33, s{sRB}, 3\ns_add_u32 s33, s33, s{sCB}\ns_mul_i32 s34, s33, {256*KB}\ns_add_u32 s34, s34, {WS_PART}\ns_lshl_b32 s30, s{sWN}, 13\ns_add_u32 s34, s34, s30")
            e(f"s_lshl_b32 s30, s{sKS}, 14\ns_add_u32 s34, s34, s30\nv_lshlrev_b32 v2, 4, v1")
            for k in range(4): e(f"v_mov_b32 v{8+k}, -1")
            e(f"s_lshl_b32 s37, s33, 6\ns_lshl_b32 s30, s{sKS}, 4\ns_add_u32 s37, s37, s30\ns_lshl_b32 s30, s{sWN}, 3\ns_add_u32 s37, s37, s30\ns_add_u32 s37, s37, {WS_F5}")
            H.at(PFILL)
            for d in range(1, 4):
                for hb in range(2):
                    e(f"s_add_u32 s31, s{sKS}, {d}\ns_and_b32 s31, s31, 3\ns_lshl_b32 s31, s31, 16\ns_add_u32 s31, s31, s34\ns_add_u32 s31, s31, {hb*4096}")
                    for b in range(4): e(f"buffer_store_dwordx4 v[8:11], v2, {s(SWS,4)}, s31 offen offset:{b*1024} sc1")
            H.by(PFILL + 7); H.at(PFILL + 8)
            e(f"s_waitcnt vmcnt(0)\nv_mov_b32 v12, 1\nv_lshlrev_b32 v13, 2, v1\ns_mov_b64 exec, 3\nbuffer_store_dword v12, v13, {s(SWS,4)}, s37 offen sc1\ns_mov_b64 exec, -1")
        H.emit(PFILL + 10, 24, 0)
    if W2NT:
        set_exec((1 << 56) - 1)
        for k in range(2, 4): e(f"s_add_u32 s31, s36, {k*64*56*128}\nbuffer_load_dword v{244+k}, v240, {s(SB,4)}, s31 offen {W2NT.replace('none','')}")
        e("s_mov_b64 exec, -1")

def producer(ST):
    Q = VmQ()
    pf_init()
    e(f"s_cmp_eq_u32 s{sW}, 2\ns_cbranch_scc1 L_h0\ns_cmp_eq_u32 s{sW}, 3\ns_cbranch_scc1 L_h1")
    SD_ = ST.fork("D"); dma_phase1(SD_, Q)
    e("s_branch L_att")
    A.label("L_h0")
    if HPRIO: e(f"s_setprio {HPRIO}")
    SH = ST.fork("H"); helper0_phase1(SH, VmQ())
    e("s_branch L_att")
    A.label("L_h1")
    if HPRIO: e(f"s_setprio {HPRIO}")
    SH = ST.fork("H"); helper1_phase1(SH, VmQ())
    while len(SH.names) < len(SD_.names): SH.names.append("-")
    while len(SD_.names) < len(SH.names): SD_.names.append("-")
    A.label("L_att")
    e(f"s_setprio {APRIO}")
    n0 = len(SD_.names)
    neighbours_and_attention(SD_, Q)
    SH.names += SD_.names[n0:]
    e(f"s_cmp_ge_u32 s{sW}, 2\ns_cbranch_scc1 L_hrest")
    dma_rest(SD_, Q)
    SD_.flush()
    e("s_endpgm")
    A.label("L_hrest")
    e(f"s_setprio {HPRIO}")
    helper_rest(SH, VmQ())
    SH.flush()

def main():
    A.begin_kernel(KN)
    if STAMPS: e(f"{STAMP_OP} {s(sST,2)}")
    e(f"""
s_cmp_ge_u32 s2, 256
s_cbranch_scc1 L_end
s_load_dwordx16 s[48:63], s[0:1], 0
s_load_dwordx2 s[64:65], s[0:1], 64
v_lshrrev_b32 v2, 6, v0
v_and_b32 v1, 63, v0
v_readfirstlane_b32 s{sWAVE}, v2
v_lshrrev_b32 v3, 4, v1
v_and_b32 v4, 15, v1
s_and_b32 s{sG}, s2, 7
s_mov_b32 s3, 0
s_lshr_b32 s{sR}, s2, 3
s_and_b32 s{sW}, s{sWAVE}, 3
s_lshr_b32 s{sWM}, s{sW}, 1
s_and_b32 s{sWN}, s{sW}, 1
""")
    roles_p1()
    e(f"s_lshl_b32 s{sOWN}, s{sCB}, 4\ns_add_u32 s{sOWN}, s{sOWN}, s{sRB}\ns_lshl_b32 s{sOWN}, s{sOWN}, 16")
    e(f"s_add_u32 s{sROT}, s{sRB}, s{sCB}\ns_and_b32 s{sROT}, s{sROT}, {15 if ROT1 else 0}")
    e(f"s_lshl_b32 s{sBC}, s{sCB}, 7\ns_mov_b32 s{sBR}, 0\ns_lshl_b32 s{sAR}, s{sRB}, 18")
    G1.p_setup_a(); G1.p_setup_b()
    sync_regs()
    e("s_waitcnt lgkmcnt(0)")
    if STAMPS: e(f"s_mov_b32 s78, s{sST}\ns_mov_b32 s0, 0\ns_mov_b32 s1, 0")
    srd(SX, pX, 4 * MB); srd(SB, pWQKV, 6 * MB)
    if WSOFF: e(f"s_add_u32 s{pWS}, s{pWS}, {WSOFF*MB}\ns_addc_u32 s{pWS+1}, s{pWS+1}, 0")
    srd(SWS, pWS, WS_BYTES); srd(SD, pDBG, 256)
    e(f"s_cmp_lt_u32 s{sWAVE}, 4\ns_cbranch_scc1 L_cons")
    producer(Stamper("P"))
    A.label("L_end")
    e("s_endpgm")
    A.label("L_cons")
    consumer(Stamper("C"))
    A.lines.append(f".fill ({NCODE*8192} - (. - {KN})) / 4, 4, 0xbf810000")
    A.end_kernel(KN, 256, 102)
    A.lines = hazard.fix(A.lines)
    hdr = open("sequential_preLN__sliding_block__dense_activation_silu__prompt.s.ref").read().split("; Override launch")[0]
    hdr += f"; @launch grid=(256,1,1) block=(512,1,1) lds={LDS_BYTES}\n"
    for k, nm in STAMP_NAMES.items(): hdr += f"; stamps {k}: {' '.join(nm)}\n"
    sys.stdout.write(A.text(hdr))
main()
```

```python
import sys, struct
from asmlib import Asm
import hazard

ARGS = sys.argv[1:]
def opt(name, default):
    for a in ARGS:
        if a.startswith("--" + name + "="): return type(default)(a.split("=", 1)[1])
    return default
STAMPS = "--stamps" in ARGS
STAMP_OP = "s_memtime" if "--cyc" in ARGS else "s_memrealtime"
DPRIO = opt("dprio", 0)
FORCE = opt("force", -1)
PSLEEP = opt("psleep", 1)
GAT = opt("gat", 13); H0AT = opt("h0at", 5)
PUBN = opt("pubn", 16)
FPOS = opt("fpos", 8)
RP4 = opt("rp4", 0); RP5 = opt("rp5", 0)
CS2AT = opt("cs2at", 11)
BT0 = opt("bt0", 11)
CHKAT = opt("chkat", 3)
HLIM4 = opt("hlim4", 42)
DOTC = opt("dotc", 1.0)
NOST4 = opt("nost4", 0)
NSB3 = opt("nsb3", 11)
PF2 = opt("pf2", 4)
XAT = opt("xat", -1)
VBAR = opt("vbar", 4)
VLATE = opt("vlate", 1)
VBARP = opt("vbarp", 1)
CHAIN = opt("chain", "none").split(",")
RSP = opt("rsp", 0.75)
LEVELS = opt("levels", 1)
LFIRST = opt("lfirst", 0)
HLT = opt("hlt", 1)
BTAIL = opt("btail", 0)
F5W = opt("f5w", 1)
CPRIO = opt("cprio", 0)
PERT = opt("pert", 0.0); PERTN = opt("pertn", 1); PERTL = opt("pertl", 1)
KFLAG = opt("kflag", 1)
SLOWPF = opt("slowpf", 1)
GATEN = {"wo": opt("g3n", 2), "w1": opt("g4n", 2)}
APK = opt("apk", 1)
AMIX = opt("amix", 0)
APRIO = opt("aprio", 0)
TAILPM = opt("tailpm", 1)
DBGOUT = opt("dbgout", -1)
CANARY = opt("canary", 0)
BSEEN = opt("bseen", 0)
PFILL = opt("pfill", 0)
ASY5 = opt("asy5", 1)
WARM4 = opt("warm4", 0)
ASYNC = opt("async", 0)
NTK = opt("ntk", 4)
EARLY5 = opt("early5", 1)
E5LAG = opt("e5lag", 2)
LAG = opt("lag", 1)
H1FL = opt("h1fl", "")
B1FL = opt("b1fl", "")
W2NT = opt("w2nt", "")
W2AT = opt("w2at", 14)
KORD = opt("kord", 1)
CWARM = opt("cwarm", 1)
NCODE = opt("ncode", 12)
TAILD = opt("taild", 0)
TOUCH4 = opt("touch4", 0)
HB = [int(x) for x in opt("hb", "3,5,7").split(",")]
DOT = opt("dot", 1)
PFH = opt("pfh", 0)
PFD0 = opt("pfd0", 3)
BEARLY = opt("bearly", 0)
BLATE = opt("blate", 0)
B3LATE = opt("b3late", 0)
KVFL = opt("kvfl", "sc1")
FINE = opt("fine", 1)
G4AT = opt("g4at", 9)
NPF = opt("npf", 1)
PFW1 = opt("pfw1", 0)
PFBUB = opt("pfbub", 0)
DST = opt("dst", "")
DW = eval(opt("dw", "()")); DB = eval(opt("db", "(0,1,2,3,4,5,6,7,8,9,10,12,14)"))
VMC = opt("vmc", 5)
PRE0 = opt("pre0", 999)
DBGH = opt("dbgh", 0)
P1G = opt("p1g", 2)
HLIM = opt("hlim", 120)
HPRIO = opt("hprio", 0)
SENT = 0xFFFFFFFF
SKIP = opt("skip", "att_v,p_flag").split(",")
ROT1 = opt("rot1", 0); ROT3 = opt("rot3", 0); ROT4 = opt("rot4", 0)
BAR = opt("bar", 0)
NS1 = opt("ns1", 3)
ALIAS = opt("alias", 1)
TESTH1 = opt("testh1", 0)
TFL = opt("tfl", "nt")
TOUCH = opt("touch", 0)
LFL = opt("lfl", "").replace("_", " ")
PFL = opt("pfl", "sc1").replace("_", " ")
OFL = opt("ofl", "").replace("_", " ")
TS = opt("ts", 0)
SPFON = opt("spf", 1)
PFB = opt("pfb", 6)
MAP1 = opt("map1", 162)
WAKE = opt("wake", 0)
LCAP = opt("lcap", 10)
SPREAD = opt("spread", 0.8)
DPOS = opt("dpos", 0.25)
NOSY = opt("nosy", "")
EARLY = opt("early", 1)
DSLEEP = opt("dsleep", 1)
ONLY = opt("only", 0)
NOLOAD = opt("noload", "")
NOMFMA = opt("nomfma", 0)
KN = "sequential_preLN__sliding_block__dense_activation_silu__prompt_kernel"
SPLIT = 4

MB = 1 << 20; KB = 1024
WS_AR, WS_H, WS_AR2 = 0, 20 * MB, 24 * MB
AR_K, AR_V, AR_O = 0, 16 * KB, 32 * KB
WS_STAT = 40 * MB
WS_CS1 = 41 * MB
WS_CS2 = 41 * MB + 256 * KB
WS_RA = 41 * MB + 768 * KB
WS_RB = WS_RA + 8 * KB
WS_F1 = 41 * MB + 896 * KB
WS_F2 = WS_F1 + 4 * KB; WS_F3 = WS_F2 + 8 * KB; WS_F4 = WS_F3 + 4 * KB; WS_F5 = WS_F4 + 4 * KB
WS_F6 = WS_F5 + 8 * KB; WS_F7 = WS_F6 + 2 * KB; WS_F8 = WS_F7 + 1 * KB
WS_F5W = 42 * MB
WS_HL = 44 * MB
WS_F3L = WS_F8
WS_DBG = 48 * MB
WS_PART = 52 * MB
WSOFF = opt("wsoff", 0)
WS_BYTES = (256 - WSOFF) * MB
LOG2E = 1.4426950408889634
LDS_BYTES = 160 * KB
MISC = LDS_BYTES - 6 * KB
L_RA, L_CS = MISC, MISC + 1024
L_DONE, L_FULL, L_HD, L_EP = MISC + 2048, MISC + 3072, MISC + 4096, MISC + 5120
L_MODE = L_HD + 512
vDW, vFR, vCNT, vFV = 252, 253, 254, 255
SPIN_MAX = 1 << 16
LSPIN_MAX = 1 << 22

def f32(x): return "0x%08x" % struct.unpack("<I", struct.pack("<f", x))[0]
def v(a, n=1): return f"v{a}" if n == 1 else f"v[{a}:{a+n-1}]"
def s(a, n=1): return f"s{a}" if n == 1 else f"s[{a}:{a+n-1}]"

SX, SWS, SB, SD = 4, 8, 12, 16
sWAVE, sW, sG, sR, sRB, sCB, sBC, sBH, sWM, sWN = 20, 21, 22, 23, 24, 25, 26, 27, 28, 29
pX, pWQKV, pWO, pW1, pW2, pOUT, pDBG, pWS = 48, 50, 52, 56, 58, 60, 62, 64
sMODE = 54; sT0 = 55
sAR, sBR, sM0A, sM0B, sM0H, sKS, sCNT, sNEED, sC0 = 66, 67, 68, 69, 70, 71, 72, 73, 74
sST = 76
sOWN, sROT, sAK, sBK = 60 + 40, 60 + 41, 98, 99


A = Asm()
def e(t): A.e(t)
STAMP_NAMES = {}
class Stamper:
    def __init__(self, role): self.role = role; self.names = ["start"]
    def __call__(self, name):
        if not STAMPS: return
        if name in SKIP: return
        n = len(self.names)
        assert n < 19, self.names
        e(f"{STAMP_OP} {s(sST,2)}\ns_waitcnt lgkmcnt(0)\ns_mov_b32 s{78+n}, s{sST}")
        self.names.append(name)
    def fork(self, role):
        t = Stamper(role); t.names = list(self.names); return t
    def flush(self):
        if not STAMPS: return
        self("end")
        n = len(self.names); self.names.append("nslow")
        e(f"s_mul_i32 s0, s0, {1000 if STAMP_OP == 's_memtime' else 100}\ns_add_u32 s{78+n}, s78, s0")
        STAMP_NAMES[self.role] = self.names
        e("s_waitcnt vmcnt(0)")
        for i in range(24): e(f"v_mov_b32 v{8+i}, s{78+min(i,len(self.names)-1)}")
        e(f"s_lshl_b32 s30, s2, 10\ns_lshl_b32 s31, s{sWAVE}, 7\ns_add_u32 s30, s30, s31\ns_add_u32 s30, s30, {WS_DBG}")
        e("v_mov_b32 v2, 0\ns_mov_b64 exec, 1")
        for i in range(6): e(f"buffer_store_dwordx4 {v(8+4*i,4)}, v2, {s(SWS,4)}, s30 offen offset:{16*i}")
        e("s_mov_b64 exec, -1")
        if DBGOUT >= 0 and self.role == "C":
            L = A.newlabel("nodbg")
            e(f"s_cmp_lg_u32 s2, {DBGOUT}\ns_cbranch_scc1 {L}\ns_cmp_lg_u32 s{sWAVE}, 0\ns_cbranch_scc1 {L}")
            srd(SD, pDBG, 256)
            for i in range(16): e(f"v_sub_u32 v{40+i}, v{8+2+i}, v8")
            e("s_mov_b64 exec, 1")
            for i in range(4): e(f"buffer_store_dwordx4 {v(40+4*i,4)}, v2, {s(SD,4)}, 0 offen offset:{16*i} sc1")
            e("s_mov_b64 exec, -1")
            A.label(L)

class VmQ:
    def __init__(self): self.q = []
    def add(self, tag, n=1): self.q += [tag] * n
    def has(self, tag): return tag in self.q
    def after(self, tag):
        if tag not in self.q: return 99
        return len(self.q) - 1 - max(i for i, t in enumerate(self.q) if t == tag)
    def wait(self, tag):
        if tag not in self.q: return
        n = self.after(tag)
        assert n <= 63, n
        e(f"s_waitcnt vmcnt({n})")
        self.q = self.q[len(self.q) - n:]
    def wait_all(self):
        e("s_waitcnt vmcnt(0)"); self.q = []

def set_exec(mask):
    if mask == (1 << 64) - 1: e("s_mov_b64 exec, -1")
    elif mask <= 64: e(f"s_mov_b64 exec, {mask}")
    else: e(f"s_mov_b32 exec_lo, {hex(mask & 0xffffffff)}\ns_mov_b32 exec_hi, {hex(mask >> 32)}")
def srd(d, base, nbytes):
    e(f"s_mov_b32 s{d}, s{base}\ns_and_b32 s{d+1}, s{base+1}, 0xffff\ns_mov_b32 s{d+2}, {nbytes}\ns_mov_b32 s{d+3}, 0x20000")
def xg_multi(op, regs, tmps):
    for sw in ("v_permlane16_swap_b32", "v_permlane32_swap_b32"):
        for r, t in zip(regs, tmps): e(f"v_mov_b32 v{t}, v{r}")
        for r, t in zip(regs, tmps): e(f"{sw} v{r}, v{t}")
        for r, t in zip(regs, tmps): e(f"{op} v{r}, v{r}, v{t}")
def round_bf16(r): e(f"v_cvt_pk_bf16_f32 v{r}, v{r}, v{r}\nv_and_b32 v{r}, 0xffff0000, v{r}")
def ln_finish(vsum, vm2, n):
    e(f"v_mul_f32 v{vsum}, {f32(1.0/n)}, v{vsum}"); round_bf16(vsum)
    e(f"v_mul_f32 v{vm2}, {f32(1.0/n)}, v{vm2}"); round_bf16(vm2)
    e(f"v_add_f32 v{vm2}, {f32(1e-5)}, v{vm2}"); round_bf16(vm2)
    e(f"v_sqrt_f32 v{vm2}, v{vm2}"); round_bf16(vm2)
    e(f"v_rcp_f32 v{vm2}, v{vm2}")
def pack(dst, c0, c1):
    e(f"v_cvt_pk_bf16_f32 v{dst}, v{c0}, v{c0+1}\nv_cvt_pk_bf16_f32 v{dst+1}, v{c0+2}, v{c0+3}")
    e(f"v_cvt_pk_bf16_f32 v{dst+2}, v{c1}, v{c1+1}\nv_cvt_pk_bf16_f32 v{dst+3}, v{c1+2}, v{c1+3}")
def unpack(lo, src): e(f"v_lshlrev_b32 v{lo}, 16, v{src}\nv_and_b32 v{lo+1}, 0xffff0000, v{src}")

def set_flag(soff, st="sc1", val=1, t=5):
    e(f"v_mov_b32 v{t}, 0\nv_mov_b32 v{t+1}, {val}\ns_mov_b64 exec, 1\nbuffer_store_dword v{t+1}, v{t}, {s(SWS,4)}, s{soff} offen {st}\ns_mov_b64 exec, -1")

def poll(soff, nlanes, voff=None, x2=False, srd_=SWS, mask=1, t=8, sleep=None):
    L = A.newlabel("poll"); X = A.newlabel("pollx")
    if voff is None:
        e(f"v_lshlrev_b32 v{t+2}, {3 if x2 else 2}, v1"); voff = t + 2
    if nlanes < 64: set_exec((1 << nlanes) - 1)
    e(f"s_mov_b32 s{sCNT}, 0")
    A.label(L)
    if x2: e(f"buffer_load_dwordx2 {v(t,2)}, v{voff}, {s(srd_,4)}, {soff} offen sc1")
    else: e(f"buffer_load_dword v{t}, v{voff}, {s(srd_,4)}, {soff} offen sc1")
    e(f"s_add_u32 s{sCNT}, s{sCNT}, 1\ns_cmp_gt_u32 s{sCNT}, {SPIN_MAX}\ns_waitcnt vmcnt(0)\ns_cbranch_scc1 {X}")
    if x2: e(f"v_and_b32 v{t}, v{t}, v{t+1}")
    e(f"v_and_b32 v{t}, {mask}, v{t}\nv_cmp_ne_u32 vcc, {mask}, v{t}")
    e(f"s_cbranch_vccz {X}\ns_sleep {PSLEEP if sleep is None else sleep}\ns_branch {L}")
    A.label(X)
    e("s_mov_b64 exec, -1")

sRDY = 40
def flags_refresh(Q, soff, voff, x2, shift=None):
    if flags_refresh.pending and not Q.has("look"):
        if x2: e("v_and_b32 v14, v14, v15")
        if shift: e(f"v_lshrrev_b32 v14, v{shift}, v14")
        e(f"v_and_b32 v14, 1, v14\nv_cmp_ne_u32 vcc, 1, v14\ns_and_b64 {s(sRDY,2)}, {s(sRDY,2)}, vcc")
        flags_refresh.pending = False
    if not flags_refresh.pending:
        e(f"s_cmp_eq_u64 {s(sRDY,2)}, 0\ns_cselect_b32 s30, {WS_BYTES}, s{soff}")
        e(f"buffer_load_dwordx2 v[14:15], v{voff}, {s(SWS,4)}, s30 offen sc1" if x2 else f"buffer_load_dword v14, v{voff}, {s(SWS,4)}, s30 offen sc1")
        Q.add("look"); flags_refresh.pending = True
flags_refresh.pending = False
def need_flags(bits, soff, voff, x2, shift=None):
    L, X = A.newlabel("nf"), A.newlabel("nfx")
    lo, hi = bits & 0xffffffff, bits >> 32
    def test():
        if lo and hi: e(f"s_and_b32 s30, s{sRDY}, {hex(lo)}\ns_and_b32 s31, s{sRDY+1}, {hex(hi)}\ns_or_b32 s30, s30, s31")
        elif lo: e(f"s_and_b32 s30, s{sRDY}, {hex(lo)}")
        else: e(f"s_and_b32 s30, s{sRDY+1}, {hex(hi)}")
    test()
    e(f"s_cbranch_scc0 {X}")
    A.label(L)
    if x2: e(f"buffer_load_dwordx2 v[8:9], v{voff}, {s(SWS,4)}, s{soff} offen sc1\ns_waitcnt vmcnt(0)\nv_and_b32 v8, v8, v9")
    else: e(f"buffer_load_dword v8, v{voff}, {s(SWS,4)}, s{soff} offen sc1\ns_waitcnt vmcnt(0)")
    if shift: e(f"v_lshrrev_b32 v8, v{shift}, v8")
    e(f"v_and_b32 v8, 1, v8\nv_cmp_ne_u32 {s(sRDY,2)}, 1, v8\ns_add_u32 s{sCNT}, s{sCNT}, 1\ns_cmp_gt_u32 s{sCNT}, {SPIN_MAX}\ns_cbranch_scc1 {X}")
    test()
    e(f"s_cbranch_scc1 {L}")
    A.label(X)

def gate_k(G, k, x2):
    n0 = GATEN[G.name]
    if k == 0: need_flags(sum(0xf << (4 * G.korder[j]) for j in range(n0)), 32, 10, x2)
    elif k >= n0: need_flags(0xf << (4 * G.korder[k]), 32, 10, x2)
def spoll(srd_, soff, n16, mask, base=32):
    X = A.newlabel("spx")
    e("s_mov_b32 s31, -1")
    for k in range(2 * n16):
        e(f"s_add_u32 s30, {soff}, {32*k}\ns_buffer_load_dwordx8 {s(base,8)}, {s(srd_,4)}, s30\ns_waitcnt lgkmcnt(0)")
        for i in range(1, 4): e(f"s_and_b64 {s(base,2)}, {s(base,2)}, {s(base+2*i,2)}")
        e(f"s_and_b32 s31, s31, s{base}\ns_and_b32 s31, s31, s{base+1}")
    e(f"s_and_b32 s31, s31, {mask}\ns_cmp_eq_u32 s31, {mask}\ns_cbranch_scc1 {X}")
    poll(soff, 16 * n16, srd_=srd_, mask=mask, t=8, sleep=16)
    A.label(X)

def lds_wait(vaddr, need, vt, sleep=1, off=0):
    L = A.newlabel("lw"); X = A.newlabel("lwx")
    A.label(L)
    e(f"ds_read_b32 v{vt}, v{vaddr} offset:{off}\ns_waitcnt lgkmcnt(0)\nv_cmp_gt_u32 vcc, {need}, v{vt}\ns_cbranch_vccz {X}")
    if sleep: e(f"s_sleep {sleep}")
    e(f"s_add_u32 s3, s3, 1\ns_cmp_lt_u32 s3, {LSPIN_MAX}\ns_cbranch_scc1 {L}")
    A.label(X)
OFF_DONE, OFF_FULL, OFF_HD, OFF_EP = 0, 1024, 2048, 3072
def sync_regs():
    e(f"s_lshl_b32 s30, s{sW}, 8\ns_add_u32 s30, s30, {L_DONE}\nv_lshl_add_u32 v{vDW}, v1, 2, s30")
    e(f"v_and_b32 v{vFR}, 3, v1\nv_mul_u32_u24 v{vFR}, 260, v{vFR}\nv_add_u32 v{vFR}, {L_DONE}, v{vFR}")
def post(off, val, t=vFV):
    e(f"v_mov_b32 v{t}, {val}\nds_write_b32 v{vDW}, v{t} offset:{off}")
def wait_rows(off, need, sleep=1): lds_wait(vFR, need, vFV, sleep=sleep, off=off)

class Gemm:
    PA, PB, PH = 232, 236, 240
    def __init__(self, name, base, TM, TN, NK, NS, KBsrc, ldb, kperm, araw=False, NSB=None, bslot=None, RP=0, alay="rt"):
        self.alay = "raw" if araw else alay
        self.name, self.base, self.TM, self.TN, self.NK, self.NS = name, base, TM, TN, NK, NS
        self.KB, self.ldb, self.kperm, self.araw, self.RP = KBsrc, ldb, kperm, araw, RP
        self.NSB = NSB or NS
        self.MT, self.NT = TM // 32, TN // 32
        self.nfull, self.half = TN // 64, (TN % 64) != 0
        self.a_stage = TM * 128
        b0 = NS * self.a_stage
        self.b0 = b0
        self.b_base = [b0 + j * self.NSB * 8192 for j in range(self.nfull)]
        self.h_base = b0 + self.nfull * self.NSB * 8192
        self.b_sp, self.h_sp, self.b_bs = 8192, 4096, self.NSB * 8192
        if name == "w1" and BTAIL:
            self.b_base = [64 * KB + j * 8192 for j in range(3)]; self.h_base = 64 * KB + 3 * 8192
            self.b_sp = self.h_sp = 28 * KB; self.b_bs = 8192
        self.bslot = bslot or (lambda step: step % self.NSB)
        assert self.h_base + (self.NSB * 4096 if self.half else 0) <= MISC
        MT, NT = self.MT, self.NT
        self.FA = [8, 8 + 4 * MT + 4 * NT]
        self.FB = [self.FA[0] + 4 * MT, self.FA[1] + 4 * MT]
        nxt = self.FA[1] + 4 * MT + 4 * NT
        self.chain = name in CHAIN
        if self.chain:
            self.RA = [8, 8 + 8 * MT]; self.WB = 8 + 16 * MT
            nxt = self.WB + 24
        self.VA = nxt; nxt += 8 if self.alay == "bm" else 2
        self.VB = nxt; nxt += NT
        self.bhi = self.NSB * 8192 > 65536
        self.VB2 = nxt
        if self.bhi: nxt += NT
        nxt = (nxt + 3) // 4 * 4
        self.ACC = nxt; nxt += MT * NT * 4
        self.VX = nxt
        assert nxt <= vDW
        self.RTW = TM // 32
    def acc(self, mt, nt): return self.ACC + (nt * self.MT + mt) * 4
    def swapped(self, nt): return True
    def blk_delta(self, j): return 128 * j

    def c_setup(self):
        MT = self.MT
        if self.araw:
            e(f"""
s_lshl_b32 s30, s{sWM}, 13
v_lshl_add_u32 v5, v4, 7, s30
v_lshrrev_b32 v6, 1, v4
v_xor_b32 v6, v6, v3
v_lshl_add_u32 v{self.VA}, v6, 4, v5
v_xor_b32 v6, 4, v6
v_lshl_add_u32 v{self.VA+1}, v6, 4, v5
""")
        elif self.alay == "bm":
            for p in range(4):
                e(f"s_add_u32 s30, s{sKS}, {p}\ns_and_b32 s30, s30, 3\ns_lshl_b32 s30, s30, 11\ns_lshl_b32 s31, s{sWM}, 14\ns_add_u32 s30, s30, s31")
                e(f"v_lshl_add_u32 v{self.VA+p}, v1, 4, s30\nv_add_u32 v{self.VA+4+p}, 0x10000, v{self.VA+p}")
        else:
            e(f"s_mul_i32 s30, s{sWM}, {MT*2048}\nv_lshl_add_u32 v{self.VA}, v1, 4, s30\nv_add_u32 v{self.VA+1}, 0x10000, v{self.VA}")
        e("v_bfe_u32 v5, v1, 2, 2\nv_and_b32 v6, 3, v1")
        if self.kperm: e("v_lshl_add_u32 v7, v3, 2, v5\nv_bfe_u32 v2, v7, 1, 2")
        else: e("v_lshl_add_u32 v7, v3, 3, v5\nv_lshrrev_b32 v2, 1, v5\nv_and_b32 v8, 1, v3\nv_lshl_or_b32 v2, v8, 1, v2")
        e("v_mov_b32 v9, v7\nv_lshlrev_b32 v7, 7, v7\nv_lshl_add_u32 v7, v6, 3, v7")
        for t, (kind, blk, seg) in enumerate(self.tiles()):
            vb = self.VB + t
            if kind == "F":
                e(f"s_mul_i32 s30, s{sWN}, {seg[1]}\ns_add_u32 s30, s30, {seg[0]}")
                e(f"v_xor_b32 v8, s30, v2\nv_lshl_add_u32 v{vb}, v8, 5, v7")
                e(f"s_mul_i32 s30, s{sWN}, {blk[1]*self.b_bs}\ns_add_u32 s30, s30, {self.b_base[0] + blk[0]*self.b_bs}")
                e(f"v_add_u32 v{vb}, s30, v{vb}")
            else:
                e(f"v_bfe_u32 v8, v9, 2, 1\nv_xor_b32 v8, s{sWN}, v8\nv_lshlrev_b32 v8, 5, v8")
                e(f"v_lshl_add_u32 v8, v9, 6, v8\nv_lshl_add_u32 v8, v6, 3, v8\nv_add_u32 v{vb}, {self.h_base}, v8")
            if self.bhi: e(f"v_add_u32 v{self.VB2+t}, 0x10000, v{vb}")
        if not self.czero():
            for r in range(self.ACC, self.ACC + self.MT * self.NT * 4, 2): e(f"v_mov_b64 {v(r,2)}, 0")
    def b_read(self, step, sub, t, dst):
        kind = self.tiles()[t][0]; sb = self.bslot(step); out = []
        for hi in range(2):
            rows = 32 * sub + (16 if self.kperm else 4) * hi
            off = sb * self.b_sp + rows * 128 if kind == "F" else sb * self.h_sp + rows * 64
            base = self.VB + t
            if off > 0xffff: base, off = self.VB2 + t, off - 0x10000
            out.append(f"ds_read_b64_tr_b16 {v(dst+2*hi,2)}, v{base} offset:{off}")
        return out
    def a_read(self, step, sub, mt, dst):
        sa = step % self.NS
        if self.araw: base, off = self.VA + sub, sa * self.a_stage + mt * 2048
        elif self.alay == "bm":
            off = sa * self.a_stage + sub * 8192 + (mt & 1) * 1024
            base = self.VA + (mt >> 1) + 4 * (off >> 16); off &= 0xffff
        else:
            off = sa * self.a_stage + mt * 2048 + sub * 1024
            base = self.VA + (off >> 16); off &= 0xffff
        return f"ds_read_b128 {v(dst,4)}, v{base} offset:{off}"
    def reads(self, step, sub, fs):
        out = []
        for t in range(self.NT):
            out += self.b_read(step, sub, t, self.FB[fs] + 4 * t)
            if t == 0: out += [self.a_read(step, sub, mt, self.FA[fs] + 4 * mt) for mt in range(self.MT)]
        return out
    def czero(self): return self.chain or self.NSB != self.NS or (self.NK - 1) % self.NS != 0
    def mfmas(self, fs, zero=False):
        out = []
        for t in range(self.NT):
            for mt in (range(self.MT) if t % 2 == 0 else reversed(range(self.MT))):
                a, w, c = v(self.FA[fs] + 4 * mt, 4), v(self.FB[fs] + 4 * t, 4), v(self.acc(mt, t), 4)
                ci = "0" if zero else c
                out.append(f"v_mfma_f32_16x16x32_bf16 {c}, {w}, {a}, {ci}" if self.swapped(t) else
                           f"v_mfma_f32_16x16x32_bf16 {c}, {a}, {w}, {ci}")
        if NOMFMA: out = ["s_nop 0"] * len(out)
        return out
    def c_loop(self, ST, pre_last=None, last_fill=(), nsteps=None, after_go=None):
        NS, NK, n = self.NS, nsteps or self.NK, self.name
        def inter(m, r, extra=()):
            extra = list(extra); per = -(-len(extra) // len(m)) if extra else 0
            span = max(int(len(m) * RSP), 1) if RSP else len(r)
            pos = [min(len(m) - 1, (i * span) // len(r)) for i in range(len(r))]
            for i in range(len(m)):
                e(m[i])
                for j, p in enumerate(pos):
                    if p == i: e(r[j])
                for x in extra[i * per:(i + 1) * per]: e(x)
        def captured(f):
            saved = A.lines; A.lines = []
            if f: f()
            out = [ln for ln in A.lines if ln.strip()]; A.lines = saved
            return out
        def step(k, last=False):
            e("s_waitcnt lgkmcnt(0)")
            inter(self.mfmas(0, k == 0 and self.czero()), self.reads(k, 1, 1), captured(pre_last) if last else ())
            e("s_waitcnt lgkmcnt(0)\ns_barrier")
            inter(self.mfmas(1), list(last_fill) if last else self.reads(k + 1, 0, 0))
        if self.chain:
            return self.c_chain(ST, captured(pre_last), list(last_fill), after_go)
        e("s_barrier")
        ST(n + "_go")
        for r in self.reads(0, 0, 0): e(r)
        if after_go: after_go()
        body = NK - 1
        if self.NSB != NS:
            for k in range(body): step(k)
        else:
            k = 0
            for i in range(body % NS):
                step(k); k += 1
            e(f"s_mov_b32 s{sCNT}, {body // NS}")
            A.label(f"{n}_cloop")
            for i in range(NS):
                step(k); k += 1
            e(f"s_sub_u32 s{sCNT}, s{sCNT}, 1\ns_cmp_lg_u32 s{sCNT}, 0\ns_cbranch_scc1 {n}_cloop")
        step(NK - 1, last=True)
        if not nsteps: ST(n + "_end")

    def free_set(self): return self.RA[self.NK & 1]
    def c_chain(self, ST, pre_last, last_fill, after_go):
        MT, NT, NK = self.MT, self.NT, self.NK
        q = []
        def rd(tag, ins):
            e(ins); q.append(tag)
        def wait(tag):
            if tag in q:
                k_ = min(len(q) - 1 - max(i for i, t in enumerate(q) if t == tag), 14)
                e(f"s_waitcnt lgkmcnt({k_})"); del q[:len(q) - k_]
        slot = lambda k, t: self.WB + 8 * ((k * NT + t) % 3)
        wr = lambda k, t: [(("W", k, t), x) for sub in range(2) for x in self.b_read(k, sub, t, slot(k, t) + 4 * sub)]
        rr = lambda k, m: [(("R", k, m), self.a_read(k, sub, m, self.RA[k & 1] + 8 * m + 4 * sub)) for sub in range(2)]
        e("s_barrier")
        ST(self.name + "_go")
        for x in wr(0, 0) + [y for m in range(MT) for y in rr(0, m)] + wr(0, 1): rd(*x)
        if after_go: after_go()
        for k in range(NK):
            last = k == NK - 1
            for t in range(NT):
                side = []
                if t + 2 < NT: side = wr(k, t + 2)
                if t == NT - 2:
                    e("s_waitcnt lgkmcnt(0)\ns_barrier"); q.clear()
                if t >= NT - 2:
                    h = t - (NT - 2)
                    if last:
                        n2 = (len(last_fill) + 1) // 2
                        side = [("F", x) for x in last_fill[h * n2:(h + 1) * n2]]
                    else:
                        mo = list(range(MT))
                        side = (wr(k + 1, 0) + rr(k + 1, 0) + rr(k + 1, 1)) if h == 0 else (rr(k + 1, 2) + rr(k + 1, 3) + wr(k + 1, 1))
                extra = []
                if last and t < NT - 2:
                    per = -(-len(pre_last) // (NT - 2)); extra = pre_last[t * per:(t + 1) * per]
                wait(("W", k, t))
                order = range(MT) if t % 2 == 0 else reversed(range(MT))
                i = 0; nm = 2 * MT
                for m in order:
                    wait(("R", k, m))
                    for sub in range(2):
                        a, w, c = v(self.RA[k & 1] + 8 * m + 4 * sub, 4), v(slot(k, t) + 4 * sub, 4), v(self.acc(m, t), 4)
                        ci = "0" if k == 0 and sub == 0 else c
                        e(f"v_mfma_f32_16x16x32_bf16 {c}, {w}, {a}, {ci}" if self.swapped(t) else f"v_mfma_f32_16x16x32_bf16 {c}, {a}, {w}, {ci}")
                        ps = -(-len(side) // nm)
                        for x in side[i * ps:(i + 1) * ps]: rd(*x)
                        pe = -(-len(extra) // nm)
                        for x in extra[i * pe:(i + 1) * pe]: e(x)
                        i += 1
        ST(self.name + "_end")

    def p_setup_b(self, w=sW):
        ldb, PB = self.ldb, self.PB
        e(f"""
s_lshl_b32 s{sM0B}, s{w}, 12
s_lshl_b32 s{sM0H}, s{w}, 11
v_lshrrev_b32 v246, 3, v1
s_lshl_b32 s30, s{w}, 5
v_add_u32 v246, s30, v246
v_mul_u32_u24 v246, {ldb}, v246
v_and_b32 v247, 1, v1
v_lshl_add_u32 v246, v247, 4, v246
v_add_u32 v246, s{sBC}, v246
v_bfe_u32 v247, v1, 1, 2
""")
        if self.kperm:
            e(f"v_xor_b32 v245, v247, v3\nv_lshl_add_u32 v{PB}, v245, 5, v246\nv_add_u32 v{PB+1}, {8*ldb-1024}, v{PB}")
        else:
            e(f"v_and_b32 v245, 1, v3\nv_xor_b32 v245, v247, v245\nv_lshl_add_u32 v{PB}, v245, 5, v246")
            e(f"v_xor_b32 v245, 2, v245\nv_lshl_add_u32 v{PB+1}, v245, 5, v246\nv_add_u32 v{PB+1}, {8*ldb-1024}, v{PB+1}")
        e(f"v_add_u32 v{PB+2}, {16*ldb-2048}, v{PB}\nv_add_u32 v{PB+3}, {16*ldb-2048}, v{PB+1}")
        if self.half:
            e(f"""
v_lshrrev_b32 v246, 2, v1
v_add_u32 v246, s30, v246
v_mul_u32_u24 v246, {ldb}, v246
v_and_b32 v247, 1, v1
v_lshl_add_u32 v246, v247, 4, v246
v_add_u32 v246, s{sBH}, v246
v_bfe_u32 v247, v1, 1, 1
v_and_b32 v245, 1, v3
v_xor_b32 v245, v247, v245
v_lshl_add_u32 v{self.PH}, v245, 5, v246
v_add_u32 v{self.PH+1}, {16*ldb-1024}, v{self.PH}
""")
    def p_setup_a(self):
        PA = self.PA
        if self.araw:
            e(f"""
s_lshl_b32 s{sM0A}, s{sW}, 13
v_lshrrev_b32 v246, 3, v1
s_lshl_b32 s30, s{sW}, 6
v_add_u32 v246, s30, v246
v_lshlrev_b32 v246, 11, v246
v_and_b32 v247, 7, v1
v_xor_b32 v247, v247, v3
v_lshl_add_u32 v{PA}, v247, 4, v246
v_xor_b32 v247, 4, v247
v_lshl_add_u32 v{PA+1}, v247, 4, v246
v_add_u32 v{PA+1}, {8*2048-1024}, v{PA+1}
v_add_u32 v{PA+2}, {16*2048-2048}, v{PA}
v_add_u32 v{PA+3}, {16*2048-2048}, v{PA+1}
""")
        else:
            e(f"s_mul_i32 s{sM0A}, s{sW}, {self.RTW*2048}\ns_mul_i32 s30, s{sW}, {self.RTW*self.KB*1024}\nv_lshl_add_u32 v{PA}, v1, 4, s30")
            e(f"v_add_u32 v{PA+1}, {self.KB*1024-2048}, v{PA}")
    astride = 2048
    rot = True
    arot = True
    korder = list(range(16))
    def kbase(self, dst, base, step, stride):
        e(f"s_add_u32 s{dst}, s{base}, {self.korder[step] * stride}")
    def a_src(self, i, step): e(f"s_add_u32 s31, s{sAK}, {2*i*self.KB*1024}")
    def groups_a(self, step):
        st = step % self.NS
        out = []
        for gi in range(self.RTW // 2):
            def fn(gi=gi):
                if gi == 0 and self.arot: self.kbase(sAK, sAR, step, 128 if self.araw else self.astride)
                e(f"s_add_u32 m0, s{sM0A}, {st*self.a_stage + gi*4096}")
                if self.araw:
                    e(f"s_add_u32 s31, s{sAK}, {gi*32*2048}")
                    for i in range(4): e(f"buffer_load_dwordx4 v{self.PA+i}, {s(SX,4)}, s31 offen offset:{i*1024} lds")
                else:
                    self.a_src(gi, step)
                    for i in range(4): e(f"buffer_load_dwordx4 v{self.PA+(i>>1)}, {s(SWS,4)}, s31 offen offset:{i*1024} sc1 lds")
            out.append((step, 4, fn))
        return out
    def b_parts(self, step):
        sb = self.bslot(step); ko = 0 if self.rot else step * 64 * self.ldb
        out = [(sM0B, self.b_base[j] + sb * self.b_sp, ko + self.blk_delta(j), self.PB, 4) for j in range(self.nfull)]
        if self.half: out.append((sM0H, self.h_base + sb * self.h_sp, ko, self.PH, 2))
        return out
    def groups_b(self, step):
        out = []
        for idx, (m0s, lc, sc, vb, n) in enumerate(self.b_parts(step)):
            def fn(m0s=m0s, lc=lc, sc=sc, vb=vb, n=n, idx=idx):
                if idx == 0 and self.rot: self.kbase(sBK, sBR, step, 64 * self.ldb)
                e(f"s_add_u32 m0, s{m0s}, {lc}\ns_add_u32 s31, s{sBK if self.rot else sBR}, {sc}")
                for i in range(n): e(f"buffer_load_dwordx4 v{vb+i}, {s(SB,4)}, s31 offen offset:{i*1024} {'nt' if self.name == 'qkv' and step < 2 * NTK else ''} lds")
            out.append((step, n, fn))
        return out
    def issue_b(self, Q, step):
        for tag, n, fn in self.groups_b(step):
            fn(); Q.add(tag, n)
    def p_loop(self, Q, ST, b_pre, npf=0, every=1, gate=None, tail=None, look=None, merge=False):
        NS, NK, NSB = self.NS, self.NK, self.NSB
        def iss(g):
            for tag, n, fn in g:
                fn(); Q.add(tag, n)
        ga = lambda k: ([(k, 0, lambda: gate(k))] if gate else []) + self.groups_a(k)
        def gr(k):
            kb = k - NS + NSB
            return (self.groups_b(kb) if b_pre <= kb < NK else []) + ga(k)
        first = lambda k: (self.groups_b(k) if k >= b_pre else []) + ga(k)
        if gate: e(f"s_mov_b64 {s(sRDY,2)}, -1\ns_mov_b32 s{sCNT}, 0")
        flags_refresh.pending = False
        iss(first(0))
        if gate: ST(self.name + "_seen")
        if BSEEN and self.name == "w1": post(OFF_FULL, 1)
        g1 = first(1)
        P1G_ = (99 if GATEN.get(self.name, 2) > 1 else 0) if gate else P1G
        iss(g1[:P1G_])
        for i in range(NK):
            if merge and i == NK - 2:
                Q.wait(NK - 1); e("s_barrier"); return
            Q.wait(i)
            if self.name == DST and i in DW: ST(f"w{i}")
            e("s_barrier")
            if self.name == DST and i in DB: ST(f"b{i}")
            if look and (ASYNC or self.name == 'w2') and i in look[0]: flags_refresh(Q, *look[1])
            if i == 0:
                iss(g1[P1G_:])
                for k in range(2, NS): iss(first(k))
            elif i - 1 + NS < NK: iss(gr(i - 1 + NS))
            if tail and i - 1 + NS == NK - 1 + TAILD: tail()
            if (self.name == "qkv" and i == 0) or (CWARM > 1 and i == NK - 2): code_warm()
            if npf and (PFD0 if self.name == 'qkv' else 1) <= i < NK - 2 and i % every == 0: pf_step(npf + (1 if self.name == 'w1' and i % 3 != 0 else 0))
        e("s_barrier")
        ST(self.name + "_dend")

    def rp_regs(self, i, r0): return r0 + i * (16 * self.nfull + (8 if self.half else 0))
    def rp_load(self, Q, n, r0):
        for i in range(n):
            r = self.rp_regs(i, r0)
            for idx, (m0s, lc, sc, vb, k_) in enumerate(self.b_parts(self.NS + i)):
                if idx == 0: self.kbase(sBK, sBR, self.NS + i, 64 * self.ldb)
                e(f"s_add_u32 s31, s{sBK}, {sc}")
                for k in range(k_):
                    e(f"buffer_load_dwordx4 {v(r,4)}, v{vb+k}, {s(SB,4)}, s31 offen offset:{k*1024}"); r += 4
                Q.add(("rp", i), k_)
            assert r <= 232
    def rp_addr(self):
        b0 = self.b_base[0]
        e(f"v_lshlrev_b32 v245, 4, v1\nv_add_u32 v246, s{sM0H}, v245\nv_add_u32 v245, s{sM0B}, v245\nv_add_u32 v245, {b0}, v245\nv_add_u32 v247, 0x10000, v245\nv_add_u32 v246, {self.h_base}, v246")
    def rp_drain(self, Q, i, r0):
        Q.wait(("rp", i))
        r = self.rp_regs(i, r0)
        for m0s, lc, sc, vb, k_ in self.b_parts(self.NS + i):
            for k in range(k_):
                if m0s == sM0B:
                    off = lc - self.b_base[0] + k * 1024; a = 245
                    if off > 0xffff: off -= 0x10000; a = 247
                else: off = lc - self.h_base + k * 1024; a = 246
                e(f"ds_write_b128 v{a}, {v(r,4)} offset:{off}"); r += 4
        e("s_waitcnt lgkmcnt(0)")

class QKV(Gemm):
    def __init__(self): super().__init__("qkv", 0, 128, 192, 16, NS1, 32, 6144, False, araw=True)
    def tiles(self): return [("F", (t >> 1, 0), (t & 1, 2)) for t in range(6)]
    def swapped(self, nt): return nt < 4
    def blk_delta(self, j): return 2048 * j
class WO(Gemm):
    def __init__(self): super().__init__("wo", 16, 128, 64, 16, 4, 32, 2048, True, NSB=NSB3, bslot=lambda k: (k + 5) % NSB3)
    def tiles(self): return [("F", (0, 0), (t, 2)) for t in range(2)]
    def p_setup_a(self):
        e(f"s_lshl_b32 s{sM0A}, s{sW}, 13\nv_lshl_add_u32 v{self.PA}, v1, 4, s{sM0A}\nv_mov_b32 v{self.PA+1}, v{self.PA}")
        e(f"s_lshl_b32 s{sAR}, s{sRB}, 16\ns_add_u32 s{sAR}, s{sAR}, {WS_AR + AR_O}")
    astride = MB
    korder = [k for k in range(16) if k % 8 != 3] + [3, 11] if KORD else list(range(16))
    def a_src(self, i, step): e(f"s_add_u32 s31, s{sAK}, {i*4096}")
class W1(Gemm):
    def __init__(self): super().__init__("w1", 32, 128, 224, 16, 3, 32, 7168, True)
    korder = list(range(0, 16, 2)) + list(range(1, 16, 2)) if KORD and not LFIRST else list(range(16))
    def kbase(self, dst, base, step, stride):
        if not LFIRST: return super().kbase(dst, base, step, stride)
        if dst == sAK and step < 4: base = sKS
        e(f"s_add_u32 s{dst}, s{sROT}, {step}\ns_and_b32 s{dst}, s{dst}, 15\ns_mul_i32 s{dst}, s{dst}, {stride}\ns_add_u32 s{dst}, s{dst}, s{base}")
    def tiles(self): return [("F", (0, 2), (t, 0)) for t in range(4)] + [("F", (1, 0), (t, 2)) for t in range(2)] + [("H", None, None)]
class W2(Gemm):
    def __init__(self): super().__init__("w2", 48, 256, 128, 14, 3, 112, 2048, True, alay="bm")
    arot = False
    def tiles(self): return [("F", (0, 1), (t, 0)) for t in range(4)]
    def p_setup_a(self):
        e(f"s_lshl_b32 s{sM0A}, s{sW}, 14\nv_lshlrev_b32 v{self.PA}, 4, v1\nv_mov_b32 v{self.PA+1}, v{self.PA}")
        h1_base(sAR)
        e(f"s_lshl_b32 s30, s{sG}, 5\ns_bfe_u32 s31, s{sRB}, 0x20001\ns_add_u32 s30, s30, s31\ns_lshl_b32 s31, s{sW}, 4\ns_add_u32 s30, s30, s31\ns_lshl_b32 s30, s30, 16\ns_add_u32 s{sAR}, s{sAR}, s30")
    def blocks(self):
        if not EARLY5: return [(q // 7, q % 7, 1) for q in range(28)]
        early = [(c, (c & 1) + k, 1) for c in range(4) for k in (0, 4, 1, 5)]
        late = [(c, kb, 2) for c in range(4) for kb in range(7) if (c, kb, 1) not in early]
        return early + late
    def a_src(self, i, step):
        c, kb, _ = self.blocks()[2 * step + (i >> 1)]
        e(f"s_add_u32 s31, s{sAR}, {c*256*KB + kb*8192 + (i&1)*4096}")
    def kbase(self, dst, base, step, stride):
        o = [(c * 7 + kb) * 32 * self.ldb for c, kb, _ in self.blocks()[2 * step:2 * step + 2]]
        e(f"s_mul_i32 s{dst}, s{sWN}, {o[1] - o[0] - 32*self.ldb}\ns_add_u32 s{dst}, s{dst}, {o[0]}\ns_add_u32 s{dst}, s{dst}, s{base}")
G1, G3, G4, G5 = QKV(), WO(), W1(), W2()
_pf = opt("pfs", "X,Pk,X").split(",")
PFS = [(_pf[0][0], _pf[0][1:], pWO, 2 * MB, True, 249), (_pf[1][0], _pf[1][1:], pW1, 1024 * 7168, False, 248), (_pf[2][0], _pf[2][1:], pW2, 3584 * 2048, False, 250)]
L_K, L_V, L_Q = 0, 48 * KB, 96 * KB

def own_arena(dst, add=0):
    e(f"s_add_u32 s{dst}, s{sOWN}, {WS_AR + add}")
def h1_base(dst):
    e(f"s_cmp_lg_u32 s{sMODE}, 0\ns_cselect_b32 s{dst}, {WS_AR2}, {WS_AR if ALIAS else WS_AR2}")
def rowmajor_voff(dst, t):
    e(f"v_and_b32 v{t}, 1, v3\nv_lshlrev_b32 v{t}, 1, v{t}\nv_lshrrev_b32 v{dst}, 1, v3\nv_or_b32 v{t}, v{t}, v{dst}")
    e(f"v_lshlrev_b32 v{t}, 4, v{t}\nv_lshl_add_u32 v{dst}, v4, 11, v{t}")
def roles_84(rb=sRB, cb=sCB):
    e(f"s_and_b32 s{rb}, s{sG}, 1\ns_lshl_b32 s{rb}, s{rb}, 3\ns_and_b32 s30, s{sR}, 7\ns_add_u32 s{rb}, s{rb}, s30")
    e(f"s_lshr_b32 s{cb}, s{sG}, 1\ns_lshl_b32 s{cb}, s{cb}, 2\ns_lshr_b32 s30, s{sR}, 3\ns_add_u32 s{cb}, s{cb}, s30")
def roles_p1(rb=sRB, cb=sCB):
    if MAP1 == 84: return roles_84(rb, cb)
    e(f"s_lshr_b32 s{rb}, s{sR}, 1\ns_and_b32 s30, s{sR}, 1\ns_lshl_b32 s{cb}, s{sG}, 1\ns_add_u32 s{cb}, s{cb}, s30")
def roles_48(rb=sRB, cb=sCB):
    if LFIRST: return roles_84(rb, cb)
    if not KORD:
        e(f"s_and_b32 s{rb}, s{sG}, 3\ns_lshl_b32 s{rb}, s{rb}, 2\ns_and_b32 s30, s{sR}, 3\ns_add_u32 s{rb}, s{rb}, s30")
        e(f"s_lshr_b32 s{cb}, s{sG}, 2\ns_lshl_b32 s{cb}, s{cb}, 3\ns_lshr_b32 s30, s{sR}, 2\ns_add_u32 s{cb}, s{cb}, s30")
        return
    e(f"s_and_b32 s{rb}, s{sG}, 3\ns_lshl_b32 s{rb}, s{rb}, 2\ns_bfe_u32 s30, s{sR}, 0x20001\ns_add_u32 s{rb}, s{rb}, s30")
    e(f"s_lshr_b32 s{cb}, s{sG}, 2\ns_lshl_b32 s{cb}, s{cb}, 2\ns_lshr_b32 s30, s{sR}, 3\ns_add_u32 s{cb}, s{cb}, s30\ns_lshl_b32 s{cb}, s{cb}, 1\ns_and_b32 s30, s{sR}, 1\ns_add_u32 s{cb}, s{cb}, s30")
def roles_w2(rb=sRB, cb=sCB, ks=sKS):
    e(f"s_and_b32 s{rb}, s{sG}, 1\ns_lshl_b32 s{rb}, s{rb}, 2\ns_and_b32 s30, s{sR}, 3\ns_add_u32 s{rb}, s{rb}, s30\ns_lshl_b32 s{rb}, s{rb}, 1")
    e(f"s_lshr_b32 s{cb}, s{sR}, 2\ns_lshr_b32 s{ks}, s{sG}, 1")
def b_src_wo(cb=sCB):
    srd(SB, pWO, 2 * MB); e(f"s_lshl_b32 s{sBC}, s{cb}, 7\ns_mov_b32 s{sBR}, 0\ns_lshl_b32 s{sROT}, s{cb}, 1\ns_and_b32 s{sROT}, s{sROT}, {15 if ROT3 else 0}")
def b_src_w1():
    srd(SB, pW1, 1024 * 7168)
    e(f"""
s_mul_i32 s{sBH}, s{sCB}, 448
s_and_b32 s30, s{sCB}, 1
s_lshl_b32 s{sBC}, s30, 6
s_add_u32 s{sBC}, s{sBC}, s{sBH}
s_xor_b32 s30, s30, 1
s_mul_i32 s30, s30, 384
s_add_u32 s{sBH}, s{sBH}, s30
s_mov_b32 s{sBR}, 0
s_and_b32 s{sROT}, s{sCB}, 12
""")
def b_src_w2():
    srd(SB, pW2, 3584 * 2048); e(f"s_lshl_b32 s{sBC}, s{sCB}, 8\ns_mul_i32 s{sBR}, s{sKS}, {G5.NK*64*2048}")
def flag_addr(dst, base, hi, lo, nw, wave):
    e(f"s_lshl_b32 s{dst}, s{hi}, 4\ns_add_u32 s{dst}, s{dst}, s{lo}\ns_mul_i32 s{dst}, s{dst}, {nw}")
    if wave is not None: e(f"s_add_u32 s{dst}, s{dst}, s{wave}")
    e(f"s_lshl_b32 s{dst}, s{dst}, 2\ns_add_u32 s{dst}, s{dst}, {base}")
WS_F4P = 42 * MB + 128 * KB
def f4_addr(dst, rb, cb, wave):
    e(f"s_lshl_b32 s{dst}, s{rb}, 2\ns_lshr_b32 s30, s{cb}, 2\ns_add_u32 s{dst}, s{dst}, s30\ns_lshl_b32 s{dst}, s{dst}, 3\ns_and_b32 s30, s{cb}, 3\ns_add_u32 s{dst}, s{dst}, s30\ns_lshl_b32 s{dst}, s{dst}, 2")
    if wave is not None: e(f"s_add_u32 s{dst}, s{dst}, s{wave}")
    e(f"s_lshl_b32 s{dst}, s{dst}, 2\ns_add_u32 s{dst}, s{dst}, {WS_F4P}")
def dual(fn, sreg):
    S, X = A.newlabel("slowst"), A.newlabel("stx")
    e(f"s_cmp_lg_u32 s{sreg}, 0\ns_cbranch_scc1 {S}")
    fn(LFL)
    e(f"s_branch {X}")
    A.label(S)
    fn("sc1")
    A.label(X)

def attn_setup():
    e(f"v_lshlrev_b32 v5, 2, v3\nv_mov_b32 v6, {f32(-1e30)}")
    for k in range(4):
        e(f"v_add_u32 v7, {k}, v5\nv_cmp_gt_u32 vcc, v7, v4\nv_cndmask_b32 v{56+k}, v6, 0, vcc\nv_cndmask_b32 v{60+k}, 0, v6, vcc".replace("v_cndmask_b32 v%d, v6, 0, vcc" % (56 + k), "v_cndmask_b32_e64 v%d, v6, 0, vcc" % (56 + k)))
    e(f"""
s_lshl_b32 s36, s{sRB}, 2
s_add_u32 s36, s36, s38
s_sub_i32 s36, 8, s36
s_max_i32 s36, s36, 0
s_mul_i32 s37, s{sWN}, 24
s_lshl_b32 s39, s38, 1
s_add_u32 s37, s37, s39
s_lshl_b32 s37, s37, 10
v_lshl_add_u32 v5, v1, 4, s37
v_add_u32 v7, {L_V}, v5
""")
    own_arena(34, AR_O)
    e(f"s_lshl_b32 s35, s38, 12\ns_add_u32 s34, s34, s35\ns_lshl_b32 s35, s{sWN}, 10\ns_add_u32 s34, s34, s35\ns_add_u32 s35, s34, 2048")
    flag_addr(33, WS_F2, sRB, sCB, 8, sWAVE)

def attention(ST, is_p, Q=None):
    n = "attp" if is_p else "attc"
    S = 64; KF = 24; VF = 24; O = 208; MX = 232
    def sr(qt, u): return S + (qt * 18 + u) * 4
    dead = lambda qt, u: (qt == 0 and u == 17) or (qt == 1 and u == 0)
    def PF(pos):
        for role, at, ptr, nbytes, rev, dst in PFS:
            if role == ("P" if is_p else "C") and at == pos:
                srd(SB, ptr, nbytes)
                e(f"s_xor_b32 s30, s2, {255 if rev else 0}\ns_lshl_b32 s30, s30, 2\ns_add_u32 s30, s30, s{sW}\ns_lshl_b32 s30, s30, 13\nv_lshlrev_b32 v251, 7, v1")
                e(f"buffer_load_dword v{dst}, v251, {s(SB,4)}, s30 offen")
                if is_p: Q.add("pf")
    PF("nb")
    if is_p: Q.wait("nk")
    e("s_waitcnt lgkmcnt(0)\ns_barrier")
    if is_p:
        e(f"s_lshl_b32 s30, s{sW}, 11\ns_add_u32 s30, s30, {L_Q}\nv_lshl_add_u32 v2, v1, 4, s30\nds_read_b128 v[8:11], v2\nds_read_b128 v[12:15], v2 offset:1024")
    ST("att_k")
    if is_p and attention.vl: attention.vl()
    PF("k")
    for u in range(8): e(f"ds_read_b128 {v(KF+4*u,4)}, v5 offset:{L_K + u*1024}")
    for k in range(4): e(f"v_mov_b32 v{16+k}, 0x3f803f80")
    for k in range(4): e(f"v_mov_b32 v{MX+k}, v6")
    for r in range(O, O + 24, 2): e(f"v_mov_b64 {v(r,2)}, 0")
    def s_phase(generic):
        pend = []
        def maxes(k):
            for _ in range(k):
                if pend: e(pend.pop(0))
        for u in range(18):
            issued = min(18, u + 8)
            e(f"s_waitcnt lgkmcnt({issued - (u+1)})")
            if generic and u % 2 == 0 and u < 16:
                e(f"s_cmp_gt_u32 s36, {u//2}\ns_cselect_b32 s30, {f32(-1e30)}, 0")
                for k in range(4): e(f"v_mov_b32 v{20+k}, s30")
            for qt in range(2):
                if dead(qt, u): continue
                c = "v[56:59]" if u == qt else "v[60:63]" if u == 16 + qt else "0"
                if generic and u < 16: c = "v[20:23]"
                e(f"v_mfma_f32_16x16x32_bf16 {v(sr(qt,u),4)}, {v(KF+4*(u%8),4)}, {v(8+4*qt,4)}, {c}")
                if len(pend) >= 8: maxes(2)
                r = sr(qt, u)
                pend.append(f"v_max3_f32 v{MX+2*qt}, v{r}, v{r+1}, v{MX+2*qt}")
                pend.append(f"v_max3_f32 v{MX+2*qt+1}, v{r+2}, v{r+3}, v{MX+2*qt+1}")
            if u + 8 < 18: e(f"ds_read_b128 {v(KF+4*(u%8),4)}, v5 offset:{L_K + (u+8)*1024}")
        maxes(99)
    Lg, Lx = A.newlabel("sgen"), A.newlabel("sx")
    e(f"s_cmp_lg_u32 s36, 0\ns_cbranch_scc1 {Lg}")
    s_phase(False)
    e(f"s_branch {Lx}")
    A.label(Lg)
    s_phase(True)
    A.label(Lx)
    CB = VBARP if is_p else VBAR
    vs = {"iss": 0, "pv": 0}
    def v_issue(upto):
        while vs["iss"] < min(18, upto):
            b = vs["iss"]; e(f"ds_read_b128 {v(VF+4*(b%8),4)}, v7 offset:{b*1024}"); vs["iss"] += 1
    def v_bar():
        if is_p: Q.wait("nv")
        e("s_barrier")
        ST("att_v")
        PF("v")
        v_issue(8)
    CSC = (32 ** -0.5) * LOG2E
    e(f"s_mov_b32 s{sC0}, {f32(CSC)}\ns_mov_b32 s{sC0+1}, {f32(CSC)}")
    if CB == 0: v_bar()
    e(f"v_max_f32 v{MX}, v{MX}, v{MX+1}\nv_max_f32 v{MX+2}, v{MX+2}, v{MX+3}")
    xg_multi("v_max_f32", [MX, MX + 2], [MX + 1, MX + 3])
    e(f"v_mul_f32 v{MX}, {f32(-CSC)}, v{MX}\nv_mul_f32 v{MX+2}, {f32(-CSC)}, v{MX+2}")
    def pv(p):
        out = []
        for qt in range(2):
            P = v(sr(qt, 2 * p), 4)
            for dt in range(2):
                o = v(O + 12 * qt + 4 * dt, 4)
                out.append(f"v_mfma_f32_16x16x32_bf16 {o}, {v(VF+4*((2*p+dt)%8),4)}, {P}, {o}")
            o = v(O + 12 * qt + 8, 4)
            out.append(f"v_mfma_f32_16x16x32_bf16 {o}, v[16:19], {P}, {o}")
        return out
    for p in range(10):
        va = []
        if p < 9:
            live = [(qt, u) for qt in range(2) for u in (2 * p, 2 * p + 1) if not dead(qt, u)]
            for qt, u in live:
                r = sr(qt, u)
                if APK:
                    for h in range(2): va.append(f"v_pk_fma_f32 {v(r+2*h,2)}, {v(r+2*h,2)}, {s(sC0,2)}, {v(MX+2*qt,2)} op_sel_hi:[1,1,0]")
                else:
                    for k in range(4): va.append(f"v_fma_f32 v{r+k}, v{r+k}, s{sC0}, v{MX+2*qt}")
            for qt, u in live:
                for k in range(4): va.append(f"v_exp_f32 v{sr(qt,u)+k}, v{sr(qt,u)+k}")
            for qt, u in live:
                r = sr(qt, u); dst = sr(qt, 2 * p) + 2 * (u & 1)
                va.append(f"v_cvt_pk_bf16_f32 v{dst}, v{r}, v{r+1}"); va.append(f"v_cvt_pk_bf16_f32 v{dst+1}, v{r+2}, v{r+3}")
            if AMIX:
                nf = 2 if APK else 4; n_ = len(live)
                F = [va[i*nf:(i+1)*nf] for i in range(n_)]; E = [va[n_*nf+i*4:n_*nf+(i+1)*4] for i in range(n_)]; C_ = [va[n_*(nf+4)+i*2:n_*(nf+4)+(i+1)*2] for i in range(n_)]
                va = list(F[0])
                for i in range(n_):
                    other = (F[i+1] if i + 1 < n_ else []) + (C_[i-1] if i else [])
                    for k in range(4):
                        va.append(E[i][k]); va += other[k*len(other)//4:(k+1)*len(other)//4]
                va += C_[-1]
            if p == 8: va.append(f"v_mov_b64 {v(sr(0,16)+2,2)}, 0")
            if p == 0: va.append(f"v_mov_b64 {v(sr(1,0),2)}, 0")
        if CB and p == CB: v_bar()
        mm = []
        if p > CB:
            take = min(2, p - vs["pv"]) if p < 9 else 9 - vs["pv"]
            assert take <= 2
            for j in range(take): mm += pv(vs["pv"] + j)
            vs["pv"] += take
            e(f"s_waitcnt lgkmcnt({vs['iss'] - 2*vs['pv']})")
        PF(f'pv{p}')
        gap = max(1, len(va) // (len(mm) + 1))
        for i, x in enumerate(va):
            e(x)
            if i >= 1 and (i - 1) % gap == 0 and mm: e(mm.pop(0))
        for x in mm: e(x)
        if p > CB: v_issue(2 * vs["pv"] + 8)
    ST("att_pv")
    e("v_lshlrev_b32 v2, 4, v1")
    for qt in range(2):
        o = O + 12 * qt
        e(f"v_rcp_f32 v{o+8}, v{o+8}")
        for h in range(4): e(f"v_pk_mul_f32 {v(o+2*h,2)}, {v(o+2*h,2)}, {v(o+8,2)} op_sel_hi:[1,0]")
        for h in range(4): e(f"v_cvt_pk_bf16_f32 v{24+4*qt+h}, v{o+2*h}, v{o+2*h+1}")
        e(f"buffer_store_dwordx4 {v(24+4*qt,4)}, v2, {s(SWS,4)}, s{34+qt} offen sc1")

def consumer(ST):
    G = G1
    if SLOWPF:
        e(f"s_lshl_b32 s30, s2, 2\ns_add_u32 s30, s30, s{sW}\ns_mul_i32 s31, s30, 6144\ns_lshl_b32 s30, s30, 12\nv_lshlrev_b32 v5, 10, v1")
        e(f"s_mov_b64 exec, 0x3f\nbuffer_load_dword v250, v5, {s(SB,4)}, s31 offen offset:384")
        if SLOWPF > 1: e(f"s_mov_b64 exec, 0xf\nbuffer_load_dword v251, v5, {s(SX,4)}, s30 offen offset:384")
        e("s_mov_b64 exec, -1")
    e(f"v_mov_b32 v{vCNT}, 0")
    e(f"ds_write_b32 v{vDW}, v{vCNT} offset:{OFF_EP}\nds_write_b32 v{vDW}, v{vCNT} offset:{OFF_FULL}")
    G.c_setup()
    X = G.VX
    RA_, CSQ, VA_, VB_, CSV = X, X + 8, X + 24, X + 40, X + 56
    if G.chain: VB_, CSV = G.free_set(), X + 40
    assert CSV + 4 <= vDW
    def pre_last1():
        if SLOWPF: e("s_waitcnt vmcnt(0)")
        e(f"s_lshl_b32 s30, s{sWM}, 8\ns_add_u32 s30, s30, {MISC}\nv_lshl_add_u32 v2, v4, 2, s30\nv_lshl_add_u32 v5, v3, 4, s30")
        e(f"s_lshl_b32 s30, s{sWN}, 7\ns_add_u32 s30, s30, {MISC}\nv_lshl_add_u32 v6, v3, 4, s30\nv_lshl_add_u32 v7, v4, 2, s30")
    fill = []
    for mt in range(4): fill += [f"ds_read_b32 v{RA_+2*mt}, v2 offset:{mt*64}", f"ds_read_b32 v{RA_+2*mt+1}, v2 offset:{512+mt*64}"]
    for t in (2, 3, 0, 1): fill.append(f"ds_read_b128 {v(CSQ+4*t,4)}, v6 offset:{1024 + (t>>1)*256 + (t&1)*64}")
    for mt in range(4): fill += [f"ds_read_b128 {v(VA_+4*mt,4)}, v5 offset:{mt*64}", f"ds_read_b128 {v(VB_+4*mt,4)}, v5 offset:{512+mt*64}"]
    for dt in range(2): fill.append(f"ds_read_b32 v{CSV+2*dt}, v7 offset:{1024 + 512 + dt*64}")
    fill.append(f"ds_read_b32 v{CSV+1}, v{vFR} offset:{OFF_HD}")
    own_arena(33, AR_K)
    e(f"""
s_lshl_b32 s30, s{sWN}, 13
s_add_u32 s33, s33, s30
s_lshl_b32 s30, s{sWM}, 12
s_add_u32 s33, s33, s30
s_add_u32 s34, s33, {AR_V - AR_K}
s_lshl_b32 s31, s{sWM}, 2
s_mul_i32 s35, s{sWN}, 24
s_add_u32 s35, s35, s31
s_add_u32 s35, s35, 16
s_lshl_b32 s35, s35, 10
s_lshl_b32 s36, s{sW}, 11
s_add_u32 s36, s36, {L_Q}
""")
    flag_addr(32, WS_F1, sCB, sRB, 4, sW)
    G.c_loop(ST, pre_last1, fill)
    e(f"s_waitcnt lgkmcnt(0)\nv_readfirstlane_b32 s{sMODE}, v{CSV+1}\nv_lshlrev_b32 v2, 4, v1\nv_add_u32 v5, s35, v2\nv_add_u32 v6, s36, v2")
    e(f"s_lshr_b32 s30, s{sRB}, 1\ns_cmp_eq_u32 s30, {3 if MAP1 == 84 else 99}\ns_cselect_b32 s{sT0}, 1, s{sMODE}")
    def fold_rows(mt, t):
        c = G.acc(mt, t); k = RA_ + 2 * mt
        for h in range(2): e(f"v_pk_mul_f32 {v(c+2*h,2)}, {v(c+2*h,2)}, {v(k,2)} op_sel_hi:[1,0]")
        for h in range(2): e(f"v_pk_fma_f32 {v(c+2*h,2)}, {v(CSQ+4*t+2*h,2)}, {v(k,2)}, {v(c+2*h,2)} op_sel:[0,1,0] op_sel_hi:[1,1,1]")
    def fold_v(mt, dt):
        c = G.acc(mt, 4 + dt)
        for h in range(2): e(f"v_pk_mul_f32 {v(c+2*h,2)}, {v(c+2*h,2)}, {v(VA_+4*mt+2*h,2)}")
        for h in range(2): e(f"v_pk_fma_f32 {v(c+2*h,2)}, {v(VB_+4*mt+2*h,2)}, {v(CSV+2*dt,2)}, {v(c+2*h,2)} op_sel_hi:[1,0,1]")
    def epi1(fl):
        t = 24
        for mt in range(4):
            fold_rows(mt, 2); fold_rows(mt, 3)
            pack(t, G.acc(mt, 2), G.acc(mt, 3))
            e(f"buffer_store_dwordx4 {v(t,4)}, v2, {s(SWS,4)}, s33 offen offset:{mt*1024} {fl or KVFL}"); t += 4
        for p in range(2):
            for dt in range(2):
                fold_v(2 * p, dt); fold_v(2 * p + 1, dt)
                pack(t, G.acc(2 * p, 4 + dt), G.acc(2 * p + 1, 4 + dt))
                e(f"buffer_store_dwordx4 {v(t,4)}, v2, {s(SWS,4)}, s34 offen offset:{(2*p+dt)*1024} {fl or KVFL}"); t += 4
        if KFLAG:
            e("s_waitcnt vmcnt(4)"); set_flag(32, fl.replace("nt", ""), t=64)
        for i in range(4): e(f"ds_write_b128 v5, {v(24+4*i,4)} offset:{L_K + i*1024}")
        for i in range(4): e(f"ds_write_b128 v5, {v(40+4*i,4)} offset:{L_V + i*1024}")
        for mt in (2, 3, 0, 1):
            fold_rows(mt, 0); fold_rows(mt, 1)
            d = 8 + 4 * mt
            pack(d, G.acc(mt, 0), G.acc(mt, 1))
            if mt >= 2: e(f"ds_write_b128 v6, {v(d,4)} offset:{(mt-2)*1024}")
        e("s_waitcnt vmcnt(0)")
        set_flag(32, fl.replace("nt", ""), val=3, t=64)
    dual(epi1, sT0)
    ST("kv_flag")
    e(f"s_lshl_b32 s38, s{sWM}, 1")
    attn_setup()
    attention(ST, False)
    G = G3
    roles_48()
    b_src_wo()
    G.p_setup_b(sWN)
    X = G.VX
    rowmajor_voff(X + 16, X + 17)
    e(f"""
s_lshl_b32 s35, s{sRB}, 1
s_add_u32 s35, s35, s{sWM}
s_lshl_b32 s36, s{sCB}, 1
s_add_u32 s36, s36, s{sWN}
s_lshl_b32 s32, s35, 17
s_lshl_b32 s31, s36, 6
s_add_u32 s32, s32, s31
""")
    def hl_touch():
        e(f"s_lshl_b32 s37, s35, 17\ns_lshl_b32 s31, s36, 10\ns_add_u32 s37, s37, s31\ns_add_u32 s37, s37, {WS_HL}\nv_and_b32 v248, 7, v1\nv_lshlrev_b32 v248, 7, v248\nv_lshrrev_b32 v249, 3, v1\nv_lshl_add_u32 v248, v249, 15, v248")
        set_exec(0xffffffff); e(f"buffer_load_dword v249, v248, {s(SWS,4)}, s37 offen\ns_mov_b64 exec, -1")
    G.c_setup()
    e("s_waitcnt vmcnt(0)")
    set_flag(33)
    ST("o_flag")
    if LFIRST and HLT == 1: hl_touch()
    Qc = VmQ()
    L1, L2 = A.newlabel("b3a"), A.newlabel("b3b")
    e(f"s_cmp_lg_u32 s{sWM}, 0\ns_cbranch_scc1 {L1}")
    for st in range(3): G.issue_b(Qc, st)
    e(f"s_branch {L2}")
    A.label(L1)
    for st in range(3, 6): G.issue_b(Qc, st)
    A.label(L2)
    e("s_barrier")
    for mt in range(4): e(f"s_add_u32 s31, s32, {mt*16*2048}\nbuffer_load_dwordx4 {v(X+4*mt,4)}, v{X+16}, {s(SX,4)}, s31 offen")
    e("s_waitcnt vmcnt(4)")
    if LFIRST and HLT == 2: hl_touch()
    e(f"""
s_lshl_b32 s37, s35, 17
s_lshl_b32 s31, s36, 10
s_add_u32 s37, s37, s31
s_add_u32 s37, s37, {WS_H}
s_lshl_b32 s38, s35, 14
s_lshl_b32 s31, s36, 9
s_add_u32 s38, s38, s31
s_add_u32 s38, s38, {WS_STAT}
""")
    flag_addr(32, WS_F3, sRB, sCB, 4, sW)
    HX = X + 24
    def pre_last3():
        e("s_waitcnt vmcnt(0)\nv_lshlrev_b32 v2, 4, v1")
        for mt in range(4):
            x = X + 4 * mt
            e(f"v_permlane16_swap_b32 v{x}, v{x+2}\nv_permlane16_swap_b32 v{x+1}, v{x+3}")
        for mt in range(4):
            for d in range(4): unpack(HX + 8 * mt + 2 * d, X + 4 * mt + d)
    G.c_loop(ST, pre_last3)
    for mt in range(4):
        x = X + 4 * mt; u = HX + 8 * mt
        for d in range(4): e(f"v_pk_add_f32 {v(12+2*d,2)}, {v(G.acc(mt,d>>1)+2*(d&1),2)}, {v(u+2*d,2)}")
        for d in range(4): e(f"v_cvt_pk_bf16_f32 v{x+d}, v{12+2*d}, v{13+2*d}")
        if LFIRST: e(f"s_add_u32 s31, s37, {WS_HL - WS_H + mt*32*1024}\nbuffer_store_dwordx4 {v(x,4)}, v2, {s(SWS,4)}, s31 offen")
        else: e(f"s_add_u32 s31, s37, {mt*32*1024}\nbuffer_store_dwordx4 {v(x,4)}, v2, {s(SWS,4)}, s31 offen sc1")
    if LFIRST:
        for mt in range(4): e(f"s_add_u32 s31, s37, {mt*32*1024}\nbuffer_store_dwordx4 {v(X+4*mt,4)}, v2, {s(SWS,4)}, s31 offen sc1")
    for mt in range(4):
        x = X + 4 * mt; u = HX + 8 * mt
        for d in range(4): unpack(u + 2 * d, x + d)
        e(f"v_pk_add_f32 v[12:13], {v(u,2)}, {v(u+2,2)}\nv_pk_add_f32 v[14:15], {v(u+4,2)}, {v(u+6,2)}")
        e(f"v_pk_add_f32 v[12:13], v[12:13], v[14:15]\nv_add_f32 v{32+2*mt}, v12, v13")
    if LFIRST:
        e(f"s_add_u32 s31, s32, {WS_F3L - WS_F3}\ns_waitcnt vmcnt(4)"); set_flag(31, "")
    xg_multi("v_add_f32", [32, 34, 36, 38], [16, 17, 18, 19])
    for mt in range(4):
        u = HX + 8 * mt; sm = 32 + 2 * mt
        e(f"v_mul_f32 v12, {f32(1/32)}, v{sm}")
        for d in range(4): e(f"v_pk_add_f32 {v(u+2*d,2)}, {v(u+2*d,2)}, v[12:13] op_sel_hi:[1,0] neg_lo:[0,1] neg_hi:[0,1]")
        e(f"v_pk_mul_f32 v[14:15], {v(u,2)}, {v(u,2)}")
        for d in range(1, 4): e(f"v_pk_fma_f32 v[14:15], {v(u+2*d,2)}, {v(u+2*d,2)}, v[14:15]")
        e(f"v_add_f32 v{sm+1}, v14, v15")
    xg_multi("v_add_f32", [33, 35, 37, 39], [16, 17, 18, 19])
    for k in range(1, 4):
        e(f"v_cmp_eq_u32 vcc, {k}, v3\nv_cndmask_b32 v32, v32, v{32+2*k}, vcc\nv_cndmask_b32 v33, v33, v{33+2*k}, vcc")
    e(f"v_lshlrev_b32 v2, 3, v1\nbuffer_store_dwordx2 v[32:33], v2, {s(SWS,4)}, s38 offen sc1\ns_waitcnt vmcnt({2 if LFIRST else 1})")
    set_flag(32)
    post(OFF_EP, 2)
    ST("h_flag")
    G = G4
    roles_84()
    G.c_setup()
    e("s_mov_b32 s40, s32")
    def stats_out():
        e("s_waitcnt vmcnt(0)"); set_flag(40, val=3)
    h1_base(37)
    e(f"""
s_and_b32 s39, s{sCB}, 1
s_add_u32 s32, s{sOWN}, s37
s_lshl_b32 s33, s{sWM}, 12
s_add_u32 s32, s32, s33
s_lshl_b32 s34, s{sWN}, 2
s_add_u32 s34, s34, s39
s_add_u32 s35, s39, s{sWN}
s_add_u32 s35, s35, 2
s_xor_b32 s36, s39, 1
s_mul_i32 s36, s36, 6
s_lshl_b32 s34, s34, 13
s_lshl_b32 s35, s35, 13
s_lshl_b32 s36, s36, 13
s_add_u32 s34, s34, s32
s_add_u32 s35, s35, s32
s_add_u32 s36, s36, s32
s_lshl_b32 s37, s{sWN}, 3
s_add_u32 s36, s36, s37
s_add_u32 s37, s34, 8192
s_mov_b32 s{sC0}, {f32(-LOG2E)}
s_mov_b32 s{sC0+1}, {f32(-LOG2E)}
""")
    f4_addr(38, sRB, sCB, sW)
    def pre_last4():
        e(f"""
s_lshl_b32 s30, s{sWM}, 9
s_add_u32 s30, s30, {L_RA}
v_lshl_add_u32 v2, v4, 3, s30
s_lshl_b32 s31, s39, 7
s_lshl_b32 s32, s{sWN}, 9
s_add_u32 s32, s32, s31
s_add_u32 s32, s32, {L_CS}
v_lshl_add_u32 v5, v3, 4, s32
s_lshl_b32 s32, s{sWN}, 7
s_add_u32 s32, s32, s31
s_add_u32 s32, s32, {L_CS + 256}
v_lshl_add_u32 v6, v3, 4, s32
s_xor_b32 s33, s39, 1
s_mul_i32 s33, s33, 768
s_lshl_b32 s32, s{sWN}, 6
s_add_u32 s32, s32, s33
s_add_u32 s32, s32, {L_CS}
v_lshl_add_u32 v7, v3, 4, s32
""")
    CS, KR = (G.free_set(), G.VX) if G.chain else (16, 8)
    assert CS + 28 <= 56 and KR + 8 <= vDW
    fill = [f"ds_read_b64 {v(KR+2*mt,2)}, v2 offset:{mt*128}" for mt in range(4)]
    fill += [f"ds_read_b128 {v(CS+4*t,4)}, v5 offset:{64*t}" for t in range(4)]
    fill += [f"ds_read_b128 {v(CS+16+4*t,4)}, v6 offset:{64*t}" for t in range(2)] + [f"ds_read_b128 {v(CS+24,4)}, v7"]
    G.c_loop(ST, pre_last4, fill, after_go=stats_out)
    e("s_waitcnt lgkmcnt(0)\nv_lshlrev_b32 v2, 4, v1")
    def epi4(fl):
        units = []
        for pr in range(4):
            for mt in range(4): units.append((mt, (2 * pr, 2 * pr + 1) if pr < 3 else (6,), pr))
        T0, O0 = 56, 80
        def sA(i):
            mt, ts, pr = units[i]; k = KR + 2 * mt; o = []
            for t in ts:
                c = G.acc(mt, t)
                for h in range(2): o.append(f"v_pk_mul_f32 {v(c+2*h,2)}, {v(c+2*h,2)}, {v(k,2)} op_sel:[0,1] op_sel_hi:[1,1]")
            for t in ts:
                c = G.acc(mt, t)
                for h in range(2): o.append(f"v_pk_fma_f32 {v(c+2*h,2)}, {v(CS+4*t+2*h,2)}, {v(k,2)}, {v(c+2*h,2)} op_sel_hi:[1,0,1]")
            return o
        def sB(i):
            mt, ts, pr = units[i]; T = T0 + 8 * (i % 3)
            return [f"v_exp_f32 v{T+4*j+k}, v{G.acc(mt,t)+k}" for j, t in enumerate(ts) for k in range(4)]
        def sC(i):
            mt, ts, pr = units[i]; T = T0 + 8 * (i % 3)
            return [f"v_pk_fma_f32 {v(T+2*h,2)}, {v(T+2*h,2)}, {s(sC0,2)}, {s(sC0,2)}" for h in range(2 * len(ts))]
        def sD(i):
            mt, ts, pr = units[i]; T = T0 + 8 * (i % 3)
            return [f"v_rcp_f32 v{T+k}, v{T+k}" for k in range(4 * len(ts))]
        def sE(i):
            mt, ts, pr = units[i]; T = T0 + 8 * (i % 3); o = []; d = O0 + 4 * (i % 4)
            for j, t in enumerate(ts):
                c = G.acc(mt, t)
                for h in range(2): o.append(f"v_pk_mul_f32 {v(c+2*h,2)}, {v(c+2*h,2)}, {v(T+4*j+2*h,2)}")
            for j, t in enumerate(ts):
                c = G.acc(mt, t)
                for h in range(2): o.append(f"v_cvt_pk_bf16_f32 v{d+2*j+h}, v{c+2*h}, v{c+2*h+1}")
            base = (34, 37, 35, 36)[pr]
            if NOST4: return o
            o.append(f"buffer_store_dwordx4 {v(d,4)}, v2, {s(SWS,4)}, s{base} offen offset:{mt*1024} {fl}" if pr < 3 else f"buffer_store_dwordx2 {v(d,2)}, v2, {s(SWS,4)}, s{base} offen offset:{mt*1024} {fl}")
            return o
        N = len(units)
        for x in sA(0): e(x)
        for i in range(N + 1):
            seq = []
            if i < N: seq += sB(i)
            if i + 1 < N: seq += sA(i + 1)
            if i < N: seq += sC(i)
            if i >= 1: seq += sE(i - 1)
            if i < N: seq += sD(i)
            for x in seq: e(x)
            if EARLY5 and i == 8 + E5LAG:
                e(f"s_waitcnt vmcnt({E5LAG})"); set_flag(38, fl.replace("nt", ""))
        ST("silu")
        roles_w2()
        G5.c_setup()
        e("s_waitcnt vmcnt(0)")
        set_flag(38, fl.replace("nt", ""), val=3)
    n0 = list(ST.names)
    def epi4w(fl):
        ST.names = list(n0); epi4(fl)
    dual(epi4w, sMODE)
    ST("h1_flag")
    G = G5
    MT = G.MT; keep = 2; nb = 4
    def pre_last5():
        srd(SD, pOUT, 4 * MB)
        e(f"""
s_lshl_b32 s33, s{sRB}, 3
s_add_u32 s33, s33, s{sCB}
s_mul_i32 s34, s33, {16*4*nb*1024}
s_add_u32 s34, s34, {WS_PART}
s_mul_i32 s30, s{sW}, {nb*1024}
s_add_u32 s34, s34, s30
s_lshl_b32 s35, s{sRB}, 3
s_lshl_b32 s30, s{sWM}, 3
s_add_u32 s35, s35, s30
s_lshl_b32 s30, s{sKS}, 1
s_add_u32 s35, s35, s30
s_lshl_b32 s36, s{sCB}, 2
s_lshl_b32 s30, s{sWN}, 1
s_add_u32 s36, s36, s30
s_lshl_b32 s38, s35, 15
s_lshl_b32 s31, s36, 10
s_add_u32 s38, s38, s31
s_add_u32 s38, s38, {WS_H}
s_lshl_b32 s37, s33, {9 if F5W else 6}
s_lshl_b32 s31, s{sW}, {7 if F5W else 2}
s_add_u32 s37, s37, s31
s_add_u32 s37, s37, {WS_F5W if F5W else WS_F5}
s_lshl_b32 s31, s{sKS}, 4
s_add_u32 s32, s37, s31
s_lshl_b32 s39, s{sKS}, 2
""")
        for d in range(1, 4):
            e(f"s_add_u32 s31, s{sKS}, {d}\ns_and_b32 s31, s31, 3\ns_lshl_b32 s30, s31, 2\ns_add_u32 s30, s30, s{sKS}\ns_mul_i32 s30, s30, {4*nb*1024}\ns_add_u32 s{39+d}, s30, s34")
            e(f"s_add_u32 s31, s31, s39\ns_mul_i32 s31, s31, {4*nb*1024}\ns_add_u32 s{42+d}, s31, s34")
        e(f"s_lshl_b32 s46, s35, 15\ns_lshl_b32 s31, s36, 6\ns_add_u32 s46, s46, s31\ns_add_u32 s47, s38, {32*1024}")
    if TAILPM:
        assert not CANARY
        BQ, AB = [8, 24, 56, 72], [40, 88]
        sub4 = [(12, 0), (12, 1), (13, 0), (13, 1)]
        order = [2, 3, 4, 5, 6, 7, 0, 1]
        HRS = [G.acc(2, 1), G.acc(2, 3), G.acc(3, 1), G.acc(3, 3)]
        brd = lambda j: [x for t in range(4) for x in G.b_read(*sub4[j], t, BQ[j] + 4 * t)]
        ard = lambda n_: [G.a_read(*sub4[j], order[n_], AB[n_ & 1] + 4 * j) for j in range(4)]
        G.c_loop(ST, pre_last5, ["v_lshlrev_b32 v2, 4, v1"] + ard(0) + brd(0) + brd(1), nsteps=12)
        def send(mt):
            out = []
            for pr in range(2):
                c0, c1 = G.acc(mt, 2 * pr), G.acc(mt, 2 * pr + 1)
                out += [f"v_cvt_pk_bf16_f32 v{c0}, v{c0}, v{c0+1}", f"v_cvt_pk_bf16_f32 v{c0+1}, v{c0+2}, v{c0+3}",
                        f"v_cvt_pk_bf16_f32 v{c0+2}, v{c1}, v{c1+1}", f"v_cvt_pk_bf16_f32 v{c0+3}, v{c1+2}, v{c1+3}",
                        f"buffer_store_dwordx4 {v(c0,4)}, v2, {s(SWS,4)}, s{39+mt//2} offen offset:{(2*(mt&1)+pr)*1024} {PFL}"]
            return out
        for n_, mt in enumerate(order):
            mm = lambda t, j: f"v_mfma_f32_16x16x32_bf16 {v(G.acc(mt,t),4)}, {v(BQ[j]+4*t,4)}, {v(AB[n_&1]+4*j,4)}, {v(G.acc(mt,t),4)}"
            e("s_waitcnt lgkmcnt(0)")
            if n_ == 0:
                side = brd(2) + brd(3)
                for i, (t, j) in enumerate([(t, j) for t in range(4) for j in range(2)]):
                    e(mm(t, j)); e(side[2 * i]); e(side[2 * i + 1])
                side = ard(1)
                for i, (t, j) in enumerate([(t, j) for j in (2, 3) for t in range(4)]):
                    if i == 0: e("s_waitcnt lgkmcnt(8)")
                    if i == 4: e("s_waitcnt lgkmcnt(4)")
                    e(mm(t, j))
                    if i < 4: e(side[i])
                continue
            side = (ard(n_ + 1) if n_ + 1 < 8 else []) + (send(order[n_ - 1]) if order[n_ - 1] >= 2 else [])
            if n_ == 3: side += [f"buffer_load_dwordx4 {v(HRS[2*i+pr],4)}, v2, {s(SWS,4)}, s{38 if i == 0 else 47} offen offset:{pr*1024} sc1" for i in range(2) for pr in range(2)]
            if LEVELS and n_ == 7:
                side = ["v_mov_b32 v5, 0", "v_mov_b32 v6, 1", "s_waitcnt vmcnt(12)", "s_mov_b64 exec, 1\n" + f"buffer_store_byte v6, v5, {s(SWS,4)}, s32 offen offset:1 sc1" + "\ns_mov_b64 exec, -1"]
            for i, (t, j) in enumerate([(t, j) for t in range(4) for j in range(4)]):
                e(mm(t, j))
                for x in side[i:i + 1] + (side[16:] if i == 15 else []): e(x)
        ST("w2_end")
    else:
        HRS = [8, 12, 16, 20]
        HR = 8
        fill = ["v_lshlrev_b32 v2, 4, v1"]
        fill += [f"buffer_load_dwordx4 {v(HR+4*(2*i+pr),4)}, v2, {s(SWS,4)}, s{38 if i == 0 else 47} offen offset:{pr*1024} sc1" for i in range(2) for pr in range(2)]
        if CANARY: fill.append(f"buffer_load_dword v248, v2, {s(SWS,4)}, s37 offen sc1")
        G.c_loop(ST, pre_last5, fill)
        o = 24
        for d in range(1, 4):
            for i in range(keep):
                for pr in range(2):
                    mt = d * keep + i
                    pack(o, G.acc(mt, 2 * pr), G.acc(mt, 2 * pr + 1))
                    e(f"buffer_store_dwordx4 {v(o,4)}, v2, {s(SWS,4)}, s{39+d} offen offset:{(2*i+pr)*1024} {PFL}")
                    o = 24 + (o - 24 + 4) % 32
    PR = 64
    assert PR + 48 <= G.ACC
    def add_partial(d):
        for i in range(keep):
            for pr in range(2):
                for q in range(4): unpack(40 + 2 * q, PR + 4 * ((d - 1) * nb + 2 * i + pr) + q)
                for q in range(4):
                    c = G.acc(i, 2 * pr + (q >> 1)) + 2 * (q & 1)
                    e(f"v_pk_add_f32 {v(c,2)}, {v(c,2)}, {v(40+2*q,2)}")
    def add_residual():
        for i in range(keep):
            for pr in range(2):
                for q in range(4): unpack(40 + 2 * q, HRS[2 * i + pr] + q)
                for q in range(4):
                    c = G.acc(i, 2 * pr + (q >> 1)) + 2 * (q & 1)
                    e(f"v_pk_add_f32 {v(c,2)}, {v(c,2)}, {v(40+2*q,2)}")
    def ld_partial(d):
        for b in range(nb): e(f"buffer_load_dwordx4 {v(PR+4*((d-1)*nb+b),4)}, v2, {s(SWS,4)}, s{42+d} offen offset:{b*1024} sc1")
    rowmajor_voff(62, 63)
    if CANARY:
        e("v_mov_b32 v58, s43\nv_mov_b32 v59, s44\nv_cmp_eq_u32 vcc, 1, v1\nv_cndmask_b32 v58, v58, v59, vcc\nv_mov_b32 v59, s45\nv_cmp_eq_u32 vcc, 2, v1\nv_cndmask_b32 v58, v58, v59, vcc")
        e("s_waitcnt vmcnt(0)")
        ST("p_flag")
        add_residual()
        X0 = A.newlabel("pfok")
        e(f"s_mov_b64 exec, 0xf\nv_and_b32 v248, 1, v248\nv_cmp_ne_u32 vcc, 1, v248\ns_mov_b64 exec, -1\ns_cbranch_vccz {X0}")
        poll("s37", 4, voff=2, t=60)
        A.label(X0)
        L, X = A.newlabel("can"), A.newlabel("canx")
        e(f"s_mov_b64 exec, 7\ns_mov_b32 s{sCNT}, 0")
        A.label(L)
        e(f"buffer_load_dword v60, v58, {s(SWS,4)}, 0 offen offset:4092 sc1\ns_add_u32 s{sCNT}, s{sCNT}, 1\ns_cmp_gt_u32 s{sCNT}, {SPIN_MAX}\ns_waitcnt vmcnt(0)\ns_cbranch_scc1 {X}")
        e(f"v_cmp_eq_u32 vcc, -1, v60\ns_cbranch_vccnz {L}")
        A.label(X)
        e("s_mov_b64 exec, -1")
        ST("p_seen")
        for d in range(1, 4): ld_partial(d)
        for d in range(1, 4):
            L, X = A.newlabel("pv"), A.newlabel("pvx")
            r0 = PR + 16 * (d - 1)
            e(f"s_waitcnt vmcnt({(3-d)*nb})")
            A.label(L)
            e(f"v_max_u32 v60, v{r0}, v{r0+1}")
            for i in range(2, 16, 2): e(f"v_max3_u32 v60, v{r0+i}, v{r0+i+1}, v60")
            e(f"v_cmp_eq_u32 vcc, -1, v60\ns_cbranch_vccz {X}\ns_add_u32 s{sCNT}, s{sCNT}, 1\ns_cmp_gt_u32 s{sCNT}, {SPIN_MAX}\ns_cbranch_scc1 {X}")
            ld_partial(d)
            e(f"s_waitcnt vmcnt(0)\ns_branch {L}")
            A.label(X)
            add_partial(d)
    elif LEVELS and TAILPM:
        lvf = lambda l: e(f"s_mov_b64 exec, 1\nbuffer_store_byte v6, v5, {s(SWS,4)}, s32 offen offset:{l} sc1\ns_mov_b64 exec, -1")
        e("s_waitcnt vmcnt(5)"); lvf(2)
        add_residual()
        e(f"v_sub_u32 v61, s{sKS}, v1\nv_and_b32 v61, 3, v61\nv_lshlrev_b32 v61, 3, v61")
        e("s_waitcnt vmcnt(2)"); lvf(3)
        ST("p_flag")
        e(f"s_mov_b32 s{sCNT}, 0\ns_mov_b32 s33, 0")
        for lvl in (1, 2, 3):
            L, X = A.newlabel("lv"), A.newlabel("lvx")
            e(f"s_sub_u32 s30, s{sKS}, {lvl}\ns_and_b32 s30, s30, 3\ns_bitcmp1_b32 s33, s30\ns_cbranch_scc1 {X}")
            A.label(L)
            e(f"s_mov_b64 exec, 0xf\nbuffer_load_dword v60, v2, {s(SWS,4)}, s37 offen sc1\ns_add_u32 s{sCNT}, s{sCNT}, 1\ns_waitcnt vmcnt(0)\nv_bfe_u32 v60, v60, v61, 1\nv_cmp_eq_u32 vcc, 1, v60\ns_mov_b64 exec, -1\ns_mov_b32 s33, vcc_lo")
            e(f"s_cmp_gt_u32 s{sCNT}, {SPIN_MAX}\ns_cbranch_scc1 {X}\ns_bitcmp1_b32 s33, s30\ns_cbranch_scc0 {L}")
            A.label(X)
            ld_partial(4 - lvl)
        ST("p_seen")
        for lvl in (1, 2, 3):
            e(f"s_waitcnt vmcnt({(3-lvl)*nb})")
            add_partial(4 - lvl)
    else:
        e("s_waitcnt vmcnt(0)")
        set_flag(32)
        ST("p_flag")
        add_residual()
        poll("s37", 4, voff=2, t=60)
        ST("p_seen")
        for d in range(1, 4): ld_partial(d)
        for d in range(1, 4):
            e(f"s_waitcnt vmcnt({(3-d)*nb})")
            add_partial(d)
    if PERT:
        L = A.newlabel("nopert")
        e(f"s_cmp_ge_u32 s2, {PERTN}\ns_cbranch_scc1 {L}\ns_mov_b64 exec, {PERTL}\nv_add_f32 v{G.acc(0,0)}, {f32(PERT)}, v{G.acc(0,0)}\ns_mov_b64 exec, -1")
        A.label(L)
    for i in range(keep):
        for pr in range(2):
            x = HRS[2 * i + pr]
            pack(x, G.acc(i, 2 * pr), G.acc(i, 2 * pr + 1))
            e(f"v_permlane16_swap_b32 v{x}, v{x+2}\nv_permlane16_swap_b32 v{x+1}, v{x+3}")
            e(f"s_add_u32 s31, s46, {i*16*2048}\nbuffer_store_dwordx4 {v(x,4)}, v62, {s(SD,4)}, s31 offen offset:{pr*64} {OFL}")
    ST.flush()
    e("s_endpgm")

def neighbours_and_attention(ST, Q):
    e(f"s_lshl_b32 s38, s{sWM}, 1\ns_add_u32 s38, s38, 1")
    attn_setup()
    L = A.newlabel("nonb")
    assert MAP1 == 162
    own_arena(42)
    e(f"""
s_add_u32 s40, s{sRB}, s{sWM}
s_sub_u32 s41, s40, 2
s_lshl_b32 s31, s{sWM}, 16
s_add_u32 s42, s42, s31
s_sub_u32 s42, s42, {2*64*KB}
s_lshl_b32 s31, s{sWN}, 13
s_add_u32 s42, s42, s31
s_mul_i32 s43, s{sWN}, 24
s_lshl_b32 s31, s{sWM}, 3
s_add_u32 s43, s43, s31
s_lshl_b32 s43, s43, 10
v_lshlrev_b32 v2, 4, v1
s_cmp_lt_u32 s40, 2
s_cselect_b32 s42, {WS_BYTES}, s42
s_cbranch_scc1 {L}
""")
    flag_addr(32, WS_F1, sCB, 41, 4, None)
    poll("s32", 4, t=8)
    A.label(L)
    ST("nb_seen")
    def nb_loads(wsb, lb):
        if wsb == AR_V and KFLAG:
            L2 = A.newlabel("nonv")
            e(f"s_cmp_lt_u32 s40, 2\ns_cbranch_scc1 {L2}")
            poll("s32", 4, t=20, mask=2)
            A.label(L2)
            e("v_lshlrev_b32 v2, 4, v1")
        for h in range(2):
            e(f"s_add_u32 m0, s43, {lb + h*4096}\ns_add_u32 s31, s42, {wsb + h*4096}")
            for i in range(4): e(f"buffer_load_dwordx4 v2, {s(SWS,4)}, s31 offen offset:{i*1024} sc1 lds")
    Q.q = []
    nb_loads(AR_K, L_K); Q.add("nk", 8)
    def vl():
        nb_loads(AR_V, L_V); Q.add("nv", 8)
    if not VLATE: vl()
    attention.vl = vl if VLATE else None
    attention(ST, True, Q)
    roles_48()
    b_src_wo()
    e(f"ds_read_b32 v8, v{vFR} offset:{OFF_HD}")
    G3.p_setup_a(); G3.p_setup_b(sWN)
    e(f"s_waitcnt lgkmcnt(0)\nv_readfirstlane_b32 s{sMODE}, v8")
    e("s_waitcnt vmcnt(0)")
    set_flag(33)
    e("s_barrier")
    Q.q = []
    ST("o_flag")

def dma_phase1(ST, Q):
    G = G1
    if DPRIO: e(f"s_setprio {DPRIO}")
    def touch(nk, fl):
        def f():
            e(f"s_mul_i32 s30, s{sW}, {nk*1024}\ns_add_u32 s30, s30, s{sOWN}\nv_lshlrev_b32 v12, 7, v1")
            for i in range(0, nk, 8):
                if nk - i < 8: set_exec((1 << ((nk - i) * 8)) - 1)
                e(f"s_add_u32 s31, s30, {WS_AR + i*1024}\nbuffer_load_dword v{248+i//8}, v12, {s(SWS,4)}, s31 offen {fl}")
                Q.add("touch")
            e("s_mov_b64 exec, -1")
        return f
    dma_phase1.touch = touch
    G.p_loop(Q, ST, 0, NPF, tail=touch(16, TFL.replace("none", "")) if TOUCH else None)
    if DPRIO: e("s_setprio 0")
    e("s_waitcnt lgkmcnt(0)")

def dma_rest(ST, Q):
    G = G3
    if DPRIO: e(f"s_setprio {DPRIO}")
    e(f"s_lshl_b32 s32, s{sRB}, 9\ns_add_u32 s32, s32, {WS_F2}")
    pf_step(PFBUB)
    e("v_lshlrev_b32 v10, 3, v1")
    G.p_loop(Q, ST, G.NSB, 1, 3, gate=lambda k: gate_k(G3, k, True), look=(range(0, 12), (32, 10, True)))
    G = G4
    roles_84()
    b_src_w1()
    e(f"s_lshl_b32 s{sAR}, s{sRB}, 18\ns_add_u32 s{sAR}, s{sAR}, {WS_H}")
    G.p_setup_b(); G.p_setup_a()
    e(f"s_lshl_b32 s32, s{sRB}, 8\ns_add_u32 s32, s32, {WS_F3}")
    if BEARLY and not BTAIL: G.issue_b(Q, 0)
    if not LFIRST: wait_rows(OFF_EP, 2)
    if not BEARLY and not BTAIL: G.issue_b(Q, 0)
    pf_step(PFBUB)
    e("v_lshlrev_b32 v10, 2, v1")
    if LFIRST:
        e(f"s_lshl_b32 s30, s{sROT}, 2\nv_add_u32 v10, s30, v1\nv_and_b32 v10, 63, v10\nv_lshlrev_b32 v10, 2, v10")
        e(f"s_cmp_lg_u32 s{sMODE}, 0\ns_cselect_b32 s33, 0, {WS_F3L - WS_F3}\ns_cselect_b32 s{sKS}, 0, {WS_HL - WS_H}\ns_add_u32 s33, s33, s32\ns_add_u32 s{sKS}, s{sKS}, s{sAR}")
    def gate4(k):
        if not LFIRST: return gate_k(G4, k, False)
        n0 = GATEN["w1"]
        if k == 4: e(f"s_mov_b64 {s(sRDY,2)}, -1")
        if k == 0: need_flags((1 << (4 * n0)) - 1, 33, 10, False)
        elif k >= n0: need_flags(0xf << (4 * k), 33 if k < 4 else 32, 10, False)
    G.p_loop(Q, ST, 1 if BLATE else G.NS, NPF, gate=gate4, tail=dma_phase1.touch(28, '') if TOUCH4 else None, look=(range(0, 12), (32, 10, False)))
    pf_finish()
    G = G5
    roles_w2()
    b_src_w2()
    G.p_setup_b()
    for st in range(G.NS): G.issue_b(Q, st)
    G.p_setup_a()
    e(f"s_lshl_b32 s32, s{sRB}, 9\ns_lshl_b32 s30, s{sKS}, 7\ns_add_u32 s32, s32, s30\ns_add_u32 s32, s32, {WS_F4P}")
    e(f"s_lshl_b32 s30, s{sW}, 9\ns_add_u32 s32, s32, s30\nv_lshlrev_b32 v10, 2, v4")
    e("v_and_b32 v11, 1, v3")
    seen5 = set()
    def gate5(k):
        want = {(c, lv) for c, kb, lv in G5.blocks()[2 * k:2 * k + 2]} - seen5
        if want:
            seen5.update(want)
            need_flags(sum(0xf << (4 * c + 16 * (lv - 1)) for c, lv in want), 32, 10, False, shift=11)
    G.p_loop(Q, ST, G.NS + RP5, gate=gate5, look=(range(0, 10), (32, 10, False, 11)) if ASY5 else None, merge=bool(TAILPM))

U0 = 200
def colsum_block(j, src, nld, dpp):
    u = U0 + 8 * j
    if DOT:
        e("v_mov_b32 v10, 0x00003f80\nv_mov_b32 v11, 0x3f800000")
        for i in range(nld):
            for d in range(4):
                if i == 0: unpack(u + 2 * d, src + d)
                else: e(f"v_dot2_f32_bf16 v{u+2*d}, v{src+4*i+d}, v10, v{u+2*d}\nv_dot2_f32_bf16 v{u+2*d+1}, v{src+4*i+d}, v11, v{u+2*d+1}")
    else:
        for i in range(nld):
            for d in range(4):
                if i == 0: unpack(u + 2 * d, src + d)
                else:
                    unpack(10 + 2 * (d & 1), src + 4 * i + d)
                    e(f"v_pk_add_f32 {v(u+2*d,2)}, {v(u+2*d,2)}, {v(10+2*(d&1),2)}")
    for d in range(4): e(f"v_permlane32_swap_b32 v{u+d}, v{u+4+d}")
    for d in range(2): e(f"v_pk_add_f32 {v(u+2*d,2)}, {v(u+2*d,2)}, {v(u+4+2*d,2)}")
    for d in range(2): e(f"v_permlane16_swap_b32 v{u+d}, v{u+2+d}")
    e(f"v_pk_add_f32 {v(u,2)}, {v(u,2)}, {v(u+2,2)}")
    for k in dpp:
        for r in range(u, u + 2): e(f"v_add_f32_dpp v{r}, v{r}, v{r} row_ror:{k} row_mask:0xf bank_mask:0xf")
def colsum_store(Q, j, soff, nl, tag):
    u = U0 + 8 * j
    e("v_lshlrev_b32 v6, 5, v4\nv_lshl_add_u32 v6, v3, 3, v6")
    m = (1 << nl) - 1
    set_exec(m | m << 16 | m << 32 | m << 48)
    e(f"buffer_store_dwordx2 {v(u,2)}, v6, {s(SWS,4)}, s{soff} offen offset:{256*j} sc1\ns_mov_b64 exec, -1")
    Q.add(tag, 1)

def zero_own_flags(Q):
    e("v_lshlrev_b32 v2, 2, v1\nv_mov_b32 v8, 0")
    def st(soff, nl):
        set_exec((1 << nl) - 1); e(f"buffer_store_dword v8, v2, {s(SWS,4)}, s{soff} offen sc1"); Q.add("zero")
    flag_addr(32, WS_F1, sCB, sRB, 4, None); st(32, 4)
    flag_addr(32, WS_F2, sRB, sCB, 8, None); st(32, 8)
    roles_48(36, 37)
    flag_addr(32, WS_F3, 36, 37, 4, None); st(32, 4)
    if LFIRST: e(f"s_add_u32 s32, s32, {WS_F3L - WS_F3}"); st(32, 4)
    roles_w2(36, 37, 38)
    if F5W:
        assert not CANARY
        e(f"s_lshl_b32 s32, s36, 3\ns_add_u32 s32, s32, s37\ns_lshl_b32 s32, s32, 5\ns_add_u32 s32, s32, s38\ns_lshl_b32 s32, s32, 4\ns_add_u32 s32, s32, {WS_F5W}")
        set_exec(0xf); e("v_lshlrev_b32 v9, 7, v1"); e(f"buffer_store_dword v8, v9, {s(SWS,4)}, s32 offen sc1"); Q.add("zero")
    else:
        e(f"s_lshl_b32 s32, s36, 3\ns_add_u32 s32, s32, s37\ns_lshl_b32 s32, s32, 2\ns_add_u32 s32, s32, s38\ns_lshl_b32 s32, s32, 4\ns_add_u32 s32, s32, {WS_F5}"); st(32, 4)
    roles_84(36, 37)
    f4_addr(32, 36, 37, None); st(32, 4)
    e("s_mov_b64 exec, -1\nv_mov_b32 v8, -1\nv_mov_b32 v9, -1\nv_mov_b32 v10, -1\nv_mov_b32 v11, -1\nv_lshlrev_b32 v7, 4, v1")
    e(f"s_lshl_b32 s32, s35, 5\ns_add_u32 s32, s32, {WS_RA}"); st(32, 8)
    e(f"s_add_u32 s32, s32, {WS_RB - WS_RA}"); st(32, 8)
    def st4(soff, nl):
        set_exec((1 << nl) - 1); e(f"buffer_store_dwordx4 v[8:11], v7, {s(SWS,4)}, s{soff} offen sc1"); Q.add("zero")
    e(f"s_mul_i32 s32, s35, 768\ns_add_u32 s32, s32, {WS_CS1}"); st4(32, 48)
    e(f"s_mul_i32 s32, s36, {2*3584*4}\ns_mul_i32 s33, s37, 896\ns_add_u32 s32, s32, s33\ns_add_u32 s32, s32, {WS_CS2}"); st4(32, 56)
    e(f"s_add_u32 s32, s32, {3584*4}"); st4(32, 56)
    e("s_mov_b64 exec, -1")

sPFO, sPFE, sPFI, SPF = sNEED, pOUT, sT0, 44
sPFS = pOUT + 1
def pf_init():
    srd(SPF, pWO, 2 * MB)
    e(f"s_lshl_b32 s{sPFS}, s2, 2\ns_add_u32 s{sPFS}, s{sPFS}, s{sW}\ns_lshl_b32 s{sPFS}, s{sPFS}, 8\ns_mov_b32 s{sPFO}, s{sPFS}\ns_mov_b32 s{sPFE}, {2*MB}\ns_mov_b32 s{sPFI}, {2 if W2NT else 0 if PFW1 else 1}")
def pf_chunk():
    for i in range(4): e(f"s_buffer_load_dword s{sC0}, {s(SPF,4)}, s{sPFO} offset:{64*i}")
    e(f"s_add_u32 s{sPFO}, s{sPFO}, {1024*256}")
def pf_step(n):
    if not SPFON or n == 0: return
    G_, X, W2L = A.newlabel("pfg"), A.newlabel("pfx"), A.newlabel("pfw2")
    e(f"s_cmp_lt_u32 s{sPFO}, s{sPFE}\ns_cbranch_scc1 {G_}\ns_cmp_ge_u32 s{sPFI}, 2\ns_cbranch_scc1 {X}")
    e(f"s_mov_b32 s{sPFO}, s{sPFS}\ns_mov_b32 s{sPFE}, {7*MB}\ns_add_u32 s{sPFI}, s{sPFI}, 1\ns_cmp_eq_u32 s{sPFI}, 2\ns_cbranch_scc1 {W2L}")
    srd(SPF, pW1, 7 * MB)
    e(f"s_branch {G_}")
    A.label(W2L)
    srd(SPF, pW2, 7 * MB)
    A.label(G_)
    for i in range(n): pf_chunk()
    A.label(X)
CODE_MAX = 96 * KB
def code_warm():
    if not CWARM: return
    L = A.newlabel("pc")
    e(f"s_getpc_b64 s[42:43]")
    A.label(L)
    e(f"s_sub_u32 s42, s42, {L}-{KN}\ns_subb_u32 s43, s43, 0\ns_lshl_b32 s{sC0+1}, s{sR}, 2\ns_add_u32 s{sC0+1}, s{sC0+1}, s{sW}\ns_lshl_b32 s{sC0+1}, s{sC0+1}, 6")
    for i in range(NCODE): e(f"s_load_dword s{sC0}, s[42:43], s{sC0+1} offset:{i*8192}")
def pf_until_ep(k):
    L, X = A.newlabel("pu"), A.newlabel("pux")
    A.label(L)
    e(f"ds_read_b32 v{vFV}, v{vFR} offset:{OFF_EP}\ns_waitcnt lgkmcnt(0)\nv_cmp_gt_u32 vcc, {k}, v{vFV}\ns_cbranch_vccz {X}")
    e(f"s_sleep 1\ns_add_u32 s3, s3, 1\ns_cmp_lt_u32 s3, {LSPIN_MAX}\ns_cbranch_scc1 {L}")
    A.label(X)
def pf_finish():
    if not SPFON: return
    L = A.newlabel("pfin")
    A.label(L)
    pf_step(2)
    e(f"s_waitcnt lgkmcnt(6)\ns_cmp_lt_u32 s{sPFI}, 2\ns_cbranch_scc1 {L}\ns_cmp_lt_u32 s{sPFO}, s{sPFE}\ns_cbranch_scc1 {L}")
def pf_stamp(ST):
    if not STAMPS: return
    k_ = len(ST.names); ST.names.append("pfMB")
    e(f"s_mul_i32 s30, s{sPFI}, 1000\ns_lshr_b32 s31, s{sPFO}, 13\ns_mul_i32 s31, s31, 25\ns_lshr_b32 s31, s31, 5\ns_add_u32 s30, s30, s31\ns_add_u32 s{78+k_}, s78, s30")

class HStream:
    def __init__(self): self.items = []
    def __enter__(self):
        self.saved = A.lines; A.lines = []; return self
    def _take(self, atomic=False):
        if A.lines:
            if atomic: self.items.append(("g", list(A.lines)))
            else: self.items += [("g", [ln]) for ln in A.lines if ln.strip()]
        A.lines = []
    def at(self, k): self._take(); self.items.append(("at", k))
    def by(self, k): self._take(); self.items.append(("by", k))
    def atomic(self, f, cost=None):
        self._take(); f()
        if not A.lines: return
        self._take(True)
        if cost is not None: self.items[-1] = ("g", self.items[-1][1], cost)
    def __exit__(self, *a):
        self._take(); A.lines = self.saved
    @staticmethod
    def cost(ln):
        t = ln.strip()
        if t.startswith(("buffer_", "global_")): return VMC
        if t.startswith("ds_"): return 2
        if t.startswith("v_dot"): return DOTC
        if t.startswith(("v_exp", "v_rcp", "v_sqrt", "v_rsq")): return 2
        if t.startswith("s_") or t.endswith(":"): return 0.5
        return 1
    def emit(self, nbar, lim, npf, pf_from=0, pf_to=99, pre0=999, every=1, cw=(), more=False):
        st = {"b": 0, "used": 0}
        def bar():
            e("s_barrier")
            if st["b"] in cw: code_warm()
            if pf_from <= st["b"] < min(pf_to, nbar - 1) and st["b"] % every == every - 1: pf_step(npf + (1 if more and st["b"] % 3 != 1 else 0))
            st["b"] += 1; st["used"] = 0
        for kind, x, *oc in self.items:
            if kind == "at":
                while st["b"] <= x: bar()
            elif kind == "by":
                if DBGH: print("by", x, "at", st["b"], file=sys.stderr)
                assert st["b"] <= x, ("deadline missed", st["b"], x)
            else:
                c = oc[0] if oc else sum(self.cost(l) for l in x)
                if st["used"] > 8 and st["used"] + c > (lim if st["b"] > 0 else pre0) and not (len(x) == 1 and x[0].strip().startswith("s_")): bar()
                A.lines += x; st["used"] += c
        assert st["b"] <= nbar, st
        while st["b"] < nbar: bar()

def retry(loads, regs, nl):
    L, X = A.newlabel("rt"), A.newlabel("rtx")
    set_exec((1 << nl) - 1 if nl <= 64 else nl)
    e(f"s_mov_b32 s{sCNT}, 0")
    A.label(L)
    e("s_waitcnt vmcnt(0)")
    e(f"v_max_u32 v8, v{regs[0]}, v{regs[1]}")
    for i in range(2, len(regs), 2): e(f"v_max3_u32 v8, v{regs[i]}, v{regs[i+1]}, v8")
    e(f"v_cmp_eq_u32 vcc, -1, v8\ns_cbranch_vccz {X}\ns_add_u32 s{sCNT}, s{sCNT}, 1\ns_cmp_gt_u32 s{sCNT}, {SPIN_MAX}\ns_cbranch_scc1 {X}\ns_sleep 8")
    loads()
    e(f"s_branch {L}")
    A.label(X)

def helper0_phase1(ST, Q):
    RS = 16
    with HStream() as H:
        e(f"""
s_lshl_b32 s35, s{sRB}, 4
s_add_u32 s35, s35, s{sCB}
s_lshl_b32 s34, s35, 14
v_lshrrev_b32 v6, 3, v1
v_lshlrev_b32 v5, 11, v6
v_and_b32 v7, 7, v1
v_lshl_add_u32 v5, v7, 4, v5
s_getreg_b32 s39, hwreg(HW_REG_XCC_ID)
""")
        bounds = [0] + [2 * x for x in HB] + [16]
        def red8(r):
            e(f"v_add_f32_dpp v{r}, v{r}, v{r} quad_perm:[1,0,3,2] row_mask:0xf bank_mask:0xf")
            e(f"v_add_f32_dpp v{r}, v{r}, v{r} quad_perm:[2,3,0,1] row_mask:0xf bank_mask:0xf")
            e(f"v_add_f32_dpp v{r}, v{r}, v{r} row_half_mirror row_mask:0xf bank_mask:0xf")
        def dots(bt):
            Q.wait(("rs", bt))
            for i in range(4 * bounds[bt], 4 * bounds[bt + 1]):
                e(f"v_dot2_f32_bf16 v{80+(i&1)}, v{RS+i}, v84, v{80+(i&1)}\nv_dot2_f32_bf16 v{82+(i&1)}, v{RS+i}, v{RS+i}, v{82+(i&1)}")
        e("v_mov_b32 v84, 0x3f803f80\nv_mov_b64 v[80:81], 0\nv_mov_b64 v[82:83], 0")
        for bt in range(len(bounds) - 1):
            if bt: H.at(bt - 1)
            for i in range(bounds[bt], bounds[bt + 1]): e(f"buffer_load_dwordx4 {v(RS+4*i,4)}, v5, {s(SX,4)}, s34 offen offset:{128*i}")
            Q.add(("rs", bt), bounds[bt + 1] - bounds[bt])
            if bt == 1: zero_own_flags(Q)
            if bt >= LAG: dots(bt - LAG)
        e(f"s_and_b32 s39, s39, 15\ns_or_b32 s39, s39, 0x80\ns_lshl_b32 s30, s{sG}, 5\ns_add_u32 s30, s30, s{sR}")
        e(f"v_mov_b32 v8, s39\nv_mov_b32 v2, s30")
        nb_ = len(bounds) - 1
        for bt in range(nb_ - LAG, nb_):
            H.at(bt + LAG - 1); dots(bt)
        H.by(H0AT + 1)
        e(f"s_mov_b64 exec, 1\nbuffer_store_byte v8, v2, {s(SD,4)}, 0 offen sc1\ns_mov_b64 exec, -1")
        e("v_add_f32 v10, v80, v81\nv_add_f32 v11, v82, v83")
        red8(10)
        red8(11)
        if DOT: e(f"v_mul_f32 v12, {f32(-1/1024)}, v10\nv_fma_f32 v11, v12, v10, v11\nv_max_f32 v11, 0, v11")
        ln_finish(10, 11, 1024)
        e("v_mul_f32 v10, v10, v11\nv_sub_f32 v10, 0, v10")
        e(f"v_lshrrev_b32 v7, 3, v1\nv_lshlrev_b32 v7, 2, v7\ns_lshl_b32 s32, s35, 5\ns_add_u32 s32, s32, {WS_RA}\ns_add_u32 s33, s32, {WS_RB-WS_RA}")
        set_exec(0x0101010101010101)
        e(f"buffer_store_dword v11, v7, {s(SWS,4)}, s32 offen sc1\nbuffer_store_dword v10, v7, {s(SWS,4)}, s33 offen sc1\ns_mov_b64 exec, -1")
        ST("st_pub")
        H.by(GAT - 1); H.at(GAT - 3)
        e(f"v_lshlrev_b32 v12, 2, v1\nbuffer_load_dword v13, v12, {s(SD,4)}, 0 offen sc1")
        H.at(GAT - 1)
        def handshake():
            X = A.newlabel("hsx")
            e(f"s_waitcnt vmcnt(0)\nv_and_b32 v8, 0x80808080, v13\nv_cmp_ne_u32 vcc, 0x80808080, v8\ns_cbranch_vccz {X}")
            poll("0", 64, srd_=SD, mask="0x80808080", t=8, sleep=16)
            e(f"buffer_load_dword v13, v12, {s(SD,4)}, 0 offen sc1\ns_waitcnt vmcnt(0)")
            A.label(X)
            e(f"s_mul_i32 s31, s39, 0x01010101\nv_cmp_ne_u32 vcc, s31, v13\ns_lshl_b32 s30, s{sG}, 3\ns_lshr_b64 s[32:33], vcc, s30\ns_and_b32 s30, s32, 0xff")
            if FORCE >= 0: e(f"s_mov_b32 s30, {FORCE}")
            e(f"v_mov_b32 v8, s30\nv_mov_b32 v7, {L_HD}\ns_mov_b64 exec, 1\nds_write_b32 v7, v8\ns_mov_b64 exec, -1")
        H.atomic(handshake)
        H.at(GAT)
        e(f"v_and_b32 v6, 31, v1\nv_lshlrev_b32 v6, 4, v6\nv_lshrrev_b32 v7, 5, v1\nv_lshl_add_u32 v6, v7, 13, v6\ns_lshl_b32 s34, s{sRB}, 9\ns_add_u32 s34, s34, {WS_RA}")
        ld = lambda: e(f"buffer_load_dwordx4 v[16:19], v6, {s(SWS,4)}, s34 offen sc1")
        ld()
        H.at(GAT + 2)
        def fin():
            retry(ld, [16, 17, 18, 19], 64)
            e(f"v_lshlrev_b32 v6, 4, v1\nv_add_u32 v6, {L_RA}, v6\nds_write_b128 v6, v[16:19]\ns_waitcnt lgkmcnt(0)")
        H.atomic(fin)
        ST("st_in")
        H.by(16)
    H.emit(17, HLIM, NPF, pf_from=PFD0, pf_to=GAT + 1, pre0=PRE0, cw=(0, 14) if CWARM > 1 else (0,))
    e("s_waitcnt lgkmcnt(0)")
    pf_stamp(ST)

def helper1_phase1(ST, Q):
    CSR = 80
    with HStream() as H:
        e(f"""
s_lshl_b32 s35, s{sRB}, 4
s_add_u32 s35, s35, s{sCB}
v_bfe_u32 v6, v1, 3, 2
v_lshrrev_b32 v7, 5, v1
v_lshl_add_u32 v6, v7, 6, v6
v_and_b32 v7, 7, v1
v_mul_u32_u24 v6, 6144, v6
v_lshl_add_u32 v6, v7, 4, v6
s_mul_i32 s32, s{sRB}, {4*6144}
s_lshl_b32 s33, s{sCB}, 7
s_add_u32 s32, s32, s33
""")
        bounds = [0] + HB + [8]
        e("v_mov_b32 v10, 0x00003f80\nv_mov_b32 v11, 0x3f800000")
        for r in range(U0, U0 + 24, 2): e(f"v_mov_b64 {v(r,2)}, 0")
        def dots(bt):
            Q.wait(("cs", bt))
            for i in range(bounds[bt], bounds[bt + 1]):
                for j in range(3):
                    for d in range(4):
                        u, r = U0 + 8 * j + 2 * d, CSR + 4 * (8 * j + i) + d
                        e(f"v_dot2_f32_bf16 v{u}, v{r}, v10, v{u}\nv_dot2_f32_bf16 v{u+1}, v{r}, v11, v{u+1}")
        nb_ = len(bounds) - 1
        for bt in range(nb_):
            if bt: H.at(bt - 1)
            for i in range(bounds[bt], bounds[bt + 1]):
                for j in range(3):
                    e(f"s_add_u32 s31, s32, {2048*j + 128*6144*i}\nbuffer_load_dwordx4 {v(CSR+4*(8*j+i),4)}, v6, {s(SB,4)}, s31 offen {'nt' if i < NTK else ''}")
            Q.add(("cs", bt), 3 * (bounds[bt + 1] - bounds[bt]))
            if bt >= LAG: dots(bt - LAG)
        for bt in range(nb_ - LAG, nb_):
            H.at(bt + LAG - 1); dots(bt)
        e(f"s_mul_i32 s33, s35, 768\ns_add_u32 s33, s33, {WS_CS1}")
        for j in range(3): colsum_block(j, 0, 0, (8,))
        H.at(H0AT + 1)
        for j in range(3): colsum_store(Q, j, 33, 8, "st1")
        ST("st_pub")
        H.by(GAT - 1); H.at(GAT)
        e(f"s_mul_i32 s33, s{sCB}, 768\ns_add_u32 s33, s33, {WS_CS1}\nv_lshlrev_b32 v6, 4, v1")
        def ld():
            for k in range(16): e(f"s_add_u32 s31, s33, {k*16*768}\nbuffer_load_dwordx4 {v(16+4*k,4)}, v6, {s(SWS,4)}, s31 offen sc1")
        def ld0():
            set_exec((1 << 48) - 1); ld(); e("s_mov_b64 exec, -1")
        H.atomic(ld0)
        H.at(GAT + 2)
        def fin():
            retry(ld, list(range(16, 80)), 48)
            for k in range(1, 16): e(f"v_pk_add_f32 v[16:17], v[16:17], {v(16+4*k,2)}\nv_pk_add_f32 v[18:19], v[18:19], {v(18+4*k,2)}")
            e(f"v_add_u32 v6, {L_CS}, v6\nds_write_b128 v6, v[16:19]\ns_mov_b64 exec, -1\ns_waitcnt lgkmcnt(0)")
        H.atomic(fin)
        ST("st_in")
        H.by(16)
    H.emit(17, HLIM, NPF, pf_from=PFD0, pf_to=GAT + 1, pre0=PRE0, cw=(0, 14) if CWARM > 1 else (0,))
    e("s_waitcnt lgkmcnt(0)")
    pf_stamp(ST)

def helper_rest(ST, Q):
    CSR = 16
    with HStream() as H:
        if B3LATE: H.at(0)
        for st in range(6, G3.NSB): G3.issue_b(Q, st)
        H.at(5)
        Q.wait_all()
        H.by(6)
        roles_84()
        b_src_w1()
        G4.p_setup_b(sWN)
        e(f"""
v_lshrrev_b32 v6, 3, v1
v_mul_u32_u24 v6, 7168, v6
v_and_b32 v7, 7, v1
v_lshl_add_u32 v6, v7, 4, v6
v_lshrrev_b32 v5, 2, v1
v_mul_u32_u24 v5, 7168, v5
v_and_b32 v7, 3, v1
v_lshl_add_u32 v5, v7, 4, v5
s_lshl_b32 s35, s{sRB}, 1
s_add_u32 s35, s35, s{sWN}
s_mul_i32 s32, s35, {32*7168}
s_mul_i32 s33, s{sCB}, 448
s_add_u32 s32, s32, s33
""")
        e(f"s_mul_i32 s33, s35, {3584*4}\ns_mul_i32 s34, s{sCB}, 896\ns_add_u32 s33, s33, s34\ns_add_u32 s33, s33, {WS_CS2}")
        if WARM4:
            e(f"s_and_b32 s36, s35, 15\ns_mul_i32 s36, s36, {4*7168}\ns_mul_i32 s37, s{sCB}, 448\ns_and_b32 s37, s37, {hex(0xffffff80)}\ns_add_u32 s36, s36, s37")
            e(f"v_bfe_u32 v8, v1, 2, 2\nv_mul_u32_u24 v8, 7168, v8\nv_and_b32 v9, 3, v1\nv_lshl_add_u32 v8, v9, 7, v8\ns_mov_b32 s37, {(G4.korder[1]-G4.korder[0])*64*7168}\nv_mul_lo_u32 v9, v3, s37\nv_add_u32 v8, v8, v9")
            assert G4.korder[0] == 0 and G4.korder[2] == 2 * G4.korder[1]
            H.at(CS2AT - 1)
            e(f"buffer_load_dword v244, v8, {s(SB,4)}, s36 offen"); Q.add("warm")
        H.at(CS2AT)
        for j in range(3):
            for i in range(4):
                e(f"s_add_u32 s31, s32, {8*7168*i}\nbuffer_load_dwordx4 {v(CSR+4*(4*j+i),4)}, v6, {s(SB,4)}, s31 offen offset:{128*j}")
            Q.add(("w", j), 4)
        for i in range(2):
            e(f"s_add_u32 s31, s32, {16*7168*i}\nbuffer_load_dwordx4 {v(CSR+48+4*i,4)}, v5, {s(SB,4)}, s31 offen offset:384")
        Q.add(("w", 3), 2)
        if BTAIL:
            H.at(BT0); G4.issue_b(Q, 0)
            H.at(13); G4.issue_b(Q, 1)
    H.emit(17, 40, 1, every=3, pf_to=CS2AT, cw=(14,) if CWARM > 1 else ())
    pf_stamp(ST)
    for j in range(4):
        Q.wait(("w", j))
        colsum_block(j, CSR + 16 * j, 4 if j < 3 else 2, (8,) if j < 3 else (4, 8))
    pf_until_ep(2)
    if BSEEN:
        for j in range(4): colsum_store(Q, j, 33, 8 if j < 3 else 4, "st2")
        if BSEEN == 2: G4.issue_b(Q, 1)
        e(f"v_mov_b32 v12, {L_FULL}")
        lds_wait(12, 1, vFV, sleep=1)
        if BSEEN == 1: G4.issue_b(Q, 1)
    else:
        if not BLATE:
            for st in ((2,) if BTAIL else (1, 2)): G4.issue_b(Q, st)
        for j in range(4): colsum_store(Q, j, 33, 8 if j < 3 else 4, "st2")
    ST("cs2_pub")
    if BTAIL: Q.wait(0)
    with HStream() as H:
        e(f"s_lshl_b32 s36, s{sRB}, 8\ns_add_u32 s36, s36, {WS_F3}\ns_lshr_b32 s37, s{sR}, 1\ns_min_u32 s37, s37, 13\ns_lshl_b32 s37, s37, 8\ns_add_u32 s37, s37, {WS_F3}")
        H.at(0)
        if BSEEN:
            H.atomic(lambda: G4.issue_b(Q, 2), 0)
            Q.wait(1)
            H.at(1)
        Q.wait(2)
        e("v_lshlrev_b32 v240, 2, v1\nv_mul_u32_u24 v241, 12, v1")
        H.at(CHKAT)
        e(f"buffer_load_dword v232, v240, {s(SWS,4)}, s36 offen sc1\nbuffer_load_dwordx3 v[234:236], v241, {s(SWS,4)}, s37 offen sc1")
        Q.add("chk", 2)
        H.at(CHKAT + 2)
        def chk():
            X = A.newlabel("ckx")
            Q.wait("chk")
            e(f"v_lshrrev_b32 v232, 1, v232\nv_and_b32 v232, v232, v236\nv_and_b32 v234, v234, v235\nv_and_b32 v232, v232, v234\nv_and_b32 v232, 1, v232\nv_cmp_ne_u32 vcc, 1, v232\ns_cbranch_vccz {X}")
            poll("s36", 64, mask=2, t=8, sleep=8)
            for d in range(3):
                e(f"s_add_u32 s38, s37, {256*d}"); poll("s38", 64, mask=1, t=8, sleep=8)
            A.label(X)
        H.atomic(chk, 10)
        e(f"v_lshlrev_b32 v11, 4, v1\ns_lshl_b32 s36, s35, 14\ns_add_u32 s36, s36, {WS_STAT}\ns_add_u32 s37, s36, 4096\ns_add_u32 s38, s36, 8192\ns_add_u32 s39, s36, 12288")
        for i in range(16): e(f"buffer_load_dwordx4 {v(96+4*i,4)}, v11, {s(SWS,4)}, s{36+i//4} offen offset:{1024*(i%4)} sc1")
        Q.add("stat", 16)
        e(f"s_mul_i32 s33, s{sCB}, 896\ns_mul_i32 s34, s{sWN}, 448\ns_add_u32 s33, s33, s34\ns_add_u32 s33, s33, {WS_CS2}")
        e(f"v_and_b32 v7, 31, v1\nv_lshlrev_b32 v7, 4, v7\nv_lshrrev_b32 v6, 5, v1\nv_mul_u32_u24 v6, {3584*4}, v6\nv_add_u32 v6, v6, v7")
        M28 = ((1 << 28) - 1) | (((1 << 28) - 1) << 32)
        def ld(ks=range(16)):
            for k in ks: e(f"s_add_u32 s31, s33, {k*2*3584*4}\nbuffer_load_dwordx4 {v(16+4*k,4)}, v6, {s(SWS,4)}, s31 offen sc1")
        for c in range(4):
            def ldc(c=c):
                set_exec(M28); ld(range(4 * c, 4 * c + 4)); e("s_mov_b64 exec, -1")
            H.atomic(ldc, 4 * VMC)
        Q.add("cs", 16)
        Q.wait("stat")
        for h in range(2):
            e(f"v_pk_add_f32 {v(160+2*h,2)}, {v(96+2*h,2)}, {v(100+2*h,2)}")
            for i in range(2, 16): e(f"v_pk_add_f32 {v(160+2*h,2)}, {v(160+2*h,2)}, {v(96+4*i+2*h,2)}")
        for h in range(2): e(f"v_mov_b32 v{164+h}, v{160+2*h}")
        for h in range(2): e(f"v_permlane32_swap_b32 v{160+2*h}, v{164+h}")
        for h in range(2): e(f"v_add_f32 v{160+2*h}, v{160+2*h}, v{164+h}\nv_mul_f32 v{166+h}, {f32(1/32)}, v{160+2*h}\nv_mov_b32 v{168+h}, 0")
        for i in range(16):
            for h in range(2):
                r = 96 + 4 * i + 2 * h
                e(f"v_sub_f32 v{r}, v{r}, v{166+h}\nv_fma_f32 v{168+h}, v{r}, v{r}, v{168+h}")
        e(f"v_mov_b32 v13, {f32(1/32)}")
        for h in range(2): e(f"v_fma_f32 v{161+2*h}, v{168+h}, v13, v{161+2*h}\nv_mov_b32 v{164+h}, v{161+2*h}")
        for h in range(2): e(f"v_permlane32_swap_b32 v{161+2*h}, v{164+h}")
        for h in range(2):
            a_, b_ = 160 + 2 * h, 161 + 2 * h
            e(f"v_add_f32 v{b_}, v{b_}, v{164+h}")
            ln_finish(a_, b_, 1024)
            e(f"v_mul_f32 v{b_}, {f32(-LOG2E)}, v{b_}\nv_mul_f32 v{a_}, v{a_}, v{b_}\nv_sub_f32 v{a_}, 0, v{a_}")
        e(f"s_lshl_b32 s30, s{sWN}, 9\ns_add_u32 s30, s30, {L_RA}\nv_add_u32 v13, s30, v7\nds_write_b128 v13, v[160:163]")
        def fin():
            retry(ld, list(range(16, 80)), M28)
            e("s_mov_b64 exec, -1")
        H.atomic(fin, 36)
        for k in range(1, 16): e(f"v_pk_add_f32 v[16:17], v[16:17], {v(16+4*k,2)}\nv_pk_add_f32 v[18:19], v[18:19], {v(18+4*k,2)}")
        for h in range(4): e(f"v_mov_b32 v{20+h}, v{16+h}")
        for h in range(4): e(f"v_permlane32_swap_b32 v{16+h}, v{20+h}")
        e("v_pk_add_f32 v[16:17], v[16:17], v[20:21]\nv_pk_add_f32 v[18:19], v[18:19], v[22:23]")
        e(f"s_add_u32 s34, s34, {L_CS}\nv_add_u32 v7, s34, v7"); set_exec((1 << 28) - 1)
        e("ds_write_b128 v7, v[16:19]\ns_mov_b64 exec, -1\ns_waitcnt lgkmcnt(0)")
        ST("st2_in")
        H.by(16)
        if W2NT:
            H.at(W2AT)
            def w2pf():
                srd(SB, pW2, 7 * MB)
                e(f"s_lshr_b32 s36, s{sG}, 1\ns_mul_i32 s36, s36, {896*2048}\ns_lshl_b32 s37, s{sR}, 1\ns_add_u32 s37, s37, s{sWN}\ns_mul_i32 s37, s37, {56*128}\ns_add_u32 s36, s36, s37\nv_lshlrev_b32 v240, 7, v1")
                set_exec((1 << 56) - 1)
                for k in range(2): e(f"s_add_u32 s31, s36, {k*64*56*128}\nbuffer_load_dword v{244+k}, v240, {s(SB,4)}, s31 offen {W2NT.replace('none','')}")
                e("s_mov_b64 exec, -1")
            H.atomic(w2pf, 0)
    H.emit(17, HLIM4, NPF, more=True, pf_to=14, cw=(14,) if CWARM > 1 else ())
    pf_stamp(ST)
    pf_finish()
    if RP5:
        roles_w2(); b_src_w2(); G5.p_setup_b(sWN); G5.rp_addr()
        Q.q = []
        G5.rp_load(Q, RP5, 16)
        with HStream() as H:
            for i in range(RP5):
                H.at(i + 1); H.atomic(lambda: G5.rp_drain(Q, i, 16), 0)
        H.emit(RP5 + 2, 99, 0)
    if CANARY:
        roles_w2()
        Q.q = []
        with HStream() as H:
            e(f"s_lshl_b32 s33, s{sRB}, 3\ns_add_u32 s33, s33, s{sCB}\ns_mul_i32 s34, s33, {256*KB}\ns_add_u32 s34, s34, {WS_PART}\ns_lshl_b32 s30, s{sWN}, 13\ns_add_u32 s34, s34, s30")
            e(f"s_lshl_b32 s30, s{sKS}, 14\ns_add_u32 s34, s34, s30\nv_lshlrev_b32 v2, 4, v1")
            for k in range(4): e(f"v_mov_b32 v{8+k}, -1")
            e(f"s_lshl_b32 s37, s33, 6\ns_lshl_b32 s30, s{sKS}, 4\ns_add_u32 s37, s37, s30\ns_lshl_b32 s30, s{sWN}, 3\ns_add_u32 s37, s37, s30\ns_add_u32 s37, s37, {WS_F5}")
            H.at(PFILL)
            for d in range(1, 4):
                for hb in range(2):
                    e(f"s_add_u32 s31, s{sKS}, {d}\ns_and_b32 s31, s31, 3\ns_lshl_b32 s31, s31, 16\ns_add_u32 s31, s31, s34\ns_add_u32 s31, s31, {hb*4096}")
                    for b in range(4): e(f"buffer_store_dwordx4 v[8:11], v2, {s(SWS,4)}, s31 offen offset:{b*1024} sc1")
            H.by(PFILL + 7); H.at(PFILL + 8)
            e(f"s_waitcnt vmcnt(0)\nv_mov_b32 v12, 1\nv_lshlrev_b32 v13, 2, v1\ns_mov_b64 exec, 3\nbuffer_store_dword v12, v13, {s(SWS,4)}, s37 offen sc1\ns_mov_b64 exec, -1")
        H.emit(PFILL + 10, 24, 0)
    if W2NT:
        set_exec((1 << 56) - 1)
        for k in range(2, 4): e(f"s_add_u32 s31, s36, {k*64*56*128}\nbuffer_load_dword v{244+k}, v240, {s(SB,4)}, s31 offen {W2NT.replace('none','')}")
        e("s_mov_b64 exec, -1")

def producer(ST):
    Q = VmQ()
    pf_init()
    e(f"s_cmp_eq_u32 s{sW}, 2\ns_cbranch_scc1 L_h0\ns_cmp_eq_u32 s{sW}, 3\ns_cbranch_scc1 L_h1")
    SD_ = ST.fork("D"); dma_phase1(SD_, Q)
    e("s_branch L_att")
    A.label("L_h0")
    if HPRIO: e(f"s_setprio {HPRIO}")
    SH = ST.fork("H"); helper0_phase1(SH, VmQ())
    e("s_branch L_att")
    A.label("L_h1")
    if HPRIO: e(f"s_setprio {HPRIO}")
    SH = ST.fork("H"); helper1_phase1(SH, VmQ())
    while len(SH.names) < len(SD_.names): SH.names.append("-")
    while len(SD_.names) < len(SH.names): SD_.names.append("-")
    A.label("L_att")
    e(f"s_setprio {APRIO}")
    n0 = len(SD_.names)
    neighbours_and_attention(SD_, Q)
    SH.names += SD_.names[n0:]
    e(f"s_cmp_ge_u32 s{sW}, 2\ns_cbranch_scc1 L_hrest")
    dma_rest(SD_, Q)
    SD_.flush()
    e("s_endpgm")
    A.label("L_hrest")
    e(f"s_setprio {HPRIO}")
    helper_rest(SH, VmQ())
    SH.flush()

def main():
    A.begin_kernel(KN)
    if STAMPS: e(f"{STAMP_OP} {s(sST,2)}")
    e(f"""
s_cmp_ge_u32 s2, 256
s_cbranch_scc1 L_end
s_load_dwordx16 s[48:63], s[0:1], 0
s_load_dwordx2 s[64:65], s[0:1], 64
v_lshrrev_b32 v2, 6, v0
v_and_b32 v1, 63, v0
v_readfirstlane_b32 s{sWAVE}, v2
v_lshrrev_b32 v3, 4, v1
v_and_b32 v4, 15, v1
s_and_b32 s{sG}, s2, 7
s_mov_b32 s3, 0
s_lshr_b32 s{sR}, s2, 3
s_and_b32 s{sW}, s{sWAVE}, 3
s_lshr_b32 s{sWM}, s{sW}, 1
s_and_b32 s{sWN}, s{sW}, 1
""")
    roles_p1()
    e(f"s_lshl_b32 s{sOWN}, s{sCB}, 4\ns_add_u32 s{sOWN}, s{sOWN}, s{sRB}\ns_lshl_b32 s{sOWN}, s{sOWN}, 16")
    e(f"s_add_u32 s{sROT}, s{sRB}, s{sCB}\ns_and_b32 s{sROT}, s{sROT}, {15 if ROT1 else 0}")
    e(f"s_lshl_b32 s{sBC}, s{sCB}, 7\ns_mov_b32 s{sBR}, 0\ns_lshl_b32 s{sAR}, s{sRB}, 18")
    G1.p_setup_a(); G1.p_setup_b()
    sync_regs()
    e("s_waitcnt lgkmcnt(0)")
    if STAMPS: e(f"s_mov_b32 s78, s{sST}\ns_mov_b32 s0, 0\ns_mov_b32 s1, 0")
    srd(SX, pX, 4 * MB); srd(SB, pWQKV, 6 * MB)
    if WSOFF: e(f"s_add_u32 s{pWS}, s{pWS}, {WSOFF*MB}\ns_addc_u32 s{pWS+1}, s{pWS+1}, 0")
    srd(SWS, pWS, WS_BYTES); srd(SD, pDBG, 256)
    e(f"s_cmp_lt_u32 s{sWAVE}, 4\ns_cbranch_scc1 L_cons")
    producer(Stamper("P"))
    A.label("L_end")
    e("s_endpgm")
    A.label("L_cons")
    if CPRIO: e(f"s_setprio {CPRIO}")
    consumer(Stamper("C"))
    A.lines.append(f".fill ({NCODE*8192} - (. - {KN})) / 4, 4, 0xbf810000")
    A.end_kernel(KN, 256, 102)
    A.lines = hazard.fix(A.lines)
    hdr = open("sequential_preLN__sliding_block__dense_activation_silu__prompt.s.ref").read().split("; Override launch")[0]
    hdr += f"; @launch grid=(256,1,1) block=(512,1,1) lds={LDS_BYTES}\n"
    for k, nm in STAMP_NAMES.items(): hdr += f"; stamps {k}: {' '.join(nm)}\n"
    sys.stdout.write(A.text(hdr))
main()
```

```python
import sys, struct
from asmlib import Asm
import hazard

ARGS = sys.argv[1:]
def opt(name, default):
    for a in ARGS:
        if a.startswith("--" + name + "="): return type(default)(a.split("=", 1)[1])
    return default
STAMPS = "--stamps" in ARGS
STAMP_OP = "s_memtime" if "--cyc" in ARGS else "s_memrealtime"
DPRIO = opt("dprio", 0)
FORCE = opt("force", -1)
PSLEEP = opt("psleep", 1)
GAT = opt("gat", 13); H0AT = opt("h0at", 5)
PUBN = opt("pubn", 16)
FPOS = opt("fpos", 8)
RP4 = opt("rp4", 0); RP5 = opt("rp5", 0)
CS2AT = opt("cs2at", 11)
BT0 = opt("bt0", 11)
CHKAT = opt("chkat", 3)
HLIM4 = opt("hlim4", 42)
DOTC = opt("dotc", 1.0)
NOST4 = opt("nost4", 0)
NSB3 = opt("nsb3", 11)
PF2 = opt("pf2", 4)
XAT = opt("xat", -1)
VBAR = opt("vbar", 4)
VLATE = opt("vlate", 1)
VBARP = opt("vbarp", 1)
CHAIN = opt("chain", "none").split(",")
RSP = opt("rsp", 0.75)
LEVELS = opt("levels", 1)
LFIRST = opt("lfirst", 0)
HLT = opt("hlt", 1)
BTAIL = opt("btail", 0)
F5W = opt("f5w", 1)
CPRIO = opt("cprio", 0)
PERT = opt("pert", 0.0); PERTN = opt("pertn", 1); PERTL = opt("pertl", 1)
KFLAG = opt("kflag", 1)
SLOWPF = opt("slowpf", 1)
GATEN = {"wo": opt("g3n", 2), "w1": opt("g4n", 2)}
APK = opt("apk", 1)
AMIX = opt("amix", 0)
APRIO = opt("aprio", 0)
TAILPM = opt("tailpm", 1)
DBGOUT = opt("dbgout", -1)
CANARY = opt("canary", 0)
BSEEN = opt("bseen", 0)
PFILL = opt("pfill", 0)
ASY5 = opt("asy5", 1)
WARM4 = opt("warm4", 0)
ASYNC = opt("async", 0)
NTK = opt("ntk", 0)
TLBW = opt("tlbw", 1)
TLBG = opt("tlbg", 21)
EARLY5 = opt("early5", 1)
E5LAG = opt("e5lag", 2)
LAG = opt("lag", 1)
H1FL = opt("h1fl", "")
B1FL = opt("b1fl", "")
W2NT = opt("w2nt", "")
W2AT = opt("w2at", 14)
KORD = opt("kord", 1)
CWARM = opt("cwarm", 1)
NCODE = opt("ncode", 12)
TAILD = opt("taild", 0)
TOUCH4 = opt("touch4", 0)
HB = [int(x) for x in opt("hb", "3,5,7").split(",")]
DOT = opt("dot", 1)
PFH = opt("pfh", 0)
PFD0 = opt("pfd0", 3)
BEARLY = opt("bearly", 0)
BLATE = opt("blate", 0)
B3LATE = opt("b3late", 0)
KVFL = opt("kvfl", "sc1")
FINE = opt("fine", 1)
G4AT = opt("g4at", 9)
NPF = opt("npf", 1)
PFW1 = opt("pfw1", 0)
PFBUB = opt("pfbub", 0)
DST = opt("dst", "")
DW = eval(opt("dw", "()")); DB = eval(opt("db", "(0,1,2,3,4,5,6,7,8,9,10,12,14)"))
VMC = opt("vmc", 5)
PRE0 = opt("pre0", 999)
DBGH = opt("dbgh", 0)
P1G = opt("p1g", 2)
HLIM = opt("hlim", 120)
HPRIO = opt("hprio", 0)
SENT = 0xFFFFFFFF
SKIP = opt("skip", "att_v,p_flag").split(",")
ROT1 = opt("rot1", 0); ROT3 = opt("rot3", 0); ROT4 = opt("rot4", 0)
BAR = opt("bar", 0)
NS1 = opt("ns1", 3)
ALIAS = opt("alias", 1)
TESTH1 = opt("testh1", 0)
TFL = opt("tfl", "nt")
TOUCH = opt("touch", 0)
LFL = opt("lfl", "").replace("_", " ")
PFL = opt("pfl", "sc1").replace("_", " ")
OFL = opt("ofl", "").replace("_", " ")
TS = opt("ts", 0)
SPFON = opt("spf", 1)
PFB = opt("pfb", 6)
MAP1 = opt("map1", 162)
WAKE = opt("wake", 0)
LCAP = opt("lcap", 10)
SPREAD = opt("spread", 0.8)
DPOS = opt("dpos", 0.25)
NOSY = opt("nosy", "")
EARLY = opt("early", 1)
DSLEEP = opt("dsleep", 1)
ONLY = opt("only", 0)
NOLOAD = opt("noload", "")
NOMFMA = opt("nomfma", 0)
KN = "sequential_preLN__sliding_block__dense_activation_silu__prompt_kernel"
SPLIT = 4

MB = 1 << 20; KB = 1024
WS_AR, WS_H, WS_AR2 = 0, 20 * MB, 24 * MB
AR_K, AR_V, AR_O = 0, 16 * KB, 32 * KB
WS_STAT = 40 * MB
WS_CS1 = 41 * MB
WS_CS2 = 41 * MB + 256 * KB
WS_RA = 41 * MB + 768 * KB
WS_RB = WS_RA + 8 * KB
WS_F1 = 41 * MB + 896 * KB
WS_F2 = WS_F1 + 4 * KB; WS_F3 = WS_F2 + 8 * KB; WS_F4 = WS_F3 + 4 * KB; WS_F5 = WS_F4 + 4 * KB
WS_F6 = WS_F5 + 8 * KB; WS_F7 = WS_F6 + 2 * KB; WS_F8 = WS_F7 + 1 * KB
WS_F5W = 42 * MB
WS_HL = 44 * MB
WS_F3L = WS_F8
WS_DBG = 48 * MB
WS_PART = 52 * MB
WSOFF = opt("wsoff", 0)
WS_BYTES = (256 - WSOFF) * MB
LOG2E = 1.4426950408889634
LDS_BYTES = 160 * KB
MISC = LDS_BYTES - 6 * KB
L_RA, L_CS = MISC, MISC + 1024
L_DONE, L_FULL, L_HD, L_EP = MISC + 2048, MISC + 3072, MISC + 4096, MISC + 5120
L_MODE = L_HD + 512
vDW, vFR, vCNT, vFV = 252, 253, 254, 255
SPIN_MAX = 1 << 16
LSPIN_MAX = 1 << 22

def f32(x): return "0x%08x" % struct.unpack("<I", struct.pack("<f", x))[0]
def v(a, n=1): return f"v{a}" if n == 1 else f"v[{a}:{a+n-1}]"
def s(a, n=1): return f"s{a}" if n == 1 else f"s[{a}:{a+n-1}]"

SX, SWS, SB, SD = 4, 8, 12, 16
sWAVE, sW, sG, sR, sRB, sCB, sBC, sBH, sWM, sWN = 20, 21, 22, 23, 24, 25, 26, 27, 28, 29
pX, pWQKV, pWO, pW1, pW2, pOUT, pDBG, pWS = 48, 50, 52, 56, 58, 60, 62, 64
sMODE = 54; sT0 = 55
sAR, sBR, sM0A, sM0B, sM0H, sKS, sCNT, sNEED, sC0 = 66, 67, 68, 69, 70, 71, 72, 73, 74
sST = 76
sOWN, sROT, sAK, sBK = 60 + 40, 60 + 41, 98, 99


A = Asm()
def e(t): A.e(t)
STAMP_NAMES = {}
class Stamper:
    def __init__(self, role): self.role = role; self.names = ["start"]
    def __call__(self, name):
        if not STAMPS: return
        if name in SKIP: return
        n = len(self.names)
        assert n < 17 or self.role == 'C', self.names
        e(f"{STAMP_OP} {s(sST,2)}\ns_waitcnt lgkmcnt(0)\ns_mov_b32 s{78+n}, s{sST}")
        self.names.append(name)
    def fork(self, role):
        t = Stamper(role); t.names = list(self.names); return t
    def flush(self):
        if not STAMPS: return
        self("end")
        n = len(self.names); self.names.append("nslow")
        e(f"s_mul_i32 s0, s0, {1000 if STAMP_OP == 's_memtime' else 100}\ns_add_u32 s{78+n}, s78, s0")
        STAMP_NAMES[self.role] = self.names
        e("s_waitcnt vmcnt(0)")
        for i in range(24): e(f"v_mov_b32 v{8+i}, s{78+min(i,len(self.names)-1)}")
        e(f"s_lshl_b32 s30, s2, 10\ns_lshl_b32 s31, s{sWAVE}, 7\ns_add_u32 s30, s30, s31\ns_add_u32 s30, s30, {WS_DBG}")
        e("v_mov_b32 v2, 0\ns_mov_b64 exec, 1")
        for i in range(6): e(f"buffer_store_dwordx4 {v(8+4*i,4)}, v2, {s(SWS,4)}, s30 offen offset:{16*i}")
        e("s_mov_b64 exec, -1")
        if DBGOUT >= 0 and self.role == "C":
            L = A.newlabel("nodbg")
            e(f"s_cmp_lg_u32 s2, {DBGOUT}\ns_cbranch_scc1 {L}\ns_cmp_lg_u32 s{sWAVE}, 0\ns_cbranch_scc1 {L}")
            srd(SD, pDBG, 256)
            for i in range(16): e(f"v_sub_u32 v{40+i}, v{8+2+i}, v8")
            e("s_mov_b64 exec, 1")
            for i in range(4): e(f"buffer_store_dwordx4 {v(40+4*i,4)}, v2, {s(SD,4)}, 0 offen offset:{16*i} sc1")
            e("s_mov_b64 exec, -1")
            A.label(L)

class VmQ:
    def __init__(self): self.q = []
    def add(self, tag, n=1): self.q += [tag] * n
    def has(self, tag): return tag in self.q
    def after(self, tag):
        if tag not in self.q: return 99
        return len(self.q) - 1 - max(i for i, t in enumerate(self.q) if t == tag)
    def wait(self, tag):
        if tag not in self.q: return
        n = self.after(tag)
        assert n <= 63, n
        e(f"s_waitcnt vmcnt({n})")
        self.q = self.q[len(self.q) - n:]
    def wait_all(self):
        e("s_waitcnt vmcnt(0)"); self.q = []

def set_exec(mask):
    if mask == (1 << 64) - 1: e("s_mov_b64 exec, -1")
    elif mask <= 64: e(f"s_mov_b64 exec, {mask}")
    else: e(f"s_mov_b32 exec_lo, {hex(mask & 0xffffffff)}\ns_mov_b32 exec_hi, {hex(mask >> 32)}")
def srd(d, base, nbytes):
    e(f"s_mov_b32 s{d}, s{base}\ns_and_b32 s{d+1}, s{base+1}, 0xffff\ns_mov_b32 s{d+2}, {nbytes}\ns_mov_b32 s{d+3}, 0x20000")
def xg_multi(op, regs, tmps):
    for sw in ("v_permlane16_swap_b32", "v_permlane32_swap_b32"):
        for r, t in zip(regs, tmps): e(f"v_mov_b32 v{t}, v{r}")
        for r, t in zip(regs, tmps): e(f"{sw} v{r}, v{t}")
        for r, t in zip(regs, tmps): e(f"{op} v{r}, v{r}, v{t}")
def round_bf16(r): e(f"v_cvt_pk_bf16_f32 v{r}, v{r}, v{r}\nv_and_b32 v{r}, 0xffff0000, v{r}")
def ln_finish(vsum, vm2, n):
    e(f"v_mul_f32 v{vsum}, {f32(1.0/n)}, v{vsum}"); round_bf16(vsum)
    e(f"v_mul_f32 v{vm2}, {f32(1.0/n)}, v{vm2}"); round_bf16(vm2)
    e(f"v_add_f32 v{vm2}, {f32(1e-5)}, v{vm2}"); round_bf16(vm2)
    e(f"v_sqrt_f32 v{vm2}, v{vm2}"); round_bf16(vm2)
    e(f"v_rcp_f32 v{vm2}, v{vm2}")
def pack(dst, c0, c1):
    e(f"v_cvt_pk_bf16_f32 v{dst}, v{c0}, v{c0+1}\nv_cvt_pk_bf16_f32 v{dst+1}, v{c0+2}, v{c0+3}")
    e(f"v_cvt_pk_bf16_f32 v{dst+2}, v{c1}, v{c1+1}\nv_cvt_pk_bf16_f32 v{dst+3}, v{c1+2}, v{c1+3}")
def unpack(lo, src): e(f"v_lshlrev_b32 v{lo}, 16, v{src}\nv_and_b32 v{lo+1}, 0xffff0000, v{src}")

def set_flag(soff, st="sc1", val=1, t=5):
    e(f"v_mov_b32 v{t}, 0\nv_mov_b32 v{t+1}, {val}\ns_mov_b64 exec, 1\nbuffer_store_dword v{t+1}, v{t}, {s(SWS,4)}, s{soff} offen {st}\ns_mov_b64 exec, -1")

def poll(soff, nlanes, voff=None, x2=False, srd_=SWS, mask=1, t=8, sleep=None):
    L = A.newlabel("poll"); X = A.newlabel("pollx")
    if voff is None:
        e(f"v_lshlrev_b32 v{t+2}, {3 if x2 else 2}, v1"); voff = t + 2
    if nlanes < 64: set_exec((1 << nlanes) - 1)
    e(f"s_mov_b32 s{sCNT}, 0")
    A.label(L)
    if x2: e(f"buffer_load_dwordx2 {v(t,2)}, v{voff}, {s(srd_,4)}, {soff} offen sc1")
    else: e(f"buffer_load_dword v{t}, v{voff}, {s(srd_,4)}, {soff} offen sc1")
    e(f"s_add_u32 s{sCNT}, s{sCNT}, 1\ns_cmp_gt_u32 s{sCNT}, {SPIN_MAX}\ns_waitcnt vmcnt(0)\ns_cbranch_scc1 {X}")
    if x2: e(f"v_and_b32 v{t}, v{t}, v{t+1}")
    e(f"v_and_b32 v{t}, {mask}, v{t}\nv_cmp_ne_u32 vcc, {mask}, v{t}")
    e(f"s_cbranch_vccz {X}\ns_sleep {PSLEEP if sleep is None else sleep}\ns_branch {L}")
    A.label(X)
    e("s_mov_b64 exec, -1")

sRDY = 40
def flags_refresh(Q, soff, voff, x2, shift=None):
    if flags_refresh.pending and not Q.has("look"):
        if x2: e("v_and_b32 v14, v14, v15")
        if shift: e(f"v_lshrrev_b32 v14, v{shift}, v14")
        e(f"v_and_b32 v14, 1, v14\nv_cmp_ne_u32 vcc, 1, v14\ns_and_b64 {s(sRDY,2)}, {s(sRDY,2)}, vcc")
        flags_refresh.pending = False
    if not flags_refresh.pending:
        e(f"s_cmp_eq_u64 {s(sRDY,2)}, 0\ns_cselect_b32 s30, {WS_BYTES}, s{soff}")
        e(f"buffer_load_dwordx2 v[14:15], v{voff}, {s(SWS,4)}, s30 offen sc1" if x2 else f"buffer_load_dword v14, v{voff}, {s(SWS,4)}, s30 offen sc1")
        Q.add("look"); flags_refresh.pending = True
flags_refresh.pending = False
def need_flags(bits, soff, voff, x2, shift=None):
    L, X = A.newlabel("nf"), A.newlabel("nfx")
    lo, hi = bits & 0xffffffff, bits >> 32
    def test():
        if lo and hi: e(f"s_and_b32 s30, s{sRDY}, {hex(lo)}\ns_and_b32 s31, s{sRDY+1}, {hex(hi)}\ns_or_b32 s30, s30, s31")
        elif lo: e(f"s_and_b32 s30, s{sRDY}, {hex(lo)}")
        else: e(f"s_and_b32 s30, s{sRDY+1}, {hex(hi)}")
    test()
    e(f"s_cbranch_scc0 {X}")
    A.label(L)
    if x2: e(f"buffer_load_dwordx2 v[8:9], v{voff}, {s(SWS,4)}, s{soff} offen sc1\ns_waitcnt vmcnt(0)\nv_and_b32 v8, v8, v9")
    else: e(f"buffer_load_dword v8, v{voff}, {s(SWS,4)}, s{soff} offen sc1\ns_waitcnt vmcnt(0)")
    if shift: e(f"v_lshrrev_b32 v8, v{shift}, v8")
    e(f"v_and_b32 v8, 1, v8\nv_cmp_ne_u32 {s(sRDY,2)}, 1, v8\ns_add_u32 s{sCNT}, s{sCNT}, 1\ns_cmp_gt_u32 s{sCNT}, {SPIN_MAX}\ns_cbranch_scc1 {X}")
    test()
    e(f"s_cbranch_scc1 {L}")
    A.label(X)

def gate_k(G, k, x2):
    n0 = GATEN[G.name]
    if k == 0: need_flags(sum(0xf << (4 * G.korder[j]) for j in range(n0)), 32, 10, x2)
    elif k >= n0: need_flags(0xf << (4 * G.korder[k]), 32, 10, x2)
def spoll(srd_, soff, n16, mask, base=32):
    X = A.newlabel("spx")
    e("s_mov_b32 s31, -1")
    for k in range(2 * n16):
        e(f"s_add_u32 s30, {soff}, {32*k}\ns_buffer_load_dwordx8 {s(base,8)}, {s(srd_,4)}, s30\ns_waitcnt lgkmcnt(0)")
        for i in range(1, 4): e(f"s_and_b64 {s(base,2)}, {s(base,2)}, {s(base+2*i,2)}")
        e(f"s_and_b32 s31, s31, s{base}\ns_and_b32 s31, s31, s{base+1}")
    e(f"s_and_b32 s31, s31, {mask}\ns_cmp_eq_u32 s31, {mask}\ns_cbranch_scc1 {X}")
    poll(soff, 16 * n16, srd_=srd_, mask=mask, t=8, sleep=16)
    A.label(X)

def lds_wait(vaddr, need, vt, sleep=1, off=0):
    L = A.newlabel("lw"); X = A.newlabel("lwx")
    A.label(L)
    e(f"ds_read_b32 v{vt}, v{vaddr} offset:{off}\ns_waitcnt lgkmcnt(0)\nv_cmp_gt_u32 vcc, {need}, v{vt}\ns_cbranch_vccz {X}")
    if sleep: e(f"s_sleep {sleep}")
    e(f"s_add_u32 s3, s3, 1\ns_cmp_lt_u32 s3, {LSPIN_MAX}\ns_cbranch_scc1 {L}")
    A.label(X)
OFF_DONE, OFF_FULL, OFF_HD, OFF_EP = 0, 1024, 2048, 3072
def sync_regs():
    e(f"s_lshl_b32 s30, s{sW}, 8\ns_add_u32 s30, s30, {L_DONE}\nv_lshl_add_u32 v{vDW}, v1, 2, s30")
    e(f"v_and_b32 v{vFR}, 3, v1\nv_mul_u32_u24 v{vFR}, 260, v{vFR}\nv_add_u32 v{vFR}, {L_DONE}, v{vFR}")
def post(off, val, t=vFV):
    e(f"v_mov_b32 v{t}, {val}\nds_write_b32 v{vDW}, v{t} offset:{off}")
def wait_rows(off, need, sleep=1): lds_wait(vFR, need, vFV, sleep=sleep, off=off)

class Gemm:
    PA, PB, PH = 232, 236, 240
    def __init__(self, name, base, TM, TN, NK, NS, KBsrc, ldb, kperm, araw=False, NSB=None, bslot=None, RP=0, alay="rt"):
        self.alay = "raw" if araw else alay
        self.name, self.base, self.TM, self.TN, self.NK, self.NS = name, base, TM, TN, NK, NS
        self.KB, self.ldb, self.kperm, self.araw, self.RP = KBsrc, ldb, kperm, araw, RP
        self.NSB = NSB or NS
        self.MT, self.NT = TM // 32, TN // 32
        self.nfull, self.half = TN // 64, (TN % 64) != 0
        self.a_stage = TM * 128
        b0 = NS * self.a_stage
        self.b0 = b0
        self.b_base = [b0 + j * self.NSB * 8192 for j in range(self.nfull)]
        self.h_base = b0 + self.nfull * self.NSB * 8192
        self.b_sp, self.h_sp, self.b_bs = 8192, 4096, self.NSB * 8192
        if name == "w1" and BTAIL:
            self.b_base = [64 * KB + j * 8192 for j in range(3)]; self.h_base = 64 * KB + 3 * 8192
            self.b_sp = self.h_sp = 28 * KB; self.b_bs = 8192
        self.bslot = bslot or (lambda step: step % self.NSB)
        assert self.h_base + (self.NSB * 4096 if self.half else 0) <= MISC
        MT, NT = self.MT, self.NT
        self.FA = [8, 8 + 4 * MT + 4 * NT]
        self.FB = [self.FA[0] + 4 * MT, self.FA[1] + 4 * MT]
        nxt = self.FA[1] + 4 * MT + 4 * NT
        self.chain = name in CHAIN
        if self.chain:
            self.RA = [8, 8 + 8 * MT]; self.WB = 8 + 16 * MT
            nxt = self.WB + 24
        self.VA = nxt; nxt += 8 if self.alay == "bm" else 2
        self.VB = nxt; nxt += NT
        self.bhi = self.NSB * 8192 > 65536
        self.VB2 = nxt
        if self.bhi: nxt += NT
        nxt = (nxt + 3) // 4 * 4
        self.ACC = nxt; nxt += MT * NT * 4
        self.VX = nxt
        assert nxt <= vDW
        self.RTW = TM // 32
    def acc(self, mt, nt): return self.ACC + (nt * self.MT + mt) * 4
    def swapped(self, nt): return True
    def blk_delta(self, j): return 128 * j

    def c_setup(self):
        MT = self.MT
        if self.araw:
            e(f"""
s_lshl_b32 s30, s{sWM}, 13
v_lshl_add_u32 v5, v4, 7, s30
v_lshrrev_b32 v6, 1, v4
v_xor_b32 v6, v6, v3
v_lshl_add_u32 v{self.VA}, v6, 4, v5
v_xor_b32 v6, 4, v6
v_lshl_add_u32 v{self.VA+1}, v6, 4, v5
""")
        elif self.alay == "bm":
            for p in range(4):
                e(f"s_add_u32 s30, s{sKS}, {p}\ns_and_b32 s30, s30, 3\ns_lshl_b32 s30, s30, 11\ns_lshl_b32 s31, s{sWM}, 14\ns_add_u32 s30, s30, s31")
                e(f"v_lshl_add_u32 v{self.VA+p}, v1, 4, s30\nv_add_u32 v{self.VA+4+p}, 0x10000, v{self.VA+p}")
        else:
            e(f"s_mul_i32 s30, s{sWM}, {MT*2048}\nv_lshl_add_u32 v{self.VA}, v1, 4, s30\nv_add_u32 v{self.VA+1}, 0x10000, v{self.VA}")
        e("v_bfe_u32 v5, v1, 2, 2\nv_and_b32 v6, 3, v1")
        if self.kperm: e("v_lshl_add_u32 v7, v3, 2, v5\nv_bfe_u32 v2, v7, 1, 2")
        else: e("v_lshl_add_u32 v7, v3, 3, v5\nv_lshrrev_b32 v2, 1, v5\nv_and_b32 v8, 1, v3\nv_lshl_or_b32 v2, v8, 1, v2")
        e("v_mov_b32 v9, v7\nv_lshlrev_b32 v7, 7, v7\nv_lshl_add_u32 v7, v6, 3, v7")
        for t, (kind, blk, seg) in enumerate(self.tiles()):
            vb = self.VB + t
            if kind == "F":
                e(f"s_mul_i32 s30, s{sWN}, {seg[1]}\ns_add_u32 s30, s30, {seg[0]}")
                e(f"v_xor_b32 v8, s30, v2\nv_lshl_add_u32 v{vb}, v8, 5, v7")
                e(f"s_mul_i32 s30, s{sWN}, {blk[1]*self.b_bs}\ns_add_u32 s30, s30, {self.b_base[0] + blk[0]*self.b_bs}")
                e(f"v_add_u32 v{vb}, s30, v{vb}")
            else:
                e(f"v_bfe_u32 v8, v9, 2, 1\nv_xor_b32 v8, s{sWN}, v8\nv_lshlrev_b32 v8, 5, v8")
                e(f"v_lshl_add_u32 v8, v9, 6, v8\nv_lshl_add_u32 v8, v6, 3, v8\nv_add_u32 v{vb}, {self.h_base}, v8")
            if self.bhi: e(f"v_add_u32 v{self.VB2+t}, 0x10000, v{vb}")
        if not self.czero():
            for r in range(self.ACC, self.ACC + self.MT * self.NT * 4, 2): e(f"v_mov_b64 {v(r,2)}, 0")
    def b_read(self, step, sub, t, dst):
        kind = self.tiles()[t][0]; sb = self.bslot(step); out = []
        for hi in range(2):
            rows = 32 * sub + (16 if self.kperm else 4) * hi
            off = sb * self.b_sp + rows * 128 if kind == "F" else sb * self.h_sp + rows * 64
            base = self.VB + t
            if off > 0xffff: base, off = self.VB2 + t, off - 0x10000
            out.append(f"ds_read_b64_tr_b16 {v(dst+2*hi,2)}, v{base} offset:{off}")
        return out
    def a_read(self, step, sub, mt, dst):
        sa = step % self.NS
        if self.araw: base, off = self.VA + sub, sa * self.a_stage + mt * 2048
        elif self.alay == "bm":
            off = sa * self.a_stage + sub * 8192 + (mt & 1) * 1024
            base = self.VA + (mt >> 1) + 4 * (off >> 16); off &= 0xffff
        else:
            off = sa * self.a_stage + mt * 2048 + sub * 1024
            base = self.VA + (off >> 16); off &= 0xffff
        return f"ds_read_b128 {v(dst,4)}, v{base} offset:{off}"
    def reads(self, step, sub, fs):
        out = []
        for t in range(self.NT):
            out += self.b_read(step, sub, t, self.FB[fs] + 4 * t)
            if t == 0: out += [self.a_read(step, sub, mt, self.FA[fs] + 4 * mt) for mt in range(self.MT)]
        return out
    def czero(self): return self.chain or self.NSB != self.NS or (self.NK - 1) % self.NS != 0
    def mfmas(self, fs, zero=False):
        out = []
        for t in range(self.NT):
            for mt in (range(self.MT) if t % 2 == 0 else reversed(range(self.MT))):
                a, w, c = v(self.FA[fs] + 4 * mt, 4), v(self.FB[fs] + 4 * t, 4), v(self.acc(mt, t), 4)
                ci = "0" if zero else c
                out.append(f"v_mfma_f32_16x16x32_bf16 {c}, {w}, {a}, {ci}" if self.swapped(t) else
                           f"v_mfma_f32_16x16x32_bf16 {c}, {a}, {w}, {ci}")
        if NOMFMA: out = ["s_nop 0"] * len(out)
        return out
    def c_loop(self, ST, pre_last=None, last_fill=(), nsteps=None, after_go=None):
        NS, NK, n = self.NS, nsteps or self.NK, self.name
        def inter(m, r, extra=()):
            extra = list(extra); per = -(-len(extra) // len(m)) if extra else 0
            span = max(int(len(m) * RSP), 1) if RSP else len(r)
            pos = [min(len(m) - 1, (i * span) // len(r)) for i in range(len(r))]
            for i in range(len(m)):
                e(m[i])
                for j, p in enumerate(pos):
                    if p == i: e(r[j])
                for x in extra[i * per:(i + 1) * per]: e(x)
        def captured(f):
            saved = A.lines; A.lines = []
            if f: f()
            out = [ln for ln in A.lines if ln.strip()]; A.lines = saved
            return out
        def step(k, last=False):
            e("s_waitcnt lgkmcnt(0)")
            inter(self.mfmas(0, k == 0 and self.czero()), self.reads(k, 1, 1), captured(pre_last) if last else ())
            e("s_waitcnt lgkmcnt(0)\ns_barrier")
            inter(self.mfmas(1), list(last_fill) if last else self.reads(k + 1, 0, 0))
        if self.chain:
            return self.c_chain(ST, captured(pre_last), list(last_fill), after_go)
        e("s_barrier")
        ST(n + "_go")
        for r in self.reads(0, 0, 0): e(r)
        if after_go: after_go()
        body = NK - 1
        if self.NSB != NS:
            for k in range(body): step(k)
        else:
            k = 0
            for i in range(body % NS):
                step(k); k += 1
            e(f"s_mov_b32 s{sCNT}, {body // NS}")
            A.label(f"{n}_cloop")
            for i in range(NS):
                step(k); k += 1
            e(f"s_sub_u32 s{sCNT}, s{sCNT}, 1\ns_cmp_lg_u32 s{sCNT}, 0\ns_cbranch_scc1 {n}_cloop")
        step(NK - 1, last=True)
        if not nsteps: ST(n + "_end")

    def free_set(self): return self.RA[self.NK & 1]
    def c_chain(self, ST, pre_last, last_fill, after_go):
        MT, NT, NK = self.MT, self.NT, self.NK
        q = []
        def rd(tag, ins):
            e(ins); q.append(tag)
        def wait(tag):
            if tag in q:
                k_ = min(len(q) - 1 - max(i for i, t in enumerate(q) if t == tag), 14)
                e(f"s_waitcnt lgkmcnt({k_})"); del q[:len(q) - k_]
        slot = lambda k, t: self.WB + 8 * ((k * NT + t) % 3)
        wr = lambda k, t: [(("W", k, t), x) for sub in range(2) for x in self.b_read(k, sub, t, slot(k, t) + 4 * sub)]
        rr = lambda k, m: [(("R", k, m), self.a_read(k, sub, m, self.RA[k & 1] + 8 * m + 4 * sub)) for sub in range(2)]
        e("s_barrier")
        ST(self.name + "_go")
        for x in wr(0, 0) + [y for m in range(MT) for y in rr(0, m)] + wr(0, 1): rd(*x)
        if after_go: after_go()
        for k in range(NK):
            last = k == NK - 1
            for t in range(NT):
                side = []
                if t + 2 < NT: side = wr(k, t + 2)
                if t == NT - 2:
                    e("s_waitcnt lgkmcnt(0)\ns_barrier"); q.clear()
                if t >= NT - 2:
                    h = t - (NT - 2)
                    if last:
                        n2 = (len(last_fill) + 1) // 2
                        side = [("F", x) for x in last_fill[h * n2:(h + 1) * n2]]
                    else:
                        mo = list(range(MT))
                        side = (wr(k + 1, 0) + rr(k + 1, 0) + rr(k + 1, 1)) if h == 0 else (rr(k + 1, 2) + rr(k + 1, 3) + wr(k + 1, 1))
                extra = []
                if last and t < NT - 2:
                    per = -(-len(pre_last) // (NT - 2)); extra = pre_last[t * per:(t + 1) * per]
                wait(("W", k, t))
                order = range(MT) if t % 2 == 0 else reversed(range(MT))
                i = 0; nm = 2 * MT
                for m in order:
                    wait(("R", k, m))
                    for sub in range(2):
                        a, w, c = v(self.RA[k & 1] + 8 * m + 4 * sub, 4), v(slot(k, t) + 4 * sub, 4), v(self.acc(m, t), 4)
                        ci = "0" if k == 0 and sub == 0 else c
                        e(f"v_mfma_f32_16x16x32_bf16 {c}, {w}, {a}, {ci}" if self.swapped(t) else f"v_mfma_f32_16x16x32_bf16 {c}, {a}, {w}, {ci}")
                        ps = -(-len(side) // nm)
                        for x in side[i * ps:(i + 1) * ps]: rd(*x)
                        pe = -(-len(extra) // nm)
                        for x in extra[i * pe:(i + 1) * pe]: e(x)
                        i += 1
        ST(self.name + "_end")

    def p_setup_b(self, w=sW):
        ldb, PB = self.ldb, self.PB
        e(f"""
s_lshl_b32 s{sM0B}, s{w}, 12
s_lshl_b32 s{sM0H}, s{w}, 11
v_lshrrev_b32 v246, 3, v1
s_lshl_b32 s30, s{w}, 5
v_add_u32 v246, s30, v246
v_mul_u32_u24 v246, {ldb}, v246
v_and_b32 v247, 1, v1
v_lshl_add_u32 v246, v247, 4, v246
v_add_u32 v246, s{sBC}, v246
v_bfe_u32 v247, v1, 1, 2
""")
        if self.kperm:
            e(f"v_xor_b32 v245, v247, v3\nv_lshl_add_u32 v{PB}, v245, 5, v246\nv_add_u32 v{PB+1}, {8*ldb-1024}, v{PB}")
        else:
            e(f"v_and_b32 v245, 1, v3\nv_xor_b32 v245, v247, v245\nv_lshl_add_u32 v{PB}, v245, 5, v246")
            e(f"v_xor_b32 v245, 2, v245\nv_lshl_add_u32 v{PB+1}, v245, 5, v246\nv_add_u32 v{PB+1}, {8*ldb-1024}, v{PB+1}")
        e(f"v_add_u32 v{PB+2}, {16*ldb-2048}, v{PB}\nv_add_u32 v{PB+3}, {16*ldb-2048}, v{PB+1}")
        if self.half:
            e(f"""
v_lshrrev_b32 v246, 2, v1
v_add_u32 v246, s30, v246
v_mul_u32_u24 v246, {ldb}, v246
v_and_b32 v247, 1, v1
v_lshl_add_u32 v246, v247, 4, v246
v_add_u32 v246, s{sBH}, v246
v_bfe_u32 v247, v1, 1, 1
v_and_b32 v245, 1, v3
v_xor_b32 v245, v247, v245
v_lshl_add_u32 v{self.PH}, v245, 5, v246
v_add_u32 v{self.PH+1}, {16*ldb-1024}, v{self.PH}
""")
    def p_setup_a(self):
        PA = self.PA
        if self.araw:
            e(f"""
s_lshl_b32 s{sM0A}, s{sW}, 13
v_lshrrev_b32 v246, 3, v1
s_lshl_b32 s30, s{sW}, 6
v_add_u32 v246, s30, v246
v_lshlrev_b32 v246, 11, v246
v_and_b32 v247, 7, v1
v_xor_b32 v247, v247, v3
v_lshl_add_u32 v{PA}, v247, 4, v246
v_xor_b32 v247, 4, v247
v_lshl_add_u32 v{PA+1}, v247, 4, v246
v_add_u32 v{PA+1}, {8*2048-1024}, v{PA+1}
v_add_u32 v{PA+2}, {16*2048-2048}, v{PA}
v_add_u32 v{PA+3}, {16*2048-2048}, v{PA+1}
""")
        else:
            e(f"s_mul_i32 s{sM0A}, s{sW}, {self.RTW*2048}\ns_mul_i32 s30, s{sW}, {self.RTW*self.KB*1024}\nv_lshl_add_u32 v{PA}, v1, 4, s30")
            e(f"v_add_u32 v{PA+1}, {self.KB*1024-2048}, v{PA}")
    astride = 2048
    rot = True
    arot = True
    korder = list(range(16))
    def kbase(self, dst, base, step, stride):
        e(f"s_add_u32 s{dst}, s{base}, {self.korder[step] * stride}")
    def a_src(self, i, step): e(f"s_add_u32 s31, s{sAK}, {2*i*self.KB*1024}")
    def groups_a(self, step):
        st = step % self.NS
        out = []
        for gi in range(self.RTW // 2):
            def fn(gi=gi):
                if gi == 0 and self.arot: self.kbase(sAK, sAR, step, 128 if self.araw else self.astride)
                e(f"s_add_u32 m0, s{sM0A}, {st*self.a_stage + gi*4096}")
                if self.araw:
                    e(f"s_add_u32 s31, s{sAK}, {gi*32*2048}")
                    for i in range(4): e(f"buffer_load_dwordx4 v{self.PA+i}, {s(SX,4)}, s31 offen offset:{i*1024} lds")
                else:
                    self.a_src(gi, step)
                    for i in range(4): e(f"buffer_load_dwordx4 v{self.PA+(i>>1)}, {s(SWS,4)}, s31 offen offset:{i*1024} sc1 lds")
            out.append((step, 4, fn))
        return out
    def b_parts(self, step):
        sb = self.bslot(step); ko = 0 if self.rot else step * 64 * self.ldb
        out = [(sM0B, self.b_base[j] + sb * self.b_sp, ko + self.blk_delta(j), self.PB, 4) for j in range(self.nfull)]
        if self.half: out.append((sM0H, self.h_base + sb * self.h_sp, ko, self.PH, 2))
        return out
    def groups_b(self, step):
        out = []
        for idx, (m0s, lc, sc, vb, n) in enumerate(self.b_parts(step)):
            def fn(m0s=m0s, lc=lc, sc=sc, vb=vb, n=n, idx=idx):
                if idx == 0 and self.rot: self.kbase(sBK, sBR, step, 64 * self.ldb)
                e(f"s_add_u32 m0, s{m0s}, {lc}\ns_add_u32 s31, s{sBK if self.rot else sBR}, {sc}")
                for i in range(n): e(f"buffer_load_dwordx4 v{vb+i}, {s(SB,4)}, s31 offen offset:{i*1024} {'nt' if self.name == 'qkv' and step < 2 * NTK else ''} lds")
            out.append((step, n, fn))
        return out
    def issue_b(self, Q, step):
        for tag, n, fn in self.groups_b(step):
            fn(); Q.add(tag, n)
    def p_loop(self, Q, ST, b_pre, npf=0, every=1, gate=None, tail=None, look=None, merge=False):
        NS, NK, NSB = self.NS, self.NK, self.NSB
        def iss(g):
            for tag, n, fn in g:
                fn(); Q.add(tag, n)
        ga = lambda k: ([(k, 0, lambda: gate(k))] if gate else []) + self.groups_a(k)
        def gr(k):
            kb = k - NS + NSB
            return (self.groups_b(kb) if b_pre <= kb < NK else []) + ga(k)
        first = lambda k: (self.groups_b(k) if k >= b_pre else []) + ga(k)
        if gate: e(f"s_mov_b64 {s(sRDY,2)}, -1\ns_mov_b32 s{sCNT}, 0")
        flags_refresh.pending = False
        iss(first(0))
        if gate: ST(self.name + "_seen")
        if BSEEN and self.name == "w1": post(OFF_FULL, 1)
        g1 = first(1)
        P1G_ = (99 if GATEN.get(self.name, 2) > 1 else 0) if gate else P1G
        iss(g1[:P1G_])
        for i in range(NK):
            if merge and i == NK - 2:
                Q.wait(NK - 1); e("s_barrier"); return
            Q.wait(i)
            if self.name == DST and i in DW: ST(f"w{i}")
            e("s_barrier")
            if self.name == DST and i in DB: ST(f"b{i}")
            if look and (ASYNC or self.name == 'w2') and i in look[0]: flags_refresh(Q, *look[1])
            if i == 0:
                iss(g1[P1G_:])
                for k in range(2, NS): iss(first(k))
            elif i - 1 + NS < NK: iss(gr(i - 1 + NS))
            if tail and i - 1 + NS == NK - 1 + TAILD: tail()
            if (self.name == "qkv" and i == 0) or (CWARM > 1 and i == NK - 2): code_warm()
            if self.name == "qkv" and i == 2: tlb_warm()
            if npf and (PFD0 if self.name == 'qkv' else 1) <= i < NK - 2 and i % every == 0: pf_step(npf + (1 if self.name == 'w1' and i % 3 != 0 else 0))
        e("s_barrier")
        ST(self.name + "_dend")

    def rp_regs(self, i, r0): return r0 + i * (16 * self.nfull + (8 if self.half else 0))
    def rp_load(self, Q, n, r0):
        for i in range(n):
            r = self.rp_regs(i, r0)
            for idx, (m0s, lc, sc, vb, k_) in enumerate(self.b_parts(self.NS + i)):
                if idx == 0: self.kbase(sBK, sBR, self.NS + i, 64 * self.ldb)
                e(f"s_add_u32 s31, s{sBK}, {sc}")
                for k in range(k_):
                    e(f"buffer_load_dwordx4 {v(r,4)}, v{vb+k}, {s(SB,4)}, s31 offen offset:{k*1024}"); r += 4
                Q.add(("rp", i), k_)
            assert r <= 232
    def rp_addr(self):
        b0 = self.b_base[0]
        e(f"v_lshlrev_b32 v245, 4, v1\nv_add_u32 v246, s{sM0H}, v245\nv_add_u32 v245, s{sM0B}, v245\nv_add_u32 v245, {b0}, v245\nv_add_u32 v247, 0x10000, v245\nv_add_u32 v246, {self.h_base}, v246")
    def rp_drain(self, Q, i, r0):
        Q.wait(("rp", i))
        r = self.rp_regs(i, r0)
        for m0s, lc, sc, vb, k_ in self.b_parts(self.NS + i):
            for k in range(k_):
                if m0s == sM0B:
                    off = lc - self.b_base[0] + k * 1024; a = 245
                    if off > 0xffff: off -= 0x10000; a = 247
                else: off = lc - self.h_base + k * 1024; a = 246
                e(f"ds_write_b128 v{a}, {v(r,4)} offset:{off}"); r += 4
        e("s_waitcnt lgkmcnt(0)")

class QKV(Gemm):
    def __init__(self): super().__init__("qkv", 0, 128, 192, 16, NS1, 32, 6144, False, araw=True)
    def tiles(self): return [("F", (t >> 1, 0), (t & 1, 2)) for t in range(6)]
    def swapped(self, nt): return nt < 4
    def blk_delta(self, j): return 2048 * j
class WO(Gemm):
    def __init__(self): super().__init__("wo", 16, 128, 64, 16, 4, 32, 2048, True, NSB=NSB3, bslot=lambda k: (k + 5) % NSB3)
    def tiles(self): return [("F", (0, 0), (t, 2)) for t in range(2)]
    def p_setup_a(self):
        e(f"s_lshl_b32 s{sM0A}, s{sW}, 13\nv_lshl_add_u32 v{self.PA}, v1, 4, s{sM0A}\nv_mov_b32 v{self.PA+1}, v{self.PA}")
        e(f"s_lshl_b32 s{sAR}, s{sRB}, 16\ns_add_u32 s{sAR}, s{sAR}, {WS_AR + AR_O}")
    astride = MB
    korder = [k for k in range(16) if k % 8 != 3] + [3, 11] if KORD else list(range(16))
    def a_src(self, i, step): e(f"s_add_u32 s31, s{sAK}, {i*4096}")
class W1(Gemm):
    def __init__(self): super().__init__("w1", 32, 128, 224, 16, 3, 32, 7168, True)
    korder = list(range(0, 16, 2)) + list(range(1, 16, 2)) if KORD and not LFIRST else list(range(16))
    def kbase(self, dst, base, step, stride):
        if not LFIRST: return super().kbase(dst, base, step, stride)
        if dst == sAK and step < 4: base = sKS
        e(f"s_add_u32 s{dst}, s{sROT}, {step}\ns_and_b32 s{dst}, s{dst}, 15\ns_mul_i32 s{dst}, s{dst}, {stride}\ns_add_u32 s{dst}, s{dst}, s{base}")
    def tiles(self): return [("F", (0, 2), (t, 0)) for t in range(4)] + [("F", (1, 0), (t, 2)) for t in range(2)] + [("H", None, None)]
class W2(Gemm):
    def __init__(self): super().__init__("w2", 48, 256, 128, 14, 3, 112, 2048, True, alay="bm")
    arot = False
    def tiles(self): return [("F", (0, 1), (t, 0)) for t in range(4)]
    def p_setup_a(self):
        e(f"s_lshl_b32 s{sM0A}, s{sW}, 14\nv_lshlrev_b32 v{self.PA}, 4, v1\nv_mov_b32 v{self.PA+1}, v{self.PA}")
        h1_base(sAR)
        e(f"s_lshl_b32 s30, s{sG}, 5\ns_bfe_u32 s31, s{sRB}, 0x20001\ns_add_u32 s30, s30, s31\ns_lshl_b32 s31, s{sW}, 4\ns_add_u32 s30, s30, s31\ns_lshl_b32 s30, s30, 16\ns_add_u32 s{sAR}, s{sAR}, s30")
    def blocks(self):
        if not EARLY5: return [(q // 7, q % 7, 1) for q in range(28)]
        early = [(c, (c & 1) + k, 1) for c in range(4) for k in (0, 4, 1, 5)]
        late = [(c, kb, 2) for c in range(4) for kb in range(7) if (c, kb, 1) not in early]
        return early + late
    def a_src(self, i, step):
        c, kb, _ = self.blocks()[2 * step + (i >> 1)]
        e(f"s_add_u32 s31, s{sAR}, {c*256*KB + kb*8192 + (i&1)*4096}")
    def kbase(self, dst, base, step, stride):
        o = [(c * 7 + kb) * 32 * self.ldb for c, kb, _ in self.blocks()[2 * step:2 * step + 2]]
        e(f"s_mul_i32 s{dst}, s{sWN}, {o[1] - o[0] - 32*self.ldb}\ns_add_u32 s{dst}, s{dst}, {o[0]}\ns_add_u32 s{dst}, s{dst}, s{base}")
G1, G3, G4, G5 = QKV(), WO(), W1(), W2()
_pf = opt("pfs", "X,Pk,X").split(",")
PFS = [(_pf[0][0], _pf[0][1:], pWO, 2 * MB, True, 249), (_pf[1][0], _pf[1][1:], pW1, 1024 * 7168, False, 248), (_pf[2][0], _pf[2][1:], pW2, 3584 * 2048, False, 250)]
L_K, L_V, L_Q = 0, 48 * KB, 96 * KB

def own_arena(dst, add=0):
    e(f"s_add_u32 s{dst}, s{sOWN}, {WS_AR + add}")
def h1_base(dst):
    e(f"s_cmp_lg_u32 s{sMODE}, 0\ns_cselect_b32 s{dst}, {WS_AR2}, {WS_AR if ALIAS else WS_AR2}")
def rowmajor_voff(dst, t):
    e(f"v_and_b32 v{t}, 1, v3\nv_lshlrev_b32 v{t}, 1, v{t}\nv_lshrrev_b32 v{dst}, 1, v3\nv_or_b32 v{t}, v{t}, v{dst}")
    e(f"v_lshlrev_b32 v{t}, 4, v{t}\nv_lshl_add_u32 v{dst}, v4, 11, v{t}")
def roles_84(rb=sRB, cb=sCB):
    e(f"s_and_b32 s{rb}, s{sG}, 1\ns_lshl_b32 s{rb}, s{rb}, 3\ns_and_b32 s30, s{sR}, 7\ns_add_u32 s{rb}, s{rb}, s30")
    e(f"s_lshr_b32 s{cb}, s{sG}, 1\ns_lshl_b32 s{cb}, s{cb}, 2\ns_lshr_b32 s30, s{sR}, 3\ns_add_u32 s{cb}, s{cb}, s30")
def roles_p1(rb=sRB, cb=sCB):
    if MAP1 == 84: return roles_84(rb, cb)
    e(f"s_lshr_b32 s{rb}, s{sR}, 1\ns_and_b32 s30, s{sR}, 1\ns_lshl_b32 s{cb}, s{sG}, 1\ns_add_u32 s{cb}, s{cb}, s30")
def roles_48(rb=sRB, cb=sCB):
    if LFIRST: return roles_84(rb, cb)
    if not KORD:
        e(f"s_and_b32 s{rb}, s{sG}, 3\ns_lshl_b32 s{rb}, s{rb}, 2\ns_and_b32 s30, s{sR}, 3\ns_add_u32 s{rb}, s{rb}, s30")
        e(f"s_lshr_b32 s{cb}, s{sG}, 2\ns_lshl_b32 s{cb}, s{cb}, 3\ns_lshr_b32 s30, s{sR}, 2\ns_add_u32 s{cb}, s{cb}, s30")
        return
    e(f"s_and_b32 s{rb}, s{sG}, 3\ns_lshl_b32 s{rb}, s{rb}, 2\ns_bfe_u32 s30, s{sR}, 0x20001\ns_add_u32 s{rb}, s{rb}, s30")
    e(f"s_lshr_b32 s{cb}, s{sG}, 2\ns_lshl_b32 s{cb}, s{cb}, 2\ns_lshr_b32 s30, s{sR}, 3\ns_add_u32 s{cb}, s{cb}, s30\ns_lshl_b32 s{cb}, s{cb}, 1\ns_and_b32 s30, s{sR}, 1\ns_add_u32 s{cb}, s{cb}, s30")
def roles_w2(rb=sRB, cb=sCB, ks=sKS):
    e(f"s_and_b32 s{rb}, s{sG}, 1\ns_lshl_b32 s{rb}, s{rb}, 2\ns_and_b32 s30, s{sR}, 3\ns_add_u32 s{rb}, s{rb}, s30\ns_lshl_b32 s{rb}, s{rb}, 1")
    e(f"s_lshr_b32 s{cb}, s{sR}, 2\ns_lshr_b32 s{ks}, s{sG}, 1")
def b_src_wo(cb=sCB):
    srd(SB, pWO, 2 * MB); e(f"s_lshl_b32 s{sBC}, s{cb}, 7\ns_mov_b32 s{sBR}, 0\ns_lshl_b32 s{sROT}, s{cb}, 1\ns_and_b32 s{sROT}, s{sROT}, {15 if ROT3 else 0}")
def b_src_w1():
    srd(SB, pW1, 1024 * 7168)
    e(f"""
s_mul_i32 s{sBH}, s{sCB}, 448
s_and_b32 s30, s{sCB}, 1
s_lshl_b32 s{sBC}, s30, 6
s_add_u32 s{sBC}, s{sBC}, s{sBH}
s_xor_b32 s30, s30, 1
s_mul_i32 s30, s30, 384
s_add_u32 s{sBH}, s{sBH}, s30
s_mov_b32 s{sBR}, 0
s_and_b32 s{sROT}, s{sCB}, 12
""")
def b_src_w2():
    srd(SB, pW2, 3584 * 2048); e(f"s_lshl_b32 s{sBC}, s{sCB}, 8\ns_mul_i32 s{sBR}, s{sKS}, {G5.NK*64*2048}")
def flag_addr(dst, base, hi, lo, nw, wave):
    e(f"s_lshl_b32 s{dst}, s{hi}, 4\ns_add_u32 s{dst}, s{dst}, s{lo}\ns_mul_i32 s{dst}, s{dst}, {nw}")
    if wave is not None: e(f"s_add_u32 s{dst}, s{dst}, s{wave}")
    e(f"s_lshl_b32 s{dst}, s{dst}, 2\ns_add_u32 s{dst}, s{dst}, {base}")
WS_F4P = 42 * MB + 128 * KB
def f4_addr(dst, rb, cb, wave):
    e(f"s_lshl_b32 s{dst}, s{rb}, 2\ns_lshr_b32 s30, s{cb}, 2\ns_add_u32 s{dst}, s{dst}, s30\ns_lshl_b32 s{dst}, s{dst}, 3\ns_and_b32 s30, s{cb}, 3\ns_add_u32 s{dst}, s{dst}, s30\ns_lshl_b32 s{dst}, s{dst}, 2")
    if wave is not None: e(f"s_add_u32 s{dst}, s{dst}, s{wave}")
    e(f"s_lshl_b32 s{dst}, s{dst}, 2\ns_add_u32 s{dst}, s{dst}, {WS_F4P}")
def dual(fn, sreg):
    S, X = A.newlabel("slowst"), A.newlabel("stx")
    e(f"s_cmp_lg_u32 s{sreg}, 0\ns_cbranch_scc1 {S}")
    fn(LFL)
    e(f"s_branch {X}")
    A.label(S)
    fn("sc1")
    A.label(X)

def attn_setup():
    e(f"v_lshlrev_b32 v5, 2, v3\nv_mov_b32 v6, {f32(-1e30)}")
    for k in range(4):
        e(f"v_add_u32 v7, {k}, v5\nv_cmp_gt_u32 vcc, v7, v4\nv_cndmask_b32 v{56+k}, v6, 0, vcc\nv_cndmask_b32 v{60+k}, 0, v6, vcc".replace("v_cndmask_b32 v%d, v6, 0, vcc" % (56 + k), "v_cndmask_b32_e64 v%d, v6, 0, vcc" % (56 + k)))
    e(f"""
s_lshl_b32 s36, s{sRB}, 2
s_add_u32 s36, s36, s38
s_sub_i32 s36, 8, s36
s_max_i32 s36, s36, 0
s_mul_i32 s37, s{sWN}, 24
s_lshl_b32 s39, s38, 1
s_add_u32 s37, s37, s39
s_lshl_b32 s37, s37, 10
v_lshl_add_u32 v5, v1, 4, s37
v_add_u32 v7, {L_V}, v5
""")
    own_arena(34, AR_O)
    e(f"s_lshl_b32 s35, s38, 12\ns_add_u32 s34, s34, s35\ns_lshl_b32 s35, s{sWN}, 10\ns_add_u32 s34, s34, s35\ns_add_u32 s35, s34, 2048")
    flag_addr(33, WS_F2, sRB, sCB, 8, sWAVE)

def attention(ST, is_p, Q=None):
    n = "attp" if is_p else "attc"
    S = 64; KF = 24; VF = 24; O = 208; MX = 232
    def sr(qt, u): return S + (qt * 18 + u) * 4
    dead = lambda qt, u: (qt == 0 and u == 17) or (qt == 1 and u == 0)
    def PF(pos):
        for role, at, ptr, nbytes, rev, dst in PFS:
            if role == ("P" if is_p else "C") and at == pos:
                srd(SB, ptr, nbytes)
                e(f"s_xor_b32 s30, s2, {255 if rev else 0}\ns_lshl_b32 s30, s30, 2\ns_add_u32 s30, s30, s{sW}\ns_lshl_b32 s30, s30, 13\nv_lshlrev_b32 v251, 7, v1")
                e(f"buffer_load_dword v{dst}, v251, {s(SB,4)}, s30 offen")
                if is_p: Q.add("pf")
    PF("nb")
    if is_p: Q.wait("nk")
    e("s_waitcnt lgkmcnt(0)\ns_barrier")
    if is_p:
        e(f"s_lshl_b32 s30, s{sW}, 11\ns_add_u32 s30, s30, {L_Q}\nv_lshl_add_u32 v2, v1, 4, s30\nds_read_b128 v[8:11], v2\nds_read_b128 v[12:15], v2 offset:1024")
    ST("att_k")
    if is_p and attention.vl: attention.vl()
    PF("k")
    for u in range(8): e(f"ds_read_b128 {v(KF+4*u,4)}, v5 offset:{L_K + u*1024}")
    for k in range(4): e(f"v_mov_b32 v{16+k}, 0x3f803f80")
    for k in range(4): e(f"v_mov_b32 v{MX+k}, v6")
    for r in range(O, O + 24, 2): e(f"v_mov_b64 {v(r,2)}, 0")
    def s_phase(generic):
        pend = []
        def maxes(k):
            for _ in range(k):
                if pend: e(pend.pop(0))
        for u in range(18):
            issued = min(18, u + 8)
            e(f"s_waitcnt lgkmcnt({issued - (u+1)})")
            if generic and u % 2 == 0 and u < 16:
                e(f"s_cmp_gt_u32 s36, {u//2}\ns_cselect_b32 s30, {f32(-1e30)}, 0")
                for k in range(4): e(f"v_mov_b32 v{20+k}, s30")
            for qt in range(2):
                if dead(qt, u): continue
                c = "v[56:59]" if u == qt else "v[60:63]" if u == 16 + qt else "0"
                if generic and u < 16: c = "v[20:23]"
                e(f"v_mfma_f32_16x16x32_bf16 {v(sr(qt,u),4)}, {v(KF+4*(u%8),4)}, {v(8+4*qt,4)}, {c}")
                if len(pend) >= 8: maxes(2)
                r = sr(qt, u)
                pend.append(f"v_max3_f32 v{MX+2*qt}, v{r}, v{r+1}, v{MX+2*qt}")
                pend.append(f"v_max3_f32 v{MX+2*qt+1}, v{r+2}, v{r+3}, v{MX+2*qt+1}")
            if u + 8 < 18: e(f"ds_read_b128 {v(KF+4*(u%8),4)}, v5 offset:{L_K + (u+8)*1024}")
        maxes(99)
    Lg, Lx = A.newlabel("sgen"), A.newlabel("sx")
    e(f"s_cmp_lg_u32 s36, 0\ns_cbranch_scc1 {Lg}")
    s_phase(False)
    e(f"s_branch {Lx}")
    A.label(Lg)
    s_phase(True)
    A.label(Lx)
    CB = VBARP if is_p else VBAR
    vs = {"iss": 0, "pv": 0}
    def v_issue(upto):
        while vs["iss"] < min(18, upto):
            b = vs["iss"]; e(f"ds_read_b128 {v(VF+4*(b%8),4)}, v7 offset:{b*1024}"); vs["iss"] += 1
    def v_bar():
        if is_p: Q.wait("nv")
        e("s_barrier")
        ST("att_v")
        PF("v")
        v_issue(8)
    CSC = (32 ** -0.5) * LOG2E
    e(f"s_mov_b32 s{sC0}, {f32(CSC)}\ns_mov_b32 s{sC0+1}, {f32(CSC)}")
    if CB == 0: v_bar()
    e(f"v_max_f32 v{MX}, v{MX}, v{MX+1}\nv_max_f32 v{MX+2}, v{MX+2}, v{MX+3}")
    xg_multi("v_max_f32", [MX, MX + 2], [MX + 1, MX + 3])
    e(f"v_mul_f32 v{MX}, {f32(-CSC)}, v{MX}\nv_mul_f32 v{MX+2}, {f32(-CSC)}, v{MX+2}")
    def pv(p):
        out = []
        for qt in range(2):
            P = v(sr(qt, 2 * p), 4)
            for dt in range(2):
                o = v(O + 12 * qt + 4 * dt, 4)
                out.append(f"v_mfma_f32_16x16x32_bf16 {o}, {v(VF+4*((2*p+dt)%8),4)}, {P}, {o}")
            o = v(O + 12 * qt + 8, 4)
            out.append(f"v_mfma_f32_16x16x32_bf16 {o}, v[16:19], {P}, {o}")
        return out
    for p in range(10):
        va = []
        if p < 9:
            live = [(qt, u) for qt in range(2) for u in (2 * p, 2 * p + 1) if not dead(qt, u)]
            for qt, u in live:
                r = sr(qt, u)
                if APK:
                    for h in range(2): va.append(f"v_pk_fma_f32 {v(r+2*h,2)}, {v(r+2*h,2)}, {s(sC0,2)}, {v(MX+2*qt,2)} op_sel_hi:[1,1,0]")
                else:
                    for k in range(4): va.append(f"v_fma_f32 v{r+k}, v{r+k}, s{sC0}, v{MX+2*qt}")
            for qt, u in live:
                for k in range(4): va.append(f"v_exp_f32 v{sr(qt,u)+k}, v{sr(qt,u)+k}")
            for qt, u in live:
                r = sr(qt, u); dst = sr(qt, 2 * p) + 2 * (u & 1)
                va.append(f"v_cvt_pk_bf16_f32 v{dst}, v{r}, v{r+1}"); va.append(f"v_cvt_pk_bf16_f32 v{dst+1}, v{r+2}, v{r+3}")
            if AMIX:
                nf = 2 if APK else 4; n_ = len(live)
                F = [va[i*nf:(i+1)*nf] for i in range(n_)]; E = [va[n_*nf+i*4:n_*nf+(i+1)*4] for i in range(n_)]; C_ = [va[n_*(nf+4)+i*2:n_*(nf+4)+(i+1)*2] for i in range(n_)]
                va = list(F[0])
                for i in range(n_):
                    other = (F[i+1] if i + 1 < n_ else []) + (C_[i-1] if i else [])
                    for k in range(4):
                        va.append(E[i][k]); va += other[k*len(other)//4:(k+1)*len(other)//4]
                va += C_[-1]
            if p == 8: va.append(f"v_mov_b64 {v(sr(0,16)+2,2)}, 0")
            if p == 0: va.append(f"v_mov_b64 {v(sr(1,0),2)}, 0")
        if CB and p == CB: v_bar()
        mm = []
        if p > CB:
            take = min(2, p - vs["pv"]) if p < 9 else 9 - vs["pv"]
            assert take <= 2
            for j in range(take): mm += pv(vs["pv"] + j)
            vs["pv"] += take
            e(f"s_waitcnt lgkmcnt({vs['iss'] - 2*vs['pv']})")
        PF(f'pv{p}')
        gap = max(1, len(va) // (len(mm) + 1))
        for i, x in enumerate(va):
            e(x)
            if i >= 1 and (i - 1) % gap == 0 and mm: e(mm.pop(0))
        for x in mm: e(x)
        if p > CB: v_issue(2 * vs["pv"] + 8)
    ST("att_pv")
    e("v_lshlrev_b32 v2, 4, v1")
    for qt in range(2):
        o = O + 12 * qt
        e(f"v_rcp_f32 v{o+8}, v{o+8}")
        for h in range(4): e(f"v_pk_mul_f32 {v(o+2*h,2)}, {v(o+2*h,2)}, {v(o+8,2)} op_sel_hi:[1,0]")
        for h in range(4): e(f"v_cvt_pk_bf16_f32 v{24+4*qt+h}, v{o+2*h}, v{o+2*h+1}")
        e(f"buffer_store_dwordx4 {v(24+4*qt,4)}, v2, {s(SWS,4)}, s{34+qt} offen sc1")

def consumer(ST):
    G = G1
    if SLOWPF:
        e(f"s_lshl_b32 s30, s2, 2\ns_add_u32 s30, s30, s{sW}\ns_mul_i32 s31, s30, 6144\ns_lshl_b32 s30, s30, 12\nv_lshlrev_b32 v5, 10, v1")
        e(f"s_mov_b64 exec, 0x3f\nbuffer_load_dword v250, v5, {s(SB,4)}, s31 offen offset:384")
        if SLOWPF > 1: e(f"s_mov_b64 exec, 0xf\nbuffer_load_dword v251, v5, {s(SX,4)}, s30 offen offset:384")
        e("s_mov_b64 exec, -1")
    e(f"v_mov_b32 v{vCNT}, 0")
    e(f"ds_write_b32 v{vDW}, v{vCNT} offset:{OFF_EP}\nds_write_b32 v{vDW}, v{vCNT} offset:{OFF_FULL}")
    G.c_setup()
    X = G.VX
    RA_, CSQ, VA_, VB_, CSV = X, X + 8, X + 24, X + 40, X + 56
    if G.chain: VB_, CSV = G.free_set(), X + 40
    assert CSV + 4 <= vDW
    def pre_last1():
        if SLOWPF: e("s_waitcnt vmcnt(0)")
        e(f"s_lshl_b32 s30, s{sWM}, 8\ns_add_u32 s30, s30, {MISC}\nv_lshl_add_u32 v2, v4, 2, s30\nv_lshl_add_u32 v5, v3, 4, s30")
        e(f"s_lshl_b32 s30, s{sWN}, 7\ns_add_u32 s30, s30, {MISC}\nv_lshl_add_u32 v6, v3, 4, s30\nv_lshl_add_u32 v7, v4, 2, s30")
    fill = []
    for mt in range(4): fill += [f"ds_read_b32 v{RA_+2*mt}, v2 offset:{mt*64}", f"ds_read_b32 v{RA_+2*mt+1}, v2 offset:{512+mt*64}"]
    for t in (2, 3, 0, 1): fill.append(f"ds_read_b128 {v(CSQ+4*t,4)}, v6 offset:{1024 + (t>>1)*256 + (t&1)*64}")
    for mt in range(4): fill += [f"ds_read_b128 {v(VA_+4*mt,4)}, v5 offset:{mt*64}", f"ds_read_b128 {v(VB_+4*mt,4)}, v5 offset:{512+mt*64}"]
    for dt in range(2): fill.append(f"ds_read_b32 v{CSV+2*dt}, v7 offset:{1024 + 512 + dt*64}")
    fill.append(f"ds_read_b32 v{CSV+1}, v{vFR} offset:{OFF_HD}")
    own_arena(33, AR_K)
    e(f"""
s_lshl_b32 s30, s{sWN}, 13
s_add_u32 s33, s33, s30
s_lshl_b32 s30, s{sWM}, 12
s_add_u32 s33, s33, s30
s_add_u32 s34, s33, {AR_V - AR_K}
s_lshl_b32 s31, s{sWM}, 2
s_mul_i32 s35, s{sWN}, 24
s_add_u32 s35, s35, s31
s_add_u32 s35, s35, 16
s_lshl_b32 s35, s35, 10
s_lshl_b32 s36, s{sW}, 11
s_add_u32 s36, s36, {L_Q}
""")
    flag_addr(32, WS_F1, sCB, sRB, 4, sW)
    G.c_loop(ST, pre_last1, fill)
    e(f"s_waitcnt lgkmcnt(0)\nv_readfirstlane_b32 s{sMODE}, v{CSV+1}\nv_lshlrev_b32 v2, 4, v1\nv_add_u32 v5, s35, v2\nv_add_u32 v6, s36, v2")
    e(f"s_lshr_b32 s30, s{sRB}, 1\ns_cmp_eq_u32 s30, {3 if MAP1 == 84 else 99}\ns_cselect_b32 s{sT0}, 1, s{sMODE}")
    def fold_rows(mt, t):
        c = G.acc(mt, t); k = RA_ + 2 * mt
        for h in range(2): e(f"v_pk_mul_f32 {v(c+2*h,2)}, {v(c+2*h,2)}, {v(k,2)} op_sel_hi:[1,0]")
        for h in range(2): e(f"v_pk_fma_f32 {v(c+2*h,2)}, {v(CSQ+4*t+2*h,2)}, {v(k,2)}, {v(c+2*h,2)} op_sel:[0,1,0] op_sel_hi:[1,1,1]")
    def fold_v(mt, dt):
        c = G.acc(mt, 4 + dt)
        for h in range(2): e(f"v_pk_mul_f32 {v(c+2*h,2)}, {v(c+2*h,2)}, {v(VA_+4*mt+2*h,2)}")
        for h in range(2): e(f"v_pk_fma_f32 {v(c+2*h,2)}, {v(VB_+4*mt+2*h,2)}, {v(CSV+2*dt,2)}, {v(c+2*h,2)} op_sel_hi:[1,0,1]")
    def epi1(fl):
        t = 24
        for mt in range(4):
            fold_rows(mt, 2); fold_rows(mt, 3)
            pack(t, G.acc(mt, 2), G.acc(mt, 3))
            e(f"buffer_store_dwordx4 {v(t,4)}, v2, {s(SWS,4)}, s33 offen offset:{mt*1024} {fl or KVFL}"); t += 4
        for p in range(2):
            for dt in range(2):
                fold_v(2 * p, dt); fold_v(2 * p + 1, dt)
                pack(t, G.acc(2 * p, 4 + dt), G.acc(2 * p + 1, 4 + dt))
                e(f"buffer_store_dwordx4 {v(t,4)}, v2, {s(SWS,4)}, s34 offen offset:{(2*p+dt)*1024} {fl or KVFL}"); t += 4
        if KFLAG:
            e("s_waitcnt vmcnt(4)"); set_flag(32, fl.replace("nt", ""), t=64)
        for i in range(4): e(f"ds_write_b128 v5, {v(24+4*i,4)} offset:{L_K + i*1024}")
        for i in range(4): e(f"ds_write_b128 v5, {v(40+4*i,4)} offset:{L_V + i*1024}")
        for mt in (2, 3, 0, 1):
            fold_rows(mt, 0); fold_rows(mt, 1)
            d = 8 + 4 * mt
            pack(d, G.acc(mt, 0), G.acc(mt, 1))
            if mt >= 2: e(f"ds_write_b128 v6, {v(d,4)} offset:{(mt-2)*1024}")
        e("s_waitcnt vmcnt(0)")
        set_flag(32, fl.replace("nt", ""), val=3, t=64)
    dual(epi1, sT0)
    ST("kv_flag")
    e(f"s_lshl_b32 s38, s{sWM}, 1")
    attn_setup()
    attention(ST, False)
    G = G3
    roles_48()
    b_src_wo()
    G.p_setup_b(sWN)
    X = G.VX
    rowmajor_voff(X + 16, X + 17)
    e(f"""
s_lshl_b32 s35, s{sRB}, 1
s_add_u32 s35, s35, s{sWM}
s_lshl_b32 s36, s{sCB}, 1
s_add_u32 s36, s36, s{sWN}
s_lshl_b32 s32, s35, 17
s_lshl_b32 s31, s36, 6
s_add_u32 s32, s32, s31
""")
    def hl_touch():
        e(f"s_lshl_b32 s37, s35, 17\ns_lshl_b32 s31, s36, 10\ns_add_u32 s37, s37, s31\ns_add_u32 s37, s37, {WS_HL}\nv_and_b32 v248, 7, v1\nv_lshlrev_b32 v248, 7, v248\nv_lshrrev_b32 v249, 3, v1\nv_lshl_add_u32 v248, v249, 15, v248")
        set_exec(0xffffffff); e(f"buffer_load_dword v249, v248, {s(SWS,4)}, s37 offen\ns_mov_b64 exec, -1")
    G.c_setup()
    e("s_waitcnt vmcnt(0)")
    set_flag(33)
    ST("o_flag")
    if LFIRST and HLT == 1: hl_touch()
    Qc = VmQ()
    L1, L2 = A.newlabel("b3a"), A.newlabel("b3b")
    e(f"s_cmp_lg_u32 s{sWM}, 0\ns_cbranch_scc1 {L1}")
    for st in range(3): G.issue_b(Qc, st)
    e(f"s_branch {L2}")
    A.label(L1)
    for st in range(3, 6): G.issue_b(Qc, st)
    A.label(L2)
    e("s_barrier")
    for mt in range(4): e(f"s_add_u32 s31, s32, {mt*16*2048}\nbuffer_load_dwordx4 {v(X+4*mt,4)}, v{X+16}, {s(SX,4)}, s31 offen")
    e("s_waitcnt vmcnt(4)")
    if LFIRST and HLT == 2: hl_touch()
    e(f"""
s_lshl_b32 s37, s35, 17
s_lshl_b32 s31, s36, 10
s_add_u32 s37, s37, s31
s_add_u32 s37, s37, {WS_H}
s_lshl_b32 s38, s35, 14
s_lshl_b32 s31, s36, 9
s_add_u32 s38, s38, s31
s_add_u32 s38, s38, {WS_STAT}
""")
    flag_addr(32, WS_F3, sRB, sCB, 4, sW)
    HX = X + 24
    def pre_last3():
        e("s_waitcnt vmcnt(0)\nv_lshlrev_b32 v2, 4, v1")
        for mt in range(4):
            x = X + 4 * mt
            e(f"v_permlane16_swap_b32 v{x}, v{x+2}\nv_permlane16_swap_b32 v{x+1}, v{x+3}")
        for mt in range(4):
            for d in range(4): unpack(HX + 8 * mt + 2 * d, X + 4 * mt + d)
    G.c_loop(ST, pre_last3)
    for mt in range(4):
        x = X + 4 * mt; u = HX + 8 * mt
        for d in range(4): e(f"v_pk_add_f32 {v(12+2*d,2)}, {v(G.acc(mt,d>>1)+2*(d&1),2)}, {v(u+2*d,2)}")
        for d in range(4): e(f"v_cvt_pk_bf16_f32 v{x+d}, v{12+2*d}, v{13+2*d}")
        if LFIRST: e(f"s_add_u32 s31, s37, {WS_HL - WS_H + mt*32*1024}\nbuffer_store_dwordx4 {v(x,4)}, v2, {s(SWS,4)}, s31 offen")
        else: e(f"s_add_u32 s31, s37, {mt*32*1024}\nbuffer_store_dwordx4 {v(x,4)}, v2, {s(SWS,4)}, s31 offen sc1")
    if LFIRST:
        for mt in range(4): e(f"s_add_u32 s31, s37, {mt*32*1024}\nbuffer_store_dwordx4 {v(X+4*mt,4)}, v2, {s(SWS,4)}, s31 offen sc1")
    for mt in range(4):
        x = X + 4 * mt; u = HX + 8 * mt
        for d in range(4): unpack(u + 2 * d, x + d)
        e(f"v_pk_add_f32 v[12:13], {v(u,2)}, {v(u+2,2)}\nv_pk_add_f32 v[14:15], {v(u+4,2)}, {v(u+6,2)}")
        e(f"v_pk_add_f32 v[12:13], v[12:13], v[14:15]\nv_add_f32 v{32+2*mt}, v12, v13")
    if LFIRST:
        e(f"s_add_u32 s31, s32, {WS_F3L - WS_F3}\ns_waitcnt vmcnt(4)"); set_flag(31, "")
    xg_multi("v_add_f32", [32, 34, 36, 38], [16, 17, 18, 19])
    for mt in range(4):
        u = HX + 8 * mt; sm = 32 + 2 * mt
        e(f"v_mul_f32 v12, {f32(1/32)}, v{sm}")
        for d in range(4): e(f"v_pk_add_f32 {v(u+2*d,2)}, {v(u+2*d,2)}, v[12:13] op_sel_hi:[1,0] neg_lo:[0,1] neg_hi:[0,1]")
        e(f"v_pk_mul_f32 v[14:15], {v(u,2)}, {v(u,2)}")
        for d in range(1, 4): e(f"v_pk_fma_f32 v[14:15], {v(u+2*d,2)}, {v(u+2*d,2)}, v[14:15]")
        e(f"v_add_f32 v{sm+1}, v14, v15")
    xg_multi("v_add_f32", [33, 35, 37, 39], [16, 17, 18, 19])
    for k in range(1, 4):
        e(f"v_cmp_eq_u32 vcc, {k}, v3\nv_cndmask_b32 v32, v32, v{32+2*k}, vcc\nv_cndmask_b32 v33, v33, v{33+2*k}, vcc")
    e(f"v_lshlrev_b32 v2, 3, v1\nbuffer_store_dwordx2 v[32:33], v2, {s(SWS,4)}, s38 offen sc1\ns_waitcnt vmcnt({2 if LFIRST else 1})")
    set_flag(32)
    post(OFF_EP, 2)
    ST("h_flag")
    G = G4
    roles_84()
    G.c_setup()
    e("s_mov_b32 s40, s32")
    def stats_out():
        e("s_waitcnt vmcnt(0)"); set_flag(40, val=3)
    h1_base(37)
    e(f"""
s_and_b32 s39, s{sCB}, 1
s_add_u32 s32, s{sOWN}, s37
s_lshl_b32 s33, s{sWM}, 12
s_add_u32 s32, s32, s33
s_lshl_b32 s34, s{sWN}, 2
s_add_u32 s34, s34, s39
s_add_u32 s35, s39, s{sWN}
s_add_u32 s35, s35, 2
s_xor_b32 s36, s39, 1
s_mul_i32 s36, s36, 6
s_lshl_b32 s34, s34, 13
s_lshl_b32 s35, s35, 13
s_lshl_b32 s36, s36, 13
s_add_u32 s34, s34, s32
s_add_u32 s35, s35, s32
s_add_u32 s36, s36, s32
s_lshl_b32 s37, s{sWN}, 3
s_add_u32 s36, s36, s37
s_add_u32 s37, s34, 8192
s_mov_b32 s{sC0}, {f32(-LOG2E)}
s_mov_b32 s{sC0+1}, {f32(-LOG2E)}
""")
    f4_addr(38, sRB, sCB, sW)
    def pre_last4():
        e(f"""
s_lshl_b32 s30, s{sWM}, 9
s_add_u32 s30, s30, {L_RA}
v_lshl_add_u32 v2, v4, 3, s30
s_lshl_b32 s31, s39, 7
s_lshl_b32 s32, s{sWN}, 9
s_add_u32 s32, s32, s31
s_add_u32 s32, s32, {L_CS}
v_lshl_add_u32 v5, v3, 4, s32
s_lshl_b32 s32, s{sWN}, 7
s_add_u32 s32, s32, s31
s_add_u32 s32, s32, {L_CS + 256}
v_lshl_add_u32 v6, v3, 4, s32
s_xor_b32 s33, s39, 1
s_mul_i32 s33, s33, 768
s_lshl_b32 s32, s{sWN}, 6
s_add_u32 s32, s32, s33
s_add_u32 s32, s32, {L_CS}
v_lshl_add_u32 v7, v3, 4, s32
""")
    CS, KR = (G.free_set(), G.VX) if G.chain else (16, 8)
    assert CS + 28 <= 56 and KR + 8 <= vDW
    fill = [f"ds_read_b64 {v(KR+2*mt,2)}, v2 offset:{mt*128}" for mt in range(4)]
    fill += [f"ds_read_b128 {v(CS+4*t,4)}, v5 offset:{64*t}" for t in range(4)]
    fill += [f"ds_read_b128 {v(CS+16+4*t,4)}, v6 offset:{64*t}" for t in range(2)] + [f"ds_read_b128 {v(CS+24,4)}, v7"]
    G.c_loop(ST, pre_last4, fill, after_go=stats_out)
    e("s_waitcnt lgkmcnt(0)\nv_lshlrev_b32 v2, 4, v1")
    def epi4(fl):
        units = []
        for pr in range(4):
            for mt in range(4): units.append((mt, (2 * pr, 2 * pr + 1) if pr < 3 else (6,), pr))
        T0, O0 = 56, 80
        def sA(i):
            mt, ts, pr = units[i]; k = KR + 2 * mt; o = []
            for t in ts:
                c = G.acc(mt, t)
                for h in range(2): o.append(f"v_pk_mul_f32 {v(c+2*h,2)}, {v(c+2*h,2)}, {v(k,2)} op_sel:[0,1] op_sel_hi:[1,1]")
            for t in ts:
                c = G.acc(mt, t)
                for h in range(2): o.append(f"v_pk_fma_f32 {v(c+2*h,2)}, {v(CS+4*t+2*h,2)}, {v(k,2)}, {v(c+2*h,2)} op_sel_hi:[1,0,1]")
            return o
        def sB(i):
            mt, ts, pr = units[i]; T = T0 + 8 * (i % 3)
            return [f"v_exp_f32 v{T+4*j+k}, v{G.acc(mt,t)+k}" for j, t in enumerate(ts) for k in range(4)]
        def sC(i):
            mt, ts, pr = units[i]; T = T0 + 8 * (i % 3)
            return [f"v_pk_fma_f32 {v(T+2*h,2)}, {v(T+2*h,2)}, {s(sC0,2)}, {s(sC0,2)}" for h in range(2 * len(ts))]
        def sD(i):
            mt, ts, pr = units[i]; T = T0 + 8 * (i % 3)
            return [f"v_rcp_f32 v{T+k}, v{T+k}" for k in range(4 * len(ts))]
        def sE(i):
            mt, ts, pr = units[i]; T = T0 + 8 * (i % 3); o = []; d = O0 + 4 * (i % 4)
            for j, t in enumerate(ts):
                c = G.acc(mt, t)
                for h in range(2): o.append(f"v_pk_mul_f32 {v(c+2*h,2)}, {v(c+2*h,2)}, {v(T+4*j+2*h,2)}")
            for j, t in enumerate(ts):
                c = G.acc(mt, t)
                for h in range(2): o.append(f"v_cvt_pk_bf16_f32 v{d+2*j+h}, v{c+2*h}, v{c+2*h+1}")
            base = (34, 37, 35, 36)[pr]
            if NOST4: return o
            o.append(f"buffer_store_dwordx4 {v(d,4)}, v2, {s(SWS,4)}, s{base} offen offset:{mt*1024} {fl}" if pr < 3 else f"buffer_store_dwordx2 {v(d,2)}, v2, {s(SWS,4)}, s{base} offen offset:{mt*1024} {fl}")
            return o
        N = len(units)
        for x in sA(0): e(x)
        for i in range(N + 1):
            seq = []
            if i < N: seq += sB(i)
            if i + 1 < N: seq += sA(i + 1)
            if i < N: seq += sC(i)
            if i >= 1: seq += sE(i - 1)
            if i < N: seq += sD(i)
            for x in seq: e(x)
            if EARLY5 and i == 8 + E5LAG:
                e(f"s_waitcnt vmcnt({E5LAG})"); set_flag(38, fl.replace("nt", ""))
        ST("silu")
        roles_w2()
        G5.c_setup()
        e("s_waitcnt vmcnt(0)")
        set_flag(38, fl.replace("nt", ""), val=3)
    n0 = list(ST.names)
    def epi4w(fl):
        ST.names = list(n0); epi4(fl)
    dual(epi4w, sMODE)
    ST("h1_flag")
    G = G5
    MT = G.MT; keep = 2; nb = 4
    def pre_last5():
        srd(SD, pOUT, 4 * MB)
        e(f"""
s_lshl_b32 s33, s{sRB}, 3
s_add_u32 s33, s33, s{sCB}
s_mul_i32 s34, s33, {16*4*nb*1024}
s_add_u32 s34, s34, {WS_PART}
s_mul_i32 s30, s{sW}, {nb*1024}
s_add_u32 s34, s34, s30
s_lshl_b32 s35, s{sRB}, 3
s_lshl_b32 s30, s{sWM}, 3
s_add_u32 s35, s35, s30
s_lshl_b32 s30, s{sKS}, 1
s_add_u32 s35, s35, s30
s_lshl_b32 s36, s{sCB}, 2
s_lshl_b32 s30, s{sWN}, 1
s_add_u32 s36, s36, s30
s_lshl_b32 s38, s35, 15
s_lshl_b32 s31, s36, 10
s_add_u32 s38, s38, s31
s_add_u32 s38, s38, {WS_H}
s_lshl_b32 s37, s33, {9 if F5W else 6}
s_lshl_b32 s31, s{sW}, {7 if F5W else 2}
s_add_u32 s37, s37, s31
s_add_u32 s37, s37, {WS_F5W if F5W else WS_F5}
s_lshl_b32 s31, s{sKS}, 4
s_add_u32 s32, s37, s31
s_lshl_b32 s39, s{sKS}, 2
""")
        for d in range(1, 4):
            e(f"s_add_u32 s31, s{sKS}, {d}\ns_and_b32 s31, s31, 3\ns_lshl_b32 s30, s31, 2\ns_add_u32 s30, s30, s{sKS}\ns_mul_i32 s30, s30, {4*nb*1024}\ns_add_u32 s{39+d}, s30, s34")
            e(f"s_add_u32 s31, s31, s39\ns_mul_i32 s31, s31, {4*nb*1024}\ns_add_u32 s{42+d}, s31, s34")
        e(f"s_lshl_b32 s46, s35, 15\ns_lshl_b32 s31, s36, 6\ns_add_u32 s46, s46, s31\ns_add_u32 s47, s38, {32*1024}")
    if TAILPM:
        assert not CANARY
        BQ, AB = [8, 24, 56, 72], [40, 88]
        sub4 = [(12, 0), (12, 1), (13, 0), (13, 1)]
        order = [2, 3, 4, 5, 6, 7, 0, 1]
        HRS = [G.acc(2, 1), G.acc(2, 3), G.acc(3, 1), G.acc(3, 3)]
        brd = lambda j: [x for t in range(4) for x in G.b_read(*sub4[j], t, BQ[j] + 4 * t)]
        ard = lambda n_: [G.a_read(*sub4[j], order[n_], AB[n_ & 1] + 4 * j) for j in range(4)]
        G.c_loop(ST, pre_last5, ["v_lshlrev_b32 v2, 4, v1"] + ard(0) + brd(0) + brd(1), nsteps=12)
        def send(mt):
            out = []
            for pr in range(2):
                c0, c1 = G.acc(mt, 2 * pr), G.acc(mt, 2 * pr + 1)
                out += [f"v_cvt_pk_bf16_f32 v{c0}, v{c0}, v{c0+1}", f"v_cvt_pk_bf16_f32 v{c0+1}, v{c0+2}, v{c0+3}",
                        f"v_cvt_pk_bf16_f32 v{c0+2}, v{c1}, v{c1+1}", f"v_cvt_pk_bf16_f32 v{c0+3}, v{c1+2}, v{c1+3}",
                        f"buffer_store_dwordx4 {v(c0,4)}, v2, {s(SWS,4)}, s{39+mt//2} offen offset:{(2*(mt&1)+pr)*1024} {PFL}"]
            return out
        for n_, mt in enumerate(order):
            mm = lambda t, j: f"v_mfma_f32_16x16x32_bf16 {v(G.acc(mt,t),4)}, {v(BQ[j]+4*t,4)}, {v(AB[n_&1]+4*j,4)}, {v(G.acc(mt,t),4)}"
            e("s_waitcnt lgkmcnt(0)")
            if n_ == 0:
                side = brd(2) + brd(3)
                for i, (t, j) in enumerate([(t, j) for t in range(4) for j in range(2)]):
                    e(mm(t, j)); e(side[2 * i]); e(side[2 * i + 1])
                side = ard(1)
                for i, (t, j) in enumerate([(t, j) for j in (2, 3) for t in range(4)]):
                    if i == 0: e("s_waitcnt lgkmcnt(8)")
                    if i == 4: e("s_waitcnt lgkmcnt(4)")
                    e(mm(t, j))
                    if i < 4: e(side[i])
                continue
            side = (ard(n_ + 1) if n_ + 1 < 8 else []) + (send(order[n_ - 1]) if order[n_ - 1] >= 2 else [])
            if n_ == 3: side += [f"buffer_load_dwordx4 {v(HRS[2*i+pr],4)}, v2, {s(SWS,4)}, s{38 if i == 0 else 47} offen offset:{pr*1024} sc1" for i in range(2) for pr in range(2)]
            if LEVELS and n_ == 7:
                side = ["v_mov_b32 v5, 0", "v_mov_b32 v6, 1", "s_waitcnt vmcnt(12)", "s_mov_b64 exec, 1\n" + f"buffer_store_byte v6, v5, {s(SWS,4)}, s32 offen offset:1 sc1" + "\ns_mov_b64 exec, -1"]
            for i, (t, j) in enumerate([(t, j) for t in range(4) for j in range(4)]):
                e(mm(t, j))
                for x in side[i:i + 1] + (side[16:] if i == 15 else []): e(x)
        ST("w2_end")
    else:
        HRS = [8, 12, 16, 20]
        HR = 8
        fill = ["v_lshlrev_b32 v2, 4, v1"]
        fill += [f"buffer_load_dwordx4 {v(HR+4*(2*i+pr),4)}, v2, {s(SWS,4)}, s{38 if i == 0 else 47} offen offset:{pr*1024} sc1" for i in range(2) for pr in range(2)]
        if CANARY: fill.append(f"buffer_load_dword v248, v2, {s(SWS,4)}, s37 offen sc1")
        G.c_loop(ST, pre_last5, fill)
        o = 24
        for d in range(1, 4):
            for i in range(keep):
                for pr in range(2):
                    mt = d * keep + i
                    pack(o, G.acc(mt, 2 * pr), G.acc(mt, 2 * pr + 1))
                    e(f"buffer_store_dwordx4 {v(o,4)}, v2, {s(SWS,4)}, s{39+d} offen offset:{(2*i+pr)*1024} {PFL}")
                    o = 24 + (o - 24 + 4) % 32
    PR = 64
    assert PR + 48 <= G.ACC
    def add_partial(d):
        for i in range(keep):
            for pr in range(2):
                for q in range(4): unpack(40 + 2 * q, PR + 4 * ((d - 1) * nb + 2 * i + pr) + q)
                for q in range(4):
                    c = G.acc(i, 2 * pr + (q >> 1)) + 2 * (q & 1)
                    e(f"v_pk_add_f32 {v(c,2)}, {v(c,2)}, {v(40+2*q,2)}")
    def add_residual():
        for i in range(keep):
            for pr in range(2):
                for q in range(4): unpack(40 + 2 * q, HRS[2 * i + pr] + q)
                for q in range(4):
                    c = G.acc(i, 2 * pr + (q >> 1)) + 2 * (q & 1)
                    e(f"v_pk_add_f32 {v(c,2)}, {v(c,2)}, {v(40+2*q,2)}")
    def ld_partial(d):
        for b in range(nb): e(f"buffer_load_dwordx4 {v(PR+4*((d-1)*nb+b),4)}, v2, {s(SWS,4)}, s{42+d} offen offset:{b*1024} sc1")
    rowmajor_voff(62, 63)
    if CANARY:
        e("v_mov_b32 v58, s43\nv_mov_b32 v59, s44\nv_cmp_eq_u32 vcc, 1, v1\nv_cndmask_b32 v58, v58, v59, vcc\nv_mov_b32 v59, s45\nv_cmp_eq_u32 vcc, 2, v1\nv_cndmask_b32 v58, v58, v59, vcc")
        e("s_waitcnt vmcnt(0)")
        ST("p_flag")
        add_residual()
        X0 = A.newlabel("pfok")
        e(f"s_mov_b64 exec, 0xf\nv_and_b32 v248, 1, v248\nv_cmp_ne_u32 vcc, 1, v248\ns_mov_b64 exec, -1\ns_cbranch_vccz {X0}")
        poll("s37", 4, voff=2, t=60)
        A.label(X0)
        L, X = A.newlabel("can"), A.newlabel("canx")
        e(f"s_mov_b64 exec, 7\ns_mov_b32 s{sCNT}, 0")
        A.label(L)
        e(f"buffer_load_dword v60, v58, {s(SWS,4)}, 0 offen offset:4092 sc1\ns_add_u32 s{sCNT}, s{sCNT}, 1\ns_cmp_gt_u32 s{sCNT}, {SPIN_MAX}\ns_waitcnt vmcnt(0)\ns_cbranch_scc1 {X}")
        e(f"v_cmp_eq_u32 vcc, -1, v60\ns_cbranch_vccnz {L}")
        A.label(X)
        e("s_mov_b64 exec, -1")
        ST("p_seen")
        for d in range(1, 4): ld_partial(d)
        for d in range(1, 4):
            L, X = A.newlabel("pv"), A.newlabel("pvx")
            r0 = PR + 16 * (d - 1)
            e(f"s_waitcnt vmcnt({(3-d)*nb})")
            A.label(L)
            e(f"v_max_u32 v60, v{r0}, v{r0+1}")
            for i in range(2, 16, 2): e(f"v_max3_u32 v60, v{r0+i}, v{r0+i+1}, v60")
            e(f"v_cmp_eq_u32 vcc, -1, v60\ns_cbranch_vccz {X}\ns_add_u32 s{sCNT}, s{sCNT}, 1\ns_cmp_gt_u32 s{sCNT}, {SPIN_MAX}\ns_cbranch_scc1 {X}")
            ld_partial(d)
            e(f"s_waitcnt vmcnt(0)\ns_branch {L}")
            A.label(X)
            add_partial(d)
    elif LEVELS and TAILPM:
        lvf = lambda l: e(f"s_mov_b64 exec, 1\nbuffer_store_byte v6, v5, {s(SWS,4)}, s32 offen offset:{l} sc1\ns_mov_b64 exec, -1")
        e("s_waitcnt vmcnt(5)"); lvf(2)
        add_residual()
        e(f"v_sub_u32 v61, s{sKS}, v1\nv_and_b32 v61, 3, v61\nv_lshlrev_b32 v61, 3, v61")
        e("s_waitcnt vmcnt(2)"); lvf(3)
        ST("p_flag")
        e(f"s_mov_b32 s{sCNT}, 0\ns_mov_b32 s33, 0")
        for lvl in (1, 2, 3):
            L, X = A.newlabel("lv"), A.newlabel("lvx")
            e(f"s_sub_u32 s30, s{sKS}, {lvl}\ns_and_b32 s30, s30, 3\ns_bitcmp1_b32 s33, s30\ns_cbranch_scc1 {X}")
            A.label(L)
            e(f"s_mov_b64 exec, 0xf\nbuffer_load_dword v60, v2, {s(SWS,4)}, s37 offen sc1\ns_add_u32 s{sCNT}, s{sCNT}, 1\ns_waitcnt vmcnt(0)\nv_bfe_u32 v60, v60, v61, 1\nv_cmp_eq_u32 vcc, 1, v60\ns_mov_b64 exec, -1\ns_mov_b32 s33, vcc_lo")
            e(f"s_cmp_gt_u32 s{sCNT}, {SPIN_MAX}\ns_cbranch_scc1 {X}\ns_bitcmp1_b32 s33, s30\ns_cbranch_scc0 {L}")
            A.label(X)
            ld_partial(4 - lvl)
        ST("p_seen")
        for lvl in (1, 2, 3):
            e(f"s_waitcnt vmcnt({(3-lvl)*nb})")
            add_partial(4 - lvl)
    else:
        e("s_waitcnt vmcnt(0)")
        set_flag(32)
        ST("p_flag")
        add_residual()
        poll("s37", 4, voff=2, t=60)
        ST("p_seen")
        for d in range(1, 4): ld_partial(d)
        for d in range(1, 4):
            e(f"s_waitcnt vmcnt({(3-d)*nb})")
            add_partial(d)
    if PERT:
        L = A.newlabel("nopert")
        e(f"s_cmp_ge_u32 s2, {PERTN}\ns_cbranch_scc1 {L}\ns_mov_b64 exec, {PERTL}\nv_add_f32 v{G.acc(0,0)}, {f32(PERT)}, v{G.acc(0,0)}\ns_mov_b64 exec, -1")
        A.label(L)
    for i in range(keep):
        for pr in range(2):
            x = HRS[2 * i + pr]
            pack(x, G.acc(i, 2 * pr), G.acc(i, 2 * pr + 1))
            e(f"v_permlane16_swap_b32 v{x}, v{x+2}\nv_permlane16_swap_b32 v{x+1}, v{x+3}")
            e(f"s_add_u32 s31, s46, {i*16*2048}\nbuffer_store_dwordx4 {v(x,4)}, v62, {s(SD,4)}, s31 offen offset:{pr*64} {OFL}")
    ST.flush()
    e("s_endpgm")

def neighbours_and_attention(ST, Q):
    e(f"s_lshl_b32 s38, s{sWM}, 1\ns_add_u32 s38, s38, 1")
    attn_setup()
    L = A.newlabel("nonb")
    assert MAP1 == 162
    own_arena(42)
    e(f"""
s_add_u32 s40, s{sRB}, s{sWM}
s_sub_u32 s41, s40, 2
s_lshl_b32 s31, s{sWM}, 16
s_add_u32 s42, s42, s31
s_sub_u32 s42, s42, {2*64*KB}
s_lshl_b32 s31, s{sWN}, 13
s_add_u32 s42, s42, s31
s_mul_i32 s43, s{sWN}, 24
s_lshl_b32 s31, s{sWM}, 3
s_add_u32 s43, s43, s31
s_lshl_b32 s43, s43, 10
v_lshlrev_b32 v2, 4, v1
s_cmp_lt_u32 s40, 2
s_cselect_b32 s42, {WS_BYTES}, s42
s_cbranch_scc1 {L}
""")
    flag_addr(32, WS_F1, sCB, 41, 4, None)
    poll("s32", 4, t=8)
    A.label(L)
    ST("nb_seen")
    def nb_loads(wsb, lb):
        if wsb == AR_V and KFLAG:
            L2 = A.newlabel("nonv")
            e(f"s_cmp_lt_u32 s40, 2\ns_cbranch_scc1 {L2}")
            poll("s32", 4, t=20, mask=2)
            A.label(L2)
            e("v_lshlrev_b32 v2, 4, v1")
        for h in range(2):
            e(f"s_add_u32 m0, s43, {lb + h*4096}\ns_add_u32 s31, s42, {wsb + h*4096}")
            for i in range(4): e(f"buffer_load_dwordx4 v2, {s(SWS,4)}, s31 offen offset:{i*1024} sc1 lds")
    Q.q = []
    nb_loads(AR_K, L_K); Q.add("nk", 8)
    def vl():
        nb_loads(AR_V, L_V); Q.add("nv", 8)
    if not VLATE: vl()
    attention.vl = vl if VLATE else None
    attention(ST, True, Q)
    roles_48()
    b_src_wo()
    e(f"ds_read_b32 v8, v{vFR} offset:{OFF_HD}")
    G3.p_setup_a(); G3.p_setup_b(sWN)
    e(f"s_waitcnt lgkmcnt(0)\nv_readfirstlane_b32 s{sMODE}, v8")
    e("s_waitcnt vmcnt(0)")
    set_flag(33)
    e("s_barrier")
    Q.q = []
    ST("o_flag")

def dma_phase1(ST, Q):
    G = G1
    if DPRIO: e(f"s_setprio {DPRIO}")
    def touch(nk, fl):
        def f():
            e(f"s_mul_i32 s30, s{sW}, {nk*1024}\ns_add_u32 s30, s30, s{sOWN}\nv_lshlrev_b32 v12, 7, v1")
            for i in range(0, nk, 8):
                if nk - i < 8: set_exec((1 << ((nk - i) * 8)) - 1)
                e(f"s_add_u32 s31, s30, {WS_AR + i*1024}\nbuffer_load_dword v{248+i//8}, v12, {s(SWS,4)}, s31 offen {fl}")
                Q.add("touch")
            e("s_mov_b64 exec, -1")
        return f
    dma_phase1.touch = touch
    G.p_loop(Q, ST, 0, NPF, tail=touch(16, TFL.replace("none", "")) if TOUCH else None)
    if DPRIO: e("s_setprio 0")
    e("s_waitcnt lgkmcnt(0)")

def dma_rest(ST, Q):
    G = G3
    if DPRIO: e(f"s_setprio {DPRIO}")
    e(f"s_lshl_b32 s32, s{sRB}, 9\ns_add_u32 s32, s32, {WS_F2}")
    pf_step(PFBUB)
    e("v_lshlrev_b32 v10, 3, v1")
    G.p_loop(Q, ST, G.NSB, 1, 3, gate=lambda k: gate_k(G3, k, True), look=(range(0, 12), (32, 10, True)))
    G = G4
    roles_84()
    b_src_w1()
    e(f"s_lshl_b32 s{sAR}, s{sRB}, 18\ns_add_u32 s{sAR}, s{sAR}, {WS_H}")
    G.p_setup_b(); G.p_setup_a()
    e(f"s_lshl_b32 s32, s{sRB}, 8\ns_add_u32 s32, s32, {WS_F3}")
    if BEARLY and not BTAIL: G.issue_b(Q, 0)
    if not LFIRST: wait_rows(OFF_EP, 2)
    if not BEARLY and not BTAIL: G.issue_b(Q, 0)
    pf_step(PFBUB)
    e("v_lshlrev_b32 v10, 2, v1")
    if LFIRST:
        e(f"s_lshl_b32 s30, s{sROT}, 2\nv_add_u32 v10, s30, v1\nv_and_b32 v10, 63, v10\nv_lshlrev_b32 v10, 2, v10")
        e(f"s_cmp_lg_u32 s{sMODE}, 0\ns_cselect_b32 s33, 0, {WS_F3L - WS_F3}\ns_cselect_b32 s{sKS}, 0, {WS_HL - WS_H}\ns_add_u32 s33, s33, s32\ns_add_u32 s{sKS}, s{sKS}, s{sAR}")
    def gate4(k):
        if not LFIRST: return gate_k(G4, k, False)
        n0 = GATEN["w1"]
        if k == 4: e(f"s_mov_b64 {s(sRDY,2)}, -1")
        if k == 0: need_flags((1 << (4 * n0)) - 1, 33, 10, False)
        elif k >= n0: need_flags(0xf << (4 * k), 33 if k < 4 else 32, 10, False)
    G.p_loop(Q, ST, 1 if BLATE else G.NS, NPF, gate=gate4, tail=dma_phase1.touch(28, '') if TOUCH4 else None, look=(range(0, 12), (32, 10, False)))
    pf_finish()
    G = G5
    roles_w2()
    b_src_w2()
    G.p_setup_b()
    for st in range(G.NS): G.issue_b(Q, st)
    G.p_setup_a()
    e(f"s_lshl_b32 s32, s{sRB}, 9\ns_lshl_b32 s30, s{sKS}, 7\ns_add_u32 s32, s32, s30\ns_add_u32 s32, s32, {WS_F4P}")
    e(f"s_lshl_b32 s30, s{sW}, 9\ns_add_u32 s32, s32, s30\nv_lshlrev_b32 v10, 2, v4")
    e("v_and_b32 v11, 1, v3")
    seen5 = set()
    def gate5(k):
        want = {(c, lv) for c, kb, lv in G5.blocks()[2 * k:2 * k + 2]} - seen5
        if want:
            seen5.update(want)
            need_flags(sum(0xf << (4 * c + 16 * (lv - 1)) for c, lv in want), 32, 10, False, shift=11)
    G.p_loop(Q, ST, G.NS + RP5, gate=gate5, look=(range(0, 10), (32, 10, False, 11)) if ASY5 else None, merge=bool(TAILPM))

U0 = 200
def colsum_block(j, src, nld, dpp):
    u = U0 + 8 * j
    if DOT:
        e("v_mov_b32 v10, 0x00003f80\nv_mov_b32 v11, 0x3f800000")
        for i in range(nld):
            for d in range(4):
                if i == 0: unpack(u + 2 * d, src + d)
                else: e(f"v_dot2_f32_bf16 v{u+2*d}, v{src+4*i+d}, v10, v{u+2*d}\nv_dot2_f32_bf16 v{u+2*d+1}, v{src+4*i+d}, v11, v{u+2*d+1}")
    else:
        for i in range(nld):
            for d in range(4):
                if i == 0: unpack(u + 2 * d, src + d)
                else:
                    unpack(10 + 2 * (d & 1), src + 4 * i + d)
                    e(f"v_pk_add_f32 {v(u+2*d,2)}, {v(u+2*d,2)}, {v(10+2*(d&1),2)}")
    for d in range(4): e(f"v_permlane32_swap_b32 v{u+d}, v{u+4+d}")
    for d in range(2): e(f"v_pk_add_f32 {v(u+2*d,2)}, {v(u+2*d,2)}, {v(u+4+2*d,2)}")
    for d in range(2): e(f"v_permlane16_swap_b32 v{u+d}, v{u+2+d}")
    e(f"v_pk_add_f32 {v(u,2)}, {v(u,2)}, {v(u+2,2)}")
    for k in dpp:
        for r in range(u, u + 2): e(f"v_add_f32_dpp v{r}, v{r}, v{r} row_ror:{k} row_mask:0xf bank_mask:0xf")
def colsum_store(Q, j, soff, nl, tag):
    u = U0 + 8 * j
    e("v_lshlrev_b32 v6, 5, v4\nv_lshl_add_u32 v6, v3, 3, v6")
    m = (1 << nl) - 1
    set_exec(m | m << 16 | m << 32 | m << 48)
    e(f"buffer_store_dwordx2 {v(u,2)}, v6, {s(SWS,4)}, s{soff} offen offset:{256*j} sc1\ns_mov_b64 exec, -1")
    Q.add(tag, 1)

def zero_own_flags(Q):
    e("v_lshlrev_b32 v2, 2, v1\nv_mov_b32 v8, 0")
    def st(soff, nl):
        set_exec((1 << nl) - 1); e(f"buffer_store_dword v8, v2, {s(SWS,4)}, s{soff} offen sc1"); Q.add("zero")
    flag_addr(32, WS_F1, sCB, sRB, 4, None); st(32, 4)
    flag_addr(32, WS_F2, sRB, sCB, 8, None); st(32, 8)
    roles_48(36, 37)
    flag_addr(32, WS_F3, 36, 37, 4, None); st(32, 4)
    if LFIRST: e(f"s_add_u32 s32, s32, {WS_F3L - WS_F3}"); st(32, 4)
    roles_w2(36, 37, 38)
    if F5W:
        assert not CANARY
        e(f"s_lshl_b32 s32, s36, 3\ns_add_u32 s32, s32, s37\ns_lshl_b32 s32, s32, 5\ns_add_u32 s32, s32, s38\ns_lshl_b32 s32, s32, 4\ns_add_u32 s32, s32, {WS_F5W}")
        set_exec(0xf); e("v_lshlrev_b32 v9, 7, v1"); e(f"buffer_store_dword v8, v9, {s(SWS,4)}, s32 offen sc1"); Q.add("zero")
    else:
        e(f"s_lshl_b32 s32, s36, 3\ns_add_u32 s32, s32, s37\ns_lshl_b32 s32, s32, 2\ns_add_u32 s32, s32, s38\ns_lshl_b32 s32, s32, 4\ns_add_u32 s32, s32, {WS_F5}"); st(32, 4)
    roles_84(36, 37)
    f4_addr(32, 36, 37, None); st(32, 4)
    e("s_mov_b64 exec, -1\nv_mov_b32 v8, -1\nv_mov_b32 v9, -1\nv_mov_b32 v10, -1\nv_mov_b32 v11, -1\nv_lshlrev_b32 v7, 4, v1")
    e(f"s_lshl_b32 s32, s35, 5\ns_add_u32 s32, s32, {WS_RA}"); st(32, 8)
    e(f"s_add_u32 s32, s32, {WS_RB - WS_RA}"); st(32, 8)
    def st4(soff, nl):
        set_exec((1 << nl) - 1); e(f"buffer_store_dwordx4 v[8:11], v7, {s(SWS,4)}, s{soff} offen sc1"); Q.add("zero")
    e(f"s_mul_i32 s32, s35, 768\ns_add_u32 s32, s32, {WS_CS1}"); st4(32, 48)
    e(f"s_mul_i32 s32, s36, {2*3584*4}\ns_mul_i32 s33, s37, 896\ns_add_u32 s32, s32, s33\ns_add_u32 s32, s32, {WS_CS2}"); st4(32, 56)
    e(f"s_add_u32 s32, s32, {3584*4}"); st4(32, 56)
    e("s_mov_b64 exec, -1")

sPFO, sPFE, sPFI, SPF = sNEED, pOUT, sT0, 44
sPFS = pOUT + 1
sTOUT = 96
def pf_init():
    e(f"s_mov_b64 {s(sTOUT,2)}, {s(pOUT,2)}")
    srd(SPF, pWO, 2 * MB)
    e(f"s_lshl_b32 s{sPFS}, s2, 2\ns_add_u32 s{sPFS}, s{sPFS}, s{sW}\ns_lshl_b32 s{sPFS}, s{sPFS}, 8\ns_mov_b32 s{sPFO}, s{sPFS}\ns_mov_b32 s{sPFE}, {2*MB}\ns_mov_b32 s{sPFI}, {2 if W2NT else 0 if PFW1 else 1}")
def pf_chunk():
    for i in range(4): e(f"s_buffer_load_dword s{sC0}, {s(SPF,4)}, s{sPFO} offset:{64*i}")
    e(f"s_add_u32 s{sPFO}, s{sPFO}, {1024*256}")
def pf_step(n):
    if not SPFON or n == 0: return
    G_, X, W2L = A.newlabel("pfg"), A.newlabel("pfx"), A.newlabel("pfw2")
    e(f"s_cmp_lt_u32 s{sPFO}, s{sPFE}\ns_cbranch_scc1 {G_}\ns_cmp_ge_u32 s{sPFI}, 2\ns_cbranch_scc1 {X}")
    e(f"s_mov_b32 s{sPFO}, s{sPFS}\ns_mov_b32 s{sPFE}, {7*MB}\ns_add_u32 s{sPFI}, s{sPFI}, 1\ns_cmp_eq_u32 s{sPFI}, 2\ns_cbranch_scc1 {W2L}")
    srd(SPF, pW1, 7 * MB)
    e(f"s_branch {G_}")
    A.label(W2L)
    srd(SPF, pW2, 7 * MB)
    A.label(G_)
    for i in range(n): pf_chunk()
    A.label(X)
CODE_MAX = 96 * KB
def code_warm():
    if not CWARM: return
    L = A.newlabel("pc")
    e(f"s_getpc_b64 s[42:43]")
    A.label(L)
    e(f"s_sub_u32 s42, s42, {L}-{KN}\ns_subb_u32 s43, s43, 0\ns_lshl_b32 s{sC0+1}, s{sR}, 2\ns_add_u32 s{sC0+1}, s{sC0+1}, s{sW}\ns_lshl_b32 s{sC0+1}, s{sC0+1}, 6")
    for i in range(NCODE): e(f"s_load_dword s{sC0}, s[42:43], s{sC0+1} offset:{i*8192}")
def tlb_warm():
    if not TLBW: return
    e(f"s_lshl_b32 s{sC0+1}, s{sR}, 2\ns_add_u32 s{sC0+1}, s{sC0+1}, s{sW}\ns_lshl_b32 s{sC0+1}, s{sC0+1}, {TLBG}")
    n = max(1, (96 * MB >> TLBG) // 128)
    for i in range(n):
        e(f"s_add_u32 s42, s{sC0+1}, {(i*128) << TLBG}\ns_min_u32 s42, s42, {96*MB - 64}\ns_load_dword s{sC0}, {s(pWS,2)}, s42")
    for ptr, nb in ((pW1, 7 * MB), (pW2, 7 * MB), (pWO, 2 * MB), (sTOUT, 4 * MB)):
        e(f"s_min_u32 s42, s{sC0+1}, {nb - 64}\ns_load_dword s{sC0}, {s(ptr,2)}, s42")
def pf_until_ep(k):
    L, X = A.newlabel("pu"), A.newlabel("pux")
    A.label(L)
    e(f"ds_read_b32 v{vFV}, v{vFR} offset:{OFF_EP}\ns_waitcnt lgkmcnt(0)\nv_cmp_gt_u32 vcc, {k}, v{vFV}\ns_cbranch_vccz {X}")
    e(f"s_sleep 1\ns_add_u32 s3, s3, 1\ns_cmp_lt_u32 s3, {LSPIN_MAX}\ns_cbranch_scc1 {L}")
    A.label(X)
def pf_finish():
    if not SPFON: return
    L = A.newlabel("pfin")
    A.label(L)
    pf_step(2)
    e(f"s_waitcnt lgkmcnt(6)\ns_cmp_lt_u32 s{sPFI}, 2\ns_cbranch_scc1 {L}\ns_cmp_lt_u32 s{sPFO}, s{sPFE}\ns_cbranch_scc1 {L}")
def pf_stamp(ST):
    if not STAMPS: return
    k_ = len(ST.names); ST.names.append("pfMB")
    e(f"s_mul_i32 s30, s{sPFI}, 1000\ns_lshr_b32 s31, s{sPFO}, 13\ns_mul_i32 s31, s31, 25\ns_lshr_b32 s31, s31, 5\ns_add_u32 s30, s30, s31\ns_add_u32 s{78+k_}, s78, s30")

class HStream:
    def __init__(self): self.items = []
    def __enter__(self):
        self.saved = A.lines; A.lines = []; return self
    def _take(self, atomic=False):
        if A.lines:
            if atomic: self.items.append(("g", list(A.lines)))
            else: self.items += [("g", [ln]) for ln in A.lines if ln.strip()]
        A.lines = []
    def at(self, k): self._take(); self.items.append(("at", k))
    def by(self, k): self._take(); self.items.append(("by", k))
    def atomic(self, f, cost=None):
        self._take(); f()
        if not A.lines: return
        self._take(True)
        if cost is not None: self.items[-1] = ("g", self.items[-1][1], cost)
    def __exit__(self, *a):
        self._take(); A.lines = self.saved
    @staticmethod
    def cost(ln):
        t = ln.strip()
        if t.startswith(("buffer_", "global_")): return VMC
        if t.startswith("ds_"): return 2
        if t.startswith("v_dot"): return DOTC
        if t.startswith(("v_exp", "v_rcp", "v_sqrt", "v_rsq")): return 2
        if t.startswith("s_") or t.endswith(":"): return 0.5
        return 1
    def emit(self, nbar, lim, npf, pf_from=0, pf_to=99, pre0=999, every=1, cw=(), more=False):
        st = {"b": 0, "used": 0}
        def bar():
            e("s_barrier")
            if st["b"] in cw: code_warm()
            if cw and cw[0] == 0 and st["b"] == 2: tlb_warm()
            if pf_from <= st["b"] < min(pf_to, nbar - 1) and st["b"] % every == every - 1: pf_step(npf + (1 if more and st["b"] % 3 != 1 else 0))
            st["b"] += 1; st["used"] = 0
        for kind, x, *oc in self.items:
            if kind == "at":
                while st["b"] <= x: bar()
            elif kind == "by":
                if DBGH: print("by", x, "at", st["b"], file=sys.stderr)
                assert st["b"] <= x, ("deadline missed", st["b"], x)
            else:
                c = oc[0] if oc else sum(self.cost(l) for l in x)
                if st["used"] > 8 and st["used"] + c > (lim if st["b"] > 0 else pre0) and not (len(x) == 1 and x[0].strip().startswith("s_")): bar()
                A.lines += x; st["used"] += c
        assert st["b"] <= nbar, st
        while st["b"] < nbar: bar()

def retry(loads, regs, nl):
    L, X = A.newlabel("rt"), A.newlabel("rtx")
    set_exec((1 << nl) - 1 if nl <= 64 else nl)
    e(f"s_mov_b32 s{sCNT}, 0")
    A.label(L)
    e("s_waitcnt vmcnt(0)")
    e(f"v_max_u32 v8, v{regs[0]}, v{regs[1]}")
    for i in range(2, len(regs), 2): e(f"v_max3_u32 v8, v{regs[i]}, v{regs[i+1]}, v8")
    e(f"v_cmp_eq_u32 vcc, -1, v8\ns_cbranch_vccz {X}\ns_add_u32 s{sCNT}, s{sCNT}, 1\ns_cmp_gt_u32 s{sCNT}, {SPIN_MAX}\ns_cbranch_scc1 {X}\ns_sleep 8")
    loads()
    e(f"s_branch {L}")
    A.label(X)

def helper0_phase1(ST, Q):
    RS = 16
    with HStream() as H:
        e(f"""
s_lshl_b32 s35, s{sRB}, 4
s_add_u32 s35, s35, s{sCB}
s_lshl_b32 s34, s35, 14
v_lshrrev_b32 v6, 3, v1
v_lshlrev_b32 v5, 11, v6
v_and_b32 v7, 7, v1
v_lshl_add_u32 v5, v7, 4, v5
s_getreg_b32 s39, hwreg(HW_REG_XCC_ID)
""")
        bounds = [0] + [2 * x for x in HB] + [16]
        def red8(r):
            e(f"v_add_f32_dpp v{r}, v{r}, v{r} quad_perm:[1,0,3,2] row_mask:0xf bank_mask:0xf")
            e(f"v_add_f32_dpp v{r}, v{r}, v{r} quad_perm:[2,3,0,1] row_mask:0xf bank_mask:0xf")
            e(f"v_add_f32_dpp v{r}, v{r}, v{r} row_half_mirror row_mask:0xf bank_mask:0xf")
        def dots(bt):
            Q.wait(("rs", bt))
            for i in range(4 * bounds[bt], 4 * bounds[bt + 1]):
                e(f"v_dot2_f32_bf16 v{80+(i&1)}, v{RS+i}, v84, v{80+(i&1)}\nv_dot2_f32_bf16 v{82+(i&1)}, v{RS+i}, v{RS+i}, v{82+(i&1)}")
        e("v_mov_b32 v84, 0x3f803f80\nv_mov_b64 v[80:81], 0\nv_mov_b64 v[82:83], 0")
        for bt in range(len(bounds) - 1):
            if bt: H.at(bt - 1)
            for i in range(bounds[bt], bounds[bt + 1]): e(f"buffer_load_dwordx4 {v(RS+4*i,4)}, v5, {s(SX,4)}, s34 offen offset:{128*i}")
            Q.add(("rs", bt), bounds[bt + 1] - bounds[bt])
            if bt == 1: zero_own_flags(Q)
            if bt >= LAG: dots(bt - LAG)
        e(f"s_and_b32 s39, s39, 15\ns_or_b32 s39, s39, 0x80\ns_lshl_b32 s30, s{sG}, 5\ns_add_u32 s30, s30, s{sR}")
        e(f"v_mov_b32 v8, s39\nv_mov_b32 v2, s30")
        nb_ = len(bounds) - 1
        for bt in range(nb_ - LAG, nb_):
            H.at(bt + LAG - 1); dots(bt)
        H.by(H0AT + 1)
        e(f"s_mov_b64 exec, 1\nbuffer_store_byte v8, v2, {s(SD,4)}, 0 offen sc1\ns_mov_b64 exec, -1")
        e("v_add_f32 v10, v80, v81\nv_add_f32 v11, v82, v83")
        red8(10)
        red8(11)
        if DOT: e(f"v_mul_f32 v12, {f32(-1/1024)}, v10\nv_fma_f32 v11, v12, v10, v11\nv_max_f32 v11, 0, v11")
        ln_finish(10, 11, 1024)
        e("v_mul_f32 v10, v10, v11\nv_sub_f32 v10, 0, v10")
        e(f"v_lshrrev_b32 v7, 3, v1\nv_lshlrev_b32 v7, 2, v7\ns_lshl_b32 s32, s35, 5\ns_add_u32 s32, s32, {WS_RA}\ns_add_u32 s33, s32, {WS_RB-WS_RA}")
        set_exec(0x0101010101010101)
        e(f"buffer_store_dword v11, v7, {s(SWS,4)}, s32 offen sc1\nbuffer_store_dword v10, v7, {s(SWS,4)}, s33 offen sc1\ns_mov_b64 exec, -1")
        ST("st_pub")
        H.by(GAT - 1); H.at(GAT - 3)
        e(f"v_lshlrev_b32 v12, 2, v1\nbuffer_load_dword v13, v12, {s(SD,4)}, 0 offen sc1")
        H.at(GAT - 1)
        def handshake():
            X = A.newlabel("hsx")
            e(f"s_waitcnt vmcnt(0)\nv_and_b32 v8, 0x80808080, v13\nv_cmp_ne_u32 vcc, 0x80808080, v8\ns_cbranch_vccz {X}")
            poll("0", 64, srd_=SD, mask="0x80808080", t=8, sleep=16)
            e(f"buffer_load_dword v13, v12, {s(SD,4)}, 0 offen sc1\ns_waitcnt vmcnt(0)")
            A.label(X)
            e(f"s_mul_i32 s31, s39, 0x01010101\nv_cmp_ne_u32 vcc, s31, v13\ns_lshl_b32 s30, s{sG}, 3\ns_lshr_b64 s[32:33], vcc, s30\ns_and_b32 s30, s32, 0xff")
            if FORCE >= 0: e(f"s_mov_b32 s30, {FORCE}")
            e(f"v_mov_b32 v8, s30\nv_mov_b32 v7, {L_HD}\ns_mov_b64 exec, 1\nds_write_b32 v7, v8\ns_mov_b64 exec, -1")
        H.atomic(handshake)
        H.at(GAT)
        e(f"v_and_b32 v6, 31, v1\nv_lshlrev_b32 v6, 4, v6\nv_lshrrev_b32 v7, 5, v1\nv_lshl_add_u32 v6, v7, 13, v6\ns_lshl_b32 s34, s{sRB}, 9\ns_add_u32 s34, s34, {WS_RA}")
        ld = lambda: e(f"buffer_load_dwordx4 v[16:19], v6, {s(SWS,4)}, s34 offen sc1")
        ld()
        H.at(GAT + 2)
        def fin():
            retry(ld, [16, 17, 18, 19], 64)
            e(f"v_lshlrev_b32 v6, 4, v1\nv_add_u32 v6, {L_RA}, v6\nds_write_b128 v6, v[16:19]\ns_waitcnt lgkmcnt(0)")
        H.atomic(fin)
        ST("st_in")
        H.by(16)
    H.emit(17, HLIM, NPF, pf_from=PFD0, pf_to=GAT + 1, pre0=PRE0, cw=(0, 14) if CWARM > 1 else (0,))
    e("s_waitcnt lgkmcnt(0)")
    pf_stamp(ST)

def helper1_phase1(ST, Q):
    CSR = 80
    with HStream() as H:
        e(f"""
s_lshl_b32 s35, s{sRB}, 4
s_add_u32 s35, s35, s{sCB}
v_bfe_u32 v6, v1, 3, 2
v_lshrrev_b32 v7, 5, v1
v_lshl_add_u32 v6, v7, 6, v6
v_and_b32 v7, 7, v1
v_mul_u32_u24 v6, 6144, v6
v_lshl_add_u32 v6, v7, 4, v6
s_mul_i32 s32, s{sRB}, {4*6144}
s_lshl_b32 s33, s{sCB}, 7
s_add_u32 s32, s32, s33
""")
        bounds = [0] + HB + [8]
        e("v_mov_b32 v10, 0x00003f80\nv_mov_b32 v11, 0x3f800000")
        for r in range(U0, U0 + 24, 2): e(f"v_mov_b64 {v(r,2)}, 0")
        def dots(bt):
            Q.wait(("cs", bt))
            for i in range(bounds[bt], bounds[bt + 1]):
                for j in range(3):
                    for d in range(4):
                        u, r = U0 + 8 * j + 2 * d, CSR + 4 * (8 * j + i) + d
                        e(f"v_dot2_f32_bf16 v{u}, v{r}, v10, v{u}\nv_dot2_f32_bf16 v{u+1}, v{r}, v11, v{u+1}")
        nb_ = len(bounds) - 1
        for bt in range(nb_):
            if bt: H.at(bt - 1)
            for i in range(bounds[bt], bounds[bt + 1]):
                for j in range(3):
                    e(f"s_add_u32 s31, s32, {2048*j + 128*6144*i}\nbuffer_load_dwordx4 {v(CSR+4*(8*j+i),4)}, v6, {s(SB,4)}, s31 offen {'nt' if i < NTK else ''}")
            Q.add(("cs", bt), 3 * (bounds[bt + 1] - bounds[bt]))
            if bt >= LAG: dots(bt - LAG)
        for bt in range(nb_ - LAG, nb_):
            H.at(bt + LAG - 1); dots(bt)
        e(f"s_mul_i32 s33, s35, 768\ns_add_u32 s33, s33, {WS_CS1}")
        for j in range(3): colsum_block(j, 0, 0, (8,))
        H.at(H0AT + 1)
        for j in range(3): colsum_store(Q, j, 33, 8, "st1")
        ST("st_pub")
        H.by(GAT - 1); H.at(GAT)
        e(f"s_mul_i32 s33, s{sCB}, 768\ns_add_u32 s33, s33, {WS_CS1}\nv_lshlrev_b32 v6, 4, v1")
        def ld():
            for k in range(16): e(f"s_add_u32 s31, s33, {k*16*768}\nbuffer_load_dwordx4 {v(16+4*k,4)}, v6, {s(SWS,4)}, s31 offen sc1")
        def ld0():
            set_exec((1 << 48) - 1); ld(); e("s_mov_b64 exec, -1")
        H.atomic(ld0)
        H.at(GAT + 2)
        def fin():
            retry(ld, list(range(16, 80)), 48)
            for k in range(1, 16): e(f"v_pk_add_f32 v[16:17], v[16:17], {v(16+4*k,2)}\nv_pk_add_f32 v[18:19], v[18:19], {v(18+4*k,2)}")
            e(f"v_add_u32 v6, {L_CS}, v6\nds_write_b128 v6, v[16:19]\ns_mov_b64 exec, -1\ns_waitcnt lgkmcnt(0)")
        H.atomic(fin)
        ST("st_in")
        H.by(16)
    H.emit(17, HLIM, NPF, pf_from=PFD0, pf_to=GAT + 1, pre0=PRE0, cw=(0, 14) if CWARM > 1 else (0,))
    e("s_waitcnt lgkmcnt(0)")
    pf_stamp(ST)

def helper_rest(ST, Q):
    CSR = 16
    with HStream() as H:
        if B3LATE: H.at(0)
        for st in range(6, G3.NSB): G3.issue_b(Q, st)
        H.at(5)
        Q.wait_all()
        H.by(6)
        roles_84()
        b_src_w1()
        G4.p_setup_b(sWN)
        e(f"""
v_lshrrev_b32 v6, 3, v1
v_mul_u32_u24 v6, 7168, v6
v_and_b32 v7, 7, v1
v_lshl_add_u32 v6, v7, 4, v6
v_lshrrev_b32 v5, 2, v1
v_mul_u32_u24 v5, 7168, v5
v_and_b32 v7, 3, v1
v_lshl_add_u32 v5, v7, 4, v5
s_lshl_b32 s35, s{sRB}, 1
s_add_u32 s35, s35, s{sWN}
s_mul_i32 s32, s35, {32*7168}
s_mul_i32 s33, s{sCB}, 448
s_add_u32 s32, s32, s33
""")
        e(f"s_mul_i32 s33, s35, {3584*4}\ns_mul_i32 s34, s{sCB}, 896\ns_add_u32 s33, s33, s34\ns_add_u32 s33, s33, {WS_CS2}")
        if WARM4:
            e(f"s_and_b32 s36, s35, 15\ns_mul_i32 s36, s36, {4*7168}\ns_mul_i32 s37, s{sCB}, 448\ns_and_b32 s37, s37, {hex(0xffffff80)}\ns_add_u32 s36, s36, s37")
            e(f"v_bfe_u32 v8, v1, 2, 2\nv_mul_u32_u24 v8, 7168, v8\nv_and_b32 v9, 3, v1\nv_lshl_add_u32 v8, v9, 7, v8\ns_mov_b32 s37, {(G4.korder[1]-G4.korder[0])*64*7168}\nv_mul_lo_u32 v9, v3, s37\nv_add_u32 v8, v8, v9")
            assert G4.korder[0] == 0 and G4.korder[2] == 2 * G4.korder[1]
            H.at(CS2AT - 1)
            e(f"buffer_load_dword v244, v8, {s(SB,4)}, s36 offen"); Q.add("warm")
        H.at(CS2AT)
        for j in range(3):
            for i in range(4):
                e(f"s_add_u32 s31, s32, {8*7168*i}\nbuffer_load_dwordx4 {v(CSR+4*(4*j+i),4)}, v6, {s(SB,4)}, s31 offen offset:{128*j}")
            Q.add(("w", j), 4)
        for i in range(2):
            e(f"s_add_u32 s31, s32, {16*7168*i}\nbuffer_load_dwordx4 {v(CSR+48+4*i,4)}, v5, {s(SB,4)}, s31 offen offset:384")
        Q.add(("w", 3), 2)
        if BTAIL:
            H.at(BT0); G4.issue_b(Q, 0)
            H.at(13); G4.issue_b(Q, 1)
    H.emit(17, 40, 1, every=3, pf_to=CS2AT, cw=(14,) if CWARM > 1 else ())
    pf_stamp(ST)
    for j in range(4):
        Q.wait(("w", j))
        colsum_block(j, CSR + 16 * j, 4 if j < 3 else 2, (8,) if j < 3 else (4, 8))
    pf_until_ep(2)
    if BSEEN:
        for j in range(4): colsum_store(Q, j, 33, 8 if j < 3 else 4, "st2")
        if BSEEN == 2: G4.issue_b(Q, 1)
        e(f"v_mov_b32 v12, {L_FULL}")
        lds_wait(12, 1, vFV, sleep=1)
        if BSEEN == 1: G4.issue_b(Q, 1)
    else:
        if not BLATE:
            for st in ((2,) if BTAIL else (1, 2)): G4.issue_b(Q, st)
        for j in range(4): colsum_store(Q, j, 33, 8 if j < 3 else 4, "st2")
    ST("cs2_pub")
    if BTAIL: Q.wait(0)
    with HStream() as H:
        e(f"s_lshl_b32 s36, s{sRB}, 8\ns_add_u32 s36, s36, {WS_F3}\ns_lshr_b32 s37, s{sR}, 1\ns_min_u32 s37, s37, 13\ns_lshl_b32 s37, s37, 8\ns_add_u32 s37, s37, {WS_F3}")
        H.at(0)
        if BSEEN:
            H.atomic(lambda: G4.issue_b(Q, 2), 0)
            Q.wait(1)
            H.at(1)
        Q.wait(2)
        e("v_lshlrev_b32 v240, 2, v1\nv_mul_u32_u24 v241, 12, v1")
        H.at(CHKAT)
        e(f"buffer_load_dword v232, v240, {s(SWS,4)}, s36 offen sc1\nbuffer_load_dwordx3 v[234:236], v241, {s(SWS,4)}, s37 offen sc1")
        Q.add("chk", 2)
        H.at(CHKAT + 2)
        def chk():
            X = A.newlabel("ckx")
            Q.wait("chk")
            e(f"v_lshrrev_b32 v232, 1, v232\nv_and_b32 v232, v232, v236\nv_and_b32 v234, v234, v235\nv_and_b32 v232, v232, v234\nv_and_b32 v232, 1, v232\nv_cmp_ne_u32 vcc, 1, v232\ns_cbranch_vccz {X}")
            poll("s36", 64, mask=2, t=8, sleep=8)
            for d in range(3):
                e(f"s_add_u32 s38, s37, {256*d}"); poll("s38", 64, mask=1, t=8, sleep=8)
            A.label(X)
        H.atomic(chk, 10)
        e(f"v_lshlrev_b32 v11, 4, v1\ns_lshl_b32 s36, s35, 14\ns_add_u32 s36, s36, {WS_STAT}\ns_add_u32 s37, s36, 4096\ns_add_u32 s38, s36, 8192\ns_add_u32 s39, s36, 12288")
        for i in range(16): e(f"buffer_load_dwordx4 {v(96+4*i,4)}, v11, {s(SWS,4)}, s{36+i//4} offen offset:{1024*(i%4)} sc1")
        Q.add("stat", 16)
        e(f"s_mul_i32 s33, s{sCB}, 896\ns_mul_i32 s34, s{sWN}, 448\ns_add_u32 s33, s33, s34\ns_add_u32 s33, s33, {WS_CS2}")
        e(f"v_and_b32 v7, 31, v1\nv_lshlrev_b32 v7, 4, v7\nv_lshrrev_b32 v6, 5, v1\nv_mul_u32_u24 v6, {3584*4}, v6\nv_add_u32 v6, v6, v7")
        M28 = ((1 << 28) - 1) | (((1 << 28) - 1) << 32)
        def ld(ks=range(16)):
            for k in ks: e(f"s_add_u32 s31, s33, {k*2*3584*4}\nbuffer_load_dwordx4 {v(16+4*k,4)}, v6, {s(SWS,4)}, s31 offen sc1")
        for c in range(4):
            def ldc(c=c):
                set_exec(M28); ld(range(4 * c, 4 * c + 4)); e("s_mov_b64 exec, -1")
            H.atomic(ldc, 4 * VMC)
        Q.add("cs", 16)
        Q.wait("stat")
        for h in range(2):
            e(f"v_pk_add_f32 {v(160+2*h,2)}, {v(96+2*h,2)}, {v(100+2*h,2)}")
            for i in range(2, 16): e(f"v_pk_add_f32 {v(160+2*h,2)}, {v(160+2*h,2)}, {v(96+4*i+2*h,2)}")
        for h in range(2): e(f"v_mov_b32 v{164+h}, v{160+2*h}")
        for h in range(2): e(f"v_permlane32_swap_b32 v{160+2*h}, v{164+h}")
        for h in range(2): e(f"v_add_f32 v{160+2*h}, v{160+2*h}, v{164+h}\nv_mul_f32 v{166+h}, {f32(1/32)}, v{160+2*h}\nv_mov_b32 v{168+h}, 0")
        for i in range(16):
            for h in range(2):
                r = 96 + 4 * i + 2 * h
                e(f"v_sub_f32 v{r}, v{r}, v{166+h}\nv_fma_f32 v{168+h}, v{r}, v{r}, v{168+h}")
        e(f"v_mov_b32 v13, {f32(1/32)}")
        for h in range(2): e(f"v_fma_f32 v{161+2*h}, v{168+h}, v13, v{161+2*h}\nv_mov_b32 v{164+h}, v{161+2*h}")
        for h in range(2): e(f"v_permlane32_swap_b32 v{161+2*h}, v{164+h}")
        for h in range(2):
            a_, b_ = 160 + 2 * h, 161 + 2 * h
            e(f"v_add_f32 v{b_}, v{b_}, v{164+h}")
            ln_finish(a_, b_, 1024)
            e(f"v_mul_f32 v{b_}, {f32(-LOG2E)}, v{b_}\nv_mul_f32 v{a_}, v{a_}, v{b_}\nv_sub_f32 v{a_}, 0, v{a_}")
        e(f"s_lshl_b32 s30, s{sWN}, 9\ns_add_u32 s30, s30, {L_RA}\nv_add_u32 v13, s30, v7\nds_write_b128 v13, v[160:163]")
        def fin():
            retry(ld, list(range(16, 80)), M28)
            e("s_mov_b64 exec, -1")
        H.atomic(fin, 36)
        for k in range(1, 16): e(f"v_pk_add_f32 v[16:17], v[16:17], {v(16+4*k,2)}\nv_pk_add_f32 v[18:19], v[18:19], {v(18+4*k,2)}")
        for h in range(4): e(f"v_mov_b32 v{20+h}, v{16+h}")
        for h in range(4): e(f"v_permlane32_swap_b32 v{16+h}, v{20+h}")
        e("v_pk_add_f32 v[16:17], v[16:17], v[20:21]\nv_pk_add_f32 v[18:19], v[18:19], v[22:23]")
        e(f"s_add_u32 s34, s34, {L_CS}\nv_add_u32 v7, s34, v7"); set_exec((1 << 28) - 1)
        e("ds_write_b128 v7, v[16:19]\ns_mov_b64 exec, -1\ns_waitcnt lgkmcnt(0)")
        ST("st2_in")
        H.by(16)
        if W2NT:
            H.at(W2AT)
            def w2pf():
                srd(SB, pW2, 7 * MB)
                e(f"s_lshr_b32 s36, s{sG}, 1\ns_mul_i32 s36, s36, {896*2048}\ns_lshl_b32 s37, s{sR}, 1\ns_add_u32 s37, s37, s{sWN}\ns_mul_i32 s37, s37, {56*128}\ns_add_u32 s36, s36, s37\nv_lshlrev_b32 v240, 7, v1")
                set_exec((1 << 56) - 1)
                for k in range(2): e(f"s_add_u32 s31, s36, {k*64*56*128}\nbuffer_load_dword v{244+k}, v240, {s(SB,4)}, s31 offen {W2NT.replace('none','')}")
                e("s_mov_b64 exec, -1")
            H.atomic(w2pf, 0)
    H.emit(17, HLIM4, NPF, more=True, pf_to=14, cw=(14,) if CWARM > 1 else ())
    pf_stamp(ST)
    pf_finish()
    if RP5:
        roles_w2(); b_src_w2(); G5.p_setup_b(sWN); G5.rp_addr()
        Q.q = []
        G5.rp_load(Q, RP5, 16)
        with HStream() as H:
            for i in range(RP5):
                H.at(i + 1); H.atomic(lambda: G5.rp_drain(Q, i, 16), 0)
        H.emit(RP5 + 2, 99, 0)
    if CANARY:
        roles_w2()
        Q.q = []
        with HStream() as H:
            e(f"s_lshl_b32 s33, s{sRB}, 3\ns_add_u32 s33, s33, s{sCB}\ns_mul_i32 s34, s33, {256*KB}\ns_add_u32 s34, s34, {WS_PART}\ns_lshl_b32 s30, s{sWN}, 13\ns_add_u32 s34, s34, s30")
            e(f"s_lshl_b32 s30, s{sKS}, 14\ns_add_u32 s34, s34, s30\nv_lshlrev_b32 v2, 4, v1")
            for k in range(4): e(f"v_mov_b32 v{8+k}, -1")
            e(f"s_lshl_b32 s37, s33, 6\ns_lshl_b32 s30, s{sKS}, 4\ns_add_u32 s37, s37, s30\ns_lshl_b32 s30, s{sWN}, 3\ns_add_u32 s37, s37, s30\ns_add_u32 s37, s37, {WS_F5}")
            H.at(PFILL)
            for d in range(1, 4):
                for hb in range(2):
                    e(f"s_add_u32 s31, s{sKS}, {d}\ns_and_b32 s31, s31, 3\ns_lshl_b32 s31, s31, 16\ns_add_u32 s31, s31, s34\ns_add_u32 s31, s31, {hb*4096}")
                    for b in range(4): e(f"buffer_store_dwordx4 v[8:11], v2, {s(SWS,4)}, s31 offen offset:{b*1024} sc1")
            H.by(PFILL + 7); H.at(PFILL + 8)
            e(f"s_waitcnt vmcnt(0)\nv_mov_b32 v12, 1\nv_lshlrev_b32 v13, 2, v1\ns_mov_b64 exec, 3\nbuffer_store_dword v12, v13, {s(SWS,4)}, s37 offen sc1\ns_mov_b64 exec, -1")
        H.emit(PFILL + 10, 24, 0)
    if W2NT:
        set_exec((1 << 56) - 1)
        for k in range(2, 4): e(f"s_add_u32 s31, s36, {k*64*56*128}\nbuffer_load_dword v{244+k}, v240, {s(SB,4)}, s31 offen {W2NT.replace('none','')}")
        e("s_mov_b64 exec, -1")

def producer(ST):
    Q = VmQ()
    pf_init()
    e(f"s_cmp_eq_u32 s{sW}, 2\ns_cbranch_scc1 L_h0\ns_cmp_eq_u32 s{sW}, 3\ns_cbranch_scc1 L_h1")
    SD_ = ST.fork("D"); dma_phase1(SD_, Q)
    e("s_branch L_att")
    A.label("L_h0")
    if HPRIO: e(f"s_setprio {HPRIO}")
    SH = ST.fork("H"); helper0_phase1(SH, VmQ())
    e("s_branch L_att")
    A.label("L_h1")
    if HPRIO: e(f"s_setprio {HPRIO}")
    SH = ST.fork("H"); helper1_phase1(SH, VmQ())
    while len(SH.names) < len(SD_.names): SH.names.append("-")
    while len(SD_.names) < len(SH.names): SD_.names.append("-")
    A.label("L_att")
    e(f"s_setprio {APRIO}")
    n0 = len(SD_.names)
    neighbours_and_attention(SD_, Q)
    SH.names += SD_.names[n0:]
    e(f"s_cmp_ge_u32 s{sW}, 2\ns_cbranch_scc1 L_hrest")
    dma_rest(SD_, Q)
    SD_.flush()
    e("s_endpgm")
    A.label("L_hrest")
    e(f"s_setprio {HPRIO}")
    helper_rest(SH, VmQ())
    SH.flush()

def main():
    A.begin_kernel(KN)
    if STAMPS: e(f"{STAMP_OP} {s(sST,2)}")
    e(f"""
s_cmp_ge_u32 s2, 256
s_cbranch_scc1 L_end
s_load_dwordx16 s[48:63], s[0:1], 0
s_load_dwordx2 s[64:65], s[0:1], 64
v_lshrrev_b32 v2, 6, v0
v_and_b32 v1, 63, v0
v_readfirstlane_b32 s{sWAVE}, v2
v_lshrrev_b32 v3, 4, v1
v_and_b32 v4, 15, v1
s_and_b32 s{sG}, s2, 7
s_mov_b32 s3, 0
s_lshr_b32 s{sR}, s2, 3
s_and_b32 s{sW}, s{sWAVE}, 3
s_lshr_b32 s{sWM}, s{sW}, 1
s_and_b32 s{sWN}, s{sW}, 1
""")
    roles_p1()
    e(f"s_lshl_b32 s{sOWN}, s{sCB}, 4\ns_add_u32 s{sOWN}, s{sOWN}, s{sRB}\ns_lshl_b32 s{sOWN}, s{sOWN}, 16")
    e(f"s_add_u32 s{sROT}, s{sRB}, s{sCB}\ns_and_b32 s{sROT}, s{sROT}, {15 if ROT1 else 0}")
    e(f"s_lshl_b32 s{sBC}, s{sCB}, 7\ns_mov_b32 s{sBR}, 0\ns_lshl_b32 s{sAR}, s{sRB}, 18")
    G1.p_setup_a(); G1.p_setup_b()
    sync_regs()
    e("s_waitcnt lgkmcnt(0)")
    if STAMPS: e(f"s_mov_b32 s78, s{sST}\ns_mov_b32 s0, 0\ns_mov_b32 s1, 0")
    srd(SX, pX, 4 * MB); srd(SB, pWQKV, 6 * MB)
    if WSOFF: e(f"s_add_u32 s{pWS}, s{pWS}, {WSOFF*MB}\ns_addc_u32 s{pWS+1}, s{pWS+1}, 0")
    srd(SWS, pWS, WS_BYTES); srd(SD, pDBG, 256)
    e(f"s_cmp_lt_u32 s{sWAVE}, 4\ns_cbranch_scc1 L_cons")
    producer(Stamper("P"))
    A.label("L_end")
    e("s_endpgm")
    A.label("L_cons")
    if CPRIO: e(f"s_setprio {CPRIO}")
    consumer(Stamper("C"))
    A.lines.append(f".fill ({NCODE*8192} - (. - {KN})) / 4, 4, 0xbf810000")
    A.end_kernel(KN, 256, 102)
    A.lines = hazard.fix(A.lines)
    hdr = open("sequential_preLN__sliding_block__dense_activation_silu__prompt.s.ref").read().split("; Override launch")[0]
    hdr += f"; @launch grid=(256,1,1) block=(512,1,1) lds={LDS_BYTES}\n"
    for k, nm in STAMP_NAMES.items(): hdr += f"; stamps {k}: {' '.join(nm)}\n"
    sys.stdout.write(A.text(hdr))
main()
```

```python
import sys, struct
from asmlib import Asm
import hazard

ARGS = sys.argv[1:]
def opt(name, default):
    for a in ARGS:
        if a.startswith("--" + name + "="): return type(default)(a.split("=", 1)[1])
    return default
STAMPS = "--stamps" in ARGS
STAMP_OP = "s_memtime" if "--cyc" in ARGS else "s_memrealtime"
DPRIO = opt("dprio", 0)
FORCE = opt("force", -1)
PSLEEP = opt("psleep", 1)
GAT = opt("gat", 13); H0AT = opt("h0at", 5)
PUBN = opt("pubn", 16)
FPOS = opt("fpos", 8)
RP4 = opt("rp4", 0); RP5 = opt("rp5", 0)
CS2AT = opt("cs2at", 11)
BT0 = opt("bt0", 11)
CHKAT = opt("chkat", 3)
HLIM4 = opt("hlim4", 42)
DOTC = opt("dotc", 1.0)
NOST4 = opt("nost4", 0)
NSB3 = opt("nsb3", 11)
PF2 = opt("pf2", 4)
XAT = opt("xat", -1)
TWO = opt("two", 1)
G2AT = opt("g2at", 13)
GB = opt("gb", 0)
NOH4 = opt("noh4", 0)
LOOK0 = opt("look0", 4)
LOOKN = opt("lookn", 16)
PPIPE = opt("ppipe", 0)
PS0 = opt("ps0", 0)
PW0 = opt("pw0", 1)
PW5 = opt("pw5", 0)
PSI = opt("psi", 0)
PGAP = opt("pgap", 5)
VBAR = opt("vbar", 4)
VLATE = opt("vlate", 1)
VBARP = opt("vbarp", 1)
CHAIN = opt("chain", "none").split(",")
RSP = opt("rsp", 0.75)
LEVELS = opt("levels", 1)
LFIRST = opt("lfirst", 0)
HLT = opt("hlt", 1)
BTAIL = opt("btail", 0)
F5W = opt("f5w", 1)
CPRIO = opt("cprio", 0)
PERT = opt("pert", 0.0); PERTN = opt("pertn", 1); PERTL = opt("pertl", 1)
KFLAG = opt("kflag", 1)
SLOWPF = opt("slowpf", 1)
GATEN = {"wo": opt("g3n", 2), "w1": opt("g4n", 2)}
APK = opt("apk", 1)
AMIX = opt("amix", 0)
APRIO = opt("aprio", 0)
TAILPM = opt("tailpm", 1)
DBGOUT = opt("dbgout", -1)
CANARY = opt("canary", 0)
BSEEN = opt("bseen", 0)
PFILL = opt("pfill", 0)
ASY5 = opt("asy5", 1)
WARM4 = opt("warm4", 0)
ASYNC = opt("async", 0)
NTK = opt("ntk", 0)
TLBW = opt("tlbw", 0)
TLBG = opt("tlbg", 21)
EARLY5 = opt("early5", 1)
E5LAG = opt("e5lag", 2)
LAG = opt("lag", 1)
H1FL = opt("h1fl", "")
B1FL = opt("b1fl", "")
W2NT = opt("w2nt", "")
W2AT = opt("w2at", 14)
KORD = opt("kord", 1)
CWARM = opt("cwarm", 1)
NCODE = opt("ncode", 12)
TAILD = opt("taild", 0)
TOUCH4 = opt("touch4", 0)
HB = [int(x) for x in opt("hb", "3,5,7").split(",")]
DOT = opt("dot", 1)
PFH = opt("pfh", 0)
PFD0 = opt("pfd0", 3)
BEARLY = opt("bearly", 0)
BLATE = opt("blate", 0)
B3LATE = opt("b3late", 0)
KVFL = opt("kvfl", "sc1")
FINE = opt("fine", 1)
G4AT = opt("g4at", 9)
NPF = opt("npf", 1)
PFW1 = opt("pfw1", 0)
PFBUB = opt("pfbub", 0)
DST = opt("dst", "")
DW = eval(opt("dw", "()")); DB = eval(opt("db", "(0,1,2,3,4,5,6,7,8,9,10,12,14)"))
VMC = opt("vmc", 5)
PRE0 = opt("pre0", 999)
DBGH = opt("dbgh", 0)
P1G = opt("p1g", 2)
HLIM = opt("hlim", 120)
HPRIO = opt("hprio", 0)
SENT = 0xFFFFFFFF
SKIP = opt("skip", "att_v,p_flag").split(",")
ROT1 = opt("rot1", 0); ROT3 = opt("rot3", 0); ROT4 = opt("rot4", 0)
BAR = opt("bar", 0)
NS1 = opt("ns1", 3)
ALIAS = opt("alias", 1)
TESTH1 = opt("testh1", 0)
TFL = opt("tfl", "nt")
TOUCH = opt("touch", 0)
LFL = opt("lfl", "").replace("_", " ")
PFL = opt("pfl", "sc1").replace("_", " ")
OFL = opt("ofl", "").replace("_", " ")
TS = opt("ts", 0)
SPFON = opt("spf", 1)
PFB = opt("pfb", 6)
MAP1 = opt("map1", 162)
WAKE = opt("wake", 0)
LCAP = opt("lcap", 10)
SPREAD = opt("spread", 0.8)
DPOS = opt("dpos", 0.25)
NOSY = opt("nosy", "")
EARLY = opt("early", 1)
DSLEEP = opt("dsleep", 1)
ONLY = opt("only", 0)
NOLOAD = opt("noload", "")
NOMFMA = opt("nomfma", 0)
KN = "sequential_preLN__sliding_block__dense_activation_silu__prompt_kernel"
SPLIT = 4

MB = 1 << 20; KB = 1024
WS_AR, WS_H, WS_AR2 = 0, 20 * MB, 24 * MB
AR_K, AR_V, AR_O = 0, 16 * KB, 32 * KB
WS_STAT = 40 * MB
WS_CS1 = 41 * MB
WS_CS2 = 41 * MB + 256 * KB
WS_RA = 41 * MB + 768 * KB
WS_RB = WS_RA + 8 * KB
WS_F1 = 41 * MB + 896 * KB
WS_F2 = WS_F1 + 4 * KB; WS_F3 = WS_F2 + 8 * KB; WS_F4 = WS_F3 + 4 * KB; WS_F5 = WS_F4 + 4 * KB
WS_F6 = WS_F5 + 8 * KB; WS_F7 = WS_F6 + 2 * KB; WS_F8 = WS_F7 + 1 * KB
WS_F5W = 42 * MB
WS_HL = 44 * MB
WS_F3L = WS_F8
WS_F2 = 42 * MB + 256 * KB; WS_F3 = WS_F2 + 32 * KB
WS_K2 = 42 * MB + 384 * KB
WS_CF = WS_K2 + 32 * KB
WS_DBG = 48 * MB
WS_PART = 52 * MB
WSOFF = opt("wsoff", 0)
WS_BYTES = (256 - WSOFF) * MB
LOG2E = 1.4426950408889634
LDS_BYTES = 160 * KB
MISC = LDS_BYTES - 6 * KB
L_RA, L_CS = MISC, MISC + 1024
L_DONE, L_FULL, L_HD, L_EP = MISC + 2048, MISC + 3072, MISC + 4096, MISC + 5120
L_MODE = L_HD + 512
vDW, vFR, vCNT, vFV = 252, 253, 254, 255
SPIN_MAX = 1 << 16
LSPIN_MAX = 1 << 22

def f32(x): return "0x%08x" % struct.unpack("<I", struct.pack("<f", x))[0]
def v(a, n=1): return f"v{a}" if n == 1 else f"v[{a}:{a+n-1}]"
def s(a, n=1): return f"s{a}" if n == 1 else f"s[{a}:{a+n-1}]"

SX, SWS, SB, SD = 4, 8, 12, 16
sWAVE, sW, sG, sR, sRB, sCB, sBC, sBH, sWM, sWN = 20, 21, 22, 23, 24, 25, 26, 27, 28, 29
pX, pWQKV, pWO, pW1, pW2, pOUT, pDBG, pWS = 48, 50, 52, 56, 58, 60, 62, 64
sMODE = 54; sT0 = 55
sAR, sBR, sM0A, sM0B, sM0H, sKS, sCNT, sNEED, sC0 = 66, 67, 68, 69, 70, 71, 72, 73, 74
sST = 76
sOWN, sROT, sAK, sBK = 60 + 40, 60 + 41, 98, 99


A = Asm()
def e(t): A.e(t)
STAMP_NAMES = {}
class Stamper:
    def __init__(self, role): self.role = role; self.names = ["start"]
    def __call__(self, name):
        if not STAMPS: return
        if name in SKIP: return
        n = len(self.names)
        assert n < 19, self.names
        e(f"{STAMP_OP} {s(sST,2)}\ns_waitcnt lgkmcnt(0)\ns_mov_b32 s{78+n}, s{sST}")
        self.names.append(name)
    def fork(self, role):
        t = Stamper(role); t.names = list(self.names); return t
    def flush(self):
        if not STAMPS: return
        self("end")
        n = len(self.names); self.names.append("nslow")
        e(f"s_mul_i32 s0, s0, {1000 if STAMP_OP == 's_memtime' else 100}\ns_add_u32 s{78+n}, s78, s0")
        STAMP_NAMES[self.role] = self.names
        e("s_waitcnt vmcnt(0)")
        for i in range(24): e(f"v_mov_b32 v{8+i}, s{78+min(i,len(self.names)-1)}")
        e(f"s_lshl_b32 s30, s2, 10\ns_lshl_b32 s31, s{sWAVE}, 7\ns_add_u32 s30, s30, s31\ns_add_u32 s30, s30, {WS_DBG}")
        e("v_mov_b32 v2, 0\ns_mov_b64 exec, 1")
        for i in range(6): e(f"buffer_store_dwordx4 {v(8+4*i,4)}, v2, {s(SWS,4)}, s30 offen offset:{16*i}")
        e("s_mov_b64 exec, -1")
        if DBGOUT >= 0 and self.role == "C":
            L = A.newlabel("nodbg")
            e(f"s_cmp_lg_u32 s2, {DBGOUT}\ns_cbranch_scc1 {L}\ns_cmp_lg_u32 s{sWAVE}, 0\ns_cbranch_scc1 {L}")
            srd(SD, pDBG, 256)
            for i in range(16): e(f"v_sub_u32 v{40+i}, v{8+2+i}, v8")
            e("s_mov_b64 exec, 1")
            for i in range(4): e(f"buffer_store_dwordx4 {v(40+4*i,4)}, v2, {s(SD,4)}, 0 offen offset:{16*i} sc1")
            e("s_mov_b64 exec, -1")
            A.label(L)

class VmQ:
    def __init__(self): self.q = []
    def add(self, tag, n=1): self.q += [tag] * n
    def has(self, tag): return tag in self.q
    def after(self, tag):
        if tag not in self.q: return 99
        return len(self.q) - 1 - max(i for i, t in enumerate(self.q) if t == tag)
    def wait(self, tag):
        if tag not in self.q: return
        n = self.after(tag)
        assert n <= 63, n
        e(f"s_waitcnt vmcnt({n})")
        self.q = self.q[len(self.q) - n:]
    def wait_all(self):
        e("s_waitcnt vmcnt(0)"); self.q = []

def set_exec(mask):
    if mask == (1 << 64) - 1: e("s_mov_b64 exec, -1")
    elif mask <= 64: e(f"s_mov_b64 exec, {mask}")
    else: e(f"s_mov_b32 exec_lo, {hex(mask & 0xffffffff)}\ns_mov_b32 exec_hi, {hex(mask >> 32)}")
def srd(d, base, nbytes):
    e(f"s_mov_b32 s{d}, s{base}\ns_and_b32 s{d+1}, s{base+1}, 0xffff\ns_mov_b32 s{d+2}, {nbytes}\ns_mov_b32 s{d+3}, 0x20000")
def xg_multi(op, regs, tmps):
    for sw in ("v_permlane16_swap_b32", "v_permlane32_swap_b32"):
        for r, t in zip(regs, tmps): e(f"v_mov_b32 v{t}, v{r}")
        for r, t in zip(regs, tmps): e(f"{sw} v{r}, v{t}")
        for r, t in zip(regs, tmps): e(f"{op} v{r}, v{r}, v{t}")
def round_bf16(r): e(f"v_cvt_pk_bf16_f32 v{r}, v{r}, v{r}\nv_and_b32 v{r}, 0xffff0000, v{r}")
def ln_finish(vsum, vm2, n):
    e(f"v_mul_f32 v{vsum}, {f32(1.0/n)}, v{vsum}"); round_bf16(vsum)
    e(f"v_mul_f32 v{vm2}, {f32(1.0/n)}, v{vm2}"); round_bf16(vm2)
    e(f"v_add_f32 v{vm2}, {f32(1e-5)}, v{vm2}"); round_bf16(vm2)
    e(f"v_sqrt_f32 v{vm2}, v{vm2}"); round_bf16(vm2)
    e(f"v_rcp_f32 v{vm2}, v{vm2}")
def pack(dst, c0, c1):
    e(f"v_cvt_pk_bf16_f32 v{dst}, v{c0}, v{c0+1}\nv_cvt_pk_bf16_f32 v{dst+1}, v{c0+2}, v{c0+3}")
    e(f"v_cvt_pk_bf16_f32 v{dst+2}, v{c1}, v{c1+1}\nv_cvt_pk_bf16_f32 v{dst+3}, v{c1+2}, v{c1+3}")
def unpack(lo, src): e(f"v_lshlrev_b32 v{lo}, 16, v{src}\nv_and_b32 v{lo+1}, 0xffff0000, v{src}")

def set_flag(soff, st="sc1", val=1, t=5):
    e(f"v_mov_b32 v{t}, 0\nv_mov_b32 v{t+1}, {val}\ns_mov_b64 exec, 1\nbuffer_store_dword v{t+1}, v{t}, {s(SWS,4)}, s{soff} offen {st}\ns_mov_b64 exec, -1")

def poll(soff, nlanes, voff=None, x2=False, srd_=SWS, mask=1, t=8, sleep=None):
    L = A.newlabel("poll"); X = A.newlabel("pollx")
    if voff is None:
        e(f"v_lshlrev_b32 v{t+2}, {3 if x2 else 2}, v1"); voff = t + 2
    if nlanes < 64: set_exec((1 << nlanes) - 1)
    e(f"s_mov_b32 s{sCNT}, 0")
    A.label(L)
    if x2: e(f"buffer_load_dwordx2 {v(t,2)}, v{voff}, {s(srd_,4)}, {soff} offen sc1")
    else: e(f"buffer_load_dword v{t}, v{voff}, {s(srd_,4)}, {soff} offen sc1")
    e(f"s_add_u32 s{sCNT}, s{sCNT}, 1\ns_cmp_gt_u32 s{sCNT}, {SPIN_MAX}\ns_waitcnt vmcnt(0)\ns_cbranch_scc1 {X}")
    if x2: e(f"v_and_b32 v{t}, v{t}, v{t+1}")
    e(f"v_and_b32 v{t}, {mask}, v{t}\nv_cmp_ne_u32 vcc, {mask}, v{t}")
    e(f"s_cbranch_vccz {X}\ns_sleep {PSLEEP if sleep is None else sleep}\ns_branch {L}")
    A.label(X)
    e("s_mov_b64 exec, -1")

sRDY = 40
def flags_refresh(Q, soff, voff, x2, shift=None):
    if flags_refresh.pending and not Q.has("look"):
        if x2: e("v_and_b32 v14, v14, v15")
        if shift: e(f"v_lshrrev_b32 v14, v{shift}, v14")
        e(f"v_and_b32 v14, 1, v14\nv_cmp_ne_u32 vcc, 1, v14\ns_and_b64 {s(sRDY,2)}, {s(sRDY,2)}, vcc")
        flags_refresh.pending = False
    if not flags_refresh.pending:
        e(f"s_cmp_eq_u64 {s(sRDY,2)}, 0\ns_cselect_b32 s30, {WS_BYTES}, s{soff}")
        e(f"buffer_load_dwordx2 v[14:15], v{voff}, {s(SWS,4)}, s30 offen sc1" if x2 else f"buffer_load_dword v14, v{voff}, {s(SWS,4)}, s30 offen sc1")
        Q.add("look"); flags_refresh.pending = True
flags_refresh.pending = False
def need_flags(bits, soff, voff, x2, shift=None, pipe=False, look=None):
    L, X = A.newlabel("nf"), A.newlabel("nfx")
    lo, hi = bits & 0xffffffff, bits >> 32
    def test():
        if lo and hi: e(f"s_and_b32 s30, s{sRDY}, {hex(lo)}\ns_and_b32 s31, s{sRDY+1}, {hex(hi)}\ns_or_b32 s30, s30, s31")
        elif lo: e(f"s_and_b32 s30, s{sRDY}, {hex(lo)}")
        else: e(f"s_and_b32 s30, s{sRDY+1}, {hex(hi)}")
    if pipe:
        R = [16, 18, 20]
        ld = lambda r: e(f"buffer_load_dwordx2 {v(r,2)}, v{voff}, {s(SWS,4)}, s{soff} offen sc1" if x2 else f"buffer_load_dword v{r}, v{voff}, {s(SWS,4)}, s{soff} offen sc1")
        ld(R[0]); e(f"s_sleep {PGAP}"); ld(R[1]); e(f"s_sleep {PGAP}")
        A.label(L)
        for i in range(3):
            ld(R[(i + 2) % 3]); e("s_waitcnt vmcnt(2)")
            r = R[i]
            if x2: e(f"v_and_b32 v8, v{r}, v{r+1}\nv_and_b32 v8, 1, v8")
            else: e(f"v_and_b32 v8, 1, v{r}")
            e(f"v_cmp_ne_u32 {s(sRDY,2)}, 1, v8")
            test()
            e(f"s_cbranch_scc0 {X}")
        e(f"s_add_u32 s{sCNT}, s{sCNT}, 1\ns_cmp_lt_u32 s{sCNT}, {SPIN_MAX}\ns_cbranch_scc1 {L}")
        A.label(X)
        return
    test()
    e(f"s_cbranch_scc0 {X}")
    A.label(L)
    if look: set_exec(look)
    if x2: e(f"buffer_load_dwordx2 v[8:9], v{voff}, {s(SWS,4)}, s{soff} offen sc1\ns_waitcnt vmcnt(0)\nv_and_b32 v8, v8, v9")
    else: e(f"buffer_load_dword v8, v{voff}, {s(SWS,4)}, s{soff} offen sc1\ns_waitcnt vmcnt(0)")
    if shift: e(f"v_lshrrev_b32 v8, v{shift}, v8")
    e(f"v_and_b32 v8, 1, v8\nv_cmp_ne_u32 {s(sRDY,2)}, 1, v8")
    if look: e(f"s_orn2_b64 {s(sRDY,2)}, {s(sRDY,2)}, exec\ns_mov_b64 exec, -1")
    e(f"s_add_u32 s{sCNT}, s{sCNT}, 1\ns_cmp_gt_u32 s{sCNT}, {SPIN_MAX}\ns_cbranch_scc1 {X}")
    test()
    if PSI and not shift: e(f"s_cbranch_scc0 {X}\ns_sleep {PSI}\ns_branch {L}")
    else: e(f"s_cbranch_scc1 {L}")
    A.label(X)

def gate_k(G, k, x2):
    n0 = GATEN[G.name]
    if k == 0 and PS0: e(f"s_sleep {PS0}")
    if k == 0 and PW0: e("s_waitcnt vmcnt(0)")
    win = lambda k0, n: sum(0xf << (4 * G.korder[j]) for j in range(k0, min(16, k0 + n)))
    if k == 0: need_flags(win(0, n0), 32, 10, x2, look=win(0, LOOK0))
    elif k >= n0: need_flags(win(k, 1), 32, 10, x2, look=win(k, LOOKN))
def spoll(srd_, soff, n16, mask, base=32):
    X = A.newlabel("spx")
    e("s_mov_b32 s31, -1")
    for k in range(2 * n16):
        e(f"s_add_u32 s30, {soff}, {32*k}\ns_buffer_load_dwordx8 {s(base,8)}, {s(srd_,4)}, s30\ns_waitcnt lgkmcnt(0)")
        for i in range(1, 4): e(f"s_and_b64 {s(base,2)}, {s(base,2)}, {s(base+2*i,2)}")
        e(f"s_and_b32 s31, s31, s{base}\ns_and_b32 s31, s31, s{base+1}")
    e(f"s_and_b32 s31, s31, {mask}\ns_cmp_eq_u32 s31, {mask}\ns_cbranch_scc1 {X}")
    poll(soff, 16 * n16, srd_=srd_, mask=mask, t=8, sleep=16)
    A.label(X)

def lds_wait(vaddr, need, vt, sleep=1, off=0):
    L = A.newlabel("lw"); X = A.newlabel("lwx")
    A.label(L)
    e(f"ds_read_b32 v{vt}, v{vaddr} offset:{off}\ns_waitcnt lgkmcnt(0)\nv_cmp_gt_u32 vcc, {need}, v{vt}\ns_cbranch_vccz {X}")
    if sleep: e(f"s_sleep {sleep}")
    e(f"s_add_u32 s3, s3, 1\ns_cmp_lt_u32 s3, {LSPIN_MAX}\ns_cbranch_scc1 {L}")
    A.label(X)
OFF_DONE, OFF_FULL, OFF_HD, OFF_EP = 0, 1024, 2048, 3072
def sync_regs():
    e(f"s_lshl_b32 s30, s{sW}, 8\ns_add_u32 s30, s30, {L_DONE}\nv_lshl_add_u32 v{vDW}, v1, 2, s30")
    e(f"v_and_b32 v{vFR}, 3, v1\nv_mul_u32_u24 v{vFR}, 260, v{vFR}\nv_add_u32 v{vFR}, {L_DONE}, v{vFR}")
def post(off, val, t=vFV):
    e(f"v_mov_b32 v{t}, {val}\nds_write_b32 v{vDW}, v{t} offset:{off}")
def wait_rows(off, need, sleep=1): lds_wait(vFR, need, vFV, sleep=sleep, off=off)

class Gemm:
    PA, PB, PH = 232, 236, 240
    def __init__(self, name, base, TM, TN, NK, NS, KBsrc, ldb, kperm, araw=False, NSB=None, bslot=None, RP=0, alay="rt"):
        self.alay = "raw" if araw else alay
        self.name, self.base, self.TM, self.TN, self.NK, self.NS = name, base, TM, TN, NK, NS
        self.KB, self.ldb, self.kperm, self.araw, self.RP = KBsrc, ldb, kperm, araw, RP
        self.NSB = NSB or NS
        self.MT, self.NT = TM // 32, TN // 32
        self.nfull, self.half = TN // 64, (TN % 64) != 0
        self.a_stage = TM * 128
        b0 = NS * self.a_stage
        self.b0 = b0
        self.b_base = [b0 + j * self.NSB * 8192 for j in range(self.nfull)]
        self.h_base = b0 + self.nfull * self.NSB * 8192
        self.b_sp, self.h_sp, self.b_bs = 8192, 4096, self.NSB * 8192
        if name == "w1" and BTAIL:
            self.b_base = [64 * KB + j * 8192 for j in range(3)]; self.h_base = 64 * KB + 3 * 8192
            self.b_sp = self.h_sp = 28 * KB; self.b_bs = 8192
        self.bslot = bslot or (lambda step: step % self.NSB)
        assert self.h_base + (self.NSB * 4096 if self.half else 0) <= MISC
        MT, NT = self.MT, self.NT
        self.FA = [8, 8 + 4 * MT + 4 * NT]
        self.FB = [self.FA[0] + 4 * MT, self.FA[1] + 4 * MT]
        nxt = self.FA[1] + 4 * MT + 4 * NT
        self.chain = name in CHAIN
        if self.chain:
            self.RA = [8, 8 + 8 * MT]; self.WB = 8 + 16 * MT
            nxt = self.WB + 24
        self.VA = nxt; nxt += 8 if self.alay == "bm" else 2
        self.VB = nxt; nxt += NT
        self.bhi = self.NSB * 8192 > 65536
        self.VB2 = nxt
        if self.bhi: nxt += NT
        nxt = (nxt + 3) // 4 * 4
        self.ACC = nxt; nxt += MT * NT * 4
        self.VX = nxt
        assert nxt <= vDW
        self.RTW = TM // 32
    def acc(self, mt, nt): return self.ACC + (nt * self.MT + mt) * 4
    def swapped(self, nt): return True
    def blk_delta(self, j): return 128 * j

    def c_setup(self):
        MT = self.MT
        if self.araw:
            e(f"""
s_lshl_b32 s30, s{sWM}, 13
v_lshl_add_u32 v5, v4, 7, s30
v_lshrrev_b32 v6, 1, v4
v_xor_b32 v6, v6, v3
v_lshl_add_u32 v{self.VA}, v6, 4, v5
v_xor_b32 v6, 4, v6
v_lshl_add_u32 v{self.VA+1}, v6, 4, v5
""")
        elif self.alay == "bm":
            for p in range(4):
                e(f"s_add_u32 s30, s{sKS}, {p}\ns_and_b32 s30, s30, 3\ns_lshl_b32 s30, s30, 11\ns_lshl_b32 s31, s{sWM}, 14\ns_add_u32 s30, s30, s31")
                e(f"v_lshl_add_u32 v{self.VA+p}, v1, 4, s30\nv_add_u32 v{self.VA+4+p}, 0x10000, v{self.VA+p}")
        else:
            e(f"s_mul_i32 s30, s{sWM}, {MT*2048}\nv_lshl_add_u32 v{self.VA}, v1, 4, s30\nv_add_u32 v{self.VA+1}, 0x10000, v{self.VA}")
        e("v_bfe_u32 v5, v1, 2, 2\nv_and_b32 v6, 3, v1")
        if self.kperm: e("v_lshl_add_u32 v7, v3, 2, v5\nv_bfe_u32 v2, v7, 1, 2")
        else: e("v_lshl_add_u32 v7, v3, 3, v5\nv_lshrrev_b32 v2, 1, v5\nv_and_b32 v8, 1, v3\nv_lshl_or_b32 v2, v8, 1, v2")
        e("v_mov_b32 v9, v7\nv_lshlrev_b32 v7, 7, v7\nv_lshl_add_u32 v7, v6, 3, v7")
        for t, (kind, blk, seg) in enumerate(self.tiles()):
            vb = self.VB + t
            if kind == "F":
                e(f"s_mul_i32 s30, s{sWN}, {seg[1]}\ns_add_u32 s30, s30, {seg[0]}")
                e(f"v_xor_b32 v8, s30, v2\nv_lshl_add_u32 v{vb}, v8, 5, v7")
                e(f"s_mul_i32 s30, s{sWN}, {blk[1]*self.b_bs}\ns_add_u32 s30, s30, {self.b_base[0] + blk[0]*self.b_bs}")
                e(f"v_add_u32 v{vb}, s30, v{vb}")
            else:
                e(f"v_bfe_u32 v8, v9, 2, 1\nv_xor_b32 v8, s{sWN}, v8\nv_lshlrev_b32 v8, 5, v8")
                e(f"v_lshl_add_u32 v8, v9, 6, v8\nv_lshl_add_u32 v8, v6, 3, v8\nv_add_u32 v{vb}, {self.h_base}, v8")
            if self.bhi: e(f"v_add_u32 v{self.VB2+t}, 0x10000, v{vb}")
        if not self.czero():
            for r in range(self.ACC, self.ACC + self.MT * self.NT * 4, 2): e(f"v_mov_b64 {v(r,2)}, 0")
    def b_read(self, step, sub, t, dst):
        kind = self.tiles()[t][0]; sb = self.bslot(step); out = []
        for hi in range(2):
            rows = 32 * sub + (16 if self.kperm else 4) * hi
            off = sb * self.b_sp + rows * 128 if kind == "F" else sb * self.h_sp + rows * 64
            base = self.VB + t
            if off > 0xffff: base, off = self.VB2 + t, off - 0x10000
            out.append(f"ds_read_b64_tr_b16 {v(dst+2*hi,2)}, v{base} offset:{off}")
        return out
    def a_read(self, step, sub, mt, dst):
        sa = step % self.NS
        if self.araw: base, off = self.VA + sub, sa * self.a_stage + mt * 2048
        elif self.alay == "bm":
            off = sa * self.a_stage + sub * 8192 + (mt & 1) * 1024
            base = self.VA + (mt >> 1) + 4 * (off >> 16); off &= 0xffff
        else:
            off = sa * self.a_stage + mt * 2048 + sub * 1024
            base = self.VA + (off >> 16); off &= 0xffff
        return f"ds_read_b128 {v(dst,4)}, v{base} offset:{off}"
    def reads(self, step, sub, fs):
        out = []
        for t in range(self.NT):
            out += self.b_read(step, sub, t, self.FB[fs] + 4 * t)
            if t == 0: out += [self.a_read(step, sub, mt, self.FA[fs] + 4 * mt) for mt in range(self.MT)]
        return out
    def czero(self): return self.chain or self.NSB != self.NS or (self.NK - 1) % self.NS != 0
    def mfmas(self, fs, zero=False):
        out = []
        for t in range(self.NT):
            for mt in (range(self.MT) if t % 2 == 0 else reversed(range(self.MT))):
                a, w, c = v(self.FA[fs] + 4 * mt, 4), v(self.FB[fs] + 4 * t, 4), v(self.acc(mt, t), 4)
                ci = "0" if zero else c
                out.append(f"v_mfma_f32_16x16x32_bf16 {c}, {w}, {a}, {ci}" if self.swapped(t) else
                           f"v_mfma_f32_16x16x32_bf16 {c}, {a}, {w}, {ci}")
        if NOMFMA: out = ["s_nop 0"] * len(out)
        return out
    def c_loop(self, ST, pre_last=None, last_fill=(), nsteps=None, after_go=None):
        NS, NK, n = self.NS, nsteps or self.NK, self.name
        def inter(m, r, extra=()):
            extra = list(extra); per = -(-len(extra) // len(m)) if extra else 0
            span = max(int(len(m) * RSP), 1) if RSP else len(r)
            pos = [min(len(m) - 1, (i * span) // len(r)) for i in range(len(r))]
            for i in range(len(m)):
                e(m[i])
                for j, p in enumerate(pos):
                    if p == i: e(r[j])
                for x in extra[i * per:(i + 1) * per]: e(x)
        def captured(f):
            saved = A.lines; A.lines = []
            if f: f()
            out = [ln for ln in A.lines if ln.strip()]; A.lines = saved
            return out
        def step(k, last=False):
            e("s_waitcnt lgkmcnt(0)")
            inter(self.mfmas(0, k == 0 and self.czero()), self.reads(k, 1, 1), captured(pre_last) if last else ())
            e("s_waitcnt lgkmcnt(0)\ns_barrier")
            inter(self.mfmas(1), list(last_fill) if last else self.reads(k + 1, 0, 0))
        if self.chain:
            return self.c_chain(ST, captured(pre_last), list(last_fill), after_go)
        e("s_barrier")
        ST(n + "_go")
        for r in self.reads(0, 0, 0): e(r)
        if after_go: after_go()
        body = NK - 1
        if self.NSB != NS:
            for k in range(body): step(k)
        else:
            k = 0
            for i in range(body % NS):
                step(k); k += 1
            e(f"s_mov_b32 s{sCNT}, {body // NS}")
            A.label(f"{n}_cloop")
            for i in range(NS):
                step(k); k += 1
            e(f"s_sub_u32 s{sCNT}, s{sCNT}, 1\ns_cmp_lg_u32 s{sCNT}, 0\ns_cbranch_scc1 {n}_cloop")
        step(NK - 1, last=True)
        if not nsteps: ST(n + "_end")

    def free_set(self): return self.RA[self.NK & 1]
    def c_chain(self, ST, pre_last, last_fill, after_go):
        MT, NT, NK = self.MT, self.NT, self.NK
        q = []
        def rd(tag, ins):
            e(ins); q.append(tag)
        def wait(tag):
            if tag in q:
                k_ = min(len(q) - 1 - max(i for i, t in enumerate(q) if t == tag), 14)
                e(f"s_waitcnt lgkmcnt({k_})"); del q[:len(q) - k_]
        slot = lambda k, t: self.WB + 8 * ((k * NT + t) % 3)
        wr = lambda k, t: [(("W", k, t), x) for sub in range(2) for x in self.b_read(k, sub, t, slot(k, t) + 4 * sub)]
        rr = lambda k, m: [(("R", k, m), self.a_read(k, sub, m, self.RA[k & 1] + 8 * m + 4 * sub)) for sub in range(2)]
        e("s_barrier")
        ST(self.name + "_go")
        for x in wr(0, 0) + [y for m in range(MT) for y in rr(0, m)] + wr(0, 1): rd(*x)
        if after_go: after_go()
        for k in range(NK):
            last = k == NK - 1
            for t in range(NT):
                side = []
                if t + 2 < NT: side = wr(k, t + 2)
                if t == NT - 2:
                    e("s_waitcnt lgkmcnt(0)\ns_barrier"); q.clear()
                if t >= NT - 2:
                    h = t - (NT - 2)
                    if last:
                        n2 = (len(last_fill) + 1) // 2
                        side = [("F", x) for x in last_fill[h * n2:(h + 1) * n2]]
                    else:
                        mo = list(range(MT))
                        side = (wr(k + 1, 0) + rr(k + 1, 0) + rr(k + 1, 1)) if h == 0 else (rr(k + 1, 2) + rr(k + 1, 3) + wr(k + 1, 1))
                extra = []
                if last and t < NT - 2:
                    per = -(-len(pre_last) // (NT - 2)); extra = pre_last[t * per:(t + 1) * per]
                wait(("W", k, t))
                order = range(MT) if t % 2 == 0 else reversed(range(MT))
                i = 0; nm = 2 * MT
                for m in order:
                    wait(("R", k, m))
                    for sub in range(2):
                        a, w, c = v(self.RA[k & 1] + 8 * m + 4 * sub, 4), v(slot(k, t) + 4 * sub, 4), v(self.acc(m, t), 4)
                        ci = "0" if k == 0 and sub == 0 else c
                        e(f"v_mfma_f32_16x16x32_bf16 {c}, {w}, {a}, {ci}" if self.swapped(t) else f"v_mfma_f32_16x16x32_bf16 {c}, {a}, {w}, {ci}")
                        ps = -(-len(side) // nm)
                        for x in side[i * ps:(i + 1) * ps]: rd(*x)
                        pe = -(-len(extra) // nm)
                        for x in extra[i * pe:(i + 1) * pe]: e(x)
                        i += 1
        ST(self.name + "_end")

    def p_setup_b(self, w=sW):
        ldb, PB = self.ldb, self.PB
        e(f"""
s_lshl_b32 s{sM0B}, s{w}, 12
s_lshl_b32 s{sM0H}, s{w}, 11
v_lshrrev_b32 v246, 3, v1
s_lshl_b32 s30, s{w}, 5
v_add_u32 v246, s30, v246
v_mul_u32_u24 v246, {ldb}, v246
v_and_b32 v247, 1, v1
v_lshl_add_u32 v246, v247, 4, v246
v_add_u32 v246, s{sBC}, v246
v_bfe_u32 v247, v1, 1, 2
""")
        if self.kperm:
            e(f"v_xor_b32 v245, v247, v3\nv_lshl_add_u32 v{PB}, v245, 5, v246\nv_add_u32 v{PB+1}, {8*ldb-1024}, v{PB}")
        else:
            e(f"v_and_b32 v245, 1, v3\nv_xor_b32 v245, v247, v245\nv_lshl_add_u32 v{PB}, v245, 5, v246")
            e(f"v_xor_b32 v245, 2, v245\nv_lshl_add_u32 v{PB+1}, v245, 5, v246\nv_add_u32 v{PB+1}, {8*ldb-1024}, v{PB+1}")
        e(f"v_add_u32 v{PB+2}, {16*ldb-2048}, v{PB}\nv_add_u32 v{PB+3}, {16*ldb-2048}, v{PB+1}")
        if self.half:
            e(f"""
v_lshrrev_b32 v246, 2, v1
v_add_u32 v246, s30, v246
v_mul_u32_u24 v246, {ldb}, v246
v_and_b32 v247, 1, v1
v_lshl_add_u32 v246, v247, 4, v246
v_add_u32 v246, s{sBH}, v246
v_bfe_u32 v247, v1, 1, 1
v_and_b32 v245, 1, v3
v_xor_b32 v245, v247, v245
v_lshl_add_u32 v{self.PH}, v245, 5, v246
v_add_u32 v{self.PH+1}, {16*ldb-1024}, v{self.PH}
""")
    def p_setup_a(self):
        PA = self.PA
        if self.araw:
            e(f"""
s_lshl_b32 s{sM0A}, s{sW}, 13
v_lshrrev_b32 v246, 3, v1
s_lshl_b32 s30, s{sW}, 6
v_add_u32 v246, s30, v246
v_lshlrev_b32 v246, 11, v246
v_and_b32 v247, 7, v1
v_xor_b32 v247, v247, v3
v_lshl_add_u32 v{PA}, v247, 4, v246
v_xor_b32 v247, 4, v247
v_lshl_add_u32 v{PA+1}, v247, 4, v246
v_add_u32 v{PA+1}, {8*2048-1024}, v{PA+1}
v_add_u32 v{PA+2}, {16*2048-2048}, v{PA}
v_add_u32 v{PA+3}, {16*2048-2048}, v{PA+1}
""")
        else:
            e(f"s_mul_i32 s{sM0A}, s{sW}, {self.RTW*2048}\ns_mul_i32 s30, s{sW}, {self.RTW*self.KB*1024}\nv_lshl_add_u32 v{PA}, v1, 4, s30")
            e(f"v_add_u32 v{PA+1}, {self.KB*1024-2048}, v{PA}")
    astride = 2048
    rot = True
    arot = True
    korder = list(range(16))
    def kbase(self, dst, base, step, stride):
        e(f"s_add_u32 s{dst}, s{base}, {self.korder[step] * stride}")
    def a_src(self, i, step): e(f"s_add_u32 s31, s{sAK}, {2*i*self.KB*1024}")
    def groups_a(self, step):
        st = step % self.NS
        out = []
        for gi in range(self.RTW // 2):
            def fn(gi=gi):
                if gi == 0 and self.arot: self.kbase(sAK, sAR, step, 128 if self.araw else self.astride)
                e(f"s_add_u32 m0, s{sM0A}, {st*self.a_stage + gi*4096}")
                if self.araw:
                    e(f"s_add_u32 s31, s{sAK}, {gi*32*2048}")
                    for i in range(4): e(f"buffer_load_dwordx4 v{self.PA+i}, {s(SX,4)}, s31 offen offset:{i*1024} lds")
                else:
                    self.a_src(gi, step)
                    for i in range(4): e(f"buffer_load_dwordx4 v{self.PA+(i>>1)}, {s(SWS,4)}, s31 offen offset:{i*1024} sc1 lds")
            out.append((step, 4, fn))
        return out
    def b_parts(self, step):
        sb = self.bslot(step); ko = 0 if self.rot else step * 64 * self.ldb
        out = [(sM0B, self.b_base[j] + sb * self.b_sp, ko + self.blk_delta(j), self.PB, 4) for j in range(self.nfull)]
        if self.half: out.append((sM0H, self.h_base + sb * self.h_sp, ko, self.PH, 2))
        return out
    def groups_b(self, step):
        out = []
        for idx, (m0s, lc, sc, vb, n) in enumerate(self.b_parts(step)):
            def fn(m0s=m0s, lc=lc, sc=sc, vb=vb, n=n, idx=idx):
                if idx == 0 and self.rot: self.kbase(sBK, sBR, step, 64 * self.ldb)
                e(f"s_add_u32 m0, s{m0s}, {lc}\ns_add_u32 s31, s{sBK if self.rot else sBR}, {sc}")
                for i in range(n): e(f"buffer_load_dwordx4 v{vb+i}, {s(SB,4)}, s31 offen offset:{i*1024} {'nt' if self.name == 'qkv' and step < 2 * NTK else ''} lds")
            out.append((step, n, fn))
        return out
    def issue_b(self, Q, step):
        for tag, n, fn in self.groups_b(step):
            fn(); Q.add(tag, n)
    def p_loop(self, Q, ST, b_pre, npf=0, every=1, gate=None, tail=None, look=None, merge=False):
        NS, NK, NSB = self.NS, self.NK, self.NSB
        def iss(g):
            for tag, n, fn in g:
                fn(); Q.add(tag, n)
        ga = lambda k: ([(k, 0, lambda: gate(k))] if gate else []) + self.groups_a(k)
        def gr(k):
            kb = k - NS + NSB
            return (self.groups_b(kb) if b_pre <= kb < NK else []) + ga(k)
        first = lambda k: (self.groups_b(k) if k >= b_pre else []) + ga(k)
        if gate: e(f"s_mov_b64 {s(sRDY,2)}, -1\ns_mov_b32 s{sCNT}, 0")
        flags_refresh.pending = False
        iss(first(0))
        if gate: ST(self.name + "_seen")
        if BSEEN and self.name == "w1": post(OFF_FULL, 1)
        g1 = first(1)
        P1G_ = (99 if GATEN.get(self.name, 2) > 1 else 0) if gate else P1G
        iss(g1[:P1G_])
        for i in range(NK):
            if merge and i == NK - 2:
                Q.wait(NK - 1); e("s_barrier"); return
            Q.wait(i)
            if self.name == DST and i in DW: ST(f"w{i}")
            e("s_barrier")
            if self.name == DST and i in DB: ST(f"b{i}")
            if look and (ASYNC or self.name == 'w2') and i in look[0]: flags_refresh(Q, *look[1])
            if i == 0:
                iss(g1[P1G_:])
                for k in range(2, NS): iss(first(k))
            elif i - 1 + NS < NK: iss(gr(i - 1 + NS))
            if tail and i - 1 + NS == NK - 1 + TAILD: tail()
            if (self.name == "qkv" and i == 0) or (CWARM > 1 and i == NK - 2): code_warm()
            if self.name == "qkv" and i == 2: tlb_warm()
            if npf and (PFD0 if self.name == 'qkv' else 1) <= i < NK - 2 and i % every == 0: pf_step(npf + (1 if self.name == 'w1' and i % 3 != 0 else 0))
        e("s_barrier")
        ST(self.name + "_dend")

    def rp_regs(self, i, r0): return r0 + i * (16 * self.nfull + (8 if self.half else 0))
    def rp_load(self, Q, n, r0):
        for i in range(n):
            r = self.rp_regs(i, r0)
            for idx, (m0s, lc, sc, vb, k_) in enumerate(self.b_parts(self.NS + i)):
                if idx == 0: self.kbase(sBK, sBR, self.NS + i, 64 * self.ldb)
                e(f"s_add_u32 s31, s{sBK}, {sc}")
                for k in range(k_):
                    e(f"buffer_load_dwordx4 {v(r,4)}, v{vb+k}, {s(SB,4)}, s31 offen offset:{k*1024}"); r += 4
                Q.add(("rp", i), k_)
            assert r <= 232
    def rp_addr(self):
        b0 = self.b_base[0]
        e(f"v_lshlrev_b32 v245, 4, v1\nv_add_u32 v246, s{sM0H}, v245\nv_add_u32 v245, s{sM0B}, v245\nv_add_u32 v245, {b0}, v245\nv_add_u32 v247, 0x10000, v245\nv_add_u32 v246, {self.h_base}, v246")
    def rp_drain(self, Q, i, r0):
        Q.wait(("rp", i))
        r = self.rp_regs(i, r0)
        for m0s, lc, sc, vb, k_ in self.b_parts(self.NS + i):
            for k in range(k_):
                if m0s == sM0B:
                    off = lc - self.b_base[0] + k * 1024; a = 245
                    if off > 0xffff: off -= 0x10000; a = 247
                else: off = lc - self.h_base + k * 1024; a = 246
                e(f"ds_write_b128 v{a}, {v(r,4)} offset:{off}"); r += 4
        e("s_waitcnt lgkmcnt(0)")

class QKV(Gemm):
    def __init__(self): super().__init__("qkv", 0, 128, 192, 16, NS1, 32, 6144, False, araw=True)
    def tiles(self): return [("F", (t >> 1, 0), (t & 1, 2)) for t in range(6)]
    def swapped(self, nt): return nt < 4
    def blk_delta(self, j): return 2048 * j
class WO(Gemm):
    def __init__(self): super().__init__("wo", 16, 128, 64, 16, 4, 32, 2048, True, NSB=NSB3, bslot=lambda k: (k + 5) % NSB3)
    def tiles(self): return [("F", (0, 0), (t, 2)) for t in range(2)]
    def p_setup_a(self):
        e(f"s_lshl_b32 s{sM0A}, s{sW}, 13\nv_lshl_add_u32 v{self.PA}, v1, 4, s{sM0A}\nv_mov_b32 v{self.PA+1}, v{self.PA}")
        e(f"s_lshl_b32 s{sAR}, s{sRB}, 16\ns_add_u32 s{sAR}, s{sAR}, {WS_AR + AR_O}")
    astride = MB
    korder = [k for k in range(16) if k % 8 != 3] + [3, 11] if KORD else list(range(16))
    def a_src(self, i, step): e(f"s_add_u32 s31, s{sAK}, {i*4096}")
class W1(Gemm):
    def __init__(self): super().__init__("w1", 32, 128, 224, 16, 3, 32, 7168, True)
    korder = list(range(0, 16, 2)) + list(range(1, 16, 2)) if KORD and not LFIRST else list(range(16))
    def kbase(self, dst, base, step, stride):
        if not LFIRST: return super().kbase(dst, base, step, stride)
        if dst == sAK and step < 4: base = sKS
        e(f"s_add_u32 s{dst}, s{sROT}, {step}\ns_and_b32 s{dst}, s{dst}, 15\ns_mul_i32 s{dst}, s{dst}, {stride}\ns_add_u32 s{dst}, s{dst}, s{base}")
    def tiles(self): return [("F", (0, 2), (t, 0)) for t in range(4)] + [("F", (1, 0), (t, 2)) for t in range(2)] + [("H", None, None)]
class W2(Gemm):
    def __init__(self): super().__init__("w2", 48, 256, 128, 14, 3, 112, 2048, True, alay="bm")
    arot = False
    def tiles(self): return [("F", (0, 1), (t, 0)) for t in range(4)]
    def p_setup_a(self):
        e(f"s_lshl_b32 s{sM0A}, s{sW}, 14\nv_lshlrev_b32 v{self.PA}, 4, v1\nv_mov_b32 v{self.PA+1}, v{self.PA}")
        h1_base(sAR)
        e(f"s_lshl_b32 s30, s{sG}, 5\ns_bfe_u32 s31, s{sRB}, 0x20001\ns_add_u32 s30, s30, s31\ns_lshl_b32 s31, s{sW}, 4\ns_add_u32 s30, s30, s31\ns_lshl_b32 s30, s30, 16\ns_add_u32 s{sAR}, s{sAR}, s30")
    def blocks(self):
        if not EARLY5: return [(q // 7, q % 7, 1) for q in range(28)]
        early = [(c, (c & 1) + k, 1) for c in range(4) for k in (0, 4, 1, 5)]
        late = [(c, kb, 2) for c in range(4) for kb in range(7) if (c, kb, 1) not in early]
        return early + late
    def a_src(self, i, step):
        c, kb, _ = self.blocks()[2 * step + (i >> 1)]
        e(f"s_add_u32 s31, s{sAR}, {c*256*KB + kb*8192 + (i&1)*4096}")
    def kbase(self, dst, base, step, stride):
        o = [(c * 7 + kb) * 32 * self.ldb for c, kb, _ in self.blocks()[2 * step:2 * step + 2]]
        e(f"s_mul_i32 s{dst}, s{sWN}, {o[1] - o[0] - 32*self.ldb}\ns_add_u32 s{dst}, s{dst}, {o[0]}\ns_add_u32 s{dst}, s{dst}, s{base}")
G1, G3, G4, G5 = QKV(), WO(), W1(), W2()
_pf = opt("pfs", "X,Pk,X").split(",")
PFS = [(_pf[0][0], _pf[0][1:], pWO, 2 * MB, True, 249), (_pf[1][0], _pf[1][1:], pW1, 1024 * 7168, False, 248), (_pf[2][0], _pf[2][1:], pW2, 3584 * 2048, False, 250)]
L_K, L_V, L_Q = 0, 48 * KB, 96 * KB

def own_arena(dst, add=0):
    e(f"s_add_u32 s{dst}, s{sOWN}, {WS_AR + add}")
def h1_base(dst):
    e(f"s_cmp_lg_u32 s{sMODE}, 0\ns_cselect_b32 s{dst}, {WS_AR2}, {WS_AR if ALIAS else WS_AR2}")
def rowmajor_voff(dst, t):
    e(f"v_and_b32 v{t}, 1, v3\nv_lshlrev_b32 v{t}, 1, v{t}\nv_lshrrev_b32 v{dst}, 1, v3\nv_or_b32 v{t}, v{t}, v{dst}")
    e(f"v_lshlrev_b32 v{t}, 4, v{t}\nv_lshl_add_u32 v{dst}, v4, 11, v{t}")
def roles_84(rb=sRB, cb=sCB):
    e(f"s_and_b32 s{rb}, s{sG}, 1\ns_lshl_b32 s{rb}, s{rb}, 3\ns_and_b32 s30, s{sR}, 7\ns_add_u32 s{rb}, s{rb}, s30")
    e(f"s_lshr_b32 s{cb}, s{sG}, 1\ns_lshl_b32 s{cb}, s{cb}, 2\ns_lshr_b32 s30, s{sR}, 3\ns_add_u32 s{cb}, s{cb}, s30")
def roles_p1(rb=sRB, cb=sCB):
    if MAP1 == 84: return roles_84(rb, cb)
    e(f"s_lshr_b32 s{rb}, s{sR}, 1\ns_and_b32 s30, s{sR}, 1\ns_lshl_b32 s{cb}, s{sG}, 1\ns_add_u32 s{cb}, s{cb}, s30")
def roles_48(rb=sRB, cb=sCB):
    if LFIRST: return roles_84(rb, cb)
    if not KORD:
        e(f"s_and_b32 s{rb}, s{sG}, 3\ns_lshl_b32 s{rb}, s{rb}, 2\ns_and_b32 s30, s{sR}, 3\ns_add_u32 s{rb}, s{rb}, s30")
        e(f"s_lshr_b32 s{cb}, s{sG}, 2\ns_lshl_b32 s{cb}, s{cb}, 3\ns_lshr_b32 s30, s{sR}, 2\ns_add_u32 s{cb}, s{cb}, s30")
        return
    e(f"s_and_b32 s{rb}, s{sG}, 3\ns_lshl_b32 s{rb}, s{rb}, 2\ns_bfe_u32 s30, s{sR}, 0x20001\ns_add_u32 s{rb}, s{rb}, s30")
    e(f"s_lshr_b32 s{cb}, s{sG}, 2\ns_lshl_b32 s{cb}, s{cb}, 2\ns_lshr_b32 s30, s{sR}, 3\ns_add_u32 s{cb}, s{cb}, s30\ns_lshl_b32 s{cb}, s{cb}, 1\ns_and_b32 s30, s{sR}, 1\ns_add_u32 s{cb}, s{cb}, s30")
def roles_w2(rb=sRB, cb=sCB, ks=sKS):
    e(f"s_and_b32 s{rb}, s{sG}, 1\ns_lshl_b32 s{rb}, s{rb}, 2\ns_and_b32 s30, s{sR}, 3\ns_add_u32 s{rb}, s{rb}, s30\ns_lshl_b32 s{rb}, s{rb}, 1")
    e(f"s_lshr_b32 s{cb}, s{sR}, 2\ns_lshr_b32 s{ks}, s{sG}, 1")
def b_src_wo(cb=sCB):
    srd(SB, pWO, 2 * MB); e(f"s_lshl_b32 s{sBC}, s{cb}, 7\ns_mov_b32 s{sBR}, 0\ns_lshl_b32 s{sROT}, s{cb}, 1\ns_and_b32 s{sROT}, s{sROT}, {15 if ROT3 else 0}")
def b_src_w1():
    srd(SB, pW1, 1024 * 7168)
    e(f"""
s_mul_i32 s{sBH}, s{sCB}, 448
s_and_b32 s30, s{sCB}, 1
s_lshl_b32 s{sBC}, s30, 6
s_add_u32 s{sBC}, s{sBC}, s{sBH}
s_xor_b32 s30, s30, 1
s_mul_i32 s30, s30, 384
s_add_u32 s{sBH}, s{sBH}, s30
s_mov_b32 s{sBR}, 0
s_and_b32 s{sROT}, s{sCB}, 12
""")
def b_src_w2():
    srd(SB, pW2, 3584 * 2048); e(f"s_lshl_b32 s{sBC}, s{sCB}, 8\ns_mul_i32 s{sBR}, s{sKS}, {G5.NK*64*2048}")
def flag_addr(dst, base, hi, lo, nw, wave):
    e(f"s_lshl_b32 s{dst}, s{hi}, 4\ns_add_u32 s{dst}, s{dst}, s{lo}\ns_mul_i32 s{dst}, s{dst}, {nw}")
    if wave is not None: e(f"s_add_u32 s{dst}, s{dst}, s{wave}")
    e(f"s_lshl_b32 s{dst}, s{dst}, 2\ns_add_u32 s{dst}, s{dst}, {base}")
WS_F4P = 42 * MB + 128 * KB
def f4_addr(dst, rb, cb, wave):
    e(f"s_lshl_b32 s{dst}, s{rb}, 2\ns_lshr_b32 s30, s{cb}, 2\ns_add_u32 s{dst}, s{dst}, s30\ns_lshl_b32 s{dst}, s{dst}, 3\ns_and_b32 s30, s{cb}, 3\ns_add_u32 s{dst}, s{dst}, s30\ns_lshl_b32 s{dst}, s{dst}, 2")
    if wave is not None: e(f"s_add_u32 s{dst}, s{dst}, s{wave}")
    e(f"s_lshl_b32 s{dst}, s{dst}, 2\ns_add_u32 s{dst}, s{dst}, {WS_F4P}")
def dual(fn, sreg):
    S, X = A.newlabel("slowst"), A.newlabel("stx")
    e(f"s_cmp_lg_u32 s{sreg}, 0\ns_cbranch_scc1 {S}")
    fn(LFL)
    e(f"s_branch {X}")
    A.label(S)
    fn("sc1")
    A.label(X)

def attn_setup():
    e(f"v_lshlrev_b32 v5, 2, v3\nv_mov_b32 v6, {f32(-1e30)}")
    for k in range(4):
        e(f"v_add_u32 v7, {k}, v5\nv_cmp_gt_u32 vcc, v7, v4\nv_cndmask_b32 v{56+k}, v6, 0, vcc\nv_cndmask_b32 v{60+k}, 0, v6, vcc".replace("v_cndmask_b32 v%d, v6, 0, vcc" % (56 + k), "v_cndmask_b32_e64 v%d, v6, 0, vcc" % (56 + k)))
    e(f"""
s_lshl_b32 s36, s{sRB}, 2
s_add_u32 s36, s36, s38
s_sub_i32 s36, 8, s36
s_max_i32 s36, s36, 0
s_mul_i32 s37, s{sWN}, 24
s_lshl_b32 s39, s38, 1
s_add_u32 s37, s37, s39
s_lshl_b32 s37, s37, 10
v_lshl_add_u32 v5, v1, 4, s37
v_add_u32 v7, {L_V}, v5
""")
    own_arena(34, AR_O)
    e(f"s_lshl_b32 s35, s38, 12\ns_add_u32 s34, s34, s35\ns_lshl_b32 s35, s{sWN}, 10\ns_add_u32 s34, s34, s35\ns_add_u32 s35, s34, 2048")
    flag_addr(33, WS_F2, sRB, sCB, 32, sWAVE)

def attention(ST, is_p, Q=None):
    n = "attp" if is_p else "attc"
    S = 64; KF = 24; VF = 24; O = 208; MX = 232
    def sr(qt, u): return S + (qt * 18 + u) * 4
    dead = lambda qt, u: (qt == 0 and u == 17) or (qt == 1 and u == 0)
    def PF(pos):
        for role, at, ptr, nbytes, rev, dst in PFS:
            if role == ("P" if is_p else "C") and at == pos:
                srd(SB, ptr, nbytes)
                e(f"s_xor_b32 s30, s2, {255 if rev else 0}\ns_lshl_b32 s30, s30, 2\ns_add_u32 s30, s30, s{sW}\ns_lshl_b32 s30, s30, 13\nv_lshlrev_b32 v251, 7, v1")
                e(f"buffer_load_dword v{dst}, v251, {s(SB,4)}, s30 offen")
                if is_p: Q.add("pf")
    PF("nb")
    if is_p: Q.wait("nk")
    e("s_waitcnt lgkmcnt(0)\ns_barrier")
    if is_p:
        e(f"s_lshl_b32 s30, s{sW}, 11\ns_add_u32 s30, s30, {L_Q}\nv_lshl_add_u32 v2, v1, 4, s30\nds_read_b128 v[8:11], v2\nds_read_b128 v[12:15], v2 offset:1024")
    ST("att_k")
    if is_p and attention.vl: attention.vl()
    PF("k")
    for u in range(8): e(f"ds_read_b128 {v(KF+4*u,4)}, v5 offset:{L_K + u*1024}")
    for k in range(4): e(f"v_mov_b32 v{16+k}, 0x3f803f80")
    for k in range(4): e(f"v_mov_b32 v{MX+k}, v6")
    for r in range(O, O + 24, 2): e(f"v_mov_b64 {v(r,2)}, 0")
    def s_phase(generic):
        pend = []
        def maxes(k):
            for _ in range(k):
                if pend: e(pend.pop(0))
        for u in range(18):
            issued = min(18, u + 8)
            e(f"s_waitcnt lgkmcnt({issued - (u+1)})")
            if generic and u % 2 == 0 and u < 16:
                e(f"s_cmp_gt_u32 s36, {u//2}\ns_cselect_b32 s30, {f32(-1e30)}, 0")
                for k in range(4): e(f"v_mov_b32 v{20+k}, s30")
            for qt in range(2):
                if dead(qt, u): continue
                c = "v[56:59]" if u == qt else "v[60:63]" if u == 16 + qt else "0"
                if generic and u < 16: c = "v[20:23]"
                e(f"v_mfma_f32_16x16x32_bf16 {v(sr(qt,u),4)}, {v(KF+4*(u%8),4)}, {v(8+4*qt,4)}, {c}")
                if len(pend) >= 8: maxes(2)
                r = sr(qt, u)
                pend.append(f"v_max3_f32 v{MX+2*qt}, v{r}, v{r+1}, v{MX+2*qt}")
                pend.append(f"v_max3_f32 v{MX+2*qt+1}, v{r+2}, v{r+3}, v{MX+2*qt+1}")
            if u + 8 < 18: e(f"ds_read_b128 {v(KF+4*(u%8),4)}, v5 offset:{L_K + (u+8)*1024}")
        maxes(99)
    Lg, Lx = A.newlabel("sgen"), A.newlabel("sx")
    e(f"s_cmp_lg_u32 s36, 0\ns_cbranch_scc1 {Lg}")
    s_phase(False)
    e(f"s_branch {Lx}")
    A.label(Lg)
    s_phase(True)
    A.label(Lx)
    CB = VBARP if is_p else VBAR
    vs = {"iss": 0, "pv": 0}
    def v_issue(upto):
        while vs["iss"] < min(18, upto):
            b = vs["iss"]; e(f"ds_read_b128 {v(VF+4*(b%8),4)}, v7 offset:{b*1024}"); vs["iss"] += 1
    def v_bar():
        if is_p: Q.wait("nv")
        e("s_barrier")
        ST("att_v")
        PF("v")
        v_issue(8)
    CSC = (32 ** -0.5) * LOG2E
    e(f"s_mov_b32 s{sC0}, {f32(CSC)}\ns_mov_b32 s{sC0+1}, {f32(CSC)}")
    if CB == 0: v_bar()
    e(f"v_max_f32 v{MX}, v{MX}, v{MX+1}\nv_max_f32 v{MX+2}, v{MX+2}, v{MX+3}")
    xg_multi("v_max_f32", [MX, MX + 2], [MX + 1, MX + 3])
    e(f"v_mul_f32 v{MX}, {f32(-CSC)}, v{MX}\nv_mul_f32 v{MX+2}, {f32(-CSC)}, v{MX+2}")
    def pv(p):
        out = []
        for qt in range(2):
            P = v(sr(qt, 2 * p), 4)
            for dt in range(2):
                o = v(O + 12 * qt + 4 * dt, 4)
                out.append(f"v_mfma_f32_16x16x32_bf16 {o}, {v(VF+4*((2*p+dt)%8),4)}, {P}, {o}")
            o = v(O + 12 * qt + 8, 4)
            out.append(f"v_mfma_f32_16x16x32_bf16 {o}, v[16:19], {P}, {o}")
        return out
    for p in range(10):
        va = []
        if p < 9:
            live = [(qt, u) for qt in range(2) for u in (2 * p, 2 * p + 1) if not dead(qt, u)]
            for qt, u in live:
                r = sr(qt, u)
                if APK:
                    for h in range(2): va.append(f"v_pk_fma_f32 {v(r+2*h,2)}, {v(r+2*h,2)}, {s(sC0,2)}, {v(MX+2*qt,2)} op_sel_hi:[1,1,0]")
                else:
                    for k in range(4): va.append(f"v_fma_f32 v{r+k}, v{r+k}, s{sC0}, v{MX+2*qt}")
            for qt, u in live:
                for k in range(4): va.append(f"v_exp_f32 v{sr(qt,u)+k}, v{sr(qt,u)+k}")
            for qt, u in live:
                r = sr(qt, u); dst = sr(qt, 2 * p) + 2 * (u & 1)
                va.append(f"v_cvt_pk_bf16_f32 v{dst}, v{r}, v{r+1}"); va.append(f"v_cvt_pk_bf16_f32 v{dst+1}, v{r+2}, v{r+3}")
            if AMIX:
                nf = 2 if APK else 4; n_ = len(live)
                F = [va[i*nf:(i+1)*nf] for i in range(n_)]; E = [va[n_*nf+i*4:n_*nf+(i+1)*4] for i in range(n_)]; C_ = [va[n_*(nf+4)+i*2:n_*(nf+4)+(i+1)*2] for i in range(n_)]
                va = list(F[0])
                for i in range(n_):
                    other = (F[i+1] if i + 1 < n_ else []) + (C_[i-1] if i else [])
                    for k in range(4):
                        va.append(E[i][k]); va += other[k*len(other)//4:(k+1)*len(other)//4]
                va += C_[-1]
            if p == 8: va.append(f"v_mov_b64 {v(sr(0,16)+2,2)}, 0")
            if p == 0: va.append(f"v_mov_b64 {v(sr(1,0),2)}, 0")
        if CB and p == CB: v_bar()
        mm = []
        if p > CB:
            take = min(2, p - vs["pv"]) if p < 9 else 9 - vs["pv"]
            assert take <= 2
            for j in range(take): mm += pv(vs["pv"] + j)
            vs["pv"] += take
            e(f"s_waitcnt lgkmcnt({vs['iss'] - 2*vs['pv']})")
        PF(f'pv{p}')
        gap = max(1, len(va) // (len(mm) + 1))
        for i, x in enumerate(va):
            e(x)
            if i >= 1 and (i - 1) % gap == 0 and mm: e(mm.pop(0))
        for x in mm: e(x)
        if p > CB: v_issue(2 * vs["pv"] + 8)
    ST("att_pv")
    e("v_lshlrev_b32 v2, 4, v1")
    for qt in range(2):
        o = O + 12 * qt
        e(f"v_rcp_f32 v{o+8}, v{o+8}")
        for h in range(4): e(f"v_pk_mul_f32 {v(o+2*h,2)}, {v(o+2*h,2)}, {v(o+8,2)} op_sel_hi:[1,0]")
        for h in range(4): e(f"v_cvt_pk_bf16_f32 v{24+4*qt+h}, v{o+2*h}, v{o+2*h+1}")
        e(f"buffer_store_dwordx4 {v(24+4*qt,4)}, v2, {s(SWS,4)}, s{34+qt} offen sc1")

def consumer(ST):
    G = G1
    if SLOWPF:
        e(f"s_lshl_b32 s30, s2, 2\ns_add_u32 s30, s30, s{sW}\ns_mul_i32 s31, s30, 6144\ns_lshl_b32 s30, s30, 12\nv_lshlrev_b32 v5, 10, v1")
        e(f"s_mov_b64 exec, 0x3f\nbuffer_load_dword v250, v5, {s(SB,4)}, s31 offen offset:384")
        if SLOWPF > 1: e(f"s_mov_b64 exec, 0xf\nbuffer_load_dword v251, v5, {s(SX,4)}, s30 offen offset:384")
        e("s_mov_b64 exec, -1")
    e(f"v_mov_b32 v{vCNT}, 0")
    e(f"ds_write_b32 v{vDW}, v{vCNT} offset:{OFF_EP}\nds_write_b32 v{vDW}, v{vCNT} offset:{OFF_FULL}")
    G.c_setup()
    X = G.VX
    RA_, CSQ, VA_, VB_, CSV = X, X + 8, X + 24, X + 40, X + 56
    if G.chain: VB_, CSV = G.free_set(), X + 40
    assert CSV + 4 <= vDW
    def pre_last1():
        if SLOWPF: e("s_waitcnt vmcnt(0)")
        e(f"s_lshl_b32 s30, s{sWM}, 8\ns_add_u32 s30, s30, {MISC}\nv_lshl_add_u32 v2, v4, 2, s30\nv_lshl_add_u32 v5, v3, 4, s30")
        e(f"s_lshl_b32 s30, s{sWN}, 7\ns_add_u32 s30, s30, {MISC}\nv_lshl_add_u32 v6, v3, 4, s30\nv_lshl_add_u32 v7, v4, 2, s30")
    fill = []
    for mt in range(4): fill += [f"ds_read_b32 v{RA_+2*mt}, v2 offset:{mt*64}", f"ds_read_b32 v{RA_+2*mt+1}, v2 offset:{512+mt*64}"]
    for t in (2, 3, 0, 1): fill.append(f"ds_read_b128 {v(CSQ+4*t,4)}, v6 offset:{1024 + (t>>1)*256 + (t&1)*64}")
    for mt in range(4): fill += [f"ds_read_b128 {v(VA_+4*mt,4)}, v5 offset:{mt*64}", f"ds_read_b128 {v(VB_+4*mt,4)}, v5 offset:{512+mt*64}"]
    for dt in range(2): fill.append(f"ds_read_b32 v{CSV+2*dt}, v7 offset:{1024 + 512 + dt*64}")
    fill.append(f"ds_read_b32 v{CSV+1}, v{vFR} offset:{OFF_HD}")
    own_arena(33, AR_K)
    e(f"""
s_lshl_b32 s30, s{sWN}, 13
s_add_u32 s33, s33, s30
s_lshl_b32 s30, s{sWM}, 12
s_add_u32 s33, s33, s30
s_add_u32 s34, s33, {AR_V - AR_K}
s_lshl_b32 s31, s{sWM}, 2
s_mul_i32 s35, s{sWN}, 24
s_add_u32 s35, s35, s31
s_add_u32 s35, s35, 16
s_lshl_b32 s35, s35, 10
s_lshl_b32 s36, s{sW}, 11
s_add_u32 s36, s36, {L_Q}
""")
    flag_addr(32, WS_F1, sCB, sRB, 4, sW)
    G.c_loop(ST, pre_last1, fill)
    e(f"s_waitcnt lgkmcnt(0)\nv_readfirstlane_b32 s{sMODE}, v{CSV+1}\nv_lshlrev_b32 v2, 4, v1\nv_add_u32 v5, s35, v2\nv_add_u32 v6, s36, v2")
    e(f"s_lshr_b32 s30, s{sRB}, 1\ns_cmp_eq_u32 s30, {3 if MAP1 == 84 else 99}\ns_cselect_b32 s{sT0}, 1, s{sMODE}")
    def fold_rows(mt, t):
        c = G.acc(mt, t); k = RA_ + 2 * mt
        for h in range(2): e(f"v_pk_mul_f32 {v(c+2*h,2)}, {v(c+2*h,2)}, {v(k,2)} op_sel_hi:[1,0]")
        for h in range(2): e(f"v_pk_fma_f32 {v(c+2*h,2)}, {v(CSQ+4*t+2*h,2)}, {v(k,2)}, {v(c+2*h,2)} op_sel:[0,1,0] op_sel_hi:[1,1,1]")
    def fold_v(mt, dt):
        c = G.acc(mt, 4 + dt)
        for h in range(2): e(f"v_pk_mul_f32 {v(c+2*h,2)}, {v(c+2*h,2)}, {v(VA_+4*mt+2*h,2)}")
        for h in range(2): e(f"v_pk_fma_f32 {v(c+2*h,2)}, {v(VB_+4*mt+2*h,2)}, {v(CSV+2*dt,2)}, {v(c+2*h,2)} op_sel_hi:[1,0,1]")
    def epi1(fl):
        t = 24
        for mt in range(4):
            fold_rows(mt, 2); fold_rows(mt, 3)
            pack(t, G.acc(mt, 2), G.acc(mt, 3))
            e(f"buffer_store_dwordx4 {v(t,4)}, v2, {s(SWS,4)}, s33 offen offset:{mt*1024} {fl or KVFL}"); t += 4
        for p in range(2):
            for dt in range(2):
                fold_v(2 * p, dt); fold_v(2 * p + 1, dt)
                pack(t, G.acc(2 * p, 4 + dt), G.acc(2 * p + 1, 4 + dt))
                e(f"buffer_store_dwordx4 {v(t,4)}, v2, {s(SWS,4)}, s34 offen offset:{(2*p+dt)*1024} {fl or KVFL}"); t += 4
        if KFLAG:
            e("s_waitcnt vmcnt(4)"); set_flag(32, fl.replace("nt", ""), t=64)
        for i in range(4): e(f"ds_write_b128 v5, {v(24+4*i,4)} offset:{L_K + i*1024}")
        for i in range(4): e(f"ds_write_b128 v5, {v(40+4*i,4)} offset:{L_V + i*1024}")
        for mt in (2, 3, 0, 1):
            fold_rows(mt, 0); fold_rows(mt, 1)
            d = 8 + 4 * mt
            pack(d, G.acc(mt, 0), G.acc(mt, 1))
            if mt >= 2: e(f"ds_write_b128 v6, {v(d,4)} offset:{(mt-2)*1024}")
        e("s_waitcnt vmcnt(0)")
        set_flag(32, fl.replace("nt", ""), val=3, t=64)
    dual(epi1, sT0)
    ST("kv_flag")
    e(f"s_lshl_b32 s38, s{sWM}, 1")
    attn_setup()
    attention(ST, False)
    G = G3
    roles_48()
    b_src_wo()
    G.p_setup_b(sWN)
    X = G.VX
    rowmajor_voff(X + 16, X + 17)
    e(f"""
s_lshl_b32 s35, s{sRB}, 1
s_add_u32 s35, s35, s{sWM}
s_lshl_b32 s36, s{sCB}, 1
s_add_u32 s36, s36, s{sWN}
s_lshl_b32 s32, s35, 17
s_lshl_b32 s31, s36, 6
s_add_u32 s32, s32, s31
""")
    def hl_touch():
        e(f"s_lshl_b32 s37, s35, 17\ns_lshl_b32 s31, s36, 10\ns_add_u32 s37, s37, s31\ns_add_u32 s37, s37, {WS_HL}\nv_and_b32 v248, 7, v1\nv_lshlrev_b32 v248, 7, v248\nv_lshrrev_b32 v249, 3, v1\nv_lshl_add_u32 v248, v249, 15, v248")
        set_exec(0xffffffff); e(f"buffer_load_dword v249, v248, {s(SWS,4)}, s37 offen\ns_mov_b64 exec, -1")
    G.c_setup()
    e("s_waitcnt vmcnt(0)")
    set_flag(33)
    ST("o_flag")
    if LFIRST and HLT == 1: hl_touch()
    Qc = VmQ()
    L1, L2 = A.newlabel("b3a"), A.newlabel("b3b")
    e(f"s_cmp_lg_u32 s{sWM}, 0\ns_cbranch_scc1 {L1}")
    for st in range(3): G.issue_b(Qc, st)
    e(f"s_branch {L2}")
    A.label(L1)
    for st in range(3, 6): G.issue_b(Qc, st)
    A.label(L2)
    e("s_barrier")
    for mt in range(4): e(f"s_add_u32 s31, s32, {mt*16*2048}\nbuffer_load_dwordx4 {v(X+4*mt,4)}, v{X+16}, {s(SX,4)}, s31 offen")
    e("s_waitcnt vmcnt(4)")
    if LFIRST and HLT == 2: hl_touch()
    e(f"""
s_lshl_b32 s37, s35, 17
s_lshl_b32 s31, s36, 10
s_add_u32 s37, s37, s31
s_add_u32 s37, s37, {WS_H}
s_lshl_b32 s38, s35, 14
s_lshl_b32 s31, s36, 9
s_add_u32 s38, s38, s31
s_add_u32 s38, s38, {WS_STAT}
""")
    flag_addr(32, WS_F3, sRB, sCB, 32, sW)
    HX = X + 24
    def pre_last3():
        e("s_waitcnt vmcnt(0)\nv_lshlrev_b32 v2, 4, v1")
        for mt in range(4):
            x = X + 4 * mt
            e(f"v_permlane16_swap_b32 v{x}, v{x+2}\nv_permlane16_swap_b32 v{x+1}, v{x+3}")
        for mt in range(4):
            for d in range(4): unpack(HX + 8 * mt + 2 * d, X + 4 * mt + d)
    G.c_loop(ST, pre_last3)
    for mt in range(4):
        x = X + 4 * mt; u = HX + 8 * mt
        for d in range(4): e(f"v_pk_add_f32 {v(12+2*d,2)}, {v(G.acc(mt,d>>1)+2*(d&1),2)}, {v(u+2*d,2)}")
        for d in range(4): e(f"v_cvt_pk_bf16_f32 v{x+d}, v{12+2*d}, v{13+2*d}")
        if LFIRST: e(f"s_add_u32 s31, s37, {WS_HL - WS_H + mt*32*1024}\nbuffer_store_dwordx4 {v(x,4)}, v2, {s(SWS,4)}, s31 offen")
        else: e(f"s_add_u32 s31, s37, {mt*32*1024}\nbuffer_store_dwordx4 {v(x,4)}, v2, {s(SWS,4)}, s31 offen sc1")
    if LFIRST:
        for mt in range(4): e(f"s_add_u32 s31, s37, {mt*32*1024}\nbuffer_store_dwordx4 {v(X+4*mt,4)}, v2, {s(SWS,4)}, s31 offen sc1")
    for mt in range(4):
        x = X + 4 * mt; u = HX + 8 * mt
        for d in range(4): unpack(u + 2 * d, x + d)
        e(f"v_pk_add_f32 v[12:13], {v(u,2)}, {v(u+2,2)}\nv_pk_add_f32 v[14:15], {v(u+4,2)}, {v(u+6,2)}")
        e(f"v_pk_add_f32 v[12:13], v[12:13], v[14:15]\nv_add_f32 v{32+2*mt}, v12, v13")
    if LFIRST:
        e(f"s_add_u32 s31, s32, {WS_F3L - WS_F3}\ns_waitcnt vmcnt(4)"); set_flag(31, "")
    xg_multi("v_add_f32", [32, 34, 36, 38], [16, 17, 18, 19])
    for mt in range(4):
        u = HX + 8 * mt; sm = 32 + 2 * mt
        e(f"v_mul_f32 v12, {f32(1/32)}, v{sm}")
        for d in range(4): e(f"v_pk_add_f32 {v(u+2*d,2)}, {v(u+2*d,2)}, v[12:13] op_sel_hi:[1,0] neg_lo:[0,1] neg_hi:[0,1]")
        e(f"v_pk_mul_f32 v[14:15], {v(u,2)}, {v(u,2)}")
        for d in range(1, 4): e(f"v_pk_fma_f32 v[14:15], {v(u+2*d,2)}, {v(u+2*d,2)}, v[14:15]")
        e(f"v_add_f32 v{sm+1}, v14, v15")
    xg_multi("v_add_f32", [33, 35, 37, 39], [16, 17, 18, 19])
    for k in range(1, 4):
        e(f"v_cmp_eq_u32 vcc, {k}, v3\nv_cndmask_b32 v32, v32, v{32+2*k}, vcc\nv_cndmask_b32 v33, v33, v{33+2*k}, vcc")
    e(f"v_lshlrev_b32 v2, 3, v1\nbuffer_store_dwordx2 v[32:33], v2, {s(SWS,4)}, s38 offen sc1\ns_waitcnt vmcnt({2 if LFIRST else 1})")
    set_flag(32)
    post(OFF_EP, 2)
    ST("h_flag")
    G = G4
    roles_84()
    G.c_setup()
    e("s_mov_b32 s40, s32")
    def stats_out():
        e("s_waitcnt vmcnt(0)"); set_flag(40, val=3)
    h1_base(37)
    e(f"""
s_and_b32 s39, s{sCB}, 1
s_add_u32 s32, s{sOWN}, s37
s_lshl_b32 s33, s{sWM}, 12
s_add_u32 s32, s32, s33
s_lshl_b32 s34, s{sWN}, 2
s_add_u32 s34, s34, s39
s_add_u32 s35, s39, s{sWN}
s_add_u32 s35, s35, 2
s_xor_b32 s36, s39, 1
s_mul_i32 s36, s36, 6
s_lshl_b32 s34, s34, 13
s_lshl_b32 s35, s35, 13
s_lshl_b32 s36, s36, 13
s_add_u32 s34, s34, s32
s_add_u32 s35, s35, s32
s_add_u32 s36, s36, s32
s_lshl_b32 s37, s{sWN}, 3
s_add_u32 s36, s36, s37
s_add_u32 s37, s34, 8192
s_mov_b32 s{sC0}, {f32(-LOG2E)}
s_mov_b32 s{sC0+1}, {f32(-LOG2E)}
""")
    f4_addr(38, sRB, sCB, sW)
    def pre_last4():
        e(f"""
s_lshl_b32 s30, s{sWM}, 9
s_add_u32 s30, s30, {L_RA}
v_lshl_add_u32 v2, v4, 3, s30
s_lshl_b32 s31, s39, 7
s_lshl_b32 s32, s{sWN}, 9
s_add_u32 s32, s32, s31
s_add_u32 s32, s32, {L_CS}
v_lshl_add_u32 v5, v3, 4, s32
s_lshl_b32 s32, s{sWN}, 7
s_add_u32 s32, s32, s31
s_add_u32 s32, s32, {L_CS + 256}
v_lshl_add_u32 v6, v3, 4, s32
s_xor_b32 s33, s39, 1
s_mul_i32 s33, s33, 768
s_lshl_b32 s32, s{sWN}, 6
s_add_u32 s32, s32, s33
s_add_u32 s32, s32, {L_CS}
v_lshl_add_u32 v7, v3, 4, s32
""")
    CS, KR = (G.free_set(), G.VX) if G.chain else (16, 8)
    assert CS + 28 <= 56 and KR + 8 <= vDW
    fill = [f"ds_read_b64 {v(KR+2*mt,2)}, v2 offset:{mt*128}" for mt in range(4)]
    fill += [f"ds_read_b128 {v(CS+4*t,4)}, v5 offset:{64*t}" for t in range(4)]
    fill += [f"ds_read_b128 {v(CS+16+4*t,4)}, v6 offset:{64*t}" for t in range(2)] + [f"ds_read_b128 {v(CS+24,4)}, v7"]
    G.c_loop(ST, pre_last4, fill, after_go=stats_out)
    e("s_waitcnt lgkmcnt(0)\nv_lshlrev_b32 v2, 4, v1")
    def epi4(fl):
        units = []
        for pr in range(4):
            for mt in range(4): units.append((mt, (2 * pr, 2 * pr + 1) if pr < 3 else (6,), pr))
        T0, O0 = 56, 80
        def sA(i):
            mt, ts, pr = units[i]; k = KR + 2 * mt; o = []
            for t in ts:
                c = G.acc(mt, t)
                for h in range(2): o.append(f"v_pk_mul_f32 {v(c+2*h,2)}, {v(c+2*h,2)}, {v(k,2)} op_sel:[0,1] op_sel_hi:[1,1]")
            for t in ts:
                c = G.acc(mt, t)
                for h in range(2): o.append(f"v_pk_fma_f32 {v(c+2*h,2)}, {v(CS+4*t+2*h,2)}, {v(k,2)}, {v(c+2*h,2)} op_sel_hi:[1,0,1]")
            return o
        def sB(i):
            mt, ts, pr = units[i]; T = T0 + 8 * (i % 3)
            return [f"v_exp_f32 v{T+4*j+k}, v{G.acc(mt,t)+k}" for j, t in enumerate(ts) for k in range(4)]
        def sC(i):
            mt, ts, pr = units[i]; T = T0 + 8 * (i % 3)
            return [f"v_pk_fma_f32 {v(T+2*h,2)}, {v(T+2*h,2)}, {s(sC0,2)}, {s(sC0,2)}" for h in range(2 * len(ts))]
        def sD(i):
            mt, ts, pr = units[i]; T = T0 + 8 * (i % 3)
            return [f"v_rcp_f32 v{T+k}, v{T+k}" for k in range(4 * len(ts))]
        def sE(i):
            mt, ts, pr = units[i]; T = T0 + 8 * (i % 3); o = []; d = O0 + 4 * (i % 4)
            for j, t in enumerate(ts):
                c = G.acc(mt, t)
                for h in range(2): o.append(f"v_pk_mul_f32 {v(c+2*h,2)}, {v(c+2*h,2)}, {v(T+4*j+2*h,2)}")
            for j, t in enumerate(ts):
                c = G.acc(mt, t)
                for h in range(2): o.append(f"v_cvt_pk_bf16_f32 v{d+2*j+h}, v{c+2*h}, v{c+2*h+1}")
            base = (34, 37, 35, 36)[pr]
            if NOST4: return o
            o.append(f"buffer_store_dwordx4 {v(d,4)}, v2, {s(SWS,4)}, s{base} offen offset:{mt*1024} {fl}" if pr < 3 else f"buffer_store_dwordx2 {v(d,2)}, v2, {s(SWS,4)}, s{base} offen offset:{mt*1024} {fl}")
            return o
        N = len(units)
        for x in sA(0): e(x)
        for i in range(N + 1):
            seq = []
            if i < N: seq += sB(i)
            if i + 1 < N: seq += sA(i + 1)
            if i < N: seq += sC(i)
            if i >= 1: seq += sE(i - 1)
            if i < N: seq += sD(i)
            for x in seq: e(x)
            if EARLY5 and i == 8 + E5LAG:
                e(f"s_waitcnt vmcnt({E5LAG})"); set_flag(38, fl.replace("nt", ""))
        ST("silu")
        roles_w2()
        G5.c_setup()
        e("s_waitcnt vmcnt(0)")
        set_flag(38, fl.replace("nt", ""), val=3)
    n0 = list(ST.names)
    def epi4w(fl):
        ST.names = list(n0); epi4(fl)
    dual(epi4w, sMODE)
    ST("h1_flag")
    G = G5
    MT = G.MT; keep = 2; nb = 4
    def pre_last5():
        srd(SD, pOUT, 4 * MB)
        e(f"""
s_lshl_b32 s33, s{sRB}, 3
s_add_u32 s33, s33, s{sCB}
s_mul_i32 s34, s33, {16*4*nb*1024}
s_add_u32 s34, s34, {WS_PART}
s_mul_i32 s30, s{sW}, {nb*1024}
s_add_u32 s34, s34, s30
s_lshl_b32 s35, s{sRB}, 3
s_lshl_b32 s30, s{sWM}, 3
s_add_u32 s35, s35, s30
s_lshl_b32 s30, s{sKS}, 1
s_add_u32 s35, s35, s30
s_lshl_b32 s36, s{sCB}, 2
s_lshl_b32 s30, s{sWN}, 1
s_add_u32 s36, s36, s30
s_lshl_b32 s38, s35, 15
s_lshl_b32 s31, s36, 10
s_add_u32 s38, s38, s31
s_add_u32 s38, s38, {WS_H}
s_lshl_b32 s37, s33, {9 if F5W else 6}
s_lshl_b32 s31, s{sW}, {7 if F5W else 2}
s_add_u32 s37, s37, s31
s_add_u32 s37, s37, {WS_F5W if F5W else WS_F5}
s_lshl_b32 s31, s{sKS}, 4
s_add_u32 s32, s37, s31
s_lshl_b32 s39, s{sKS}, 2
""")
        for d in range(1, 4):
            e(f"s_add_u32 s31, s{sKS}, {d}\ns_and_b32 s31, s31, 3\ns_lshl_b32 s30, s31, 2\ns_add_u32 s30, s30, s{sKS}\ns_mul_i32 s30, s30, {4*nb*1024}\ns_add_u32 s{39+d}, s30, s34")
            e(f"s_add_u32 s31, s31, s39\ns_mul_i32 s31, s31, {4*nb*1024}\ns_add_u32 s{42+d}, s31, s34")
        e(f"s_lshl_b32 s46, s35, 15\ns_lshl_b32 s31, s36, 6\ns_add_u32 s46, s46, s31\ns_add_u32 s47, s38, {32*1024}")
    if TAILPM:
        assert not CANARY
        BQ, AB = [8, 24, 56, 72], [40, 88]
        sub4 = [(12, 0), (12, 1), (13, 0), (13, 1)]
        order = [2, 3, 4, 5, 6, 7, 0, 1]
        HRS = [G.acc(2, 1), G.acc(2, 3), G.acc(3, 1), G.acc(3, 3)]
        brd = lambda j: [x for t in range(4) for x in G.b_read(*sub4[j], t, BQ[j] + 4 * t)]
        ard = lambda n_: [G.a_read(*sub4[j], order[n_], AB[n_ & 1] + 4 * j) for j in range(4)]
        G.c_loop(ST, pre_last5, ["v_lshlrev_b32 v2, 4, v1"] + ard(0) + brd(0) + brd(1), nsteps=12)
        def send(mt):
            out = []
            for pr in range(2):
                c0, c1 = G.acc(mt, 2 * pr), G.acc(mt, 2 * pr + 1)
                out += [f"v_cvt_pk_bf16_f32 v{c0}, v{c0}, v{c0+1}", f"v_cvt_pk_bf16_f32 v{c0+1}, v{c0+2}, v{c0+3}",
                        f"v_cvt_pk_bf16_f32 v{c0+2}, v{c1}, v{c1+1}", f"v_cvt_pk_bf16_f32 v{c0+3}, v{c1+2}, v{c1+3}",
                        f"buffer_store_dwordx4 {v(c0,4)}, v2, {s(SWS,4)}, s{39+mt//2} offen offset:{(2*(mt&1)+pr)*1024} {PFL}"]
            return out
        for n_, mt in enumerate(order):
            mm = lambda t, j: f"v_mfma_f32_16x16x32_bf16 {v(G.acc(mt,t),4)}, {v(BQ[j]+4*t,4)}, {v(AB[n_&1]+4*j,4)}, {v(G.acc(mt,t),4)}"
            e("s_waitcnt lgkmcnt(0)")
            if n_ == 0:
                side = brd(2) + brd(3)
                for i, (t, j) in enumerate([(t, j) for t in range(4) for j in range(2)]):
                    e(mm(t, j)); e(side[2 * i]); e(side[2 * i + 1])
                side = ard(1)
                for i, (t, j) in enumerate([(t, j) for j in (2, 3) for t in range(4)]):
                    if i == 0: e("s_waitcnt lgkmcnt(8)")
                    if i == 4: e("s_waitcnt lgkmcnt(4)")
                    e(mm(t, j))
                    if i < 4: e(side[i])
                continue
            side = (ard(n_ + 1) if n_ + 1 < 8 else []) + (send(order[n_ - 1]) if order[n_ - 1] >= 2 else [])
            if n_ == 3: side += [f"buffer_load_dwordx4 {v(HRS[2*i+pr],4)}, v2, {s(SWS,4)}, s{38 if i == 0 else 47} offen offset:{pr*1024} sc1" for i in range(2) for pr in range(2)]
            if LEVELS and n_ == 7:
                side = ["v_mov_b32 v5, 0", "v_mov_b32 v6, 1", "s_waitcnt vmcnt(12)", "s_mov_b64 exec, 1\n" + f"buffer_store_byte v6, v5, {s(SWS,4)}, s32 offen offset:1 sc1" + "\ns_mov_b64 exec, -1"]
            for i, (t, j) in enumerate([(t, j) for t in range(4) for j in range(4)]):
                e(mm(t, j))
                for x in side[i:i + 1] + (side[16:] if i == 15 else []): e(x)
        ST("w2_end")
    else:
        HRS = [8, 12, 16, 20]
        HR = 8
        fill = ["v_lshlrev_b32 v2, 4, v1"]
        fill += [f"buffer_load_dwordx4 {v(HR+4*(2*i+pr),4)}, v2, {s(SWS,4)}, s{38 if i == 0 else 47} offen offset:{pr*1024} sc1" for i in range(2) for pr in range(2)]
        if CANARY: fill.append(f"buffer_load_dword v248, v2, {s(SWS,4)}, s37 offen sc1")
        G.c_loop(ST, pre_last5, fill)
        o = 24
        for d in range(1, 4):
            for i in range(keep):
                for pr in range(2):
                    mt = d * keep + i
                    pack(o, G.acc(mt, 2 * pr), G.acc(mt, 2 * pr + 1))
                    e(f"buffer_store_dwordx4 {v(o,4)}, v2, {s(SWS,4)}, s{39+d} offen offset:{(2*i+pr)*1024} {PFL}")
                    o = 24 + (o - 24 + 4) % 32
    PR = 64
    assert PR + 48 <= G.ACC
    def add_partial(d):
        for i in range(keep):
            for pr in range(2):
                for q in range(4): unpack(40 + 2 * q, PR + 4 * ((d - 1) * nb + 2 * i + pr) + q)
                for q in range(4):
                    c = G.acc(i, 2 * pr + (q >> 1)) + 2 * (q & 1)
                    e(f"v_pk_add_f32 {v(c,2)}, {v(c,2)}, {v(40+2*q,2)}")
    def add_residual():
        for i in range(keep):
            for pr in range(2):
                for q in range(4): unpack(40 + 2 * q, HRS[2 * i + pr] + q)
                for q in range(4):
                    c = G.acc(i, 2 * pr + (q >> 1)) + 2 * (q & 1)
                    e(f"v_pk_add_f32 {v(c,2)}, {v(c,2)}, {v(40+2*q,2)}")
    def ld_partial(d):
        for b in range(nb): e(f"buffer_load_dwordx4 {v(PR+4*((d-1)*nb+b),4)}, v2, {s(SWS,4)}, s{42+d} offen offset:{b*1024} sc1")
    rowmajor_voff(62, 63)
    if CANARY:
        e("v_mov_b32 v58, s43\nv_mov_b32 v59, s44\nv_cmp_eq_u32 vcc, 1, v1\nv_cndmask_b32 v58, v58, v59, vcc\nv_mov_b32 v59, s45\nv_cmp_eq_u32 vcc, 2, v1\nv_cndmask_b32 v58, v58, v59, vcc")
        e("s_waitcnt vmcnt(0)")
        ST("p_flag")
        add_residual()
        X0 = A.newlabel("pfok")
        e(f"s_mov_b64 exec, 0xf\nv_and_b32 v248, 1, v248\nv_cmp_ne_u32 vcc, 1, v248\ns_mov_b64 exec, -1\ns_cbranch_vccz {X0}")
        poll("s37", 4, voff=2, t=60)
        A.label(X0)
        L, X = A.newlabel("can"), A.newlabel("canx")
        e(f"s_mov_b64 exec, 7\ns_mov_b32 s{sCNT}, 0")
        A.label(L)
        e(f"buffer_load_dword v60, v58, {s(SWS,4)}, 0 offen offset:4092 sc1\ns_add_u32 s{sCNT}, s{sCNT}, 1\ns_cmp_gt_u32 s{sCNT}, {SPIN_MAX}\ns_waitcnt vmcnt(0)\ns_cbranch_scc1 {X}")
        e(f"v_cmp_eq_u32 vcc, -1, v60\ns_cbranch_vccnz {L}")
        A.label(X)
        e("s_mov_b64 exec, -1")
        ST("p_seen")
        for d in range(1, 4): ld_partial(d)
        for d in range(1, 4):
            L, X = A.newlabel("pv"), A.newlabel("pvx")
            r0 = PR + 16 * (d - 1)
            e(f"s_waitcnt vmcnt({(3-d)*nb})")
            A.label(L)
            e(f"v_max_u32 v60, v{r0}, v{r0+1}")
            for i in range(2, 16, 2): e(f"v_max3_u32 v60, v{r0+i}, v{r0+i+1}, v60")
            e(f"v_cmp_eq_u32 vcc, -1, v60\ns_cbranch_vccz {X}\ns_add_u32 s{sCNT}, s{sCNT}, 1\ns_cmp_gt_u32 s{sCNT}, {SPIN_MAX}\ns_cbranch_scc1 {X}")
            ld_partial(d)
            e(f"s_waitcnt vmcnt(0)\ns_branch {L}")
            A.label(X)
            add_partial(d)
    elif LEVELS and TAILPM:
        lvf = lambda l: e(f"s_mov_b64 exec, 1\nbuffer_store_byte v6, v5, {s(SWS,4)}, s32 offen offset:{l} sc1\ns_mov_b64 exec, -1")
        e("s_waitcnt vmcnt(5)"); lvf(2)
        add_residual()
        e(f"v_sub_u32 v61, s{sKS}, v1\nv_and_b32 v61, 3, v61\nv_lshlrev_b32 v61, 3, v61")
        e("s_waitcnt vmcnt(2)"); lvf(3)
        ST("p_flag")
        e(f"s_mov_b32 s{sCNT}, 0\ns_mov_b32 s33, 0")
        if PW5: e("s_waitcnt vmcnt(0)")
        for lvl in (1, 2, 3):
            L, X = A.newlabel("lv"), A.newlabel("lvx")
            e(f"s_sub_u32 s30, s{sKS}, {lvl}\ns_and_b32 s30, s30, 3\ns_bitcmp1_b32 s33, s30\ns_cbranch_scc1 {X}")
            A.label(L)
            e(f"s_mov_b64 exec, 0xf\nbuffer_load_dword v60, v2, {s(SWS,4)}, s37 offen sc1\ns_add_u32 s{sCNT}, s{sCNT}, 1\ns_waitcnt vmcnt(0)\nv_bfe_u32 v60, v60, v61, 1\nv_cmp_eq_u32 vcc, 1, v60\ns_mov_b64 exec, -1\ns_mov_b32 s33, vcc_lo")
            e(f"s_cmp_gt_u32 s{sCNT}, {SPIN_MAX}\ns_cbranch_scc1 {X}\ns_bitcmp1_b32 s33, s30\ns_cbranch_scc0 {L}")
            A.label(X)
            ld_partial(4 - lvl)
        ST("p_seen")
        for lvl in (1, 2, 3):
            e(f"s_waitcnt vmcnt({(3-lvl)*nb})")
            add_partial(4 - lvl)
    else:
        e("s_waitcnt vmcnt(0)")
        set_flag(32)
        ST("p_flag")
        add_residual()
        poll("s37", 4, voff=2, t=60)
        ST("p_seen")
        for d in range(1, 4): ld_partial(d)
        for d in range(1, 4):
            e(f"s_waitcnt vmcnt({(3-d)*nb})")
            add_partial(d)
    if PERT:
        L = A.newlabel("nopert")
        e(f"s_cmp_ge_u32 s2, {PERTN}\ns_cbranch_scc1 {L}\ns_mov_b64 exec, {PERTL}\nv_add_f32 v{G.acc(0,0)}, {f32(PERT)}, v{G.acc(0,0)}\ns_mov_b64 exec, -1")
        A.label(L)
    for i in range(keep):
        for pr in range(2):
            x = HRS[2 * i + pr]
            pack(x, G.acc(i, 2 * pr), G.acc(i, 2 * pr + 1))
            e(f"v_permlane16_swap_b32 v{x}, v{x+2}\nv_permlane16_swap_b32 v{x+1}, v{x+3}")
            e(f"s_add_u32 s31, s46, {i*16*2048}\nbuffer_store_dwordx4 {v(x,4)}, v62, {s(SD,4)}, s31 offen offset:{pr*64} {OFL}")
    ST.flush()
    e("s_endpgm")

def neighbours_and_attention(ST, Q):
    e(f"s_lshl_b32 s38, s{sWM}, 1\ns_add_u32 s38, s38, 1")
    attn_setup()
    L = A.newlabel("nonb")
    assert MAP1 == 162
    own_arena(42)
    e(f"""
s_add_u32 s40, s{sRB}, s{sWM}
s_sub_u32 s41, s40, 2
s_lshl_b32 s31, s{sWM}, 16
s_add_u32 s42, s42, s31
s_sub_u32 s42, s42, {2*64*KB}
s_lshl_b32 s31, s{sWN}, 13
s_add_u32 s42, s42, s31
s_mul_i32 s43, s{sWN}, 24
s_lshl_b32 s31, s{sWM}, 3
s_add_u32 s43, s43, s31
s_lshl_b32 s43, s43, 10
v_lshlrev_b32 v2, 4, v1
s_cmp_lt_u32 s40, 2
s_cselect_b32 s42, {WS_BYTES}, s42
s_cbranch_scc1 {L}
""")
    flag_addr(32, WS_F1, sCB, 41, 4, None)
    poll("s32", 4, t=8)
    A.label(L)
    ST("nb_seen")
    def nb_loads(wsb, lb):
        if wsb == AR_V and KFLAG:
            L2 = A.newlabel("nonv")
            e(f"s_cmp_lt_u32 s40, 2\ns_cbranch_scc1 {L2}")
            poll("s32", 4, t=20, mask=2)
            A.label(L2)
            e("v_lshlrev_b32 v2, 4, v1")
        for h in range(2):
            e(f"s_add_u32 m0, s43, {lb + h*4096}\ns_add_u32 s31, s42, {wsb + h*4096}")
            for i in range(4): e(f"buffer_load_dwordx4 v2, {s(SWS,4)}, s31 offen offset:{i*1024} sc1 lds")
    Q.q = []
    nb_loads(AR_K, L_K); Q.add("nk", 8)
    def vl():
        nb_loads(AR_V, L_V); Q.add("nv", 8)
    if not VLATE: vl()
    attention.vl = vl if VLATE else None
    attention(ST, True, Q)
    roles_48()
    b_src_wo()
    e(f"ds_read_b32 v8, v{vFR} offset:{OFF_HD}")
    G3.p_setup_a(); G3.p_setup_b(sWN)
    e(f"s_waitcnt lgkmcnt(0)\nv_readfirstlane_b32 s{sMODE}, v8")
    e("s_waitcnt vmcnt(0)")
    set_flag(33)
    e("s_barrier")
    Q.q = []
    ST("o_flag")

def dma_phase1(ST, Q):
    G = G1
    if DPRIO: e(f"s_setprio {DPRIO}")
    def touch(nk, fl):
        def f():
            e(f"s_mul_i32 s30, s{sW}, {nk*1024}\ns_add_u32 s30, s30, s{sOWN}\nv_lshlrev_b32 v12, 7, v1")
            for i in range(0, nk, 8):
                if nk - i < 8: set_exec((1 << ((nk - i) * 8)) - 1)
                e(f"s_add_u32 s31, s30, {WS_AR + i*1024}\nbuffer_load_dword v{248+i//8}, v12, {s(SWS,4)}, s31 offen {fl}")
                Q.add("touch")
            e("s_mov_b64 exec, -1")
        return f
    dma_phase1.touch = touch
    G.p_loop(Q, ST, 0, NPF, tail=touch(16, TFL.replace("none", "")) if TOUCH else None)
    if DPRIO: e("s_setprio 0")
    e("s_waitcnt lgkmcnt(0)")

def dma_rest(ST, Q):
    G = G3
    if DPRIO: e(f"s_setprio {DPRIO}")
    e(f"s_lshl_b32 s32, s{sRB}, 11\ns_add_u32 s32, s32, {WS_F2}")
    pf_step(PFBUB)
    e("v_lshrrev_b32 v10, 2, v1\nv_lshlrev_b32 v10, 7, v10\nv_and_b32 v11, 3, v1\nv_lshl_add_u32 v10, v11, 3, v10")
    G.p_loop(Q, ST, G.NSB, 1, 3, gate=lambda k: gate_k(G3, k, True), look=(range(0, 12), (32, 10, True)))
    G = G4
    roles_84()
    b_src_w1()
    e(f"s_lshl_b32 s{sAR}, s{sRB}, 18\ns_add_u32 s{sAR}, s{sAR}, {WS_H}")
    G.p_setup_b(); G.p_setup_a()
    e(f"s_lshl_b32 s32, s{sRB}, 11\ns_add_u32 s32, s32, {WS_F3}")
    if BEARLY and not BTAIL: G.issue_b(Q, 0)
    if not LFIRST: wait_rows(OFF_EP, 2)
    if not BEARLY and not BTAIL: G.issue_b(Q, 0)
    pf_step(PFBUB)
    e("v_lshrrev_b32 v10, 2, v1\nv_lshlrev_b32 v10, 7, v10\nv_and_b32 v11, 3, v1\nv_lshl_add_u32 v10, v11, 2, v10")
    if LFIRST:
        e(f"s_lshl_b32 s30, s{sROT}, 2\nv_add_u32 v10, s30, v1\nv_and_b32 v10, 63, v10\nv_lshlrev_b32 v10, 2, v10")
        e(f"s_cmp_lg_u32 s{sMODE}, 0\ns_cselect_b32 s33, 0, {WS_F3L - WS_F3}\ns_cselect_b32 s{sKS}, 0, {WS_HL - WS_H}\ns_add_u32 s33, s33, s32\ns_add_u32 s{sKS}, s{sKS}, s{sAR}")
    def gate4(k):
        if not LFIRST: return gate_k(G4, k, False)
        n0 = GATEN["w1"]
        if k == 4: e(f"s_mov_b64 {s(sRDY,2)}, -1")
        if k == 0: need_flags((1 << (4 * n0)) - 1, 33, 10, False)
        elif k >= n0: need_flags(0xf << (4 * k), 33 if k < 4 else 32, 10, False)
    G.p_loop(Q, ST, 1 if BLATE else G.NS, NPF, gate=gate4, tail=dma_phase1.touch(28, '') if TOUCH4 else None, look=(range(0, 12), (32, 10, False)))
    pf_finish()
    G = G5
    roles_w2()
    b_src_w2()
    G.p_setup_b()
    for st in range(G.NS): G.issue_b(Q, st)
    G.p_setup_a()
    e(f"s_lshl_b32 s32, s{sRB}, 9\ns_lshl_b32 s30, s{sKS}, 7\ns_add_u32 s32, s32, s30\ns_add_u32 s32, s32, {WS_F4P}")
    e(f"s_lshl_b32 s30, s{sW}, 9\ns_add_u32 s32, s32, s30\nv_lshlrev_b32 v10, 2, v4")
    e("v_and_b32 v11, 1, v3")
    seen5 = set()
    def gate5(k):
        want = {(c, lv) for c, kb, lv in G5.blocks()[2 * k:2 * k + 2]} - seen5
        if want:
            seen5.update(want)
            need_flags(sum(0xf << (4 * c + 16 * (lv - 1)) for c, lv in want), 32, 10, False, shift=11)
    G.p_loop(Q, ST, G.NS + RP5, gate=gate5, look=(range(0, 10), (32, 10, False, 11)) if ASY5 else None, merge=bool(TAILPM))

U0 = 200
def colsum_block(j, src, nld, dpp):
    u = U0 + 8 * j
    if DOT:
        e("v_mov_b32 v10, 0x00003f80\nv_mov_b32 v11, 0x3f800000")
        for i in range(nld):
            for d in range(4):
                if i == 0: unpack(u + 2 * d, src + d)
                else: e(f"v_dot2_f32_bf16 v{u+2*d}, v{src+4*i+d}, v10, v{u+2*d}\nv_dot2_f32_bf16 v{u+2*d+1}, v{src+4*i+d}, v11, v{u+2*d+1}")
    else:
        for i in range(nld):
            for d in range(4):
                if i == 0: unpack(u + 2 * d, src + d)
                else:
                    unpack(10 + 2 * (d & 1), src + 4 * i + d)
                    e(f"v_pk_add_f32 {v(u+2*d,2)}, {v(u+2*d,2)}, {v(10+2*(d&1),2)}")
    for d in range(4): e(f"v_permlane32_swap_b32 v{u+d}, v{u+4+d}")
    for d in range(2): e(f"v_pk_add_f32 {v(u+2*d,2)}, {v(u+2*d,2)}, {v(u+4+2*d,2)}")
    for d in range(2): e(f"v_permlane16_swap_b32 v{u+d}, v{u+2+d}")
    e(f"v_pk_add_f32 {v(u,2)}, {v(u,2)}, {v(u+2,2)}")
    for k in dpp:
        for r in range(u, u + 2): e(f"v_add_f32_dpp v{r}, v{r}, v{r} row_ror:{k} row_mask:0xf bank_mask:0xf")
def colsum_store(Q, j, soff, nl, tag):
    u = U0 + 8 * j
    e("v_lshlrev_b32 v6, 5, v4\nv_lshl_add_u32 v6, v3, 3, v6")
    m = (1 << nl) - 1
    set_exec(m | m << 16 | m << 32 | m << 48)
    e(f"buffer_store_dwordx2 {v(u,2)}, v6, {s(SWS,4)}, s{soff} offen offset:{256*j} sc1\ns_mov_b64 exec, -1")
    Q.add(tag, 1)

def zero_own_flags(Q):
    e("v_lshlrev_b32 v2, 2, v1\nv_mov_b32 v8, 0")
    def st(soff, nl):
        set_exec((1 << nl) - 1); e(f"buffer_store_dword v8, v2, {s(SWS,4)}, s{soff} offen sc1"); Q.add("zero")
    flag_addr(32, WS_F1, sCB, sRB, 4, None); st(32, 4)
    flag_addr(32, WS_F2, sRB, sCB, 32, None); st(32, 8)
    roles_48(36, 37)
    flag_addr(32, WS_F3, 36, 37, 32, None); st(32, 4)
    if LFIRST: e(f"s_add_u32 s32, s32, {WS_F3L - WS_F3}"); st(32, 4)
    roles_w2(36, 37, 38)
    if F5W:
        assert not CANARY
        e(f"s_lshl_b32 s32, s36, 3\ns_add_u32 s32, s32, s37\ns_lshl_b32 s32, s32, 5\ns_add_u32 s32, s32, s38\ns_lshl_b32 s32, s32, 4\ns_add_u32 s32, s32, {WS_F5W}")
        set_exec(0xf); e("v_lshlrev_b32 v9, 7, v1"); e(f"buffer_store_dword v8, v9, {s(SWS,4)}, s32 offen sc1"); Q.add("zero")
    else:
        e(f"s_lshl_b32 s32, s36, 3\ns_add_u32 s32, s32, s37\ns_lshl_b32 s32, s32, 2\ns_add_u32 s32, s32, s38\ns_lshl_b32 s32, s32, 4\ns_add_u32 s32, s32, {WS_F5}"); st(32, 4)
    roles_84(36, 37)
    f4_addr(32, 36, 37, None); st(32, 4)
    e("s_mov_b64 exec, -1\nv_mov_b32 v8, -1\nv_mov_b32 v9, -1\nv_mov_b32 v10, -1\nv_mov_b32 v11, -1\nv_lshlrev_b32 v7, 4, v1")
    e(f"s_lshl_b32 s32, s35, 5\ns_add_u32 s32, s32, {WS_RA}"); st(32, 8)
    e(f"s_add_u32 s32, s32, {WS_RB - WS_RA}"); st(32, 8)
    def st4(soff, nl):
        set_exec((1 << nl) - 1); e(f"buffer_store_dwordx4 v[8:11], v7, {s(SWS,4)}, s{soff} offen sc1"); Q.add("zero")
    e(f"s_mul_i32 s32, s35, 768\ns_add_u32 s32, s32, {WS_CS1}"); st4(32, 48)
    e(f"s_mul_i32 s32, s36, {2*3584*4}\ns_mul_i32 s33, s37, 896\ns_add_u32 s32, s32, s33\ns_add_u32 s32, s32, {WS_CS2}"); st4(32, 56)
    e(f"s_add_u32 s32, s32, {3584*4}"); st4(32, 56)
    if TWO:
        e(f"s_lshl_b32 s32, s36, 4\ns_add_u32 s32, s32, s37\ns_lshl_b32 s32, s32, 6\ns_add_u32 s32, s32, {WS_K2}"); st4(32, 4)
        e(f"s_lshl_b32 s32, s37, 4\ns_add_u32 s32, s32, s36\ns_lshl_b32 s32, s32, 6\ns_add_u32 s32, s32, {WS_CF}"); st4(32, 4)
    e("s_mov_b64 exec, -1")

sPFO, sPFE, sPFI, SPF = sNEED, pOUT, sT0, 44
sPFS = pOUT + 1
sTOUT = 96
def pf_init():
    e(f"s_mov_b64 {s(sTOUT,2)}, {s(pOUT,2)}")
    srd(SPF, pWO, 2 * MB)
    e(f"s_lshl_b32 s{sPFS}, s2, 2\ns_add_u32 s{sPFS}, s{sPFS}, s{sW}\ns_lshl_b32 s{sPFS}, s{sPFS}, 8\ns_mov_b32 s{sPFO}, s{sPFS}\ns_mov_b32 s{sPFE}, {2*MB}\ns_mov_b32 s{sPFI}, {2 if W2NT else 0 if PFW1 else 1}")
def pf_chunk():
    for i in range(4): e(f"s_buffer_load_dword s{sC0}, {s(SPF,4)}, s{sPFO} offset:{64*i}")
    e(f"s_add_u32 s{sPFO}, s{sPFO}, {1024*256}")
def pf_step(n):
    if not SPFON or n == 0: return
    G_, X, W2L = A.newlabel("pfg"), A.newlabel("pfx"), A.newlabel("pfw2")
    e(f"s_cmp_lt_u32 s{sPFO}, s{sPFE}\ns_cbranch_scc1 {G_}\ns_cmp_ge_u32 s{sPFI}, 2\ns_cbranch_scc1 {X}")
    e(f"s_mov_b32 s{sPFO}, s{sPFS}\ns_mov_b32 s{sPFE}, {7*MB}\ns_add_u32 s{sPFI}, s{sPFI}, 1\ns_cmp_eq_u32 s{sPFI}, 2\ns_cbranch_scc1 {W2L}")
    srd(SPF, pW1, 7 * MB)
    e(f"s_branch {G_}")
    A.label(W2L)
    srd(SPF, pW2, 7 * MB)
    A.label(G_)
    for i in range(n): pf_chunk()
    A.label(X)
CODE_MAX = 96 * KB
def code_warm():
    if not CWARM: return
    L = A.newlabel("pc")
    e(f"s_getpc_b64 s[42:43]")
    A.label(L)
    e(f"s_sub_u32 s42, s42, {L}-{KN}\ns_subb_u32 s43, s43, 0\ns_lshl_b32 s{sC0+1}, s{sR}, 2\ns_add_u32 s{sC0+1}, s{sC0+1}, s{sW}\ns_lshl_b32 s{sC0+1}, s{sC0+1}, 6")
    for i in range(NCODE): e(f"s_load_dword s{sC0}, s[42:43], s{sC0+1} offset:{i*8192}")
def tlb_warm():
    if not TLBW: return
    e(f"s_lshl_b32 s{sC0+1}, s{sR}, 2\ns_add_u32 s{sC0+1}, s{sC0+1}, s{sW}\ns_lshl_b32 s{sC0+1}, s{sC0+1}, {TLBG}")
    n = max(1, (96 * MB >> TLBG) // 128)
    for i in range(n):
        e(f"s_add_u32 s42, s{sC0+1}, {(i*128) << TLBG}\ns_min_u32 s42, s42, {96*MB - 64}\ns_load_dword s{sC0}, {s(pWS,2)}, s42")
    for ptr, nb in ((pW1, 7 * MB), (pW2, 7 * MB), (pWO, 2 * MB), (sTOUT, 4 * MB)):
        e(f"s_min_u32 s42, s{sC0+1}, {nb - 64}\ns_load_dword s{sC0}, {s(ptr,2)}, s42")
def pf_until_ep(k):
    L, X = A.newlabel("pu"), A.newlabel("pux")
    A.label(L)
    e(f"ds_read_b32 v{vFV}, v{vFR} offset:{OFF_EP}\ns_waitcnt lgkmcnt(0)\nv_cmp_gt_u32 vcc, {k}, v{vFV}\ns_cbranch_vccz {X}")
    e(f"s_sleep 1\ns_add_u32 s3, s3, 1\ns_cmp_lt_u32 s3, {LSPIN_MAX}\ns_cbranch_scc1 {L}")
    A.label(X)
def pf_finish():
    if not SPFON: return
    L = A.newlabel("pfin")
    A.label(L)
    pf_step(2)
    e(f"s_waitcnt lgkmcnt(6)\ns_cmp_lt_u32 s{sPFI}, 2\ns_cbranch_scc1 {L}\ns_cmp_lt_u32 s{sPFO}, s{sPFE}\ns_cbranch_scc1 {L}")
def pf_stamp(ST):
    if not STAMPS: return
    k_ = len(ST.names); ST.names.append("pfMB")
    e(f"s_mul_i32 s30, s{sPFI}, 1000\ns_lshr_b32 s31, s{sPFO}, 13\ns_mul_i32 s31, s31, 25\ns_lshr_b32 s31, s31, 5\ns_add_u32 s30, s30, s31\ns_add_u32 s{78+k_}, s78, s30")

class HStream:
    def __init__(self): self.items = []
    def __enter__(self):
        self.saved = A.lines; A.lines = []; return self
    def _take(self, atomic=False):
        if A.lines:
            if atomic: self.items.append(("g", list(A.lines)))
            else: self.items += [("g", [ln]) for ln in A.lines if ln.strip()]
        A.lines = []
    def at(self, k): self._take(); self.items.append(("at", k))
    def by(self, k): self._take(); self.items.append(("by", k))
    def atomic(self, f, cost=None):
        self._take(); f()
        if not A.lines: return
        self._take(True)
        if cost is not None: self.items[-1] = ("g", self.items[-1][1], cost)
    def __exit__(self, *a):
        self._take(); A.lines = self.saved
    @staticmethod
    def cost(ln):
        t = ln.strip()
        if t.startswith(("buffer_", "global_")): return VMC
        if t.startswith("ds_"): return 2
        if t.startswith("v_dot"): return DOTC
        if t.startswith(("v_exp", "v_rcp", "v_sqrt", "v_rsq")): return 2
        if t.startswith("s_") or t.endswith(":"): return 0.5
        return 1
    def emit(self, nbar, lim, npf, pf_from=0, pf_to=99, pre0=999, every=1, cw=(), more=False):
        st = {"b": 0, "used": 0}
        def bar():
            e("s_barrier")
            if st["b"] in cw: code_warm()
            if cw and cw[0] == 0 and st["b"] == 2: tlb_warm()
            if pf_from <= st["b"] < min(pf_to, nbar - 1) and st["b"] % every == every - 1: pf_step(npf + (1 if more and st["b"] % 3 != 1 else 0))
            st["b"] += 1; st["used"] = 0
        for kind, x, *oc in self.items:
            if kind == "at":
                while st["b"] <= x: bar()
            elif kind == "by":
                if DBGH: print("by", x, "at", st["b"], file=sys.stderr)
                assert st["b"] <= x, ("deadline missed", st["b"], x)
            else:
                c = oc[0] if oc else sum(self.cost(l) for l in x)
                if st["used"] > 8 and st["used"] + c > (lim if st["b"] > 0 else pre0) and not (len(x) == 1 and x[0].strip().startswith("s_")): bar()
                A.lines += x; st["used"] += c
        assert st["b"] <= nbar, st
        while st["b"] < nbar: bar()

def retry(loads, regs, nl, post=None):
    L, X = A.newlabel("rt"), A.newlabel("rtx")
    set_exec((1 << nl) - 1 if nl <= 64 else nl)
    e(f"s_mov_b32 s{sCNT}, 0")
    A.label(L)
    e("s_waitcnt vmcnt(0)")
    if post: post()
    e(f"v_max_u32 v8, v{regs[0]}, v{regs[1]}")
    for i in range(2, len(regs), 2): e(f"v_max3_u32 v8, v{regs[i]}, v{regs[i+1]}, v8")
    e(f"v_cmp_eq_u32 vcc, -1, v8\ns_cbranch_vccz {X}\ns_add_u32 s{sCNT}, s{sCNT}, 1\ns_cmp_gt_u32 s{sCNT}, {SPIN_MAX}\ns_cbranch_scc1 {X}\ns_sleep 8")
    loads()
    e(f"s_branch {L}")
    A.label(X)

def helper0_phase1(ST, Q):
    RS = 16
    with HStream() as H:
        e(f"""
s_lshl_b32 s35, s{sRB}, 4
s_add_u32 s35, s35, s{sCB}
s_lshl_b32 s34, s35, 14
v_lshrrev_b32 v6, 3, v1
v_lshlrev_b32 v5, 11, v6
v_and_b32 v7, 7, v1
v_lshl_add_u32 v5, v7, 4, v5
s_getreg_b32 s39, hwreg(HW_REG_XCC_ID)
""")
        bounds = [0] + [2 * x for x in HB] + [16]
        def red8(r):
            e(f"v_add_f32_dpp v{r}, v{r}, v{r} quad_perm:[1,0,3,2] row_mask:0xf bank_mask:0xf")
            e(f"v_add_f32_dpp v{r}, v{r}, v{r} quad_perm:[2,3,0,1] row_mask:0xf bank_mask:0xf")
            e(f"v_add_f32_dpp v{r}, v{r}, v{r} row_half_mirror row_mask:0xf bank_mask:0xf")
        def dots(bt):
            Q.wait(("rs", bt))
            for i in range(4 * bounds[bt], 4 * bounds[bt + 1]):
                e(f"v_dot2_f32_bf16 v{80+(i&1)}, v{RS+i}, v84, v{80+(i&1)}\nv_dot2_f32_bf16 v{82+(i&1)}, v{RS+i}, v{RS+i}, v{82+(i&1)}")
        e("v_mov_b32 v84, 0x3f803f80\nv_mov_b64 v[80:81], 0\nv_mov_b64 v[82:83], 0")
        for bt in range(len(bounds) - 1):
            if bt: H.at(bt - 1)
            for i in range(bounds[bt], bounds[bt + 1]): e(f"buffer_load_dwordx4 {v(RS+4*i,4)}, v5, {s(SX,4)}, s34 offen offset:{128*i}")
            Q.add(("rs", bt), bounds[bt + 1] - bounds[bt])
            if bt == 1: zero_own_flags(Q)
            if bt >= LAG: dots(bt - LAG)
        e(f"s_and_b32 s39, s39, 15\ns_or_b32 s39, s39, 0x80\ns_lshl_b32 s30, s{sG}, 5\ns_add_u32 s30, s30, s{sR}")
        e(f"v_mov_b32 v8, s39\nv_mov_b32 v2, s30")
        nb_ = len(bounds) - 1
        for bt in range(nb_ - LAG, nb_):
            H.at(bt + LAG - 1); dots(bt)
        H.by(H0AT + 1)
        e(f"s_mov_b64 exec, 1\nbuffer_store_byte v8, v2, {s(SD,4)}, 0 offen sc1\ns_mov_b64 exec, -1")
        e("v_add_f32 v10, v80, v81\nv_add_f32 v11, v82, v83")
        red8(10)
        red8(11)
        if DOT: e(f"v_mul_f32 v12, {f32(-1/1024)}, v10\nv_fma_f32 v11, v12, v10, v11\nv_max_f32 v11, 0, v11")
        ln_finish(10, 11, 1024)
        e("v_mul_f32 v10, v10, v11\nv_sub_f32 v10, 0, v10")
        e(f"v_lshrrev_b32 v7, 3, v1\nv_lshlrev_b32 v7, 2, v7\ns_lshl_b32 s32, s35, 5\ns_add_u32 s32, s32, {WS_RA}\ns_add_u32 s33, s32, {WS_RB-WS_RA}")
        set_exec(0x0101010101010101)
        e(f"buffer_store_dword v11, v7, {s(SWS,4)}, s32 offen sc1\nbuffer_store_dword v10, v7, {s(SWS,4)}, s33 offen sc1\ns_mov_b64 exec, -1")
        ST("st_pub")
        H.by(GAT - 1); H.at(GAT - 3)
        e(f"v_lshlrev_b32 v12, 2, v1\nbuffer_load_dword v13, v12, {s(SD,4)}, 0 offen sc1")
        H.at(GAT - 1)
        def handshake():
            X = A.newlabel("hsx")
            e(f"s_waitcnt vmcnt(0)\nv_and_b32 v8, 0x80808080, v13\nv_cmp_ne_u32 vcc, 0x80808080, v8\ns_cbranch_vccz {X}")
            poll("0", 64, srd_=SD, mask="0x80808080", t=8, sleep=16)
            e(f"buffer_load_dword v13, v12, {s(SD,4)}, 0 offen sc1\ns_waitcnt vmcnt(0)")
            A.label(X)
            e(f"s_mul_i32 s31, s39, 0x01010101\nv_cmp_ne_u32 vcc, s31, v13\ns_lshl_b32 s30, s{sG}, 3\ns_lshr_b64 s[32:33], vcc, s30\ns_and_b32 s30, s32, 0xff")
            if FORCE >= 0: e(f"s_mov_b32 s30, {FORCE}")
            e(f"v_mov_b32 v8, s30\nv_mov_b32 v7, {L_HD}\ns_mov_b64 exec, 1\nds_write_b32 v7, v8\ns_mov_b64 exec, -1")
        H.atomic(handshake)
        H.at(GAT)
        e(f"v_and_b32 v6, 31, v1\nv_lshlrev_b32 v6, 4, v6\nv_lshrrev_b32 v7, 5, v1\nv_lshl_add_u32 v6, v7, 13, v6\ns_lshl_b32 s34, s{sRB}, 9\ns_add_u32 s34, s34, {WS_RA}")
        ld = lambda: e(f"buffer_load_dwordx4 v[16:19], v6, {s(SWS,4)}, s34 offen sc1")
        ld()
        H.at(GAT + 2)
        def fin():
            retry(ld, [16, 17, 18, 19], 64)
            e(f"v_lshlrev_b32 v6, 4, v1\nv_add_u32 v6, {L_RA}, v6\nds_write_b128 v6, v[16:19]\ns_waitcnt lgkmcnt(0)")
        H.atomic(fin)
        ST("st_in")
        H.by(16)
    H.emit(17, HLIM, NPF, pf_from=PFD0, pf_to=GAT + 1, pre0=PRE0, cw=(0, 14) if CWARM > 1 else (0,))
    e("s_waitcnt lgkmcnt(0)")
    pf_stamp(ST)

def helper1_phase1(ST, Q):
    CSR = 80
    with HStream() as H:
        e(f"""
s_lshl_b32 s35, s{sRB}, 4
s_add_u32 s35, s35, s{sCB}
v_bfe_u32 v6, v1, 3, 2
v_lshrrev_b32 v7, 5, v1
v_lshl_add_u32 v6, v7, 6, v6
v_and_b32 v7, 7, v1
v_mul_u32_u24 v6, 6144, v6
v_lshl_add_u32 v6, v7, 4, v6
s_mul_i32 s32, s{sRB}, {4*6144}
s_lshl_b32 s33, s{sCB}, 7
s_add_u32 s32, s32, s33
""")
        bounds = [0] + HB + [8]
        e("v_mov_b32 v10, 0x00003f80\nv_mov_b32 v11, 0x3f800000")
        for r in range(U0, U0 + 24, 2): e(f"v_mov_b64 {v(r,2)}, 0")
        def dots(bt):
            Q.wait(("cs", bt))
            for i in range(bounds[bt], bounds[bt + 1]):
                for j in range(3):
                    for d in range(4):
                        u, r = U0 + 8 * j + 2 * d, CSR + 4 * (8 * j + i) + d
                        e(f"v_dot2_f32_bf16 v{u}, v{r}, v10, v{u}\nv_dot2_f32_bf16 v{u+1}, v{r}, v11, v{u+1}")
        nb_ = len(bounds) - 1
        for bt in range(nb_):
            if bt: H.at(bt - 1)
            for i in range(bounds[bt], bounds[bt + 1]):
                for j in range(3):
                    e(f"s_add_u32 s31, s32, {2048*j + 128*6144*i}\nbuffer_load_dwordx4 {v(CSR+4*(8*j+i),4)}, v6, {s(SB,4)}, s31 offen {'nt' if i < NTK else ''}")
            Q.add(("cs", bt), 3 * (bounds[bt + 1] - bounds[bt]))
            if bt >= LAG: dots(bt - LAG)
        for bt in range(nb_ - LAG, nb_):
            H.at(bt + LAG - 1); dots(bt)
        e(f"s_mul_i32 s33, s35, 768\ns_add_u32 s33, s33, {WS_CS1}")
        for j in range(3): colsum_block(j, 0, 0, (8,))
        H.at(H0AT + 1)
        for j in range(3): colsum_store(Q, j, 33, 8, "st1")
        ST("st_pub")
        H.by(GAT - 1); H.at(GAT)
        e(f"s_mul_i32 s33, s{sCB}, 768\ns_add_u32 s33, s33, {WS_CS1}\nv_lshlrev_b32 v6, 4, v1")
        def ld():
            for k in range(16): e(f"s_add_u32 s31, s33, {k*16*768}\nbuffer_load_dwordx4 {v(16+4*k,4)}, v6, {s(SWS,4)}, s31 offen sc1")
        def ld0():
            set_exec((1 << 48) - 1); ld(); e("s_mov_b64 exec, -1")
        H.atomic(ld0)
        H.at(GAT + 2)
        def fin():
            retry(ld, list(range(16, 80)), 48)
            for k in range(1, 16): e(f"v_pk_add_f32 v[16:17], v[16:17], {v(16+4*k,2)}\nv_pk_add_f32 v[18:19], v[18:19], {v(18+4*k,2)}")
            e(f"v_add_u32 v6, {L_CS}, v6\nds_write_b128 v6, v[16:19]\ns_mov_b64 exec, -1\ns_waitcnt lgkmcnt(0)")
        H.atomic(fin)
        ST("st_in")
        H.by(16)
    H.emit(17, HLIM, NPF, pf_from=PFD0, pf_to=GAT + 1, pre0=PRE0, cw=(0, 14) if CWARM > 1 else (0,))
    e("s_waitcnt lgkmcnt(0)")
    pf_stamp(ST)

def red16(regs, tmps):
    for k in (4, 8):
        for r in regs: e(f"v_add_f32_dpp v{r}, v{r}, v{r} row_ror:{k} row_mask:0xf bank_mask:0xf")
    xg_multi("v_add_f32", regs, tmps)
def helper4_two(ST, Q):
    q0 = list(Q.q); n0 = list(ST.names)
    e(f"s_cmp_lg_u32 s{sWN}, 0\ns_cbranch_scc1 L_h4b")
    with HStream() as H:
        e(f"s_lshl_b32 s36, s{sRB}, 11\ns_add_u32 s36, s36, {WS_F3}\ns_lshr_b32 s37, s{sR}, 1\ns_min_u32 s37, s37, 13\ns_lshl_b32 s37, s37, 11\ns_add_u32 s37, s37, {WS_F3}")
        H.at(0)
        Q.wait(2)
        e("v_lshrrev_b32 v240, 2, v1\nv_lshlrev_b32 v240, 7, v240\nv_and_b32 v241, 3, v1\nv_lshl_add_u32 v240, v241, 2, v240\nv_min_u32 v241, 47, v1\nv_lshlrev_b32 v241, 7, v241")
        e(f"s_lshl_b32 s34, s{sRB}, 1\ns_lshr_b32 s30, s{sCB}, 3\ns_add_u32 s34, s34, s30\ns_lshl_b32 s34, s34, 14\ns_and_b32 s30, s{sCB}, 7\ns_lshl_b32 s30, s30, 6\ns_add_u32 s34, s34, s30\ns_add_u32 s34, s34, {WS_STAT}\ns_add_u32 s35, s34, 8192")
        e("v_lshrrev_b32 v11, 2, v1\nv_lshlrev_b32 v11, 9, v11\nv_and_b32 v12, 3, v1\nv_lshlrev_b32 v12, 4, v12\nv_add_u32 v11, v11, v12")
        H.at(CHKAT)
        e(f"buffer_load_dword v232, v240, {s(SWS,4)}, s36 offen sc1")
        Q.add("chk")
        H.at(CHKAT + 2)
        def chk():
            X = A.newlabel("ckx")
            Q.wait("chk")
            e(f"v_and_b32 v232, 2, v232\nv_cmp_ne_u32 vcc, 2, v232\ns_cbranch_vccz {X}")
            poll("s36", 64, voff=240, mask=2, t=8, sleep=8)
            A.label(X)
        H.atomic(chk, 6)
        e(f"buffer_load_dwordx4 v[16:19], v11, {s(SWS,4)}, s34 offen sc1\nbuffer_load_dwordx4 v[20:23], v11, {s(SWS,4)}, s35 offen sc1")
        e(f"buffer_load_dwordx4 v[234:237], v241, {s(SWS,4)}, s37 offen sc1")
        H.at(CHKAT + 4)
        e("s_waitcnt vmcnt(1)\nv_pk_add_f32 v[24:25], v[16:17], v[20:21]\nv_pk_add_f32 v[26:27], v[18:19], v[22:23]")
        red16([24, 26], [28, 29])
        for h in range(2):
            e(f"v_mul_f32 v30, {f32(1/32)}, v{24+2*h}\nv_sub_f32 v31, v{16+2*h}, v30\nv_sub_f32 v32, v{20+2*h}, v30\nv_mul_f32 v31, v31, v31\nv_fma_f32 v31, v32, v32, v31")
            e(f"v_mov_b32 v30, {f32(1/32)}\nv_fma_f32 v{25+2*h}, v31, v30, v{25+2*h}")
        red16([25, 27], [28, 29])
        for h in range(2):
            a_, b_ = 24 + 2 * h, 25 + 2 * h
            ln_finish(a_, b_, 1024)
            e(f"v_mul_f32 v{b_}, {f32(-LOG2E)}, v{b_}\nv_mul_f32 v{a_}, v{a_}, v{b_}\nv_sub_f32 v{a_}, 0, v{a_}")
        e(f"s_lshl_b32 s34, s{sRB}, 10\ns_add_u32 s34, s34, {WS_K2}\ns_lshl_b32 s30, s{sCB}, 6\ns_add_u32 s35, s34, s30")
        e(f"s_mov_b64 exec, 0xf\nbuffer_store_dwordx4 v[24:27], v12, {s(SWS,4)}, s35 offen sc1\ns_mov_b64 exec, -1")
        def chk2():
            X = A.newlabel("ckx")
            e(f"s_waitcnt vmcnt(1)\nv_and_b32 v234, v234, v235\nv_and_b32 v236, v236, v237\nv_and_b32 v234, v234, v236\nv_and_b32 v234, 1, v234\nv_cmp_ne_u32 vcc, 1, v234\ns_cbranch_vccz {X}")
            for d in range(3):
                e(f"s_add_u32 s38, s37, {2048*d}"); poll("s38", 64, voff=240, mask=1, t=8, sleep=8)
            A.label(X)
        H.atomic(chk2, 8)
        e("v_lshlrev_b32 v6, 4, v1")
        H.by(G2AT + 1); H.at(G2AT)
        ld = lambda: e(f"buffer_load_dwordx4 v[16:19], v6, {s(SWS,4)}, s34 offen sc1")
        ld()
        H.at(15)
        def fin():
            retry(ld, [16, 17, 18, 19], 64)
            e(f"v_add_u32 v6, {L_RA}, v6\nds_write_b128 v6, v[16:19]\ns_waitcnt lgkmcnt(0)")
        H.atomic(fin, 10)
        ST("st2_in")
        H.by(16)
    H.emit(17, HLIM4, NPF, more=True, pf_to=14)
    e("s_branch L_h4x")
    A.label("L_h4b")
    Q.q = list(q0); ST.names = list(n0)
    with HStream() as H:
        H.at(0)
        Q.wait(2)
        e(f"s_mul_i32 s34, s{sCB}, 896\ns_mul_i32 s30, s{sRB}, 56\ns_add_u32 s34, s34, s30\ns_add_u32 s34, s34, {WS_CS2}\ns_add_u32 s35, s34, {16*3584*4}")
        e(f"v_lshrrev_b32 v11, 2, v1\nv_mul_u32_u24 v11, {3584*4}, v11\nv_and_b32 v12, 3, v1\nv_lshlrev_b32 v12, 4, v12\nv_add_u32 v11, v11, v12")
        e("v_and_b32 v13, 3, v1\nv_cmp_eq_u32 s[38:39], 3, v13")
        H.at(CHKAT + 1)
        def ld1(): e(f"buffer_load_dwordx4 v[16:19], v11, {s(SWS,4)}, s34 offen sc1\nbuffer_load_dwordx4 v[20:23], v11, {s(SWS,4)}, s35 offen sc1")
        ld1()
        H.at(CHKAT + 3)
        def fix():
            for r in (18, 19, 22, 23): e(f"v_cndmask_b32_e64 v{r}, v{r}, 0, s[38:39]")
        H.atomic(lambda: retry(ld1, list(range(16, 24)), 64, post=fix), 14)
        e("v_pk_add_f32 v[16:17], v[16:17], v[20:21]\nv_pk_add_f32 v[18:19], v[18:19], v[22:23]")
        red16([16, 17, 18, 19], [28, 29, 30, 31])
        e(f"s_lshl_b32 s34, s{sCB}, 10\ns_add_u32 s34, s34, {WS_CF}\ns_lshl_b32 s30, s{sRB}, 6\ns_add_u32 s35, s34, s30")
        e(f"s_mov_b64 exec, 0xf\nbuffer_store_dwordx4 v[16:19], v12, {s(SWS,4)}, s35 offen sc1\ns_mov_b64 exec, -1")
        e(f"v_lshlrev_b32 v6, 4, v1\nv_lshrrev_b32 v7, 2, v1\nv_mul_u32_u24 v7, 56, v7\nv_add_u32 v7, v7, v12\nv_add_u32 v7, {L_CS}, v7")
        H.by(G2AT + 1); H.at(G2AT)
        ld = lambda: e(f"buffer_load_dwordx4 v[16:19], v6, {s(SWS,4)}, s34 offen sc1")
        ld()
        H.at(15)
        def fin():
            retry(ld, [16, 17, 18, 19], 64)
            e("ds_write_b64 v7, v[16:17]\ns_andn2_b64 exec, exec, s[38:39]\nds_write_b64 v7, v[18:19] offset:8\ns_mov_b64 exec, -1\ns_waitcnt lgkmcnt(0)")
        H.atomic(fin, 10)
        ST("st2_in")
        H.by(16)
    H.emit(17, HLIM4, NPF, more=True, pf_to=14)
    A.label("L_h4x")
    pf_stamp(ST)
    pf_finish()

def helper_rest(ST, Q):
    CSR = 16
    with HStream() as H:
        if B3LATE: H.at(0)
        for st in range(6, G3.NSB): G3.issue_b(Q, st)
        H.at(5)
        Q.wait_all()
        H.by(6)
        roles_84()
        b_src_w1()
        G4.p_setup_b(sWN)
        e(f"""
v_lshrrev_b32 v6, 3, v1
v_mul_u32_u24 v6, 7168, v6
v_and_b32 v7, 7, v1
v_lshl_add_u32 v6, v7, 4, v6
v_lshrrev_b32 v5, 2, v1
v_mul_u32_u24 v5, 7168, v5
v_and_b32 v7, 3, v1
v_lshl_add_u32 v5, v7, 4, v5
s_lshl_b32 s35, s{sRB}, 1
s_add_u32 s35, s35, s{sWN}
s_mul_i32 s32, s35, {32*7168}
s_mul_i32 s33, s{sCB}, 448
s_add_u32 s32, s32, s33
""")
        e(f"s_mul_i32 s33, s35, {3584*4}\ns_mul_i32 s34, s{sCB}, 896\ns_add_u32 s33, s33, s34\ns_add_u32 s33, s33, {WS_CS2}")
        if WARM4:
            e(f"s_and_b32 s36, s35, 15\ns_mul_i32 s36, s36, {4*7168}\ns_mul_i32 s37, s{sCB}, 448\ns_and_b32 s37, s37, {hex(0xffffff80)}\ns_add_u32 s36, s36, s37")
            e(f"v_bfe_u32 v8, v1, 2, 2\nv_mul_u32_u24 v8, 7168, v8\nv_and_b32 v9, 3, v1\nv_lshl_add_u32 v8, v9, 7, v8\ns_mov_b32 s37, {(G4.korder[1]-G4.korder[0])*64*7168}\nv_mul_lo_u32 v9, v3, s37\nv_add_u32 v8, v8, v9")
            assert G4.korder[0] == 0 and G4.korder[2] == 2 * G4.korder[1]
            H.at(CS2AT - 1)
            e(f"buffer_load_dword v244, v8, {s(SB,4)}, s36 offen"); Q.add("warm")
        H.at(CS2AT)
        for j in range(3):
            for i in range(4):
                e(f"s_add_u32 s31, s32, {8*7168*i}\nbuffer_load_dwordx4 {v(CSR+4*(4*j+i),4)}, v6, {s(SB,4)}, s31 offen offset:{128*j}")
            Q.add(("w", j), 4)
        for i in range(2):
            e(f"s_add_u32 s31, s32, {16*7168*i}\nbuffer_load_dwordx4 {v(CSR+48+4*i,4)}, v5, {s(SB,4)}, s31 offen offset:384")
        Q.add(("w", 3), 2)
        if BTAIL:
            H.at(BT0); G4.issue_b(Q, 0)
            H.at(13); G4.issue_b(Q, 1)
    H.emit(17, 40, 1, every=3, pf_to=CS2AT, cw=(14,) if CWARM > 1 else ())
    pf_stamp(ST)
    for j in range(4):
        Q.wait(("w", j))
        colsum_block(j, CSR + 16 * j, 4 if j < 3 else 2, (8,) if j < 3 else (4, 8))
    pf_until_ep(2)
    if BSEEN:
        for j in range(4): colsum_store(Q, j, 33, 8 if j < 3 else 4, "st2")
        if BSEEN == 2: G4.issue_b(Q, 1)
        e(f"v_mov_b32 v12, {L_FULL}")
        lds_wait(12, 1, vFV, sleep=1)
        if BSEEN == 1: G4.issue_b(Q, 1)
    else:
        if not BLATE:
            for st in ((2,) if BTAIL else (1, 2)): G4.issue_b(Q, st)
        for j in range(4): colsum_store(Q, j, 33, 8 if j < 3 else 4, "st2")
    ST("cs2_pub")
    if BTAIL: Q.wait(0)
    if TWO: return helper4_two(ST, Q)
    with HStream() as H:
        e(f"s_lshl_b32 s36, s{sRB}, 11\ns_add_u32 s36, s36, {WS_F3}\ns_lshr_b32 s37, s{sR}, 1\ns_min_u32 s37, s37, 13\ns_lshl_b32 s37, s37, 11\ns_add_u32 s37, s37, {WS_F3}")
        H.at(0)
        if BSEEN:
            H.atomic(lambda: G4.issue_b(Q, 2), 0)
            Q.wait(1)
            H.at(1)
        Q.wait(2)
        e("v_lshrrev_b32 v240, 2, v1\nv_lshlrev_b32 v240, 7, v240\nv_and_b32 v241, 3, v1\nv_lshl_add_u32 v240, v241, 2, v240\nv_min_u32 v241, 47, v1\nv_lshlrev_b32 v241, 7, v241")
        H.at(CHKAT)
        e(f"buffer_load_dword v232, v240, {s(SWS,4)}, s36 offen sc1\nbuffer_load_dwordx4 v[234:237], v241, {s(SWS,4)}, s37 offen sc1")
        Q.add("chk", 2)
        H.at(CHKAT + 2)
        def chk():
            X = A.newlabel("ckx")
            Q.wait("chk")
            e(f"v_lshrrev_b32 v232, 1, v232\nv_and_b32 v232, v232, v236\nv_and_b32 v232, v232, v237\nv_and_b32 v234, v234, v235\nv_and_b32 v232, v232, v234\nv_and_b32 v232, 1, v232\nv_cmp_ne_u32 vcc, 1, v232\ns_cbranch_vccz {X}")
            poll("s36", 64, voff=240, mask=2, t=8, sleep=8)
            for d in range(3):
                e(f"s_add_u32 s38, s37, {2048*d}"); poll("s38", 64, voff=240, mask=1, t=8, sleep=8)
            A.label(X)
        H.atomic(chk, 10)
        e(f"v_lshlrev_b32 v11, 4, v1\ns_lshl_b32 s36, s35, 14\ns_add_u32 s36, s36, {WS_STAT}\ns_add_u32 s37, s36, 4096\ns_add_u32 s38, s36, 8192\ns_add_u32 s39, s36, 12288")
        def ldst():
            for i in range(16): e(f"buffer_load_dwordx4 {v(96+4*i,4)}, v11, {s(SWS,4)}, s{36+i//4} offen offset:{1024*(i%4)} sc1")
        if not GB: ldst()
        Q.add("stat", 16)
        e(f"s_mul_i32 s33, s{sCB}, 896\ns_mul_i32 s34, s{sWN}, 448\ns_add_u32 s33, s33, s34\ns_add_u32 s33, s33, {WS_CS2}")
        e(f"v_and_b32 v7, 31, v1\nv_lshlrev_b32 v7, 4, v7\nv_lshrrev_b32 v6, 5, v1\nv_mul_u32_u24 v6, {3584*4}, v6\nv_add_u32 v6, v6, v7")
        M28 = ((1 << 28) - 1) | (((1 << 28) - 1) << 32)
        def ld(ks=range(16)):
            for k in ks: e(f"s_add_u32 s31, s33, {k*2*3584*4}\nbuffer_load_dwordx4 {v(16+4*k,4)}, v6, {s(SWS,4)}, s31 offen sc1")
        if GB:
            H.at(GB)
            def burst():
                ldst(); set_exec(M28); ld(); e("s_mov_b64 exec, -1")
            H.atomic(burst, 0)
            H.at(GB + 1)
        else:
            for c in range(4):
                def ldc(c=c):
                    set_exec(M28); ld(range(4 * c, 4 * c + 4)); e("s_mov_b64 exec, -1")
                H.atomic(ldc, 4 * VMC)
        Q.add("cs", 16)
        Q.wait("stat")
        for h in range(2):
            e(f"v_pk_add_f32 {v(160+2*h,2)}, {v(96+2*h,2)}, {v(100+2*h,2)}")
            for i in range(2, 16): e(f"v_pk_add_f32 {v(160+2*h,2)}, {v(160+2*h,2)}, {v(96+4*i+2*h,2)}")
        for h in range(2): e(f"v_mov_b32 v{164+h}, v{160+2*h}")
        for h in range(2): e(f"v_permlane32_swap_b32 v{160+2*h}, v{164+h}")
        for h in range(2): e(f"v_add_f32 v{160+2*h}, v{160+2*h}, v{164+h}\nv_mul_f32 v{166+h}, {f32(1/32)}, v{160+2*h}\nv_mov_b32 v{168+h}, 0")
        for i in range(16):
            for h in range(2):
                r = 96 + 4 * i + 2 * h
                e(f"v_sub_f32 v{r}, v{r}, v{166+h}\nv_fma_f32 v{168+h}, v{r}, v{r}, v{168+h}")
        e(f"v_mov_b32 v13, {f32(1/32)}")
        for h in range(2): e(f"v_fma_f32 v{161+2*h}, v{168+h}, v13, v{161+2*h}\nv_mov_b32 v{164+h}, v{161+2*h}")
        for h in range(2): e(f"v_permlane32_swap_b32 v{161+2*h}, v{164+h}")
        for h in range(2):
            a_, b_ = 160 + 2 * h, 161 + 2 * h
            e(f"v_add_f32 v{b_}, v{b_}, v{164+h}")
            ln_finish(a_, b_, 1024)
            e(f"v_mul_f32 v{b_}, {f32(-LOG2E)}, v{b_}\nv_mul_f32 v{a_}, v{a_}, v{b_}\nv_sub_f32 v{a_}, 0, v{a_}")
        e(f"s_lshl_b32 s30, s{sWN}, 9\ns_add_u32 s30, s30, {L_RA}\nv_add_u32 v13, s30, v7\nds_write_b128 v13, v[160:163]")
        def fin():
            retry(ld, list(range(16, 80)), M28)
            e("s_mov_b64 exec, -1")
        H.atomic(fin, 36)
        for k in range(1, 16): e(f"v_pk_add_f32 v[16:17], v[16:17], {v(16+4*k,2)}\nv_pk_add_f32 v[18:19], v[18:19], {v(18+4*k,2)}")
        for h in range(4): e(f"v_mov_b32 v{20+h}, v{16+h}")
        for h in range(4): e(f"v_permlane32_swap_b32 v{16+h}, v{20+h}")
        e("v_pk_add_f32 v[16:17], v[16:17], v[20:21]\nv_pk_add_f32 v[18:19], v[18:19], v[22:23]")
        e(f"s_add_u32 s34, s34, {L_CS}\nv_add_u32 v7, s34, v7"); set_exec((1 << 28) - 1)
        e("ds_write_b128 v7, v[16:19]\ns_mov_b64 exec, -1\ns_waitcnt lgkmcnt(0)")
        ST("st2_in")
        H.by(16)
        if W2NT:
            H.at(W2AT)
            def w2pf():
                srd(SB, pW2, 7 * MB)
                e(f"s_lshr_b32 s36, s{sG}, 1\ns_mul_i32 s36, s36, {896*2048}\ns_lshl_b32 s37, s{sR}, 1\ns_add_u32 s37, s37, s{sWN}\ns_mul_i32 s37, s37, {56*128}\ns_add_u32 s36, s36, s37\nv_lshlrev_b32 v240, 7, v1")
                set_exec((1 << 56) - 1)
                for k in range(2): e(f"s_add_u32 s31, s36, {k*64*56*128}\nbuffer_load_dword v{244+k}, v240, {s(SB,4)}, s31 offen {W2NT.replace('none','')}")
                e("s_mov_b64 exec, -1")
            H.atomic(w2pf, 0)
    if NOH4:
        keep_ = []
        for it in H.items:
            keep_.append(it)
            if it[0] == "at" and it[1] == CHKAT: break
        if NOH4 == 2: keep_ = [it for it in H.items if not (it[0] == "g" and any("buffer_load" in l for l in it[1]) )]
        H.items = keep_
    H.emit(17, HLIM4, NPF, more=True, pf_to=14, cw=(14,) if CWARM > 1 else ())
    pf_stamp(ST)
    pf_finish()
    if RP5:
        roles_w2(); b_src_w2(); G5.p_setup_b(sWN); G5.rp_addr()
        Q.q = []
        G5.rp_load(Q, RP5, 16)
        with HStream() as H:
            for i in range(RP5):
                H.at(i + 1); H.atomic(lambda: G5.rp_drain(Q, i, 16), 0)
        H.emit(RP5 + 2, 99, 0)
    if CANARY:
        roles_w2()
        Q.q = []
        with HStream() as H:
            e(f"s_lshl_b32 s33, s{sRB}, 3\ns_add_u32 s33, s33, s{sCB}\ns_mul_i32 s34, s33, {256*KB}\ns_add_u32 s34, s34, {WS_PART}\ns_lshl_b32 s30, s{sWN}, 13\ns_add_u32 s34, s34, s30")
            e(f"s_lshl_b32 s30, s{sKS}, 14\ns_add_u32 s34, s34, s30\nv_lshlrev_b32 v2, 4, v1")
            for k in range(4): e(f"v_mov_b32 v{8+k}, -1")
            e(f"s_lshl_b32 s37, s33, 6\ns_lshl_b32 s30, s{sKS}, 4\ns_add_u32 s37, s37, s30\ns_lshl_b32 s30, s{sWN}, 3\ns_add_u32 s37, s37, s30\ns_add_u32 s37, s37, {WS_F5}")
            H.at(PFILL)
            for d in range(1, 4):
                for hb in range(2):
                    e(f"s_add_u32 s31, s{sKS}, {d}\ns_and_b32 s31, s31, 3\ns_lshl_b32 s31, s31, 16\ns_add_u32 s31, s31, s34\ns_add_u32 s31, s31, {hb*4096}")
                    for b in range(4): e(f"buffer_store_dwordx4 v[8:11], v2, {s(SWS,4)}, s31 offen offset:{b*1024} sc1")
            H.by(PFILL + 7); H.at(PFILL + 8)
            e(f"s_waitcnt vmcnt(0)\nv_mov_b32 v12, 1\nv_lshlrev_b32 v13, 2, v1\ns_mov_b64 exec, 3\nbuffer_store_dword v12, v13, {s(SWS,4)}, s37 offen sc1\ns_mov_b64 exec, -1")
        H.emit(PFILL + 10, 24, 0)
    if W2NT:
        set_exec((1 << 56) - 1)
        for k in range(2, 4): e(f"s_add_u32 s31, s36, {k*64*56*128}\nbuffer_load_dword v{244+k}, v240, {s(SB,4)}, s31 offen {W2NT.replace('none','')}")
        e("s_mov_b64 exec, -1")

def producer(ST):
    Q = VmQ()
    pf_init()
    e(f"s_cmp_eq_u32 s{sW}, 2\ns_cbranch_scc1 L_h0\ns_cmp_eq_u32 s{sW}, 3\ns_cbranch_scc1 L_h1")
    SD_ = ST.fork("D"); dma_phase1(SD_, Q)
    e("s_branch L_att")
    A.label("L_h0")
    if HPRIO: e(f"s_setprio {HPRIO}")
    SH = ST.fork("H"); helper0_phase1(SH, VmQ())
    e("s_branch L_att")
    A.label("L_h1")
    if HPRIO: e(f"s_setprio {HPRIO}")
    SH = ST.fork("H"); helper1_phase1(SH, VmQ())
    while len(SH.names) < len(SD_.names): SH.names.append("-")
    while len(SD_.names) < len(SH.names): SD_.names.append("-")
    A.label("L_att")
    e(f"s_setprio {APRIO}")
    n0 = len(SD_.names)
    neighbours_and_attention(SD_, Q)
    SH.names += SD_.names[n0:]
    e(f"s_cmp_ge_u32 s{sW}, 2\ns_cbranch_scc1 L_hrest")
    dma_rest(SD_, Q)
    SD_.flush()
    e("s_endpgm")
    A.label("L_hrest")
    e(f"s_setprio {HPRIO}")
    helper_rest(SH, VmQ())
    SH.flush()

def main():
    A.begin_kernel(KN)
    if STAMPS: e(f"{STAMP_OP} {s(sST,2)}")
    e(f"""
s_cmp_ge_u32 s2, 256
s_cbranch_scc1 L_end
s_load_dwordx16 s[48:63], s[0:1], 0
s_load_dwordx2 s[64:65], s[0:1], 64
v_lshrrev_b32 v2, 6, v0
v_and_b32 v1, 63, v0
v_readfirstlane_b32 s{sWAVE}, v2
v_lshrrev_b32 v3, 4, v1
v_and_b32 v4, 15, v1
s_and_b32 s{sG}, s2, 7
s_mov_b32 s3, 0
s_lshr_b32 s{sR}, s2, 3
s_and_b32 s{sW}, s{sWAVE}, 3
s_lshr_b32 s{sWM}, s{sW}, 1
s_and_b32 s{sWN}, s{sW}, 1
""")
    roles_p1()
    e(f"s_lshl_b32 s{sOWN}, s{sCB}, 4\ns_add_u32 s{sOWN}, s{sOWN}, s{sRB}\ns_lshl_b32 s{sOWN}, s{sOWN}, 16")
    e(f"s_add_u32 s{sROT}, s{sRB}, s{sCB}\ns_and_b32 s{sROT}, s{sROT}, {15 if ROT1 else 0}")
    e(f"s_lshl_b32 s{sBC}, s{sCB}, 7\ns_mov_b32 s{sBR}, 0\ns_lshl_b32 s{sAR}, s{sRB}, 18")
    G1.p_setup_a(); G1.p_setup_b()
    sync_regs()
    e("s_waitcnt lgkmcnt(0)")
    if STAMPS: e(f"s_mov_b32 s78, s{sST}\ns_mov_b32 s0, 0\ns_mov_b32 s1, 0")
    srd(SX, pX, 4 * MB); srd(SB, pWQKV, 6 * MB)
    if WSOFF: e(f"s_add_u32 s{pWS}, s{pWS}, {WSOFF*MB}\ns_addc_u32 s{pWS+1}, s{pWS+1}, 0")
    srd(SWS, pWS, WS_BYTES); srd(SD, pDBG, 256)
    e(f"s_cmp_lt_u32 s{sWAVE}, 4\ns_cbranch_scc1 L_cons")
    producer(Stamper("P"))
    A.label("L_end")
    e("s_endpgm")
    A.label("L_cons")
    if CPRIO: e(f"s_setprio {CPRIO}")
    consumer(Stamper("C"))
    A.lines.append(f".fill ({NCODE*8192} - (. - {KN})) / 4, 4, 0xbf810000")
    A.end_kernel(KN, 256, 102)
    A.lines = hazard.fix(A.lines)
    hdr = open("sequential_preLN__sliding_block__dense_activation_silu__prompt.s.ref").read().split("; Override launch")[0]
    hdr += f"; @launch grid=(256,1,1) block=(512,1,1) lds={LDS_BYTES}\n"
    for k, nm in STAMP_NAMES.items(): hdr += f"; stamps {k}: {' '.join(nm)}\n"
    sys.stdout.write(A.text(hdr))
main()
```

```python
import sys, struct
from asmlib import Asm
import hazard

ARGS = sys.argv[1:]
def opt(name, default):
    for a in ARGS:
        if a.startswith("--" + name + "="): return type(default)(a.split("=", 1)[1])
    return default
STAMPS = "--stamps" in ARGS
STAMP_OP = "s_memtime" if "--cyc" in ARGS else "s_memrealtime"
DPRIO = opt("dprio", 0)
FORCE = opt("force", -1)
PSLEEP = opt("psleep", 1)
GAT = opt("gat", 13); H0AT = opt("h0at", 5)
PUBN = opt("pubn", 16)
FPOS = opt("fpos", 8)
RP4 = opt("rp4", 0); RP5 = opt("rp5", 0)
CS2AT = opt("cs2at", 11)
BT0 = opt("bt0", 11)
CHKAT = opt("chkat", 3)
HLIM4 = opt("hlim4", 42)
DOTC = opt("dotc", 1.0)
NOST4 = opt("nost4", 0)
NSB3 = opt("nsb3", 11)
PF2 = opt("pf2", 4)
XAT = opt("xat", -1)
LEAK = opt("leak", 0)
TWO = opt("two", 1)
G2AT = opt("g2at", 13)
GB = opt("gb", 0)
NOH4 = opt("noh4", 0)
LOOK0 = opt("look0", 4)
LOOKN = opt("lookn", 16)
PPIPE = opt("ppipe", 0)
PS0 = opt("ps0", 0)
PW0 = opt("pw0", 1)
PW5 = opt("pw5", 0)
PSI = opt("psi", 0)
PGAP = opt("pgap", 5)
VBAR = opt("vbar", 4)
VLATE = opt("vlate", 1)
VBARP = opt("vbarp", 1)
CHAIN = opt("chain", "none").split(",")
RSP = opt("rsp", 0.75)
LEVELS = opt("levels", 1)
LFIRST = opt("lfirst", 0)
HLT = opt("hlt", 1)
BTAIL = opt("btail", 0)
F5W = opt("f5w", 1)
CPRIO = opt("cprio", 0)
PERT = opt("pert", 0.0); PERTN = opt("pertn", 1); PERTL = opt("pertl", 1)
KFLAG = opt("kflag", 1)
SLOWPF = opt("slowpf", 1)
GATEN = {"wo": opt("g3n", 2), "w1": opt("g4n", 2)}
APK = opt("apk", 1)
AMIX = opt("amix", 0)
APRIO = opt("aprio", 0)
TAILPM = opt("tailpm", 1)
DBGOUT = opt("dbgout", -1)
CANARY = opt("canary", 0)
BSEEN = opt("bseen", 0)
PFILL = opt("pfill", 0)
ASY5 = opt("asy5", 1)
WARM4 = opt("warm4", 0)
ASYNC = opt("async", 0)
NTK = opt("ntk", 0)
TLBW = opt("tlbw", 0)
TLBG = opt("tlbg", 21)
EARLY5 = opt("early5", 1)
E5LAG = opt("e5lag", 2)
LAG = opt("lag", 1)
H1FL = opt("h1fl", "")
B1FL = opt("b1fl", "")
W2NT = opt("w2nt", "")
W2AT = opt("w2at", 14)
KORD = opt("kord", 1)
CWARM = opt("cwarm", 1)
NCODE = opt("ncode", 12)
TAILD = opt("taild", 0)
TOUCH4 = opt("touch4", 0)
HB = [int(x) for x in opt("hb", "3,5,7").split(",")]
DOT = opt("dot", 1)
PFH = opt("pfh", 0)
PFD0 = opt("pfd0", 3)
BEARLY = opt("bearly", 0)
BLATE = opt("blate", 0)
B3LATE = opt("b3late", 0)
KVFL = opt("kvfl", "sc1")
FINE = opt("fine", 1)
G4AT = opt("g4at", 9)
NPF = opt("npf", 1)
PFW1 = opt("pfw1", 0)
PFBUB = opt("pfbub", 0)
DST = opt("dst", "")
DW = eval(opt("dw", "()")); DB = eval(opt("db", "(0,1,2,3,4,5,6,7,8,9,10,12,14)"))
VMC = opt("vmc", 5)
PRE0 = opt("pre0", 999)
DBGH = opt("dbgh", 0)
P1G = opt("p1g", 2)
HLIM = opt("hlim", 120)
HPRIO = opt("hprio", 0)
SENT = 0xFFFFFFFF
SKIP = opt("skip", "att_v,p_flag").split(",")
ROT1 = opt("rot1", 0); ROT3 = opt("rot3", 0); ROT4 = opt("rot4", 0)
BAR = opt("bar", 0)
NS1 = opt("ns1", 3)
ALIAS = opt("alias", 1)
TESTH1 = opt("testh1", 0)
TFL = opt("tfl", "nt")
TOUCH = opt("touch", 0)
LFL = opt("lfl", "").replace("_", " ")
PFL = opt("pfl", "sc1").replace("_", " ")
OFL = opt("ofl", "").replace("_", " ")
TS = opt("ts", 0)
SPFON = opt("spf", 1)
PFB = opt("pfb", 6)
MAP1 = opt("map1", 162)
WAKE = opt("wake", 0)
LCAP = opt("lcap", 10)
SPREAD = opt("spread", 0.8)
DPOS = opt("dpos", 0.25)
NOSY = opt("nosy", "")
EARLY = opt("early", 1)
DSLEEP = opt("dsleep", 1)
ONLY = opt("only", 0)
NOLOAD = opt("noload", "")
NOMFMA = opt("nomfma", 0)
KN = "sequential_preLN__sliding_block__dense_activation_silu__prompt_kernel"
SPLIT = 4

MB = 1 << 20; KB = 1024
WS_AR, WS_H, WS_AR2 = 0, 20 * MB, 24 * MB
AR_K, AR_V, AR_O = 0, 16 * KB, 32 * KB
WS_STAT = 40 * MB
WS_CS1 = 41 * MB
WS_CS2 = 41 * MB + 256 * KB
WS_RA = 41 * MB + 768 * KB
WS_RB = WS_RA + 8 * KB
WS_F1 = 41 * MB + 896 * KB
WS_F2 = WS_F1 + 4 * KB; WS_F3 = WS_F2 + 8 * KB; WS_F4 = WS_F3 + 4 * KB; WS_F5 = WS_F4 + 4 * KB
WS_F6 = WS_F5 + 8 * KB; WS_F7 = WS_F6 + 2 * KB; WS_F8 = WS_F7 + 1 * KB
WS_F5W = 42 * MB
WS_HL = 44 * MB
WS_F3L = WS_F8
WS_F2 = 42 * MB + 256 * KB; WS_F3 = WS_F2 + 32 * KB
WS_K2 = 42 * MB + 384 * KB
WS_CF = WS_K2 + 32 * KB
WS_DBG = 48 * MB
WS_PART = 52 * MB
WSOFF = opt("wsoff", 0)
WS_BYTES = (256 - WSOFF) * MB
LOG2E = 1.4426950408889634
LDS_BYTES = 160 * KB
MISC = LDS_BYTES - 6 * KB
L_RA, L_CS = MISC, MISC + 1024
L_DONE, L_FULL, L_HD, L_EP = MISC + 2048, MISC + 3072, MISC + 4096, MISC + 5120
L_MODE = L_HD + 512
vDW, vFR, vCNT, vFV = 252, 253, 254, 255
SPIN_MAX = 1 << 16
LSPIN_MAX = 1 << 22

def f32(x): return "0x%08x" % struct.unpack("<I", struct.pack("<f", x))[0]
def v(a, n=1): return f"v{a}" if n == 1 else f"v[{a}:{a+n-1}]"
def s(a, n=1): return f"s{a}" if n == 1 else f"s[{a}:{a+n-1}]"

SX, SWS, SB, SD = 4, 8, 12, 16
sWAVE, sW, sG, sR, sRB, sCB, sBC, sBH, sWM, sWN = 20, 21, 22, 23, 24, 25, 26, 27, 28, 29
pX, pWQKV, pWO, pW1, pW2, pOUT, pDBG, pWS = 48, 50, 52, 56, 58, 60, 62, 64
sMODE = 54; sT0 = 55
sAR, sBR, sM0A, sM0B, sM0H, sKS, sCNT, sNEED, sC0 = 66, 67, 68, 69, 70, 71, 72, 73, 74
sST = 76
sOWN, sROT, sAK, sBK = 60 + 40, 60 + 41, 98, 99


A = Asm()
def e(t): A.e(t)
STAMP_NAMES = {}
class Stamper:
    def __init__(self, role): self.role = role; self.names = ["start"]
    def __call__(self, name):
        if not STAMPS: return
        if name in SKIP: return
        n = len(self.names)
        assert n < 19, self.names
        e(f"{STAMP_OP} {s(sST,2)}\ns_waitcnt lgkmcnt(0)\ns_mov_b32 s{78+n}, s{sST}")
        self.names.append(name)
    def fork(self, role):
        t = Stamper(role); t.names = list(self.names); return t
    def flush(self):
        if not STAMPS: return
        self("end")
        n = len(self.names); self.names.append("nslow")
        e(f"s_mul_i32 s0, s0, {1000 if STAMP_OP == 's_memtime' else 100}\ns_add_u32 s{78+n}, s78, s0")
        STAMP_NAMES[self.role] = self.names
        e("s_waitcnt vmcnt(0)")
        for i in range(24): e(f"v_mov_b32 v{8+i}, s{78+min(i,len(self.names)-1)}")
        e(f"s_lshl_b32 s30, s2, 10\ns_lshl_b32 s31, s{sWAVE}, 7\ns_add_u32 s30, s30, s31\ns_add_u32 s30, s30, {WS_DBG}")
        e("v_mov_b32 v2, 0\ns_mov_b64 exec, 1")
        for i in range(6): e(f"buffer_store_dwordx4 {v(8+4*i,4)}, v2, {s(SWS,4)}, s30 offen offset:{16*i}")
        e("s_mov_b64 exec, -1")
        if DBGOUT >= 0 and self.role == "C":
            L = A.newlabel("nodbg")
            e(f"s_cmp_lg_u32 s2, {DBGOUT}\ns_cbranch_scc1 {L}\ns_cmp_lg_u32 s{sWAVE}, 0\ns_cbranch_scc1 {L}")
            srd(SD, pDBG, 256)
            for i in range(16): e(f"v_sub_u32 v{40+i}, v{8+2+i}, v8")
            e("s_mov_b64 exec, 1")
            for i in range(4): e(f"buffer_store_dwordx4 {v(40+4*i,4)}, v2, {s(SD,4)}, 0 offen offset:{16*i} sc1")
            e("s_mov_b64 exec, -1")
            A.label(L)

class VmQ:
    def __init__(self): self.q = []
    def add(self, tag, n=1): self.q += [tag] * n
    def has(self, tag): return tag in self.q
    def after(self, tag):
        if tag not in self.q: return 99
        return len(self.q) - 1 - max(i for i, t in enumerate(self.q) if t == tag)
    def wait(self, tag):
        if tag not in self.q: return
        n = self.after(tag)
        assert n <= 63, n
        e(f"s_waitcnt vmcnt({n})")
        self.q = self.q[len(self.q) - n:]
    def wait_all(self):
        e("s_waitcnt vmcnt(0)"); self.q = []

def set_exec(mask):
    if mask == (1 << 64) - 1: e("s_mov_b64 exec, -1")
    elif mask <= 64: e(f"s_mov_b64 exec, {mask}")
    else: e(f"s_mov_b32 exec_lo, {hex(mask & 0xffffffff)}\ns_mov_b32 exec_hi, {hex(mask >> 32)}")
def srd(d, base, nbytes):
    e(f"s_mov_b32 s{d}, s{base}\ns_and_b32 s{d+1}, s{base+1}, 0xffff\ns_mov_b32 s{d+2}, {nbytes}\ns_mov_b32 s{d+3}, 0x20000")
def xg_multi(op, regs, tmps):
    for sw in ("v_permlane16_swap_b32", "v_permlane32_swap_b32"):
        for r, t in zip(regs, tmps): e(f"v_mov_b32 v{t}, v{r}")
        for r, t in zip(regs, tmps): e(f"{sw} v{r}, v{t}")
        for r, t in zip(regs, tmps): e(f"{op} v{r}, v{r}, v{t}")
def round_bf16(r): e(f"v_cvt_pk_bf16_f32 v{r}, v{r}, v{r}\nv_and_b32 v{r}, 0xffff0000, v{r}")
def ln_finish(vsum, vm2, n):
    e(f"v_mul_f32 v{vsum}, {f32(1.0/n)}, v{vsum}"); round_bf16(vsum)
    e(f"v_mul_f32 v{vm2}, {f32(1.0/n)}, v{vm2}"); round_bf16(vm2)
    e(f"v_add_f32 v{vm2}, {f32(1e-5)}, v{vm2}"); round_bf16(vm2)
    e(f"v_sqrt_f32 v{vm2}, v{vm2}"); round_bf16(vm2)
    e(f"v_rcp_f32 v{vm2}, v{vm2}")
def pack(dst, c0, c1):
    e(f"v_cvt_pk_bf16_f32 v{dst}, v{c0}, v{c0+1}\nv_cvt_pk_bf16_f32 v{dst+1}, v{c0+2}, v{c0+3}")
    e(f"v_cvt_pk_bf16_f32 v{dst+2}, v{c1}, v{c1+1}\nv_cvt_pk_bf16_f32 v{dst+3}, v{c1+2}, v{c1+3}")
def unpack(lo, src): e(f"v_lshlrev_b32 v{lo}, 16, v{src}\nv_and_b32 v{lo+1}, 0xffff0000, v{src}")

def set_flag(soff, st="sc1", val=1, t=5):
    e(f"v_mov_b32 v{t}, 0\nv_mov_b32 v{t+1}, {val}\ns_mov_b64 exec, 1\nbuffer_store_dword v{t+1}, v{t}, {s(SWS,4)}, s{soff} offen {st}\ns_mov_b64 exec, -1")

def poll(soff, nlanes, voff=None, x2=False, srd_=SWS, mask=1, t=8, sleep=None):
    L = A.newlabel("poll"); X = A.newlabel("pollx")
    if voff is None:
        e(f"v_lshlrev_b32 v{t+2}, {3 if x2 else 2}, v1"); voff = t + 2
    if nlanes < 64: set_exec((1 << nlanes) - 1)
    e(f"s_mov_b32 s{sCNT}, 0")
    A.label(L)
    if x2: e(f"buffer_load_dwordx2 {v(t,2)}, v{voff}, {s(srd_,4)}, {soff} offen sc1")
    else: e(f"buffer_load_dword v{t}, v{voff}, {s(srd_,4)}, {soff} offen sc1")
    e(f"s_add_u32 s{sCNT}, s{sCNT}, 1\ns_cmp_gt_u32 s{sCNT}, {SPIN_MAX}\ns_waitcnt vmcnt(0)\ns_cbranch_scc1 {X}")
    if x2: e(f"v_and_b32 v{t}, v{t}, v{t+1}")
    e(f"v_and_b32 v{t}, {mask}, v{t}\nv_cmp_ne_u32 vcc, {mask}, v{t}")
    e(f"s_cbranch_vccz {X}\ns_sleep {PSLEEP if sleep is None else sleep}\ns_branch {L}")
    A.label(X)
    e("s_mov_b64 exec, -1")

sRDY = 40
def flags_refresh(Q, soff, voff, x2, shift=None):
    if flags_refresh.pending and not Q.has("look"):
        if x2: e("v_and_b32 v14, v14, v15")
        if shift: e(f"v_lshrrev_b32 v14, v{shift}, v14")
        e(f"v_and_b32 v14, 1, v14\nv_cmp_ne_u32 vcc, 1, v14\ns_and_b64 {s(sRDY,2)}, {s(sRDY,2)}, vcc")
        flags_refresh.pending = False
    if not flags_refresh.pending:
        e(f"s_cmp_eq_u64 {s(sRDY,2)}, 0\ns_cselect_b32 s30, {WS_BYTES}, s{soff}")
        e(f"buffer_load_dwordx2 v[14:15], v{voff}, {s(SWS,4)}, s30 offen sc1" if x2 else f"buffer_load_dword v14, v{voff}, {s(SWS,4)}, s30 offen sc1")
        Q.add("look"); flags_refresh.pending = True
flags_refresh.pending = False
def need_flags(bits, soff, voff, x2, shift=None, pipe=False, look=None):
    L, X = A.newlabel("nf"), A.newlabel("nfx")
    lo, hi = bits & 0xffffffff, bits >> 32
    def test():
        if lo and hi: e(f"s_and_b32 s30, s{sRDY}, {hex(lo)}\ns_and_b32 s31, s{sRDY+1}, {hex(hi)}\ns_or_b32 s30, s30, s31")
        elif lo: e(f"s_and_b32 s30, s{sRDY}, {hex(lo)}")
        else: e(f"s_and_b32 s30, s{sRDY+1}, {hex(hi)}")
    if pipe:
        R = [16, 18, 20]
        ld = lambda r: e(f"buffer_load_dwordx2 {v(r,2)}, v{voff}, {s(SWS,4)}, s{soff} offen sc1" if x2 else f"buffer_load_dword v{r}, v{voff}, {s(SWS,4)}, s{soff} offen sc1")
        ld(R[0]); e(f"s_sleep {PGAP}"); ld(R[1]); e(f"s_sleep {PGAP}")
        A.label(L)
        for i in range(3):
            ld(R[(i + 2) % 3]); e("s_waitcnt vmcnt(2)")
            r = R[i]
            if x2: e(f"v_and_b32 v8, v{r}, v{r+1}\nv_and_b32 v8, 1, v8")
            else: e(f"v_and_b32 v8, 1, v{r}")
            e(f"v_cmp_ne_u32 {s(sRDY,2)}, 1, v8")
            test()
            e(f"s_cbranch_scc0 {X}")
        e(f"s_add_u32 s{sCNT}, s{sCNT}, 1\ns_cmp_lt_u32 s{sCNT}, {SPIN_MAX}\ns_cbranch_scc1 {L}")
        A.label(X)
        return
    test()
    e(f"s_cbranch_scc0 {X}")
    A.label(L)
    if look: set_exec(look)
    if x2: e(f"buffer_load_dwordx2 v[8:9], v{voff}, {s(SWS,4)}, s{soff} offen sc1\ns_waitcnt vmcnt(0)\nv_and_b32 v8, v8, v9")
    else: e(f"buffer_load_dword v8, v{voff}, {s(SWS,4)}, s{soff} offen sc1\ns_waitcnt vmcnt(0)")
    if shift: e(f"v_lshrrev_b32 v8, v{shift}, v8")
    e(f"v_and_b32 v8, 1, v8\nv_cmp_ne_u32 {s(sRDY,2)}, 1, v8")
    if look: e(f"s_orn2_b64 {s(sRDY,2)}, {s(sRDY,2)}, exec\ns_mov_b64 exec, -1")
    e(f"s_add_u32 s{sCNT}, s{sCNT}, 1\ns_cmp_gt_u32 s{sCNT}, {SPIN_MAX}\ns_cbranch_scc1 {X}")
    test()
    if PSI and not shift: e(f"s_cbranch_scc0 {X}\ns_sleep {PSI}\ns_branch {L}")
    else: e(f"s_cbranch_scc1 {L}")
    A.label(X)

def gate_k(G, k, x2):
    n0 = GATEN[G.name]
    if k == 0 and PS0: e(f"s_sleep {PS0}")
    if k == 0 and PW0: e("s_waitcnt vmcnt(0)")
    win = lambda k0, n: sum(0xf << (4 * G.korder[j]) for j in range(k0, min(16, k0 + n)))
    if k == 0: need_flags(win(0, n0), 32, 10, x2, look=win(0, LOOK0))
    elif k >= n0: need_flags(win(k, 1), 32, 10, x2, look=win(k, LOOKN))
def spoll(srd_, soff, n16, mask, base=32):
    X = A.newlabel("spx")
    e("s_mov_b32 s31, -1")
    for k in range(2 * n16):
        e(f"s_add_u32 s30, {soff}, {32*k}\ns_buffer_load_dwordx8 {s(base,8)}, {s(srd_,4)}, s30\ns_waitcnt lgkmcnt(0)")
        for i in range(1, 4): e(f"s_and_b64 {s(base,2)}, {s(base,2)}, {s(base+2*i,2)}")
        e(f"s_and_b32 s31, s31, s{base}\ns_and_b32 s31, s31, s{base+1}")
    e(f"s_and_b32 s31, s31, {mask}\ns_cmp_eq_u32 s31, {mask}\ns_cbranch_scc1 {X}")
    poll(soff, 16 * n16, srd_=srd_, mask=mask, t=8, sleep=16)
    A.label(X)

def lds_wait(vaddr, need, vt, sleep=1, off=0):
    L = A.newlabel("lw"); X = A.newlabel("lwx")
    A.label(L)
    e(f"ds_read_b32 v{vt}, v{vaddr} offset:{off}\ns_waitcnt lgkmcnt(0)\nv_cmp_gt_u32 vcc, {need}, v{vt}\ns_cbranch_vccz {X}")
    if sleep: e(f"s_sleep {sleep}")
    e(f"s_add_u32 s3, s3, 1\ns_cmp_lt_u32 s3, {LSPIN_MAX}\ns_cbranch_scc1 {L}")
    A.label(X)
OFF_DONE, OFF_FULL, OFF_HD, OFF_EP = 0, 1024, 2048, 3072
def sync_regs():
    e(f"s_lshl_b32 s30, s{sW}, 8\ns_add_u32 s30, s30, {L_DONE}\nv_lshl_add_u32 v{vDW}, v1, 2, s30")
    e(f"v_and_b32 v{vFR}, 3, v1\nv_mul_u32_u24 v{vFR}, 260, v{vFR}\nv_add_u32 v{vFR}, {L_DONE}, v{vFR}")
def post(off, val, t=vFV):
    e(f"v_mov_b32 v{t}, {val}\nds_write_b32 v{vDW}, v{t} offset:{off}")
def wait_rows(off, need, sleep=1): lds_wait(vFR, need, vFV, sleep=sleep, off=off)

class Gemm:
    PA, PB, PH = 232, 236, 240
    def __init__(self, name, base, TM, TN, NK, NS, KBsrc, ldb, kperm, araw=False, NSB=None, bslot=None, RP=0, alay="rt"):
        self.alay = "raw" if araw else alay
        self.name, self.base, self.TM, self.TN, self.NK, self.NS = name, base, TM, TN, NK, NS
        self.KB, self.ldb, self.kperm, self.araw, self.RP = KBsrc, ldb, kperm, araw, RP
        self.NSB = NSB or NS
        self.MT, self.NT = TM // 32, TN // 32
        self.nfull, self.half = TN // 64, (TN % 64) != 0
        self.a_stage = TM * 128
        b0 = NS * self.a_stage
        self.b0 = b0
        self.b_base = [b0 + j * self.NSB * 8192 for j in range(self.nfull)]
        self.h_base = b0 + self.nfull * self.NSB * 8192
        self.b_sp, self.h_sp, self.b_bs = 8192, 4096, self.NSB * 8192
        if name == "w1" and BTAIL:
            self.b_base = [64 * KB + j * 8192 for j in range(3)]; self.h_base = 64 * KB + 3 * 8192
            self.b_sp = self.h_sp = 28 * KB; self.b_bs = 8192
        self.bslot = bslot or (lambda step: step % self.NSB)
        assert self.h_base + (self.NSB * 4096 if self.half else 0) <= MISC
        MT, NT = self.MT, self.NT
        self.FA = [8, 8 + 4 * MT + 4 * NT]
        self.FB = [self.FA[0] + 4 * MT, self.FA[1] + 4 * MT]
        nxt = self.FA[1] + 4 * MT + 4 * NT
        self.chain = name in CHAIN
        if self.chain:
            self.RA = [8, 8 + 8 * MT]; self.WB = 8 + 16 * MT
            nxt = self.WB + 24
        self.VA = nxt; nxt += 8 if self.alay == "bm" else 2
        self.VB = nxt; nxt += NT
        self.bhi = self.NSB * 8192 > 65536
        self.VB2 = nxt
        if self.bhi: nxt += NT
        nxt = (nxt + 3) // 4 * 4
        self.ACC = nxt; nxt += MT * NT * 4
        self.VX = nxt
        assert nxt <= vDW
        self.RTW = TM // 32
    def acc(self, mt, nt): return self.ACC + (nt * self.MT + mt) * 4
    def swapped(self, nt): return True
    def blk_delta(self, j): return 128 * j

    def c_setup(self):
        MT = self.MT
        if self.araw:
            e(f"""
s_lshl_b32 s30, s{sWM}, 13
v_lshl_add_u32 v5, v4, 7, s30
v_lshrrev_b32 v6, 1, v4
v_xor_b32 v6, v6, v3
v_lshl_add_u32 v{self.VA}, v6, 4, v5
v_xor_b32 v6, 4, v6
v_lshl_add_u32 v{self.VA+1}, v6, 4, v5
""")
        elif self.alay == "bm":
            for p in range(4):
                e(f"s_add_u32 s30, s{sKS}, {p}\ns_and_b32 s30, s30, 3\ns_lshl_b32 s30, s30, 11\ns_lshl_b32 s31, s{sWM}, 14\ns_add_u32 s30, s30, s31")
                e(f"v_lshl_add_u32 v{self.VA+p}, v1, 4, s30\nv_add_u32 v{self.VA+4+p}, 0x10000, v{self.VA+p}")
        else:
            e(f"s_mul_i32 s30, s{sWM}, {MT*2048}\nv_lshl_add_u32 v{self.VA}, v1, 4, s30\nv_add_u32 v{self.VA+1}, 0x10000, v{self.VA}")
        e("v_bfe_u32 v5, v1, 2, 2\nv_and_b32 v6, 3, v1")
        if self.kperm: e("v_lshl_add_u32 v7, v3, 2, v5\nv_bfe_u32 v2, v7, 1, 2")
        else: e("v_lshl_add_u32 v7, v3, 3, v5\nv_lshrrev_b32 v2, 1, v5\nv_and_b32 v8, 1, v3\nv_lshl_or_b32 v2, v8, 1, v2")
        e("v_mov_b32 v9, v7\nv_lshlrev_b32 v7, 7, v7\nv_lshl_add_u32 v7, v6, 3, v7")
        for t, (kind, blk, seg) in enumerate(self.tiles()):
            vb = self.VB + t
            if kind == "F":
                e(f"s_mul_i32 s30, s{sWN}, {seg[1]}\ns_add_u32 s30, s30, {seg[0]}")
                e(f"v_xor_b32 v8, s30, v2\nv_lshl_add_u32 v{vb}, v8, 5, v7")
                e(f"s_mul_i32 s30, s{sWN}, {blk[1]*self.b_bs}\ns_add_u32 s30, s30, {self.b_base[0] + blk[0]*self.b_bs}")
                e(f"v_add_u32 v{vb}, s30, v{vb}")
            else:
                e(f"v_bfe_u32 v8, v9, 2, 1\nv_xor_b32 v8, s{sWN}, v8\nv_lshlrev_b32 v8, 5, v8")
                e(f"v_lshl_add_u32 v8, v9, 6, v8\nv_lshl_add_u32 v8, v6, 3, v8\nv_add_u32 v{vb}, {self.h_base}, v8")
            if self.bhi: e(f"v_add_u32 v{self.VB2+t}, 0x10000, v{vb}")
        if not self.czero():
            for r in range(self.ACC, self.ACC + self.MT * self.NT * 4, 2): e(f"v_mov_b64 {v(r,2)}, 0")
    def b_read(self, step, sub, t, dst):
        kind = self.tiles()[t][0]; sb = self.bslot(step); out = []
        for hi in range(2):
            rows = 32 * sub + (16 if self.kperm else 4) * hi
            off = sb * self.b_sp + rows * 128 if kind == "F" else sb * self.h_sp + rows * 64
            base = self.VB + t
            if off > 0xffff: base, off = self.VB2 + t, off - 0x10000
            out.append(f"ds_read_b64_tr_b16 {v(dst+2*hi,2)}, v{base} offset:{off}")
        return out
    def a_read(self, step, sub, mt, dst):
        sa = step % self.NS
        if self.araw: base, off = self.VA + sub, sa * self.a_stage + mt * 2048
        elif self.alay == "bm":
            off = sa * self.a_stage + sub * 8192 + (mt & 1) * 1024
            base = self.VA + (mt >> 1) + 4 * (off >> 16); off &= 0xffff
        else:
            off = sa * self.a_stage + mt * 2048 + sub * 1024
            base = self.VA + (off >> 16); off &= 0xffff
        return f"ds_read_b128 {v(dst,4)}, v{base} offset:{off}"
    def reads(self, step, sub, fs):
        out = []
        for t in range(self.NT):
            out += self.b_read(step, sub, t, self.FB[fs] + 4 * t)
            if t == 0: out += [self.a_read(step, sub, mt, self.FA[fs] + 4 * mt) for mt in range(self.MT)]
        return out
    def czero(self): return self.chain or self.NSB != self.NS or (self.NK - 1) % self.NS != 0
    def mfmas(self, fs, zero=False):
        out = []
        for t in range(self.NT):
            for mt in (range(self.MT) if t % 2 == 0 else reversed(range(self.MT))):
                a, w, c = v(self.FA[fs] + 4 * mt, 4), v(self.FB[fs] + 4 * t, 4), v(self.acc(mt, t), 4)
                ci = "0" if zero else c
                out.append(f"v_mfma_f32_16x16x32_bf16 {c}, {w}, {a}, {ci}" if self.swapped(t) else
                           f"v_mfma_f32_16x16x32_bf16 {c}, {a}, {w}, {ci}")
        if NOMFMA: out = ["s_nop 0"] * len(out)
        return out
    def c_loop(self, ST, pre_last=None, last_fill=(), nsteps=None, after_go=None):
        NS, NK, n = self.NS, nsteps or self.NK, self.name
        def inter(m, r, extra=()):
            extra = list(extra); per = -(-len(extra) // len(m)) if extra else 0
            span = max(int(len(m) * RSP), 1) if RSP else len(r)
            pos = [min(len(m) - 1, (i * span) // len(r)) for i in range(len(r))]
            for i in range(len(m)):
                e(m[i])
                for j, p in enumerate(pos):
                    if p == i: e(r[j])
                for x in extra[i * per:(i + 1) * per]: e(x)
        def captured(f):
            saved = A.lines; A.lines = []
            if f: f()
            out = [ln for ln in A.lines if ln.strip()]; A.lines = saved
            return out
        def step(k, last=False):
            e("s_waitcnt lgkmcnt(0)")
            inter(self.mfmas(0, k == 0 and self.czero()), self.reads(k, 1, 1), captured(pre_last) if last else ())
            e("s_waitcnt lgkmcnt(0)\ns_barrier")
            inter(self.mfmas(1), list(last_fill) if last else self.reads(k + 1, 0, 0))
        if self.chain:
            return self.c_chain(ST, captured(pre_last), list(last_fill), after_go)
        e("s_barrier")
        ST(n + "_go")
        for r in self.reads(0, 0, 0): e(r)
        if after_go: after_go()
        body = NK - 1
        if self.NSB != NS:
            for k in range(body): step(k)
        else:
            k = 0
            for i in range(body % NS):
                step(k); k += 1
            e(f"s_mov_b32 s{sCNT}, {body // NS}")
            A.label(f"{n}_cloop")
            for i in range(NS):
                step(k); k += 1
            e(f"s_sub_u32 s{sCNT}, s{sCNT}, 1\ns_cmp_lg_u32 s{sCNT}, 0\ns_cbranch_scc1 {n}_cloop")
        step(NK - 1, last=True)
        if not nsteps: ST(n + "_end")

    def free_set(self): return self.RA[self.NK & 1]
    def c_chain(self, ST, pre_last, last_fill, after_go):
        MT, NT, NK = self.MT, self.NT, self.NK
        q = []
        def rd(tag, ins):
            e(ins); q.append(tag)
        def wait(tag):
            if tag in q:
                k_ = min(len(q) - 1 - max(i for i, t in enumerate(q) if t == tag), 14)
                e(f"s_waitcnt lgkmcnt({k_})"); del q[:len(q) - k_]
        slot = lambda k, t: self.WB + 8 * ((k * NT + t) % 3)
        wr = lambda k, t: [(("W", k, t), x) for sub in range(2) for x in self.b_read(k, sub, t, slot(k, t) + 4 * sub)]
        rr = lambda k, m: [(("R", k, m), self.a_read(k, sub, m, self.RA[k & 1] + 8 * m + 4 * sub)) for sub in range(2)]
        e("s_barrier")
        ST(self.name + "_go")
        for x in wr(0, 0) + [y for m in range(MT) for y in rr(0, m)] + wr(0, 1): rd(*x)
        if after_go: after_go()
        for k in range(NK):
            last = k == NK - 1
            for t in range(NT):
                side = []
                if t + 2 < NT: side = wr(k, t + 2)
                if t == NT - 2:
                    e("s_waitcnt lgkmcnt(0)\ns_barrier"); q.clear()
                if t >= NT - 2:
                    h = t - (NT - 2)
                    if last:
                        n2 = (len(last_fill) + 1) // 2
                        side = [("F", x) for x in last_fill[h * n2:(h + 1) * n2]]
                    else:
                        mo = list(range(MT))
                        side = (wr(k + 1, 0) + rr(k + 1, 0) + rr(k + 1, 1)) if h == 0 else (rr(k + 1, 2) + rr(k + 1, 3) + wr(k + 1, 1))
                extra = []
                if last and t < NT - 2:
                    per = -(-len(pre_last) // (NT - 2)); extra = pre_last[t * per:(t + 1) * per]
                wait(("W", k, t))
                order = range(MT) if t % 2 == 0 else reversed(range(MT))
                i = 0; nm = 2 * MT
                for m in order:
                    wait(("R", k, m))
                    for sub in range(2):
                        a, w, c = v(self.RA[k & 1] + 8 * m + 4 * sub, 4), v(slot(k, t) + 4 * sub, 4), v(self.acc(m, t), 4)
                        ci = "0" if k == 0 and sub == 0 else c
                        e(f"v_mfma_f32_16x16x32_bf16 {c}, {w}, {a}, {ci}" if self.swapped(t) else f"v_mfma_f32_16x16x32_bf16 {c}, {a}, {w}, {ci}")
                        ps = -(-len(side) // nm)
                        for x in side[i * ps:(i + 1) * ps]: rd(*x)
                        pe = -(-len(extra) // nm)
                        for x in extra[i * pe:(i + 1) * pe]: e(x)
                        i += 1
        ST(self.name + "_end")

    def p_setup_b(self, w=sW):
        ldb, PB = self.ldb, self.PB
        e(f"""
s_lshl_b32 s{sM0B}, s{w}, 12
s_lshl_b32 s{sM0H}, s{w}, 11
v_lshrrev_b32 v246, 3, v1
s_lshl_b32 s30, s{w}, 5
v_add_u32 v246, s30, v246
v_mul_u32_u24 v246, {ldb}, v246
v_and_b32 v247, 1, v1
v_lshl_add_u32 v246, v247, 4, v246
v_add_u32 v246, s{sBC}, v246
v_bfe_u32 v247, v1, 1, 2
""")
        if self.kperm:
            e(f"v_xor_b32 v245, v247, v3\nv_lshl_add_u32 v{PB}, v245, 5, v246\nv_add_u32 v{PB+1}, {8*ldb-1024}, v{PB}")
        else:
            e(f"v_and_b32 v245, 1, v3\nv_xor_b32 v245, v247, v245\nv_lshl_add_u32 v{PB}, v245, 5, v246")
            e(f"v_xor_b32 v245, 2, v245\nv_lshl_add_u32 v{PB+1}, v245, 5, v246\nv_add_u32 v{PB+1}, {8*ldb-1024}, v{PB+1}")
        e(f"v_add_u32 v{PB+2}, {16*ldb-2048}, v{PB}\nv_add_u32 v{PB+3}, {16*ldb-2048}, v{PB+1}")
        if self.half:
            e(f"""
v_lshrrev_b32 v246, 2, v1
v_add_u32 v246, s30, v246
v_mul_u32_u24 v246, {ldb}, v246
v_and_b32 v247, 1, v1
v_lshl_add_u32 v246, v247, 4, v246
v_add_u32 v246, s{sBH}, v246
v_bfe_u32 v247, v1, 1, 1
v_and_b32 v245, 1, v3
v_xor_b32 v245, v247, v245
v_lshl_add_u32 v{self.PH}, v245, 5, v246
v_add_u32 v{self.PH+1}, {16*ldb-1024}, v{self.PH}
""")
    def p_setup_a(self):
        PA = self.PA
        if self.araw:
            e(f"""
s_lshl_b32 s{sM0A}, s{sW}, 13
v_lshrrev_b32 v246, 3, v1
s_lshl_b32 s30, s{sW}, 6
v_add_u32 v246, s30, v246
v_lshlrev_b32 v246, 11, v246
v_and_b32 v247, 7, v1
v_xor_b32 v247, v247, v3
v_lshl_add_u32 v{PA}, v247, 4, v246
v_xor_b32 v247, 4, v247
v_lshl_add_u32 v{PA+1}, v247, 4, v246
v_add_u32 v{PA+1}, {8*2048-1024}, v{PA+1}
v_add_u32 v{PA+2}, {16*2048-2048}, v{PA}
v_add_u32 v{PA+3}, {16*2048-2048}, v{PA+1}
""")
        else:
            e(f"s_mul_i32 s{sM0A}, s{sW}, {self.RTW*2048}\ns_mul_i32 s30, s{sW}, {self.RTW*self.KB*1024}\nv_lshl_add_u32 v{PA}, v1, 4, s30")
            e(f"v_add_u32 v{PA+1}, {self.KB*1024-2048}, v{PA}")
    astride = 2048
    rot = True
    arot = True
    korder = list(range(16))
    def kbase(self, dst, base, step, stride):
        e(f"s_add_u32 s{dst}, s{base}, {self.korder[step] * stride}")
    def a_src(self, i, step): e(f"s_add_u32 s31, s{sAK}, {2*i*self.KB*1024}")
    def groups_a(self, step):
        st = step % self.NS
        out = []
        for gi in range(self.RTW // 2):
            def fn(gi=gi):
                if gi == 0 and self.arot: self.kbase(sAK, sAR, step, 128 if self.araw else self.astride)
                e(f"s_add_u32 m0, s{sM0A}, {st*self.a_stage + gi*4096}")
                if self.araw:
                    e(f"s_add_u32 s31, s{sAK}, {gi*32*2048}")
                    for i in range(4): e(f"buffer_load_dwordx4 v{self.PA+i}, {s(SX,4)}, s31 offen offset:{i*1024} lds")
                else:
                    self.a_src(gi, step)
                    for i in range(4): e(f"buffer_load_dwordx4 v{self.PA+(i>>1)}, {s(SWS,4)}, s31 offen offset:{i*1024} sc1 lds")
            out.append((step, 4, fn))
        return out
    def b_parts(self, step):
        sb = self.bslot(step); ko = 0 if self.rot else step * 64 * self.ldb
        out = [(sM0B, self.b_base[j] + sb * self.b_sp, ko + self.blk_delta(j), self.PB, 4) for j in range(self.nfull)]
        if self.half: out.append((sM0H, self.h_base + sb * self.h_sp, ko, self.PH, 2))
        return out
    def groups_b(self, step):
        out = []
        for idx, (m0s, lc, sc, vb, n) in enumerate(self.b_parts(step)):
            def fn(m0s=m0s, lc=lc, sc=sc, vb=vb, n=n, idx=idx):
                if idx == 0 and self.rot: self.kbase(sBK, sBR, step, 64 * self.ldb)
                e(f"s_add_u32 m0, s{m0s}, {lc}\ns_add_u32 s31, s{sBK if self.rot else sBR}, {sc}")
                for i in range(n): e(f"buffer_load_dwordx4 v{vb+i}, {s(SB,4)}, s31 offen offset:{i*1024} {'nt' if self.name == 'qkv' and step < 2 * NTK else ''} lds")
            out.append((step, n, fn))
        return out
    def issue_b(self, Q, step):
        for tag, n, fn in self.groups_b(step):
            fn(); Q.add(tag, n)
    def p_loop(self, Q, ST, b_pre, npf=0, every=1, gate=None, tail=None, look=None, merge=False):
        NS, NK, NSB = self.NS, self.NK, self.NSB
        def iss(g):
            for tag, n, fn in g:
                fn(); Q.add(tag, n)
        ga = lambda k: ([(k, 0, lambda: gate(k))] if gate else []) + self.groups_a(k)
        def gr(k):
            kb = k - NS + NSB
            return (self.groups_b(kb) if b_pre <= kb < NK else []) + ga(k)
        first = lambda k: (self.groups_b(k) if k >= b_pre else []) + ga(k)
        if gate: e(f"s_mov_b64 {s(sRDY,2)}, -1\ns_mov_b32 s{sCNT}, 0")
        flags_refresh.pending = False
        iss(first(0))
        if gate: ST(self.name + "_seen")
        if BSEEN and self.name == "w1": post(OFF_FULL, 1)
        g1 = first(1)
        P1G_ = (99 if GATEN.get(self.name, 2) > 1 else 0) if gate else P1G
        iss(g1[:P1G_])
        for i in range(NK):
            if merge and i == NK - 2:
                Q.wait(NK - 1); e("s_barrier"); return
            Q.wait(i)
            if self.name == DST and i in DW: ST(f"w{i}")
            e("s_barrier")
            if self.name == DST and i in DB: ST(f"b{i}")
            if look and (ASYNC or self.name == 'w2') and i in look[0]: flags_refresh(Q, *look[1])
            if i == 0:
                iss(g1[P1G_:])
                for k in range(2, NS): iss(first(k))
            elif i - 1 + NS < NK: iss(gr(i - 1 + NS))
            if tail and i - 1 + NS == NK - 1 + TAILD: tail()
            if (self.name == "qkv" and i == 0) or (CWARM > 1 and i == NK - 2): code_warm()
            if self.name == "qkv" and i == 2: tlb_warm()
            if npf and (PFD0 if self.name == 'qkv' else 1) <= i < NK - 2 and i % every == 0: pf_step(npf + (1 if self.name == 'w1' and i % 3 != 0 else 0))
        e("s_barrier")
        ST(self.name + "_dend")

    def rp_regs(self, i, r0): return r0 + i * (16 * self.nfull + (8 if self.half else 0))
    def rp_load(self, Q, n, r0):
        for i in range(n):
            r = self.rp_regs(i, r0)
            for idx, (m0s, lc, sc, vb, k_) in enumerate(self.b_parts(self.NS + i)):
                if idx == 0: self.kbase(sBK, sBR, self.NS + i, 64 * self.ldb)
                e(f"s_add_u32 s31, s{sBK}, {sc}")
                for k in range(k_):
                    e(f"buffer_load_dwordx4 {v(r,4)}, v{vb+k}, {s(SB,4)}, s31 offen offset:{k*1024}"); r += 4
                Q.add(("rp", i), k_)
            assert r <= 232
    def rp_addr(self):
        b0 = self.b_base[0]
        e(f"v_lshlrev_b32 v245, 4, v1\nv_add_u32 v246, s{sM0H}, v245\nv_add_u32 v245, s{sM0B}, v245\nv_add_u32 v245, {b0}, v245\nv_add_u32 v247, 0x10000, v245\nv_add_u32 v246, {self.h_base}, v246")
    def rp_drain(self, Q, i, r0):
        Q.wait(("rp", i))
        r = self.rp_regs(i, r0)
        for m0s, lc, sc, vb, k_ in self.b_parts(self.NS + i):
            for k in range(k_):
                if m0s == sM0B:
                    off = lc - self.b_base[0] + k * 1024; a = 245
                    if off > 0xffff: off -= 0x10000; a = 247
                else: off = lc - self.h_base + k * 1024; a = 246
                e(f"ds_write_b128 v{a}, {v(r,4)} offset:{off}"); r += 4
        e("s_waitcnt lgkmcnt(0)")

class QKV(Gemm):
    def __init__(self): super().__init__("qkv", 0, 128, 192, 16, NS1, 32, 6144, False, araw=True)
    def tiles(self): return [("F", (t >> 1, 0), (t & 1, 2)) for t in range(6)]
    def swapped(self, nt): return nt < 4
    def blk_delta(self, j): return 2048 * j
class WO(Gemm):
    def __init__(self): super().__init__("wo", 16, 128, 64, 16, 4, 32, 2048, True, NSB=NSB3, bslot=lambda k: (k + 5) % NSB3)
    def tiles(self): return [("F", (0, 0), (t, 2)) for t in range(2)]
    def p_setup_a(self):
        e(f"s_lshl_b32 s{sM0A}, s{sW}, 13\nv_lshl_add_u32 v{self.PA}, v1, 4, s{sM0A}\nv_mov_b32 v{self.PA+1}, v{self.PA}")
        e(f"s_lshl_b32 s{sAR}, s{sRB}, 16\ns_add_u32 s{sAR}, s{sAR}, {WS_AR + AR_O}")
    astride = MB
    korder = [k for k in range(16) if k % 8 != 3] + [3, 11] if KORD else list(range(16))
    def a_src(self, i, step): e(f"s_add_u32 s31, s{sAK}, {i*4096}")
class W1(Gemm):
    def __init__(self): super().__init__("w1", 32, 128, 224, 16, 3, 32, 7168, True)
    korder = list(range(0, 16, 2)) + list(range(1, 16, 2)) if KORD and not LFIRST else list(range(16))
    def kbase(self, dst, base, step, stride):
        if not LFIRST: return super().kbase(dst, base, step, stride)
        if dst == sAK and step < 4: base = sKS
        e(f"s_add_u32 s{dst}, s{sROT}, {step}\ns_and_b32 s{dst}, s{dst}, 15\ns_mul_i32 s{dst}, s{dst}, {stride}\ns_add_u32 s{dst}, s{dst}, s{base}")
    def tiles(self): return [("F", (0, 2), (t, 0)) for t in range(4)] + [("F", (1, 0), (t, 2)) for t in range(2)] + [("H", None, None)]
class W2(Gemm):
    def __init__(self): super().__init__("w2", 48, 256, 128, 14, 3, 112, 2048, True, alay="bm")
    arot = False
    def tiles(self): return [("F", (0, 1), (t, 0)) for t in range(4)]
    def p_setup_a(self):
        e(f"s_lshl_b32 s{sM0A}, s{sW}, 14\nv_lshlrev_b32 v{self.PA}, 4, v1\nv_mov_b32 v{self.PA+1}, v{self.PA}")
        h1_base(sAR)
        e(f"s_lshl_b32 s30, s{sG}, 5\ns_bfe_u32 s31, s{sRB}, 0x20001\ns_add_u32 s30, s30, s31\ns_lshl_b32 s31, s{sW}, 4\ns_add_u32 s30, s30, s31\ns_lshl_b32 s30, s30, 16\ns_add_u32 s{sAR}, s{sAR}, s30")
    def blocks(self):
        if not EARLY5: return [(q // 7, q % 7, 1) for q in range(28)]
        early = [(c, (c & 1) + k, 1) for c in range(4) for k in (0, 4, 1, 5)]
        late = [(c, kb, 2) for c in range(4) for kb in range(7) if (c, kb, 1) not in early]
        return early + late
    def a_src(self, i, step):
        c, kb, _ = self.blocks()[2 * step + (i >> 1)]
        e(f"s_add_u32 s31, s{sAR}, {c*256*KB + kb*8192 + (i&1)*4096}")
    def kbase(self, dst, base, step, stride):
        o = [(c * 7 + kb) * 32 * self.ldb for c, kb, _ in self.blocks()[2 * step:2 * step + 2]]
        e(f"s_mul_i32 s{dst}, s{sWN}, {o[1] - o[0] - 32*self.ldb}\ns_add_u32 s{dst}, s{dst}, {o[0]}\ns_add_u32 s{dst}, s{dst}, s{base}")
G1, G3, G4, G5 = QKV(), WO(), W1(), W2()
_pf = opt("pfs", "X,Pk,X").split(",")
PFS = [(_pf[0][0], _pf[0][1:], pWO, 2 * MB, True, 249), (_pf[1][0], _pf[1][1:], pW1, 1024 * 7168, False, 248), (_pf[2][0], _pf[2][1:], pW2, 3584 * 2048, False, 250)]
L_K, L_V, L_Q = 0, 48 * KB, 96 * KB

def own_arena(dst, add=0):
    e(f"s_add_u32 s{dst}, s{sOWN}, {WS_AR + add}")
def h1_base(dst):
    e(f"s_cmp_lg_u32 s{sMODE}, 0\ns_cselect_b32 s{dst}, {WS_AR2}, {WS_AR if ALIAS else WS_AR2}")
def rowmajor_voff(dst, t):
    e(f"v_and_b32 v{t}, 1, v3\nv_lshlrev_b32 v{t}, 1, v{t}\nv_lshrrev_b32 v{dst}, 1, v3\nv_or_b32 v{t}, v{t}, v{dst}")
    e(f"v_lshlrev_b32 v{t}, 4, v{t}\nv_lshl_add_u32 v{dst}, v4, 11, v{t}")
def roles_84(rb=sRB, cb=sCB):
    e(f"s_and_b32 s{rb}, s{sG}, 1\ns_lshl_b32 s{rb}, s{rb}, 3\ns_and_b32 s30, s{sR}, 7\ns_add_u32 s{rb}, s{rb}, s30")
    e(f"s_lshr_b32 s{cb}, s{sG}, 1\ns_lshl_b32 s{cb}, s{cb}, 2\ns_lshr_b32 s30, s{sR}, 3\ns_add_u32 s{cb}, s{cb}, s30")
def roles_p1(rb=sRB, cb=sCB):
    if MAP1 == 84: return roles_84(rb, cb)
    e(f"s_lshr_b32 s{rb}, s{sR}, 1\ns_and_b32 s30, s{sR}, 1\ns_lshl_b32 s{cb}, s{sG}, 1\ns_add_u32 s{cb}, s{cb}, s30")
def roles_48(rb=sRB, cb=sCB):
    if LFIRST: return roles_84(rb, cb)
    if not KORD:
        e(f"s_and_b32 s{rb}, s{sG}, 3\ns_lshl_b32 s{rb}, s{rb}, 2\ns_and_b32 s30, s{sR}, 3\ns_add_u32 s{rb}, s{rb}, s30")
        e(f"s_lshr_b32 s{cb}, s{sG}, 2\ns_lshl_b32 s{cb}, s{cb}, 3\ns_lshr_b32 s30, s{sR}, 2\ns_add_u32 s{cb}, s{cb}, s30")
        return
    e(f"s_and_b32 s{rb}, s{sG}, 3\ns_lshl_b32 s{rb}, s{rb}, 2\ns_bfe_u32 s30, s{sR}, 0x20001\ns_add_u32 s{rb}, s{rb}, s30")
    e(f"s_lshr_b32 s{cb}, s{sG}, 2\ns_lshl_b32 s{cb}, s{cb}, 2\ns_lshr_b32 s30, s{sR}, 3\ns_add_u32 s{cb}, s{cb}, s30\ns_lshl_b32 s{cb}, s{cb}, 1\ns_and_b32 s30, s{sR}, 1\ns_add_u32 s{cb}, s{cb}, s30")
def roles_w2(rb=sRB, cb=sCB, ks=sKS):
    e(f"s_and_b32 s{rb}, s{sG}, 1\ns_lshl_b32 s{rb}, s{rb}, 2\ns_and_b32 s30, s{sR}, 3\ns_add_u32 s{rb}, s{rb}, s30\ns_lshl_b32 s{rb}, s{rb}, 1")
    e(f"s_lshr_b32 s{cb}, s{sR}, 2\ns_lshr_b32 s{ks}, s{sG}, 1")
def b_src_wo(cb=sCB):
    srd(SB, pWO, 2 * MB); e(f"s_lshl_b32 s{sBC}, s{cb}, 7\ns_mov_b32 s{sBR}, 0\ns_lshl_b32 s{sROT}, s{cb}, 1\ns_and_b32 s{sROT}, s{sROT}, {15 if ROT3 else 0}")
def b_src_w1():
    srd(SB, pW1, 1024 * 7168)
    e(f"""
s_mul_i32 s{sBH}, s{sCB}, 448
s_and_b32 s30, s{sCB}, 1
s_lshl_b32 s{sBC}, s30, 6
s_add_u32 s{sBC}, s{sBC}, s{sBH}
s_xor_b32 s30, s30, 1
s_mul_i32 s30, s30, 384
s_add_u32 s{sBH}, s{sBH}, s30
s_mov_b32 s{sBR}, 0
s_and_b32 s{sROT}, s{sCB}, 12
""")
def b_src_w2():
    srd(SB, pW2, 3584 * 2048); e(f"s_lshl_b32 s{sBC}, s{sCB}, 8\ns_mul_i32 s{sBR}, s{sKS}, {G5.NK*64*2048}")
def flag_addr(dst, base, hi, lo, nw, wave):
    e(f"s_lshl_b32 s{dst}, s{hi}, 4\ns_add_u32 s{dst}, s{dst}, s{lo}\ns_mul_i32 s{dst}, s{dst}, {nw}")
    if wave is not None: e(f"s_add_u32 s{dst}, s{dst}, s{wave}")
    e(f"s_lshl_b32 s{dst}, s{dst}, 2\ns_add_u32 s{dst}, s{dst}, {base}")
WS_F4P = 42 * MB + 128 * KB
def f4_addr(dst, rb, cb, wave):
    e(f"s_lshl_b32 s{dst}, s{rb}, 2\ns_lshr_b32 s30, s{cb}, 2\ns_add_u32 s{dst}, s{dst}, s30\ns_lshl_b32 s{dst}, s{dst}, 3\ns_and_b32 s30, s{cb}, 3\ns_add_u32 s{dst}, s{dst}, s30\ns_lshl_b32 s{dst}, s{dst}, 2")
    if wave is not None: e(f"s_add_u32 s{dst}, s{dst}, s{wave}")
    e(f"s_lshl_b32 s{dst}, s{dst}, 2\ns_add_u32 s{dst}, s{dst}, {WS_F4P}")
def dual(fn, sreg):
    S, X = A.newlabel("slowst"), A.newlabel("stx")
    e(f"s_cmp_lg_u32 s{sreg}, 0\ns_cbranch_scc1 {S}")
    fn(LFL)
    e(f"s_branch {X}")
    A.label(S)
    fn("sc1")
    A.label(X)

def attn_setup():
    e(f"v_lshlrev_b32 v5, 2, v3\nv_mov_b32 v6, {f32(-1e30)}")
    for k in range(4):
        e(f"v_add_u32 v7, {k}, v5\nv_cmp_gt_u32 vcc, v7, v4\nv_cndmask_b32 v{56+k}, v6, 0, vcc\nv_cndmask_b32 v{60+k}, 0, v6, vcc".replace("v_cndmask_b32 v%d, v6, 0, vcc" % (56 + k), "v_cndmask_b32_e64 v%d, v6, 0, vcc" % (56 + k)))
    e(f"""
s_lshl_b32 s36, s{sRB}, 2
s_add_u32 s36, s36, s38
s_sub_i32 s36, 8, s36
s_max_i32 s36, s36, 0
s_mul_i32 s37, s{sWN}, 24
s_lshl_b32 s39, s38, 1
s_add_u32 s37, s37, s39
s_lshl_b32 s37, s37, 10
v_lshl_add_u32 v5, v1, 4, s37
v_add_u32 v7, {L_V}, v5
""")
    own_arena(34, AR_O)
    e(f"s_lshl_b32 s35, s38, 12\ns_add_u32 s34, s34, s35\ns_lshl_b32 s35, s{sWN}, 10\ns_add_u32 s34, s34, s35\ns_add_u32 s35, s34, 2048")
    flag_addr(33, WS_F2, sRB, sCB, 32, sWAVE)

def attention(ST, is_p, Q=None):
    n = "attp" if is_p else "attc"
    S = 64; KF = 24; VF = 24; O = 208; MX = 232
    def sr(qt, u): return S + (qt * 18 + u) * 4
    dead = lambda qt, u: (qt == 0 and u == 17) or (qt == 1 and u == 0)
    def PF(pos):
        for role, at, ptr, nbytes, rev, dst in PFS:
            if role == ("P" if is_p else "C") and at == pos:
                srd(SB, ptr, nbytes)
                e(f"s_xor_b32 s30, s2, {255 if rev else 0}\ns_lshl_b32 s30, s30, 2\ns_add_u32 s30, s30, s{sW}\ns_lshl_b32 s30, s30, 13\nv_lshlrev_b32 v251, 7, v1")
                e(f"buffer_load_dword v{dst}, v251, {s(SB,4)}, s30 offen")
                if is_p: Q.add("pf")
    PF("nb")
    if is_p: Q.wait("nk")
    e("s_waitcnt lgkmcnt(0)\ns_barrier")
    if is_p:
        e(f"s_lshl_b32 s30, s{sW}, 11\ns_add_u32 s30, s30, {L_Q}\nv_lshl_add_u32 v2, v1, 4, s30\nds_read_b128 v[8:11], v2\nds_read_b128 v[12:15], v2 offset:1024")
    ST("att_k")
    if is_p and attention.vl: attention.vl()
    PF("k")
    for u in range(8): e(f"ds_read_b128 {v(KF+4*u,4)}, v5 offset:{L_K + u*1024}")
    for k in range(4): e(f"v_mov_b32 v{16+k}, 0x3f803f80")
    for k in range(4): e(f"v_mov_b32 v{MX+k}, v6")
    for r in range(O, O + 24, 2): e(f"v_mov_b64 {v(r,2)}, 0")
    def s_phase(generic):
        pend = []
        def maxes(k):
            for _ in range(k):
                if pend: e(pend.pop(0))
        for u in range(18):
            issued = min(18, u + 8)
            e(f"s_waitcnt lgkmcnt({issued - (u+1)})")
            if generic and u % 2 == 0 and u < 16:
                e(f"s_cmp_gt_u32 s36, {u//2}\ns_cselect_b32 s30, {f32(-1e30)}, 0")
                for k in range(4): e(f"v_mov_b32 v{20+k}, s30")
            for qt in range(2):
                if dead(qt, u): continue
                c = "v[56:59]" if u == qt else "v[60:63]" if u == 16 + qt else "0"
                if generic and u < 16: c = "v[20:23]"
                e(f"v_mfma_f32_16x16x32_bf16 {v(sr(qt,u),4)}, {v(KF+4*(u%8),4)}, {v(8+4*qt,4)}, {c}")
                if len(pend) >= 8: maxes(2)
                r = sr(qt, u)
                pend.append(f"v_max3_f32 v{MX+2*qt}, v{r}, v{r+1}, v{MX+2*qt}")
                pend.append(f"v_max3_f32 v{MX+2*qt+1}, v{r+2}, v{r+3}, v{MX+2*qt+1}")
            if u + 8 < 18: e(f"ds_read_b128 {v(KF+4*(u%8),4)}, v5 offset:{L_K + (u+8)*1024}")
        maxes(99)
    Lg, Lx = A.newlabel("sgen"), A.newlabel("sx")
    e(f"s_cmp_lg_u32 s36, 0\ns_cbranch_scc1 {Lg}")
    s_phase(False)
    e(f"s_branch {Lx}")
    A.label(Lg)
    s_phase(True)
    A.label(Lx)
    CB = VBARP if is_p else VBAR
    vs = {"iss": 0, "pv": 0}
    def v_issue(upto):
        while vs["iss"] < min(18, upto):
            b = vs["iss"]; e(f"ds_read_b128 {v(VF+4*(b%8),4)}, v7 offset:{b*1024}"); vs["iss"] += 1
    def v_bar():
        if is_p: Q.wait("nv")
        e("s_barrier")
        ST("att_v")
        PF("v")
        v_issue(8)
    CSC = (32 ** -0.5) * LOG2E
    e(f"s_mov_b32 s{sC0}, {f32(CSC)}\ns_mov_b32 s{sC0+1}, {f32(CSC)}")
    if CB == 0: v_bar()
    e(f"v_max_f32 v{MX}, v{MX}, v{MX+1}\nv_max_f32 v{MX+2}, v{MX+2}, v{MX+3}")
    xg_multi("v_max_f32", [MX, MX + 2], [MX + 1, MX + 3])
    e(f"v_mul_f32 v{MX}, {f32(-CSC)}, v{MX}\nv_mul_f32 v{MX+2}, {f32(-CSC)}, v{MX+2}")
    def pv(p):
        out = []
        for qt in range(2):
            P = v(sr(qt, 2 * p), 4)
            for dt in range(2):
                o = v(O + 12 * qt + 4 * dt, 4)
                out.append(f"v_mfma_f32_16x16x32_bf16 {o}, {v(VF+4*((2*p+dt)%8),4)}, {P}, {o}")
            o = v(O + 12 * qt + 8, 4)
            out.append(f"v_mfma_f32_16x16x32_bf16 {o}, v[16:19], {P}, {o}")
        return out
    for p in range(10):
        va = []
        if p < 9:
            live = [(qt, u) for qt in range(2) for u in (2 * p, 2 * p + 1) if not dead(qt, u)]
            for qt, u in live:
                r = sr(qt, u)
                if APK:
                    for h in range(2): va.append(f"v_pk_fma_f32 {v(r+2*h,2)}, {v(r+2*h,2)}, {s(sC0,2)}, {v(MX+2*qt,2)} op_sel_hi:[1,1,0]")
                else:
                    for k in range(4): va.append(f"v_fma_f32 v{r+k}, v{r+k}, s{sC0}, v{MX+2*qt}")
            for qt, u in live:
                for k in range(4): va.append(f"v_exp_f32 v{sr(qt,u)+k}, v{sr(qt,u)+k}")
            for qt, u in live:
                r = sr(qt, u); dst = sr(qt, 2 * p) + 2 * (u & 1)
                va.append(f"v_cvt_pk_bf16_f32 v{dst}, v{r}, v{r+1}"); va.append(f"v_cvt_pk_bf16_f32 v{dst+1}, v{r+2}, v{r+3}")
            if AMIX:
                nf = 2 if APK else 4; n_ = len(live)
                F = [va[i*nf:(i+1)*nf] for i in range(n_)]; E = [va[n_*nf+i*4:n_*nf+(i+1)*4] for i in range(n_)]; C_ = [va[n_*(nf+4)+i*2:n_*(nf+4)+(i+1)*2] for i in range(n_)]
                va = list(F[0])
                for i in range(n_):
                    other = (F[i+1] if i + 1 < n_ else []) + (C_[i-1] if i else [])
                    for k in range(4):
                        va.append(E[i][k]); va += other[k*len(other)//4:(k+1)*len(other)//4]
                va += C_[-1]
            if p == 8: va.append(f"v_mov_b64 {v(sr(0,16)+2,2)}, 0")
            if p == 0: va.append(f"v_mov_b64 {v(sr(1,0),2)}, 0")
        if CB and p == CB: v_bar()
        mm = []
        if p > CB:
            take = min(2, p - vs["pv"]) if p < 9 else 9 - vs["pv"]
            assert take <= 2
            for j in range(take): mm += pv(vs["pv"] + j)
            vs["pv"] += take
            e(f"s_waitcnt lgkmcnt({vs['iss'] - 2*vs['pv']})")
        PF(f'pv{p}')
        gap = max(1, len(va) // (len(mm) + 1))
        for i, x in enumerate(va):
            e(x)
            if i >= 1 and (i - 1) % gap == 0 and mm: e(mm.pop(0))
        for x in mm: e(x)
        if p > CB: v_issue(2 * vs["pv"] + 8)
    ST("att_pv")
    e("v_lshlrev_b32 v2, 4, v1")
    for qt in range(2):
        o = O + 12 * qt
        e(f"v_rcp_f32 v{o+8}, v{o+8}")
        for h in range(4): e(f"v_pk_mul_f32 {v(o+2*h,2)}, {v(o+2*h,2)}, {v(o+8,2)} op_sel_hi:[1,0]")
        for h in range(4): e(f"v_cvt_pk_bf16_f32 v{24+4*qt+h}, v{o+2*h}, v{o+2*h+1}")
        e(f"buffer_store_dwordx4 {v(24+4*qt,4)}, v2, {s(SWS,4)}, s{34+qt} offen sc1")

def consumer(ST):
    G = G1
    if SLOWPF:
        e(f"s_lshl_b32 s30, s2, 2\ns_add_u32 s30, s30, s{sW}\ns_mul_i32 s31, s30, 6144\ns_lshl_b32 s30, s30, 12\nv_lshlrev_b32 v5, 10, v1")
        e(f"s_mov_b64 exec, 0x3f\nbuffer_load_dword v250, v5, {s(SB,4)}, s31 offen offset:384")
        if SLOWPF > 1: e(f"s_mov_b64 exec, 0xf\nbuffer_load_dword v251, v5, {s(SX,4)}, s30 offen offset:384")
        e("s_mov_b64 exec, -1")
    e(f"v_mov_b32 v{vCNT}, 0")
    e(f"ds_write_b32 v{vDW}, v{vCNT} offset:{OFF_EP}\nds_write_b32 v{vDW}, v{vCNT} offset:{OFF_FULL}")
    G.c_setup()
    X = G.VX
    RA_, CSQ, VA_, VB_, CSV = X, X + 8, X + 24, X + 40, X + 56
    if G.chain: VB_, CSV = G.free_set(), X + 40
    assert CSV + 4 <= vDW
    def pre_last1():
        if SLOWPF: e("s_waitcnt vmcnt(0)")
        e(f"s_lshl_b32 s30, s{sWM}, 8\ns_add_u32 s30, s30, {MISC}\nv_lshl_add_u32 v2, v4, 2, s30\nv_lshl_add_u32 v5, v3, 4, s30")
        e(f"s_lshl_b32 s30, s{sWN}, 7\ns_add_u32 s30, s30, {MISC}\nv_lshl_add_u32 v6, v3, 4, s30\nv_lshl_add_u32 v7, v4, 2, s30")
    fill = []
    for mt in range(4): fill += [f"ds_read_b32 v{RA_+2*mt}, v2 offset:{mt*64}", f"ds_read_b32 v{RA_+2*mt+1}, v2 offset:{512+mt*64}"]
    for t in (2, 3, 0, 1): fill.append(f"ds_read_b128 {v(CSQ+4*t,4)}, v6 offset:{1024 + (t>>1)*256 + (t&1)*64}")
    for mt in range(4): fill += [f"ds_read_b128 {v(VA_+4*mt,4)}, v5 offset:{mt*64}", f"ds_read_b128 {v(VB_+4*mt,4)}, v5 offset:{512+mt*64}"]
    for dt in range(2): fill.append(f"ds_read_b32 v{CSV+2*dt}, v7 offset:{1024 + 512 + dt*64}")
    fill.append(f"ds_read_b32 v{CSV+1}, v{vFR} offset:{OFF_HD}")
    own_arena(33, AR_K)
    e(f"""
s_lshl_b32 s30, s{sWN}, 13
s_add_u32 s33, s33, s30
s_lshl_b32 s30, s{sWM}, 12
s_add_u32 s33, s33, s30
s_add_u32 s34, s33, {AR_V - AR_K}
s_lshl_b32 s31, s{sWM}, 2
s_mul_i32 s35, s{sWN}, 24
s_add_u32 s35, s35, s31
s_add_u32 s35, s35, 16
s_lshl_b32 s35, s35, 10
s_lshl_b32 s36, s{sW}, 11
s_add_u32 s36, s36, {L_Q}
""")
    flag_addr(32, WS_F1, sCB, sRB, 4, sW)
    G.c_loop(ST, pre_last1, fill)
    e(f"s_waitcnt lgkmcnt(0)\nv_readfirstlane_b32 s{sMODE}, v{CSV+1}\nv_lshlrev_b32 v2, 4, v1\nv_add_u32 v5, s35, v2\nv_add_u32 v6, s36, v2")
    e(f"s_lshr_b32 s30, s{sRB}, 1\ns_cmp_eq_u32 s30, {3 if MAP1 == 84 else 99}\ns_cselect_b32 s{sT0}, 1, s{sMODE}")
    def fold_rows(mt, t):
        c = G.acc(mt, t); k = RA_ + 2 * mt
        for h in range(2): e(f"v_pk_mul_f32 {v(c+2*h,2)}, {v(c+2*h,2)}, {v(k,2)} op_sel_hi:[1,0]")
        for h in range(2): e(f"v_pk_fma_f32 {v(c+2*h,2)}, {v(CSQ+4*t+2*h,2)}, {v(k,2)}, {v(c+2*h,2)} op_sel:[0,1,0] op_sel_hi:[1,1,1]")
    def fold_v(mt, dt):
        c = G.acc(mt, 4 + dt)
        for h in range(2): e(f"v_pk_mul_f32 {v(c+2*h,2)}, {v(c+2*h,2)}, {v(VA_+4*mt+2*h,2)}")
        for h in range(2): e(f"v_pk_fma_f32 {v(c+2*h,2)}, {v(VB_+4*mt+2*h,2)}, {v(CSV+2*dt,2)}, {v(c+2*h,2)} op_sel_hi:[1,0,1]")
    def epi1(fl):
        t = 24
        for mt in range(4):
            fold_rows(mt, 2); fold_rows(mt, 3)
            pack(t, G.acc(mt, 2), G.acc(mt, 3))
            e(f"buffer_store_dwordx4 {v(t,4)}, v2, {s(SWS,4)}, s33 offen offset:{mt*1024} {fl or KVFL}"); t += 4
        for p in range(2):
            for dt in range(2):
                fold_v(2 * p, dt); fold_v(2 * p + 1, dt)
                pack(t, G.acc(2 * p, 4 + dt), G.acc(2 * p + 1, 4 + dt))
                e(f"buffer_store_dwordx4 {v(t,4)}, v2, {s(SWS,4)}, s34 offen offset:{(2*p+dt)*1024} {fl or KVFL}"); t += 4
        if KFLAG:
            e("s_waitcnt vmcnt(4)"); set_flag(32, fl.replace("nt", ""), t=64)
        for i in range(4): e(f"ds_write_b128 v5, {v(24+4*i,4)} offset:{L_K + i*1024}")
        for i in range(4): e(f"ds_write_b128 v5, {v(40+4*i,4)} offset:{L_V + i*1024}")
        for mt in (2, 3, 0, 1):
            fold_rows(mt, 0); fold_rows(mt, 1)
            d = 8 + 4 * mt
            pack(d, G.acc(mt, 0), G.acc(mt, 1))
            if mt >= 2: e(f"ds_write_b128 v6, {v(d,4)} offset:{(mt-2)*1024}")
        e("s_waitcnt vmcnt(0)")
        set_flag(32, fl.replace("nt", ""), val=3, t=64)
    dual(epi1, sT0)
    ST("kv_flag")
    e(f"s_lshl_b32 s38, s{sWM}, 1")
    attn_setup()
    attention(ST, False)
    G = G3
    roles_48()
    b_src_wo()
    G.p_setup_b(sWN)
    X = G.VX
    rowmajor_voff(X + 16, X + 17)
    e(f"""
s_lshl_b32 s35, s{sRB}, 1
s_add_u32 s35, s35, s{sWM}
s_lshl_b32 s36, s{sCB}, 1
s_add_u32 s36, s36, s{sWN}
s_lshl_b32 s32, s35, 17
s_lshl_b32 s31, s36, 6
s_add_u32 s32, s32, s31
""")
    def hl_touch():
        e(f"s_lshl_b32 s37, s35, 17\ns_lshl_b32 s31, s36, 10\ns_add_u32 s37, s37, s31\ns_add_u32 s37, s37, {WS_HL}\nv_and_b32 v248, 7, v1\nv_lshlrev_b32 v248, 7, v248\nv_lshrrev_b32 v249, 3, v1\nv_lshl_add_u32 v248, v249, 15, v248")
        set_exec(0xffffffff); e(f"buffer_load_dword v249, v248, {s(SWS,4)}, s37 offen\ns_mov_b64 exec, -1")
    G.c_setup()
    e("s_waitcnt vmcnt(0)")
    set_flag(33)
    ST("o_flag")
    if LFIRST and HLT == 1: hl_touch()
    Qc = VmQ()
    L1, L2 = A.newlabel("b3a"), A.newlabel("b3b")
    e(f"s_cmp_lg_u32 s{sWM}, 0\ns_cbranch_scc1 {L1}")
    for st in range(3): G.issue_b(Qc, st)
    e(f"s_branch {L2}")
    A.label(L1)
    for st in range(3, 6): G.issue_b(Qc, st)
    A.label(L2)
    e("s_barrier")
    for mt in range(4): e(f"s_add_u32 s31, s32, {mt*16*2048}\nbuffer_load_dwordx4 {v(X+4*mt,4)}, v{X+16}, {s(SX,4)}, s31 offen")
    e("s_waitcnt vmcnt(4)")
    if LFIRST and HLT == 2: hl_touch()
    e(f"""
s_lshl_b32 s37, s35, 17
s_lshl_b32 s31, s36, 10
s_add_u32 s37, s37, s31
s_add_u32 s37, s37, {WS_H}
s_lshl_b32 s38, s35, 14
s_lshl_b32 s31, s36, 9
s_add_u32 s38, s38, s31
s_add_u32 s38, s38, {WS_STAT}
""")
    flag_addr(32, WS_F3, sRB, sCB, 32, sW)
    HX = X + 24
    def pre_last3():
        e("s_waitcnt vmcnt(0)\nv_lshlrev_b32 v2, 4, v1")
        for mt in range(4):
            x = X + 4 * mt
            e(f"v_permlane16_swap_b32 v{x}, v{x+2}\nv_permlane16_swap_b32 v{x+1}, v{x+3}")
        for mt in range(4):
            for d in range(4): unpack(HX + 8 * mt + 2 * d, X + 4 * mt + d)
    G.c_loop(ST, pre_last3)
    for mt in range(4):
        x = X + 4 * mt; u = HX + 8 * mt
        for d in range(4): e(f"v_pk_add_f32 {v(12+2*d,2)}, {v(G.acc(mt,d>>1)+2*(d&1),2)}, {v(u+2*d,2)}")
        for d in range(4): e(f"v_cvt_pk_bf16_f32 v{x+d}, v{12+2*d}, v{13+2*d}")
        if LFIRST: e(f"s_add_u32 s31, s37, {WS_HL - WS_H + mt*32*1024}\nbuffer_store_dwordx4 {v(x,4)}, v2, {s(SWS,4)}, s31 offen")
        else: e(f"s_add_u32 s31, s37, {mt*32*1024}\nbuffer_store_dwordx4 {v(x,4)}, v2, {s(SWS,4)}, s31 offen sc1")
    if LFIRST:
        for mt in range(4): e(f"s_add_u32 s31, s37, {mt*32*1024}\nbuffer_store_dwordx4 {v(X+4*mt,4)}, v2, {s(SWS,4)}, s31 offen sc1")
    for mt in range(4):
        x = X + 4 * mt; u = HX + 8 * mt
        for d in range(4): unpack(u + 2 * d, x + d)
        e(f"v_pk_add_f32 v[12:13], {v(u,2)}, {v(u+2,2)}\nv_pk_add_f32 v[14:15], {v(u+4,2)}, {v(u+6,2)}")
        e(f"v_pk_add_f32 v[12:13], v[12:13], v[14:15]\nv_add_f32 v{32+2*mt}, v12, v13")
    if LFIRST:
        e(f"s_add_u32 s31, s32, {WS_F3L - WS_F3}\ns_waitcnt vmcnt(4)"); set_flag(31, "")
    xg_multi("v_add_f32", [32, 34, 36, 38], [16, 17, 18, 19])
    for mt in range(4):
        u = HX + 8 * mt; sm = 32 + 2 * mt
        e(f"v_mul_f32 v12, {f32(1/32)}, v{sm}")
        for d in range(4): e(f"v_pk_add_f32 {v(u+2*d,2)}, {v(u+2*d,2)}, v[12:13] op_sel_hi:[1,0] neg_lo:[0,1] neg_hi:[0,1]")
        e(f"v_pk_mul_f32 v[14:15], {v(u,2)}, {v(u,2)}")
        for d in range(1, 4): e(f"v_pk_fma_f32 v[14:15], {v(u+2*d,2)}, {v(u+2*d,2)}, v[14:15]")
        e(f"v_add_f32 v{sm+1}, v14, v15")
    xg_multi("v_add_f32", [33, 35, 37, 39], [16, 17, 18, 19])
    for k in range(1, 4):
        e(f"v_cmp_eq_u32 vcc, {k}, v3\nv_cndmask_b32 v32, v32, v{32+2*k}, vcc\nv_cndmask_b32 v33, v33, v{33+2*k}, vcc")
    e(f"v_lshlrev_b32 v2, 3, v1\nbuffer_store_dwordx2 v[32:33], v2, {s(SWS,4)}, s38 offen sc1\ns_waitcnt vmcnt({2 if LFIRST else 1})")
    set_flag(32)
    post(OFF_EP, 2)
    ST("h_flag")
    G = G4
    roles_84()
    G.c_setup()
    e("s_mov_b32 s40, s32")
    def stats_out():
        e("s_waitcnt vmcnt(0)"); set_flag(40, val=3)
    h1_base(37)
    e(f"""
s_and_b32 s39, s{sCB}, 1
s_add_u32 s32, s{sOWN}, s37
s_lshl_b32 s33, s{sWM}, 12
s_add_u32 s32, s32, s33
s_lshl_b32 s34, s{sWN}, 2
s_add_u32 s34, s34, s39
s_add_u32 s35, s39, s{sWN}
s_add_u32 s35, s35, 2
s_xor_b32 s36, s39, 1
s_mul_i32 s36, s36, 6
s_lshl_b32 s34, s34, 13
s_lshl_b32 s35, s35, 13
s_lshl_b32 s36, s36, 13
s_add_u32 s34, s34, s32
s_add_u32 s35, s35, s32
s_add_u32 s36, s36, s32
s_lshl_b32 s37, s{sWN}, 3
s_add_u32 s36, s36, s37
s_add_u32 s37, s34, 8192
s_mov_b32 s{sC0}, {f32(-LOG2E)}
s_mov_b32 s{sC0+1}, {f32(-LOG2E)}
""")
    f4_addr(38, sRB, sCB, sW)
    def pre_last4():
        e(f"""
s_lshl_b32 s30, s{sWM}, 9
s_add_u32 s30, s30, {L_RA}
v_lshl_add_u32 v2, v4, 3, s30
s_lshl_b32 s31, s39, 7
s_lshl_b32 s32, s{sWN}, 9
s_add_u32 s32, s32, s31
s_add_u32 s32, s32, {L_CS}
v_lshl_add_u32 v5, v3, 4, s32
s_lshl_b32 s32, s{sWN}, 7
s_add_u32 s32, s32, s31
s_add_u32 s32, s32, {L_CS + 256}
v_lshl_add_u32 v6, v3, 4, s32
s_xor_b32 s33, s39, 1
s_mul_i32 s33, s33, 768
s_lshl_b32 s32, s{sWN}, 6
s_add_u32 s32, s32, s33
s_add_u32 s32, s32, {L_CS}
v_lshl_add_u32 v7, v3, 4, s32
""")
    CS, KR = (G.free_set(), G.VX) if G.chain else (16, 8)
    assert CS + 28 <= 56 and KR + 8 <= vDW
    fill = [f"ds_read_b64 {v(KR+2*mt,2)}, v2 offset:{mt*128}" for mt in range(4)]
    fill += [f"ds_read_b128 {v(CS+4*t,4)}, v5 offset:{64*t}" for t in range(4)]
    fill += [f"ds_read_b128 {v(CS+16+4*t,4)}, v6 offset:{64*t}" for t in range(2)] + [f"ds_read_b128 {v(CS+24,4)}, v7"]
    G.c_loop(ST, pre_last4, fill, after_go=stats_out)
    e("s_waitcnt lgkmcnt(0)\nv_lshlrev_b32 v2, 4, v1")
    def epi4(fl):
        units = []
        for pr in range(4):
            for mt in range(4): units.append((mt, (2 * pr, 2 * pr + 1) if pr < 3 else (6,), pr))
        T0, O0 = 56, 80
        def sA(i):
            mt, ts, pr = units[i]; k = KR + 2 * mt; o = []
            for t in ts:
                c = G.acc(mt, t)
                for h in range(2): o.append(f"v_pk_mul_f32 {v(c+2*h,2)}, {v(c+2*h,2)}, {v(k,2)} op_sel:[0,1] op_sel_hi:[1,1]")
            for t in ts:
                c = G.acc(mt, t)
                for h in range(2): o.append(f"v_pk_fma_f32 {v(c+2*h,2)}, {v(CS+4*t+2*h,2)}, {v(k,2)}, {v(c+2*h,2)} op_sel_hi:[1,0,1]")
            return o
        def sB(i):
            mt, ts, pr = units[i]; T = T0 + 8 * (i % 3)
            return [f"v_exp_f32 v{T+4*j+k}, v{G.acc(mt,t)+k}" for j, t in enumerate(ts) for k in range(4)]
        def sC(i):
            mt, ts, pr = units[i]; T = T0 + 8 * (i % 3)
            return [f"v_pk_fma_f32 {v(T+2*h,2)}, {v(T+2*h,2)}, {s(sC0,2)}, {s(sC0,2)}" for h in range(2 * len(ts))]
        def sD(i):
            mt, ts, pr = units[i]; T = T0 + 8 * (i % 3)
            return [f"v_rcp_f32 v{T+k}, v{T+k}" for k in range(4 * len(ts))]
        def sE(i):
            mt, ts, pr = units[i]; T = T0 + 8 * (i % 3); o = []; d = O0 + 4 * (i % 4)
            for j, t in enumerate(ts):
                c = G.acc(mt, t)
                for h in range(2): o.append(f"v_pk_mul_f32 {v(c+2*h,2)}, {v(c+2*h,2)}, {v(T+4*j+2*h,2)}")
            for j, t in enumerate(ts):
                c = G.acc(mt, t)
                for h in range(2): o.append(f"v_cvt_pk_bf16_f32 v{d+2*j+h}, v{c+2*h}, v{c+2*h+1}")
            base = (34, 37, 35, 36)[pr]
            if NOST4: return o
            o.append(f"buffer_store_dwordx4 {v(d,4)}, v2, {s(SWS,4)}, s{base} offen offset:{mt*1024} {fl}" if pr < 3 else f"buffer_store_dwordx2 {v(d,2)}, v2, {s(SWS,4)}, s{base} offen offset:{mt*1024} {fl}")
            return o
        N = len(units)
        for x in sA(0): e(x)
        for i in range(N + 1):
            seq = []
            if i < N: seq += sB(i)
            if i + 1 < N: seq += sA(i + 1)
            if i < N: seq += sC(i)
            if i >= 1: seq += sE(i - 1)
            if i < N: seq += sD(i)
            for x in seq: e(x)
            if EARLY5 and i == 8 + E5LAG:
                e(f"s_waitcnt vmcnt({E5LAG})"); set_flag(38, fl.replace("nt", ""))
        ST("silu")
        roles_w2()
        G5.c_setup()
        e("s_waitcnt vmcnt(0)")
        set_flag(38, fl.replace("nt", ""), val=3)
    n0 = list(ST.names)
    def epi4w(fl):
        ST.names = list(n0); epi4(fl)
    dual(epi4w, sMODE)
    ST("h1_flag")
    G = G5
    MT = G.MT; keep = 2; nb = 4
    def pre_last5():
        srd(SD, pOUT, 4 * MB)
        e(f"""
s_lshl_b32 s33, s{sRB}, 3
s_add_u32 s33, s33, s{sCB}
s_mul_i32 s34, s33, {16*4*nb*1024}
s_add_u32 s34, s34, {WS_PART}
s_mul_i32 s30, s{sW}, {nb*1024}
s_add_u32 s34, s34, s30
s_lshl_b32 s35, s{sRB}, 3
s_lshl_b32 s30, s{sWM}, 3
s_add_u32 s35, s35, s30
s_lshl_b32 s30, s{sKS}, 1
s_add_u32 s35, s35, s30
s_lshl_b32 s36, s{sCB}, 2
s_lshl_b32 s30, s{sWN}, 1
s_add_u32 s36, s36, s30
s_lshl_b32 s38, s35, 15
s_lshl_b32 s31, s36, 10
s_add_u32 s38, s38, s31
s_add_u32 s38, s38, {WS_H}
s_lshl_b32 s37, s33, {9 if F5W else 6}
s_lshl_b32 s31, s{sW}, {7 if F5W else 2}
s_add_u32 s37, s37, s31
s_add_u32 s37, s37, {WS_F5W if F5W else WS_F5}
s_lshl_b32 s31, s{sKS}, 4
s_add_u32 s32, s37, s31
s_lshl_b32 s39, s{sKS}, 2
""")
        for d in range(1, 4):
            e(f"s_add_u32 s31, s{sKS}, {d}\ns_and_b32 s31, s31, 3\ns_lshl_b32 s30, s31, 2\ns_add_u32 s30, s30, s{sKS}\ns_mul_i32 s30, s30, {4*nb*1024}\ns_add_u32 s{39+d}, s30, s34")
            e(f"s_add_u32 s31, s31, s39\ns_mul_i32 s31, s31, {4*nb*1024}\ns_add_u32 s{42+d}, s31, s34")
        e(f"s_lshl_b32 s46, s35, 15\ns_lshl_b32 s31, s36, 6\ns_add_u32 s46, s46, s31\ns_add_u32 s47, s38, {32*1024}")
    if TAILPM:
        assert not CANARY
        BQ, AB = [8, 24, 56, 72], [40, 88]
        sub4 = [(12, 0), (12, 1), (13, 0), (13, 1)]
        order = [2, 3, 4, 5, 6, 7, 0, 1]
        HRS = [G.acc(2, 1), G.acc(2, 3), G.acc(3, 1), G.acc(3, 3)]
        brd = lambda j: [x for t in range(4) for x in G.b_read(*sub4[j], t, BQ[j] + 4 * t)]
        ard = lambda n_: [G.a_read(*sub4[j], order[n_], AB[n_ & 1] + 4 * j) for j in range(4)]
        G.c_loop(ST, pre_last5, ["v_lshlrev_b32 v2, 4, v1"] + ard(0) + brd(0) + brd(1), nsteps=12)
        def send(mt):
            out = []
            for pr in range(2):
                c0, c1 = G.acc(mt, 2 * pr), G.acc(mt, 2 * pr + 1)
                out += [f"v_cvt_pk_bf16_f32 v{c0}, v{c0}, v{c0+1}", f"v_cvt_pk_bf16_f32 v{c0+1}, v{c0+2}, v{c0+3}",
                        f"v_cvt_pk_bf16_f32 v{c0+2}, v{c1}, v{c1+1}", f"v_cvt_pk_bf16_f32 v{c0+3}, v{c1+2}, v{c1+3}",
                        f"buffer_store_dwordx4 {v(c0,4)}, v2, {s(SWS,4)}, s{39+mt//2} offen offset:{(2*(mt&1)+pr)*1024} {PFL}"]
            return out
        for n_, mt in enumerate(order):
            mm = lambda t, j: f"v_mfma_f32_16x16x32_bf16 {v(G.acc(mt,t),4)}, {v(BQ[j]+4*t,4)}, {v(AB[n_&1]+4*j,4)}, {v(G.acc(mt,t),4)}"
            e("s_waitcnt lgkmcnt(0)")
            if n_ == 0:
                side = brd(2) + brd(3)
                for i, (t, j) in enumerate([(t, j) for t in range(4) for j in range(2)]):
                    e(mm(t, j)); e(side[2 * i]); e(side[2 * i + 1])
                side = ard(1)
                for i, (t, j) in enumerate([(t, j) for j in (2, 3) for t in range(4)]):
                    if i == 0: e("s_waitcnt lgkmcnt(8)")
                    if i == 4: e("s_waitcnt lgkmcnt(4)")
                    e(mm(t, j))
                    if i < 4: e(side[i])
                continue
            side = (ard(n_ + 1) if n_ + 1 < 8 else []) + (send(order[n_ - 1]) if order[n_ - 1] >= 2 else [])
            if n_ == 3: side += [f"buffer_load_dwordx4 {v(HRS[2*i+pr],4)}, v2, {s(SWS,4)}, s{38 if i == 0 else 47} offen offset:{pr*1024} sc1" for i in range(2) for pr in range(2)]
            if LEVELS and n_ == 7:
                side = ["v_mov_b32 v5, 0", "v_mov_b32 v6, 1", "s_waitcnt vmcnt(12)", "s_mov_b64 exec, 1\n" + f"buffer_store_byte v6, v5, {s(SWS,4)}, s32 offen offset:1 sc1" + "\ns_mov_b64 exec, -1"]
            for i, (t, j) in enumerate([(t, j) for t in range(4) for j in range(4)]):
                e(mm(t, j))
                for x in side[i:i + 1] + (side[16:] if i == 15 else []): e(x)
        ST("w2_end")
    else:
        HRS = [8, 12, 16, 20]
        HR = 8
        fill = ["v_lshlrev_b32 v2, 4, v1"]
        fill += [f"buffer_load_dwordx4 {v(HR+4*(2*i+pr),4)}, v2, {s(SWS,4)}, s{38 if i == 0 else 47} offen offset:{pr*1024} sc1" for i in range(2) for pr in range(2)]
        if CANARY: fill.append(f"buffer_load_dword v248, v2, {s(SWS,4)}, s37 offen sc1")
        G.c_loop(ST, pre_last5, fill)
        o = 24
        for d in range(1, 4):
            for i in range(keep):
                for pr in range(2):
                    mt = d * keep + i
                    pack(o, G.acc(mt, 2 * pr), G.acc(mt, 2 * pr + 1))
                    e(f"buffer_store_dwordx4 {v(o,4)}, v2, {s(SWS,4)}, s{39+d} offen offset:{(2*i+pr)*1024} {PFL}")
                    o = 24 + (o - 24 + 4) % 32
    PR = 64
    assert PR + 48 <= G.ACC
    def add_partial(d):
        for i in range(keep):
            for pr in range(2):
                for q in range(4): unpack(40 + 2 * q, PR + 4 * ((d - 1) * nb + 2 * i + pr) + q)
                for q in range(4):
                    c = G.acc(i, 2 * pr + (q >> 1)) + 2 * (q & 1)
                    e(f"v_pk_add_f32 {v(c,2)}, {v(c,2)}, {v(40+2*q,2)}")
    def add_residual():
        for i in range(keep):
            for pr in range(2):
                for q in range(4): unpack(40 + 2 * q, HRS[2 * i + pr] + q)
                for q in range(4):
                    c = G.acc(i, 2 * pr + (q >> 1)) + 2 * (q & 1)
                    e(f"v_pk_add_f32 {v(c,2)}, {v(c,2)}, {v(40+2*q,2)}")
    def ld_partial(d):
        for b in range(nb): e(f"buffer_load_dwordx4 {v(PR+4*((d-1)*nb+b),4)}, v2, {s(SWS,4)}, s{42+d} offen offset:{b*1024} sc1")
    rowmajor_voff(62, 63)
    if CANARY:
        e("v_mov_b32 v58, s43\nv_mov_b32 v59, s44\nv_cmp_eq_u32 vcc, 1, v1\nv_cndmask_b32 v58, v58, v59, vcc\nv_mov_b32 v59, s45\nv_cmp_eq_u32 vcc, 2, v1\nv_cndmask_b32 v58, v58, v59, vcc")
        e("s_waitcnt vmcnt(0)")
        ST("p_flag")
        add_residual()
        X0 = A.newlabel("pfok")
        e(f"s_mov_b64 exec, 0xf\nv_and_b32 v248, 1, v248\nv_cmp_ne_u32 vcc, 1, v248\ns_mov_b64 exec, -1\ns_cbranch_vccz {X0}")
        poll("s37", 4, voff=2, t=60)
        A.label(X0)
        L, X = A.newlabel("can"), A.newlabel("canx")
        e(f"s_mov_b64 exec, 7\ns_mov_b32 s{sCNT}, 0")
        A.label(L)
        e(f"buffer_load_dword v60, v58, {s(SWS,4)}, 0 offen offset:4092 sc1\ns_add_u32 s{sCNT}, s{sCNT}, 1\ns_cmp_gt_u32 s{sCNT}, {SPIN_MAX}\ns_waitcnt vmcnt(0)\ns_cbranch_scc1 {X}")
        e(f"v_cmp_eq_u32 vcc, -1, v60\ns_cbranch_vccnz {L}")
        A.label(X)
        e("s_mov_b64 exec, -1")
        ST("p_seen")
        for d in range(1, 4): ld_partial(d)
        for d in range(1, 4):
            L, X = A.newlabel("pv"), A.newlabel("pvx")
            r0 = PR + 16 * (d - 1)
            e(f"s_waitcnt vmcnt({(3-d)*nb})")
            A.label(L)
            e(f"v_max_u32 v60, v{r0}, v{r0+1}")
            for i in range(2, 16, 2): e(f"v_max3_u32 v60, v{r0+i}, v{r0+i+1}, v60")
            e(f"v_cmp_eq_u32 vcc, -1, v60\ns_cbranch_vccz {X}\ns_add_u32 s{sCNT}, s{sCNT}, 1\ns_cmp_gt_u32 s{sCNT}, {SPIN_MAX}\ns_cbranch_scc1 {X}")
            ld_partial(d)
            e(f"s_waitcnt vmcnt(0)\ns_branch {L}")
            A.label(X)
            add_partial(d)
    elif LEVELS and TAILPM:
        lvf = lambda l: e(f"s_mov_b64 exec, 1\nbuffer_store_byte v6, v5, {s(SWS,4)}, s32 offen offset:{l} sc1\ns_mov_b64 exec, -1")
        e("s_waitcnt vmcnt(5)"); lvf(2)
        add_residual()
        e(f"v_sub_u32 v61, s{sKS}, v1\nv_and_b32 v61, 3, v61\nv_lshlrev_b32 v61, 3, v61")
        e("s_waitcnt vmcnt(2)"); lvf(3)
        ST("p_flag")
        e(f"s_mov_b32 s{sCNT}, 0\ns_mov_b32 s33, 0")
        if PW5: e("s_waitcnt vmcnt(0)")
        for lvl in (1, 2, 3):
            L, X = A.newlabel("lv"), A.newlabel("lvx")
            e(f"s_sub_u32 s30, s{sKS}, {lvl}\ns_and_b32 s30, s30, 3\ns_bitcmp1_b32 s33, s30\ns_cbranch_scc1 {X}")
            A.label(L)
            e(f"s_mov_b64 exec, 0xf\nbuffer_load_dword v60, v2, {s(SWS,4)}, s37 offen sc1\ns_add_u32 s{sCNT}, s{sCNT}, 1\ns_waitcnt vmcnt(0)\nv_bfe_u32 v60, v60, v61, 1\nv_cmp_eq_u32 vcc, 1, v60\ns_mov_b64 exec, -1\ns_mov_b32 s33, vcc_lo")
            e(f"s_cmp_gt_u32 s{sCNT}, {SPIN_MAX}\ns_cbranch_scc1 {X}\ns_bitcmp1_b32 s33, s30\ns_cbranch_scc0 {L}")
            A.label(X)
            ld_partial(4 - lvl)
        ST("p_seen")
        for lvl in (1, 2, 3):
            e(f"s_waitcnt vmcnt({(3-lvl)*nb})")
            add_partial(4 - lvl)
    else:
        e("s_waitcnt vmcnt(0)")
        set_flag(32)
        ST("p_flag")
        add_residual()
        poll("s37", 4, voff=2, t=60)
        ST("p_seen")
        for d in range(1, 4): ld_partial(d)
        for d in range(1, 4):
            e(f"s_waitcnt vmcnt({(3-d)*nb})")
            add_partial(d)
    if PERT:
        L = A.newlabel("nopert")
        e(f"s_cmp_ge_u32 s2, {PERTN}\ns_cbranch_scc1 {L}\ns_mov_b64 exec, {PERTL}\nv_add_f32 v{G.acc(0,0)}, {f32(PERT)}, v{G.acc(0,0)}\ns_mov_b64 exec, -1")
        A.label(L)
    for i in range(keep):
        for pr in range(2):
            x = HRS[2 * i + pr]
            pack(x, G.acc(i, 2 * pr), G.acc(i, 2 * pr + 1))
            e(f"v_permlane16_swap_b32 v{x}, v{x+2}\nv_permlane16_swap_b32 v{x+1}, v{x+3}")
            if LEAK and i == 0 and pr == 0:
                ST("leak"); L = A.newlabel("noleak"); nm = ST.names; ix = lambda n_: 78 + nm.index(n_)
                e(f"s_or_b32 s30, s2, s{sWAVE}\ns_or_b32 s30, s30, s{sMODE}\ns_cmp_lg_u32 s30, 0\ns_cbranch_scc1 {L}\ns_sub_u32 s30, s{ix('leak')}, s78\ns_cmp_lt_u32 s30, {LEAK}\ns_cbranch_scc1 {L}\ns_mov_b64 exec, 1")
                seq = ["start", "qkv_go", "qkv_end", "wo_go", "wo_end", "w1_go", "w1_end", "w2_end", "leak"]
                for j in range(8):
                    e(f"s_sub_u32 s30, s{ix(seq[j+1])}, s{ix(seq[j])}\nv_cvt_f32_u32 v{40+j}, s30\nv_mul_f32 v{40+j}, {f32(0.01)}, v{40+j}")
                for j in range(4): e(f"v_cvt_pk_bf16_f32 v{x+j}, v{40+2*j}, v{41+2*j}")
                e("s_mov_b64 exec, -1")
                A.label(L)
            e(f"s_add_u32 s31, s46, {i*16*2048}\nbuffer_store_dwordx4 {v(x,4)}, v62, {s(SD,4)}, s31 offen offset:{pr*64} {OFL}")
    ST.flush()
    e("s_endpgm")

def neighbours_and_attention(ST, Q):
    e(f"s_lshl_b32 s38, s{sWM}, 1\ns_add_u32 s38, s38, 1")
    attn_setup()
    L = A.newlabel("nonb")
    assert MAP1 == 162
    own_arena(42)
    e(f"""
s_add_u32 s40, s{sRB}, s{sWM}
s_sub_u32 s41, s40, 2
s_lshl_b32 s31, s{sWM}, 16
s_add_u32 s42, s42, s31
s_sub_u32 s42, s42, {2*64*KB}
s_lshl_b32 s31, s{sWN}, 13
s_add_u32 s42, s42, s31
s_mul_i32 s43, s{sWN}, 24
s_lshl_b32 s31, s{sWM}, 3
s_add_u32 s43, s43, s31
s_lshl_b32 s43, s43, 10
v_lshlrev_b32 v2, 4, v1
s_cmp_lt_u32 s40, 2
s_cselect_b32 s42, {WS_BYTES}, s42
s_cbranch_scc1 {L}
""")
    flag_addr(32, WS_F1, sCB, 41, 4, None)
    poll("s32", 4, t=8)
    A.label(L)
    ST("nb_seen")
    def nb_loads(wsb, lb):
        if wsb == AR_V and KFLAG:
            L2 = A.newlabel("nonv")
            e(f"s_cmp_lt_u32 s40, 2\ns_cbranch_scc1 {L2}")
            poll("s32", 4, t=20, mask=2)
            A.label(L2)
            e("v_lshlrev_b32 v2, 4, v1")
        for h in range(2):
            e(f"s_add_u32 m0, s43, {lb + h*4096}\ns_add_u32 s31, s42, {wsb + h*4096}")
            for i in range(4): e(f"buffer_load_dwordx4 v2, {s(SWS,4)}, s31 offen offset:{i*1024} sc1 lds")
    Q.q = []
    nb_loads(AR_K, L_K); Q.add("nk", 8)
    def vl():
        nb_loads(AR_V, L_V); Q.add("nv", 8)
    if not VLATE: vl()
    attention.vl = vl if VLATE else None
    attention(ST, True, Q)
    roles_48()
    b_src_wo()
    e(f"ds_read_b32 v8, v{vFR} offset:{OFF_HD}")
    G3.p_setup_a(); G3.p_setup_b(sWN)
    e(f"s_waitcnt lgkmcnt(0)\nv_readfirstlane_b32 s{sMODE}, v8")
    e("s_waitcnt vmcnt(0)")
    set_flag(33)
    e("s_barrier")
    Q.q = []
    ST("o_flag")

def dma_phase1(ST, Q):
    G = G1
    if DPRIO: e(f"s_setprio {DPRIO}")
    def touch(nk, fl):
        def f():
            e(f"s_mul_i32 s30, s{sW}, {nk*1024}\ns_add_u32 s30, s30, s{sOWN}\nv_lshlrev_b32 v12, 7, v1")
            for i in range(0, nk, 8):
                if nk - i < 8: set_exec((1 << ((nk - i) * 8)) - 1)
                e(f"s_add_u32 s31, s30, {WS_AR + i*1024}\nbuffer_load_dword v{248+i//8}, v12, {s(SWS,4)}, s31 offen {fl}")
                Q.add("touch")
            e("s_mov_b64 exec, -1")
        return f
    dma_phase1.touch = touch
    G.p_loop(Q, ST, 0, NPF, tail=touch(16, TFL.replace("none", "")) if TOUCH else None)
    if DPRIO: e("s_setprio 0")
    e("s_waitcnt lgkmcnt(0)")

def dma_rest(ST, Q):
    G = G3
    if DPRIO: e(f"s_setprio {DPRIO}")
    e(f"s_lshl_b32 s32, s{sRB}, 11\ns_add_u32 s32, s32, {WS_F2}")
    pf_step(PFBUB)
    e("v_lshrrev_b32 v10, 2, v1\nv_lshlrev_b32 v10, 7, v10\nv_and_b32 v11, 3, v1\nv_lshl_add_u32 v10, v11, 3, v10")
    G.p_loop(Q, ST, G.NSB, 1, 3, gate=lambda k: gate_k(G3, k, True), look=(range(0, 12), (32, 10, True)))
    G = G4
    roles_84()
    b_src_w1()
    e(f"s_lshl_b32 s{sAR}, s{sRB}, 18\ns_add_u32 s{sAR}, s{sAR}, {WS_H}")
    G.p_setup_b(); G.p_setup_a()
    e(f"s_lshl_b32 s32, s{sRB}, 11\ns_add_u32 s32, s32, {WS_F3}")
    if BEARLY and not BTAIL: G.issue_b(Q, 0)
    if not LFIRST: wait_rows(OFF_EP, 2)
    if not BEARLY and not BTAIL: G.issue_b(Q, 0)
    pf_step(PFBUB)
    e("v_lshrrev_b32 v10, 2, v1\nv_lshlrev_b32 v10, 7, v10\nv_and_b32 v11, 3, v1\nv_lshl_add_u32 v10, v11, 2, v10")
    if LFIRST:
        e(f"s_lshl_b32 s30, s{sROT}, 2\nv_add_u32 v10, s30, v1\nv_and_b32 v10, 63, v10\nv_lshlrev_b32 v10, 2, v10")
        e(f"s_cmp_lg_u32 s{sMODE}, 0\ns_cselect_b32 s33, 0, {WS_F3L - WS_F3}\ns_cselect_b32 s{sKS}, 0, {WS_HL - WS_H}\ns_add_u32 s33, s33, s32\ns_add_u32 s{sKS}, s{sKS}, s{sAR}")
    def gate4(k):
        if not LFIRST: return gate_k(G4, k, False)
        n0 = GATEN["w1"]
        if k == 4: e(f"s_mov_b64 {s(sRDY,2)}, -1")
        if k == 0: need_flags((1 << (4 * n0)) - 1, 33, 10, False)
        elif k >= n0: need_flags(0xf << (4 * k), 33 if k < 4 else 32, 10, False)
    G.p_loop(Q, ST, 1 if BLATE else G.NS, NPF, gate=gate4, tail=dma_phase1.touch(28, '') if TOUCH4 else None, look=(range(0, 12), (32, 10, False)))
    pf_finish()
    G = G5
    roles_w2()
    b_src_w2()
    G.p_setup_b()
    for st in range(G.NS): G.issue_b(Q, st)
    G.p_setup_a()
    e(f"s_lshl_b32 s32, s{sRB}, 9\ns_lshl_b32 s30, s{sKS}, 7\ns_add_u32 s32, s32, s30\ns_add_u32 s32, s32, {WS_F4P}")
    e(f"s_lshl_b32 s30, s{sW}, 9\ns_add_u32 s32, s32, s30\nv_lshlrev_b32 v10, 2, v4")
    e("v_and_b32 v11, 1, v3")
    seen5 = set()
    def gate5(k):
        want = {(c, lv) for c, kb, lv in G5.blocks()[2 * k:2 * k + 2]} - seen5
        if want:
            seen5.update(want)
            need_flags(sum(0xf << (4 * c + 16 * (lv - 1)) for c, lv in want), 32, 10, False, shift=11)
    G.p_loop(Q, ST, G.NS + RP5, gate=gate5, look=(range(0, 10), (32, 10, False, 11)) if ASY5 else None, merge=bool(TAILPM))

U0 = 200
def colsum_block(j, src, nld, dpp):
    u = U0 + 8 * j
    if DOT:
        e("v_mov_b32 v10, 0x00003f80\nv_mov_b32 v11, 0x3f800000")
        for i in range(nld):
            for d in range(4):
                if i == 0: unpack(u + 2 * d, src + d)
                else: e(f"v_dot2_f32_bf16 v{u+2*d}, v{src+4*i+d}, v10, v{u+2*d}\nv_dot2_f32_bf16 v{u+2*d+1}, v{src+4*i+d}, v11, v{u+2*d+1}")
    else:
        for i in range(nld):
            for d in range(4):
                if i == 0: unpack(u + 2 * d, src + d)
                else:
                    unpack(10 + 2 * (d & 1), src + 4 * i + d)
                    e(f"v_pk_add_f32 {v(u+2*d,2)}, {v(u+2*d,2)}, {v(10+2*(d&1),2)}")
    for d in range(4): e(f"v_permlane32_swap_b32 v{u+d}, v{u+4+d}")
    for d in range(2): e(f"v_pk_add_f32 {v(u+2*d,2)}, {v(u+2*d,2)}, {v(u+4+2*d,2)}")
    for d in range(2): e(f"v_permlane16_swap_b32 v{u+d}, v{u+2+d}")
    e(f"v_pk_add_f32 {v(u,2)}, {v(u,2)}, {v(u+2,2)}")
    for k in dpp:
        for r in range(u, u + 2): e(f"v_add_f32_dpp v{r}, v{r}, v{r} row_ror:{k} row_mask:0xf bank_mask:0xf")
def colsum_store(Q, j, soff, nl, tag):
    u = U0 + 8 * j
    e("v_lshlrev_b32 v6, 5, v4\nv_lshl_add_u32 v6, v3, 3, v6")
    m = (1 << nl) - 1
    set_exec(m | m << 16 | m << 32 | m << 48)
    e(f"buffer_store_dwordx2 {v(u,2)}, v6, {s(SWS,4)}, s{soff} offen offset:{256*j} sc1\ns_mov_b64 exec, -1")
    Q.add(tag, 1)

def zero_own_flags(Q):
    e("v_lshlrev_b32 v2, 2, v1\nv_mov_b32 v8, 0")
    def st(soff, nl):
        set_exec((1 << nl) - 1); e(f"buffer_store_dword v8, v2, {s(SWS,4)}, s{soff} offen sc1"); Q.add("zero")
    flag_addr(32, WS_F1, sCB, sRB, 4, None); st(32, 4)
    flag_addr(32, WS_F2, sRB, sCB, 32, None); st(32, 8)
    roles_48(36, 37)
    flag_addr(32, WS_F3, 36, 37, 32, None); st(32, 4)
    if LFIRST: e(f"s_add_u32 s32, s32, {WS_F3L - WS_F3}"); st(32, 4)
    roles_w2(36, 37, 38)
    if F5W:
        assert not CANARY
        e(f"s_lshl_b32 s32, s36, 3\ns_add_u32 s32, s32, s37\ns_lshl_b32 s32, s32, 5\ns_add_u32 s32, s32, s38\ns_lshl_b32 s32, s32, 4\ns_add_u32 s32, s32, {WS_F5W}")
        set_exec(0xf); e("v_lshlrev_b32 v9, 7, v1"); e(f"buffer_store_dword v8, v9, {s(SWS,4)}, s32 offen sc1"); Q.add("zero")
    else:
        e(f"s_lshl_b32 s32, s36, 3\ns_add_u32 s32, s32, s37\ns_lshl_b32 s32, s32, 2\ns_add_u32 s32, s32, s38\ns_lshl_b32 s32, s32, 4\ns_add_u32 s32, s32, {WS_F5}"); st(32, 4)
    roles_84(36, 37)
    f4_addr(32, 36, 37, None); st(32, 4)
    e("s_mov_b64 exec, -1\nv_mov_b32 v8, -1\nv_mov_b32 v9, -1\nv_mov_b32 v10, -1\nv_mov_b32 v11, -1\nv_lshlrev_b32 v7, 4, v1")
    e(f"s_lshl_b32 s32, s35, 5\ns_add_u32 s32, s32, {WS_RA}"); st(32, 8)
    e(f"s_add_u32 s32, s32, {WS_RB - WS_RA}"); st(32, 8)
    def st4(soff, nl):
        set_exec((1 << nl) - 1); e(f"buffer_store_dwordx4 v[8:11], v7, {s(SWS,4)}, s{soff} offen sc1"); Q.add("zero")
    e(f"s_mul_i32 s32, s35, 768\ns_add_u32 s32, s32, {WS_CS1}"); st4(32, 48)
    e(f"s_mul_i32 s32, s36, {2*3584*4}\ns_mul_i32 s33, s37, 896\ns_add_u32 s32, s32, s33\ns_add_u32 s32, s32, {WS_CS2}"); st4(32, 56)
    e(f"s_add_u32 s32, s32, {3584*4}"); st4(32, 56)
    if TWO:
        e(f"s_lshl_b32 s32, s36, 4\ns_add_u32 s32, s32, s37\ns_lshl_b32 s32, s32, 6\ns_add_u32 s32, s32, {WS_K2}"); st4(32, 4)
        e(f"s_lshl_b32 s32, s37, 4\ns_add_u32 s32, s32, s36\ns_lshl_b32 s32, s32, 6\ns_add_u32 s32, s32, {WS_CF}"); st4(32, 4)
    e("s_mov_b64 exec, -1")

sPFO, sPFE, sPFI, SPF = sNEED, pOUT, sT0, 44
sPFS = pOUT + 1
sTOUT = 96
def pf_init():
    e(f"s_mov_b64 {s(sTOUT,2)}, {s(pOUT,2)}")
    srd(SPF, pWO, 2 * MB)
    e(f"s_lshl_b32 s{sPFS}, s2, 2\ns_add_u32 s{sPFS}, s{sPFS}, s{sW}\ns_lshl_b32 s{sPFS}, s{sPFS}, 8\ns_mov_b32 s{sPFO}, s{sPFS}\ns_mov_b32 s{sPFE}, {2*MB}\ns_mov_b32 s{sPFI}, {2 if W2NT else 0 if PFW1 else 1}")
def pf_chunk():
    for i in range(4): e(f"s_buffer_load_dword s{sC0}, {s(SPF,4)}, s{sPFO} offset:{64*i}")
    e(f"s_add_u32 s{sPFO}, s{sPFO}, {1024*256}")
def pf_step(n):
    if not SPFON or n == 0: return
    G_, X, W2L = A.newlabel("pfg"), A.newlabel("pfx"), A.newlabel("pfw2")
    e(f"s_cmp_lt_u32 s{sPFO}, s{sPFE}\ns_cbranch_scc1 {G_}\ns_cmp_ge_u32 s{sPFI}, 2\ns_cbranch_scc1 {X}")
    e(f"s_mov_b32 s{sPFO}, s{sPFS}\ns_mov_b32 s{sPFE}, {7*MB}\ns_add_u32 s{sPFI}, s{sPFI}, 1\ns_cmp_eq_u32 s{sPFI}, 2\ns_cbranch_scc1 {W2L}")
    srd(SPF, pW1, 7 * MB)
    e(f"s_branch {G_}")
    A.label(W2L)
    srd(SPF, pW2, 7 * MB)
    A.label(G_)
    for i in range(n): pf_chunk()
    A.label(X)
CODE_MAX = 96 * KB
def code_warm():
    if not CWARM: return
    L = A.newlabel("pc")
    e(f"s_getpc_b64 s[42:43]")
    A.label(L)
    e(f"s_sub_u32 s42, s42, {L}-{KN}\ns_subb_u32 s43, s43, 0\ns_lshl_b32 s{sC0+1}, s{sR}, 2\ns_add_u32 s{sC0+1}, s{sC0+1}, s{sW}\ns_lshl_b32 s{sC0+1}, s{sC0+1}, 6")
    for i in range(NCODE): e(f"s_load_dword s{sC0}, s[42:43], s{sC0+1} offset:{i*8192}")
def tlb_warm():
    if not TLBW: return
    e(f"s_lshl_b32 s{sC0+1}, s{sR}, 2\ns_add_u32 s{sC0+1}, s{sC0+1}, s{sW}\ns_lshl_b32 s{sC0+1}, s{sC0+1}, {TLBG}")
    n = max(1, (96 * MB >> TLBG) // 128)
    for i in range(n):
        e(f"s_add_u32 s42, s{sC0+1}, {(i*128) << TLBG}\ns_min_u32 s42, s42, {96*MB - 64}\ns_load_dword s{sC0}, {s(pWS,2)}, s42")
    for ptr, nb in ((pW1, 7 * MB), (pW2, 7 * MB), (pWO, 2 * MB), (sTOUT, 4 * MB)):
        e(f"s_min_u32 s42, s{sC0+1}, {nb - 64}\ns_load_dword s{sC0}, {s(ptr,2)}, s42")
def pf_until_ep(k):
    L, X = A.newlabel("pu"), A.newlabel("pux")
    A.label(L)
    e(f"ds_read_b32 v{vFV}, v{vFR} offset:{OFF_EP}\ns_waitcnt lgkmcnt(0)\nv_cmp_gt_u32 vcc, {k}, v{vFV}\ns_cbranch_vccz {X}")
    e(f"s_sleep 1\ns_add_u32 s3, s3, 1\ns_cmp_lt_u32 s3, {LSPIN_MAX}\ns_cbranch_scc1 {L}")
    A.label(X)
def pf_finish():
    if not SPFON: return
    L = A.newlabel("pfin")
    A.label(L)
    pf_step(2)
    e(f"s_waitcnt lgkmcnt(6)\ns_cmp_lt_u32 s{sPFI}, 2\ns_cbranch_scc1 {L}\ns_cmp_lt_u32 s{sPFO}, s{sPFE}\ns_cbranch_scc1 {L}")
def pf_stamp(ST):
    if not STAMPS: return
    k_ = len(ST.names); ST.names.append("pfMB")
    e(f"s_mul_i32 s30, s{sPFI}, 1000\ns_lshr_b32 s31, s{sPFO}, 13\ns_mul_i32 s31, s31, 25\ns_lshr_b32 s31, s31, 5\ns_add_u32 s30, s30, s31\ns_add_u32 s{78+k_}, s78, s30")

class HStream:
    def __init__(self): self.items = []
    def __enter__(self):
        self.saved = A.lines; A.lines = []; return self
    def _take(self, atomic=False):
        if A.lines:
            if atomic: self.items.append(("g", list(A.lines)))
            else: self.items += [("g", [ln]) for ln in A.lines if ln.strip()]
        A.lines = []
    def at(self, k): self._take(); self.items.append(("at", k))
    def by(self, k): self._take(); self.items.append(("by", k))
    def atomic(self, f, cost=None):
        self._take(); f()
        if not A.lines: return
        self._take(True)
        if cost is not None: self.items[-1] = ("g", self.items[-1][1], cost)
    def __exit__(self, *a):
        self._take(); A.lines = self.saved
    @staticmethod
    def cost(ln):
        t = ln.strip()
        if t.startswith(("buffer_", "global_")): return VMC
        if t.startswith("ds_"): return 2
        if t.startswith("v_dot"): return DOTC
        if t.startswith(("v_exp", "v_rcp", "v_sqrt", "v_rsq")): return 2
        if t.startswith("s_") or t.endswith(":"): return 0.5
        return 1
    def emit(self, nbar, lim, npf, pf_from=0, pf_to=99, pre0=999, every=1, cw=(), more=False):
        st = {"b": 0, "used": 0}
        def bar():
            e("s_barrier")
            if st["b"] in cw: code_warm()
            if cw and cw[0] == 0 and st["b"] == 2: tlb_warm()
            if pf_from <= st["b"] < min(pf_to, nbar - 1) and st["b"] % every == every - 1: pf_step(npf + (1 if more and st["b"] % 3 != 1 else 0))
            st["b"] += 1; st["used"] = 0
        for kind, x, *oc in self.items:
            if kind == "at":
                while st["b"] <= x: bar()
            elif kind == "by":
                if DBGH: print("by", x, "at", st["b"], file=sys.stderr)
                assert st["b"] <= x, ("deadline missed", st["b"], x)
            else:
                c = oc[0] if oc else sum(self.cost(l) for l in x)
                if st["used"] > 8 and st["used"] + c > (lim if st["b"] > 0 else pre0) and not (len(x) == 1 and x[0].strip().startswith("s_")): bar()
                A.lines += x; st["used"] += c
        assert st["b"] <= nbar, st
        while st["b"] < nbar: bar()

def retry(loads, regs, nl, post=None):
    L, X = A.newlabel("rt"), A.newlabel("rtx")
    set_exec((1 << nl) - 1 if nl <= 64 else nl)
    e(f"s_mov_b32 s{sCNT}, 0")
    A.label(L)
    e("s_waitcnt vmcnt(0)")
    if post: post()
    e(f"v_max_u32 v8, v{regs[0]}, v{regs[1]}")
    for i in range(2, len(regs), 2): e(f"v_max3_u32 v8, v{regs[i]}, v{regs[i+1]}, v8")
    e(f"v_cmp_eq_u32 vcc, -1, v8\ns_cbranch_vccz {X}\ns_add_u32 s{sCNT}, s{sCNT}, 1\ns_cmp_gt_u32 s{sCNT}, {SPIN_MAX}\ns_cbranch_scc1 {X}\ns_sleep 8")
    loads()
    e(f"s_branch {L}")
    A.label(X)

def helper0_phase1(ST, Q):
    RS = 16
    with HStream() as H:
        e(f"""
s_lshl_b32 s35, s{sRB}, 4
s_add_u32 s35, s35, s{sCB}
s_lshl_b32 s34, s35, 14
v_lshrrev_b32 v6, 3, v1
v_lshlrev_b32 v5, 11, v6
v_and_b32 v7, 7, v1
v_lshl_add_u32 v5, v7, 4, v5
s_getreg_b32 s39, hwreg(HW_REG_XCC_ID)
""")
        bounds = [0] + [2 * x for x in HB] + [16]
        def red8(r):
            e(f"v_add_f32_dpp v{r}, v{r}, v{r} quad_perm:[1,0,3,2] row_mask:0xf bank_mask:0xf")
            e(f"v_add_f32_dpp v{r}, v{r}, v{r} quad_perm:[2,3,0,1] row_mask:0xf bank_mask:0xf")
            e(f"v_add_f32_dpp v{r}, v{r}, v{r} row_half_mirror row_mask:0xf bank_mask:0xf")
        def dots(bt):
            Q.wait(("rs", bt))
            for i in range(4 * bounds[bt], 4 * bounds[bt + 1]):
                e(f"v_dot2_f32_bf16 v{80+(i&1)}, v{RS+i}, v84, v{80+(i&1)}\nv_dot2_f32_bf16 v{82+(i&1)}, v{RS+i}, v{RS+i}, v{82+(i&1)}")
        e("v_mov_b32 v84, 0x3f803f80\nv_mov_b64 v[80:81], 0\nv_mov_b64 v[82:83], 0")
        for bt in range(len(bounds) - 1):
            if bt: H.at(bt - 1)
            for i in range(bounds[bt], bounds[bt + 1]): e(f"buffer_load_dwordx4 {v(RS+4*i,4)}, v5, {s(SX,4)}, s34 offen offset:{128*i}")
            Q.add(("rs", bt), bounds[bt + 1] - bounds[bt])
            if bt == 1: zero_own_flags(Q)
            if bt >= LAG: dots(bt - LAG)
        e(f"s_and_b32 s39, s39, 15\ns_or_b32 s39, s39, 0x80\ns_lshl_b32 s30, s{sG}, 5\ns_add_u32 s30, s30, s{sR}")
        e(f"v_mov_b32 v8, s39\nv_mov_b32 v2, s30")
        nb_ = len(bounds) - 1
        for bt in range(nb_ - LAG, nb_):
            H.at(bt + LAG - 1); dots(bt)
        H.by(H0AT + 1)
        e(f"s_mov_b64 exec, 1\nbuffer_store_byte v8, v2, {s(SD,4)}, 0 offen sc1\ns_mov_b64 exec, -1")
        e("v_add_f32 v10, v80, v81\nv_add_f32 v11, v82, v83")
        red8(10)
        red8(11)
        if DOT: e(f"v_mul_f32 v12, {f32(-1/1024)}, v10\nv_fma_f32 v11, v12, v10, v11\nv_max_f32 v11, 0, v11")
        ln_finish(10, 11, 1024)
        e("v_mul_f32 v10, v10, v11\nv_sub_f32 v10, 0, v10")
        e(f"v_lshrrev_b32 v7, 3, v1\nv_lshlrev_b32 v7, 2, v7\ns_lshl_b32 s32, s35, 5\ns_add_u32 s32, s32, {WS_RA}\ns_add_u32 s33, s32, {WS_RB-WS_RA}")
        set_exec(0x0101010101010101)
        e(f"buffer_store_dword v11, v7, {s(SWS,4)}, s32 offen sc1\nbuffer_store_dword v10, v7, {s(SWS,4)}, s33 offen sc1\ns_mov_b64 exec, -1")
        ST("st_pub")
        H.by(GAT - 1); H.at(GAT - 3)
        e(f"v_lshlrev_b32 v12, 2, v1\nbuffer_load_dword v13, v12, {s(SD,4)}, 0 offen sc1")
        H.at(GAT - 1)
        def handshake():
            X = A.newlabel("hsx")
            e(f"s_waitcnt vmcnt(0)\nv_and_b32 v8, 0x80808080, v13\nv_cmp_ne_u32 vcc, 0x80808080, v8\ns_cbranch_vccz {X}")
            poll("0", 64, srd_=SD, mask="0x80808080", t=8, sleep=16)
            e(f"buffer_load_dword v13, v12, {s(SD,4)}, 0 offen sc1\ns_waitcnt vmcnt(0)")
            A.label(X)
            e(f"s_mul_i32 s31, s39, 0x01010101\nv_cmp_ne_u32 vcc, s31, v13\ns_lshl_b32 s30, s{sG}, 3\ns_lshr_b64 s[32:33], vcc, s30\ns_and_b32 s30, s32, 0xff")
            if FORCE >= 0: e(f"s_mov_b32 s30, {FORCE}")
            e(f"v_mov_b32 v8, s30\nv_mov_b32 v7, {L_HD}\ns_mov_b64 exec, 1\nds_write_b32 v7, v8\ns_mov_b64 exec, -1")
        H.atomic(handshake)
        H.at(GAT)
        e(f"v_and_b32 v6, 31, v1\nv_lshlrev_b32 v6, 4, v6\nv_lshrrev_b32 v7, 5, v1\nv_lshl_add_u32 v6, v7, 13, v6\ns_lshl_b32 s34, s{sRB}, 9\ns_add_u32 s34, s34, {WS_RA}")
        ld = lambda: e(f"buffer_load_dwordx4 v[16:19], v6, {s(SWS,4)}, s34 offen sc1")
        ld()
        H.at(GAT + 2)
        def fin():
            retry(ld, [16, 17, 18, 19], 64)
            e(f"v_lshlrev_b32 v6, 4, v1\nv_add_u32 v6, {L_RA}, v6\nds_write_b128 v6, v[16:19]\ns_waitcnt lgkmcnt(0)")
        H.atomic(fin)
        ST("st_in")
        H.by(16)
    H.emit(17, HLIM, NPF, pf_from=PFD0, pf_to=GAT + 1, pre0=PRE0, cw=(0, 14) if CWARM > 1 else (0,))
    e("s_waitcnt lgkmcnt(0)")
    pf_stamp(ST)

def helper1_phase1(ST, Q):
    CSR = 80
    with HStream() as H:
        e(f"""
s_lshl_b32 s35, s{sRB}, 4
s_add_u32 s35, s35, s{sCB}
v_bfe_u32 v6, v1, 3, 2
v_lshrrev_b32 v7, 5, v1
v_lshl_add_u32 v6, v7, 6, v6
v_and_b32 v7, 7, v1
v_mul_u32_u24 v6, 6144, v6
v_lshl_add_u32 v6, v7, 4, v6
s_mul_i32 s32, s{sRB}, {4*6144}
s_lshl_b32 s33, s{sCB}, 7
s_add_u32 s32, s32, s33
""")
        bounds = [0] + HB + [8]
        e("v_mov_b32 v10, 0x00003f80\nv_mov_b32 v11, 0x3f800000")
        for r in range(U0, U0 + 24, 2): e(f"v_mov_b64 {v(r,2)}, 0")
        def dots(bt):
            Q.wait(("cs", bt))
            for i in range(bounds[bt], bounds[bt + 1]):
                for j in range(3):
                    for d in range(4):
                        u, r = U0 + 8 * j + 2 * d, CSR + 4 * (8 * j + i) + d
                        e(f"v_dot2_f32_bf16 v{u}, v{r}, v10, v{u}\nv_dot2_f32_bf16 v{u+1}, v{r}, v11, v{u+1}")
        nb_ = len(bounds) - 1
        for bt in range(nb_):
            if bt: H.at(bt - 1)
            for i in range(bounds[bt], bounds[bt + 1]):
                for j in range(3):
                    e(f"s_add_u32 s31, s32, {2048*j + 128*6144*i}\nbuffer_load_dwordx4 {v(CSR+4*(8*j+i),4)}, v6, {s(SB,4)}, s31 offen {'nt' if i < NTK else ''}")
            Q.add(("cs", bt), 3 * (bounds[bt + 1] - bounds[bt]))
            if bt >= LAG: dots(bt - LAG)
        for bt in range(nb_ - LAG, nb_):
            H.at(bt + LAG - 1); dots(bt)
        e(f"s_mul_i32 s33, s35, 768\ns_add_u32 s33, s33, {WS_CS1}")
        for j in range(3): colsum_block(j, 0, 0, (8,))
        H.at(H0AT + 1)
        for j in range(3): colsum_store(Q, j, 33, 8, "st1")
        ST("st_pub")
        H.by(GAT - 1); H.at(GAT)
        e(f"s_mul_i32 s33, s{sCB}, 768\ns_add_u32 s33, s33, {WS_CS1}\nv_lshlrev_b32 v6, 4, v1")
        def ld():
            for k in range(16): e(f"s_add_u32 s31, s33, {k*16*768}\nbuffer_load_dwordx4 {v(16+4*k,4)}, v6, {s(SWS,4)}, s31 offen sc1")
        def ld0():
            set_exec((1 << 48) - 1); ld(); e("s_mov_b64 exec, -1")
        H.atomic(ld0)
        H.at(GAT + 2)
        def fin():
            retry(ld, list(range(16, 80)), 48)
            for k in range(1, 16): e(f"v_pk_add_f32 v[16:17], v[16:17], {v(16+4*k,2)}\nv_pk_add_f32 v[18:19], v[18:19], {v(18+4*k,2)}")
            e(f"v_add_u32 v6, {L_CS}, v6\nds_write_b128 v6, v[16:19]\ns_mov_b64 exec, -1\ns_waitcnt lgkmcnt(0)")
        H.atomic(fin)
        ST("st_in")
        H.by(16)
    H.emit(17, HLIM, NPF, pf_from=PFD0, pf_to=GAT + 1, pre0=PRE0, cw=(0, 14) if CWARM > 1 else (0,))
    e("s_waitcnt lgkmcnt(0)")
    pf_stamp(ST)

def red16(regs, tmps):
    for k in (4, 8):
        for r in regs: e(f"v_add_f32_dpp v{r}, v{r}, v{r} row_ror:{k} row_mask:0xf bank_mask:0xf")
    xg_multi("v_add_f32", regs, tmps)
def helper4_two(ST, Q):
    q0 = list(Q.q); n0 = list(ST.names)
    e(f"s_cmp_lg_u32 s{sWN}, 0\ns_cbranch_scc1 L_h4b")
    with HStream() as H:
        e(f"s_lshl_b32 s36, s{sRB}, 11\ns_add_u32 s36, s36, {WS_F3}\ns_lshr_b32 s37, s{sR}, 1\ns_min_u32 s37, s37, 13\ns_lshl_b32 s37, s37, 11\ns_add_u32 s37, s37, {WS_F3}")
        H.at(0)
        Q.wait(2)
        e("v_lshrrev_b32 v240, 2, v1\nv_lshlrev_b32 v240, 7, v240\nv_and_b32 v241, 3, v1\nv_lshl_add_u32 v240, v241, 2, v240\nv_min_u32 v241, 47, v1\nv_lshlrev_b32 v241, 7, v241")
        e(f"s_lshl_b32 s34, s{sRB}, 1\ns_lshr_b32 s30, s{sCB}, 3\ns_add_u32 s34, s34, s30\ns_lshl_b32 s34, s34, 14\ns_and_b32 s30, s{sCB}, 7\ns_lshl_b32 s30, s30, 6\ns_add_u32 s34, s34, s30\ns_add_u32 s34, s34, {WS_STAT}\ns_add_u32 s35, s34, 8192")
        e("v_lshrrev_b32 v11, 2, v1\nv_lshlrev_b32 v11, 9, v11\nv_and_b32 v12, 3, v1\nv_lshlrev_b32 v12, 4, v12\nv_add_u32 v11, v11, v12")
        H.at(CHKAT)
        e(f"buffer_load_dword v232, v240, {s(SWS,4)}, s36 offen sc1")
        Q.add("chk")
        H.at(CHKAT + 2)
        def chk():
            X = A.newlabel("ckx")
            Q.wait("chk")
            e(f"v_and_b32 v232, 2, v232\nv_cmp_ne_u32 vcc, 2, v232\ns_cbranch_vccz {X}")
            poll("s36", 64, voff=240, mask=2, t=8, sleep=8)
            A.label(X)
        H.atomic(chk, 6)
        e(f"buffer_load_dwordx4 v[16:19], v11, {s(SWS,4)}, s34 offen sc1\nbuffer_load_dwordx4 v[20:23], v11, {s(SWS,4)}, s35 offen sc1")
        e(f"buffer_load_dwordx4 v[234:237], v241, {s(SWS,4)}, s37 offen sc1")
        H.at(CHKAT + 4)
        e("s_waitcnt vmcnt(1)\nv_pk_add_f32 v[24:25], v[16:17], v[20:21]\nv_pk_add_f32 v[26:27], v[18:19], v[22:23]")
        red16([24, 26], [28, 29])
        for h in range(2):
            e(f"v_mul_f32 v30, {f32(1/32)}, v{24+2*h}\nv_sub_f32 v31, v{16+2*h}, v30\nv_sub_f32 v32, v{20+2*h}, v30\nv_mul_f32 v31, v31, v31\nv_fma_f32 v31, v32, v32, v31")
            e(f"v_mov_b32 v30, {f32(1/32)}\nv_fma_f32 v{25+2*h}, v31, v30, v{25+2*h}")
        red16([25, 27], [28, 29])
        for h in range(2):
            a_, b_ = 24 + 2 * h, 25 + 2 * h
            ln_finish(a_, b_, 1024)
            e(f"v_mul_f32 v{b_}, {f32(-LOG2E)}, v{b_}\nv_mul_f32 v{a_}, v{a_}, v{b_}\nv_sub_f32 v{a_}, 0, v{a_}")
        e(f"s_lshl_b32 s34, s{sRB}, 10\ns_add_u32 s34, s34, {WS_K2}\ns_lshl_b32 s30, s{sCB}, 6\ns_add_u32 s35, s34, s30")
        e(f"s_mov_b64 exec, 0xf\nbuffer_store_dwordx4 v[24:27], v12, {s(SWS,4)}, s35 offen sc1\ns_mov_b64 exec, -1")
        def chk2():
            X = A.newlabel("ckx")
            e(f"s_waitcnt vmcnt(1)\nv_and_b32 v234, v234, v235\nv_and_b32 v236, v236, v237\nv_and_b32 v234, v234, v236\nv_and_b32 v234, 1, v234\nv_cmp_ne_u32 vcc, 1, v234\ns_cbranch_vccz {X}")
            for d in range(3):
                e(f"s_add_u32 s38, s37, {2048*d}"); poll("s38", 64, voff=240, mask=1, t=8, sleep=8)
            A.label(X)
        H.atomic(chk2, 8)
        e("v_lshlrev_b32 v6, 4, v1")
        H.by(G2AT + 1); H.at(G2AT)
        ld = lambda: e(f"buffer_load_dwordx4 v[16:19], v6, {s(SWS,4)}, s34 offen sc1")
        ld()
        H.at(15)
        def fin():
            retry(ld, [16, 17, 18, 19], 64)
            e(f"v_add_u32 v6, {L_RA}, v6\nds_write_b128 v6, v[16:19]\ns_waitcnt lgkmcnt(0)")
        H.atomic(fin, 10)
        ST("st2_in")
        H.by(16)
    H.emit(17, HLIM4, NPF, more=True, pf_to=14)
    e("s_branch L_h4x")
    A.label("L_h4b")
    Q.q = list(q0); ST.names = list(n0)
    with HStream() as H:
        H.at(0)
        Q.wait(2)
        e(f"s_mul_i32 s34, s{sCB}, 896\ns_mul_i32 s30, s{sRB}, 56\ns_add_u32 s34, s34, s30\ns_add_u32 s34, s34, {WS_CS2}\ns_add_u32 s35, s34, {16*3584*4}")
        e(f"v_lshrrev_b32 v11, 2, v1\nv_mul_u32_u24 v11, {3584*4}, v11\nv_and_b32 v12, 3, v1\nv_lshlrev_b32 v12, 4, v12\nv_add_u32 v11, v11, v12")
        e("v_and_b32 v13, 3, v1\nv_cmp_eq_u32 s[38:39], 3, v13")
        H.at(CHKAT + 1)
        def ld1(): e(f"buffer_load_dwordx4 v[16:19], v11, {s(SWS,4)}, s34 offen sc1\nbuffer_load_dwordx4 v[20:23], v11, {s(SWS,4)}, s35 offen sc1")
        ld1()
        H.at(CHKAT + 3)
        def fix():
            for r in (18, 19, 22, 23): e(f"v_cndmask_b32_e64 v{r}, v{r}, 0, s[38:39]")
        H.atomic(lambda: retry(ld1, list(range(16, 24)), 64, post=fix), 14)
        e("v_pk_add_f32 v[16:17], v[16:17], v[20:21]\nv_pk_add_f32 v[18:19], v[18:19], v[22:23]")
        red16([16, 17, 18, 19], [28, 29, 30, 31])
        e(f"s_lshl_b32 s34, s{sCB}, 10\ns_add_u32 s34, s34, {WS_CF}\ns_lshl_b32 s30, s{sRB}, 6\ns_add_u32 s35, s34, s30")
        e(f"s_mov_b64 exec, 0xf\nbuffer_store_dwordx4 v[16:19], v12, {s(SWS,4)}, s35 offen sc1\ns_mov_b64 exec, -1")
        e(f"v_lshlrev_b32 v6, 4, v1\nv_lshrrev_b32 v7, 2, v1\nv_mul_u32_u24 v7, 56, v7\nv_add_u32 v7, v7, v12\nv_add_u32 v7, {L_CS}, v7")
        H.by(G2AT + 1); H.at(G2AT)
        ld = lambda: e(f"buffer_load_dwordx4 v[16:19], v6, {s(SWS,4)}, s34 offen sc1")
        ld()
        H.at(15)
        def fin():
            retry(ld, [16, 17, 18, 19], 64)
            e("ds_write_b64 v7, v[16:17]\ns_andn2_b64 exec, exec, s[38:39]\nds_write_b64 v7, v[18:19] offset:8\ns_mov_b64 exec, -1\ns_waitcnt lgkmcnt(0)")
        H.atomic(fin, 10)
        ST("st2_in")
        H.by(16)
    H.emit(17, HLIM4, NPF, more=True, pf_to=14)
    A.label("L_h4x")
    pf_stamp(ST)
    pf_finish()

def helper_rest(ST, Q):
    CSR = 16
    with HStream() as H:
        if B3LATE: H.at(0)
        for st in range(6, G3.NSB): G3.issue_b(Q, st)
        H.at(5)
        Q.wait_all()
        H.by(6)
        roles_84()
        b_src_w1()
        G4.p_setup_b(sWN)
        e(f"""
v_lshrrev_b32 v6, 3, v1
v_mul_u32_u24 v6, 7168, v6
v_and_b32 v7, 7, v1
v_lshl_add_u32 v6, v7, 4, v6
v_lshrrev_b32 v5, 2, v1
v_mul_u32_u24 v5, 7168, v5
v_and_b32 v7, 3, v1
v_lshl_add_u32 v5, v7, 4, v5
s_lshl_b32 s35, s{sRB}, 1
s_add_u32 s35, s35, s{sWN}
s_mul_i32 s32, s35, {32*7168}
s_mul_i32 s33, s{sCB}, 448
s_add_u32 s32, s32, s33
""")
        e(f"s_mul_i32 s33, s35, {3584*4}\ns_mul_i32 s34, s{sCB}, 896\ns_add_u32 s33, s33, s34\ns_add_u32 s33, s33, {WS_CS2}")
        if WARM4:
            e(f"s_and_b32 s36, s35, 15\ns_mul_i32 s36, s36, {4*7168}\ns_mul_i32 s37, s{sCB}, 448\ns_and_b32 s37, s37, {hex(0xffffff80)}\ns_add_u32 s36, s36, s37")
            e(f"v_bfe_u32 v8, v1, 2, 2\nv_mul_u32_u24 v8, 7168, v8\nv_and_b32 v9, 3, v1\nv_lshl_add_u32 v8, v9, 7, v8\ns_mov_b32 s37, {(G4.korder[1]-G4.korder[0])*64*7168}\nv_mul_lo_u32 v9, v3, s37\nv_add_u32 v8, v8, v9")
            assert G4.korder[0] == 0 and G4.korder[2] == 2 * G4.korder[1]
            H.at(CS2AT - 1)
            e(f"buffer_load_dword v244, v8, {s(SB,4)}, s36 offen"); Q.add("warm")
        H.at(CS2AT)
        for j in range(3):
            for i in range(4):
                e(f"s_add_u32 s31, s32, {8*7168*i}\nbuffer_load_dwordx4 {v(CSR+4*(4*j+i),4)}, v6, {s(SB,4)}, s31 offen offset:{128*j}")
            Q.add(("w", j), 4)
        for i in range(2):
            e(f"s_add_u32 s31, s32, {16*7168*i}\nbuffer_load_dwordx4 {v(CSR+48+4*i,4)}, v5, {s(SB,4)}, s31 offen offset:384")
        Q.add(("w", 3), 2)
        if BTAIL:
            H.at(BT0); G4.issue_b(Q, 0)
            H.at(13); G4.issue_b(Q, 1)
    H.emit(17, 40, 1, every=3, pf_to=CS2AT, cw=(14,) if CWARM > 1 else ())
    pf_stamp(ST)
    for j in range(4):
        Q.wait(("w", j))
        colsum_block(j, CSR + 16 * j, 4 if j < 3 else 2, (8,) if j < 3 else (4, 8))
    pf_until_ep(2)
    if BSEEN:
        for j in range(4): colsum_store(Q, j, 33, 8 if j < 3 else 4, "st2")
        if BSEEN == 2: G4.issue_b(Q, 1)
        e(f"v_mov_b32 v12, {L_FULL}")
        lds_wait(12, 1, vFV, sleep=1)
        if BSEEN == 1: G4.issue_b(Q, 1)
    else:
        if not BLATE:
            for st in ((2,) if BTAIL else (1, 2)): G4.issue_b(Q, st)
        for j in range(4): colsum_store(Q, j, 33, 8 if j < 3 else 4, "st2")
    ST("cs2_pub")
    if BTAIL: Q.wait(0)
    if TWO: return helper4_two(ST, Q)
    with HStream() as H:
        e(f"s_lshl_b32 s36, s{sRB}, 11\ns_add_u32 s36, s36, {WS_F3}\ns_lshr_b32 s37, s{sR}, 1\ns_min_u32 s37, s37, 13\ns_lshl_b32 s37, s37, 11\ns_add_u32 s37, s37, {WS_F3}")
        H.at(0)
        if BSEEN:
            H.atomic(lambda: G4.issue_b(Q, 2), 0)
            Q.wait(1)
            H.at(1)
        Q.wait(2)
        e("v_lshrrev_b32 v240, 2, v1\nv_lshlrev_b32 v240, 7, v240\nv_and_b32 v241, 3, v1\nv_lshl_add_u32 v240, v241, 2, v240\nv_min_u32 v241, 47, v1\nv_lshlrev_b32 v241, 7, v241")
        H.at(CHKAT)
        e(f"buffer_load_dword v232, v240, {s(SWS,4)}, s36 offen sc1\nbuffer_load_dwordx4 v[234:237], v241, {s(SWS,4)}, s37 offen sc1")
        Q.add("chk", 2)
        H.at(CHKAT + 2)
        def chk():
            X = A.newlabel("ckx")
            Q.wait("chk")
            e(f"v_lshrrev_b32 v232, 1, v232\nv_and_b32 v232, v232, v236\nv_and_b32 v232, v232, v237\nv_and_b32 v234, v234, v235\nv_and_b32 v232, v232, v234\nv_and_b32 v232, 1, v232\nv_cmp_ne_u32 vcc, 1, v232\ns_cbranch_vccz {X}")
            poll("s36", 64, voff=240, mask=2, t=8, sleep=8)
            for d in range(3):
                e(f"s_add_u32 s38, s37, {2048*d}"); poll("s38", 64, voff=240, mask=1, t=8, sleep=8)
            A.label(X)
        H.atomic(chk, 10)
        e(f"v_lshlrev_b32 v11, 4, v1\ns_lshl_b32 s36, s35, 14\ns_add_u32 s36, s36, {WS_STAT}\ns_add_u32 s37, s36, 4096\ns_add_u32 s38, s36, 8192\ns_add_u32 s39, s36, 12288")
        def ldst():
            for i in range(16): e(f"buffer_load_dwordx4 {v(96+4*i,4)}, v11, {s(SWS,4)}, s{36+i//4} offen offset:{1024*(i%4)} sc1")
        if not GB: ldst()
        Q.add("stat", 16)
        e(f"s_mul_i32 s33, s{sCB}, 896\ns_mul_i32 s34, s{sWN}, 448\ns_add_u32 s33, s33, s34\ns_add_u32 s33, s33, {WS_CS2}")
        e(f"v_and_b32 v7, 31, v1\nv_lshlrev_b32 v7, 4, v7\nv_lshrrev_b32 v6, 5, v1\nv_mul_u32_u24 v6, {3584*4}, v6\nv_add_u32 v6, v6, v7")
        M28 = ((1 << 28) - 1) | (((1 << 28) - 1) << 32)
        def ld(ks=range(16)):
            for k in ks: e(f"s_add_u32 s31, s33, {k*2*3584*4}\nbuffer_load_dwordx4 {v(16+4*k,4)}, v6, {s(SWS,4)}, s31 offen sc1")
        if GB:
            H.at(GB)
            def burst():
                ldst(); set_exec(M28); ld(); e("s_mov_b64 exec, -1")
            H.atomic(burst, 0)
            H.at(GB + 1)
        else:
            for c in range(4):
                def ldc(c=c):
                    set_exec(M28); ld(range(4 * c, 4 * c + 4)); e("s_mov_b64 exec, -1")
                H.atomic(ldc, 4 * VMC)
        Q.add("cs", 16)
        Q.wait("stat")
        for h in range(2):
            e(f"v_pk_add_f32 {v(160+2*h,2)}, {v(96+2*h,2)}, {v(100+2*h,2)}")
            for i in range(2, 16): e(f"v_pk_add_f32 {v(160+2*h,2)}, {v(160+2*h,2)}, {v(96+4*i+2*h,2)}")
        for h in range(2): e(f"v_mov_b32 v{164+h}, v{160+2*h}")
        for h in range(2): e(f"v_permlane32_swap_b32 v{160+2*h}, v{164+h}")
        for h in range(2): e(f"v_add_f32 v{160+2*h}, v{160+2*h}, v{164+h}\nv_mul_f32 v{166+h}, {f32(1/32)}, v{160+2*h}\nv_mov_b32 v{168+h}, 0")
        for i in range(16):
            for h in range(2):
                r = 96 + 4 * i + 2 * h
                e(f"v_sub_f32 v{r}, v{r}, v{166+h}\nv_fma_f32 v{168+h}, v{r}, v{r}, v{168+h}")
        e(f"v_mov_b32 v13, {f32(1/32)}")
        for h in range(2): e(f"v_fma_f32 v{161+2*h}, v{168+h}, v13, v{161+2*h}\nv_mov_b32 v{164+h}, v{161+2*h}")
        for h in range(2): e(f"v_permlane32_swap_b32 v{161+2*h}, v{164+h}")
        for h in range(2):
            a_, b_ = 160 + 2 * h, 161 + 2 * h
            e(f"v_add_f32 v{b_}, v{b_}, v{164+h}")
            ln_finish(a_, b_, 1024)
            e(f"v_mul_f32 v{b_}, {f32(-LOG2E)}, v{b_}\nv_mul_f32 v{a_}, v{a_}, v{b_}\nv_sub_f32 v{a_}, 0, v{a_}")
        e(f"s_lshl_b32 s30, s{sWN}, 9\ns_add_u32 s30, s30, {L_RA}\nv_add_u32 v13, s30, v7\nds_write_b128 v13, v[160:163]")
        def fin():
            retry(ld, list(range(16, 80)), M28)
            e("s_mov_b64 exec, -1")
        H.atomic(fin, 36)
        for k in range(1, 16): e(f"v_pk_add_f32 v[16:17], v[16:17], {v(16+4*k,2)}\nv_pk_add_f32 v[18:19], v[18:19], {v(18+4*k,2)}")
        for h in range(4): e(f"v_mov_b32 v{20+h}, v{16+h}")
        for h in range(4): e(f"v_permlane32_swap_b32 v{16+h}, v{20+h}")
        e("v_pk_add_f32 v[16:17], v[16:17], v[20:21]\nv_pk_add_f32 v[18:19], v[18:19], v[22:23]")
        e(f"s_add_u32 s34, s34, {L_CS}\nv_add_u32 v7, s34, v7"); set_exec((1 << 28) - 1)
        e("ds_write_b128 v7, v[16:19]\ns_mov_b64 exec, -1\ns_waitcnt lgkmcnt(0)")
        ST("st2_in")
        H.by(16)
        if W2NT:
            H.at(W2AT)
            def w2pf():
                srd(SB, pW2, 7 * MB)
                e(f"s_lshr_b32 s36, s{sG}, 1\ns_mul_i32 s36, s36, {896*2048}\ns_lshl_b32 s37, s{sR}, 1\ns_add_u32 s37, s37, s{sWN}\ns_mul_i32 s37, s37, {56*128}\ns_add_u32 s36, s36, s37\nv_lshlrev_b32 v240, 7, v1")
                set_exec((1 << 56) - 1)
                for k in range(2): e(f"s_add_u32 s31, s36, {k*64*56*128}\nbuffer_load_dword v{244+k}, v240, {s(SB,4)}, s31 offen {W2NT.replace('none','')}")
                e("s_mov_b64 exec, -1")
            H.atomic(w2pf, 0)
    if NOH4:
        keep_ = []
        for it in H.items:
            keep_.append(it)
            if it[0] == "at" and it[1] == CHKAT: break
        if NOH4 == 2: keep_ = [it for it in H.items if not (it[0] == "g" and any("buffer_load" in l for l in it[1]) )]
        H.items = keep_
    H.emit(17, HLIM4, NPF, more=True, pf_to=14, cw=(14,) if CWARM > 1 else ())
    pf_stamp(ST)
    pf_finish()
    if RP5:
        roles_w2(); b_src_w2(); G5.p_setup_b(sWN); G5.rp_addr()
        Q.q = []
        G5.rp_load(Q, RP5, 16)
        with HStream() as H:
            for i in range(RP5):
                H.at(i + 1); H.atomic(lambda: G5.rp_drain(Q, i, 16), 0)
        H.emit(RP5 + 2, 99, 0)
    if CANARY:
        roles_w2()
        Q.q = []
        with HStream() as H:
            e(f"s_lshl_b32 s33, s{sRB}, 3\ns_add_u32 s33, s33, s{sCB}\ns_mul_i32 s34, s33, {256*KB}\ns_add_u32 s34, s34, {WS_PART}\ns_lshl_b32 s30, s{sWN}, 13\ns_add_u32 s34, s34, s30")
            e(f"s_lshl_b32 s30, s{sKS}, 14\ns_add_u32 s34, s34, s30\nv_lshlrev_b32 v2, 4, v1")
            for k in range(4): e(f"v_mov_b32 v{8+k}, -1")
            e(f"s_lshl_b32 s37, s33, 6\ns_lshl_b32 s30, s{sKS}, 4\ns_add_u32 s37, s37, s30\ns_lshl_b32 s30, s{sWN}, 3\ns_add_u32 s37, s37, s30\ns_add_u32 s37, s37, {WS_F5}")
            H.at(PFILL)
            for d in range(1, 4):
                for hb in range(2):
                    e(f"s_add_u32 s31, s{sKS}, {d}\ns_and_b32 s31, s31, 3\ns_lshl_b32 s31, s31, 16\ns_add_u32 s31, s31, s34\ns_add_u32 s31, s31, {hb*4096}")
                    for b in range(4): e(f"buffer_store_dwordx4 v[8:11], v2, {s(SWS,4)}, s31 offen offset:{b*1024} sc1")
            H.by(PFILL + 7); H.at(PFILL + 8)
            e(f"s_waitcnt vmcnt(0)\nv_mov_b32 v12, 1\nv_lshlrev_b32 v13, 2, v1\ns_mov_b64 exec, 3\nbuffer_store_dword v12, v13, {s(SWS,4)}, s37 offen sc1\ns_mov_b64 exec, -1")
        H.emit(PFILL + 10, 24, 0)
    if W2NT:
        set_exec((1 << 56) - 1)
        for k in range(2, 4): e(f"s_add_u32 s31, s36, {k*64*56*128}\nbuffer_load_dword v{244+k}, v240, {s(SB,4)}, s31 offen {W2NT.replace('none','')}")
        e("s_mov_b64 exec, -1")

def producer(ST):
    Q = VmQ()
    pf_init()
    e(f"s_cmp_eq_u32 s{sW}, 2\ns_cbranch_scc1 L_h0\ns_cmp_eq_u32 s{sW}, 3\ns_cbranch_scc1 L_h1")
    SD_ = ST.fork("D"); dma_phase1(SD_, Q)
    e("s_branch L_att")
    A.label("L_h0")
    if HPRIO: e(f"s_setprio {HPRIO}")
    SH = ST.fork("H"); helper0_phase1(SH, VmQ())
    e("s_branch L_att")
    A.label("L_h1")
    if HPRIO: e(f"s_setprio {HPRIO}")
    SH = ST.fork("H"); helper1_phase1(SH, VmQ())
    while len(SH.names) < len(SD_.names): SH.names.append("-")
    while len(SD_.names) < len(SH.names): SD_.names.append("-")
    A.label("L_att")
    e(f"s_setprio {APRIO}")
    n0 = len(SD_.names)
    neighbours_and_attention(SD_, Q)
    SH.names += SD_.names[n0:]
    e(f"s_cmp_ge_u32 s{sW}, 2\ns_cbranch_scc1 L_hrest")
    dma_rest(SD_, Q)
    SD_.flush()
    e("s_endpgm")
    A.label("L_hrest")
    e(f"s_setprio {HPRIO}")
    helper_rest(SH, VmQ())
    SH.flush()

def main():
    A.begin_kernel(KN)
    if STAMPS: e(f"{STAMP_OP} {s(sST,2)}")
    e(f"""
s_cmp_ge_u32 s2, 256
s_cbranch_scc1 L_end
s_load_dwordx16 s[48:63], s[0:1], 0
s_load_dwordx2 s[64:65], s[0:1], 64
v_lshrrev_b32 v2, 6, v0
v_and_b32 v1, 63, v0
v_readfirstlane_b32 s{sWAVE}, v2
v_lshrrev_b32 v3, 4, v1
v_and_b32 v4, 15, v1
s_and_b32 s{sG}, s2, 7
s_mov_b32 s3, 0
s_lshr_b32 s{sR}, s2, 3
s_and_b32 s{sW}, s{sWAVE}, 3
s_lshr_b32 s{sWM}, s{sW}, 1
s_and_b32 s{sWN}, s{sW}, 1
""")
    roles_p1()
    e(f"s_lshl_b32 s{sOWN}, s{sCB}, 4\ns_add_u32 s{sOWN}, s{sOWN}, s{sRB}\ns_lshl_b32 s{sOWN}, s{sOWN}, 16")
    e(f"s_add_u32 s{sROT}, s{sRB}, s{sCB}\ns_and_b32 s{sROT}, s{sROT}, {15 if ROT1 else 0}")
    e(f"s_lshl_b32 s{sBC}, s{sCB}, 7\ns_mov_b32 s{sBR}, 0\ns_lshl_b32 s{sAR}, s{sRB}, 18")
    G1.p_setup_a(); G1.p_setup_b()
    sync_regs()
    e("s_waitcnt lgkmcnt(0)")
    if STAMPS: e(f"s_mov_b32 s78, s{sST}\ns_mov_b32 s0, 0\ns_mov_b32 s1, 0")
    srd(SX, pX, 4 * MB); srd(SB, pWQKV, 6 * MB)
    if WSOFF: e(f"s_add_u32 s{pWS}, s{pWS}, {WSOFF*MB}\ns_addc_u32 s{pWS+1}, s{pWS+1}, 0")
    srd(SWS, pWS, WS_BYTES); srd(SD, pDBG, 256)
    e(f"s_cmp_lt_u32 s{sWAVE}, 4\ns_cbranch_scc1 L_cons")
    producer(Stamper("P"))
    A.label("L_end")
    e("s_endpgm")
    A.label("L_cons")
    if CPRIO: e(f"s_setprio {CPRIO}")
    consumer(Stamper("C"))
    A.lines.append(f".fill ({NCODE*8192} - (. - {KN})) / 4, 4, 0xbf810000")
    A.end_kernel(KN, 256, 102)
    A.lines = hazard.fix(A.lines)
    hdr = open("sequential_preLN__sliding_block__dense_activation_silu__prompt.s.ref").read().split("; Override launch")[0]
    hdr += f"; @launch grid=(256,1,1) block=(512,1,1) lds={LDS_BYTES}\n"
    for k, nm in STAMP_NAMES.items(): hdr += f"; stamps {k}: {' '.join(nm)}\n"
    sys.stdout.write(A.text(hdr))
main()
```

```python
import sys, struct
from asmlib import Asm
import hazard

ARGS = sys.argv[1:]
def opt(name, default):
    for a in ARGS:
        if a.startswith("--" + name + "="): return type(default)(a.split("=", 1)[1])
    return default
STAMPS = "--stamps" in ARGS
STAMP_OP = "s_memtime" if "--cyc" in ARGS else "s_memrealtime"
DPRIO = opt("dprio", 0)
FORCE = opt("force", -1)
PSLEEP = opt("psleep", 1)
GAT = opt("gat", 13); H0AT = opt("h0at", 5)
PUBN = opt("pubn", 16)
FPOS = opt("fpos", 8)
RP4 = opt("rp4", 0); RP5 = opt("rp5", 0)
CS2AT = opt("cs2at", 11)
BT0 = opt("bt0", 11)
CHKAT = opt("chkat", 3)
HLIM4 = opt("hlim4", 42)
DOTC = opt("dotc", 1.0)
NOST4 = opt("nost4", 0)
NSB3 = opt("nsb3", 11)
PF2 = opt("pf2", 4)
XAT = opt("xat", -1)
ZAT = opt("zat", 0)
PRE1 = opt("pre1", 0)
ROT5 = opt("rot5", 0)
ROLL = opt("roll", 0)
SLDS = opt("slds", 0)
JIT = opt("jit", 0)
WBL2 = opt("wbl2", 0)
REGRP = opt("regrp", 1)
LEAK = opt("leak", 0)
TWO = opt("two", 1)
G2AT = opt("g2at", 13)
GB = opt("gb", 0)
NOH4 = opt("noh4", 0)
LOOK0 = opt("look0", 4)
LOOKN = opt("lookn", 16)
PPIPE = opt("ppipe", 0)
PS0 = opt("ps0", 0)
PW0 = opt("pw0", 1)
PW5 = opt("pw5", 0)
PSI = opt("psi", 0)
PGAP = opt("pgap", 5)
VBAR = opt("vbar", 4)
VLATE = opt("vlate", 1)
VBARP = opt("vbarp", 1)
CHAIN = opt("chain", "none").split(",")
RSP = opt("rsp", 0.75)
LEVELS = opt("levels", 1)
LFIRST = opt("lfirst", 0)
HLT = opt("hlt", 1)
BTAIL = opt("btail", 0)
F5W = opt("f5w", 1)
CPRIO = opt("cprio", 0)
PERT = opt("pert", 0.0); PERTN = opt("pertn", 1); PERTL = opt("pertl", 1)
KFLAG = opt("kflag", 1)
SLOWPF = opt("slowpf", 1)
GATEN = {"wo": opt("g3n", 2), "w1": opt("g4n", 2)}
APK = opt("apk", 1)
AMIX = opt("amix", 0)
APRIO = opt("aprio", 0)
TAILPM = opt("tailpm", 1)
DBGOUT = opt("dbgout", -1)
CANARY = opt("canary", 0)
BSEEN = opt("bseen", 0)
PFILL = opt("pfill", 0)
ASY5 = opt("asy5", 1)
WARM4 = opt("warm4", 0)
ASYNC = opt("async", 0)
NTK = opt("ntk", 0)
TLBW = opt("tlbw", 0)
TLBG = opt("tlbg", 21)
EARLY5 = opt("early5", 1)
E5LAG = opt("e5lag", 2)
LAG = opt("lag", 1)
H1FL = opt("h1fl", "")
B1FL = opt("b1fl", "")
W2NT = opt("w2nt", "")
W2AT = opt("w2at", 14)
KORD = opt("kord", 1)
CWARM = opt("cwarm", 1)
NCODE = opt("ncode", 11)
CWC = opt("cwc", 0)
TAILD = opt("taild", 0)
TOUCH4 = opt("touch4", 0)
HB = [int(x) for x in opt("hb", "3,5,7").split(",")]
DOT = opt("dot", 1)
PFH = opt("pfh", 0)
PFD0 = opt("pfd0", 3)
BEARLY = opt("bearly", 0)
BLATE = opt("blate", 0)
B3LATE = opt("b3late", 0)
KVFL = opt("kvfl", "sc1")
FINE = opt("fine", 1)
G4AT = opt("g4at", 9)
NPF = opt("npf", 1)
PFW1 = opt("pfw1", 0)
PFBUB = opt("pfbub", 0)
DST = opt("dst", "")
DW = eval(opt("dw", "()")); DB = eval(opt("db", "(0,1,2,3,4,5,6,7,8,9,10,12,14)"))
VMC = opt("vmc", 5)
PRE0 = opt("pre0", 999)
DBGH = opt("dbgh", 0)
P1G = opt("p1g", 2)
HLIM = opt("hlim", 120)
HPRIO = opt("hprio", 0)
SENT = 0xFFFFFFFF
SKIP = opt("skip", "att_v,p_flag").split(",")
ROT1 = opt("rot1", 0); ROT3 = opt("rot3", 0); ROT4 = opt("rot4", 0)
BAR = opt("bar", 0)
NS1 = opt("ns1", 3)
ALIAS = opt("alias", 1)
TESTH1 = opt("testh1", 0)
TFL = opt("tfl", "nt")
TOUCH = opt("touch", 0)
LFL = opt("lfl", "").replace("_", " ")
PFL = opt("pfl", "sc1").replace("_", " ")
OFL = opt("ofl", "nt").replace("_", " ")
TS = opt("ts", 0)
SPFON = opt("spf", 1)
PFB = opt("pfb", 6)
MAP1 = opt("map1", 162)
WAKE = opt("wake", 0)
LCAP = opt("lcap", 10)
SPREAD = opt("spread", 0.8)
DPOS = opt("dpos", 0.25)
NOSY = opt("nosy", "")
EARLY = opt("early", 1)
DSLEEP = opt("dsleep", 1)
ONLY = opt("only", 0)
NOLOAD = opt("noload", "")
NOMFMA = opt("nomfma", 0)
KN = "sequential_preLN__sliding_block__dense_activation_silu__prompt_kernel"
SPLIT = 4

MB = 1 << 20; KB = 1024
WS_AR, WS_H, WS_AR2 = 0, 20 * MB, 24 * MB
AR_K, AR_V, AR_O = 0, 16 * KB, 32 * KB
WS_STAT = 40 * MB
WS_CS1 = 41 * MB
WS_CS2 = 41 * MB + 256 * KB
WS_RA = 41 * MB + 768 * KB
WS_RB = WS_RA + 8 * KB
WS_F1 = 41 * MB + 896 * KB
WS_F2 = WS_F1 + 4 * KB; WS_F3 = WS_F2 + 8 * KB; WS_F4 = WS_F3 + 4 * KB; WS_F5 = WS_F4 + 4 * KB
WS_F6 = WS_F5 + 8 * KB; WS_F7 = WS_F6 + 2 * KB; WS_F8 = WS_F7 + 1 * KB
WS_F5W = 42 * MB
WS_HL = 44 * MB
WS_F3L = WS_F8
WS_F2 = 42 * MB + 256 * KB; WS_F3 = WS_F2 + 32 * KB
WS_K2 = 42 * MB + 384 * KB
WS_CF = WS_K2 + 32 * KB
WS_DBG = 48 * MB
WS_PART = 52 * MB
WSOFF = opt("wsoff", 0)
WS_BYTES = (256 - WSOFF) * MB
LOG2E = 1.4426950408889634
LDS_BYTES = 160 * KB
MISC = LDS_BYTES - 6 * KB
L_RA, L_CS = MISC, MISC + 1024
L_DONE, L_FULL, L_HD, L_EP = MISC + 2048, MISC + 3072, MISC + 4096, MISC + 5120
L_MODE = L_HD + 512
vDW, vFR, vCNT, vFV = 252, 253, 254, 255
SPIN_MAX = 1 << 16
LSPIN_MAX = 1 << 22

def f32(x): return "0x%08x" % struct.unpack("<I", struct.pack("<f", x))[0]
def v(a, n=1): return f"v{a}" if n == 1 else f"v[{a}:{a+n-1}]"
def s(a, n=1): return f"s{a}" if n == 1 else f"s[{a}:{a+n-1}]"

SX, SWS, SB, SD = 4, 8, 12, 16
sWAVE, sW, sG, sR, sRB, sCB, sBC, sBH, sWM, sWN = 20, 21, 22, 23, 24, 25, 26, 27, 28, 29
pX, pWQKV, pWO, pW1, pW2, pOUT, pDBG, pWS = 48, 50, 52, 56, 58, 60, 62, 64
sMODE = 54; sT0 = 55
sAR, sBR, sM0A, sM0B, sM0H, sKS, sCNT, sNEED, sC0 = 66, 67, 68, 69, 70, 71, 72, 73, 74
sST = 76
sOWN, sROT, sAK, sBK = 60 + 40, 60 + 41, 98, 99


A = Asm()
def e(t): A.e(t)
def jitter():
    L, X = A.newlabel("jit"), A.newlabel("jitx")
    e(f"s_memtime {s(sST,2)}\ns_waitcnt lgkmcnt(0)\ns_mul_i32 s{sST}, s{sST}, 0x9e3779b1\ns_lshr_b32 s{sST+1}, s{sST}, 20\ns_and_b32 s{sST+1}, s{sST+1}, {JIT-1}\ns_cmp_lg_u32 s{sST+1}, 0\ns_cbranch_scc1 {X}\ns_lshr_b32 s{sST}, s{sST}, 29")
    A.label(L)
    e(f"s_sleep 127\ns_sub_u32 s{sST}, s{sST}, 1\ns_cmp_ge_i32 s{sST}, 0\ns_cbranch_scc1 {L}")
    A.label(X)
STAMP_NAMES = {}
class Stamper:
    def __init__(self, role): self.role = role; self.names = ["start"]
    def __call__(self, name):
        if JIT: jitter()
        if not STAMPS: return
        if name in SKIP: return
        n = len(self.names)
        assert n < 19, self.names
        e(f"{STAMP_OP} {s(sST,2)}\ns_waitcnt lgkmcnt(0)\ns_mov_b32 s{78+n}, s{sST}")
        self.names.append(name)
    def fork(self, role):
        t = Stamper(role); t.names = list(self.names); return t
    def flush(self):
        if not STAMPS: return
        self("end")
        n = len(self.names); self.names.append("nslow")
        e(f"s_mul_i32 s0, s0, {1000 if STAMP_OP == 's_memtime' else 100}\ns_add_u32 s{78+n}, s78, s0")
        STAMP_NAMES[self.role] = self.names
        e("s_waitcnt vmcnt(0)")
        for i in range(24): e(f"v_mov_b32 v{8+i}, s{78+min(i,len(self.names)-1)}")
        e(f"s_lshl_b32 s30, s2, 10\ns_lshl_b32 s31, s{sWAVE}, 7\ns_add_u32 s30, s30, s31\ns_add_u32 s30, s30, {WS_DBG}")
        e("v_mov_b32 v2, 0\ns_mov_b64 exec, 1")
        for i in range(6): e(f"buffer_store_dwordx4 {v(8+4*i,4)}, v2, {s(SWS,4)}, s30 offen offset:{16*i}")
        e("s_mov_b64 exec, -1")
        if DBGOUT >= 0 and self.role == "C":
            L = A.newlabel("nodbg")
            e(f"s_cmp_lg_u32 s2, {DBGOUT}\ns_cbranch_scc1 {L}\ns_cmp_lg_u32 s{sWAVE}, 0\ns_cbranch_scc1 {L}")
            srd(SD, pDBG, 256)
            for i in range(16): e(f"v_sub_u32 v{40+i}, v{8+2+i}, v8")
            e("s_mov_b64 exec, 1")
            for i in range(4): e(f"buffer_store_dwordx4 {v(40+4*i,4)}, v2, {s(SD,4)}, 0 offen offset:{16*i} sc1")
            e("s_mov_b64 exec, -1")
            A.label(L)

class VmQ:
    def __init__(self): self.q = []
    def add(self, tag, n=1): self.q += [tag] * n
    def has(self, tag): return tag in self.q
    def after(self, tag):
        if tag not in self.q: return 99
        return len(self.q) - 1 - max(i for i, t in enumerate(self.q) if t == tag)
    def wait(self, tag):
        if tag not in self.q: return
        n = self.after(tag)
        assert n <= 63, n
        e(f"s_waitcnt vmcnt({n})")
        self.q = self.q[len(self.q) - n:]
    def wait_all(self):
        e("s_waitcnt vmcnt(0)"); self.q = []

def set_exec(mask):
    if mask == (1 << 64) - 1: e("s_mov_b64 exec, -1")
    elif mask <= 64: e(f"s_mov_b64 exec, {mask}")
    else: e(f"s_mov_b32 exec_lo, {hex(mask & 0xffffffff)}\ns_mov_b32 exec_hi, {hex(mask >> 32)}")
def srd(d, base, nbytes):
    e(f"s_mov_b32 s{d}, s{base}\ns_and_b32 s{d+1}, s{base+1}, 0xffff\ns_mov_b32 s{d+2}, {nbytes}\ns_mov_b32 s{d+3}, 0x20000")
def xg_multi(op, regs, tmps):
    for sw in ("v_permlane16_swap_b32", "v_permlane32_swap_b32"):
        for r, t in zip(regs, tmps): e(f"v_mov_b32 v{t}, v{r}")
        for r, t in zip(regs, tmps): e(f"{sw} v{r}, v{t}")
        for r, t in zip(regs, tmps): e(f"{op} v{r}, v{r}, v{t}")
def round_bf16(r): e(f"v_cvt_pk_bf16_f32 v{r}, v{r}, v{r}\nv_and_b32 v{r}, 0xffff0000, v{r}")
def ln_finish(vsum, vm2, n):
    e(f"v_mul_f32 v{vsum}, {f32(1.0/n)}, v{vsum}"); round_bf16(vsum)
    e(f"v_mul_f32 v{vm2}, {f32(1.0/n)}, v{vm2}"); round_bf16(vm2)
    e(f"v_add_f32 v{vm2}, {f32(1e-5)}, v{vm2}"); round_bf16(vm2)
    e(f"v_sqrt_f32 v{vm2}, v{vm2}"); round_bf16(vm2)
    e(f"v_rcp_f32 v{vm2}, v{vm2}")
def pack(dst, c0, c1):
    e(f"v_cvt_pk_bf16_f32 v{dst}, v{c0}, v{c0+1}\nv_cvt_pk_bf16_f32 v{dst+1}, v{c0+2}, v{c0+3}")
    e(f"v_cvt_pk_bf16_f32 v{dst+2}, v{c1}, v{c1+1}\nv_cvt_pk_bf16_f32 v{dst+3}, v{c1+2}, v{c1+3}")
def unpack(lo, src): e(f"v_lshlrev_b32 v{lo}, 16, v{src}\nv_and_b32 v{lo+1}, 0xffff0000, v{src}")

def set_flag(soff, st="sc1", val=1, t=5):
    e(f"v_mov_b32 v{t}, 0\nv_mov_b32 v{t+1}, {val}\ns_mov_b64 exec, 1\nbuffer_store_dword v{t+1}, v{t}, {s(SWS,4)}, s{soff} offen {st}\ns_mov_b64 exec, -1")

def poll(soff, nlanes, voff=None, x2=False, srd_=SWS, mask=1, t=8, sleep=None):
    L = A.newlabel("poll"); X = A.newlabel("pollx")
    if voff is None:
        e(f"v_lshlrev_b32 v{t+2}, {3 if x2 else 2}, v1"); voff = t + 2
    if nlanes < 64: set_exec((1 << nlanes) - 1)
    e(f"s_mov_b32 s{sCNT}, 0")
    A.label(L)
    if x2: e(f"buffer_load_dwordx2 {v(t,2)}, v{voff}, {s(srd_,4)}, {soff} offen sc1")
    else: e(f"buffer_load_dword v{t}, v{voff}, {s(srd_,4)}, {soff} offen sc1")
    e(f"s_add_u32 s{sCNT}, s{sCNT}, 1\ns_cmp_gt_u32 s{sCNT}, {SPIN_MAX}\ns_waitcnt vmcnt(0)\ns_cbranch_scc1 {X}")
    if x2: e(f"v_and_b32 v{t}, v{t}, v{t+1}")
    e(f"v_and_b32 v{t}, {mask}, v{t}\nv_cmp_ne_u32 vcc, {mask}, v{t}")
    e(f"s_cbranch_vccz {X}\ns_sleep {PSLEEP if sleep is None else sleep}\ns_branch {L}")
    A.label(X)
    e("s_mov_b64 exec, -1")

sRDY = 40
def flags_refresh(Q, soff, voff, x2, shift=None):
    if flags_refresh.pending and not Q.has("look"):
        if x2: e("v_and_b32 v14, v14, v15")
        if shift: e(f"v_lshrrev_b32 v14, v{shift}, v14")
        e(f"v_and_b32 v14, 1, v14\nv_cmp_ne_u32 vcc, 1, v14\ns_and_b64 {s(sRDY,2)}, {s(sRDY,2)}, vcc")
        flags_refresh.pending = False
    if not flags_refresh.pending:
        e(f"s_cmp_eq_u64 {s(sRDY,2)}, 0\ns_cselect_b32 s30, {WS_BYTES}, s{soff}")
        e(f"buffer_load_dwordx2 v[14:15], v{voff}, {s(SWS,4)}, s30 offen sc1" if x2 else f"buffer_load_dword v14, v{voff}, {s(SWS,4)}, s30 offen sc1")
        Q.add("look"); flags_refresh.pending = True
flags_refresh.pending = False
def need_flags(bits, soff, voff, x2, shift=None, pipe=False, look=None):
    L, X = A.newlabel("nf"), A.newlabel("nfx")
    lo, hi = bits & 0xffffffff, bits >> 32
    def test():
        if lo and hi: e(f"s_and_b32 s30, s{sRDY}, {hex(lo)}\ns_and_b32 s31, s{sRDY+1}, {hex(hi)}\ns_or_b32 s30, s30, s31")
        elif lo: e(f"s_and_b32 s30, s{sRDY}, {hex(lo)}")
        else: e(f"s_and_b32 s30, s{sRDY+1}, {hex(hi)}")
    if pipe:
        R = [16, 18, 20]
        ld = lambda r: e(f"buffer_load_dwordx2 {v(r,2)}, v{voff}, {s(SWS,4)}, s{soff} offen sc1" if x2 else f"buffer_load_dword v{r}, v{voff}, {s(SWS,4)}, s{soff} offen sc1")
        ld(R[0]); e(f"s_sleep {PGAP}"); ld(R[1]); e(f"s_sleep {PGAP}")
        A.label(L)
        for i in range(3):
            ld(R[(i + 2) % 3]); e("s_waitcnt vmcnt(2)")
            r = R[i]
            if x2: e(f"v_and_b32 v8, v{r}, v{r+1}\nv_and_b32 v8, 1, v8")
            else: e(f"v_and_b32 v8, 1, v{r}")
            e(f"v_cmp_ne_u32 {s(sRDY,2)}, 1, v8")
            test()
            e(f"s_cbranch_scc0 {X}")
        e(f"s_add_u32 s{sCNT}, s{sCNT}, 1\ns_cmp_lt_u32 s{sCNT}, {SPIN_MAX}\ns_cbranch_scc1 {L}")
        A.label(X)
        return
    test()
    e(f"s_cbranch_scc0 {X}")
    A.label(L)
    if look: set_exec(look)
    if x2: e(f"buffer_load_dwordx2 v[8:9], v{voff}, {s(SWS,4)}, s{soff} offen sc1\ns_waitcnt vmcnt(0)\nv_and_b32 v8, v8, v9")
    else: e(f"buffer_load_dword v8, v{voff}, {s(SWS,4)}, s{soff} offen sc1\ns_waitcnt vmcnt(0)")
    if shift: e(f"v_lshrrev_b32 v8, v{shift}, v8")
    e(f"v_and_b32 v8, 1, v8\nv_cmp_ne_u32 {s(sRDY,2)}, 1, v8")
    if look: e(f"s_orn2_b64 {s(sRDY,2)}, {s(sRDY,2)}, exec\ns_mov_b64 exec, -1")
    e(f"s_add_u32 s{sCNT}, s{sCNT}, 1\ns_cmp_gt_u32 s{sCNT}, {SPIN_MAX}\ns_cbranch_scc1 {X}")
    test()
    if PSI and not shift: e(f"s_cbranch_scc0 {X}\ns_sleep {PSI}\ns_branch {L}")
    else: e(f"s_cbranch_scc1 {L}")
    A.label(X)

def gate_k(G, k, x2):
    n0 = GATEN[G.name]
    if k == 0 and PS0: e(f"s_sleep {PS0}")
    if k == 0 and PW0: e("s_waitcnt vmcnt(0)")
    win = lambda k0, n: sum(0xf << (4 * G.korder[j]) for j in range(k0, min(16, k0 + n)))
    if k == 0: need_flags(win(0, n0), 32, 10, x2, look=win(0, LOOK0))
    elif k >= n0: need_flags(win(k, 1), 32, 10, x2, look=win(k, LOOKN))
def spoll(srd_, soff, n16, mask, base=32):
    X = A.newlabel("spx")
    e("s_mov_b32 s31, -1")
    for k in range(2 * n16):
        e(f"s_add_u32 s30, {soff}, {32*k}\ns_buffer_load_dwordx8 {s(base,8)}, {s(srd_,4)}, s30\ns_waitcnt lgkmcnt(0)")
        for i in range(1, 4): e(f"s_and_b64 {s(base,2)}, {s(base,2)}, {s(base+2*i,2)}")
        e(f"s_and_b32 s31, s31, s{base}\ns_and_b32 s31, s31, s{base+1}")
    e(f"s_and_b32 s31, s31, {mask}\ns_cmp_eq_u32 s31, {mask}\ns_cbranch_scc1 {X}")
    poll(soff, 16 * n16, srd_=srd_, mask=mask, t=8, sleep=16)
    A.label(X)

def lds_wait(vaddr, need, vt, sleep=1, off=0):
    L = A.newlabel("lw"); X = A.newlabel("lwx")
    A.label(L)
    e(f"ds_read_b32 v{vt}, v{vaddr} offset:{off}\ns_waitcnt lgkmcnt(0)\nv_cmp_gt_u32 vcc, {need}, v{vt}\ns_cbranch_vccz {X}")
    if sleep: e(f"s_sleep {sleep}")
    e(f"s_add_u32 s3, s3, 1\ns_cmp_lt_u32 s3, {LSPIN_MAX}\ns_cbranch_scc1 {L}")
    A.label(X)
OFF_DONE, OFF_FULL, OFF_HD, OFF_EP = 0, 1024, 2048, 3072
def sync_regs():
    e(f"s_lshl_b32 s30, s{sW}, 8\ns_add_u32 s30, s30, {L_DONE}\nv_lshl_add_u32 v{vDW}, v1, 2, s30")
    e(f"v_and_b32 v{vFR}, 3, v1\nv_mul_u32_u24 v{vFR}, 260, v{vFR}\nv_add_u32 v{vFR}, {L_DONE}, v{vFR}")
def post(off, val, t=vFV):
    e(f"v_mov_b32 v{t}, {val}\nds_write_b32 v{vDW}, v{t} offset:{off}")
def wait_rows(off, need, sleep=1): lds_wait(vFR, need, vFV, sleep=sleep, off=off)

class Gemm:
    PA, PB, PH = 232, 236, 240
    def __init__(self, name, base, TM, TN, NK, NS, KBsrc, ldb, kperm, araw=False, NSB=None, bslot=None, RP=0, alay="rt"):
        self.alay = "raw" if araw else alay
        self.name, self.base, self.TM, self.TN, self.NK, self.NS = name, base, TM, TN, NK, NS
        self.KB, self.ldb, self.kperm, self.araw, self.RP = KBsrc, ldb, kperm, araw, RP
        self.NSB = NSB or NS
        self.MT, self.NT = TM // 32, TN // 32
        self.nfull, self.half = TN // 64, (TN % 64) != 0
        self.a_stage = TM * 128
        b0 = NS * self.a_stage
        self.b0 = b0
        self.b_base = [b0 + j * self.NSB * 8192 for j in range(self.nfull)]
        self.h_base = b0 + self.nfull * self.NSB * 8192
        self.b_sp, self.h_sp, self.b_bs = 8192, 4096, self.NSB * 8192
        if name == "w1" and BTAIL:
            self.b_base = [64 * KB + j * 8192 for j in range(3)]; self.h_base = 64 * KB + 3 * 8192
            self.b_sp = self.h_sp = 28 * KB; self.b_bs = 8192
        self.bslot = bslot or (lambda step: step % self.NSB)
        assert self.h_base + (self.NSB * 4096 if self.half else 0) <= MISC
        MT, NT = self.MT, self.NT
        self.FA = [8, 8 + 4 * MT + 4 * NT]
        self.FB = [self.FA[0] + 4 * MT, self.FA[1] + 4 * MT]
        nxt = self.FA[1] + 4 * MT + 4 * NT
        self.chain = name in CHAIN
        if self.chain:
            self.RA = [8, 8 + 8 * MT]; self.WB = 8 + 16 * MT
            nxt = self.WB + 24
        self.VA = nxt; nxt += 8 if self.alay == "bm" else 2
        self.VB = nxt; nxt += NT
        self.bhi = self.NSB * 8192 > 65536
        self.VB2 = nxt
        if self.bhi: nxt += NT
        nxt = (nxt + 3) // 4 * 4
        self.ACC = nxt; nxt += MT * NT * 4
        self.VX = nxt
        assert nxt <= vDW
        self.RTW = TM // 32
    def acc(self, mt, nt): return self.ACC + (nt * self.MT + mt) * 4
    def swapped(self, nt): return True
    def blk_delta(self, j): return 128 * j

    def c_setup(self):
        MT = self.MT
        if self.araw:
            e(f"""
s_lshl_b32 s30, s{sWM}, 13
v_lshl_add_u32 v5, v4, 7, s30
v_lshrrev_b32 v6, 1, v4
v_xor_b32 v6, v6, v3
v_lshl_add_u32 v{self.VA}, v6, 4, v5
v_xor_b32 v6, 4, v6
v_lshl_add_u32 v{self.VA+1}, v6, 4, v5
""")
        elif self.alay == "bm":
            for p in range(4):
                e(f"s_add_u32 s30, s{sKS}, {p}\ns_and_b32 s30, s30, 3\ns_lshl_b32 s30, s30, 11\ns_lshl_b32 s31, s{sWM}, 14\ns_add_u32 s30, s30, s31")
                e(f"v_lshl_add_u32 v{self.VA+p}, v1, 4, s30\nv_add_u32 v{self.VA+4+p}, 0x10000, v{self.VA+p}")
        else:
            e(f"s_mul_i32 s30, s{sWM}, {MT*2048}\nv_lshl_add_u32 v{self.VA}, v1, 4, s30\nv_add_u32 v{self.VA+1}, 0x10000, v{self.VA}")
        e("v_bfe_u32 v5, v1, 2, 2\nv_and_b32 v6, 3, v1")
        if self.kperm: e("v_lshl_add_u32 v7, v3, 2, v5\nv_bfe_u32 v2, v7, 1, 2")
        else: e("v_lshl_add_u32 v7, v3, 3, v5\nv_lshrrev_b32 v2, 1, v5\nv_and_b32 v8, 1, v3\nv_lshl_or_b32 v2, v8, 1, v2")
        e("v_mov_b32 v9, v7\nv_lshlrev_b32 v7, 7, v7\nv_lshl_add_u32 v7, v6, 3, v7")
        for t, (kind, blk, seg) in enumerate(self.tiles()):
            vb = self.VB + t
            if kind == "F":
                e(f"s_mul_i32 s30, s{sWN}, {seg[1]}\ns_add_u32 s30, s30, {seg[0]}")
                e(f"v_xor_b32 v8, s30, v2\nv_lshl_add_u32 v{vb}, v8, 5, v7")
                e(f"s_mul_i32 s30, s{sWN}, {blk[1]*self.b_bs}\ns_add_u32 s30, s30, {self.b_base[0] + blk[0]*self.b_bs}")
                e(f"v_add_u32 v{vb}, s30, v{vb}")
            else:
                e(f"v_bfe_u32 v8, v9, 2, 1\nv_xor_b32 v8, s{sWN}, v8\nv_lshlrev_b32 v8, 5, v8")
                e(f"v_lshl_add_u32 v8, v9, 6, v8\nv_lshl_add_u32 v8, v6, 3, v8\nv_add_u32 v{vb}, {self.h_base}, v8")
            if self.bhi: e(f"v_add_u32 v{self.VB2+t}, 0x10000, v{vb}")
        if not self.czero():
            for r in range(self.ACC, self.ACC + self.MT * self.NT * 4, 2): e(f"v_mov_b64 {v(r,2)}, 0")
    def b_read(self, step, sub, t, dst):
        kind = self.tiles()[t][0]; sb = self.bslot(step); out = []
        for hi in range(2):
            rows = 32 * sub + (16 if self.kperm else 4) * hi
            off = sb * self.b_sp + rows * 128 if kind == "F" else sb * self.h_sp + rows * 64
            base = self.VB + t
            if off > 0xffff: base, off = self.VB2 + t, off - 0x10000
            out.append(f"ds_read_b64_tr_b16 {v(dst+2*hi,2)}, v{base} offset:{off}")
        return out
    def a_read(self, step, sub, mt, dst):
        sa = step % self.NS
        if self.araw: base, off = self.VA + sub, sa * self.a_stage + mt * 2048
        elif self.alay == "bm":
            off = sa * self.a_stage + sub * 8192 + (mt & 1) * 1024
            base = self.VA + (mt >> 1) + 4 * (off >> 16); off &= 0xffff
        else:
            off = sa * self.a_stage + mt * 2048 + sub * 1024
            base = self.VA + (off >> 16); off &= 0xffff
        return f"ds_read_b128 {v(dst,4)}, v{base} offset:{off}"
    def reads(self, step, sub, fs):
        out = []
        for t in range(self.NT):
            out += self.b_read(step, sub, t, self.FB[fs] + 4 * t)
            if t == 0: out += [self.a_read(step, sub, mt, self.FA[fs] + 4 * mt) for mt in range(self.MT)]
        return out
    def czero(self): return self.chain or self.NSB != self.NS or (self.NK - 1) % self.NS != 0
    def mfmas(self, fs, zero=False):
        out = []
        for t in range(self.NT):
            for mt in (range(self.MT) if t % 2 == 0 else reversed(range(self.MT))):
                a, w, c = v(self.FA[fs] + 4 * mt, 4), v(self.FB[fs] + 4 * t, 4), v(self.acc(mt, t), 4)
                ci = "0" if zero else c
                out.append(f"v_mfma_f32_16x16x32_bf16 {c}, {w}, {a}, {ci}" if self.swapped(t) else
                           f"v_mfma_f32_16x16x32_bf16 {c}, {a}, {w}, {ci}")
        if NOMFMA: out = ["s_nop 0"] * len(out)
        return out
    def c_loop(self, ST, pre_last=None, last_fill=(), nsteps=None, after_go=None, mid={}):
        NS, NK, n = self.NS, nsteps or self.NK, self.name
        def inter(m, r, extra=()):
            extra = list(extra); per = -(-len(extra) // len(m)) if extra else 0
            span = max(int(len(m) * RSP), 1) if RSP else len(r)
            pos = [min(len(m) - 1, (i * span) // len(r)) for i in range(len(r))]
            for i in range(len(m)):
                e(m[i])
                for j, p in enumerate(pos):
                    if p == i: e(r[j])
                for x in extra[i * per:(i + 1) * per]: e(x)
        def captured(f):
            saved = A.lines; A.lines = []
            if f: f()
            out = [ln for ln in A.lines if ln.strip()]; A.lines = saved
            return out
        def step(k, last=False):
            e("s_waitcnt lgkmcnt(0)")
            inter(self.mfmas(0, k == 0 and self.czero()), self.reads(k, 1, 1), captured(pre_last) if last else ())
            e("s_waitcnt lgkmcnt(0)\ns_barrier")
            inter(self.mfmas(1), list(last_fill) if last else self.reads(k + 1, 0, 0))
        if self.chain:
            return self.c_chain(ST, captured(pre_last), list(last_fill), after_go)
        e("s_barrier")
        ST(n + "_go")
        for r in self.reads(0, 0, 0): e(r)
        if after_go: after_go()
        body = NK - 1
        if self.NSB != NS:
            for k in range(body):
                if k in mid: e(mid[k])
                step(k)
        else:
            k = 0
            for i in range(body % NS):
                step(k); k += 1
            e(f"s_mov_b32 s{sCNT}, {body // NS}")
            A.label(f"{n}_cloop")
            for i in range(NS):
                step(k); k += 1
            e(f"s_sub_u32 s{sCNT}, s{sCNT}, 1\ns_cmp_lg_u32 s{sCNT}, 0\ns_cbranch_scc1 {n}_cloop")
        step(NK - 1, last=True)
        if not nsteps: ST(n + "_end")

    def free_set(self): return self.RA[self.NK & 1]
    def c_chain(self, ST, pre_last, last_fill, after_go):
        MT, NT, NK = self.MT, self.NT, self.NK
        q = []
        def rd(tag, ins):
            e(ins); q.append(tag)
        def wait(tag):
            if tag in q:
                k_ = min(len(q) - 1 - max(i for i, t in enumerate(q) if t == tag), 14)
                e(f"s_waitcnt lgkmcnt({k_})"); del q[:len(q) - k_]
        slot = lambda k, t: self.WB + 8 * ((k * NT + t) % 3)
        wr = lambda k, t: [(("W", k, t), x) for sub in range(2) for x in self.b_read(k, sub, t, slot(k, t) + 4 * sub)]
        rr = lambda k, m: [(("R", k, m), self.a_read(k, sub, m, self.RA[k & 1] + 8 * m + 4 * sub)) for sub in range(2)]
        e("s_barrier")
        ST(self.name + "_go")
        for x in wr(0, 0) + [y for m in range(MT) for y in rr(0, m)] + wr(0, 1): rd(*x)
        if after_go: after_go()
        for k in range(NK):
            last = k == NK - 1
            for t in range(NT):
                side = []
                if t + 2 < NT: side = wr(k, t + 2)
                if t == NT - 2:
                    e("s_waitcnt lgkmcnt(0)\ns_barrier"); q.clear()
                if t >= NT - 2:
                    h = t - (NT - 2)
                    if last:
                        n2 = (len(last_fill) + 1) // 2
                        side = [("F", x) for x in last_fill[h * n2:(h + 1) * n2]]
                    else:
                        mo = list(range(MT))
                        side = (wr(k + 1, 0) + rr(k + 1, 0) + rr(k + 1, 1)) if h == 0 else (rr(k + 1, 2) + rr(k + 1, 3) + wr(k + 1, 1))
                extra = []
                if last and t < NT - 2:
                    per = -(-len(pre_last) // (NT - 2)); extra = pre_last[t * per:(t + 1) * per]
                wait(("W", k, t))
                order = range(MT) if t % 2 == 0 else reversed(range(MT))
                i = 0; nm = 2 * MT
                for m in order:
                    wait(("R", k, m))
                    for sub in range(2):
                        a, w, c = v(self.RA[k & 1] + 8 * m + 4 * sub, 4), v(slot(k, t) + 4 * sub, 4), v(self.acc(m, t), 4)
                        ci = "0" if k == 0 and sub == 0 else c
                        e(f"v_mfma_f32_16x16x32_bf16 {c}, {w}, {a}, {ci}" if self.swapped(t) else f"v_mfma_f32_16x16x32_bf16 {c}, {a}, {w}, {ci}")
                        ps = -(-len(side) // nm)
                        for x in side[i * ps:(i + 1) * ps]: rd(*x)
                        pe = -(-len(extra) // nm)
                        for x in extra[i * pe:(i + 1) * pe]: e(x)
                        i += 1
        ST(self.name + "_end")

    def p_setup_b(self, w=sW):
        ldb, PB = self.ldb, self.PB
        e(f"""
s_lshl_b32 s{sM0B}, s{w}, 12
s_lshl_b32 s{sM0H}, s{w}, 11
v_lshrrev_b32 v246, 3, v1
s_lshl_b32 s30, s{w}, 5
v_add_u32 v246, s30, v246
v_mul_u32_u24 v246, {ldb}, v246
v_and_b32 v247, 1, v1
v_lshl_add_u32 v246, v247, 4, v246
v_add_u32 v246, s{sBC}, v246
v_bfe_u32 v247, v1, 1, 2
""")
        if self.kperm:
            e(f"v_xor_b32 v245, v247, v3\nv_lshl_add_u32 v{PB}, v245, 5, v246\nv_add_u32 v{PB+1}, {8*ldb-1024}, v{PB}")
        else:
            e(f"v_and_b32 v245, 1, v3\nv_xor_b32 v245, v247, v245\nv_lshl_add_u32 v{PB}, v245, 5, v246")
            e(f"v_xor_b32 v245, 2, v245\nv_lshl_add_u32 v{PB+1}, v245, 5, v246\nv_add_u32 v{PB+1}, {8*ldb-1024}, v{PB+1}")
        e(f"v_add_u32 v{PB+2}, {16*ldb-2048}, v{PB}\nv_add_u32 v{PB+3}, {16*ldb-2048}, v{PB+1}")
        if self.half:
            e(f"""
v_lshrrev_b32 v246, 2, v1
v_add_u32 v246, s30, v246
v_mul_u32_u24 v246, {ldb}, v246
v_and_b32 v247, 1, v1
v_lshl_add_u32 v246, v247, 4, v246
v_add_u32 v246, s{sBH}, v246
v_bfe_u32 v247, v1, 1, 1
v_and_b32 v245, 1, v3
v_xor_b32 v245, v247, v245
v_lshl_add_u32 v{self.PH}, v245, 5, v246
v_add_u32 v{self.PH+1}, {16*ldb-1024}, v{self.PH}
""")
    def p_setup_a(self):
        PA = self.PA
        if self.araw:
            e(f"""
s_lshl_b32 s{sM0A}, s{sW}, 13
v_lshrrev_b32 v246, 3, v1
s_lshl_b32 s30, s{sW}, 6
v_add_u32 v246, s30, v246
v_lshlrev_b32 v246, 11, v246
v_and_b32 v247, 7, v1
v_xor_b32 v247, v247, v3
v_lshl_add_u32 v{PA}, v247, 4, v246
v_xor_b32 v247, 4, v247
v_lshl_add_u32 v{PA+1}, v247, 4, v246
v_add_u32 v{PA+1}, {8*2048-1024}, v{PA+1}
v_add_u32 v{PA+2}, {16*2048-2048}, v{PA}
v_add_u32 v{PA+3}, {16*2048-2048}, v{PA+1}
""")
        else:
            e(f"s_mul_i32 s{sM0A}, s{sW}, {self.RTW*2048}\ns_mul_i32 s30, s{sW}, {self.RTW*self.KB*1024}\nv_lshl_add_u32 v{PA}, v1, 4, s30")
            e(f"v_add_u32 v{PA+1}, {self.KB*1024-2048}, v{PA}")
    astride = 2048
    rot = True
    arot = True
    korder = list(range(16))
    def kbase(self, dst, base, step, stride):
        e(f"s_add_u32 s{dst}, s{base}, {self.korder[step] * stride}")
    def a_src(self, i, step): e(f"s_add_u32 s31, s{sAK}, {2*i*self.KB*1024}")
    def groups_a(self, step):
        st = step % self.NS
        out = []
        for gi in range(self.RTW // 2):
            def fn(gi=gi):
                if gi == 0 and self.arot: self.kbase(sAK, sAR, step, 128 if self.araw else self.astride)
                e(f"s_add_u32 m0, s{sM0A}, {st*self.a_stage + gi*4096}")
                if self.araw:
                    e(f"s_add_u32 s31, s{sAK}, {gi*32*2048}")
                    for i in range(4): e(f"buffer_load_dwordx4 v{self.PA+i}, {s(SX,4)}, s31 offen offset:{i*1024} lds")
                else:
                    self.a_src(gi, step)
                    for i in range(4): e(f"buffer_load_dwordx4 v{self.PA+(i>>1)}, {s(SWS,4)}, s31 offen offset:{i*1024} sc1 lds")
            out.append((step, 4, fn))
        return out
    def b_parts(self, step):
        sb = self.bslot(step); ko = 0 if self.rot else step * 64 * self.ldb
        out = [(sM0B, self.b_base[j] + sb * self.b_sp, ko + self.blk_delta(j), self.PB, 4) for j in range(self.nfull)]
        if self.half: out.append((sM0H, self.h_base + sb * self.h_sp, ko, self.PH, 2))
        return out
    def groups_b(self, step):
        out = []
        for idx, (m0s, lc, sc, vb, n) in enumerate(self.b_parts(step)):
            def fn(m0s=m0s, lc=lc, sc=sc, vb=vb, n=n, idx=idx):
                if idx == 0 and self.rot: self.kbase(sBK, sBR, step, 64 * self.ldb)
                e(f"s_add_u32 m0, s{m0s}, {lc}\ns_add_u32 s31, s{sBK if self.rot else sBR}, {sc}")
                for i in range(n): e(f"buffer_load_dwordx4 v{vb+i}, {s(SB,4)}, s31 offen offset:{i*1024} {'nt' if self.name == 'qkv' and step < 2 * NTK else ''} lds")
            out.append((step, n, fn))
        return out
    def issue_b(self, Q, step):
        for tag, n, fn in self.groups_b(step):
            fn(); Q.add(tag, n)
    def p_loop(self, Q, ST, b_pre, npf=0, every=1, gate=None, tail=None, look=None, merge=False):
        NS, NK, NSB = self.NS, self.NK, self.NSB
        def iss(g):
            for tag, n, fn in g:
                fn(); Q.add(tag, n)
        ga = lambda k: ([(k, 0, lambda: gate(k))] if gate else []) + self.groups_a(k)
        def gr(k):
            kb = k - NS + NSB
            return (self.groups_b(kb) if b_pre <= kb < NK else []) + ga(k)
        first = lambda k: (self.groups_b(k) if b_pre <= k < NSB else []) + ga(k)
        if gate: e(f"s_mov_b64 {s(sRDY,2)}, -1\ns_mov_b32 s{sCNT}, 0")
        flags_refresh.pending = False
        iss(first(0))
        if gate: ST(self.name + "_seen")
        if BSEEN and self.name == "w1": post(OFF_FULL, 1)
        g1 = first(1)
        P1G_ = (99 if GATEN.get(self.name, 2) > 1 else 0) if gate else P1G
        iss(g1[:P1G_])
        roll = ROLL and self.name == "qkv" and not STAMPS
        saved = None
        for i in range(NK):
            if roll and i == 2:
                e(f"s_mov_b32 s{sCNT}, 4"); A.label("dq_loop")
            if roll and i == 5:
                e(f"s_add_u32 s{sAR}, s{sAR}, {3*128}\ns_add_u32 s{sBR}, s{sBR}, {3*64*self.ldb}\ns_sub_u32 s{sCNT}, s{sCNT}, 1\ns_cmp_lg_u32 s{sCNT}, 0\ns_cbranch_scc1 dq_loop")
                saved = A.lines; A.lines = []
            if roll and i == 14: A.lines = saved
            if merge and i == NK - 2:
                Q.wait(NK - 1); e("s_barrier")
                if WBL2 == 1:
                    L = A.newlabel("nowb")
                    e(f"s_or_b32 s30, s{sR}, s{sW}\ns_cmp_lg_u32 s30, 0\ns_cbranch_scc1 {L}\nbuffer_wbl2 sc1\ns_waitcnt vmcnt(0)")
                    A.label(L)
                return
            Q.wait(i)
            if self.name == DST and i in DW: ST(f"w{i}")
            e("s_barrier")
            if self.name == DST and i in DB: ST(f"b{i}")
            if look and (ASYNC or self.name == 'w2') and i in look[0]: flags_refresh(Q, *look[1])
            if i == 0:
                iss(g1[P1G_:])
                for k in range(2, NS): iss(first(k))
                for k in range(max(NS, b_pre), NSB): iss(self.groups_b(k))
            elif i - 1 + NS < NK: iss(gr(i - 1 + NS))
            elif b_pre <= i - 1 + NSB < NK: iss(self.groups_b(i - 1 + NSB))
            if tail and i - 1 + NS == NK - 1 + TAILD: tail()
            if (self.name == "qkv" and i == 0) or (CWARM > 1 and i == NK - 2): code_warm()
            if self.name == "qkv" and i == 2: tlb_warm()
            if npf and ((2 if roll else PFD0) if self.name == 'qkv' else 1) <= i < NK - 2 and i % every == 0: pf_step(npf + (1 if self.name == 'w1' and i % 3 != 0 else 0))
        e("s_barrier")
        ST(self.name + "_dend")

    def rp_regs(self, i, r0): return r0 + i * (16 * self.nfull + (8 if self.half else 0))
    def rp_load(self, Q, n, r0):
        for i in range(n):
            r = self.rp_regs(i, r0)
            for idx, (m0s, lc, sc, vb, k_) in enumerate(self.b_parts(self.NS + i)):
                if idx == 0: self.kbase(sBK, sBR, self.NS + i, 64 * self.ldb)
                e(f"s_add_u32 s31, s{sBK}, {sc}")
                for k in range(k_):
                    e(f"buffer_load_dwordx4 {v(r,4)}, v{vb+k}, {s(SB,4)}, s31 offen offset:{k*1024}"); r += 4
                Q.add(("rp", i), k_)
            assert r <= 232
    def rp_addr(self):
        b0 = self.b_base[0]
        e(f"v_lshlrev_b32 v245, 4, v1\nv_add_u32 v246, s{sM0H}, v245\nv_add_u32 v245, s{sM0B}, v245\nv_add_u32 v245, {b0}, v245\nv_add_u32 v247, 0x10000, v245\nv_add_u32 v246, {self.h_base}, v246")
    def rp_drain(self, Q, i, r0):
        Q.wait(("rp", i))
        r = self.rp_regs(i, r0)
        for m0s, lc, sc, vb, k_ in self.b_parts(self.NS + i):
            for k in range(k_):
                if m0s == sM0B:
                    off = lc - self.b_base[0] + k * 1024; a = 245
                    if off > 0xffff: off -= 0x10000; a = 247
                else: off = lc - self.h_base + k * 1024; a = 246
                e(f"ds_write_b128 v{a}, {v(r,4)} offset:{off}"); r += 4
        e("s_waitcnt lgkmcnt(0)")

class QKV(Gemm):
    def __init__(self): super().__init__("qkv", 0, 128, 192, 16, NS1, 32, 6144, False, araw=True, NSB=opt("nsb1", 3))
    def tiles(self): return [("F", (t >> 1, 0), (t & 1, 2)) for t in range(6)]
    def swapped(self, nt): return nt < 4
    def blk_delta(self, j): return 2048 * j
class WO(Gemm):
    def __init__(self): super().__init__("wo", 16, 128, 64, 16, 4, 32, 2048, True, NSB=NSB3, bslot=lambda k: (k + 5) % NSB3)
    def tiles(self): return [("F", (0, 0), (t, 2)) for t in range(2)]
    def p_setup_a(self):
        e(f"s_lshl_b32 s{sM0A}, s{sW}, 13\nv_lshl_add_u32 v{self.PA}, v1, 4, s{sM0A}\nv_mov_b32 v{self.PA+1}, v{self.PA}")
        e(f"s_lshl_b32 s{sAR}, s{sRB}, 16\ns_add_u32 s{sAR}, s{sAR}, {WS_AR + AR_O}")
    astride = MB
    korder = [k for k in range(16) if k % 8 != 3] + [3, 11] if KORD else list(range(16))
    def a_src(self, i, step): e(f"s_add_u32 s31, s{sAK}, {i*4096}")
class W1(Gemm):
    def __init__(self): super().__init__("w1", 32, 128, 224, 16, opt("ns4", 3), 32, 7168, True, NSB=3)
    korder = list(range(0, 16, 2)) + list(range(1, 16, 2)) if KORD and not LFIRST else list(range(16))
    def kbase(self, dst, base, step, stride):
        if not LFIRST: return super().kbase(dst, base, step, stride)
        if dst == sAK and step < 4: base = sKS
        e(f"s_add_u32 s{dst}, s{sROT}, {step}\ns_and_b32 s{dst}, s{dst}, 15\ns_mul_i32 s{dst}, s{dst}, {stride}\ns_add_u32 s{dst}, s{dst}, s{base}")
    def tiles(self): return [("F", (0, 2), (t, 0)) for t in range(4)] + [("F", (1, 0), (t, 2)) for t in range(2)] + [("H", None, None)]
class W2(Gemm):
    def __init__(self): super().__init__("w2", 48, 256, 128, 14, 3, 112, 2048, True, alay="bm")
    arot = False
    def tiles(self): return [("F", (0, 1), (t, 0)) for t in range(4)]
    def p_setup_a(self):
        e(f"s_lshl_b32 s{sM0A}, s{sW}, 14\nv_lshlrev_b32 v{self.PA}, 4, v1\nv_mov_b32 v{self.PA+1}, v{self.PA}")
        h1_base(sAR)
        e(f"s_lshl_b32 s30, s{sG}, 5\ns_bfe_u32 s31, s{sRB}, 0x20001\ns_add_u32 s30, s30, s31\ns_lshl_b32 s31, s{sW}, 4\ns_add_u32 s30, s30, s31\ns_lshl_b32 s30, s30, 16\ns_add_u32 s{sAR}, s{sAR}, s30")
    def rot_setup(self):
        e(f"s_lshl_b32 s33, s{sWN}, 16\ns_sub_u32 s33, s{sBR}, s33\ns_lshr_b32 s34, s{sR}, 3")
        for j in range(4):
            e(f"s_add_u32 s35, s34, {j}\ns_and_b32 s35, s35, 3\ns_and_b32 s36, s35, 1\ns_xor_b32 s37, s36, 1\ns_mul_i32 s37, s37, 6")
            e(f"s_lshl_b32 s38, s35, 18\ns_add_u32 s38, s38, s{sAR}\ns_lshl_b32 s39, s36, 13\ns_add_u32 s{48+j}, s38, s39\ns_lshl_b32 s39, s37, 13\ns_add_u32 s{52+j}, s38, s39")
            e(f"s_mul_i32 s38, s35, {7*65536}\ns_add_u32 s38, s38, s33\ns_lshl_b32 s39, s36, 16\ns_add_u32 s{56+j}, s38, s39\ns_lshl_b32 s39, s37, 16\ns_add_u32 s{60+j}, s38, s39")
    def blocks(self):
        if ROT5: return [(j, k, 1) for j in range(4) for k in (0, 4, 1, 5)] + [(j, k, 2) for j in range(4) for k in (2, 3, 6)]
        if not EARLY5: return [(q // 7, q % 7, 1) for q in range(28)]
        early = [(c, (c & 1) + k, 1) for c in range(4) for k in (0, 4, 1, 5)]
        late = [(c, kb, 2) for c in range(4) for kb in range(7) if (c, kb, 1) not in early]
        return early + late
    def a_src(self, i, step):
        c, kb, _ = self.blocks()[2 * step + (i >> 1)]
        if ROT5: return e(f"s_add_u32 s31, s{(48 if kb < 6 else 52) + c}, {(kb % 6) * 8192 + (i&1)*4096}")
        e(f"s_add_u32 s31, s{sAR}, {c*256*KB + kb*8192 + (i&1)*4096}")
    def kbase(self, dst, base, step, stride):
        if ROT5:
            (c0, k0, _), (c1, k1, _) = self.blocks()[2 * step:2 * step + 2]
            return e(f"s_add_u32 s{dst}, s{(56 if k0 < 6 else 60) + c0}, {(k0 % 6) * 65536}\ns_add_u32 s30, s{(56 if k1 < 6 else 60) + c1}, {(k1 % 6) * 65536}\ns_cmp_lg_u32 s{sWN}, 0\ns_cselect_b32 s{dst}, s30, s{dst}")
        o = [(c * 7 + kb) * 32 * self.ldb for c, kb, _ in self.blocks()[2 * step:2 * step + 2]]
        e(f"s_mul_i32 s{dst}, s{sWN}, {o[1] - o[0] - 32*self.ldb}\ns_add_u32 s{dst}, s{dst}, {o[0]}\ns_add_u32 s{dst}, s{dst}, s{base}")
G1, G3, G4, G5 = QKV(), WO(), W1(), W2()
_pf = opt("pfs", "X,Pk,X").split(",")
PFS = [(_pf[0][0], _pf[0][1:], pWO, 2 * MB, True, 249), (_pf[1][0], _pf[1][1:], pW1, 1024 * 7168, False, 248), (_pf[2][0], _pf[2][1:], pW2, 3584 * 2048, False, 250)]
L_K, L_V, L_Q = 0, 48 * KB, 96 * KB

def own_arena(dst, add=0):
    e(f"s_add_u32 s{dst}, s{sOWN}, {WS_AR + add}")
def h1_base(dst):
    e(f"s_cmp_lg_u32 s{sMODE}, 0\ns_cselect_b32 s{dst}, {WS_AR2}, {WS_AR if ALIAS else WS_AR2}")
def rowmajor_voff(dst, t):
    e(f"v_and_b32 v{t}, 1, v3\nv_lshlrev_b32 v{t}, 1, v{t}\nv_lshrrev_b32 v{dst}, 1, v3\nv_or_b32 v{t}, v{t}, v{dst}")
    e(f"v_lshlrev_b32 v{t}, 4, v{t}\nv_lshl_add_u32 v{dst}, v4, 11, v{t}")
def roles_84(rb=sRB, cb=sCB):
    e(f"s_and_b32 s{rb}, s{sG}, 1\ns_lshl_b32 s{rb}, s{rb}, 3\ns_and_b32 s30, s{sR}, 7\ns_add_u32 s{rb}, s{rb}, s30")
    e(f"s_lshr_b32 s{cb}, s{sG}, 1\ns_lshl_b32 s{cb}, s{cb}, 2\ns_lshr_b32 s30, s{sR}, 3\ns_add_u32 s{cb}, s{cb}, s30")
def roles_p1(rb=sRB, cb=sCB):
    if MAP1 == 84: return roles_84(rb, cb)
    e(f"s_lshr_b32 s{rb}, s{sR}, 1\ns_and_b32 s30, s{sR}, 1\ns_lshl_b32 s{cb}, s{sG}, 1\ns_add_u32 s{cb}, s{cb}, s30")
def roles_48(rb=sRB, cb=sCB):
    if LFIRST: return roles_84(rb, cb)
    if not KORD:
        e(f"s_and_b32 s{rb}, s{sG}, 3\ns_lshl_b32 s{rb}, s{rb}, 2\ns_and_b32 s30, s{sR}, 3\ns_add_u32 s{rb}, s{rb}, s30")
        e(f"s_lshr_b32 s{cb}, s{sG}, 2\ns_lshl_b32 s{cb}, s{cb}, 3\ns_lshr_b32 s30, s{sR}, 2\ns_add_u32 s{cb}, s{cb}, s30")
        return
    e(f"s_and_b32 s{rb}, s{sG}, 3\ns_lshl_b32 s{rb}, s{rb}, 2\ns_bfe_u32 s30, s{sR}, 0x20001\ns_add_u32 s{rb}, s{rb}, s30")
    e(f"s_lshr_b32 s{cb}, s{sG}, 2\ns_lshl_b32 s{cb}, s{cb}, 2\ns_lshr_b32 s30, s{sR}, 3\ns_add_u32 s{cb}, s{cb}, s30\ns_lshl_b32 s{cb}, s{cb}, 1\ns_and_b32 s30, s{sR}, 1\ns_add_u32 s{cb}, s{cb}, s30")
def roles_w2(rb=sRB, cb=sCB, ks=sKS):
    if REGRP:
        e(f"s_and_b32 s{rb}, s{sG}, 1\ns_lshl_b32 s{rb}, s{rb}, 3\ns_and_b32 s30, s{sR}, 6\ns_add_u32 s{rb}, s{rb}, s30")
        e(f"s_and_b32 s{cb}, s{sR}, 1\ns_lshl_b32 s{cb}, s{cb}, 2\ns_lshr_b32 s30, s{sR}, 3\ns_add_u32 s{cb}, s{cb}, s30\ns_lshr_b32 s{ks}, s{sG}, 1")
        return
    e(f"s_and_b32 s{rb}, s{sG}, 1\ns_lshl_b32 s{rb}, s{rb}, 2\ns_and_b32 s30, s{sR}, 3\ns_add_u32 s{rb}, s{rb}, s30\ns_lshl_b32 s{rb}, s{rb}, 1")
    e(f"s_lshr_b32 s{cb}, s{sR}, 2\ns_lshr_b32 s{ks}, s{sG}, 1")
def b_src_wo(cb=sCB):
    srd(SB, pWO, 2 * MB); e(f"s_lshl_b32 s{sBC}, s{cb}, 7\ns_mov_b32 s{sBR}, 0\ns_lshl_b32 s{sROT}, s{cb}, 1\ns_and_b32 s{sROT}, s{sROT}, {15 if ROT3 else 0}")
def b_src_w1():
    srd(SB, pW1, 1024 * 7168)
    e(f"""
s_mul_i32 s{sBH}, s{sCB}, 448
s_and_b32 s30, s{sCB}, 1
s_lshl_b32 s{sBC}, s30, 6
s_add_u32 s{sBC}, s{sBC}, s{sBH}
s_xor_b32 s30, s30, 1
s_mul_i32 s30, s30, 384
s_add_u32 s{sBH}, s{sBH}, s30
s_mov_b32 s{sBR}, 0
s_and_b32 s{sROT}, s{sCB}, 12
""")
def b_src_w2():
    srd(SB, pW2, 3584 * 2048); e(f"s_lshl_b32 s{sBC}, s{sCB}, 8\ns_mul_i32 s{sBR}, s{sKS}, {G5.NK*64*2048}")
def flag_addr(dst, base, hi, lo, nw, wave):
    e(f"s_lshl_b32 s{dst}, s{hi}, 4\ns_add_u32 s{dst}, s{dst}, s{lo}\ns_mul_i32 s{dst}, s{dst}, {nw}")
    if wave is not None: e(f"s_add_u32 s{dst}, s{dst}, s{wave}")
    e(f"s_lshl_b32 s{dst}, s{dst}, 2\ns_add_u32 s{dst}, s{dst}, {base}")
WS_F4P = 42 * MB + 128 * KB
def f4_addr(dst, rb, cb, wave):
    e(f"s_lshl_b32 s{dst}, s{rb}, 2\ns_lshr_b32 s30, s{cb}, 2\ns_add_u32 s{dst}, s{dst}, s30\ns_lshl_b32 s{dst}, s{dst}, 3\ns_and_b32 s30, s{cb}, 3\ns_add_u32 s{dst}, s{dst}, s30\ns_lshl_b32 s{dst}, s{dst}, 2")
    if wave is not None: e(f"s_add_u32 s{dst}, s{dst}, s{wave}")
    e(f"s_lshl_b32 s{dst}, s{dst}, 2\ns_add_u32 s{dst}, s{dst}, {WS_F4P}")
def dual(fn, sreg):
    S, X = A.newlabel("slowst"), A.newlabel("stx")
    e(f"s_cmp_lg_u32 s{sreg}, 0\ns_cbranch_scc1 {S}")
    fn(LFL)
    e(f"s_branch {X}")
    A.label(S)
    fn("sc1")
    A.label(X)

def attn_setup():
    e(f"v_lshlrev_b32 v5, 2, v3\nv_mov_b32 v6, {f32(-1e30)}")
    for k in range(4):
        e(f"v_add_u32 v7, {k}, v5\nv_cmp_gt_u32 vcc, v7, v4\nv_cndmask_b32 v{56+k}, v6, 0, vcc\nv_cndmask_b32 v{60+k}, 0, v6, vcc".replace("v_cndmask_b32 v%d, v6, 0, vcc" % (56 + k), "v_cndmask_b32_e64 v%d, v6, 0, vcc" % (56 + k)))
    e(f"""
s_lshl_b32 s36, s{sRB}, 2
s_add_u32 s36, s36, s38
s_sub_i32 s36, 8, s36
s_max_i32 s36, s36, 0
s_mul_i32 s37, s{sWN}, 24
s_lshl_b32 s39, s38, 1
s_add_u32 s37, s37, s39
s_lshl_b32 s37, s37, 10
v_lshl_add_u32 v5, v1, 4, s37
v_add_u32 v7, {L_V}, v5
""")
    own_arena(34, AR_O)
    e(f"s_lshl_b32 s35, s38, 12\ns_add_u32 s34, s34, s35\ns_lshl_b32 s35, s{sWN}, 10\ns_add_u32 s34, s34, s35\ns_add_u32 s35, s34, 2048")
    flag_addr(33, WS_F2, sRB, sCB, 32, sWAVE)

def attention(ST, is_p, Q=None):
    n = "attp" if is_p else "attc"
    S = 64; KF = 24; VF = 24; O = 208; MX = 232
    def sr(qt, u): return S + (qt * 18 + u) * 4
    dead = lambda qt, u: (qt == 0 and u == 17) or (qt == 1 and u == 0)
    def PF(pos):
        for role, at, ptr, nbytes, rev, dst in PFS:
            if role == ("P" if is_p else "C") and at == pos:
                srd(SB, ptr, nbytes)
                e(f"s_xor_b32 s30, s2, {255 if rev else 0}\ns_lshl_b32 s30, s30, 2\ns_add_u32 s30, s30, s{sW}\ns_lshl_b32 s30, s30, 13\nv_lshlrev_b32 v251, 7, v1")
                e(f"buffer_load_dword v{dst}, v251, {s(SB,4)}, s30 offen")
                if is_p: Q.add("pf")
    PF("nb")
    if is_p: Q.wait("nk")
    e("s_waitcnt lgkmcnt(0)\ns_barrier")
    if is_p:
        e(f"s_lshl_b32 s30, s{sW}, 11\ns_add_u32 s30, s30, {L_Q}\nv_lshl_add_u32 v2, v1, 4, s30\nds_read_b128 v[8:11], v2\nds_read_b128 v[12:15], v2 offset:1024")
    ST("att_k")
    if is_p and attention.vl: attention.vl()
    if is_p and SLDS:
        srd(SB, pW1, 7 * MB)
        roles_84(40, 41)
        e(f"""
s_lshl_b32 s40, s40, 1
s_add_u32 s40, s40, s{sWN}
s_lshl_b32 s40, s40, 1
s_add_u32 s40, s40, s{sWM}
s_mul_i32 s40, s40, {16*7168}
s_mul_i32 s41, s41, 448
s_add_u32 s40, s40, s41
s_lshl_b32 s41, s{sWM}, 14
s_lshl_b32 s30, s{sWN}, 12
s_add_u32 s41, s41, s30
v_lshrrev_b32 v248, 3, v1
v_mul_u32_u24 v248, 7168, v248
v_and_b32 v250, 7, v1
v_lshl_add_u32 v248, v250, 4, v248
v_lshrrev_b32 v249, 2, v1
v_mul_u32_u24 v249, 7168, v249
v_and_b32 v250, 3, v1
v_lshl_add_u32 v249, v250, 4, v249
""")
        for i in range(7):
            lds = 64 * KB + 7 * 8192 + (i // 4) * 8192 + (i % 4) * 1024
            so = 128 * (i // 2) + 8 * 7168 * (i % 2)
            e(f"s_add_u32 m0, s41, {lds}\ns_add_u32 s31, s40, {so}\nbuffer_load_dwordx4 v{248 if i < 6 else 249}, {s(SB,4)}, s31 offen lds")
        Q.add("pf", 7)
    else: PF("k")
    for u in range(8): e(f"ds_read_b128 {v(KF+4*u,4)}, v5 offset:{L_K + u*1024}")
    for k in range(4): e(f"v_mov_b32 v{16+k}, 0x3f803f80")
    for k in range(4): e(f"v_mov_b32 v{MX+k}, v6")
    for r in range(O, O + 24, 2): e(f"v_mov_b64 {v(r,2)}, 0")
    def s_phase(generic):
        pend = []
        def maxes(k):
            for _ in range(k):
                if pend: e(pend.pop(0))
        for u in range(18):
            issued = min(18, u + 8)
            e(f"s_waitcnt lgkmcnt({issued - (u+1)})")
            if generic and u % 2 == 0 and u < 16:
                e(f"s_cmp_gt_u32 s36, {u//2}\ns_cselect_b32 s30, {f32(-1e30)}, 0")
                for k in range(4): e(f"v_mov_b32 v{20+k}, s30")
            for qt in range(2):
                if dead(qt, u): continue
                c = "v[56:59]" if u == qt else "v[60:63]" if u == 16 + qt else "0"
                if generic and u < 16: c = "v[20:23]"
                e(f"v_mfma_f32_16x16x32_bf16 {v(sr(qt,u),4)}, {v(KF+4*(u%8),4)}, {v(8+4*qt,4)}, {c}")
                if len(pend) >= 8: maxes(2)
                r = sr(qt, u)
                pend.append(f"v_max3_f32 v{MX+2*qt}, v{r}, v{r+1}, v{MX+2*qt}")
                pend.append(f"v_max3_f32 v{MX+2*qt+1}, v{r+2}, v{r+3}, v{MX+2*qt+1}")
            if u + 8 < 18: e(f"ds_read_b128 {v(KF+4*(u%8),4)}, v5 offset:{L_K + (u+8)*1024}")
        maxes(99)
    Lg, Lx = A.newlabel("sgen"), A.newlabel("sx")
    e(f"s_cmp_lg_u32 s36, 0\ns_cbranch_scc1 {Lg}")
    s_phase(False)
    e(f"s_branch {Lx}")
    A.label(Lg)
    s_phase(True)
    A.label(Lx)
    CB = VBARP if is_p else VBAR
    vs = {"iss": 0, "pv": 0}
    def v_issue(upto):
        while vs["iss"] < min(18, upto):
            b = vs["iss"]; e(f"ds_read_b128 {v(VF+4*(b%8),4)}, v7 offset:{b*1024}"); vs["iss"] += 1
    def v_bar():
        if is_p: Q.wait("nv")
        e("s_barrier")
        ST("att_v")
        PF("v")
        v_issue(8)
    CSC = (32 ** -0.5) * LOG2E
    e(f"s_mov_b32 s{sC0}, {f32(CSC)}\ns_mov_b32 s{sC0+1}, {f32(CSC)}")
    if CB == 0: v_bar()
    e(f"v_max_f32 v{MX}, v{MX}, v{MX+1}\nv_max_f32 v{MX+2}, v{MX+2}, v{MX+3}")
    xg_multi("v_max_f32", [MX, MX + 2], [MX + 1, MX + 3])
    e(f"v_mul_f32 v{MX}, {f32(-CSC)}, v{MX}\nv_mul_f32 v{MX+2}, {f32(-CSC)}, v{MX+2}")
    def pv(p):
        out = []
        for qt in range(2):
            P = v(sr(qt, 2 * p), 4)
            for dt in range(2):
                o = v(O + 12 * qt + 4 * dt, 4)
                out.append(f"v_mfma_f32_16x16x32_bf16 {o}, {v(VF+4*((2*p+dt)%8),4)}, {P}, {o}")
            o = v(O + 12 * qt + 8, 4)
            out.append(f"v_mfma_f32_16x16x32_bf16 {o}, v[16:19], {P}, {o}")
        return out
    for p in range(10):
        va = []
        if p < 9:
            live = [(qt, u) for qt in range(2) for u in (2 * p, 2 * p + 1) if not dead(qt, u)]
            for qt, u in live:
                r = sr(qt, u)
                if APK:
                    for h in range(2): va.append(f"v_pk_fma_f32 {v(r+2*h,2)}, {v(r+2*h,2)}, {s(sC0,2)}, {v(MX+2*qt,2)} op_sel_hi:[1,1,0]")
                else:
                    for k in range(4): va.append(f"v_fma_f32 v{r+k}, v{r+k}, s{sC0}, v{MX+2*qt}")
            for qt, u in live:
                for k in range(4): va.append(f"v_exp_f32 v{sr(qt,u)+k}, v{sr(qt,u)+k}")
            for qt, u in live:
                r = sr(qt, u); dst = sr(qt, 2 * p) + 2 * (u & 1)
                va.append(f"v_cvt_pk_bf16_f32 v{dst}, v{r}, v{r+1}"); va.append(f"v_cvt_pk_bf16_f32 v{dst+1}, v{r+2}, v{r+3}")
            if AMIX:
                nf = 2 if APK else 4; n_ = len(live)
                F = [va[i*nf:(i+1)*nf] for i in range(n_)]; E = [va[n_*nf+i*4:n_*nf+(i+1)*4] for i in range(n_)]; C_ = [va[n_*(nf+4)+i*2:n_*(nf+4)+(i+1)*2] for i in range(n_)]
                va = list(F[0])
                for i in range(n_):
                    other = (F[i+1] if i + 1 < n_ else []) + (C_[i-1] if i else [])
                    for k in range(4):
                        va.append(E[i][k]); va += other[k*len(other)//4:(k+1)*len(other)//4]
                va += C_[-1]
            if p == 8: va.append(f"v_mov_b64 {v(sr(0,16)+2,2)}, 0")
            if p == 0: va.append(f"v_mov_b64 {v(sr(1,0),2)}, 0")
        if CB and p == CB: v_bar()
        mm = []
        if p > CB:
            take = min(2, p - vs["pv"]) if p < 9 else 9 - vs["pv"]
            assert take <= 2
            for j in range(take): mm += pv(vs["pv"] + j)
            vs["pv"] += take
            e(f"s_waitcnt lgkmcnt({vs['iss'] - 2*vs['pv']})")
        PF(f'pv{p}')
        gap = max(1, len(va) // (len(mm) + 1))
        for i, x in enumerate(va):
            e(x)
            if i >= 1 and (i - 1) % gap == 0 and mm: e(mm.pop(0))
        for x in mm: e(x)
        if p > CB: v_issue(2 * vs["pv"] + 8)
    ST("att_pv")
    e("v_lshlrev_b32 v2, 4, v1")
    for qt in range(2):
        o = O + 12 * qt
        e(f"v_rcp_f32 v{o+8}, v{o+8}")
        for h in range(4): e(f"v_pk_mul_f32 {v(o+2*h,2)}, {v(o+2*h,2)}, {v(o+8,2)} op_sel_hi:[1,0]")
        for h in range(4): e(f"v_cvt_pk_bf16_f32 v{24+4*qt+h}, v{o+2*h}, v{o+2*h+1}")
        e(f"buffer_store_dwordx4 {v(24+4*qt,4)}, v2, {s(SWS,4)}, s{34+qt} offen sc1")

def consumer(ST):
    G = G1
    if CWC in (1, 2): code_warm(True)
    if ZAT < 0:
        L = A.newlabel("nz")
        e(f"s_cmp_lg_u32 s{sW}, 3\ns_cbranch_scc1 {L}\ns_lshl_b32 s35, s{sRB}, 4\ns_add_u32 s35, s35, s{sCB}")
        zero_own_flags(VmQ())
        A.label(L)
    if SLOWPF:
        e(f"s_lshl_b32 s30, s2, 2\ns_add_u32 s30, s30, s{sW}\ns_mul_i32 s31, s30, 6144\ns_lshl_b32 s30, s30, 12\nv_lshlrev_b32 v5, 10, v1")
        e(f"s_mov_b64 exec, 0x3f\nbuffer_load_dword v250, v5, {s(SB,4)}, s31 offen offset:384")
        if SLOWPF > 1: e(f"s_mov_b64 exec, 0xf\nbuffer_load_dword v251, v5, {s(SX,4)}, s30 offen offset:384")
        e("s_mov_b64 exec, -1")
    e(f"v_mov_b32 v{vCNT}, 0")
    e(f"ds_write_b32 v{vDW}, v{vCNT} offset:{OFF_EP}\nds_write_b32 v{vDW}, v{vCNT} offset:{OFF_FULL}")
    G.c_setup()
    X = G.VX
    RA_, CSQ, VA_, VB_, CSV = X, X + 8, X + 24, X + 40, X + 56
    if G.chain: VB_, CSV = G.free_set(), X + 40
    assert CSV + 4 <= vDW
    def pre_last1():
        if SLOWPF: e("s_waitcnt vmcnt(0)")
        e(f"s_lshl_b32 s30, s{sWM}, 8\ns_add_u32 s30, s30, {MISC}\nv_lshl_add_u32 v2, v4, 2, s30\nv_lshl_add_u32 v5, v3, 4, s30")
        e(f"s_lshl_b32 s30, s{sWN}, 7\ns_add_u32 s30, s30, {MISC}\nv_lshl_add_u32 v6, v3, 4, s30\nv_lshl_add_u32 v7, v4, 2, s30")
    fill = []
    for mt in range(4): fill += [f"ds_read_b32 v{RA_+2*mt}, v2 offset:{mt*64}", f"ds_read_b32 v{RA_+2*mt+1}, v2 offset:{512+mt*64}"]
    for t in (2, 3, 0, 1): fill.append(f"ds_read_b128 {v(CSQ+4*t,4)}, v6 offset:{1024 + (t>>1)*256 + (t&1)*64}")
    for mt in range(4): fill += [f"ds_read_b128 {v(VA_+4*mt,4)}, v5 offset:{mt*64}", f"ds_read_b128 {v(VB_+4*mt,4)}, v5 offset:{512+mt*64}"]
    for dt in range(2): fill.append(f"ds_read_b32 v{CSV+2*dt}, v7 offset:{1024 + 512 + dt*64}")
    fill.append(f"ds_read_b32 v{CSV+1}, v{vFR} offset:{OFF_HD}")
    own_arena(33, AR_K)
    e(f"""
s_lshl_b32 s30, s{sWN}, 13
s_add_u32 s33, s33, s30
s_lshl_b32 s30, s{sWM}, 12
s_add_u32 s33, s33, s30
s_add_u32 s34, s33, {AR_V - AR_K}
s_lshl_b32 s31, s{sWM}, 2
s_mul_i32 s35, s{sWN}, 24
s_add_u32 s35, s35, s31
s_add_u32 s35, s35, 16
s_lshl_b32 s35, s35, 10
s_lshl_b32 s36, s{sW}, 11
s_add_u32 s36, s36, {L_Q}
""")
    flag_addr(32, WS_F1, sCB, sRB, 4, sW)
    if ZAT < 0: e(f"s_waitcnt vmcnt({SLOWPF})")
    G.c_loop(ST, pre_last1, fill)
    e(f"s_waitcnt lgkmcnt(0)\nv_readfirstlane_b32 s{sMODE}, v{CSV+1}\nv_lshlrev_b32 v2, 4, v1\nv_add_u32 v5, s35, v2\nv_add_u32 v6, s36, v2")
    e(f"s_lshr_b32 s30, s{sRB}, 1\ns_cmp_eq_u32 s30, {3 if MAP1 == 84 else 99}\ns_cselect_b32 s{sT0}, 1, s{sMODE}")
    def fold_rows(mt, t):
        c = G.acc(mt, t); k = RA_ + 2 * mt
        for h in range(2): e(f"v_pk_mul_f32 {v(c+2*h,2)}, {v(c+2*h,2)}, {v(k,2)} op_sel_hi:[1,0]")
        for h in range(2): e(f"v_pk_fma_f32 {v(c+2*h,2)}, {v(CSQ+4*t+2*h,2)}, {v(k,2)}, {v(c+2*h,2)} op_sel:[0,1,0] op_sel_hi:[1,1,1]")
    def fold_v(mt, dt):
        c = G.acc(mt, 4 + dt)
        for h in range(2): e(f"v_pk_mul_f32 {v(c+2*h,2)}, {v(c+2*h,2)}, {v(VA_+4*mt+2*h,2)}")
        for h in range(2): e(f"v_pk_fma_f32 {v(c+2*h,2)}, {v(VB_+4*mt+2*h,2)}, {v(CSV+2*dt,2)}, {v(c+2*h,2)} op_sel_hi:[1,0,1]")
    def epi1(fl):
        t = 24
        for mt in range(4):
            fold_rows(mt, 2); fold_rows(mt, 3)
            pack(t, G.acc(mt, 2), G.acc(mt, 3))
            e(f"buffer_store_dwordx4 {v(t,4)}, v2, {s(SWS,4)}, s33 offen offset:{mt*1024} {fl or KVFL}"); t += 4
        for p in range(2):
            for dt in range(2):
                fold_v(2 * p, dt); fold_v(2 * p + 1, dt)
                pack(t, G.acc(2 * p, 4 + dt), G.acc(2 * p + 1, 4 + dt))
                e(f"buffer_store_dwordx4 {v(t,4)}, v2, {s(SWS,4)}, s34 offen offset:{(2*p+dt)*1024} {fl or KVFL}"); t += 4
        if KFLAG:
            e("s_waitcnt vmcnt(4)"); set_flag(32, fl.replace("nt", ""), t=64)
        for i in range(4): e(f"ds_write_b128 v5, {v(24+4*i,4)} offset:{L_K + i*1024}")
        for i in range(4): e(f"ds_write_b128 v5, {v(40+4*i,4)} offset:{L_V + i*1024}")
        for mt in (2, 3, 0, 1):
            fold_rows(mt, 0); fold_rows(mt, 1)
            d = 8 + 4 * mt
            pack(d, G.acc(mt, 0), G.acc(mt, 1))
            if mt >= 2: e(f"ds_write_b128 v6, {v(d,4)} offset:{(mt-2)*1024}")
        e("s_waitcnt vmcnt(0)")
        set_flag(32, fl.replace("nt", ""), val=3, t=64)
    dual(epi1, sT0)
    ST("kv_flag")
    e(f"s_lshl_b32 s38, s{sWM}, 1")
    attn_setup()
    attention(ST, False)
    G = G3
    roles_48()
    b_src_wo()
    G.p_setup_b(sWN)
    X = G.VX
    rowmajor_voff(X + 16, X + 17)
    e(f"""
s_lshl_b32 s35, s{sRB}, 1
s_add_u32 s35, s35, s{sWM}
s_lshl_b32 s36, s{sCB}, 1
s_add_u32 s36, s36, s{sWN}
s_lshl_b32 s32, s35, 17
s_lshl_b32 s31, s36, 6
s_add_u32 s32, s32, s31
""")
    def hl_touch():
        e(f"s_lshl_b32 s37, s35, 17\ns_lshl_b32 s31, s36, 10\ns_add_u32 s37, s37, s31\ns_add_u32 s37, s37, {WS_HL}\nv_and_b32 v248, 7, v1\nv_lshlrev_b32 v248, 7, v248\nv_lshrrev_b32 v249, 3, v1\nv_lshl_add_u32 v248, v249, 15, v248")
        set_exec(0xffffffff); e(f"buffer_load_dword v249, v248, {s(SWS,4)}, s37 offen\ns_mov_b64 exec, -1")
    G.c_setup()
    e("s_waitcnt vmcnt(0)")
    set_flag(33)
    ST("o_flag")
    if LFIRST and HLT == 1: hl_touch()
    Qc = VmQ()
    L1, L2 = A.newlabel("b3a"), A.newlabel("b3b")
    e(f"s_cmp_lg_u32 s{sWM}, 0\ns_cbranch_scc1 {L1}")
    for st in ((0,) if SLDS else range(3)): G.issue_b(Qc, st)
    e(f"s_branch {L2}")
    A.label(L1)
    for st in ((1,) if SLDS else range(3, 6)): G.issue_b(Qc, st)
    A.label(L2)
    e("s_barrier")
    for mt in range(4): e(f"s_add_u32 s31, s32, {mt*16*2048}\nbuffer_load_dwordx4 {v(X+4*mt,4)}, v{X+16}, {s(SX,4)}, s31 offen")
    e("s_waitcnt vmcnt(4)")
    if SLDS:
        L1, L2 = A.newlabel("b3c"), A.newlabel("b3d")
        e(f"s_cmp_lg_u32 s{sWM}, 0\ns_cbranch_scc1 {L1}")
        for st in (6, 7, 8): G.issue_b(Qc, st)
        e(f"s_branch {L2}")
        A.label(L1)
        for st in (9, 10): G.issue_b(Qc, st)
        A.label(L2)
    if LFIRST and HLT == 2: hl_touch()
    e(f"""
s_lshl_b32 s37, s35, 17
s_lshl_b32 s31, s36, 10
s_add_u32 s37, s37, s31
s_add_u32 s37, s37, {WS_H}
s_lshl_b32 s38, s35, 14
s_lshl_b32 s31, s36, 9
s_add_u32 s38, s38, s31
s_add_u32 s38, s38, {WS_STAT}
""")
    flag_addr(32, WS_F3, sRB, sCB, 32, sW)
    HX = X + 24
    def pre_last3():
        e("s_waitcnt vmcnt(0)\nv_lshlrev_b32 v2, 4, v1")
        for mt in range(4):
            x = X + 4 * mt
            e(f"v_permlane16_swap_b32 v{x}, v{x+2}\nv_permlane16_swap_b32 v{x+1}, v{x+3}")
        for mt in range(4):
            for d in range(4): unpack(HX + 8 * mt + 2 * d, X + 4 * mt + d)
    G.c_loop(ST, pre_last3, mid={4: 's_waitcnt vmcnt(0)'} if SLDS else {})
    for mt in range(4):
        x = X + 4 * mt; u = HX + 8 * mt
        for d in range(4): e(f"v_pk_add_f32 {v(12+2*d,2)}, {v(G.acc(mt,d>>1)+2*(d&1),2)}, {v(u+2*d,2)}")
        for d in range(4): e(f"v_cvt_pk_bf16_f32 v{x+d}, v{12+2*d}, v{13+2*d}")
        if LFIRST: e(f"s_add_u32 s31, s37, {WS_HL - WS_H + mt*32*1024}\nbuffer_store_dwordx4 {v(x,4)}, v2, {s(SWS,4)}, s31 offen")
        else: e(f"s_add_u32 s31, s37, {mt*32*1024}\nbuffer_store_dwordx4 {v(x,4)}, v2, {s(SWS,4)}, s31 offen sc1")
    if LFIRST:
        for mt in range(4): e(f"s_add_u32 s31, s37, {mt*32*1024}\nbuffer_store_dwordx4 {v(X+4*mt,4)}, v2, {s(SWS,4)}, s31 offen sc1")
    for mt in range(4):
        x = X + 4 * mt; u = HX + 8 * mt
        for d in range(4): unpack(u + 2 * d, x + d)
        e(f"v_pk_add_f32 v[12:13], {v(u,2)}, {v(u+2,2)}\nv_pk_add_f32 v[14:15], {v(u+4,2)}, {v(u+6,2)}")
        e(f"v_pk_add_f32 v[12:13], v[12:13], v[14:15]\nv_add_f32 v{32+2*mt}, v12, v13")
    if LFIRST:
        e(f"s_add_u32 s31, s32, {WS_F3L - WS_F3}\ns_waitcnt vmcnt(4)"); set_flag(31, "")
    xg_multi("v_add_f32", [32, 34, 36, 38], [16, 17, 18, 19])
    for mt in range(4):
        u = HX + 8 * mt; sm = 32 + 2 * mt
        e(f"v_mul_f32 v12, {f32(1/32)}, v{sm}")
        for d in range(4): e(f"v_pk_add_f32 {v(u+2*d,2)}, {v(u+2*d,2)}, v[12:13] op_sel_hi:[1,0] neg_lo:[0,1] neg_hi:[0,1]")
        e(f"v_pk_mul_f32 v[14:15], {v(u,2)}, {v(u,2)}")
        for d in range(1, 4): e(f"v_pk_fma_f32 v[14:15], {v(u+2*d,2)}, {v(u+2*d,2)}, v[14:15]")
        e(f"v_add_f32 v{sm+1}, v14, v15")
    xg_multi("v_add_f32", [33, 35, 37, 39], [16, 17, 18, 19])
    for k in range(1, 4):
        e(f"v_cmp_eq_u32 vcc, {k}, v3\nv_cndmask_b32 v32, v32, v{32+2*k}, vcc\nv_cndmask_b32 v33, v33, v{33+2*k}, vcc")
    e(f"v_lshlrev_b32 v2, 3, v1\nbuffer_store_dwordx2 v[32:33], v2, {s(SWS,4)}, s38 offen sc1\ns_waitcnt vmcnt({2 if LFIRST else 1})")
    set_flag(32)
    post(OFF_EP, 2)
    ST("h_flag")
    G = G4
    roles_84()
    G.c_setup()
    e("s_mov_b32 s40, s32")
    def stats_out():
        e("s_waitcnt vmcnt(0)"); set_flag(40, val=3)
    h1_base(37)
    e(f"""
s_and_b32 s39, s{sCB}, 1
s_add_u32 s32, s{sOWN}, s37
s_lshl_b32 s33, s{sWM}, 12
s_add_u32 s32, s32, s33
s_lshl_b32 s34, s{sWN}, 2
s_add_u32 s34, s34, s39
s_add_u32 s35, s39, s{sWN}
s_add_u32 s35, s35, 2
s_xor_b32 s36, s39, 1
s_mul_i32 s36, s36, 6
s_lshl_b32 s34, s34, 13
s_lshl_b32 s35, s35, 13
s_lshl_b32 s36, s36, 13
s_add_u32 s34, s34, s32
s_add_u32 s35, s35, s32
s_add_u32 s36, s36, s32
s_lshl_b32 s37, s{sWN}, 3
s_add_u32 s36, s36, s37
s_add_u32 s37, s34, 8192
s_mov_b32 s{sC0}, {f32(-LOG2E)}
s_mov_b32 s{sC0+1}, {f32(-LOG2E)}
""")
    f4_addr(38, sRB, sCB, sW)
    def pre_last4():
        e(f"""
s_lshl_b32 s30, s{sWM}, 9
s_add_u32 s30, s30, {L_RA}
v_lshl_add_u32 v2, v4, 3, s30
s_lshl_b32 s31, s39, 7
s_lshl_b32 s32, s{sWN}, 9
s_add_u32 s32, s32, s31
s_add_u32 s32, s32, {L_CS}
v_lshl_add_u32 v5, v3, 4, s32
s_lshl_b32 s32, s{sWN}, 7
s_add_u32 s32, s32, s31
s_add_u32 s32, s32, {L_CS + 256}
v_lshl_add_u32 v6, v3, 4, s32
s_xor_b32 s33, s39, 1
s_mul_i32 s33, s33, 768
s_lshl_b32 s32, s{sWN}, 6
s_add_u32 s32, s32, s33
s_add_u32 s32, s32, {L_CS}
v_lshl_add_u32 v7, v3, 4, s32
""")
    CS, KR = (G.free_set(), G.VX) if G.chain else (16, 8)
    assert CS + 28 <= 56 and KR + 8 <= vDW
    fill = [f"ds_read_b64 {v(KR+2*mt,2)}, v2 offset:{mt*128}" for mt in range(4)]
    fill += [f"ds_read_b128 {v(CS+4*t,4)}, v5 offset:{64*t}" for t in range(4)]
    fill += [f"ds_read_b128 {v(CS+16+4*t,4)}, v6 offset:{64*t}" for t in range(2)] + [f"ds_read_b128 {v(CS+24,4)}, v7"]
    G.c_loop(ST, pre_last4, fill, after_go=stats_out)
    e("s_waitcnt lgkmcnt(0)\nv_lshlrev_b32 v2, 4, v1")
    def epi4(fl):
        units = []
        for pr in range(4):
            for mt in range(4): units.append((mt, (2 * pr, 2 * pr + 1) if pr < 3 else (6,), pr))
        T0, O0 = 56, 80
        def sA(i):
            mt, ts, pr = units[i]; k = KR + 2 * mt; o = []
            for t in ts:
                c = G.acc(mt, t)
                for h in range(2): o.append(f"v_pk_mul_f32 {v(c+2*h,2)}, {v(c+2*h,2)}, {v(k,2)} op_sel:[0,1] op_sel_hi:[1,1]")
            for t in ts:
                c = G.acc(mt, t)
                for h in range(2): o.append(f"v_pk_fma_f32 {v(c+2*h,2)}, {v(CS+4*t+2*h,2)}, {v(k,2)}, {v(c+2*h,2)} op_sel_hi:[1,0,1]")
            return o
        def sB(i):
            mt, ts, pr = units[i]; T = T0 + 8 * (i % 3)
            return [f"v_exp_f32 v{T+4*j+k}, v{G.acc(mt,t)+k}" for j, t in enumerate(ts) for k in range(4)]
        def sC(i):
            mt, ts, pr = units[i]; T = T0 + 8 * (i % 3)
            return [f"v_pk_fma_f32 {v(T+2*h,2)}, {v(T+2*h,2)}, {s(sC0,2)}, {s(sC0,2)}" for h in range(2 * len(ts))]
        def sD(i):
            mt, ts, pr = units[i]; T = T0 + 8 * (i % 3)
            return [f"v_rcp_f32 v{T+k}, v{T+k}" for k in range(4 * len(ts))]
        def sE(i):
            mt, ts, pr = units[i]; T = T0 + 8 * (i % 3); o = []; d = O0 + 4 * (i % 4)
            for j, t in enumerate(ts):
                c = G.acc(mt, t)
                for h in range(2): o.append(f"v_pk_mul_f32 {v(c+2*h,2)}, {v(c+2*h,2)}, {v(T+4*j+2*h,2)}")
            for j, t in enumerate(ts):
                c = G.acc(mt, t)
                for h in range(2): o.append(f"v_cvt_pk_bf16_f32 v{d+2*j+h}, v{c+2*h}, v{c+2*h+1}")
            base = (34, 37, 35, 36)[pr]
            if NOST4: return o
            o.append(f"buffer_store_dwordx4 {v(d,4)}, v2, {s(SWS,4)}, s{base} offen offset:{mt*1024} {fl}" if pr < 3 else f"buffer_store_dwordx2 {v(d,2)}, v2, {s(SWS,4)}, s{base} offen offset:{mt*1024} {fl}")
            return o
        N = len(units)
        for x in sA(0): e(x)
        for i in range(N + 1):
            seq = []
            if i < N: seq += sB(i)
            if i + 1 < N: seq += sA(i + 1)
            if i < N: seq += sC(i)
            if i >= 1: seq += sE(i - 1)
            if i < N: seq += sD(i)
            for x in seq: e(x)
            if EARLY5 and i == 8 + E5LAG:
                e(f"s_waitcnt vmcnt({E5LAG})"); set_flag(38, fl.replace("nt", ""))
        ST("silu")
        roles_w2()
        G5.c_setup()
        e("s_waitcnt vmcnt(0)")
        set_flag(38, fl.replace("nt", ""), val=3)
    n0 = list(ST.names)
    def epi4w(fl):
        ST.names = list(n0); epi4(fl)
    dual(epi4w, sMODE)
    ST("h1_flag")
    G = G5
    MT = G.MT; keep = 2; nb = 4
    def pre_last5():
        srd(SD, pOUT, 4 * MB)
        e(f"""
s_lshl_b32 s33, s{sRB}, 3
s_add_u32 s33, s33, s{sCB}
s_mul_i32 s34, s33, {16*4*nb*1024}
s_add_u32 s34, s34, {WS_PART}
s_mul_i32 s30, s{sW}, {nb*1024}
s_add_u32 s34, s34, s30
s_lshl_b32 s35, s{sRB}, 3
s_lshl_b32 s30, s{sWM}, 3
s_add_u32 s35, s35, s30
s_lshl_b32 s30, s{sKS}, 1
s_add_u32 s35, s35, s30
s_lshl_b32 s36, s{sCB}, 2
s_lshl_b32 s30, s{sWN}, 1
s_add_u32 s36, s36, s30
s_lshl_b32 s38, s35, 15
s_lshl_b32 s31, s36, 10
s_add_u32 s38, s38, s31
s_add_u32 s38, s38, {WS_H}
s_lshl_b32 s37, s33, {9 if F5W else 6}
s_lshl_b32 s31, s{sW}, {7 if F5W else 2}
s_add_u32 s37, s37, s31
s_add_u32 s37, s37, {WS_F5W if F5W else WS_F5}
s_lshl_b32 s31, s{sKS}, 4
s_add_u32 s32, s37, s31
s_lshl_b32 s39, s{sKS}, 2
""")
        for d in range(1, 4):
            e(f"s_add_u32 s31, s{sKS}, {d}\ns_and_b32 s31, s31, 3\ns_lshl_b32 s30, s31, 2\ns_add_u32 s30, s30, s{sKS}\ns_mul_i32 s30, s30, {4*nb*1024}\ns_add_u32 s{39+d}, s30, s34")
            e(f"s_add_u32 s31, s31, s39\ns_mul_i32 s31, s31, {4*nb*1024}\ns_add_u32 s{42+d}, s31, s34")
        e(f"s_lshl_b32 s46, s35, 15\ns_lshl_b32 s31, s36, 6\ns_add_u32 s46, s46, s31\ns_add_u32 s47, s38, {32*1024}")
    if TAILPM:
        assert not CANARY
        BQ, AB = [8, 24, 56, 72], [40, 88]
        sub4 = [(12, 0), (12, 1), (13, 0), (13, 1)]
        order = [2, 3, 4, 5, 6, 7, 0, 1]
        HRS = [G.acc(2, 1), G.acc(2, 3), G.acc(3, 1), G.acc(3, 3)]
        brd = lambda j: [x for t in range(4) for x in G.b_read(*sub4[j], t, BQ[j] + 4 * t)]
        ard = lambda n_: [G.a_read(*sub4[j], order[n_], AB[n_ & 1] + 4 * j) for j in range(4)]
        G.c_loop(ST, pre_last5, ["v_lshlrev_b32 v2, 4, v1"] + ard(0) + brd(0) + brd(1), nsteps=12)
        def send(mt):
            out = []
            for pr in range(2):
                c0, c1 = G.acc(mt, 2 * pr), G.acc(mt, 2 * pr + 1)
                out += [f"v_cvt_pk_bf16_f32 v{c0}, v{c0}, v{c0+1}", f"v_cvt_pk_bf16_f32 v{c0+1}, v{c0+2}, v{c0+3}",
                        f"v_cvt_pk_bf16_f32 v{c0+2}, v{c1}, v{c1+1}", f"v_cvt_pk_bf16_f32 v{c0+3}, v{c1+2}, v{c1+3}",
                        f"buffer_store_dwordx4 {v(c0,4)}, v2, {s(SWS,4)}, s{39+mt//2} offen offset:{(2*(mt&1)+pr)*1024} {PFL}"]
            return out
        for n_, mt in enumerate(order):
            mm = lambda t, j: f"v_mfma_f32_16x16x32_bf16 {v(G.acc(mt,t),4)}, {v(BQ[j]+4*t,4)}, {v(AB[n_&1]+4*j,4)}, {v(G.acc(mt,t),4)}"
            e("s_waitcnt lgkmcnt(0)")
            if n_ == 0:
                side = brd(2) + brd(3)
                for i, (t, j) in enumerate([(t, j) for t in range(4) for j in range(2)]):
                    e(mm(t, j)); e(side[2 * i]); e(side[2 * i + 1])
                side = ard(1)
                for i, (t, j) in enumerate([(t, j) for j in (2, 3) for t in range(4)]):
                    if i == 0: e("s_waitcnt lgkmcnt(8)")
                    if i == 4: e("s_waitcnt lgkmcnt(4)")
                    e(mm(t, j))
                    if i < 4: e(side[i])
                continue
            side = (ard(n_ + 1) if n_ + 1 < 8 else []) + (send(order[n_ - 1]) if order[n_ - 1] >= 2 else [])
            if n_ == 3: side += [f"buffer_load_dwordx4 {v(HRS[2*i+pr],4)}, v2, {s(SWS,4)}, s{38 if i == 0 else 47} offen offset:{pr*1024} sc1" for i in range(2) for pr in range(2)]
            if LEVELS and n_ == 7:
                side = ["v_mov_b32 v5, 0", "v_mov_b32 v6, 1", "s_waitcnt vmcnt(12)", "s_mov_b64 exec, 1\n" + f"buffer_store_byte v6, v5, {s(SWS,4)}, s32 offen offset:1 sc1" + "\ns_mov_b64 exec, -1"]
            for i, (t, j) in enumerate([(t, j) for t in range(4) for j in range(4)]):
                e(mm(t, j))
                for x in side[i:i + 1] + (side[16:] if i == 15 else []): e(x)
        ST("w2_end")
    else:
        HRS = [8, 12, 16, 20]
        HR = 8
        fill = ["v_lshlrev_b32 v2, 4, v1"]
        fill += [f"buffer_load_dwordx4 {v(HR+4*(2*i+pr),4)}, v2, {s(SWS,4)}, s{38 if i == 0 else 47} offen offset:{pr*1024} sc1" for i in range(2) for pr in range(2)]
        if CANARY: fill.append(f"buffer_load_dword v248, v2, {s(SWS,4)}, s37 offen sc1")
        G.c_loop(ST, pre_last5, fill)
        o = 24
        for d in range(1, 4):
            for i in range(keep):
                for pr in range(2):
                    mt = d * keep + i
                    pack(o, G.acc(mt, 2 * pr), G.acc(mt, 2 * pr + 1))
                    e(f"buffer_store_dwordx4 {v(o,4)}, v2, {s(SWS,4)}, s{39+d} offen offset:{(2*i+pr)*1024} {PFL}")
                    o = 24 + (o - 24 + 4) % 32
    PR = 64
    assert PR + 48 <= G.ACC
    def add_partial(d):
        for i in range(keep):
            for pr in range(2):
                for q in range(4): unpack(40 + 2 * q, PR + 4 * ((d - 1) * nb + 2 * i + pr) + q)
                for q in range(4):
                    c = G.acc(i, 2 * pr + (q >> 1)) + 2 * (q & 1)
                    e(f"v_pk_add_f32 {v(c,2)}, {v(c,2)}, {v(40+2*q,2)}")
    def add_residual():
        for i in range(keep):
            for pr in range(2):
                for q in range(4): unpack(40 + 2 * q, HRS[2 * i + pr] + q)
                for q in range(4):
                    c = G.acc(i, 2 * pr + (q >> 1)) + 2 * (q & 1)
                    e(f"v_pk_add_f32 {v(c,2)}, {v(c,2)}, {v(40+2*q,2)}")
    def ld_partial(d):
        for b in range(nb): e(f"buffer_load_dwordx4 {v(PR+4*((d-1)*nb+b),4)}, v2, {s(SWS,4)}, s{42+d} offen offset:{b*1024} sc1")
    rowmajor_voff(62, 63)
    if CANARY:
        e("v_mov_b32 v58, s43\nv_mov_b32 v59, s44\nv_cmp_eq_u32 vcc, 1, v1\nv_cndmask_b32 v58, v58, v59, vcc\nv_mov_b32 v59, s45\nv_cmp_eq_u32 vcc, 2, v1\nv_cndmask_b32 v58, v58, v59, vcc")
        e("s_waitcnt vmcnt(0)")
        ST("p_flag")
        add_residual()
        X0 = A.newlabel("pfok")
        e(f"s_mov_b64 exec, 0xf\nv_and_b32 v248, 1, v248\nv_cmp_ne_u32 vcc, 1, v248\ns_mov_b64 exec, -1\ns_cbranch_vccz {X0}")
        poll("s37", 4, voff=2, t=60)
        A.label(X0)
        L, X = A.newlabel("can"), A.newlabel("canx")
        e(f"s_mov_b64 exec, 7\ns_mov_b32 s{sCNT}, 0")
        A.label(L)
        e(f"buffer_load_dword v60, v58, {s(SWS,4)}, 0 offen offset:4092 sc1\ns_add_u32 s{sCNT}, s{sCNT}, 1\ns_cmp_gt_u32 s{sCNT}, {SPIN_MAX}\ns_waitcnt vmcnt(0)\ns_cbranch_scc1 {X}")
        e(f"v_cmp_eq_u32 vcc, -1, v60\ns_cbranch_vccnz {L}")
        A.label(X)
        e("s_mov_b64 exec, -1")
        ST("p_seen")
        for d in range(1, 4): ld_partial(d)
        for d in range(1, 4):
            L, X = A.newlabel("pv"), A.newlabel("pvx")
            r0 = PR + 16 * (d - 1)
            e(f"s_waitcnt vmcnt({(3-d)*nb})")
            A.label(L)
            e(f"v_max_u32 v60, v{r0}, v{r0+1}")
            for i in range(2, 16, 2): e(f"v_max3_u32 v60, v{r0+i}, v{r0+i+1}, v60")
            e(f"v_cmp_eq_u32 vcc, -1, v60\ns_cbranch_vccz {X}\ns_add_u32 s{sCNT}, s{sCNT}, 1\ns_cmp_gt_u32 s{sCNT}, {SPIN_MAX}\ns_cbranch_scc1 {X}")
            ld_partial(d)
            e(f"s_waitcnt vmcnt(0)\ns_branch {L}")
            A.label(X)
            add_partial(d)
    elif LEVELS and TAILPM:
        lvf = lambda l: e(f"s_mov_b64 exec, 1\nbuffer_store_byte v6, v5, {s(SWS,4)}, s32 offen offset:{l} sc1\ns_mov_b64 exec, -1")
        e("s_waitcnt vmcnt(5)"); lvf(2)
        add_residual()
        e(f"v_sub_u32 v61, s{sKS}, v1\nv_and_b32 v61, 3, v61\nv_lshlrev_b32 v61, 3, v61")
        e("s_waitcnt vmcnt(2)"); lvf(3)
        ST("p_flag")
        e(f"s_mov_b32 s{sCNT}, 0\ns_mov_b32 s33, 0")
        if PW5: e("s_waitcnt vmcnt(0)")
        for lvl in (1, 2, 3):
            L, X = A.newlabel("lv"), A.newlabel("lvx")
            e(f"s_sub_u32 s30, s{sKS}, {lvl}\ns_and_b32 s30, s30, 3\ns_bitcmp1_b32 s33, s30\ns_cbranch_scc1 {X}")
            A.label(L)
            e(f"s_mov_b64 exec, 0xf\nbuffer_load_dword v60, v2, {s(SWS,4)}, s37 offen sc1\ns_add_u32 s{sCNT}, s{sCNT}, 1\ns_waitcnt vmcnt(0)\nv_bfe_u32 v60, v60, v61, 1\nv_cmp_eq_u32 vcc, 1, v60\ns_mov_b64 exec, -1\ns_mov_b32 s33, vcc_lo")
            e(f"s_cmp_gt_u32 s{sCNT}, {SPIN_MAX}\ns_cbranch_scc1 {X}\ns_bitcmp1_b32 s33, s30\ns_cbranch_scc0 {L}")
            A.label(X)
            ld_partial(4 - lvl)
        ST("p_seen")
        for lvl in (1, 2, 3):
            e(f"s_waitcnt vmcnt({(3-lvl)*nb})")
            add_partial(4 - lvl)
    else:
        e("s_waitcnt vmcnt(0)")
        set_flag(32)
        ST("p_flag")
        add_residual()
        poll("s37", 4, voff=2, t=60)
        ST("p_seen")
        for d in range(1, 4): ld_partial(d)
        for d in range(1, 4):
            e(f"s_waitcnt vmcnt({(3-d)*nb})")
            add_partial(d)
    if PERT:
        L = A.newlabel("nopert")
        e(f"s_cmp_ge_u32 s2, {PERTN}\ns_cbranch_scc1 {L}\ns_mov_b64 exec, {PERTL}\nv_add_f32 v{G.acc(0,0)}, {f32(PERT)}, v{G.acc(0,0)}\ns_mov_b64 exec, -1")
        A.label(L)
    for i in range(keep):
        for pr in range(2):
            x = HRS[2 * i + pr]
            pack(x, G.acc(i, 2 * pr), G.acc(i, 2 * pr + 1))
            e(f"v_permlane16_swap_b32 v{x}, v{x+2}\nv_permlane16_swap_b32 v{x+1}, v{x+3}")
            if LEAK and i == 0 and pr == 0:
                ST("leak"); L = A.newlabel("noleak"); nm = ST.names; ix = lambda n_: 78 + nm.index(n_)
                e(f"s_or_b32 s30, s2, s{sWAVE}\ns_or_b32 s30, s30, s{sMODE}\ns_cmp_lg_u32 s30, 0\ns_cbranch_scc1 {L}\ns_sub_u32 s30, s{ix('leak')}, s78\ns_cmp_lt_u32 s30, {LEAK}\ns_cbranch_scc1 {L}\ns_mov_b64 exec, 1")
                seq = ["start", "qkv_go", "qkv_end", "wo_go", "wo_end", "w1_go", "w1_end", "w2_end", "leak"]
                for j in range(8):
                    e(f"s_sub_u32 s30, s{ix(seq[j+1])}, s{ix(seq[j])}\nv_cvt_f32_u32 v{40+j}, s30\nv_mul_f32 v{40+j}, {f32(0.01)}, v{40+j}")
                for j in range(4): e(f"v_cvt_pk_bf16_f32 v{x+j}, v{40+2*j}, v{41+2*j}")
                e("s_mov_b64 exec, -1")
                A.label(L)
            e(f"s_add_u32 s31, s46, {i*16*2048}\nbuffer_store_dwordx4 {v(x,4)}, v62, {s(SD,4)}, s31 offen offset:{pr*64} {OFL}")
    ST.flush()
    e("s_endpgm")

def neighbours_and_attention(ST, Q):
    e(f"s_lshl_b32 s38, s{sWM}, 1\ns_add_u32 s38, s38, 1")
    attn_setup()
    L = A.newlabel("nonb")
    assert MAP1 == 162
    own_arena(42)
    e(f"""
s_add_u32 s40, s{sRB}, s{sWM}
s_sub_u32 s41, s40, 2
s_lshl_b32 s31, s{sWM}, 16
s_add_u32 s42, s42, s31
s_sub_u32 s42, s42, {2*64*KB}
s_lshl_b32 s31, s{sWN}, 13
s_add_u32 s42, s42, s31
s_mul_i32 s43, s{sWN}, 24
s_lshl_b32 s31, s{sWM}, 3
s_add_u32 s43, s43, s31
s_lshl_b32 s43, s43, 10
v_lshlrev_b32 v2, 4, v1
s_cmp_lt_u32 s40, 2
s_cselect_b32 s42, {WS_BYTES}, s42
s_cbranch_scc1 {L}
""")
    flag_addr(32, WS_F1, sCB, 41, 4, None)
    poll("s32", 4, t=8)
    A.label(L)
    ST("nb_seen")
    def nb_loads(wsb, lb):
        if wsb == AR_V and KFLAG:
            L2 = A.newlabel("nonv")
            e(f"s_cmp_lt_u32 s40, 2\ns_cbranch_scc1 {L2}")
            poll("s32", 4, t=20, mask=2)
            A.label(L2)
            e("v_lshlrev_b32 v2, 4, v1")
        for h in range(2):
            e(f"s_add_u32 m0, s43, {lb + h*4096}\ns_add_u32 s31, s42, {wsb + h*4096}")
            for i in range(4): e(f"buffer_load_dwordx4 v2, {s(SWS,4)}, s31 offen offset:{i*1024} sc1 lds")
    Q.q = []
    nb_loads(AR_K, L_K); Q.add("nk", 8)
    def vl():
        nb_loads(AR_V, L_V); Q.add("nv", 8)
    if not VLATE: vl()
    attention.vl = vl if VLATE else None
    attention(ST, True, Q)
    roles_48()
    b_src_wo()
    e(f"ds_read_b32 v8, v{vFR} offset:{OFF_HD}")
    G3.p_setup_a(); G3.p_setup_b(sWN)
    e(f"s_waitcnt lgkmcnt(0)\nv_readfirstlane_b32 s{sMODE}, v8")
    e("s_waitcnt vmcnt(0)")
    set_flag(33)
    e("s_barrier")
    Q.q = []
    ST("o_flag")

def dma_phase1(ST, Q):
    G = G1
    if DPRIO: e(f"s_setprio {DPRIO}")
    def touch(nk, fl):
        def f():
            e(f"s_mul_i32 s30, s{sW}, {nk*1024}\ns_add_u32 s30, s30, s{sOWN}\nv_lshlrev_b32 v12, 7, v1")
            for i in range(0, nk, 8):
                if nk - i < 8: set_exec((1 << ((nk - i) * 8)) - 1)
                e(f"s_add_u32 s31, s30, {WS_AR + i*1024}\nbuffer_load_dword v{248+i//8}, v12, {s(SWS,4)}, s31 offen {fl}")
                Q.add("touch")
            e("s_mov_b64 exec, -1")
        return f
    dma_phase1.touch = touch
    G.p_loop(Q, ST, 0, NPF, tail=touch(16, TFL.replace("none", "")) if TOUCH else None)
    if DPRIO: e("s_setprio 0")
    e("s_waitcnt lgkmcnt(0)")

def dma_rest(ST, Q):
    G = G3
    if DPRIO: e(f"s_setprio {DPRIO}")
    e(f"s_lshl_b32 s32, s{sRB}, 11\ns_add_u32 s32, s32, {WS_F2}")
    pf_step(PFBUB)
    e("v_lshrrev_b32 v10, 2, v1\nv_lshlrev_b32 v10, 7, v10\nv_and_b32 v11, 3, v1\nv_lshl_add_u32 v10, v11, 3, v10")
    G.p_loop(Q, ST, G.NSB, 1, 3, gate=lambda k: gate_k(G3, k, True), look=(range(0, 12), (32, 10, True)))
    G = G4
    roles_84()
    b_src_w1()
    e(f"s_lshl_b32 s{sAR}, s{sRB}, 18\ns_add_u32 s{sAR}, s{sAR}, {WS_H}")
    G.p_setup_b(); G.p_setup_a()
    e(f"s_lshl_b32 s32, s{sRB}, 11\ns_add_u32 s32, s32, {WS_F3}")
    if BEARLY and not BTAIL: G.issue_b(Q, 0)
    if not LFIRST: wait_rows(OFF_EP, 2)
    if not BEARLY and not BTAIL: G.issue_b(Q, 0)
    pf_step(PFBUB)
    e("v_lshrrev_b32 v10, 2, v1\nv_lshlrev_b32 v10, 7, v10\nv_and_b32 v11, 3, v1\nv_lshl_add_u32 v10, v11, 2, v10")
    if LFIRST:
        e(f"s_lshl_b32 s30, s{sROT}, 2\nv_add_u32 v10, s30, v1\nv_and_b32 v10, 63, v10\nv_lshlrev_b32 v10, 2, v10")
        e(f"s_cmp_lg_u32 s{sMODE}, 0\ns_cselect_b32 s33, 0, {WS_F3L - WS_F3}\ns_cselect_b32 s{sKS}, 0, {WS_HL - WS_H}\ns_add_u32 s33, s33, s32\ns_add_u32 s{sKS}, s{sKS}, s{sAR}")
    def gate4(k):
        if not LFIRST: return gate_k(G4, k, False)
        n0 = GATEN["w1"]
        if k == 4: e(f"s_mov_b64 {s(sRDY,2)}, -1")
        if k == 0: need_flags((1 << (4 * n0)) - 1, 33, 10, False)
        elif k >= n0: need_flags(0xf << (4 * k), 33 if k < 4 else 32, 10, False)
    G.p_loop(Q, ST, 1 if BLATE else G.NSB, NPF, gate=gate4, tail=dma_phase1.touch(28, '') if TOUCH4 else None, look=(range(0, 12), (32, 10, False)))
    pf_finish()
    G = G5
    roles_w2()
    b_src_w2()
    G.p_setup_b()
    G.p_setup_a()
    if ROT5: G.rot_setup()
    for st in range(G.NS): G.issue_b(Q, st)
    e(f"s_lshl_b32 s32, s{sRB}, 9\ns_lshl_b32 s30, s{sKS}, 7\ns_add_u32 s32, s32, s30\ns_add_u32 s32, s32, {WS_F4P}")
    e(f"s_lshl_b32 s30, s{sW}, 9\ns_add_u32 s32, s32, s30\nv_lshlrev_b32 v10, 2, v4")
    if ROT5: e(f"s_lshl_b32 s30, s34, 2\nv_add_u32 v10, s30, v4\nv_and_b32 v10, 15, v10\nv_lshlrev_b32 v10, 2, v10")
    e("v_and_b32 v11, 1, v3")
    seen5 = set()
    def gate5(k):
        want = {(c, lv) for c, kb, lv in G5.blocks()[2 * k:2 * k + 2]} - seen5
        if want:
            seen5.update(want)
            need_flags(sum(0xf << (4 * c + 16 * (lv - 1)) for c, lv in want), 32, 10, False, shift=11)
    G.p_loop(Q, ST, G.NS + RP5, gate=gate5, look=(range(0, 10), (32, 10, False, 11)) if ASY5 else None, merge=bool(TAILPM))

U0 = 200
def colsum_block(j, src, nld, dpp):
    u = U0 + 8 * j
    if DOT:
        e("v_mov_b32 v10, 0x00003f80\nv_mov_b32 v11, 0x3f800000")
        for i in range(nld):
            for d in range(4):
                if i == 0: unpack(u + 2 * d, src + d)
                else: e(f"v_dot2_f32_bf16 v{u+2*d}, v{src+4*i+d}, v10, v{u+2*d}\nv_dot2_f32_bf16 v{u+2*d+1}, v{src+4*i+d}, v11, v{u+2*d+1}")
    else:
        for i in range(nld):
            for d in range(4):
                if i == 0: unpack(u + 2 * d, src + d)
                else:
                    unpack(10 + 2 * (d & 1), src + 4 * i + d)
                    e(f"v_pk_add_f32 {v(u+2*d,2)}, {v(u+2*d,2)}, {v(10+2*(d&1),2)}")
    for d in range(4): e(f"v_permlane32_swap_b32 v{u+d}, v{u+4+d}")
    for d in range(2): e(f"v_pk_add_f32 {v(u+2*d,2)}, {v(u+2*d,2)}, {v(u+4+2*d,2)}")
    for d in range(2): e(f"v_permlane16_swap_b32 v{u+d}, v{u+2+d}")
    e(f"v_pk_add_f32 {v(u,2)}, {v(u,2)}, {v(u+2,2)}")
    for k in dpp:
        for r in range(u, u + 2): e(f"v_add_f32_dpp v{r}, v{r}, v{r} row_ror:{k} row_mask:0xf bank_mask:0xf")
def colsum_store(Q, j, soff, nl, tag):
    u = U0 + 8 * j
    e("v_lshlrev_b32 v6, 5, v4\nv_lshl_add_u32 v6, v3, 3, v6")
    m = (1 << nl) - 1
    set_exec(m | m << 16 | m << 32 | m << 48)
    e(f"buffer_store_dwordx2 {v(u,2)}, v6, {s(SWS,4)}, s{soff} offen offset:{256*j} sc1\ns_mov_b64 exec, -1")
    Q.add(tag, 1)

def zero_own_flags(Q):
    e("v_lshlrev_b32 v2, 2, v1\nv_mov_b32 v8, 0")
    def st(soff, nl):
        set_exec((1 << nl) - 1); e(f"buffer_store_dword v8, v2, {s(SWS,4)}, s{soff} offen sc1"); Q.add("zero")
    flag_addr(32, WS_F1, sCB, sRB, 4, None); st(32, 4)
    flag_addr(32, WS_F2, sRB, sCB, 32, None); st(32, 8)
    roles_48(36, 37)
    flag_addr(32, WS_F3, 36, 37, 32, None); st(32, 4)
    if LFIRST: e(f"s_add_u32 s32, s32, {WS_F3L - WS_F3}"); st(32, 4)
    roles_w2(36, 37, 38)
    if F5W:
        assert not CANARY
        e(f"s_lshl_b32 s32, s36, 3\ns_add_u32 s32, s32, s37\ns_lshl_b32 s32, s32, 5\ns_add_u32 s32, s32, s38\ns_lshl_b32 s32, s32, 4\ns_add_u32 s32, s32, {WS_F5W}")
        set_exec(0xf); e("v_lshlrev_b32 v9, 7, v1"); e(f"buffer_store_dword v8, v9, {s(SWS,4)}, s32 offen sc1"); Q.add("zero")
    else:
        e(f"s_lshl_b32 s32, s36, 3\ns_add_u32 s32, s32, s37\ns_lshl_b32 s32, s32, 2\ns_add_u32 s32, s32, s38\ns_lshl_b32 s32, s32, 4\ns_add_u32 s32, s32, {WS_F5}"); st(32, 4)
    roles_84(36, 37)
    f4_addr(32, 36, 37, None); st(32, 4)
    e("s_mov_b64 exec, -1\nv_mov_b32 v8, -1\nv_mov_b32 v9, -1\nv_mov_b32 v10, -1\nv_mov_b32 v11, -1\nv_lshlrev_b32 v7, 4, v1")
    e(f"s_lshl_b32 s32, s35, 5\ns_add_u32 s32, s32, {WS_RA}"); st(32, 8)
    e(f"s_add_u32 s32, s32, {WS_RB - WS_RA}"); st(32, 8)
    def st4(soff, nl):
        set_exec((1 << nl) - 1); e(f"buffer_store_dwordx4 v[8:11], v7, {s(SWS,4)}, s{soff} offen sc1"); Q.add("zero")
    e(f"s_mul_i32 s32, s35, 768\ns_add_u32 s32, s32, {WS_CS1}"); st4(32, 48)
    e(f"s_mul_i32 s32, s36, {2*3584*4}\ns_mul_i32 s33, s37, 896\ns_add_u32 s32, s32, s33\ns_add_u32 s32, s32, {WS_CS2}"); st4(32, 56)
    e(f"s_add_u32 s32, s32, {3584*4}"); st4(32, 56)
    if TWO:
        e(f"s_lshl_b32 s32, s36, 4\ns_add_u32 s32, s32, s37\ns_lshl_b32 s32, s32, 6\ns_add_u32 s32, s32, {WS_K2}"); st4(32, 4)
        e(f"s_lshl_b32 s32, s37, 4\ns_add_u32 s32, s32, s36\ns_lshl_b32 s32, s32, 6\ns_add_u32 s32, s32, {WS_CF}"); st4(32, 4)
    e("s_mov_b64 exec, -1")

sPFO, sPFE, sPFI, SPF = sNEED, pOUT, sT0, 44
sPFS = pOUT + 1
sTOUT = 96
def pf_init():
    e(f"s_mov_b64 {s(sTOUT,2)}, {s(pOUT,2)}")
    srd(SPF, pWO, 2 * MB)
    e(f"s_lshl_b32 s{sPFS}, s2, 2\ns_add_u32 s{sPFS}, s{sPFS}, s{sW}\ns_lshl_b32 s{sPFS}, s{sPFS}, 8\ns_mov_b32 s{sPFO}, s{sPFS}\ns_mov_b32 s{sPFE}, {2*MB}\ns_mov_b32 s{sPFI}, {2 if W2NT else 0 if PFW1 else 1}")
def pf_chunk():
    for i in range(4): e(f"s_buffer_load_dword s{sC0}, {s(SPF,4)}, s{sPFO} offset:{64*i}")
    e(f"s_add_u32 s{sPFO}, s{sPFO}, {1024*256}")
def pf_step(n):
    if not SPFON or n == 0: return
    G_, X, W2L = A.newlabel("pfg"), A.newlabel("pfx"), A.newlabel("pfw2")
    e(f"s_cmp_lt_u32 s{sPFO}, s{sPFE}\ns_cbranch_scc1 {G_}\ns_cmp_ge_u32 s{sPFI}, 2\ns_cbranch_scc1 {X}")
    e(f"s_mov_b32 s{sPFO}, s{sPFS}\ns_mov_b32 s{sPFE}, {7*MB}\ns_add_u32 s{sPFI}, s{sPFI}, 1\ns_cmp_eq_u32 s{sPFI}, 2\ns_cbranch_scc1 {W2L}")
    srd(SPF, pW1, 7 * MB)
    e(f"s_branch {G_}")
    A.label(W2L)
    srd(SPF, pW2, 7 * MB)
    A.label(G_)
    for i in range(n): pf_chunk()
    A.label(X)
CODE_MAX = 96 * KB
def code_warm(by_c=False):
    if not CWARM or (CWC in (1, 3) and not by_c): return
    L = A.newlabel("pc")
    e(f"s_getpc_b64 s[42:43]")
    A.label(L)
    e(f"s_sub_u32 s42, s42, {L}-{KN}\ns_subb_u32 s43, s43, 0\ns_lshl_b32 s{sC0+1}, s{sR}, 2\ns_add_u32 s{sC0+1}, s{sC0+1}, s{sW}\ns_lshl_b32 s{sC0+1}, s{sC0+1}, 6")
    for i in range(NCODE): e(f"s_load_dword s{sC0}, s[42:43], s{sC0+1} offset:{i*8192}")
def tlb_warm():
    if not TLBW: return
    e(f"s_lshl_b32 s{sC0+1}, s{sR}, 2\ns_add_u32 s{sC0+1}, s{sC0+1}, s{sW}\ns_lshl_b32 s{sC0+1}, s{sC0+1}, {TLBG}")
    n = max(1, (96 * MB >> TLBG) // 128)
    for i in range(n):
        e(f"s_add_u32 s42, s{sC0+1}, {(i*128) << TLBG}\ns_min_u32 s42, s42, {96*MB - 64}\ns_load_dword s{sC0}, {s(pWS,2)}, s42")
    for ptr, nb in ((pW1, 7 * MB), (pW2, 7 * MB), (pWO, 2 * MB), (sTOUT, 4 * MB)):
        e(f"s_min_u32 s42, s{sC0+1}, {nb - 64}\ns_load_dword s{sC0}, {s(ptr,2)}, s42")
def pf_until_ep(k):
    L, X = A.newlabel("pu"), A.newlabel("pux")
    A.label(L)
    e(f"ds_read_b32 v{vFV}, v{vFR} offset:{OFF_EP}\ns_waitcnt lgkmcnt(0)\nv_cmp_gt_u32 vcc, {k}, v{vFV}\ns_cbranch_vccz {X}")
    e(f"s_sleep 1\ns_add_u32 s3, s3, 1\ns_cmp_lt_u32 s3, {LSPIN_MAX}\ns_cbranch_scc1 {L}")
    A.label(X)
def pf_finish():
    if not SPFON: return
    L = A.newlabel("pfin")
    A.label(L)
    pf_step(2)
    e(f"s_waitcnt lgkmcnt(6)\ns_cmp_lt_u32 s{sPFI}, 2\ns_cbranch_scc1 {L}\ns_cmp_lt_u32 s{sPFO}, s{sPFE}\ns_cbranch_scc1 {L}")
def pf_stamp(ST):
    if not STAMPS: return
    k_ = len(ST.names); ST.names.append("pfMB")
    e(f"s_mul_i32 s30, s{sPFI}, 1000\ns_lshr_b32 s31, s{sPFO}, 13\ns_mul_i32 s31, s31, 25\ns_lshr_b32 s31, s31, 5\ns_add_u32 s30, s30, s31\ns_add_u32 s{78+k_}, s78, s30")

class HStream:
    def __init__(self): self.items = []
    def __enter__(self):
        self.saved = A.lines; A.lines = []; return self
    def _take(self, atomic=False):
        if A.lines:
            if atomic: self.items.append(("g", list(A.lines)))
            else: self.items += [("g", [ln]) for ln in A.lines if ln.strip()]
        A.lines = []
    def at(self, k): self._take(); self.items.append(("at", k))
    def by(self, k): self._take(); self.items.append(("by", k))
    def atomic(self, f, cost=None):
        self._take(); f()
        if not A.lines: return
        self._take(True)
        if cost is not None: self.items[-1] = ("g", self.items[-1][1], cost)
    def __exit__(self, *a):
        self._take(); A.lines = self.saved
    @staticmethod
    def cost(ln):
        t = ln.strip()
        if t.startswith(("buffer_", "global_")): return VMC
        if t.startswith("ds_"): return 2
        if t.startswith("v_dot"): return DOTC
        if t.startswith(("v_exp", "v_rcp", "v_sqrt", "v_rsq")): return 2
        if t.startswith("s_") or t.endswith(":"): return 0.5
        return 1
    def emit(self, nbar, lim, npf, pf_from=0, pf_to=99, pre0=999, every=1, cw=(), more=False):
        st = {"b": 0, "used": 0}
        def bar():
            e("s_barrier")
            if st["b"] in cw: code_warm()
            if cw and cw[0] == 0 and st["b"] == 2: tlb_warm()
            if pf_from <= st["b"] < min(pf_to, nbar - 1) and st["b"] % every == every - 1: pf_step(npf + (1 if more and st["b"] % 3 != 1 else 0))
            st["b"] += 1; st["used"] = 0
        for kind, x, *oc in self.items:
            if kind == "at":
                while st["b"] <= x: bar()
            elif kind == "by":
                if DBGH: print("by", x, "at", st["b"], file=sys.stderr)
                assert st["b"] <= x, ("deadline missed", st["b"], x)
            else:
                c = oc[0] if oc else sum(self.cost(l) for l in x)
                if st["used"] > 8 and st["used"] + c > (lim if st["b"] > 0 else pre0) and not (len(x) == 1 and (x[0].strip().startswith("s_") or x[0].strip().endswith(":"))): bar()
                A.lines += x; st["used"] += c
        assert st["b"] <= nbar, st
        while st["b"] < nbar: bar()

def retry(loads, regs, nl, post=None):
    L, X = A.newlabel("rt"), A.newlabel("rtx")
    set_exec((1 << nl) - 1 if nl <= 64 else nl)
    e(f"s_mov_b32 s{sCNT}, 0")
    A.label(L)
    e("s_waitcnt vmcnt(0)")
    if post: post()
    e(f"v_max_u32 v8, v{regs[0]}, v{regs[1]}")
    for i in range(2, len(regs), 2): e(f"v_max3_u32 v8, v{regs[i]}, v{regs[i+1]}, v8")
    e(f"v_cmp_eq_u32 vcc, -1, v8\ns_cbranch_vccz {X}\ns_add_u32 s{sCNT}, s{sCNT}, 1\ns_cmp_gt_u32 s{sCNT}, {SPIN_MAX}\ns_cbranch_scc1 {X}\ns_sleep 8")
    loads()
    e(f"s_branch {L}")
    A.label(X)

def arena_prewrite(Q):
    if not PRE1: return
    e(f"s_lshl_b32 s36, s{sWN}, 14\ns_add_u32 s36, s36, s{sOWN}\nv_lshlrev_b32 v9, 4, v1")
    for i in range(4):
        e(f"s_add_u32 s37, s36, {WS_AR + i*4096}")
        for k in range(4): e(f"buffer_store_dwordx4 v[16:19], v9, {s(SWS,4)}, s37 offen offset:{k*1024} sc1")
    Q.add("pre", 16)
def helper0_phase1(ST, Q):
    RS = 16
    with HStream() as H:
        e(f"""
s_lshl_b32 s35, s{sRB}, 4
s_add_u32 s35, s35, s{sCB}
s_lshl_b32 s34, s35, 14
v_lshrrev_b32 v6, 3, v1
v_lshlrev_b32 v5, 11, v6
v_and_b32 v7, 7, v1
v_lshl_add_u32 v5, v7, 4, v5
s_getreg_b32 s39, hwreg(HW_REG_XCC_ID)
""")
        bounds = [0] + [2 * x for x in HB] + [16]
        def red8(r):
            e(f"v_add_f32_dpp v{r}, v{r}, v{r} quad_perm:[1,0,3,2] row_mask:0xf bank_mask:0xf")
            e(f"v_add_f32_dpp v{r}, v{r}, v{r} quad_perm:[2,3,0,1] row_mask:0xf bank_mask:0xf")
            e(f"v_add_f32_dpp v{r}, v{r}, v{r} row_half_mirror row_mask:0xf bank_mask:0xf")
        def dots(bt):
            Q.wait(("rs", bt))
            for i in range(4 * bounds[bt], 4 * bounds[bt + 1]):
                e(f"v_dot2_f32_bf16 v{80+(i&1)}, v{RS+i}, v84, v{80+(i&1)}\nv_dot2_f32_bf16 v{82+(i&1)}, v{RS+i}, v{RS+i}, v{82+(i&1)}")
        e("v_mov_b32 v84, 0x3f803f80\nv_mov_b64 v[80:81], 0\nv_mov_b64 v[82:83], 0")
        for bt in range(len(bounds) - 1):
            if bt: H.at(bt - 1)
            for i in range(bounds[bt], bounds[bt + 1]): e(f"buffer_load_dwordx4 {v(RS+4*i,4)}, v5, {s(SX,4)}, s34 offen offset:{128*i}")
            Q.add(("rs", bt), bounds[bt + 1] - bounds[bt])
            if bt == 1 and not ZAT: zero_own_flags(Q)
            if bt >= LAG: dots(bt - LAG)
        nb_ = len(bounds) - 1
        for bt in range(nb_ - LAG, nb_):
            H.at(bt + LAG - 1); dots(bt)
        if ZAT > 0:
            H.at(ZAT); zero_own_flags(Q); H.at(H0AT)
        Q.wait("zero")
        e(f"s_and_b32 s39, s39, 15\ns_or_b32 s39, s39, 0x80\ns_lshl_b32 s30, s{sG}, 5\ns_add_u32 s30, s30, s{sR}")
        e(f"v_mov_b32 v8, s39\nv_mov_b32 v2, s30")
        H.by(H0AT + 1)
        e(f"s_mov_b64 exec, 1\nbuffer_store_byte v8, v2, {s(SD,4)}, 0 offen sc1\ns_mov_b64 exec, -1")
        e("v_add_f32 v10, v80, v81\nv_add_f32 v11, v82, v83")
        red8(10)
        red8(11)
        if DOT: e(f"v_mul_f32 v12, {f32(-1/1024)}, v10\nv_fma_f32 v11, v12, v10, v11\nv_max_f32 v11, 0, v11")
        ln_finish(10, 11, 1024)
        e("v_mul_f32 v10, v10, v11\nv_sub_f32 v10, 0, v10")
        e(f"v_lshrrev_b32 v7, 3, v1\nv_lshlrev_b32 v7, 2, v7\ns_lshl_b32 s32, s35, 5\ns_add_u32 s32, s32, {WS_RA}\ns_add_u32 s33, s32, {WS_RB-WS_RA}")
        set_exec(0x0101010101010101)
        e(f"buffer_store_dword v11, v7, {s(SWS,4)}, s32 offen sc1\nbuffer_store_dword v10, v7, {s(SWS,4)}, s33 offen sc1\ns_mov_b64 exec, -1")
        ST("st_pub")
        arena_prewrite(Q)
        H.by(GAT - 1); H.at(GAT - 3)
        e(f"v_lshlrev_b32 v12, 2, v1\nbuffer_load_dword v13, v12, {s(SD,4)}, 0 offen sc1")
        H.at(GAT - 1)
        def handshake():
            X = A.newlabel("hsx")
            e(f"s_waitcnt vmcnt(0)\nv_and_b32 v8, 0x80808080, v13\nv_cmp_ne_u32 vcc, 0x80808080, v8\ns_cbranch_vccz {X}")
            poll("0", 64, srd_=SD, mask="0x80808080", t=8, sleep=16)
            e(f"buffer_load_dword v13, v12, {s(SD,4)}, 0 offen sc1\ns_waitcnt vmcnt(0)")
            A.label(X)
            e(f"s_mul_i32 s31, s39, 0x01010101\nv_cmp_ne_u32 vcc, s31, v13\ns_lshl_b32 s30, s{sG}, 3\ns_lshr_b64 s[32:33], vcc, s30\ns_and_b32 s30, s32, 0xff")
            if FORCE >= 0: e(f"s_mov_b32 s30, {FORCE}")
            e(f"v_mov_b32 v8, s30\nv_mov_b32 v7, {L_HD}\ns_mov_b64 exec, 1\nds_write_b32 v7, v8\ns_mov_b64 exec, -1")
        H.atomic(handshake)
        H.at(GAT)
        e(f"v_and_b32 v6, 31, v1\nv_lshlrev_b32 v6, 4, v6\nv_lshrrev_b32 v7, 5, v1\nv_lshl_add_u32 v6, v7, 13, v6\ns_lshl_b32 s34, s{sRB}, 9\ns_add_u32 s34, s34, {WS_RA}")
        ld = lambda: e(f"buffer_load_dwordx4 v[16:19], v6, {s(SWS,4)}, s34 offen sc1")
        ld()
        H.at(GAT + 2)
        def fin():
            retry(ld, [16, 17, 18, 19], 64)
            e(f"v_lshlrev_b32 v6, 4, v1\nv_add_u32 v6, {L_RA}, v6\nds_write_b128 v6, v[16:19]\ns_waitcnt lgkmcnt(0)")
        H.atomic(fin)
        ST("st_in")
        H.by(16)
    H.emit(17, HLIM, NPF, pf_from=PFD0, pf_to=GAT + 1, pre0=PRE0, cw=(0, 14) if CWARM > 1 else (0,))
    e("s_waitcnt lgkmcnt(0)")
    pf_stamp(ST)

def helper1_phase1(ST, Q):
    CSR = 80
    with HStream() as H:
        e(f"""
s_lshl_b32 s35, s{sRB}, 4
s_add_u32 s35, s35, s{sCB}
v_bfe_u32 v6, v1, 3, 2
v_lshrrev_b32 v7, 5, v1
v_lshl_add_u32 v6, v7, 6, v6
v_and_b32 v7, 7, v1
v_mul_u32_u24 v6, 6144, v6
v_lshl_add_u32 v6, v7, 4, v6
s_mul_i32 s32, s{sRB}, {4*6144}
s_lshl_b32 s33, s{sCB}, 7
s_add_u32 s32, s32, s33
""")
        bounds = [0] + HB + [8]
        e("v_mov_b32 v10, 0x00003f80\nv_mov_b32 v11, 0x3f800000")
        for r in range(U0, U0 + 24, 2): e(f"v_mov_b64 {v(r,2)}, 0")
        def dots(bt):
            Q.wait(("cs", bt))
            for i in range(bounds[bt], bounds[bt + 1]):
                for j in range(3):
                    for d in range(4):
                        u, r = U0 + 8 * j + 2 * d, CSR + 4 * (8 * j + i) + d
                        e(f"v_dot2_f32_bf16 v{u}, v{r}, v10, v{u}\nv_dot2_f32_bf16 v{u+1}, v{r}, v11, v{u+1}")
        nb_ = len(bounds) - 1
        for bt in range(nb_):
            if bt: H.at(bt - 1)
            for i in range(bounds[bt], bounds[bt + 1]):
                for j in range(3):
                    e(f"s_add_u32 s31, s32, {2048*j + 128*6144*i}\nbuffer_load_dwordx4 {v(CSR+4*(8*j+i),4)}, v6, {s(SB,4)}, s31 offen {'nt' if i < NTK else ''}")
            Q.add(("cs", bt), 3 * (bounds[bt + 1] - bounds[bt]))
            if bt >= LAG: dots(bt - LAG)
        for bt in range(nb_ - LAG, nb_):
            H.at(bt + LAG - 1); dots(bt)
        e(f"s_mul_i32 s33, s35, 768\ns_add_u32 s33, s33, {WS_CS1}")
        for j in range(3): colsum_block(j, 0, 0, (8,))
        H.at(H0AT + 1)
        for j in range(3): colsum_store(Q, j, 33, 8, "st1")
        ST("st_pub")
        arena_prewrite(Q)
        H.by(GAT - 1); H.at(GAT)
        e(f"s_mul_i32 s33, s{sCB}, 768\ns_add_u32 s33, s33, {WS_CS1}\nv_lshlrev_b32 v6, 4, v1")
        def ld():
            for k in range(16): e(f"s_add_u32 s31, s33, {k*16*768}\nbuffer_load_dwordx4 {v(16+4*k,4)}, v6, {s(SWS,4)}, s31 offen sc1")
        def ld0():
            set_exec((1 << 48) - 1); ld(); e("s_mov_b64 exec, -1")
        H.atomic(ld0)
        H.at(GAT + 2)
        def fin():
            retry(ld, list(range(16, 80)), 48)
            for k in range(1, 16): e(f"v_pk_add_f32 v[16:17], v[16:17], {v(16+4*k,2)}\nv_pk_add_f32 v[18:19], v[18:19], {v(18+4*k,2)}")
            e(f"v_add_u32 v6, {L_CS}, v6\nds_write_b128 v6, v[16:19]\ns_mov_b64 exec, -1\ns_waitcnt lgkmcnt(0)")
        H.atomic(fin)
        ST("st_in")
        H.by(16)
    H.emit(17, HLIM, NPF, pf_from=PFD0, pf_to=GAT + 1, pre0=PRE0, cw=(0, 14) if CWARM > 1 else (0,))
    e("s_waitcnt lgkmcnt(0)")
    pf_stamp(ST)

def red16(regs, tmps):
    for k in (4, 8):
        for r in regs: e(f"v_add_f32_dpp v{r}, v{r}, v{r} row_ror:{k} row_mask:0xf bank_mask:0xf")
    xg_multi("v_add_f32", regs, tmps)
def helper4_two(ST, Q):
    q0 = list(Q.q); n0 = list(ST.names)
    e(f"s_cmp_lg_u32 s{sWN}, 0\ns_cbranch_scc1 L_h4b")
    with HStream() as H:
        e(f"s_lshl_b32 s36, s{sRB}, 11\ns_add_u32 s36, s36, {WS_F3}\ns_lshr_b32 s37, s{sR}, 1\ns_min_u32 s37, s37, 13\ns_lshl_b32 s37, s37, 11\ns_add_u32 s37, s37, {WS_F3}")
        H.at(0)
        Q.wait(2)
        e("v_lshrrev_b32 v240, 2, v1\nv_lshlrev_b32 v240, 7, v240\nv_and_b32 v241, 3, v1\nv_lshl_add_u32 v240, v241, 2, v240\nv_min_u32 v241, 47, v1\nv_lshlrev_b32 v241, 7, v241")
        e(f"s_lshl_b32 s34, s{sRB}, 1\ns_lshr_b32 s30, s{sCB}, 3\ns_add_u32 s34, s34, s30\ns_lshl_b32 s34, s34, 14\ns_and_b32 s30, s{sCB}, 7\ns_lshl_b32 s30, s30, 6\ns_add_u32 s34, s34, s30\ns_add_u32 s34, s34, {WS_STAT}\ns_add_u32 s35, s34, 8192")
        e("v_lshrrev_b32 v11, 2, v1\nv_lshlrev_b32 v11, 9, v11\nv_and_b32 v12, 3, v1\nv_lshlrev_b32 v12, 4, v12\nv_add_u32 v11, v11, v12")
        H.at(CHKAT)
        e(f"buffer_load_dword v232, v240, {s(SWS,4)}, s36 offen sc1")
        Q.add("chk")
        H.at(CHKAT + 2)
        def chk():
            X = A.newlabel("ckx")
            Q.wait("chk")
            e(f"v_and_b32 v232, 2, v232\nv_cmp_ne_u32 vcc, 2, v232\ns_cbranch_vccz {X}")
            poll("s36", 64, voff=240, mask=2, t=8, sleep=8)
            A.label(X)
        H.atomic(chk, 6)
        e(f"buffer_load_dwordx4 v[16:19], v11, {s(SWS,4)}, s34 offen sc1\nbuffer_load_dwordx4 v[20:23], v11, {s(SWS,4)}, s35 offen sc1")
        e(f"buffer_load_dwordx4 v[234:237], v241, {s(SWS,4)}, s37 offen sc1")
        H.at(CHKAT + 4)
        e("s_waitcnt vmcnt(1)\nv_pk_add_f32 v[24:25], v[16:17], v[20:21]\nv_pk_add_f32 v[26:27], v[18:19], v[22:23]")
        red16([24, 26], [28, 29])
        for h in range(2):
            e(f"v_mul_f32 v30, {f32(1/32)}, v{24+2*h}\nv_sub_f32 v31, v{16+2*h}, v30\nv_sub_f32 v32, v{20+2*h}, v30\nv_mul_f32 v31, v31, v31\nv_fma_f32 v31, v32, v32, v31")
            e(f"v_mov_b32 v30, {f32(1/32)}\nv_fma_f32 v{25+2*h}, v31, v30, v{25+2*h}")
        red16([25, 27], [28, 29])
        for h in range(2):
            a_, b_ = 24 + 2 * h, 25 + 2 * h
            ln_finish(a_, b_, 1024)
            e(f"v_mul_f32 v{b_}, {f32(-LOG2E)}, v{b_}\nv_mul_f32 v{a_}, v{a_}, v{b_}\nv_sub_f32 v{a_}, 0, v{a_}")
        e(f"s_lshl_b32 s34, s{sRB}, 10\ns_add_u32 s34, s34, {WS_K2}\ns_lshl_b32 s30, s{sCB}, 6\ns_add_u32 s35, s34, s30")
        e(f"s_mov_b64 exec, 0xf\nbuffer_store_dwordx4 v[24:27], v12, {s(SWS,4)}, s35 offen sc1\ns_mov_b64 exec, -1")
        def chk2():
            X = A.newlabel("ckx")
            e(f"s_waitcnt vmcnt(1)\nv_and_b32 v234, v234, v235\nv_and_b32 v236, v236, v237\nv_and_b32 v234, v234, v236\nv_and_b32 v234, 1, v234\nv_cmp_ne_u32 vcc, 1, v234\ns_cbranch_vccz {X}")
            for d in range(3):
                e(f"s_add_u32 s38, s37, {2048*d}"); poll("s38", 64, voff=240, mask=1, t=8, sleep=8)
            A.label(X)
        H.atomic(chk2, 8)
        e("v_lshlrev_b32 v6, 4, v1")
        H.by(G2AT + 1); H.at(G2AT)
        ld = lambda: e(f"buffer_load_dwordx4 v[16:19], v6, {s(SWS,4)}, s34 offen sc1")
        ld()
        H.at(15)
        def fin():
            retry(ld, [16, 17, 18, 19], 64)
            e(f"v_add_u32 v6, {L_RA}, v6\nds_write_b128 v6, v[16:19]\ns_waitcnt lgkmcnt(0)")
        H.atomic(fin, 10)
        ST("st2_in")
        H.by(16)
    H.emit(17, HLIM4, NPF, more=True, pf_to=14)
    e("s_branch L_h4x")
    A.label("L_h4b")
    Q.q = list(q0); ST.names = list(n0)
    with HStream() as H:
        H.at(0)
        Q.wait(2)
        e(f"s_mul_i32 s34, s{sCB}, 896\ns_mul_i32 s30, s{sRB}, 56\ns_add_u32 s34, s34, s30\ns_add_u32 s34, s34, {WS_CS2}\ns_add_u32 s35, s34, {16*3584*4}")
        e(f"v_lshrrev_b32 v11, 2, v1\nv_mul_u32_u24 v11, {3584*4}, v11\nv_and_b32 v12, 3, v1\nv_lshlrev_b32 v12, 4, v12\nv_add_u32 v11, v11, v12")
        e("v_and_b32 v13, 3, v1\nv_cmp_eq_u32 s[38:39], 3, v13")
        H.at(CHKAT + 1)
        def ld1(): e(f"buffer_load_dwordx4 v[16:19], v11, {s(SWS,4)}, s34 offen sc1\nbuffer_load_dwordx4 v[20:23], v11, {s(SWS,4)}, s35 offen sc1")
        ld1()
        H.at(CHKAT + 3)
        def fix():
            for r in (18, 19, 22, 23): e(f"v_cndmask_b32_e64 v{r}, v{r}, 0, s[38:39]")
        H.atomic(lambda: retry(ld1, list(range(16, 24)), 64, post=fix), 14)
        e("v_pk_add_f32 v[16:17], v[16:17], v[20:21]\nv_pk_add_f32 v[18:19], v[18:19], v[22:23]")
        red16([16, 17, 18, 19], [28, 29, 30, 31])
        e(f"s_lshl_b32 s34, s{sCB}, 10\ns_add_u32 s34, s34, {WS_CF}\ns_lshl_b32 s30, s{sRB}, 6\ns_add_u32 s35, s34, s30")
        e(f"s_mov_b64 exec, 0xf\nbuffer_store_dwordx4 v[16:19], v12, {s(SWS,4)}, s35 offen sc1\ns_mov_b64 exec, -1")
        e(f"v_lshlrev_b32 v6, 4, v1\nv_lshrrev_b32 v7, 2, v1\nv_mul_u32_u24 v7, 56, v7\nv_add_u32 v7, v7, v12\nv_add_u32 v7, {L_CS}, v7")
        H.by(G2AT + 1); H.at(G2AT)
        ld = lambda: e(f"buffer_load_dwordx4 v[16:19], v6, {s(SWS,4)}, s34 offen sc1")
        ld()
        H.at(15)
        def fin():
            retry(ld, [16, 17, 18, 19], 64)
            e("ds_write_b64 v7, v[16:17]\ns_andn2_b64 exec, exec, s[38:39]\nds_write_b64 v7, v[18:19] offset:8\ns_mov_b64 exec, -1\ns_waitcnt lgkmcnt(0)")
        H.atomic(fin, 10)
        ST("st2_in")
        H.by(16)
    H.emit(17, HLIM4, NPF, more=True, pf_to=14)
    A.label("L_h4x")
    pf_stamp(ST)
    pf_finish()
    if WBL2 > 1:
        L = A.newlabel("nowb")
        e(f"s_or_b32 s30, s{sR}, s{sWN}\ns_cmp_lg_u32 s30, 0\ns_cbranch_scc1 {L}")
        for i in range(WBL2): e("s_barrier")
        e("buffer_wbl2 sc1")
        A.label(L)

def helper_rest(ST, Q):
    CSR = 16
    if SLDS:
        e(f"v_lshlrev_b32 v6, 4, v1\nv_add_u32 v6, s{sM0B}, v6\nv_add_u32 v6, {64*KB + 7*8192}, v6")
        for p in range(2):
            for i in range(7):
                dst = CSR + 16 * (i // 2) + 4 * (2 * p + i % 2) if i < 6 else CSR + 48 + 4 * p
                e(f"ds_read_b128 {v(dst,4)}, v6 offset:{p*16384 + (i//4)*8192 + (i%4)*1024}")
        e("s_waitcnt lgkmcnt(0)")
        for st in range(2, 6): G3.issue_b(Q, st)
        roles_84()
        e(f"s_lshl_b32 s35, s{sRB}, 1\ns_add_u32 s35, s35, s{sWN}\ns_mul_i32 s33, s35, {3584*4}\ns_mul_i32 s34, s{sCB}, 896\ns_add_u32 s33, s33, s34\ns_add_u32 s33, s33, {WS_CS2}")
        for j in range(4): colsum_block(j, CSR + 16 * j, 4 if j < 3 else 2, (8,) if j < 3 else (4, 8))
        with HStream() as H:
            H.at(1)
            Q.wait_all()
            H.by(2); H.at(3)
            for j in range(4): colsum_store(Q, j, 33, 8 if j < 3 else 4, "st2")
            b_src_w1()
            G4.p_setup_b(sWN)
        H.emit(17, 30, 1, every=3, pf_to=14)
        pf_stamp(ST)
        pf_until_ep(2)
        for st in (1, 2): G4.issue_b(Q, st)
    else:
        with HStream() as H:
            if B3LATE: H.at(0)
            for st in range(6, G3.NSB): G3.issue_b(Q, st)
            H.at(5)
            Q.wait_all()
            H.by(6)
            roles_84()
            b_src_w1()
            G4.p_setup_b(sWN)
            e(f"""
v_lshrrev_b32 v6, 3, v1
v_mul_u32_u24 v6, 7168, v6
v_and_b32 v7, 7, v1
v_lshl_add_u32 v6, v7, 4, v6
v_lshrrev_b32 v5, 2, v1
v_mul_u32_u24 v5, 7168, v5
v_and_b32 v7, 3, v1
v_lshl_add_u32 v5, v7, 4, v5
s_lshl_b32 s35, s{sRB}, 1
s_add_u32 s35, s35, s{sWN}
s_mul_i32 s32, s35, {32*7168}
s_mul_i32 s33, s{sCB}, 448
s_add_u32 s32, s32, s33
""")
            e(f"s_mul_i32 s33, s35, {3584*4}\ns_mul_i32 s34, s{sCB}, 896\ns_add_u32 s33, s33, s34\ns_add_u32 s33, s33, {WS_CS2}")
            if WARM4:
                e(f"s_and_b32 s36, s35, 15\ns_mul_i32 s36, s36, {4*7168}\ns_mul_i32 s37, s{sCB}, 448\ns_and_b32 s37, s37, {hex(0xffffff80)}\ns_add_u32 s36, s36, s37")
                e(f"v_bfe_u32 v8, v1, 2, 2\nv_mul_u32_u24 v8, 7168, v8\nv_and_b32 v9, 3, v1\nv_lshl_add_u32 v8, v9, 7, v8\ns_mov_b32 s37, {(G4.korder[1]-G4.korder[0])*64*7168}\nv_mul_lo_u32 v9, v3, s37\nv_add_u32 v8, v8, v9")
                assert G4.korder[0] == 0 and G4.korder[2] == 2 * G4.korder[1]
                H.at(CS2AT - 1)
                e(f"buffer_load_dword v244, v8, {s(SB,4)}, s36 offen"); Q.add("warm")
            H.at(CS2AT)
            for j in range(3):
                for i in range(4):
                    e(f"s_add_u32 s31, s32, {8*7168*i}\nbuffer_load_dwordx4 {v(CSR+4*(4*j+i),4)}, v6, {s(SB,4)}, s31 offen offset:{128*j}")
                Q.add(("w", j), 4)
            for i in range(2):
                e(f"s_add_u32 s31, s32, {16*7168*i}\nbuffer_load_dwordx4 {v(CSR+48+4*i,4)}, v5, {s(SB,4)}, s31 offen offset:384")
            Q.add(("w", 3), 2)
            if BTAIL:
                H.at(BT0); G4.issue_b(Q, 0)
                H.at(13); G4.issue_b(Q, 1)
        H.emit(17, 40, 1, every=3, pf_to=CS2AT, cw=(14,) if CWARM > 1 else ())
        pf_stamp(ST)
        for j in range(4):
            Q.wait(("w", j))
            colsum_block(j, CSR + 16 * j, 4 if j < 3 else 2, (8,) if j < 3 else (4, 8))
        pf_until_ep(2)
        if BSEEN:
            for j in range(4): colsum_store(Q, j, 33, 8 if j < 3 else 4, "st2")
            if BSEEN == 2: G4.issue_b(Q, 1)
            e(f"v_mov_b32 v12, {L_FULL}")
            lds_wait(12, 1, vFV, sleep=1)
            if BSEEN == 1: G4.issue_b(Q, 1)
        else:
            if not BLATE:
                for st in ((2,) if BTAIL else (1, 2)): G4.issue_b(Q, st)
            for j in range(4): colsum_store(Q, j, 33, 8 if j < 3 else 4, "st2")
    ST("cs2_pub")
    if BTAIL: Q.wait(0)
    if TWO: return helper4_two(ST, Q)
    with HStream() as H:
        e(f"s_lshl_b32 s36, s{sRB}, 11\ns_add_u32 s36, s36, {WS_F3}\ns_lshr_b32 s37, s{sR}, 1\ns_min_u32 s37, s37, 13\ns_lshl_b32 s37, s37, 11\ns_add_u32 s37, s37, {WS_F3}")
        H.at(0)
        if BSEEN:
            H.atomic(lambda: G4.issue_b(Q, 2), 0)
            Q.wait(1)
            H.at(1)
        Q.wait(2)
        e("v_lshrrev_b32 v240, 2, v1\nv_lshlrev_b32 v240, 7, v240\nv_and_b32 v241, 3, v1\nv_lshl_add_u32 v240, v241, 2, v240\nv_min_u32 v241, 47, v1\nv_lshlrev_b32 v241, 7, v241")
        H.at(CHKAT)
        e(f"buffer_load_dword v232, v240, {s(SWS,4)}, s36 offen sc1\nbuffer_load_dwordx4 v[234:237], v241, {s(SWS,4)}, s37 offen sc1")
        Q.add("chk", 2)
        H.at(CHKAT + 2)
        def chk():
            X = A.newlabel("ckx")
            Q.wait("chk")
            e(f"v_lshrrev_b32 v232, 1, v232\nv_and_b32 v232, v232, v236\nv_and_b32 v232, v232, v237\nv_and_b32 v234, v234, v235\nv_and_b32 v232, v232, v234\nv_and_b32 v232, 1, v232\nv_cmp_ne_u32 vcc, 1, v232\ns_cbranch_vccz {X}")
            poll("s36", 64, voff=240, mask=2, t=8, sleep=8)
            for d in range(3):
                e(f"s_add_u32 s38, s37, {2048*d}"); poll("s38", 64, voff=240, mask=1, t=8, sleep=8)
            A.label(X)
        H.atomic(chk, 10)
        e(f"v_lshlrev_b32 v11, 4, v1\ns_lshl_b32 s36, s35, 14\ns_add_u32 s36, s36, {WS_STAT}\ns_add_u32 s37, s36, 4096\ns_add_u32 s38, s36, 8192\ns_add_u32 s39, s36, 12288")
        def ldst():
            for i in range(16): e(f"buffer_load_dwordx4 {v(96+4*i,4)}, v11, {s(SWS,4)}, s{36+i//4} offen offset:{1024*(i%4)} sc1")
        if not GB: ldst()
        Q.add("stat", 16)
        e(f"s_mul_i32 s33, s{sCB}, 896\ns_mul_i32 s34, s{sWN}, 448\ns_add_u32 s33, s33, s34\ns_add_u32 s33, s33, {WS_CS2}")
        e(f"v_and_b32 v7, 31, v1\nv_lshlrev_b32 v7, 4, v7\nv_lshrrev_b32 v6, 5, v1\nv_mul_u32_u24 v6, {3584*4}, v6\nv_add_u32 v6, v6, v7")
        M28 = ((1 << 28) - 1) | (((1 << 28) - 1) << 32)
        def ld(ks=range(16)):
            for k in ks: e(f"s_add_u32 s31, s33, {k*2*3584*4}\nbuffer_load_dwordx4 {v(16+4*k,4)}, v6, {s(SWS,4)}, s31 offen sc1")
        if GB:
            H.at(GB)
            def burst():
                ldst(); set_exec(M28); ld(); e("s_mov_b64 exec, -1")
            H.atomic(burst, 0)
            H.at(GB + 1)
        else:
            for c in range(4):
                def ldc(c=c):
                    set_exec(M28); ld(range(4 * c, 4 * c + 4)); e("s_mov_b64 exec, -1")
                H.atomic(ldc, 4 * VMC)
        Q.add("cs", 16)
        Q.wait("stat")
        for h in range(2):
            e(f"v_pk_add_f32 {v(160+2*h,2)}, {v(96+2*h,2)}, {v(100+2*h,2)}")
            for i in range(2, 16): e(f"v_pk_add_f32 {v(160+2*h,2)}, {v(160+2*h,2)}, {v(96+4*i+2*h,2)}")
        for h in range(2): e(f"v_mov_b32 v{164+h}, v{160+2*h}")
        for h in range(2): e(f"v_permlane32_swap_b32 v{160+2*h}, v{164+h}")
        for h in range(2): e(f"v_add_f32 v{160+2*h}, v{160+2*h}, v{164+h}\nv_mul_f32 v{166+h}, {f32(1/32)}, v{160+2*h}\nv_mov_b32 v{168+h}, 0")
        for i in range(16):
            for h in range(2):
                r = 96 + 4 * i + 2 * h
                e(f"v_sub_f32 v{r}, v{r}, v{166+h}\nv_fma_f32 v{168+h}, v{r}, v{r}, v{168+h}")
        e(f"v_mov_b32 v13, {f32(1/32)}")
        for h in range(2): e(f"v_fma_f32 v{161+2*h}, v{168+h}, v13, v{161+2*h}\nv_mov_b32 v{164+h}, v{161+2*h}")
        for h in range(2): e(f"v_permlane32_swap_b32 v{161+2*h}, v{164+h}")
        for h in range(2):
            a_, b_ = 160 + 2 * h, 161 + 2 * h
            e(f"v_add_f32 v{b_}, v{b_}, v{164+h}")
            ln_finish(a_, b_, 1024)
            e(f"v_mul_f32 v{b_}, {f32(-LOG2E)}, v{b_}\nv_mul_f32 v{a_}, v{a_}, v{b_}\nv_sub_f32 v{a_}, 0, v{a_}")
        e(f"s_lshl_b32 s30, s{sWN}, 9\ns_add_u32 s30, s30, {L_RA}\nv_add_u32 v13, s30, v7\nds_write_b128 v13, v[160:163]")
        def fin():
            retry(ld, list(range(16, 80)), M28)
            e("s_mov_b64 exec, -1")
        H.atomic(fin, 36)
        for k in range(1, 16): e(f"v_pk_add_f32 v[16:17], v[16:17], {v(16+4*k,2)}\nv_pk_add_f32 v[18:19], v[18:19], {v(18+4*k,2)}")
        for h in range(4): e(f"v_mov_b32 v{20+h}, v{16+h}")
        for h in range(4): e(f"v_permlane32_swap_b32 v{16+h}, v{20+h}")
        e("v_pk_add_f32 v[16:17], v[16:17], v[20:21]\nv_pk_add_f32 v[18:19], v[18:19], v[22:23]")
        e(f"s_add_u32 s34, s34, {L_CS}\nv_add_u32 v7, s34, v7"); set_exec((1 << 28) - 1)
        e("ds_write_b128 v7, v[16:19]\ns_mov_b64 exec, -1\ns_waitcnt lgkmcnt(0)")
        ST("st2_in")
        H.by(16)
        if W2NT:
            H.at(W2AT)
            def w2pf():
                srd(SB, pW2, 7 * MB)
                e(f"s_lshr_b32 s36, s{sG}, 1\ns_mul_i32 s36, s36, {896*2048}\ns_lshl_b32 s37, s{sR}, 1\ns_add_u32 s37, s37, s{sWN}\ns_mul_i32 s37, s37, {56*128}\ns_add_u32 s36, s36, s37\nv_lshlrev_b32 v240, 7, v1")
                set_exec((1 << 56) - 1)
                for k in range(2): e(f"s_add_u32 s31, s36, {k*64*56*128}\nbuffer_load_dword v{244+k}, v240, {s(SB,4)}, s31 offen {W2NT.replace('none','')}")
                e("s_mov_b64 exec, -1")
            H.atomic(w2pf, 0)
    if NOH4:
        keep_ = []
        for it in H.items:
            keep_.append(it)
            if it[0] == "at" and it[1] == CHKAT: break
        if NOH4 == 2: keep_ = [it for it in H.items if not (it[0] == "g" and any("buffer_load" in l for l in it[1]) )]
        H.items = keep_
    H.emit(17, HLIM4, NPF, more=True, pf_to=14, cw=(14,) if CWARM > 1 else ())
    pf_stamp(ST)
    pf_finish()
    if RP5:
        roles_w2(); b_src_w2(); G5.p_setup_b(sWN); G5.rp_addr()
        Q.q = []
        G5.rp_load(Q, RP5, 16)
        with HStream() as H:
            for i in range(RP5):
                H.at(i + 1); H.atomic(lambda: G5.rp_drain(Q, i, 16), 0)
        H.emit(RP5 + 2, 99, 0)
    if CANARY:
        roles_w2()
        Q.q = []
        with HStream() as H:
            e(f"s_lshl_b32 s33, s{sRB}, 3\ns_add_u32 s33, s33, s{sCB}\ns_mul_i32 s34, s33, {256*KB}\ns_add_u32 s34, s34, {WS_PART}\ns_lshl_b32 s30, s{sWN}, 13\ns_add_u32 s34, s34, s30")
            e(f"s_lshl_b32 s30, s{sKS}, 14\ns_add_u32 s34, s34, s30\nv_lshlrev_b32 v2, 4, v1")
            for k in range(4): e(f"v_mov_b32 v{8+k}, -1")
            e(f"s_lshl_b32 s37, s33, 6\ns_lshl_b32 s30, s{sKS}, 4\ns_add_u32 s37, s37, s30\ns_lshl_b32 s30, s{sWN}, 3\ns_add_u32 s37, s37, s30\ns_add_u32 s37, s37, {WS_F5}")
            H.at(PFILL)
            for d in range(1, 4):
                for hb in range(2):
                    e(f"s_add_u32 s31, s{sKS}, {d}\ns_and_b32 s31, s31, 3\ns_lshl_b32 s31, s31, 16\ns_add_u32 s31, s31, s34\ns_add_u32 s31, s31, {hb*4096}")
                    for b in range(4): e(f"buffer_store_dwordx4 v[8:11], v2, {s(SWS,4)}, s31 offen offset:{b*1024} sc1")
            H.by(PFILL + 7); H.at(PFILL + 8)
            e(f"s_waitcnt vmcnt(0)\nv_mov_b32 v12, 1\nv_lshlrev_b32 v13, 2, v1\ns_mov_b64 exec, 3\nbuffer_store_dword v12, v13, {s(SWS,4)}, s37 offen sc1\ns_mov_b64 exec, -1")
        H.emit(PFILL + 10, 24, 0)
    if W2NT:
        set_exec((1 << 56) - 1)
        for k in range(2, 4): e(f"s_add_u32 s31, s36, {k*64*56*128}\nbuffer_load_dword v{244+k}, v240, {s(SB,4)}, s31 offen {W2NT.replace('none','')}")
        e("s_mov_b64 exec, -1")

def producer(ST):
    Q = VmQ()
    pf_init()
    e(f"s_cmp_eq_u32 s{sW}, 2\ns_cbranch_scc1 L_h0\ns_cmp_eq_u32 s{sW}, 3\ns_cbranch_scc1 L_h1")
    SD_ = ST.fork("D"); dma_phase1(SD_, Q)
    e("s_branch L_att")
    A.label("L_h0")
    if HPRIO: e(f"s_setprio {HPRIO}")
    SH = ST.fork("H"); helper0_phase1(SH, VmQ())
    e("s_branch L_att")
    A.label("L_h1")
    if HPRIO: e(f"s_setprio {HPRIO}")
    SH = ST.fork("H"); helper1_phase1(SH, VmQ())
    while len(SH.names) < len(SD_.names): SH.names.append("-")
    while len(SD_.names) < len(SH.names): SD_.names.append("-")
    A.label("L_att")
    e(f"s_setprio {APRIO}")
    n0 = len(SD_.names)
    neighbours_and_attention(SD_, Q)
    SH.names += SD_.names[n0:]
    e(f"s_cmp_ge_u32 s{sW}, 2\ns_cbranch_scc1 L_hrest")
    dma_rest(SD_, Q)
    SD_.flush()
    e("s_endpgm")
    A.label("L_hrest")
    e(f"s_setprio {HPRIO}")
    helper_rest(SH, VmQ())
    SH.flush()

def main():
    A.begin_kernel(KN)
    if STAMPS: e(f"{STAMP_OP} {s(sST,2)}")
    e(f"""
s_cmp_ge_u32 s2, 256
s_cbranch_scc1 L_end
s_load_dwordx16 s[48:63], s[0:1], 0
s_load_dwordx2 s[64:65], s[0:1], 64
v_lshrrev_b32 v2, 6, v0
v_and_b32 v1, 63, v0
v_readfirstlane_b32 s{sWAVE}, v2
v_lshrrev_b32 v3, 4, v1
v_and_b32 v4, 15, v1
s_and_b32 s{sG}, s2, 7
s_mov_b32 s3, 0
s_lshr_b32 s{sR}, s2, 3
s_and_b32 s{sW}, s{sWAVE}, 3
s_lshr_b32 s{sWM}, s{sW}, 1
s_and_b32 s{sWN}, s{sW}, 1
""")
    roles_p1()
    e(f"s_lshl_b32 s{sOWN}, s{sCB}, 4\ns_add_u32 s{sOWN}, s{sOWN}, s{sRB}\ns_lshl_b32 s{sOWN}, s{sOWN}, 16")
    e(f"s_add_u32 s{sROT}, s{sRB}, s{sCB}\ns_and_b32 s{sROT}, s{sROT}, {15 if ROT1 else 0}")
    if CWC == 3:
        Lq = A.newlabel("ncw")
        e(f"s_cmp_ge_u32 s{sWAVE}, 4\ns_cbranch_scc1 {Lq}")
        code_warm(True)
        A.label(Lq)
    e(f"s_lshl_b32 s{sBC}, s{sCB}, 7\ns_mov_b32 s{sBR}, 0\ns_lshl_b32 s{sAR}, s{sRB}, 18")
    G1.p_setup_a(); G1.p_setup_b()
    sync_regs()
    e("s_waitcnt lgkmcnt(0)")
    if STAMPS: e(f"s_mov_b32 s78, s{sST}\ns_mov_b32 s0, 0\ns_mov_b32 s1, 0")
    srd(SX, pX, 4 * MB); srd(SB, pWQKV, 6 * MB)
    if WSOFF: e(f"s_add_u32 s{pWS}, s{pWS}, {WSOFF*MB}\ns_addc_u32 s{pWS+1}, s{pWS+1}, 0")
    srd(SWS, pWS, WS_BYTES); srd(SD, pDBG, 256)
    if JIT: jitter()
    e(f"s_cmp_lt_u32 s{sWAVE}, 4\ns_cbranch_scc1 L_cons")
    producer(Stamper("P"))
    A.label("L_end")
    e("s_endpgm")
    A.label("L_cons")
    if CPRIO: e(f"s_setprio {CPRIO}")
    consumer(Stamper("C"))
    A.lines.append(f".fill ({NCODE*8192} - (. - {KN})) / 4, 4, 0xbf810000")
    A.end_kernel(KN, 256, 102)
    A.lines = hazard.fix(A.lines)
    hdr = open("sequential_preLN__sliding_block__dense_activation_silu__prompt.s.ref").read().split("; Override launch")[0]
    hdr += f"; @launch grid=(256,1,1) block=(512,1,1) lds={LDS_BYTES}\n"
    for k, nm in STAMP_NAMES.items(): hdr += f"; stamps {k}: {' '.join(nm)}\n"
    sys.stdout.write(A.text(hdr))
main()
```

```python
import sys, struct
from asmlib import Asm
import hazard

ARGS = sys.argv[1:]
def opt(name, default):
    for a in ARGS:
        if a.startswith("--" + name + "="): return type(default)(a.split("=", 1)[1])
    return default
STAMPS = "--stamps" in ARGS
STAMP_OP = "s_memtime" if "--cyc" in ARGS else "s_memrealtime"
DPRIO = opt("dprio", 0)
FORCE = opt("force", -1)
PSLEEP = opt("psleep", 1)
GAT = opt("gat", 13); H0AT = opt("h0at", 5)
PUBN = opt("pubn", 16)
FPOS = opt("fpos", 8)
RP4 = opt("rp4", 0); RP5 = opt("rp5", 0)
CS2AT = opt("cs2at", 11)
BT0 = opt("bt0", 11)
CHKAT = opt("chkat", 3)
HLIM4 = opt("hlim4", 42)
DOTC = opt("dotc", 1.0)
NOST4 = opt("nost4", 0)
NSB3 = opt("nsb3", 11)
PF2 = opt("pf2", 4)
XAT = opt("xat", -1)
FLATE = opt("flate", 1)
T6 = opt("t6", 0)
ZAT = opt("zat", 0)
PRE1 = opt("pre1", 0)
ROT5 = opt("rot5", 0)
ROLL = opt("roll", 0)
SLDS = opt("slds", 0)
JIT = opt("jit", 0)
WBL2 = opt("wbl2", 0)
REGRP = opt("regrp", 1)
LEAK = opt("leak", 0)
TWO = opt("two", 1)
G2AT = opt("g2at", 13)
GB = opt("gb", 0)
NOH4 = opt("noh4", 0)
LOOK0 = opt("look0", 4)
LOOKN = opt("lookn", 16)
PPIPE = opt("ppipe", 0)
PS0 = opt("ps0", 0)
PW0 = opt("pw0", 1)
PW5 = opt("pw5", 0)
PSI = opt("psi", 0)
PGAP = opt("pgap", 5)
VBAR = opt("vbar", 4)
VLATE = opt("vlate", 1)
VBARP = opt("vbarp", 1)
CHAIN = opt("chain", "none").split(",")
RSP = opt("rsp", 0.75)
LEVELS = opt("levels", 1)
LFIRST = opt("lfirst", 0)
HLT = opt("hlt", 1)
BTAIL = opt("btail", 0)
F5W = opt("f5w", 1)
CPRIO = opt("cprio", 0)
PERT = opt("pert", 0.0); PERTN = opt("pertn", 1); PERTL = opt("pertl", 1)
KFLAG = opt("kflag", 1)
SLOWPF = opt("slowpf", 1)
GATEN = {"wo": opt("g3n", 2), "w1": opt("g4n", 2)}
APK = opt("apk", 1)
AMIX = opt("amix", 0)
APRIO = opt("aprio", 0)
TAILPM = opt("tailpm", 1)
DBGOUT = opt("dbgout", -1)
CANARY = opt("canary", 0)
BSEEN = opt("bseen", 0)
PFILL = opt("pfill", 0)
ASY5 = opt("asy5", 1)
WARM4 = opt("warm4", 0)
ASYNC = opt("async", 0)
NTK = opt("ntk", 0)
TLBW = opt("tlbw", 0)
TLBG = opt("tlbg", 21)
EARLY5 = opt("early5", 1)
E5LAG = opt("e5lag", 2)
LAG = opt("lag", 1)
H1FL = opt("h1fl", "")
B1FL = opt("b1fl", "")
W2NT = opt("w2nt", "")
W2AT = opt("w2at", 14)
KORD = opt("kord", 1)
CWARM = opt("cwarm", 1)
NCODE = opt("ncode", 11)
CWC = opt("cwc", 0)
TAILD = opt("taild", 0)
TOUCH4 = opt("touch4", 0)
HB = [int(x) for x in opt("hb", "3,5,7").split(",")]
DOT = opt("dot", 1)
PFH = opt("pfh", 0)
PFD0 = opt("pfd0", 3)
BEARLY = opt("bearly", 0)
BLATE = opt("blate", 0)
B3LATE = opt("b3late", 0)
KVFL = opt("kvfl", "sc1")
FINE = opt("fine", 1)
G4AT = opt("g4at", 9)
NPF = opt("npf", 1)
PFW1 = opt("pfw1", 0)
PFBUB = opt("pfbub", 0)
DST = opt("dst", "")
DW = eval(opt("dw", "()")); DB = eval(opt("db", "(0,1,2,3,4,5,6,7,8,9,10,12,14)"))
VMC = opt("vmc", 5)
PRE0 = opt("pre0", 999)
DBGH = opt("dbgh", 0)
P1G = opt("p1g", 2)
HLIM = opt("hlim", 120)
HPRIO = opt("hprio", 0)
SENT = 0xFFFFFFFF
SKIP = opt("skip", "att_v,p_flag").split(",")
ROT1 = opt("rot1", 0); ROT3 = opt("rot3", 0); ROT4 = opt("rot4", 0)
BAR = opt("bar", 0)
NS1 = opt("ns1", 3)
ALIAS = opt("alias", 1)
TESTH1 = opt("testh1", 0)
TFL = opt("tfl", "nt")
TOUCH = opt("touch", 0)
LFL = opt("lfl", "").replace("_", " ")
PFL = opt("pfl", "sc1").replace("_", " ")
OFL = opt("ofl", "nt").replace("_", " ")
TS = opt("ts", 0)
SPFON = opt("spf", 1)
PFB = opt("pfb", 6)
MAP1 = opt("map1", 162)
WAKE = opt("wake", 0)
LCAP = opt("lcap", 10)
SPREAD = opt("spread", 0.8)
DPOS = opt("dpos", 0.25)
NOSY = opt("nosy", "")
EARLY = opt("early", 1)
DSLEEP = opt("dsleep", 1)
ONLY = opt("only", 0)
NOLOAD = opt("noload", "")
NOMFMA = opt("nomfma", 0)
KN = "sequential_preLN__sliding_block__dense_activation_silu__prompt_kernel"
SPLIT = 4

MB = 1 << 20; KB = 1024
WS_AR, WS_H, WS_AR2 = 0, 20 * MB, 24 * MB
AR_K, AR_V, AR_O = 0, 16 * KB, 32 * KB
WS_STAT = 40 * MB
WS_CS1 = 41 * MB
WS_CS2 = 41 * MB + 256 * KB
WS_RA = 41 * MB + 768 * KB
WS_RB = WS_RA + 8 * KB
WS_F1 = 41 * MB + 896 * KB
WS_F2 = WS_F1 + 4 * KB; WS_F3 = WS_F2 + 8 * KB; WS_F4 = WS_F3 + 4 * KB; WS_F5 = WS_F4 + 4 * KB
WS_F6 = WS_F5 + 8 * KB; WS_F7 = WS_F6 + 2 * KB; WS_F8 = WS_F7 + 1 * KB
WS_F5W = 42 * MB
WS_HL = 44 * MB
WS_F3L = WS_F8
WS_F2 = 42 * MB + 256 * KB; WS_F3 = WS_F2 + 32 * KB
WS_K2 = 42 * MB + 384 * KB
WS_CF = WS_K2 + 32 * KB
WS_DBG = 48 * MB
WS_PART = 52 * MB
WSOFF = opt("wsoff", 0)
WS_BYTES = (256 - WSOFF) * MB
LOG2E = 1.4426950408889634
LDS_BYTES = 160 * KB
MISC = LDS_BYTES - 6 * KB
L_RA, L_CS = MISC, MISC + 1024
L_DONE, L_FULL, L_HD, L_EP = MISC + 2048, MISC + 3072, MISC + 4096, MISC + 5120
L_MODE = L_HD + 512
vDW, vFR, vCNT, vFV = 252, 253, 254, 255
SPIN_MAX = 1 << 16
LSPIN_MAX = 1 << 22

def f32(x): return "0x%08x" % struct.unpack("<I", struct.pack("<f", x))[0]
def v(a, n=1): return f"v{a}" if n == 1 else f"v[{a}:{a+n-1}]"
def s(a, n=1): return f"s{a}" if n == 1 else f"s[{a}:{a+n-1}]"

SX, SWS, SB, SD = 4, 8, 12, 16
sWAVE, sW, sG, sR, sRB, sCB, sBC, sBH, sWM, sWN = 20, 21, 22, 23, 24, 25, 26, 27, 28, 29
pX, pWQKV, pWO, pW1, pW2, pOUT, pDBG, pWS = 48, 50, 52, 56, 58, 60, 62, 64
sMODE = 54; sT0 = 55
sAR, sBR, sM0A, sM0B, sM0H, sKS, sCNT, sNEED, sC0 = 66, 67, 68, 69, 70, 71, 72, 73, 74
sST = 76
sOWN, sROT, sAK, sBK = 60 + 40, 60 + 41, 98, 99


A = Asm()
def e(t): A.e(t)
def jitter():
    L, X = A.newlabel("jit"), A.newlabel("jitx")
    e(f"s_memtime {s(sST,2)}\ns_waitcnt lgkmcnt(0)\ns_mul_i32 s{sST}, s{sST}, 0x9e3779b1\ns_lshr_b32 s{sST+1}, s{sST}, 20\ns_and_b32 s{sST+1}, s{sST+1}, {JIT-1}\ns_cmp_lg_u32 s{sST+1}, 0\ns_cbranch_scc1 {X}\ns_lshr_b32 s{sST}, s{sST}, 29")
    A.label(L)
    e(f"s_sleep 127\ns_sub_u32 s{sST}, s{sST}, 1\ns_cmp_ge_i32 s{sST}, 0\ns_cbranch_scc1 {L}")
    A.label(X)
STAMP_NAMES = {}
class Stamper:
    def __init__(self, role): self.role = role; self.names = ["start"]
    def __call__(self, name):
        if JIT: jitter()
        if not STAMPS: return
        if name in SKIP: return
        n = len(self.names)
        assert n < 19, self.names
        e(f"{STAMP_OP} {s(sST,2)}\ns_waitcnt lgkmcnt(0)\ns_mov_b32 s{78+n}, s{sST}")
        self.names.append(name)
    def fork(self, role):
        t = Stamper(role); t.names = list(self.names); return t
    def flush(self):
        if not STAMPS: return
        self("end")
        n = len(self.names); self.names.append("nslow")
        e(f"s_mul_i32 s0, s0, {1000 if STAMP_OP == 's_memtime' else 100}\ns_add_u32 s{78+n}, s78, s0")
        STAMP_NAMES[self.role] = self.names
        e("s_waitcnt vmcnt(0)")
        for i in range(24): e(f"v_mov_b32 v{8+i}, s{78+min(i,len(self.names)-1)}")
        e(f"s_lshl_b32 s30, s2, 10\ns_lshl_b32 s31, s{sWAVE}, 7\ns_add_u32 s30, s30, s31\ns_add_u32 s30, s30, {WS_DBG}")
        e("v_mov_b32 v2, 0\ns_mov_b64 exec, 1")
        for i in range(6): e(f"buffer_store_dwordx4 {v(8+4*i,4)}, v2, {s(SWS,4)}, s30 offen offset:{16*i}")
        e("s_mov_b64 exec, -1")
        if DBGOUT >= 0 and self.role == "C":
            L = A.newlabel("nodbg")
            e(f"s_cmp_lg_u32 s2, {DBGOUT}\ns_cbranch_scc1 {L}\ns_cmp_lg_u32 s{sWAVE}, 0\ns_cbranch_scc1 {L}")
            srd(SD, pDBG, 256)
            for i in range(16): e(f"v_sub_u32 v{40+i}, v{8+2+i}, v8")
            e("s_mov_b64 exec, 1")
            for i in range(4): e(f"buffer_store_dwordx4 {v(40+4*i,4)}, v2, {s(SD,4)}, 0 offen offset:{16*i} sc1")
            e("s_mov_b64 exec, -1")
            A.label(L)

class VmQ:
    def __init__(self): self.q = []
    def add(self, tag, n=1): self.q += [tag] * n
    def has(self, tag): return tag in self.q
    def after(self, tag):
        if tag not in self.q: return 99
        return len(self.q) - 1 - max(i for i, t in enumerate(self.q) if t == tag)
    def wait(self, tag):
        if tag not in self.q: return
        n = self.after(tag)
        assert n <= 63, n
        e(f"s_waitcnt vmcnt({n})")
        self.q = self.q[len(self.q) - n:]
    def wait_all(self):
        e("s_waitcnt vmcnt(0)"); self.q = []

def set_exec(mask):
    if mask == (1 << 64) - 1: e("s_mov_b64 exec, -1")
    elif mask <= 64: e(f"s_mov_b64 exec, {mask}")
    else: e(f"s_mov_b32 exec_lo, {hex(mask & 0xffffffff)}\ns_mov_b32 exec_hi, {hex(mask >> 32)}")
def srd(d, base, nbytes):
    e(f"s_mov_b32 s{d}, s{base}\ns_and_b32 s{d+1}, s{base+1}, 0xffff\ns_mov_b32 s{d+2}, {nbytes}\ns_mov_b32 s{d+3}, 0x20000")
def xg_multi(op, regs, tmps):
    for sw in ("v_permlane16_swap_b32", "v_permlane32_swap_b32"):
        for r, t in zip(regs, tmps): e(f"v_mov_b32 v{t}, v{r}")
        for r, t in zip(regs, tmps): e(f"{sw} v{r}, v{t}")
        for r, t in zip(regs, tmps): e(f"{op} v{r}, v{r}, v{t}")
def round_bf16(r): e(f"v_cvt_pk_bf16_f32 v{r}, v{r}, v{r}\nv_and_b32 v{r}, 0xffff0000, v{r}")
def ln_finish(vsum, vm2, n):
    e(f"v_mul_f32 v{vsum}, {f32(1.0/n)}, v{vsum}"); round_bf16(vsum)
    e(f"v_mul_f32 v{vm2}, {f32(1.0/n)}, v{vm2}"); round_bf16(vm2)
    e(f"v_add_f32 v{vm2}, {f32(1e-5)}, v{vm2}"); round_bf16(vm2)
    e(f"v_sqrt_f32 v{vm2}, v{vm2}"); round_bf16(vm2)
    e(f"v_rcp_f32 v{vm2}, v{vm2}")
def pack(dst, c0, c1):
    e(f"v_cvt_pk_bf16_f32 v{dst}, v{c0}, v{c0+1}\nv_cvt_pk_bf16_f32 v{dst+1}, v{c0+2}, v{c0+3}")
    e(f"v_cvt_pk_bf16_f32 v{dst+2}, v{c1}, v{c1+1}\nv_cvt_pk_bf16_f32 v{dst+3}, v{c1+2}, v{c1+3}")
def unpack(lo, src): e(f"v_lshlrev_b32 v{lo}, 16, v{src}\nv_and_b32 v{lo+1}, 0xffff0000, v{src}")

def set_flag(soff, st="sc1", val=1, t=5):
    e(f"v_mov_b32 v{t}, 0\nv_mov_b32 v{t+1}, {val}\ns_mov_b64 exec, 1\nbuffer_store_dword v{t+1}, v{t}, {s(SWS,4)}, s{soff} offen {st}\ns_mov_b64 exec, -1")

def poll(soff, nlanes, voff=None, x2=False, srd_=SWS, mask=1, t=8, sleep=None):
    L = A.newlabel("poll"); X = A.newlabel("pollx")
    if voff is None:
        e(f"v_lshlrev_b32 v{t+2}, {3 if x2 else 2}, v1"); voff = t + 2
    if nlanes < 64: set_exec((1 << nlanes) - 1)
    e(f"s_mov_b32 s{sCNT}, 0")
    A.label(L)
    if x2: e(f"buffer_load_dwordx2 {v(t,2)}, v{voff}, {s(srd_,4)}, {soff} offen sc1")
    else: e(f"buffer_load_dword v{t}, v{voff}, {s(srd_,4)}, {soff} offen sc1")
    e(f"s_add_u32 s{sCNT}, s{sCNT}, 1\ns_cmp_gt_u32 s{sCNT}, {SPIN_MAX}\ns_waitcnt vmcnt(0)\ns_cbranch_scc1 {X}")
    if x2: e(f"v_and_b32 v{t}, v{t}, v{t+1}")
    e(f"v_and_b32 v{t}, {mask}, v{t}\nv_cmp_ne_u32 vcc, {mask}, v{t}")
    e(f"s_cbranch_vccz {X}\ns_sleep {PSLEEP if sleep is None else sleep}\ns_branch {L}")
    A.label(X)
    e("s_mov_b64 exec, -1")

sRDY = 40
def flags_refresh(Q, soff, voff, x2, shift=None):
    if flags_refresh.pending and not Q.has("look"):
        if x2: e("v_and_b32 v14, v14, v15")
        if shift: e(f"v_lshrrev_b32 v14, v{shift}, v14")
        e(f"v_and_b32 v14, 1, v14\nv_cmp_ne_u32 vcc, 1, v14\ns_and_b64 {s(sRDY,2)}, {s(sRDY,2)}, vcc")
        flags_refresh.pending = False
    if not flags_refresh.pending:
        e(f"s_cmp_eq_u64 {s(sRDY,2)}, 0\ns_cselect_b32 s30, {WS_BYTES}, s{soff}")
        e(f"buffer_load_dwordx2 v[14:15], v{voff}, {s(SWS,4)}, s30 offen sc1" if x2 else f"buffer_load_dword v14, v{voff}, {s(SWS,4)}, s30 offen sc1")
        Q.add("look"); flags_refresh.pending = True
flags_refresh.pending = False
def need_flags(bits, soff, voff, x2, shift=None, pipe=False, look=None):
    L, X = A.newlabel("nf"), A.newlabel("nfx")
    lo, hi = bits & 0xffffffff, bits >> 32
    def test():
        if lo and hi: e(f"s_and_b32 s30, s{sRDY}, {hex(lo)}\ns_and_b32 s31, s{sRDY+1}, {hex(hi)}\ns_or_b32 s30, s30, s31")
        elif lo: e(f"s_and_b32 s30, s{sRDY}, {hex(lo)}")
        else: e(f"s_and_b32 s30, s{sRDY+1}, {hex(hi)}")
    if pipe:
        R = [16, 18, 20]
        ld = lambda r: e(f"buffer_load_dwordx2 {v(r,2)}, v{voff}, {s(SWS,4)}, s{soff} offen sc1" if x2 else f"buffer_load_dword v{r}, v{voff}, {s(SWS,4)}, s{soff} offen sc1")
        ld(R[0]); e(f"s_sleep {PGAP}"); ld(R[1]); e(f"s_sleep {PGAP}")
        A.label(L)
        for i in range(3):
            ld(R[(i + 2) % 3]); e("s_waitcnt vmcnt(2)")
            r = R[i]
            if x2: e(f"v_and_b32 v8, v{r}, v{r+1}\nv_and_b32 v8, 1, v8")
            else: e(f"v_and_b32 v8, 1, v{r}")
            e(f"v_cmp_ne_u32 {s(sRDY,2)}, 1, v8")
            test()
            e(f"s_cbranch_scc0 {X}")
        e(f"s_add_u32 s{sCNT}, s{sCNT}, 1\ns_cmp_lt_u32 s{sCNT}, {SPIN_MAX}\ns_cbranch_scc1 {L}")
        A.label(X)
        return
    test()
    e(f"s_cbranch_scc0 {X}")
    A.label(L)
    if look: set_exec(look)
    if x2: e(f"buffer_load_dwordx2 v[8:9], v{voff}, {s(SWS,4)}, s{soff} offen sc1\ns_waitcnt vmcnt(0)\nv_and_b32 v8, v8, v9")
    else: e(f"buffer_load_dword v8, v{voff}, {s(SWS,4)}, s{soff} offen sc1\ns_waitcnt vmcnt(0)")
    if shift: e(f"v_lshrrev_b32 v8, v{shift}, v8")
    e(f"v_and_b32 v8, 1, v8\nv_cmp_ne_u32 {s(sRDY,2)}, 1, v8")
    if look: e(f"s_orn2_b64 {s(sRDY,2)}, {s(sRDY,2)}, exec\ns_mov_b64 exec, -1")
    e(f"s_add_u32 s{sCNT}, s{sCNT}, 1\ns_cmp_gt_u32 s{sCNT}, {SPIN_MAX}\ns_cbranch_scc1 {X}")
    test()
    if PSI and not shift: e(f"s_cbranch_scc0 {X}\ns_sleep {PSI}\ns_branch {L}")
    else: e(f"s_cbranch_scc1 {L}")
    A.label(X)

def gate_k(G, k, x2):
    n0 = GATEN[G.name]
    if k == 0 and PS0: e(f"s_sleep {PS0}")
    if k == 0 and PW0: e("s_waitcnt vmcnt(0)")
    win = lambda k0, n: sum(0xf << (4 * G.korder[j]) for j in range(k0, min(16, k0 + n)))
    if k == 0: need_flags(win(0, n0), 32, 10, x2, look=win(0, LOOK0))
    elif k >= n0: need_flags(win(k, 1), 32, 10, x2, look=win(k, LOOKN))
def spoll(srd_, soff, n16, mask, base=32):
    X = A.newlabel("spx")
    e("s_mov_b32 s31, -1")
    for k in range(2 * n16):
        e(f"s_add_u32 s30, {soff}, {32*k}\ns_buffer_load_dwordx8 {s(base,8)}, {s(srd_,4)}, s30\ns_waitcnt lgkmcnt(0)")
        for i in range(1, 4): e(f"s_and_b64 {s(base,2)}, {s(base,2)}, {s(base+2*i,2)}")
        e(f"s_and_b32 s31, s31, s{base}\ns_and_b32 s31, s31, s{base+1}")
    e(f"s_and_b32 s31, s31, {mask}\ns_cmp_eq_u32 s31, {mask}\ns_cbranch_scc1 {X}")
    poll(soff, 16 * n16, srd_=srd_, mask=mask, t=8, sleep=16)
    A.label(X)

def lds_wait(vaddr, need, vt, sleep=1, off=0):
    L = A.newlabel("lw"); X = A.newlabel("lwx")
    A.label(L)
    e(f"ds_read_b32 v{vt}, v{vaddr} offset:{off}\ns_waitcnt lgkmcnt(0)\nv_cmp_gt_u32 vcc, {need}, v{vt}\ns_cbranch_vccz {X}")
    if sleep: e(f"s_sleep {sleep}")
    e(f"s_add_u32 s3, s3, 1\ns_cmp_lt_u32 s3, {LSPIN_MAX}\ns_cbranch_scc1 {L}")
    A.label(X)
OFF_DONE, OFF_FULL, OFF_HD, OFF_EP = 0, 1024, 2048, 3072
def sync_regs():
    e(f"s_lshl_b32 s30, s{sW}, 8\ns_add_u32 s30, s30, {L_DONE}\nv_lshl_add_u32 v{vDW}, v1, 2, s30")
    e(f"v_and_b32 v{vFR}, 3, v1\nv_mul_u32_u24 v{vFR}, 260, v{vFR}\nv_add_u32 v{vFR}, {L_DONE}, v{vFR}")
def post(off, val, t=vFV):
    e(f"v_mov_b32 v{t}, {val}\nds_write_b32 v{vDW}, v{t} offset:{off}")
def wait_rows(off, need, sleep=1): lds_wait(vFR, need, vFV, sleep=sleep, off=off)

class Gemm:
    PA, PB, PH = 232, 236, 240
    def __init__(self, name, base, TM, TN, NK, NS, KBsrc, ldb, kperm, araw=False, NSB=None, bslot=None, RP=0, alay="rt"):
        self.alay = "raw" if araw else alay
        self.name, self.base, self.TM, self.TN, self.NK, self.NS = name, base, TM, TN, NK, NS
        self.KB, self.ldb, self.kperm, self.araw, self.RP = KBsrc, ldb, kperm, araw, RP
        self.NSB = NSB or NS
        self.MT, self.NT = TM // 32, TN // 32
        self.nfull, self.half = TN // 64, (TN % 64) != 0
        self.a_stage = TM * 128
        b0 = NS * self.a_stage
        self.b0 = b0
        self.b_base = [b0 + j * self.NSB * 8192 for j in range(self.nfull)]
        self.h_base = b0 + self.nfull * self.NSB * 8192
        self.b_sp, self.h_sp, self.b_bs = 8192, 4096, self.NSB * 8192
        if name == "w1" and BTAIL:
            self.b_base = [64 * KB + j * 8192 for j in range(3)]; self.h_base = 64 * KB + 3 * 8192
            self.b_sp = self.h_sp = 28 * KB; self.b_bs = 8192
        self.bslot = bslot or (lambda step: step % self.NSB)
        assert self.h_base + (self.NSB * 4096 if self.half else 0) <= MISC
        MT, NT = self.MT, self.NT
        self.FA = [8, 8 + 4 * MT + 4 * NT]
        self.FB = [self.FA[0] + 4 * MT, self.FA[1] + 4 * MT]
        nxt = self.FA[1] + 4 * MT + 4 * NT
        self.chain = name in CHAIN
        if self.chain:
            self.RA = [8, 8 + 8 * MT]; self.WB = 8 + 16 * MT
            nxt = self.WB + 24
        self.VA = nxt; nxt += 8 if self.alay == "bm" else 2
        self.VB = nxt; nxt += NT
        self.bhi = self.NSB * 8192 > 65536
        self.VB2 = nxt
        if self.bhi: nxt += NT
        nxt = (nxt + 3) // 4 * 4
        self.ACC = nxt; nxt += MT * NT * 4
        self.VX = nxt
        assert nxt <= vDW
        self.RTW = TM // 32
    def acc(self, mt, nt): return self.ACC + (nt * self.MT + mt) * 4
    def swapped(self, nt): return True
    def blk_delta(self, j): return 128 * j

    def c_setup(self):
        MT = self.MT
        if self.araw:
            e(f"""
s_lshl_b32 s30, s{sWM}, 13
v_lshl_add_u32 v5, v4, 7, s30
v_lshrrev_b32 v6, 1, v4
v_xor_b32 v6, v6, v3
v_lshl_add_u32 v{self.VA}, v6, 4, v5
v_xor_b32 v6, 4, v6
v_lshl_add_u32 v{self.VA+1}, v6, 4, v5
""")
        elif self.alay == "bm":
            for p in range(4):
                e(f"s_add_u32 s30, s{sKS}, {p}\ns_and_b32 s30, s30, 3\ns_lshl_b32 s30, s30, 11\ns_lshl_b32 s31, s{sWM}, 14\ns_add_u32 s30, s30, s31")
                e(f"v_lshl_add_u32 v{self.VA+p}, v1, 4, s30\nv_add_u32 v{self.VA+4+p}, 0x10000, v{self.VA+p}")
        else:
            e(f"s_mul_i32 s30, s{sWM}, {MT*2048}\nv_lshl_add_u32 v{self.VA}, v1, 4, s30\nv_add_u32 v{self.VA+1}, 0x10000, v{self.VA}")
        e("v_bfe_u32 v5, v1, 2, 2\nv_and_b32 v6, 3, v1")
        if self.kperm: e("v_lshl_add_u32 v7, v3, 2, v5\nv_bfe_u32 v2, v7, 1, 2")
        else: e("v_lshl_add_u32 v7, v3, 3, v5\nv_lshrrev_b32 v2, 1, v5\nv_and_b32 v8, 1, v3\nv_lshl_or_b32 v2, v8, 1, v2")
        e("v_mov_b32 v9, v7\nv_lshlrev_b32 v7, 7, v7\nv_lshl_add_u32 v7, v6, 3, v7")
        for t, (kind, blk, seg) in enumerate(self.tiles()):
            vb = self.VB + t
            if kind == "F":
                e(f"s_mul_i32 s30, s{sWN}, {seg[1]}\ns_add_u32 s30, s30, {seg[0]}")
                e(f"v_xor_b32 v8, s30, v2\nv_lshl_add_u32 v{vb}, v8, 5, v7")
                e(f"s_mul_i32 s30, s{sWN}, {blk[1]*self.b_bs}\ns_add_u32 s30, s30, {self.b_base[0] + blk[0]*self.b_bs}")
                e(f"v_add_u32 v{vb}, s30, v{vb}")
            else:
                e(f"v_bfe_u32 v8, v9, 2, 1\nv_xor_b32 v8, s{sWN}, v8\nv_lshlrev_b32 v8, 5, v8")
                e(f"v_lshl_add_u32 v8, v9, 6, v8\nv_lshl_add_u32 v8, v6, 3, v8\nv_add_u32 v{vb}, {self.h_base}, v8")
            if self.bhi: e(f"v_add_u32 v{self.VB2+t}, 0x10000, v{vb}")
        if not self.czero():
            for r in range(self.ACC, self.ACC + self.MT * self.NT * 4, 2): e(f"v_mov_b64 {v(r,2)}, 0")
    def b_read(self, step, sub, t, dst):
        kind = self.tiles()[t][0]; sb = self.bslot(step); out = []
        for hi in range(2):
            rows = 32 * sub + (16 if self.kperm else 4) * hi
            off = sb * self.b_sp + rows * 128 if kind == "F" else sb * self.h_sp + rows * 64
            base = self.VB + t
            if off > 0xffff: base, off = self.VB2 + t, off - 0x10000
            out.append(f"ds_read_b64_tr_b16 {v(dst+2*hi,2)}, v{base} offset:{off}")
        return out
    def a_read(self, step, sub, mt, dst):
        sa = step % self.NS
        if self.araw: base, off = self.VA + sub, sa * self.a_stage + mt * 2048
        elif self.alay == "bm":
            off = sa * self.a_stage + sub * 8192 + (mt & 1) * 1024
            base = self.VA + (mt >> 1) + 4 * (off >> 16); off &= 0xffff
        else:
            off = sa * self.a_stage + mt * 2048 + sub * 1024
            base = self.VA + (off >> 16); off &= 0xffff
        return f"ds_read_b128 {v(dst,4)}, v{base} offset:{off}"
    def reads(self, step, sub, fs):
        out = []
        for t in range(self.NT):
            out += self.b_read(step, sub, t, self.FB[fs] + 4 * t)
            if t == 0: out += [self.a_read(step, sub, mt, self.FA[fs] + 4 * mt) for mt in range(self.MT)]
        return out
    def czero(self): return self.chain or self.NSB != self.NS or (self.NK - 1) % self.NS != 0
    def mfmas(self, fs, zero=False):
        out = []
        for t in range(self.NT):
            for mt in (range(self.MT) if t % 2 == 0 else reversed(range(self.MT))):
                a, w, c = v(self.FA[fs] + 4 * mt, 4), v(self.FB[fs] + 4 * t, 4), v(self.acc(mt, t), 4)
                ci = "0" if zero else c
                out.append(f"v_mfma_f32_16x16x32_bf16 {c}, {w}, {a}, {ci}" if self.swapped(t) else
                           f"v_mfma_f32_16x16x32_bf16 {c}, {a}, {w}, {ci}")
        if NOMFMA: out = ["s_nop 0"] * len(out)
        return out
    def c_loop(self, ST, pre_last=None, last_fill=(), nsteps=None, after_go=None, mid={}):
        NS, NK, n = self.NS, nsteps or self.NK, self.name
        def inter(m, r, extra=()):
            extra = list(extra); per = -(-len(extra) // len(m)) if extra else 0
            span = max(int(len(m) * RSP), 1) if RSP else len(r)
            pos = [min(len(m) - 1, (i * span) // len(r)) for i in range(len(r))]
            for i in range(len(m)):
                e(m[i])
                for j, p in enumerate(pos):
                    if p == i: e(r[j])
                for x in extra[i * per:(i + 1) * per]: e(x)
        def captured(f):
            saved = A.lines; A.lines = []
            if f: f()
            out = [ln for ln in A.lines if ln.strip()]; A.lines = saved
            return out
        def step(k, last=False):
            e("s_waitcnt lgkmcnt(0)")
            inter(self.mfmas(0, k == 0 and self.czero()), self.reads(k, 1, 1), captured(pre_last) if last else ())
            e("s_waitcnt lgkmcnt(0)\ns_barrier")
            inter(self.mfmas(1), list(last_fill) if last else self.reads(k + 1, 0, 0))
        if self.chain:
            return self.c_chain(ST, captured(pre_last), list(last_fill), after_go)
        e("s_barrier")
        ST(n + "_go")
        for r in self.reads(0, 0, 0): e(r)
        if after_go: after_go()
        body = NK - 1
        if self.NSB != NS:
            for k in range(body):
                if k in mid: e(mid[k])
                step(k)
        else:
            k = 0
            for i in range(body % NS):
                if mid.get(k) == "H1DONE": self.h1_done()
                step(k); k += 1
            e(f"s_mov_b32 s{sCNT}, {body // NS}")
            A.label(f"{n}_cloop")
            for i in range(NS):
                step(k); k += 1
            e(f"s_sub_u32 s{sCNT}, s{sCNT}, 1\ns_cmp_lg_u32 s{sCNT}, 0\ns_cbranch_scc1 {n}_cloop")
        step(NK - 1, last=True)
        if not nsteps: ST(n + "_end")

    def free_set(self): return self.RA[self.NK & 1]
    def c_chain(self, ST, pre_last, last_fill, after_go):
        MT, NT, NK = self.MT, self.NT, self.NK
        q = []
        def rd(tag, ins):
            e(ins); q.append(tag)
        def wait(tag):
            if tag in q:
                k_ = min(len(q) - 1 - max(i for i, t in enumerate(q) if t == tag), 14)
                e(f"s_waitcnt lgkmcnt({k_})"); del q[:len(q) - k_]
        slot = lambda k, t: self.WB + 8 * ((k * NT + t) % 3)
        wr = lambda k, t: [(("W", k, t), x) for sub in range(2) for x in self.b_read(k, sub, t, slot(k, t) + 4 * sub)]
        rr = lambda k, m: [(("R", k, m), self.a_read(k, sub, m, self.RA[k & 1] + 8 * m + 4 * sub)) for sub in range(2)]
        e("s_barrier")
        ST(self.name + "_go")
        for x in wr(0, 0) + [y for m in range(MT) for y in rr(0, m)] + wr(0, 1): rd(*x)
        if after_go: after_go()
        for k in range(NK):
            last = k == NK - 1
            for t in range(NT):
                side = []
                if t + 2 < NT: side = wr(k, t + 2)
                if t == NT - 2:
                    e("s_waitcnt lgkmcnt(0)\ns_barrier"); q.clear()
                if t >= NT - 2:
                    h = t - (NT - 2)
                    if last:
                        n2 = (len(last_fill) + 1) // 2
                        side = [("F", x) for x in last_fill[h * n2:(h + 1) * n2]]
                    else:
                        mo = list(range(MT))
                        side = (wr(k + 1, 0) + rr(k + 1, 0) + rr(k + 1, 1)) if h == 0 else (rr(k + 1, 2) + rr(k + 1, 3) + wr(k + 1, 1))
                extra = []
                if last and t < NT - 2:
                    per = -(-len(pre_last) // (NT - 2)); extra = pre_last[t * per:(t + 1) * per]
                wait(("W", k, t))
                order = range(MT) if t % 2 == 0 else reversed(range(MT))
                i = 0; nm = 2 * MT
                for m in order:
                    wait(("R", k, m))
                    for sub in range(2):
                        a, w, c = v(self.RA[k & 1] + 8 * m + 4 * sub, 4), v(slot(k, t) + 4 * sub, 4), v(self.acc(m, t), 4)
                        ci = "0" if k == 0 and sub == 0 else c
                        e(f"v_mfma_f32_16x16x32_bf16 {c}, {w}, {a}, {ci}" if self.swapped(t) else f"v_mfma_f32_16x16x32_bf16 {c}, {a}, {w}, {ci}")
                        ps = -(-len(side) // nm)
                        for x in side[i * ps:(i + 1) * ps]: rd(*x)
                        pe = -(-len(extra) // nm)
                        for x in extra[i * pe:(i + 1) * pe]: e(x)
                        i += 1
        ST(self.name + "_end")

    def p_setup_b(self, w=sW):
        ldb, PB = self.ldb, self.PB
        e(f"""
s_lshl_b32 s{sM0B}, s{w}, 12
s_lshl_b32 s{sM0H}, s{w}, 11
v_lshrrev_b32 v246, 3, v1
s_lshl_b32 s30, s{w}, 5
v_add_u32 v246, s30, v246
v_mul_u32_u24 v246, {ldb}, v246
v_and_b32 v247, 1, v1
v_lshl_add_u32 v246, v247, 4, v246
v_add_u32 v246, s{sBC}, v246
v_bfe_u32 v247, v1, 1, 2
""")
        if self.kperm:
            e(f"v_xor_b32 v245, v247, v3\nv_lshl_add_u32 v{PB}, v245, 5, v246\nv_add_u32 v{PB+1}, {8*ldb-1024}, v{PB}")
        else:
            e(f"v_and_b32 v245, 1, v3\nv_xor_b32 v245, v247, v245\nv_lshl_add_u32 v{PB}, v245, 5, v246")
            e(f"v_xor_b32 v245, 2, v245\nv_lshl_add_u32 v{PB+1}, v245, 5, v246\nv_add_u32 v{PB+1}, {8*ldb-1024}, v{PB+1}")
        e(f"v_add_u32 v{PB+2}, {16*ldb-2048}, v{PB}\nv_add_u32 v{PB+3}, {16*ldb-2048}, v{PB+1}")
        if self.half:
            e(f"""
v_lshrrev_b32 v246, 2, v1
v_add_u32 v246, s30, v246
v_mul_u32_u24 v246, {ldb}, v246
v_and_b32 v247, 1, v1
v_lshl_add_u32 v246, v247, 4, v246
v_add_u32 v246, s{sBH}, v246
v_bfe_u32 v247, v1, 1, 1
v_and_b32 v245, 1, v3
v_xor_b32 v245, v247, v245
v_lshl_add_u32 v{self.PH}, v245, 5, v246
v_add_u32 v{self.PH+1}, {16*ldb-1024}, v{self.PH}
""")
    def p_setup_a(self):
        PA = self.PA
        if self.araw:
            e(f"""
s_lshl_b32 s{sM0A}, s{sW}, 13
v_lshrrev_b32 v246, 3, v1
s_lshl_b32 s30, s{sW}, 6
v_add_u32 v246, s30, v246
v_lshlrev_b32 v246, 11, v246
v_and_b32 v247, 7, v1
v_xor_b32 v247, v247, v3
v_lshl_add_u32 v{PA}, v247, 4, v246
v_xor_b32 v247, 4, v247
v_lshl_add_u32 v{PA+1}, v247, 4, v246
v_add_u32 v{PA+1}, {8*2048-1024}, v{PA+1}
v_add_u32 v{PA+2}, {16*2048-2048}, v{PA}
v_add_u32 v{PA+3}, {16*2048-2048}, v{PA+1}
""")
        else:
            e(f"s_mul_i32 s{sM0A}, s{sW}, {self.RTW*2048}\ns_mul_i32 s30, s{sW}, {self.RTW*self.KB*1024}\nv_lshl_add_u32 v{PA}, v1, 4, s30")
            e(f"v_add_u32 v{PA+1}, {self.KB*1024-2048}, v{PA}")
    astride = 2048
    rot = True
    arot = True
    korder = list(range(16))
    def kbase(self, dst, base, step, stride):
        e(f"s_add_u32 s{dst}, s{base}, {self.korder[step] * stride}")
    def a_src(self, i, step): e(f"s_add_u32 s31, s{sAK}, {2*i*self.KB*1024}")
    def groups_a(self, step):
        st = step % self.NS
        out = []
        for gi in range(self.RTW // 2):
            def fn(gi=gi):
                if gi == 0 and self.arot: self.kbase(sAK, sAR, step, 128 if self.araw else self.astride)
                e(f"s_add_u32 m0, s{sM0A}, {st*self.a_stage + gi*4096}")
                if self.araw:
                    e(f"s_add_u32 s31, s{sAK}, {gi*32*2048}")
                    for i in range(4): e(f"buffer_load_dwordx4 v{self.PA+i}, {s(SX,4)}, s31 offen offset:{i*1024} lds")
                else:
                    self.a_src(gi, step)
                    for i in range(4): e(f"buffer_load_dwordx4 v{self.PA+(i>>1)}, {s(SWS,4)}, s31 offen offset:{i*1024} sc1 lds")
            out.append((step, 4, fn))
        return out
    def b_parts(self, step):
        sb = self.bslot(step); ko = 0 if self.rot else step * 64 * self.ldb
        out = [(sM0B, self.b_base[j] + sb * self.b_sp, ko + self.blk_delta(j), self.PB, 4) for j in range(self.nfull)]
        if self.half: out.append((sM0H, self.h_base + sb * self.h_sp, ko, self.PH, 2))
        return out
    def groups_b(self, step):
        out = []
        for idx, (m0s, lc, sc, vb, n) in enumerate(self.b_parts(step)):
            def fn(m0s=m0s, lc=lc, sc=sc, vb=vb, n=n, idx=idx):
                if idx == 0 and self.rot: self.kbase(sBK, sBR, step, 64 * self.ldb)
                e(f"s_add_u32 m0, s{m0s}, {lc}\ns_add_u32 s31, s{sBK if self.rot else sBR}, {sc}")
                for i in range(n): e(f"buffer_load_dwordx4 v{vb+i}, {s(SB,4)}, s31 offen offset:{i*1024} {'nt' if self.name == 'qkv' and step < 2 * NTK else ''} lds")
            out.append((step, n, fn))
        return out
    def issue_b(self, Q, step):
        for tag, n, fn in self.groups_b(step):
            fn(); Q.add(tag, n)
    def p_loop(self, Q, ST, b_pre, npf=0, every=1, gate=None, tail=None, look=None, merge=False):
        NS, NK, NSB = self.NS, self.NK, self.NSB
        def iss(g):
            for tag, n, fn in g:
                fn(); Q.add(tag, n)
        ga = lambda k: ([(k, 0, lambda: gate(k))] if gate else []) + self.groups_a(k)
        def gr(k):
            kb = k - NS + NSB
            return (self.groups_b(kb) if b_pre <= kb < NK else []) + ga(k)
        first = lambda k: (self.groups_b(k) if b_pre <= k < NSB else []) + ga(k)
        if gate: e(f"s_mov_b64 {s(sRDY,2)}, -1\ns_mov_b32 s{sCNT}, 0")
        flags_refresh.pending = False
        iss(first(0))
        if gate: ST(self.name + "_seen")
        if BSEEN and self.name == "w1": post(OFF_FULL, 1)
        g1 = first(1)
        P1G_ = (99 if GATEN.get(self.name, 2) > 1 else 0) if gate else P1G
        iss(g1[:P1G_])
        roll = ROLL and self.name == "qkv" and not STAMPS
        saved = None
        for i in range(NK):
            if roll and i == 2:
                e(f"s_mov_b32 s{sCNT}, 4"); A.label("dq_loop")
            if roll and i == 5:
                e(f"s_add_u32 s{sAR}, s{sAR}, {3*128}\ns_add_u32 s{sBR}, s{sBR}, {3*64*self.ldb}\ns_sub_u32 s{sCNT}, s{sCNT}, 1\ns_cmp_lg_u32 s{sCNT}, 0\ns_cbranch_scc1 dq_loop")
                saved = A.lines; A.lines = []
            if roll and i == 14: A.lines = saved
            if merge and i == NK - 2:
                Q.wait(NK - 1); e("s_barrier")
                if WBL2 == 1:
                    L = A.newlabel("nowb")
                    e(f"s_or_b32 s30, s{sR}, s{sW}\ns_cmp_lg_u32 s30, 0\ns_cbranch_scc1 {L}\nbuffer_wbl2 sc1\ns_waitcnt vmcnt(0)")
                    A.label(L)
                return
            Q.wait(i)
            if self.name == DST and i in DW: ST(f"w{i}")
            e("s_barrier")
            if self.name == DST and i in DB: ST(f"b{i}")
            if look and (ASYNC or self.name == 'w2') and i in look[0]: flags_refresh(Q, *look[1])
            if i == 0:
                iss(g1[P1G_:])
                for k in range(2, NS): iss(first(k))
                for k in range(max(NS, b_pre), NSB): iss(self.groups_b(k))
            elif i - 1 + NS < NK: iss(gr(i - 1 + NS))
            elif b_pre <= i - 1 + NSB < NK: iss(self.groups_b(i - 1 + NSB))
            if tail and i - 1 + NS == NK - 1 + TAILD: tail()
            if (self.name == "qkv" and i == 0) or (CWARM > 1 and i == NK - 2): code_warm()
            if self.name == "qkv" and i == 2: tlb_warm()
            if npf and ((2 if roll else PFD0) if self.name == 'qkv' else 1) <= i < NK - 2 and i % every == 0: pf_step(npf + (1 if self.name == 'w1' and i % 3 != 0 else 0))
        e("s_barrier")
        ST(self.name + "_dend")

    def rp_regs(self, i, r0): return r0 + i * (16 * self.nfull + (8 if self.half else 0))
    def rp_load(self, Q, n, r0):
        for i in range(n):
            r = self.rp_regs(i, r0)
            for idx, (m0s, lc, sc, vb, k_) in enumerate(self.b_parts(self.NS + i)):
                if idx == 0: self.kbase(sBK, sBR, self.NS + i, 64 * self.ldb)
                e(f"s_add_u32 s31, s{sBK}, {sc}")
                for k in range(k_):
                    e(f"buffer_load_dwordx4 {v(r,4)}, v{vb+k}, {s(SB,4)}, s31 offen offset:{k*1024}"); r += 4
                Q.add(("rp", i), k_)
            assert r <= 232
    def rp_addr(self):
        b0 = self.b_base[0]
        e(f"v_lshlrev_b32 v245, 4, v1\nv_add_u32 v246, s{sM0H}, v245\nv_add_u32 v245, s{sM0B}, v245\nv_add_u32 v245, {b0}, v245\nv_add_u32 v247, 0x10000, v245\nv_add_u32 v246, {self.h_base}, v246")
    def rp_drain(self, Q, i, r0):
        Q.wait(("rp", i))
        r = self.rp_regs(i, r0)
        for m0s, lc, sc, vb, k_ in self.b_parts(self.NS + i):
            for k in range(k_):
                if m0s == sM0B:
                    off = lc - self.b_base[0] + k * 1024; a = 245
                    if off > 0xffff: off -= 0x10000; a = 247
                else: off = lc - self.h_base + k * 1024; a = 246
                e(f"ds_write_b128 v{a}, {v(r,4)} offset:{off}"); r += 4
        e("s_waitcnt lgkmcnt(0)")

class QKV(Gemm):
    def __init__(self): super().__init__("qkv", 0, 128, 192, 16, NS1, 32, 6144, False, araw=True, NSB=opt("nsb1", 3))
    def tiles(self): return [("F", (t >> 1, 0), (t & 1, 2)) for t in range(6)]
    def swapped(self, nt): return nt < 4
    def blk_delta(self, j): return 2048 * j
class WO(Gemm):
    def __init__(self): super().__init__("wo", 16, 128, 64, 16, 4, 32, 2048, True, NSB=NSB3, bslot=lambda k: (k + 5) % NSB3)
    def tiles(self): return [("F", (0, 0), (t, 2)) for t in range(2)]
    def p_setup_a(self):
        e(f"s_lshl_b32 s{sM0A}, s{sW}, 13\nv_lshl_add_u32 v{self.PA}, v1, 4, s{sM0A}\nv_mov_b32 v{self.PA+1}, v{self.PA}")
        e(f"s_lshl_b32 s{sAR}, s{sRB}, 16\ns_add_u32 s{sAR}, s{sAR}, {WS_AR + AR_O}")
    astride = MB
    korder = [k for k in range(16) if k % 8 != 3] + [3, 11] if KORD else list(range(16))
    def a_src(self, i, step): e(f"s_add_u32 s31, s{sAK}, {i*4096}")
class W1(Gemm):
    def __init__(self): super().__init__("w1", 32, 128, 224, 16, opt("ns4", 3), 32, 7168, True, NSB=3)
    korder = list(range(0, 16, 2)) + list(range(1, 16, 2)) if KORD and not LFIRST else list(range(16))
    def kbase(self, dst, base, step, stride):
        if not LFIRST: return super().kbase(dst, base, step, stride)
        if dst == sAK and step < 4: base = sKS
        e(f"s_add_u32 s{dst}, s{sROT}, {step}\ns_and_b32 s{dst}, s{dst}, 15\ns_mul_i32 s{dst}, s{dst}, {stride}\ns_add_u32 s{dst}, s{dst}, s{base}")
    def tiles(self): return [("F", (0, 2), (t, 0)) for t in range(4)] + [("F", (1, 0), (t, 2)) for t in range(2)] + [("H", None, None)]
class W2(Gemm):
    def __init__(self): super().__init__("w2", 48, 256, 128, 14, 3, 112, 2048, True, alay="bm")
    arot = False
    def tiles(self): return [("F", (0, 1), (t, 0)) for t in range(4)]
    def p_setup_a(self):
        e(f"s_lshl_b32 s{sM0A}, s{sW}, 14\nv_lshlrev_b32 v{self.PA}, 4, v1\nv_mov_b32 v{self.PA+1}, v{self.PA}")
        h1_base(sAR)
        e(f"s_lshl_b32 s30, s{sG}, 5\ns_bfe_u32 s31, s{sRB}, 0x20001\ns_add_u32 s30, s30, s31\ns_lshl_b32 s31, s{sW}, 4\ns_add_u32 s30, s30, s31\ns_lshl_b32 s30, s30, 16\ns_add_u32 s{sAR}, s{sAR}, s30")
    def rot_setup(self):
        e(f"s_lshl_b32 s33, s{sWN}, 16\ns_sub_u32 s33, s{sBR}, s33\ns_lshr_b32 s34, s{sR}, 3")
        for j in range(4):
            e(f"s_add_u32 s35, s34, {j}\ns_and_b32 s35, s35, 3\ns_and_b32 s36, s35, 1\ns_xor_b32 s37, s36, 1\ns_mul_i32 s37, s37, 6")
            e(f"s_lshl_b32 s38, s35, 18\ns_add_u32 s38, s38, s{sAR}\ns_lshl_b32 s39, s36, 13\ns_add_u32 s{48+j}, s38, s39\ns_lshl_b32 s39, s37, 13\ns_add_u32 s{52+j}, s38, s39")
            e(f"s_mul_i32 s38, s35, {7*65536}\ns_add_u32 s38, s38, s33\ns_lshl_b32 s39, s36, 16\ns_add_u32 s{56+j}, s38, s39\ns_lshl_b32 s39, s37, 16\ns_add_u32 s{60+j}, s38, s39")
    def blocks(self):
        if ROT5: return [(j, k, 1) for j in range(4) for k in (0, 4, 1, 5)] + [(j, k, 2) for j in range(4) for k in (2, 3, 6)]
        if not EARLY5: return [(q // 7, q % 7, 1) for q in range(28)]
        early = [(c, (c & 1) + k, 1) for c in range(4) for k in (0, 4, 1, 5)]
        late = [(c, kb, 2) for c in range(4) for kb in range(7) if (c, kb, 1) not in early]
        return early + late
    def a_src(self, i, step):
        c, kb, _ = self.blocks()[2 * step + (i >> 1)]
        if ROT5: return e(f"s_add_u32 s31, s{(48 if kb < 6 else 52) + c}, {(kb % 6) * 8192 + (i&1)*4096}")
        e(f"s_add_u32 s31, s{sAR}, {c*256*KB + kb*8192 + (i&1)*4096}")
    def kbase(self, dst, base, step, stride):
        if ROT5:
            (c0, k0, _), (c1, k1, _) = self.blocks()[2 * step:2 * step + 2]
            return e(f"s_add_u32 s{dst}, s{(56 if k0 < 6 else 60) + c0}, {(k0 % 6) * 65536}\ns_add_u32 s30, s{(56 if k1 < 6 else 60) + c1}, {(k1 % 6) * 65536}\ns_cmp_lg_u32 s{sWN}, 0\ns_cselect_b32 s{dst}, s30, s{dst}")
        o = [(c * 7 + kb) * 32 * self.ldb for c, kb, _ in self.blocks()[2 * step:2 * step + 2]]
        e(f"s_mul_i32 s{dst}, s{sWN}, {o[1] - o[0] - 32*self.ldb}\ns_add_u32 s{dst}, s{dst}, {o[0]}\ns_add_u32 s{dst}, s{dst}, s{base}")
G1, G3, G4, G5 = QKV(), WO(), W1(), W2()
_pf = opt("pfs", "X,Pk,X").split(",")
PFS = [(_pf[0][0], _pf[0][1:], pWO, 2 * MB, True, 249), (_pf[1][0], _pf[1][1:], pW1, 1024 * 7168, False, 248), (_pf[2][0], _pf[2][1:], pW2, 3584 * 2048, False, 250)]
L_K, L_V, L_Q = 0, 48 * KB, 96 * KB

def own_arena(dst, add=0):
    e(f"s_add_u32 s{dst}, s{sOWN}, {WS_AR + add}")
def h1_base(dst):
    e(f"s_cmp_lg_u32 s{sMODE}, 0\ns_cselect_b32 s{dst}, {WS_AR2}, {WS_AR if ALIAS else WS_AR2}")
def rowmajor_voff(dst, t):
    e(f"v_and_b32 v{t}, 1, v3\nv_lshlrev_b32 v{t}, 1, v{t}\nv_lshrrev_b32 v{dst}, 1, v3\nv_or_b32 v{t}, v{t}, v{dst}")
    e(f"v_lshlrev_b32 v{t}, 4, v{t}\nv_lshl_add_u32 v{dst}, v4, 11, v{t}")
def roles_84(rb=sRB, cb=sCB):
    e(f"s_and_b32 s{rb}, s{sG}, 1\ns_lshl_b32 s{rb}, s{rb}, 3\ns_and_b32 s30, s{sR}, 7\ns_add_u32 s{rb}, s{rb}, s30")
    e(f"s_lshr_b32 s{cb}, s{sG}, 1\ns_lshl_b32 s{cb}, s{cb}, 2\ns_lshr_b32 s30, s{sR}, 3\ns_add_u32 s{cb}, s{cb}, s30")
def roles_p1(rb=sRB, cb=sCB):
    if MAP1 == 84: return roles_84(rb, cb)
    e(f"s_lshr_b32 s{rb}, s{sR}, 1\ns_and_b32 s30, s{sR}, 1\ns_lshl_b32 s{cb}, s{sG}, 1\ns_add_u32 s{cb}, s{cb}, s30")
def roles_48(rb=sRB, cb=sCB):
    if LFIRST: return roles_84(rb, cb)
    if not KORD:
        e(f"s_and_b32 s{rb}, s{sG}, 3\ns_lshl_b32 s{rb}, s{rb}, 2\ns_and_b32 s30, s{sR}, 3\ns_add_u32 s{rb}, s{rb}, s30")
        e(f"s_lshr_b32 s{cb}, s{sG}, 2\ns_lshl_b32 s{cb}, s{cb}, 3\ns_lshr_b32 s30, s{sR}, 2\ns_add_u32 s{cb}, s{cb}, s30")
        return
    e(f"s_and_b32 s{rb}, s{sG}, 3\ns_lshl_b32 s{rb}, s{rb}, 2\ns_bfe_u32 s30, s{sR}, 0x20001\ns_add_u32 s{rb}, s{rb}, s30")
    e(f"s_lshr_b32 s{cb}, s{sG}, 2\ns_lshl_b32 s{cb}, s{cb}, 2\ns_lshr_b32 s30, s{sR}, 3\ns_add_u32 s{cb}, s{cb}, s30\ns_lshl_b32 s{cb}, s{cb}, 1\ns_and_b32 s30, s{sR}, 1\ns_add_u32 s{cb}, s{cb}, s30")
def roles_w2(rb=sRB, cb=sCB, ks=sKS):
    if REGRP:
        e(f"s_and_b32 s{rb}, s{sG}, 1\ns_lshl_b32 s{rb}, s{rb}, 3\ns_and_b32 s30, s{sR}, 6\ns_add_u32 s{rb}, s{rb}, s30")
        e(f"s_and_b32 s{cb}, s{sR}, 1\ns_lshl_b32 s{cb}, s{cb}, 2\ns_lshr_b32 s30, s{sR}, 3\ns_add_u32 s{cb}, s{cb}, s30\ns_lshr_b32 s{ks}, s{sG}, 1")
        return
    e(f"s_and_b32 s{rb}, s{sG}, 1\ns_lshl_b32 s{rb}, s{rb}, 2\ns_and_b32 s30, s{sR}, 3\ns_add_u32 s{rb}, s{rb}, s30\ns_lshl_b32 s{rb}, s{rb}, 1")
    e(f"s_lshr_b32 s{cb}, s{sR}, 2\ns_lshr_b32 s{ks}, s{sG}, 1")
def b_src_wo(cb=sCB):
    srd(SB, pWO, 2 * MB); e(f"s_lshl_b32 s{sBC}, s{cb}, 7\ns_mov_b32 s{sBR}, 0\ns_lshl_b32 s{sROT}, s{cb}, 1\ns_and_b32 s{sROT}, s{sROT}, {15 if ROT3 else 0}")
def b_src_w1():
    srd(SB, pW1, 1024 * 7168)
    e(f"""
s_mul_i32 s{sBH}, s{sCB}, 448
s_and_b32 s30, s{sCB}, 1
s_lshl_b32 s{sBC}, s30, 6
s_add_u32 s{sBC}, s{sBC}, s{sBH}
s_xor_b32 s30, s30, 1
s_mul_i32 s30, s30, 384
s_add_u32 s{sBH}, s{sBH}, s30
s_mov_b32 s{sBR}, 0
s_and_b32 s{sROT}, s{sCB}, 12
""")
def b_src_w2():
    srd(SB, pW2, 3584 * 2048); e(f"s_lshl_b32 s{sBC}, s{sCB}, 8\ns_mul_i32 s{sBR}, s{sKS}, {G5.NK*64*2048}")
def flag_addr(dst, base, hi, lo, nw, wave):
    e(f"s_lshl_b32 s{dst}, s{hi}, 4\ns_add_u32 s{dst}, s{dst}, s{lo}\ns_mul_i32 s{dst}, s{dst}, {nw}")
    if wave is not None: e(f"s_add_u32 s{dst}, s{dst}, s{wave}")
    e(f"s_lshl_b32 s{dst}, s{dst}, 2\ns_add_u32 s{dst}, s{dst}, {base}")
WS_F4P = 42 * MB + 128 * KB
def f4_addr(dst, rb, cb, wave):
    e(f"s_lshl_b32 s{dst}, s{rb}, 2\ns_lshr_b32 s30, s{cb}, 2\ns_add_u32 s{dst}, s{dst}, s30\ns_lshl_b32 s{dst}, s{dst}, 3\ns_and_b32 s30, s{cb}, 3\ns_add_u32 s{dst}, s{dst}, s30\ns_lshl_b32 s{dst}, s{dst}, 2")
    if wave is not None: e(f"s_add_u32 s{dst}, s{dst}, s{wave}")
    e(f"s_lshl_b32 s{dst}, s{dst}, 2\ns_add_u32 s{dst}, s{dst}, {WS_F4P}")
def dual(fn, sreg):
    S, X = A.newlabel("slowst"), A.newlabel("stx")
    e(f"s_cmp_lg_u32 s{sreg}, 0\ns_cbranch_scc1 {S}")
    fn(LFL)
    e(f"s_branch {X}")
    A.label(S)
    fn("sc1")
    A.label(X)

def attn_setup():
    e(f"v_lshlrev_b32 v5, 2, v3\nv_mov_b32 v6, {f32(-1e30)}")
    for k in range(4):
        e(f"v_add_u32 v7, {k}, v5\nv_cmp_gt_u32 vcc, v7, v4\nv_cndmask_b32 v{56+k}, v6, 0, vcc\nv_cndmask_b32 v{60+k}, 0, v6, vcc".replace("v_cndmask_b32 v%d, v6, 0, vcc" % (56 + k), "v_cndmask_b32_e64 v%d, v6, 0, vcc" % (56 + k)))
    e(f"""
s_lshl_b32 s36, s{sRB}, 2
s_add_u32 s36, s36, s38
s_sub_i32 s36, 8, s36
s_max_i32 s36, s36, 0
s_mul_i32 s37, s{sWN}, 24
s_lshl_b32 s39, s38, 1
s_add_u32 s37, s37, s39
s_lshl_b32 s37, s37, 10
v_lshl_add_u32 v5, v1, 4, s37
v_add_u32 v7, {L_V}, v5
""")
    own_arena(34, AR_O)
    e(f"s_lshl_b32 s35, s38, 12\ns_add_u32 s34, s34, s35\ns_lshl_b32 s35, s{sWN}, 10\ns_add_u32 s34, s34, s35\ns_add_u32 s35, s34, 2048")
    flag_addr(33, WS_F2, sRB, sCB, 32, sWAVE)

def attention(ST, is_p, Q=None):
    n = "attp" if is_p else "attc"
    S = 64; KF = 24; VF = 24; O = 208; MX = 232
    def sr(qt, u): return S + (qt * 18 + u) * 4
    dead = lambda qt, u: (qt == 0 and u == 17) or (qt == 1 and u == 0)
    def PF(pos):
        for role, at, ptr, nbytes, rev, dst in PFS:
            if role == ("P" if is_p else "C") and at == pos:
                srd(SB, ptr, nbytes)
                e(f"s_xor_b32 s30, s2, {255 if rev else 0}\ns_lshl_b32 s30, s30, 2\ns_add_u32 s30, s30, s{sW}\ns_lshl_b32 s30, s30, 13\nv_lshlrev_b32 v251, 7, v1")
                e(f"buffer_load_dword v{dst}, v251, {s(SB,4)}, s30 offen")
                if is_p: Q.add("pf")
    PF("nb")
    if is_p: Q.wait("nk")
    e("s_waitcnt lgkmcnt(0)\ns_barrier")
    if is_p:
        e(f"s_lshl_b32 s30, s{sW}, 11\ns_add_u32 s30, s30, {L_Q}\nv_lshl_add_u32 v2, v1, 4, s30\nds_read_b128 v[8:11], v2\nds_read_b128 v[12:15], v2 offset:1024")
    ST("att_k")
    if is_p and attention.vl: attention.vl()
    if is_p and SLDS:
        srd(SB, pW1, 7 * MB)
        roles_84(40, 41)
        e(f"""
s_lshl_b32 s40, s40, 1
s_add_u32 s40, s40, s{sWN}
s_lshl_b32 s40, s40, 1
s_add_u32 s40, s40, s{sWM}
s_mul_i32 s40, s40, {16*7168}
s_mul_i32 s41, s41, 448
s_add_u32 s40, s40, s41
s_lshl_b32 s41, s{sWM}, 14
s_lshl_b32 s30, s{sWN}, 12
s_add_u32 s41, s41, s30
v_lshrrev_b32 v248, 3, v1
v_mul_u32_u24 v248, 7168, v248
v_and_b32 v250, 7, v1
v_lshl_add_u32 v248, v250, 4, v248
v_lshrrev_b32 v249, 2, v1
v_mul_u32_u24 v249, 7168, v249
v_and_b32 v250, 3, v1
v_lshl_add_u32 v249, v250, 4, v249
""")
        for i in range(7):
            lds = 64 * KB + 7 * 8192 + (i // 4) * 8192 + (i % 4) * 1024
            so = 128 * (i // 2) + 8 * 7168 * (i % 2)
            e(f"s_add_u32 m0, s41, {lds}\ns_add_u32 s31, s40, {so}\nbuffer_load_dwordx4 v{248 if i < 6 else 249}, {s(SB,4)}, s31 offen lds")
        Q.add("pf", 7)
    else: PF("k")
    if is_p and T6:
        e(f"s_lshl_b32 s30, s{sW}, 11\ns_add_u32 s30, s30, s{sOWN}\ns_add_u32 s30, s30, {WS_AR + 48*KB}\nv_lshlrev_b32 v251, 7, v4\ns_mov_b64 exec, 0xffff\nbuffer_load_dword v249, v251, {s(SWS,4)}, s30 offen\ns_mov_b64 exec, -1")
        Q.add("pf")
    for u in range(8): e(f"ds_read_b128 {v(KF+4*u,4)}, v5 offset:{L_K + u*1024}")
    for k in range(4): e(f"v_mov_b32 v{16+k}, 0x3f803f80")
    for k in range(4): e(f"v_mov_b32 v{MX+k}, v6")
    for r in range(O, O + 24, 2): e(f"v_mov_b64 {v(r,2)}, 0")
    def s_phase(generic):
        pend = []
        def maxes(k):
            for _ in range(k):
                if pend: e(pend.pop(0))
        for u in range(18):
            issued = min(18, u + 8)
            e(f"s_waitcnt lgkmcnt({issued - (u+1)})")
            if generic and u % 2 == 0 and u < 16:
                e(f"s_cmp_gt_u32 s36, {u//2}\ns_cselect_b32 s30, {f32(-1e30)}, 0")
                for k in range(4): e(f"v_mov_b32 v{20+k}, s30")
            for qt in range(2):
                if dead(qt, u): continue
                c = "v[56:59]" if u == qt else "v[60:63]" if u == 16 + qt else "0"
                if generic and u < 16: c = "v[20:23]"
                e(f"v_mfma_f32_16x16x32_bf16 {v(sr(qt,u),4)}, {v(KF+4*(u%8),4)}, {v(8+4*qt,4)}, {c}")
                if len(pend) >= 8: maxes(2)
                r = sr(qt, u)
                pend.append(f"v_max3_f32 v{MX+2*qt}, v{r}, v{r+1}, v{MX+2*qt}")
                pend.append(f"v_max3_f32 v{MX+2*qt+1}, v{r+2}, v{r+3}, v{MX+2*qt+1}")
            if u + 8 < 18: e(f"ds_read_b128 {v(KF+4*(u%8),4)}, v5 offset:{L_K + (u+8)*1024}")
        maxes(99)
    Lg, Lx = A.newlabel("sgen"), A.newlabel("sx")
    e(f"s_cmp_lg_u32 s36, 0\ns_cbranch_scc1 {Lg}")
    s_phase(False)
    e(f"s_branch {Lx}")
    A.label(Lg)
    s_phase(True)
    A.label(Lx)
    CB = VBARP if is_p else VBAR
    vs = {"iss": 0, "pv": 0}
    def v_issue(upto):
        while vs["iss"] < min(18, upto):
            b = vs["iss"]; e(f"ds_read_b128 {v(VF+4*(b%8),4)}, v7 offset:{b*1024}"); vs["iss"] += 1
    def v_bar():
        if is_p: Q.wait("nv")
        e("s_barrier")
        ST("att_v")
        PF("v")
        v_issue(8)
    CSC = (32 ** -0.5) * LOG2E
    e(f"s_mov_b32 s{sC0}, {f32(CSC)}\ns_mov_b32 s{sC0+1}, {f32(CSC)}")
    if CB == 0: v_bar()
    e(f"v_max_f32 v{MX}, v{MX}, v{MX+1}\nv_max_f32 v{MX+2}, v{MX+2}, v{MX+3}")
    xg_multi("v_max_f32", [MX, MX + 2], [MX + 1, MX + 3])
    e(f"v_mul_f32 v{MX}, {f32(-CSC)}, v{MX}\nv_mul_f32 v{MX+2}, {f32(-CSC)}, v{MX+2}")
    def pv(p):
        out = []
        for qt in range(2):
            P = v(sr(qt, 2 * p), 4)
            for dt in range(2):
                o = v(O + 12 * qt + 4 * dt, 4)
                out.append(f"v_mfma_f32_16x16x32_bf16 {o}, {v(VF+4*((2*p+dt)%8),4)}, {P}, {o}")
            o = v(O + 12 * qt + 8, 4)
            out.append(f"v_mfma_f32_16x16x32_bf16 {o}, v[16:19], {P}, {o}")
        return out
    for p in range(10):
        va = []
        if p < 9:
            live = [(qt, u) for qt in range(2) for u in (2 * p, 2 * p + 1) if not dead(qt, u)]
            for qt, u in live:
                r = sr(qt, u)
                if APK:
                    for h in range(2): va.append(f"v_pk_fma_f32 {v(r+2*h,2)}, {v(r+2*h,2)}, {s(sC0,2)}, {v(MX+2*qt,2)} op_sel_hi:[1,1,0]")
                else:
                    for k in range(4): va.append(f"v_fma_f32 v{r+k}, v{r+k}, s{sC0}, v{MX+2*qt}")
            for qt, u in live:
                for k in range(4): va.append(f"v_exp_f32 v{sr(qt,u)+k}, v{sr(qt,u)+k}")
            for qt, u in live:
                r = sr(qt, u); dst = sr(qt, 2 * p) + 2 * (u & 1)
                va.append(f"v_cvt_pk_bf16_f32 v{dst}, v{r}, v{r+1}"); va.append(f"v_cvt_pk_bf16_f32 v{dst+1}, v{r+2}, v{r+3}")
            if AMIX:
                nf = 2 if APK else 4; n_ = len(live)
                F = [va[i*nf:(i+1)*nf] for i in range(n_)]; E = [va[n_*nf+i*4:n_*nf+(i+1)*4] for i in range(n_)]; C_ = [va[n_*(nf+4)+i*2:n_*(nf+4)+(i+1)*2] for i in range(n_)]
                va = list(F[0])
                for i in range(n_):
                    other = (F[i+1] if i + 1 < n_ else []) + (C_[i-1] if i else [])
                    for k in range(4):
                        va.append(E[i][k]); va += other[k*len(other)//4:(k+1)*len(other)//4]
                va += C_[-1]
            if p == 8: va.append(f"v_mov_b64 {v(sr(0,16)+2,2)}, 0")
            if p == 0: va.append(f"v_mov_b64 {v(sr(1,0),2)}, 0")
        if CB and p == CB: v_bar()
        mm = []
        if p > CB:
            take = min(2, p - vs["pv"]) if p < 9 else 9 - vs["pv"]
            assert take <= 2
            for j in range(take): mm += pv(vs["pv"] + j)
            vs["pv"] += take
            e(f"s_waitcnt lgkmcnt({vs['iss'] - 2*vs['pv']})")
        PF(f'pv{p}')
        gap = max(1, len(va) // (len(mm) + 1))
        for i, x in enumerate(va):
            e(x)
            if i >= 1 and (i - 1) % gap == 0 and mm: e(mm.pop(0))
        for x in mm: e(x)
        if p > CB: v_issue(2 * vs["pv"] + 8)
    ST("att_pv")
    e("v_lshlrev_b32 v2, 4, v1")
    for qt in range(2):
        o = O + 12 * qt
        e(f"v_rcp_f32 v{o+8}, v{o+8}")
        for h in range(4): e(f"v_pk_mul_f32 {v(o+2*h,2)}, {v(o+2*h,2)}, {v(o+8,2)} op_sel_hi:[1,0]")
        for h in range(4): e(f"v_cvt_pk_bf16_f32 v{24+4*qt+h}, v{o+2*h}, v{o+2*h+1}")
        e(f"buffer_store_dwordx4 {v(24+4*qt,4)}, v2, {s(SWS,4)}, s{34+qt} offen sc1")

def consumer(ST):
    G = G1
    if CWC in (1, 2): code_warm(True)
    if ZAT < 0:
        L = A.newlabel("nz")
        e(f"s_cmp_lg_u32 s{sW}, 3\ns_cbranch_scc1 {L}\ns_lshl_b32 s35, s{sRB}, 4\ns_add_u32 s35, s35, s{sCB}")
        zero_own_flags(VmQ())
        A.label(L)
    if SLOWPF:
        e(f"s_lshl_b32 s30, s2, 2\ns_add_u32 s30, s30, s{sW}\ns_mul_i32 s31, s30, 6144\ns_lshl_b32 s30, s30, 12\nv_lshlrev_b32 v5, 10, v1")
        e(f"s_mov_b64 exec, 0x3f\nbuffer_load_dword v250, v5, {s(SB,4)}, s31 offen offset:384")
        if SLOWPF > 1: e(f"s_mov_b64 exec, 0xf\nbuffer_load_dword v251, v5, {s(SX,4)}, s30 offen offset:384")
        e("s_mov_b64 exec, -1")
    e(f"v_mov_b32 v{vCNT}, 0")
    e(f"ds_write_b32 v{vDW}, v{vCNT} offset:{OFF_EP}\nds_write_b32 v{vDW}, v{vCNT} offset:{OFF_FULL}")
    G.c_setup()
    X = G.VX
    RA_, CSQ, VA_, VB_, CSV = X, X + 8, X + 24, X + 40, X + 56
    if G.chain: VB_, CSV = G.free_set(), X + 40
    assert CSV + 4 <= vDW
    def pre_last1():
        if SLOWPF: e("s_waitcnt vmcnt(0)")
        e(f"s_lshl_b32 s30, s{sWM}, 8\ns_add_u32 s30, s30, {MISC}\nv_lshl_add_u32 v2, v4, 2, s30\nv_lshl_add_u32 v5, v3, 4, s30")
        e(f"s_lshl_b32 s30, s{sWN}, 7\ns_add_u32 s30, s30, {MISC}\nv_lshl_add_u32 v6, v3, 4, s30\nv_lshl_add_u32 v7, v4, 2, s30")
    fill = []
    for mt in range(4): fill += [f"ds_read_b32 v{RA_+2*mt}, v2 offset:{mt*64}", f"ds_read_b32 v{RA_+2*mt+1}, v2 offset:{512+mt*64}"]
    for t in (2, 3, 0, 1): fill.append(f"ds_read_b128 {v(CSQ+4*t,4)}, v6 offset:{1024 + (t>>1)*256 + (t&1)*64}")
    for mt in range(4): fill += [f"ds_read_b128 {v(VA_+4*mt,4)}, v5 offset:{mt*64}", f"ds_read_b128 {v(VB_+4*mt,4)}, v5 offset:{512+mt*64}"]
    for dt in range(2): fill.append(f"ds_read_b32 v{CSV+2*dt}, v7 offset:{1024 + 512 + dt*64}")
    fill.append(f"ds_read_b32 v{CSV+1}, v{vFR} offset:{OFF_HD}")
    own_arena(33, AR_K)
    e(f"""
s_lshl_b32 s30, s{sWN}, 13
s_add_u32 s33, s33, s30
s_lshl_b32 s30, s{sWM}, 12
s_add_u32 s33, s33, s30
s_add_u32 s34, s33, {AR_V - AR_K}
s_lshl_b32 s31, s{sWM}, 2
s_mul_i32 s35, s{sWN}, 24
s_add_u32 s35, s35, s31
s_add_u32 s35, s35, 16
s_lshl_b32 s35, s35, 10
s_lshl_b32 s36, s{sW}, 11
s_add_u32 s36, s36, {L_Q}
""")
    flag_addr(32, WS_F1, sCB, sRB, 4, sW)
    if ZAT < 0: e(f"s_waitcnt vmcnt({SLOWPF})")
    G.c_loop(ST, pre_last1, fill)
    e(f"s_waitcnt lgkmcnt(0)\nv_readfirstlane_b32 s{sMODE}, v{CSV+1}\nv_lshlrev_b32 v2, 4, v1\nv_add_u32 v5, s35, v2\nv_add_u32 v6, s36, v2")
    e(f"s_lshr_b32 s30, s{sRB}, 1\ns_cmp_eq_u32 s30, {3 if MAP1 == 84 else 99}\ns_cselect_b32 s{sT0}, 1, s{sMODE}")
    def fold_rows(mt, t):
        c = G.acc(mt, t); k = RA_ + 2 * mt
        for h in range(2): e(f"v_pk_mul_f32 {v(c+2*h,2)}, {v(c+2*h,2)}, {v(k,2)} op_sel_hi:[1,0]")
        for h in range(2): e(f"v_pk_fma_f32 {v(c+2*h,2)}, {v(CSQ+4*t+2*h,2)}, {v(k,2)}, {v(c+2*h,2)} op_sel:[0,1,0] op_sel_hi:[1,1,1]")
    def fold_v(mt, dt):
        c = G.acc(mt, 4 + dt)
        for h in range(2): e(f"v_pk_mul_f32 {v(c+2*h,2)}, {v(c+2*h,2)}, {v(VA_+4*mt+2*h,2)}")
        for h in range(2): e(f"v_pk_fma_f32 {v(c+2*h,2)}, {v(VB_+4*mt+2*h,2)}, {v(CSV+2*dt,2)}, {v(c+2*h,2)} op_sel_hi:[1,0,1]")
    def epi1(fl):
        t = 24
        for mt in range(4):
            fold_rows(mt, 2); fold_rows(mt, 3)
            pack(t, G.acc(mt, 2), G.acc(mt, 3))
            e(f"buffer_store_dwordx4 {v(t,4)}, v2, {s(SWS,4)}, s33 offen offset:{mt*1024} {fl or KVFL}"); t += 4
        for p in range(2):
            for dt in range(2):
                fold_v(2 * p, dt); fold_v(2 * p + 1, dt)
                pack(t, G.acc(2 * p, 4 + dt), G.acc(2 * p + 1, 4 + dt))
                e(f"buffer_store_dwordx4 {v(t,4)}, v2, {s(SWS,4)}, s34 offen offset:{(2*p+dt)*1024} {fl or KVFL}"); t += 4
        if KFLAG:
            e("s_waitcnt vmcnt(4)"); set_flag(32, fl.replace("nt", ""), t=64)
        for i in range(4): e(f"ds_write_b128 v5, {v(24+4*i,4)} offset:{L_K + i*1024}")
        for i in range(4): e(f"ds_write_b128 v5, {v(40+4*i,4)} offset:{L_V + i*1024}")
        for mt in (2, 3, 0, 1):
            fold_rows(mt, 0); fold_rows(mt, 1)
            d = 8 + 4 * mt
            pack(d, G.acc(mt, 0), G.acc(mt, 1))
            if mt >= 2: e(f"ds_write_b128 v6, {v(d,4)} offset:{(mt-2)*1024}")
        e("s_waitcnt vmcnt(0)")
        set_flag(32, fl.replace("nt", ""), val=3, t=64)
    dual(epi1, sT0)
    ST("kv_flag")
    e(f"s_lshl_b32 s38, s{sWM}, 1")
    attn_setup()
    attention(ST, False)
    G = G3
    roles_48()
    b_src_wo()
    G.p_setup_b(sWN)
    X = G.VX
    rowmajor_voff(X + 16, X + 17)
    e(f"""
s_lshl_b32 s35, s{sRB}, 1
s_add_u32 s35, s35, s{sWM}
s_lshl_b32 s36, s{sCB}, 1
s_add_u32 s36, s36, s{sWN}
s_lshl_b32 s32, s35, 17
s_lshl_b32 s31, s36, 6
s_add_u32 s32, s32, s31
""")
    def hl_touch():
        e(f"s_lshl_b32 s37, s35, 17\ns_lshl_b32 s31, s36, 10\ns_add_u32 s37, s37, s31\ns_add_u32 s37, s37, {WS_HL}\nv_and_b32 v248, 7, v1\nv_lshlrev_b32 v248, 7, v248\nv_lshrrev_b32 v249, 3, v1\nv_lshl_add_u32 v248, v249, 15, v248")
        set_exec(0xffffffff); e(f"buffer_load_dword v249, v248, {s(SWS,4)}, s37 offen\ns_mov_b64 exec, -1")
    G.c_setup()
    e("s_waitcnt vmcnt(0)")
    set_flag(33)
    ST("o_flag")
    if LFIRST and HLT == 1: hl_touch()
    Qc = VmQ()
    L1, L2 = A.newlabel("b3a"), A.newlabel("b3b")
    e(f"s_cmp_lg_u32 s{sWM}, 0\ns_cbranch_scc1 {L1}")
    for st in ((0,) if SLDS else range(3)): G.issue_b(Qc, st)
    e(f"s_branch {L2}")
    A.label(L1)
    for st in ((1,) if SLDS else range(3, 6)): G.issue_b(Qc, st)
    A.label(L2)
    e("s_barrier")
    for mt in range(4): e(f"s_add_u32 s31, s32, {mt*16*2048}\nbuffer_load_dwordx4 {v(X+4*mt,4)}, v{X+16}, {s(SX,4)}, s31 offen")
    e("s_waitcnt vmcnt(4)")
    if SLDS:
        L1, L2 = A.newlabel("b3c"), A.newlabel("b3d")
        e(f"s_cmp_lg_u32 s{sWM}, 0\ns_cbranch_scc1 {L1}")
        for st in (6, 7, 8): G.issue_b(Qc, st)
        e(f"s_branch {L2}")
        A.label(L1)
        for st in (9, 10): G.issue_b(Qc, st)
        A.label(L2)
    if LFIRST and HLT == 2: hl_touch()
    e(f"""
s_lshl_b32 s37, s35, 17
s_lshl_b32 s31, s36, 10
s_add_u32 s37, s37, s31
s_add_u32 s37, s37, {WS_H}
s_lshl_b32 s38, s35, 14
s_lshl_b32 s31, s36, 9
s_add_u32 s38, s38, s31
s_add_u32 s38, s38, {WS_STAT}
""")
    flag_addr(32, WS_F3, sRB, sCB, 32, sW)
    HX = X + 24
    def pre_last3():
        e("s_waitcnt vmcnt(0)\nv_lshlrev_b32 v2, 4, v1")
        for mt in range(4):
            x = X + 4 * mt
            e(f"v_permlane16_swap_b32 v{x}, v{x+2}\nv_permlane16_swap_b32 v{x+1}, v{x+3}")
        for mt in range(4):
            for d in range(4): unpack(HX + 8 * mt + 2 * d, X + 4 * mt + d)
    G.c_loop(ST, pre_last3, mid={4: 's_waitcnt vmcnt(0)'} if SLDS else {})
    for mt in range(4):
        x = X + 4 * mt; u = HX + 8 * mt
        for d in range(4): e(f"v_pk_add_f32 {v(12+2*d,2)}, {v(G.acc(mt,d>>1)+2*(d&1),2)}, {v(u+2*d,2)}")
        for d in range(4): e(f"v_cvt_pk_bf16_f32 v{x+d}, v{12+2*d}, v{13+2*d}")
        if LFIRST: e(f"s_add_u32 s31, s37, {WS_HL - WS_H + mt*32*1024}\nbuffer_store_dwordx4 {v(x,4)}, v2, {s(SWS,4)}, s31 offen")
        else: e(f"s_add_u32 s31, s37, {mt*32*1024}\nbuffer_store_dwordx4 {v(x,4)}, v2, {s(SWS,4)}, s31 offen sc1")
    if LFIRST:
        for mt in range(4): e(f"s_add_u32 s31, s37, {mt*32*1024}\nbuffer_store_dwordx4 {v(X+4*mt,4)}, v2, {s(SWS,4)}, s31 offen sc1")
    for mt in range(4):
        x = X + 4 * mt; u = HX + 8 * mt
        for d in range(4): unpack(u + 2 * d, x + d)
        e(f"v_pk_add_f32 v[12:13], {v(u,2)}, {v(u+2,2)}\nv_pk_add_f32 v[14:15], {v(u+4,2)}, {v(u+6,2)}")
        e(f"v_pk_add_f32 v[12:13], v[12:13], v[14:15]\nv_add_f32 v{32+2*mt}, v12, v13")
    if LFIRST:
        e(f"s_add_u32 s31, s32, {WS_F3L - WS_F3}\ns_waitcnt vmcnt(4)"); set_flag(31, "")
    xg_multi("v_add_f32", [32, 34, 36, 38], [16, 17, 18, 19])
    for mt in range(4):
        u = HX + 8 * mt; sm = 32 + 2 * mt
        e(f"v_mul_f32 v12, {f32(1/32)}, v{sm}")
        for d in range(4): e(f"v_pk_add_f32 {v(u+2*d,2)}, {v(u+2*d,2)}, v[12:13] op_sel_hi:[1,0] neg_lo:[0,1] neg_hi:[0,1]")
        e(f"v_pk_mul_f32 v[14:15], {v(u,2)}, {v(u,2)}")
        for d in range(1, 4): e(f"v_pk_fma_f32 v[14:15], {v(u+2*d,2)}, {v(u+2*d,2)}, v[14:15]")
        e(f"v_add_f32 v{sm+1}, v14, v15")
    xg_multi("v_add_f32", [33, 35, 37, 39], [16, 17, 18, 19])
    for k in range(1, 4):
        e(f"v_cmp_eq_u32 vcc, {k}, v3\nv_cndmask_b32 v32, v32, v{32+2*k}, vcc\nv_cndmask_b32 v33, v33, v{33+2*k}, vcc")
    e(f"v_lshlrev_b32 v2, 3, v1\nbuffer_store_dwordx2 v[32:33], v2, {s(SWS,4)}, s38 offen sc1\ns_waitcnt vmcnt({2 if LFIRST else 1})")
    set_flag(32)
    post(OFF_EP, 2)
    ST("h_flag")
    G = G4
    roles_84()
    G.c_setup()
    e("s_mov_b32 s40, s32")
    def stats_out():
        e("s_waitcnt vmcnt(0)"); set_flag(40, val=3)
    h1_base(37)
    e(f"""
s_and_b32 s39, s{sCB}, 1
s_add_u32 s32, s{sOWN}, s37
s_lshl_b32 s33, s{sWM}, 12
s_add_u32 s32, s32, s33
s_lshl_b32 s34, s{sWN}, 2
s_add_u32 s34, s34, s39
s_add_u32 s35, s39, s{sWN}
s_add_u32 s35, s35, 2
s_xor_b32 s36, s39, 1
s_mul_i32 s36, s36, 6
s_lshl_b32 s34, s34, 13
s_lshl_b32 s35, s35, 13
s_lshl_b32 s36, s36, 13
s_add_u32 s34, s34, s32
s_add_u32 s35, s35, s32
s_add_u32 s36, s36, s32
s_lshl_b32 s37, s{sWN}, 3
s_add_u32 s36, s36, s37
s_add_u32 s37, s34, 8192
s_mov_b32 s{sC0}, {f32(-LOG2E)}
s_mov_b32 s{sC0+1}, {f32(-LOG2E)}
""")
    f4_addr(38, sRB, sCB, sW)
    def pre_last4():
        e(f"""
s_lshl_b32 s30, s{sWM}, 9
s_add_u32 s30, s30, {L_RA}
v_lshl_add_u32 v2, v4, 3, s30
s_lshl_b32 s31, s39, 7
s_lshl_b32 s32, s{sWN}, 9
s_add_u32 s32, s32, s31
s_add_u32 s32, s32, {L_CS}
v_lshl_add_u32 v5, v3, 4, s32
s_lshl_b32 s32, s{sWN}, 7
s_add_u32 s32, s32, s31
s_add_u32 s32, s32, {L_CS + 256}
v_lshl_add_u32 v6, v3, 4, s32
s_xor_b32 s33, s39, 1
s_mul_i32 s33, s33, 768
s_lshl_b32 s32, s{sWN}, 6
s_add_u32 s32, s32, s33
s_add_u32 s32, s32, {L_CS}
v_lshl_add_u32 v7, v3, 4, s32
""")
    CS, KR = (G.free_set(), G.VX) if G.chain else (16, 8)
    assert CS + 28 <= 56 and KR + 8 <= vDW
    fill = [f"ds_read_b64 {v(KR+2*mt,2)}, v2 offset:{mt*128}" for mt in range(4)]
    fill += [f"ds_read_b128 {v(CS+4*t,4)}, v5 offset:{64*t}" for t in range(4)]
    fill += [f"ds_read_b128 {v(CS+16+4*t,4)}, v6 offset:{64*t}" for t in range(2)] + [f"ds_read_b128 {v(CS+24,4)}, v7"]
    G.c_loop(ST, pre_last4, fill, after_go=stats_out)
    e("s_waitcnt lgkmcnt(0)\nv_lshlrev_b32 v2, 4, v1")
    def epi4(fl):
        units = []
        for pr in range(4):
            for mt in range(4): units.append((mt, (2 * pr, 2 * pr + 1) if pr < 3 else (6,), pr))
        T0, O0 = 56, 80
        def sA(i):
            mt, ts, pr = units[i]; k = KR + 2 * mt; o = []
            for t in ts:
                c = G.acc(mt, t)
                for h in range(2): o.append(f"v_pk_mul_f32 {v(c+2*h,2)}, {v(c+2*h,2)}, {v(k,2)} op_sel:[0,1] op_sel_hi:[1,1]")
            for t in ts:
                c = G.acc(mt, t)
                for h in range(2): o.append(f"v_pk_fma_f32 {v(c+2*h,2)}, {v(CS+4*t+2*h,2)}, {v(k,2)}, {v(c+2*h,2)} op_sel_hi:[1,0,1]")
            return o
        def sB(i):
            mt, ts, pr = units[i]; T = T0 + 8 * (i % 3)
            return [f"v_exp_f32 v{T+4*j+k}, v{G.acc(mt,t)+k}" for j, t in enumerate(ts) for k in range(4)]
        def sC(i):
            mt, ts, pr = units[i]; T = T0 + 8 * (i % 3)
            return [f"v_pk_fma_f32 {v(T+2*h,2)}, {v(T+2*h,2)}, {s(sC0,2)}, {s(sC0,2)}" for h in range(2 * len(ts))]
        def sD(i):
            mt, ts, pr = units[i]; T = T0 + 8 * (i % 3)
            return [f"v_rcp_f32 v{T+k}, v{T+k}" for k in range(4 * len(ts))]
        def sE(i):
            mt, ts, pr = units[i]; T = T0 + 8 * (i % 3); o = []; d = O0 + 4 * (i % 4)
            for j, t in enumerate(ts):
                c = G.acc(mt, t)
                for h in range(2): o.append(f"v_pk_mul_f32 {v(c+2*h,2)}, {v(c+2*h,2)}, {v(T+4*j+2*h,2)}")
            for j, t in enumerate(ts):
                c = G.acc(mt, t)
                for h in range(2): o.append(f"v_cvt_pk_bf16_f32 v{d+2*j+h}, v{c+2*h}, v{c+2*h+1}")
            base = (34, 37, 35, 36)[pr]
            if NOST4: return o
            o.append(f"buffer_store_dwordx4 {v(d,4)}, v2, {s(SWS,4)}, s{base} offen offset:{mt*1024} {fl}" if pr < 3 else f"buffer_store_dwordx2 {v(d,2)}, v2, {s(SWS,4)}, s{base} offen offset:{mt*1024} {fl}")
            return o
        N = len(units)
        for x in sA(0): e(x)
        for i in range(N + 1):
            seq = []
            if i < N: seq += sB(i)
            if i + 1 < N: seq += sA(i + 1)
            if i < N: seq += sC(i)
            if i >= 1: seq += sE(i - 1)
            if i < N: seq += sD(i)
            for x in seq: e(x)
            if EARLY5 and i == 8 + E5LAG:
                e(f"s_waitcnt vmcnt({E5LAG})"); set_flag(38, fl.replace("nt", ""))
        ST("silu")
        roles_w2()
        G5.c_setup()
        if not FLATE:
            e("s_waitcnt vmcnt(0)")
            set_flag(38, fl.replace("nt", ""), val=3)
    n0 = list(ST.names)
    def epi4w(fl):
        ST.names = list(n0); epi4(fl)
    dual(epi4w, sMODE)
    ST("h1_flag")
    G = G5
    MT = G.MT; keep = 2; nb = 4
    def h1_done():
        e("s_waitcnt vmcnt(0)")
        dual(lambda fl: set_flag(38, fl.replace("nt", ""), val=3), sMODE)
    G.h1_done = h1_done
    def pre_last5():
        srd(SD, pOUT, 4 * MB)
        e(f"""
s_lshl_b32 s33, s{sRB}, 3
s_add_u32 s33, s33, s{sCB}
s_mul_i32 s34, s33, {16*4*nb*1024}
s_add_u32 s34, s34, {WS_PART}
s_mul_i32 s30, s{sW}, {nb*1024}
s_add_u32 s34, s34, s30
s_lshl_b32 s35, s{sRB}, 3
s_lshl_b32 s30, s{sWM}, 3
s_add_u32 s35, s35, s30
s_lshl_b32 s30, s{sKS}, 1
s_add_u32 s35, s35, s30
s_lshl_b32 s36, s{sCB}, 2
s_lshl_b32 s30, s{sWN}, 1
s_add_u32 s36, s36, s30
s_lshl_b32 s38, s35, 15
s_lshl_b32 s31, s36, 10
s_add_u32 s38, s38, s31
s_add_u32 s38, s38, {WS_H}
s_lshl_b32 s37, s33, {9 if F5W else 6}
s_lshl_b32 s31, s{sW}, {7 if F5W else 2}
s_add_u32 s37, s37, s31
s_add_u32 s37, s37, {WS_F5W if F5W else WS_F5}
s_lshl_b32 s31, s{sKS}, 4
s_add_u32 s32, s37, s31
s_lshl_b32 s39, s{sKS}, 2
""")
        for d in range(1, 4):
            e(f"s_add_u32 s31, s{sKS}, {d}\ns_and_b32 s31, s31, 3\ns_lshl_b32 s30, s31, 2\ns_add_u32 s30, s30, s{sKS}\ns_mul_i32 s30, s30, {4*nb*1024}\ns_add_u32 s{39+d}, s30, s34")
            e(f"s_add_u32 s31, s31, s39\ns_mul_i32 s31, s31, {4*nb*1024}\ns_add_u32 s{42+d}, s31, s34")
        e(f"s_lshl_b32 s46, s35, 15\ns_lshl_b32 s31, s36, 6\ns_add_u32 s46, s46, s31\ns_add_u32 s47, s38, {32*1024}")
    if TAILPM:
        assert not CANARY
        BQ, AB = [8, 24, 56, 72], [40, 88]
        sub4 = [(12, 0), (12, 1), (13, 0), (13, 1)]
        order = [2, 3, 4, 5, 6, 7, 0, 1]
        HRS = [G.acc(2, 1), G.acc(2, 3), G.acc(3, 1), G.acc(3, 3)]
        brd = lambda j: [x for t in range(4) for x in G.b_read(*sub4[j], t, BQ[j] + 4 * t)]
        ard = lambda n_: [G.a_read(*sub4[j], order[n_], AB[n_ & 1] + 4 * j) for j in range(4)]
        G.c_loop(ST, pre_last5, ["v_lshlrev_b32 v2, 4, v1"] + ard(0) + brd(0) + brd(1), nsteps=12, after_go=h1_done if FLATE == 1 else None, mid={1: "H1DONE"} if FLATE == 2 else {})
        def send(mt):
            out = []
            for pr in range(2):
                c0, c1 = G.acc(mt, 2 * pr), G.acc(mt, 2 * pr + 1)
                out += [f"v_cvt_pk_bf16_f32 v{c0}, v{c0}, v{c0+1}", f"v_cvt_pk_bf16_f32 v{c0+1}, v{c0+2}, v{c0+3}",
                        f"v_cvt_pk_bf16_f32 v{c0+2}, v{c1}, v{c1+1}", f"v_cvt_pk_bf16_f32 v{c0+3}, v{c1+2}, v{c1+3}",
                        f"buffer_store_dwordx4 {v(c0,4)}, v2, {s(SWS,4)}, s{39+mt//2} offen offset:{(2*(mt&1)+pr)*1024} {PFL}"]
            return out
        for n_, mt in enumerate(order):
            mm = lambda t, j: f"v_mfma_f32_16x16x32_bf16 {v(G.acc(mt,t),4)}, {v(BQ[j]+4*t,4)}, {v(AB[n_&1]+4*j,4)}, {v(G.acc(mt,t),4)}"
            e("s_waitcnt lgkmcnt(0)")
            if n_ == 0:
                side = brd(2) + brd(3)
                for i, (t, j) in enumerate([(t, j) for t in range(4) for j in range(2)]):
                    e(mm(t, j)); e(side[2 * i]); e(side[2 * i + 1])
                side = ard(1)
                for i, (t, j) in enumerate([(t, j) for j in (2, 3) for t in range(4)]):
                    if i == 0: e("s_waitcnt lgkmcnt(8)")
                    if i == 4: e("s_waitcnt lgkmcnt(4)")
                    e(mm(t, j))
                    if i < 4: e(side[i])
                continue
            side = (ard(n_ + 1) if n_ + 1 < 8 else []) + (send(order[n_ - 1]) if order[n_ - 1] >= 2 else [])
            if n_ == 3: side += [f"buffer_load_dwordx4 {v(HRS[2*i+pr],4)}, v2, {s(SWS,4)}, s{38 if i == 0 else 47} offen offset:{pr*1024} sc1" for i in range(2) for pr in range(2)]
            if LEVELS and n_ == 7:
                side = ["v_mov_b32 v5, 0", "v_mov_b32 v6, 1", "s_waitcnt vmcnt(12)", "s_mov_b64 exec, 1\n" + f"buffer_store_byte v6, v5, {s(SWS,4)}, s32 offen offset:1 sc1" + "\ns_mov_b64 exec, -1"]
            for i, (t, j) in enumerate([(t, j) for t in range(4) for j in range(4)]):
                e(mm(t, j))
                for x in side[i:i + 1] + (side[16:] if i == 15 else []): e(x)
        ST("w2_end")
    else:
        HRS = [8, 12, 16, 20]
        HR = 8
        fill = ["v_lshlrev_b32 v2, 4, v1"]
        fill += [f"buffer_load_dwordx4 {v(HR+4*(2*i+pr),4)}, v2, {s(SWS,4)}, s{38 if i == 0 else 47} offen offset:{pr*1024} sc1" for i in range(2) for pr in range(2)]
        if CANARY: fill.append(f"buffer_load_dword v248, v2, {s(SWS,4)}, s37 offen sc1")
        G.c_loop(ST, pre_last5, fill)
        o = 24
        for d in range(1, 4):
            for i in range(keep):
                for pr in range(2):
                    mt = d * keep + i
                    pack(o, G.acc(mt, 2 * pr), G.acc(mt, 2 * pr + 1))
                    e(f"buffer_store_dwordx4 {v(o,4)}, v2, {s(SWS,4)}, s{39+d} offen offset:{(2*i+pr)*1024} {PFL}")
                    o = 24 + (o - 24 + 4) % 32
    PR = 64
    assert PR + 48 <= G.ACC
    def add_partial(d):
        for i in range(keep):
            for pr in range(2):
                for q in range(4): unpack(40 + 2 * q, PR + 4 * ((d - 1) * nb + 2 * i + pr) + q)
                for q in range(4):
                    c = G.acc(i, 2 * pr + (q >> 1)) + 2 * (q & 1)
                    e(f"v_pk_add_f32 {v(c,2)}, {v(c,2)}, {v(40+2*q,2)}")
    def add_residual():
        for i in range(keep):
            for pr in range(2):
                for q in range(4): unpack(40 + 2 * q, HRS[2 * i + pr] + q)
                for q in range(4):
                    c = G.acc(i, 2 * pr + (q >> 1)) + 2 * (q & 1)
                    e(f"v_pk_add_f32 {v(c,2)}, {v(c,2)}, {v(40+2*q,2)}")
    def ld_partial(d):
        for b in range(nb): e(f"buffer_load_dwordx4 {v(PR+4*((d-1)*nb+b),4)}, v2, {s(SWS,4)}, s{42+d} offen offset:{b*1024} sc1")
    rowmajor_voff(62, 63)
    if CANARY:
        e("v_mov_b32 v58, s43\nv_mov_b32 v59, s44\nv_cmp_eq_u32 vcc, 1, v1\nv_cndmask_b32 v58, v58, v59, vcc\nv_mov_b32 v59, s45\nv_cmp_eq_u32 vcc, 2, v1\nv_cndmask_b32 v58, v58, v59, vcc")
        e("s_waitcnt vmcnt(0)")
        ST("p_flag")
        add_residual()
        X0 = A.newlabel("pfok")
        e(f"s_mov_b64 exec, 0xf\nv_and_b32 v248, 1, v248\nv_cmp_ne_u32 vcc, 1, v248\ns_mov_b64 exec, -1\ns_cbranch_vccz {X0}")
        poll("s37", 4, voff=2, t=60)
        A.label(X0)
        L, X = A.newlabel("can"), A.newlabel("canx")
        e(f"s_mov_b64 exec, 7\ns_mov_b32 s{sCNT}, 0")
        A.label(L)
        e(f"buffer_load_dword v60, v58, {s(SWS,4)}, 0 offen offset:4092 sc1\ns_add_u32 s{sCNT}, s{sCNT}, 1\ns_cmp_gt_u32 s{sCNT}, {SPIN_MAX}\ns_waitcnt vmcnt(0)\ns_cbranch_scc1 {X}")
        e(f"v_cmp_eq_u32 vcc, -1, v60\ns_cbranch_vccnz {L}")
        A.label(X)
        e("s_mov_b64 exec, -1")
        ST("p_seen")
        for d in range(1, 4): ld_partial(d)
        for d in range(1, 4):
            L, X = A.newlabel("pv"), A.newlabel("pvx")
            r0 = PR + 16 * (d - 1)
            e(f"s_waitcnt vmcnt({(3-d)*nb})")
            A.label(L)
            e(f"v_max_u32 v60, v{r0}, v{r0+1}")
            for i in range(2, 16, 2): e(f"v_max3_u32 v60, v{r0+i}, v{r0+i+1}, v60")
            e(f"v_cmp_eq_u32 vcc, -1, v60\ns_cbranch_vccz {X}\ns_add_u32 s{sCNT}, s{sCNT}, 1\ns_cmp_gt_u32 s{sCNT}, {SPIN_MAX}\ns_cbranch_scc1 {X}")
            ld_partial(d)
            e(f"s_waitcnt vmcnt(0)\ns_branch {L}")
            A.label(X)
            add_partial(d)
    elif LEVELS and TAILPM:
        lvf = lambda l: e(f"s_mov_b64 exec, 1\nbuffer_store_byte v6, v5, {s(SWS,4)}, s32 offen offset:{l} sc1\ns_mov_b64 exec, -1")
        e("s_waitcnt vmcnt(5)"); lvf(2)
        add_residual()
        e(f"v_sub_u32 v61, s{sKS}, v1\nv_and_b32 v61, 3, v61\nv_lshlrev_b32 v61, 3, v61")
        e("s_waitcnt vmcnt(2)"); lvf(3)
        ST("p_flag")
        e(f"s_mov_b32 s{sCNT}, 0\ns_mov_b32 s33, 0")
        if PW5: e("s_waitcnt vmcnt(0)")
        for lvl in (1, 2, 3):
            L, X = A.newlabel("lv"), A.newlabel("lvx")
            e(f"s_sub_u32 s30, s{sKS}, {lvl}\ns_and_b32 s30, s30, 3\ns_bitcmp1_b32 s33, s30\ns_cbranch_scc1 {X}")
            A.label(L)
            e(f"s_mov_b64 exec, 0xf\nbuffer_load_dword v60, v2, {s(SWS,4)}, s37 offen sc1\ns_add_u32 s{sCNT}, s{sCNT}, 1\ns_waitcnt vmcnt(0)\nv_bfe_u32 v60, v60, v61, 1\nv_cmp_eq_u32 vcc, 1, v60\ns_mov_b64 exec, -1\ns_mov_b32 s33, vcc_lo")
            e(f"s_cmp_gt_u32 s{sCNT}, {SPIN_MAX}\ns_cbranch_scc1 {X}\ns_bitcmp1_b32 s33, s30\ns_cbranch_scc0 {L}")
            A.label(X)
            ld_partial(4 - lvl)
        ST("p_seen")
        for lvl in (1, 2, 3):
            e(f"s_waitcnt vmcnt({(3-lvl)*nb})")
            add_partial(4 - lvl)
    else:
        e("s_waitcnt vmcnt(0)")
        set_flag(32)
        ST("p_flag")
        add_residual()
        poll("s37", 4, voff=2, t=60)
        ST("p_seen")
        for d in range(1, 4): ld_partial(d)
        for d in range(1, 4):
            e(f"s_waitcnt vmcnt({(3-d)*nb})")
            add_partial(d)
    if PERT:
        L = A.newlabel("nopert")
        e(f"s_cmp_ge_u32 s2, {PERTN}\ns_cbranch_scc1 {L}\ns_mov_b64 exec, {PERTL}\nv_add_f32 v{G.acc(0,0)}, {f32(PERT)}, v{G.acc(0,0)}\ns_mov_b64 exec, -1")
        A.label(L)
    for i in range(keep):
        for pr in range(2):
            x = HRS[2 * i + pr]
            pack(x, G.acc(i, 2 * pr), G.acc(i, 2 * pr + 1))
            e(f"v_permlane16_swap_b32 v{x}, v{x+2}\nv_permlane16_swap_b32 v{x+1}, v{x+3}")
            if LEAK and i == 0 and pr == 0:
                ST("leak"); L = A.newlabel("noleak"); nm = ST.names; ix = lambda n_: 78 + nm.index(n_)
                e(f"s_or_b32 s30, s2, s{sWAVE}\ns_or_b32 s30, s30, s{sMODE}\ns_cmp_lg_u32 s30, 0\ns_cbranch_scc1 {L}\ns_sub_u32 s30, s{ix('leak')}, s78\ns_cmp_lt_u32 s30, {LEAK}\ns_cbranch_scc1 {L}\ns_mov_b64 exec, 1")
                seq = ["start", "qkv_go", "qkv_end", "wo_go", "wo_end", "w1_go", "w1_end", "w2_end", "leak"]
                for j in range(8):
                    e(f"s_sub_u32 s30, s{ix(seq[j+1])}, s{ix(seq[j])}\nv_cvt_f32_u32 v{40+j}, s30\nv_mul_f32 v{40+j}, {f32(0.01)}, v{40+j}")
                for j in range(4): e(f"v_cvt_pk_bf16_f32 v{x+j}, v{40+2*j}, v{41+2*j}")
                e("s_mov_b64 exec, -1")
                A.label(L)
            e(f"s_add_u32 s31, s46, {i*16*2048}\nbuffer_store_dwordx4 {v(x,4)}, v62, {s(SD,4)}, s31 offen offset:{pr*64} {OFL}")
    ST.flush()
    e("s_endpgm")

def neighbours_and_attention(ST, Q):
    e(f"s_lshl_b32 s38, s{sWM}, 1\ns_add_u32 s38, s38, 1")
    attn_setup()
    L = A.newlabel("nonb")
    assert MAP1 == 162
    own_arena(42)
    e(f"""
s_add_u32 s40, s{sRB}, s{sWM}
s_sub_u32 s41, s40, 2
s_lshl_b32 s31, s{sWM}, 16
s_add_u32 s42, s42, s31
s_sub_u32 s42, s42, {2*64*KB}
s_lshl_b32 s31, s{sWN}, 13
s_add_u32 s42, s42, s31
s_mul_i32 s43, s{sWN}, 24
s_lshl_b32 s31, s{sWM}, 3
s_add_u32 s43, s43, s31
s_lshl_b32 s43, s43, 10
v_lshlrev_b32 v2, 4, v1
s_cmp_lt_u32 s40, 2
s_cselect_b32 s42, {WS_BYTES}, s42
s_cbranch_scc1 {L}
""")
    flag_addr(32, WS_F1, sCB, 41, 4, None)
    poll("s32", 4, t=8)
    A.label(L)
    ST("nb_seen")
    def nb_loads(wsb, lb):
        if wsb == AR_V and KFLAG:
            L2 = A.newlabel("nonv")
            e(f"s_cmp_lt_u32 s40, 2\ns_cbranch_scc1 {L2}")
            poll("s32", 4, t=20, mask=2)
            A.label(L2)
            e("v_lshlrev_b32 v2, 4, v1")
        for h in range(2):
            e(f"s_add_u32 m0, s43, {lb + h*4096}\ns_add_u32 s31, s42, {wsb + h*4096}")
            for i in range(4): e(f"buffer_load_dwordx4 v2, {s(SWS,4)}, s31 offen offset:{i*1024} sc1 lds")
    Q.q = []
    nb_loads(AR_K, L_K); Q.add("nk", 8)
    def vl():
        nb_loads(AR_V, L_V); Q.add("nv", 8)
    if not VLATE: vl()
    attention.vl = vl if VLATE else None
    attention(ST, True, Q)
    roles_48()
    b_src_wo()
    e(f"ds_read_b32 v8, v{vFR} offset:{OFF_HD}")
    G3.p_setup_a(); G3.p_setup_b(sWN)
    e(f"s_waitcnt lgkmcnt(0)\nv_readfirstlane_b32 s{sMODE}, v8")
    e("s_waitcnt vmcnt(0)")
    set_flag(33)
    e("s_barrier")
    Q.q = []
    ST("o_flag")

def dma_phase1(ST, Q):
    G = G1
    if DPRIO: e(f"s_setprio {DPRIO}")
    def touch(nk, fl):
        def f():
            e(f"s_mul_i32 s30, s{sW}, {nk*1024}\ns_add_u32 s30, s30, s{sOWN}\nv_lshlrev_b32 v12, 7, v1")
            for i in range(0, nk, 8):
                if nk - i < 8: set_exec((1 << ((nk - i) * 8)) - 1)
                e(f"s_add_u32 s31, s30, {WS_AR + i*1024}\nbuffer_load_dword v{248+i//8}, v12, {s(SWS,4)}, s31 offen {fl}")
                Q.add("touch")
            e("s_mov_b64 exec, -1")
        return f
    dma_phase1.touch = touch
    G.p_loop(Q, ST, 0, NPF, tail=touch(16, TFL.replace("none", "")) if TOUCH else None)
    if DPRIO: e("s_setprio 0")
    e("s_waitcnt lgkmcnt(0)")

def dma_rest(ST, Q):
    G = G3
    if DPRIO: e(f"s_setprio {DPRIO}")
    e(f"s_lshl_b32 s32, s{sRB}, 11\ns_add_u32 s32, s32, {WS_F2}")
    pf_step(PFBUB)
    e("v_lshrrev_b32 v10, 2, v1\nv_lshlrev_b32 v10, 7, v10\nv_and_b32 v11, 3, v1\nv_lshl_add_u32 v10, v11, 3, v10")
    G.p_loop(Q, ST, G.NSB, 1, 3, gate=lambda k: gate_k(G3, k, True), look=(range(0, 12), (32, 10, True)))
    G = G4
    roles_84()
    b_src_w1()
    e(f"s_lshl_b32 s{sAR}, s{sRB}, 18\ns_add_u32 s{sAR}, s{sAR}, {WS_H}")
    G.p_setup_b(); G.p_setup_a()
    e(f"s_lshl_b32 s32, s{sRB}, 11\ns_add_u32 s32, s32, {WS_F3}")
    if BEARLY and not BTAIL: G.issue_b(Q, 0)
    if not LFIRST: wait_rows(OFF_EP, 2)
    if not BEARLY and not BTAIL: G.issue_b(Q, 0)
    pf_step(PFBUB)
    e("v_lshrrev_b32 v10, 2, v1\nv_lshlrev_b32 v10, 7, v10\nv_and_b32 v11, 3, v1\nv_lshl_add_u32 v10, v11, 2, v10")
    if LFIRST:
        e(f"s_lshl_b32 s30, s{sROT}, 2\nv_add_u32 v10, s30, v1\nv_and_b32 v10, 63, v10\nv_lshlrev_b32 v10, 2, v10")
        e(f"s_cmp_lg_u32 s{sMODE}, 0\ns_cselect_b32 s33, 0, {WS_F3L - WS_F3}\ns_cselect_b32 s{sKS}, 0, {WS_HL - WS_H}\ns_add_u32 s33, s33, s32\ns_add_u32 s{sKS}, s{sKS}, s{sAR}")
    def gate4(k):
        if not LFIRST: return gate_k(G4, k, False)
        n0 = GATEN["w1"]
        if k == 4: e(f"s_mov_b64 {s(sRDY,2)}, -1")
        if k == 0: need_flags((1 << (4 * n0)) - 1, 33, 10, False)
        elif k >= n0: need_flags(0xf << (4 * k), 33 if k < 4 else 32, 10, False)
    G.p_loop(Q, ST, 1 if BLATE else G.NSB, NPF, gate=gate4, tail=dma_phase1.touch(28, '') if TOUCH4 else None, look=(range(0, 12), (32, 10, False)))
    pf_finish()
    G = G5
    roles_w2()
    b_src_w2()
    G.p_setup_b()
    G.p_setup_a()
    if ROT5: G.rot_setup()
    for st in range(G.NS): G.issue_b(Q, st)
    e(f"s_lshl_b32 s32, s{sRB}, 9\ns_lshl_b32 s30, s{sKS}, 7\ns_add_u32 s32, s32, s30\ns_add_u32 s32, s32, {WS_F4P}")
    e(f"s_lshl_b32 s30, s{sW}, 9\ns_add_u32 s32, s32, s30\nv_lshlrev_b32 v10, 2, v4")
    if ROT5: e(f"s_lshl_b32 s30, s34, 2\nv_add_u32 v10, s30, v4\nv_and_b32 v10, 15, v10\nv_lshlrev_b32 v10, 2, v10")
    e("v_and_b32 v11, 1, v3")
    seen5 = set()
    def gate5(k):
        want = {(c, lv) for c, kb, lv in G5.blocks()[2 * k:2 * k + 2]} - seen5
        if want:
            seen5.update(want)
            need_flags(sum(0xf << (4 * c + 16 * (lv - 1)) for c, lv in want), 32, 10, False, shift=11)
    G.p_loop(Q, ST, G.NS + RP5, gate=gate5, look=(range(0, 10), (32, 10, False, 11)) if ASY5 else None, merge=bool(TAILPM))

U0 = 200
def colsum_block(j, src, nld, dpp):
    u = U0 + 8 * j
    if DOT:
        e("v_mov_b32 v10, 0x00003f80\nv_mov_b32 v11, 0x3f800000")
        for i in range(nld):
            for d in range(4):
                if i == 0: unpack(u + 2 * d, src + d)
                else: e(f"v_dot2_f32_bf16 v{u+2*d}, v{src+4*i+d}, v10, v{u+2*d}\nv_dot2_f32_bf16 v{u+2*d+1}, v{src+4*i+d}, v11, v{u+2*d+1}")
    else:
        for i in range(nld):
            for d in range(4):
                if i == 0: unpack(u + 2 * d, src + d)
                else:
                    unpack(10 + 2 * (d & 1), src + 4 * i + d)
                    e(f"v_pk_add_f32 {v(u+2*d,2)}, {v(u+2*d,2)}, {v(10+2*(d&1),2)}")
    for d in range(4): e(f"v_permlane32_swap_b32 v{u+d}, v{u+4+d}")
    for d in range(2): e(f"v_pk_add_f32 {v(u+2*d,2)}, {v(u+2*d,2)}, {v(u+4+2*d,2)}")
    for d in range(2): e(f"v_permlane16_swap_b32 v{u+d}, v{u+2+d}")
    e(f"v_pk_add_f32 {v(u,2)}, {v(u,2)}, {v(u+2,2)}")
    for k in dpp:
        for r in range(u, u + 2): e(f"v_add_f32_dpp v{r}, v{r}, v{r} row_ror:{k} row_mask:0xf bank_mask:0xf")
def colsum_store(Q, j, soff, nl, tag):
    u = U0 + 8 * j
    e("v_lshlrev_b32 v6, 5, v4\nv_lshl_add_u32 v6, v3, 3, v6")
    m = (1 << nl) - 1
    set_exec(m | m << 16 | m << 32 | m << 48)
    e(f"buffer_store_dwordx2 {v(u,2)}, v6, {s(SWS,4)}, s{soff} offen offset:{256*j} sc1\ns_mov_b64 exec, -1")
    Q.add(tag, 1)

def zero_own_flags(Q):
    e("v_lshlrev_b32 v2, 2, v1\nv_mov_b32 v8, 0")
    def st(soff, nl):
        set_exec((1 << nl) - 1); e(f"buffer_store_dword v8, v2, {s(SWS,4)}, s{soff} offen sc1"); Q.add("zero")
    flag_addr(32, WS_F1, sCB, sRB, 4, None); st(32, 4)
    flag_addr(32, WS_F2, sRB, sCB, 32, None); st(32, 8)
    roles_48(36, 37)
    flag_addr(32, WS_F3, 36, 37, 32, None); st(32, 4)
    if LFIRST: e(f"s_add_u32 s32, s32, {WS_F3L - WS_F3}"); st(32, 4)
    roles_w2(36, 37, 38)
    if F5W:
        assert not CANARY
        e(f"s_lshl_b32 s32, s36, 3\ns_add_u32 s32, s32, s37\ns_lshl_b32 s32, s32, 5\ns_add_u32 s32, s32, s38\ns_lshl_b32 s32, s32, 4\ns_add_u32 s32, s32, {WS_F5W}")
        set_exec(0xf); e("v_lshlrev_b32 v9, 7, v1"); e(f"buffer_store_dword v8, v9, {s(SWS,4)}, s32 offen sc1"); Q.add("zero")
    else:
        e(f"s_lshl_b32 s32, s36, 3\ns_add_u32 s32, s32, s37\ns_lshl_b32 s32, s32, 2\ns_add_u32 s32, s32, s38\ns_lshl_b32 s32, s32, 4\ns_add_u32 s32, s32, {WS_F5}"); st(32, 4)
    roles_84(36, 37)
    f4_addr(32, 36, 37, None); st(32, 4)
    e("s_mov_b64 exec, -1\nv_mov_b32 v8, -1\nv_mov_b32 v9, -1\nv_mov_b32 v10, -1\nv_mov_b32 v11, -1\nv_lshlrev_b32 v7, 4, v1")
    e(f"s_lshl_b32 s32, s35, 5\ns_add_u32 s32, s32, {WS_RA}"); st(32, 8)
    e(f"s_add_u32 s32, s32, {WS_RB - WS_RA}"); st(32, 8)
    def st4(soff, nl):
        set_exec((1 << nl) - 1); e(f"buffer_store_dwordx4 v[8:11], v7, {s(SWS,4)}, s{soff} offen sc1"); Q.add("zero")
    e(f"s_mul_i32 s32, s35, 768\ns_add_u32 s32, s32, {WS_CS1}"); st4(32, 48)
    e(f"s_mul_i32 s32, s36, {2*3584*4}\ns_mul_i32 s33, s37, 896\ns_add_u32 s32, s32, s33\ns_add_u32 s32, s32, {WS_CS2}"); st4(32, 56)
    e(f"s_add_u32 s32, s32, {3584*4}"); st4(32, 56)
    if TWO:
        e(f"s_lshl_b32 s32, s36, 4\ns_add_u32 s32, s32, s37\ns_lshl_b32 s32, s32, 6\ns_add_u32 s32, s32, {WS_K2}"); st4(32, 4)
        e(f"s_lshl_b32 s32, s37, 4\ns_add_u32 s32, s32, s36\ns_lshl_b32 s32, s32, 6\ns_add_u32 s32, s32, {WS_CF}"); st4(32, 4)
    e("s_mov_b64 exec, -1")

sPFO, sPFE, sPFI, SPF = sNEED, pOUT, sT0, 44
sPFS = pOUT + 1
sTOUT = 96
def pf_init():
    e(f"s_mov_b64 {s(sTOUT,2)}, {s(pOUT,2)}")
    srd(SPF, pWO, 2 * MB)
    e(f"s_lshl_b32 s{sPFS}, s2, 2\ns_add_u32 s{sPFS}, s{sPFS}, s{sW}\ns_lshl_b32 s{sPFS}, s{sPFS}, 8\ns_mov_b32 s{sPFO}, s{sPFS}\ns_mov_b32 s{sPFE}, {2*MB}\ns_mov_b32 s{sPFI}, {2 if W2NT else 0 if PFW1 else 1}")
def pf_chunk():
    for i in range(4): e(f"s_buffer_load_dword s{sC0}, {s(SPF,4)}, s{sPFO} offset:{64*i}")
    e(f"s_add_u32 s{sPFO}, s{sPFO}, {1024*256}")
def pf_step(n):
    if not SPFON or n == 0: return
    G_, X, W2L = A.newlabel("pfg"), A.newlabel("pfx"), A.newlabel("pfw2")
    e(f"s_cmp_lt_u32 s{sPFO}, s{sPFE}\ns_cbranch_scc1 {G_}\ns_cmp_ge_u32 s{sPFI}, 2\ns_cbranch_scc1 {X}")
    e(f"s_mov_b32 s{sPFO}, s{sPFS}\ns_mov_b32 s{sPFE}, {7*MB}\ns_add_u32 s{sPFI}, s{sPFI}, 1\ns_cmp_eq_u32 s{sPFI}, 2\ns_cbranch_scc1 {W2L}")
    srd(SPF, pW1, 7 * MB)
    e(f"s_branch {G_}")
    A.label(W2L)
    srd(SPF, pW2, 7 * MB)
    A.label(G_)
    for i in range(n): pf_chunk()
    A.label(X)
CODE_MAX = 96 * KB
def code_warm(by_c=False):
    if not CWARM or (CWC in (1, 3) and not by_c): return
    L = A.newlabel("pc")
    e(f"s_getpc_b64 s[42:43]")
    A.label(L)
    e(f"s_sub_u32 s42, s42, {L}-{KN}\ns_subb_u32 s43, s43, 0\ns_lshl_b32 s{sC0+1}, s{sR}, 2\ns_add_u32 s{sC0+1}, s{sC0+1}, s{sW}\ns_lshl_b32 s{sC0+1}, s{sC0+1}, 6")
    for i in range(NCODE): e(f"s_load_dword s{sC0}, s[42:43], s{sC0+1} offset:{i*8192}")
def tlb_warm():
    if not TLBW: return
    e(f"s_lshl_b32 s{sC0+1}, s{sR}, 2\ns_add_u32 s{sC0+1}, s{sC0+1}, s{sW}\ns_lshl_b32 s{sC0+1}, s{sC0+1}, {TLBG}")
    n = max(1, (96 * MB >> TLBG) // 128)
    for i in range(n):
        e(f"s_add_u32 s42, s{sC0+1}, {(i*128) << TLBG}\ns_min_u32 s42, s42, {96*MB - 64}\ns_load_dword s{sC0}, {s(pWS,2)}, s42")
    for ptr, nb in ((pW1, 7 * MB), (pW2, 7 * MB), (pWO, 2 * MB), (sTOUT, 4 * MB)):
        e(f"s_min_u32 s42, s{sC0+1}, {nb - 64}\ns_load_dword s{sC0}, {s(ptr,2)}, s42")
def pf_until_ep(k):
    L, X = A.newlabel("pu"), A.newlabel("pux")
    A.label(L)
    e(f"ds_read_b32 v{vFV}, v{vFR} offset:{OFF_EP}\ns_waitcnt lgkmcnt(0)\nv_cmp_gt_u32 vcc, {k}, v{vFV}\ns_cbranch_vccz {X}")
    e(f"s_sleep 1\ns_add_u32 s3, s3, 1\ns_cmp_lt_u32 s3, {LSPIN_MAX}\ns_cbranch_scc1 {L}")
    A.label(X)
def pf_finish():
    if not SPFON: return
    L = A.newlabel("pfin")
    A.label(L)
    pf_step(2)
    e(f"s_waitcnt lgkmcnt(6)\ns_cmp_lt_u32 s{sPFI}, 2\ns_cbranch_scc1 {L}\ns_cmp_lt_u32 s{sPFO}, s{sPFE}\ns_cbranch_scc1 {L}")
def pf_stamp(ST):
    if not STAMPS: return
    k_ = len(ST.names); ST.names.append("pfMB")
    e(f"s_mul_i32 s30, s{sPFI}, 1000\ns_lshr_b32 s31, s{sPFO}, 13\ns_mul_i32 s31, s31, 25\ns_lshr_b32 s31, s31, 5\ns_add_u32 s30, s30, s31\ns_add_u32 s{78+k_}, s78, s30")

class HStream:
    def __init__(self): self.items = []
    def __enter__(self):
        self.saved = A.lines; A.lines = []; return self
    def _take(self, atomic=False):
        if A.lines:
            if atomic: self.items.append(("g", list(A.lines)))
            else: self.items += [("g", [ln]) for ln in A.lines if ln.strip()]
        A.lines = []
    def at(self, k): self._take(); self.items.append(("at", k))
    def by(self, k): self._take(); self.items.append(("by", k))
    def atomic(self, f, cost=None):
        self._take(); f()
        if not A.lines: return
        self._take(True)
        if cost is not None: self.items[-1] = ("g", self.items[-1][1], cost)
    def __exit__(self, *a):
        self._take(); A.lines = self.saved
    @staticmethod
    def cost(ln):
        t = ln.strip()
        if t.startswith(("buffer_", "global_")): return VMC
        if t.startswith("ds_"): return 2
        if t.startswith("v_dot"): return DOTC
        if t.startswith(("v_exp", "v_rcp", "v_sqrt", "v_rsq")): return 2
        if t.startswith("s_") or t.endswith(":"): return 0.5
        return 1
    def emit(self, nbar, lim, npf, pf_from=0, pf_to=99, pre0=999, every=1, cw=(), more=False):
        st = {"b": 0, "used": 0}
        def bar():
            e("s_barrier")
            if st["b"] in cw: code_warm()
            if cw and cw[0] == 0 and st["b"] == 2: tlb_warm()
            if pf_from <= st["b"] < min(pf_to, nbar - 1) and st["b"] % every == every - 1: pf_step(npf + (1 if more and st["b"] % 3 != 1 else 0))
            st["b"] += 1; st["used"] = 0
        for kind, x, *oc in self.items:
            if kind == "at":
                while st["b"] <= x: bar()
            elif kind == "by":
                if DBGH: print("by", x, "at", st["b"], file=sys.stderr)
                assert st["b"] <= x, ("deadline missed", st["b"], x)
            else:
                c = oc[0] if oc else sum(self.cost(l) for l in x)
                if st["used"] > 8 and st["used"] + c > (lim if st["b"] > 0 else pre0) and not (len(x) == 1 and (x[0].strip().startswith("s_") or x[0].strip().endswith(":"))): bar()
                A.lines += x; st["used"] += c
        assert st["b"] <= nbar, st
        while st["b"] < nbar: bar()

def retry(loads, regs, nl, post=None):
    L, X = A.newlabel("rt"), A.newlabel("rtx")
    set_exec((1 << nl) - 1 if nl <= 64 else nl)
    e(f"s_mov_b32 s{sCNT}, 0")
    A.label(L)
    e("s_waitcnt vmcnt(0)")
    if post: post()
    e(f"v_max_u32 v8, v{regs[0]}, v{regs[1]}")
    for i in range(2, len(regs), 2): e(f"v_max3_u32 v8, v{regs[i]}, v{regs[i+1]}, v8")
    e(f"v_cmp_eq_u32 vcc, -1, v8\ns_cbranch_vccz {X}\ns_add_u32 s{sCNT}, s{sCNT}, 1\ns_cmp_gt_u32 s{sCNT}, {SPIN_MAX}\ns_cbranch_scc1 {X}\ns_sleep 8")
    loads()
    e(f"s_branch {L}")
    A.label(X)

def arena_prewrite(Q):
    if not PRE1: return
    e(f"s_lshl_b32 s36, s{sWN}, 14\ns_add_u32 s36, s36, s{sOWN}\nv_lshlrev_b32 v9, 4, v1")
    for i in range(4):
        e(f"s_add_u32 s37, s36, {WS_AR + i*4096}")
        for k in range(4): e(f"buffer_store_dwordx4 v[16:19], v9, {s(SWS,4)}, s37 offen offset:{k*1024} sc1")
    Q.add("pre", 16)
def helper0_phase1(ST, Q):
    RS = 16
    with HStream() as H:
        e(f"""
s_lshl_b32 s35, s{sRB}, 4
s_add_u32 s35, s35, s{sCB}
s_lshl_b32 s34, s35, 14
v_lshrrev_b32 v6, 3, v1
v_lshlrev_b32 v5, 11, v6
v_and_b32 v7, 7, v1
v_lshl_add_u32 v5, v7, 4, v5
s_getreg_b32 s39, hwreg(HW_REG_XCC_ID)
""")
        bounds = [0] + [2 * x for x in HB] + [16]
        def red8(r):
            e(f"v_add_f32_dpp v{r}, v{r}, v{r} quad_perm:[1,0,3,2] row_mask:0xf bank_mask:0xf")
            e(f"v_add_f32_dpp v{r}, v{r}, v{r} quad_perm:[2,3,0,1] row_mask:0xf bank_mask:0xf")
            e(f"v_add_f32_dpp v{r}, v{r}, v{r} row_half_mirror row_mask:0xf bank_mask:0xf")
        def dots(bt):
            Q.wait(("rs", bt))
            for i in range(4 * bounds[bt], 4 * bounds[bt + 1]):
                e(f"v_dot2_f32_bf16 v{80+(i&1)}, v{RS+i}, v84, v{80+(i&1)}\nv_dot2_f32_bf16 v{82+(i&1)}, v{RS+i}, v{RS+i}, v{82+(i&1)}")
        e("v_mov_b32 v84, 0x3f803f80\nv_mov_b64 v[80:81], 0\nv_mov_b64 v[82:83], 0")
        for bt in range(len(bounds) - 1):
            if bt: H.at(bt - 1)
            for i in range(bounds[bt], bounds[bt + 1]): e(f"buffer_load_dwordx4 {v(RS+4*i,4)}, v5, {s(SX,4)}, s34 offen offset:{128*i}")
            Q.add(("rs", bt), bounds[bt + 1] - bounds[bt])
            if bt == 1 and not ZAT: zero_own_flags(Q)
            if bt >= LAG: dots(bt - LAG)
        nb_ = len(bounds) - 1
        for bt in range(nb_ - LAG, nb_):
            H.at(bt + LAG - 1); dots(bt)
        if ZAT > 0:
            H.at(ZAT); zero_own_flags(Q); H.at(H0AT)
        Q.wait("zero")
        e(f"s_and_b32 s39, s39, 15\ns_or_b32 s39, s39, 0x80\ns_lshl_b32 s30, s{sG}, 5\ns_add_u32 s30, s30, s{sR}")
        e(f"v_mov_b32 v8, s39\nv_mov_b32 v2, s30")
        H.by(H0AT + 1)
        e(f"s_mov_b64 exec, 1\nbuffer_store_byte v8, v2, {s(SD,4)}, 0 offen sc1\ns_mov_b64 exec, -1")
        e("v_add_f32 v10, v80, v81\nv_add_f32 v11, v82, v83")
        red8(10)
        red8(11)
        if DOT: e(f"v_mul_f32 v12, {f32(-1/1024)}, v10\nv_fma_f32 v11, v12, v10, v11\nv_max_f32 v11, 0, v11")
        ln_finish(10, 11, 1024)
        e("v_mul_f32 v10, v10, v11\nv_sub_f32 v10, 0, v10")
        e(f"v_lshrrev_b32 v7, 3, v1\nv_lshlrev_b32 v7, 2, v7\ns_lshl_b32 s32, s35, 5\ns_add_u32 s32, s32, {WS_RA}\ns_add_u32 s33, s32, {WS_RB-WS_RA}")
        set_exec(0x0101010101010101)
        e(f"buffer_store_dword v11, v7, {s(SWS,4)}, s32 offen sc1\nbuffer_store_dword v10, v7, {s(SWS,4)}, s33 offen sc1\ns_mov_b64 exec, -1")
        ST("st_pub")
        arena_prewrite(Q)
        H.by(GAT - 1); H.at(GAT - 3)
        e(f"v_lshlrev_b32 v12, 2, v1\nbuffer_load_dword v13, v12, {s(SD,4)}, 0 offen sc1")
        H.at(GAT - 1)
        def handshake():
            X = A.newlabel("hsx")
            e(f"s_waitcnt vmcnt(0)\nv_and_b32 v8, 0x80808080, v13\nv_cmp_ne_u32 vcc, 0x80808080, v8\ns_cbranch_vccz {X}")
            poll("0", 64, srd_=SD, mask="0x80808080", t=8, sleep=16)
            e(f"buffer_load_dword v13, v12, {s(SD,4)}, 0 offen sc1\ns_waitcnt vmcnt(0)")
            A.label(X)
            e(f"s_mul_i32 s31, s39, 0x01010101\nv_cmp_ne_u32 vcc, s31, v13\ns_lshl_b32 s30, s{sG}, 3\ns_lshr_b64 s[32:33], vcc, s30\ns_and_b32 s30, s32, 0xff")
            if FORCE >= 0: e(f"s_mov_b32 s30, {FORCE}")
            e(f"v_mov_b32 v8, s30\nv_mov_b32 v7, {L_HD}\ns_mov_b64 exec, 1\nds_write_b32 v7, v8\ns_mov_b64 exec, -1")
        H.atomic(handshake)
        H.at(GAT)
        e(f"v_and_b32 v6, 31, v1\nv_lshlrev_b32 v6, 4, v6\nv_lshrrev_b32 v7, 5, v1\nv_lshl_add_u32 v6, v7, 13, v6\ns_lshl_b32 s34, s{sRB}, 9\ns_add_u32 s34, s34, {WS_RA}")
        ld = lambda: e(f"buffer_load_dwordx4 v[16:19], v6, {s(SWS,4)}, s34 offen sc1")
        ld()
        H.at(GAT + 2)
        def fin():
            retry(ld, [16, 17, 18, 19], 64)
            e(f"v_lshlrev_b32 v6, 4, v1\nv_add_u32 v6, {L_RA}, v6\nds_write_b128 v6, v[16:19]\ns_waitcnt lgkmcnt(0)")
        H.atomic(fin)
        ST("st_in")
        H.by(16)
    H.emit(17, HLIM, NPF, pf_from=PFD0, pf_to=GAT + 1, pre0=PRE0, cw=(0, 14) if CWARM > 1 else (0,))
    e("s_waitcnt lgkmcnt(0)")
    pf_stamp(ST)

def helper1_phase1(ST, Q):
    CSR = 80
    with HStream() as H:
        e(f"""
s_lshl_b32 s35, s{sRB}, 4
s_add_u32 s35, s35, s{sCB}
v_bfe_u32 v6, v1, 3, 2
v_lshrrev_b32 v7, 5, v1
v_lshl_add_u32 v6, v7, 6, v6
v_and_b32 v7, 7, v1
v_mul_u32_u24 v6, 6144, v6
v_lshl_add_u32 v6, v7, 4, v6
s_mul_i32 s32, s{sRB}, {4*6144}
s_lshl_b32 s33, s{sCB}, 7
s_add_u32 s32, s32, s33
""")
        bounds = [0] + HB + [8]
        e("v_mov_b32 v10, 0x00003f80\nv_mov_b32 v11, 0x3f800000")
        for r in range(U0, U0 + 24, 2): e(f"v_mov_b64 {v(r,2)}, 0")
        def dots(bt):
            Q.wait(("cs", bt))
            for i in range(bounds[bt], bounds[bt + 1]):
                for j in range(3):
                    for d in range(4):
                        u, r = U0 + 8 * j + 2 * d, CSR + 4 * (8 * j + i) + d
                        e(f"v_dot2_f32_bf16 v{u}, v{r}, v10, v{u}\nv_dot2_f32_bf16 v{u+1}, v{r}, v11, v{u+1}")
        nb_ = len(bounds) - 1
        for bt in range(nb_):
            if bt: H.at(bt - 1)
            for i in range(bounds[bt], bounds[bt + 1]):
                for j in range(3):
                    e(f"s_add_u32 s31, s32, {2048*j + 128*6144*i}\nbuffer_load_dwordx4 {v(CSR+4*(8*j+i),4)}, v6, {s(SB,4)}, s31 offen {'nt' if i < NTK else ''}")
            Q.add(("cs", bt), 3 * (bounds[bt + 1] - bounds[bt]))
            if bt >= LAG: dots(bt - LAG)
        for bt in range(nb_ - LAG, nb_):
            H.at(bt + LAG - 1); dots(bt)
        e(f"s_mul_i32 s33, s35, 768\ns_add_u32 s33, s33, {WS_CS1}")
        for j in range(3): colsum_block(j, 0, 0, (8,))
        H.at(H0AT + 1)
        for j in range(3): colsum_store(Q, j, 33, 8, "st1")
        ST("st_pub")
        arena_prewrite(Q)
        H.by(GAT - 1); H.at(GAT)
        e(f"s_mul_i32 s33, s{sCB}, 768\ns_add_u32 s33, s33, {WS_CS1}\nv_lshlrev_b32 v6, 4, v1")
        def ld():
            for k in range(16): e(f"s_add_u32 s31, s33, {k*16*768}\nbuffer_load_dwordx4 {v(16+4*k,4)}, v6, {s(SWS,4)}, s31 offen sc1")
        def ld0():
            set_exec((1 << 48) - 1); ld(); e("s_mov_b64 exec, -1")
        H.atomic(ld0)
        H.at(GAT + 2)
        def fin():
            retry(ld, list(range(16, 80)), 48)
            for k in range(1, 16): e(f"v_pk_add_f32 v[16:17], v[16:17], {v(16+4*k,2)}\nv_pk_add_f32 v[18:19], v[18:19], {v(18+4*k,2)}")
            e(f"v_add_u32 v6, {L_CS}, v6\nds_write_b128 v6, v[16:19]\ns_mov_b64 exec, -1\ns_waitcnt lgkmcnt(0)")
        H.atomic(fin)
        ST("st_in")
        H.by(16)
    H.emit(17, HLIM, NPF, pf_from=PFD0, pf_to=GAT + 1, pre0=PRE0, cw=(0, 14) if CWARM > 1 else (0,))
    e("s_waitcnt lgkmcnt(0)")
    pf_stamp(ST)

def red16(regs, tmps):
    for k in (4, 8):
        for r in regs: e(f"v_add_f32_dpp v{r}, v{r}, v{r} row_ror:{k} row_mask:0xf bank_mask:0xf")
    xg_multi("v_add_f32", regs, tmps)
def helper4_two(ST, Q):
    q0 = list(Q.q); n0 = list(ST.names)
    e(f"s_cmp_lg_u32 s{sWN}, 0\ns_cbranch_scc1 L_h4b")
    with HStream() as H:
        e(f"s_lshl_b32 s36, s{sRB}, 11\ns_add_u32 s36, s36, {WS_F3}\ns_lshr_b32 s37, s{sR}, 1\ns_min_u32 s37, s37, 13\ns_lshl_b32 s37, s37, 11\ns_add_u32 s37, s37, {WS_F3}")
        H.at(0)
        Q.wait(2)
        e("v_lshrrev_b32 v240, 2, v1\nv_lshlrev_b32 v240, 7, v240\nv_and_b32 v241, 3, v1\nv_lshl_add_u32 v240, v241, 2, v240\nv_min_u32 v241, 47, v1\nv_lshlrev_b32 v241, 7, v241")
        e(f"s_lshl_b32 s34, s{sRB}, 1\ns_lshr_b32 s30, s{sCB}, 3\ns_add_u32 s34, s34, s30\ns_lshl_b32 s34, s34, 14\ns_and_b32 s30, s{sCB}, 7\ns_lshl_b32 s30, s30, 6\ns_add_u32 s34, s34, s30\ns_add_u32 s34, s34, {WS_STAT}\ns_add_u32 s35, s34, 8192")
        e("v_lshrrev_b32 v11, 2, v1\nv_lshlrev_b32 v11, 9, v11\nv_and_b32 v12, 3, v1\nv_lshlrev_b32 v12, 4, v12\nv_add_u32 v11, v11, v12")
        H.at(CHKAT)
        e(f"buffer_load_dword v232, v240, {s(SWS,4)}, s36 offen sc1")
        Q.add("chk")
        H.at(CHKAT + 2)
        def chk():
            X = A.newlabel("ckx")
            Q.wait("chk")
            e(f"v_and_b32 v232, 2, v232\nv_cmp_ne_u32 vcc, 2, v232\ns_cbranch_vccz {X}")
            poll("s36", 64, voff=240, mask=2, t=8, sleep=8)
            A.label(X)
        H.atomic(chk, 6)
        e(f"buffer_load_dwordx4 v[16:19], v11, {s(SWS,4)}, s34 offen sc1\nbuffer_load_dwordx4 v[20:23], v11, {s(SWS,4)}, s35 offen sc1")
        e(f"buffer_load_dwordx4 v[234:237], v241, {s(SWS,4)}, s37 offen sc1")
        H.at(CHKAT + 4)
        e("s_waitcnt vmcnt(1)\nv_pk_add_f32 v[24:25], v[16:17], v[20:21]\nv_pk_add_f32 v[26:27], v[18:19], v[22:23]")
        red16([24, 26], [28, 29])
        for h in range(2):
            e(f"v_mul_f32 v30, {f32(1/32)}, v{24+2*h}\nv_sub_f32 v31, v{16+2*h}, v30\nv_sub_f32 v32, v{20+2*h}, v30\nv_mul_f32 v31, v31, v31\nv_fma_f32 v31, v32, v32, v31")
            e(f"v_mov_b32 v30, {f32(1/32)}\nv_fma_f32 v{25+2*h}, v31, v30, v{25+2*h}")
        red16([25, 27], [28, 29])
        for h in range(2):
            a_, b_ = 24 + 2 * h, 25 + 2 * h
            ln_finish(a_, b_, 1024)
            e(f"v_mul_f32 v{b_}, {f32(-LOG2E)}, v{b_}\nv_mul_f32 v{a_}, v{a_}, v{b_}\nv_sub_f32 v{a_}, 0, v{a_}")
        e(f"s_lshl_b32 s34, s{sRB}, 10\ns_add_u32 s34, s34, {WS_K2}\ns_lshl_b32 s30, s{sCB}, 6\ns_add_u32 s35, s34, s30")
        e(f"s_mov_b64 exec, 0xf\nbuffer_store_dwordx4 v[24:27], v12, {s(SWS,4)}, s35 offen sc1\ns_mov_b64 exec, -1")
        def chk2():
            X = A.newlabel("ckx")
            e(f"s_waitcnt vmcnt(1)\nv_and_b32 v234, v234, v235\nv_and_b32 v236, v236, v237\nv_and_b32 v234, v234, v236\nv_and_b32 v234, 1, v234\nv_cmp_ne_u32 vcc, 1, v234\ns_cbranch_vccz {X}")
            for d in range(3):
                e(f"s_add_u32 s38, s37, {2048*d}"); poll("s38", 64, voff=240, mask=1, t=8, sleep=8)
            A.label(X)
        H.atomic(chk2, 8)
        e("v_lshlrev_b32 v6, 4, v1")
        H.by(G2AT + 1); H.at(G2AT)
        ld = lambda: e(f"buffer_load_dwordx4 v[16:19], v6, {s(SWS,4)}, s34 offen sc1")
        ld()
        H.at(15)
        def fin():
            retry(ld, [16, 17, 18, 19], 64)
            e(f"v_add_u32 v6, {L_RA}, v6\nds_write_b128 v6, v[16:19]\ns_waitcnt lgkmcnt(0)")
        H.atomic(fin, 10)
        ST("st2_in")
        H.by(16)
    H.emit(17, HLIM4, NPF, more=True, pf_to=14)
    e("s_branch L_h4x")
    A.label("L_h4b")
    Q.q = list(q0); ST.names = list(n0)
    with HStream() as H:
        H.at(0)
        Q.wait(2)
        e(f"s_mul_i32 s34, s{sCB}, 896\ns_mul_i32 s30, s{sRB}, 56\ns_add_u32 s34, s34, s30\ns_add_u32 s34, s34, {WS_CS2}\ns_add_u32 s35, s34, {16*3584*4}")
        e(f"v_lshrrev_b32 v11, 2, v1\nv_mul_u32_u24 v11, {3584*4}, v11\nv_and_b32 v12, 3, v1\nv_lshlrev_b32 v12, 4, v12\nv_add_u32 v11, v11, v12")
        e("v_and_b32 v13, 3, v1\nv_cmp_eq_u32 s[38:39], 3, v13")
        H.at(CHKAT + 1)
        def ld1(): e(f"buffer_load_dwordx4 v[16:19], v11, {s(SWS,4)}, s34 offen sc1\nbuffer_load_dwordx4 v[20:23], v11, {s(SWS,4)}, s35 offen sc1")
        ld1()
        H.at(CHKAT + 3)
        def fix():
            for r in (18, 19, 22, 23): e(f"v_cndmask_b32_e64 v{r}, v{r}, 0, s[38:39]")
        H.atomic(lambda: retry(ld1, list(range(16, 24)), 64, post=fix), 14)
        e("v_pk_add_f32 v[16:17], v[16:17], v[20:21]\nv_pk_add_f32 v[18:19], v[18:19], v[22:23]")
        red16([16, 17, 18, 19], [28, 29, 30, 31])
        e(f"s_lshl_b32 s34, s{sCB}, 10\ns_add_u32 s34, s34, {WS_CF}\ns_lshl_b32 s30, s{sRB}, 6\ns_add_u32 s35, s34, s30")
        e(f"s_mov_b64 exec, 0xf\nbuffer_store_dwordx4 v[16:19], v12, {s(SWS,4)}, s35 offen sc1\ns_mov_b64 exec, -1")
        e(f"v_lshlrev_b32 v6, 4, v1\nv_lshrrev_b32 v7, 2, v1\nv_mul_u32_u24 v7, 56, v7\nv_add_u32 v7, v7, v12\nv_add_u32 v7, {L_CS}, v7")
        H.by(G2AT + 1); H.at(G2AT)
        ld = lambda: e(f"buffer_load_dwordx4 v[16:19], v6, {s(SWS,4)}, s34 offen sc1")
        ld()
        H.at(15)
        def fin():
            retry(ld, [16, 17, 18, 19], 64)
            e("ds_write_b64 v7, v[16:17]\ns_andn2_b64 exec, exec, s[38:39]\nds_write_b64 v7, v[18:19] offset:8\ns_mov_b64 exec, -1\ns_waitcnt lgkmcnt(0)")
        H.atomic(fin, 10)
        ST("st2_in")
        H.by(16)
    H.emit(17, HLIM4, NPF, more=True, pf_to=14)
    A.label("L_h4x")
    pf_stamp(ST)
    pf_finish()
    if WBL2 > 1:
        L = A.newlabel("nowb")
        e(f"s_or_b32 s30, s{sR}, s{sWN}\ns_cmp_lg_u32 s30, 0\ns_cbranch_scc1 {L}")
        for i in range(WBL2): e("s_barrier")
        e("buffer_wbl2 sc1")
        A.label(L)

def helper_rest(ST, Q):
    CSR = 16
    if SLDS:
        e(f"v_lshlrev_b32 v6, 4, v1\nv_add_u32 v6, s{sM0B}, v6\nv_add_u32 v6, {64*KB + 7*8192}, v6")
        for p in range(2):
            for i in range(7):
                dst = CSR + 16 * (i // 2) + 4 * (2 * p + i % 2) if i < 6 else CSR + 48 + 4 * p
                e(f"ds_read_b128 {v(dst,4)}, v6 offset:{p*16384 + (i//4)*8192 + (i%4)*1024}")
        e("s_waitcnt lgkmcnt(0)")
        for st in range(2, 6): G3.issue_b(Q, st)
        roles_84()
        e(f"s_lshl_b32 s35, s{sRB}, 1\ns_add_u32 s35, s35, s{sWN}\ns_mul_i32 s33, s35, {3584*4}\ns_mul_i32 s34, s{sCB}, 896\ns_add_u32 s33, s33, s34\ns_add_u32 s33, s33, {WS_CS2}")
        for j in range(4): colsum_block(j, CSR + 16 * j, 4 if j < 3 else 2, (8,) if j < 3 else (4, 8))
        with HStream() as H:
            H.at(1)
            Q.wait_all()
            H.by(2); H.at(3)
            for j in range(4): colsum_store(Q, j, 33, 8 if j < 3 else 4, "st2")
            b_src_w1()
            G4.p_setup_b(sWN)
        H.emit(17, 30, 1, every=3, pf_to=14)
        pf_stamp(ST)
        pf_until_ep(2)
        for st in (1, 2): G4.issue_b(Q, st)
    else:
        with HStream() as H:
            if B3LATE: H.at(0)
            for st in range(6, G3.NSB): G3.issue_b(Q, st)
            H.at(5)
            Q.wait_all()
            H.by(6)
            roles_84()
            b_src_w1()
            G4.p_setup_b(sWN)
            e(f"""
v_lshrrev_b32 v6, 3, v1
v_mul_u32_u24 v6, 7168, v6
v_and_b32 v7, 7, v1
v_lshl_add_u32 v6, v7, 4, v6
v_lshrrev_b32 v5, 2, v1
v_mul_u32_u24 v5, 7168, v5
v_and_b32 v7, 3, v1
v_lshl_add_u32 v5, v7, 4, v5
s_lshl_b32 s35, s{sRB}, 1
s_add_u32 s35, s35, s{sWN}
s_mul_i32 s32, s35, {32*7168}
s_mul_i32 s33, s{sCB}, 448
s_add_u32 s32, s32, s33
""")
            e(f"s_mul_i32 s33, s35, {3584*4}\ns_mul_i32 s34, s{sCB}, 896\ns_add_u32 s33, s33, s34\ns_add_u32 s33, s33, {WS_CS2}")
            if WARM4:
                e(f"s_and_b32 s36, s35, 15\ns_mul_i32 s36, s36, {4*7168}\ns_mul_i32 s37, s{sCB}, 448\ns_and_b32 s37, s37, {hex(0xffffff80)}\ns_add_u32 s36, s36, s37")
                e(f"v_bfe_u32 v8, v1, 2, 2\nv_mul_u32_u24 v8, 7168, v8\nv_and_b32 v9, 3, v1\nv_lshl_add_u32 v8, v9, 7, v8\ns_mov_b32 s37, {(G4.korder[1]-G4.korder[0])*64*7168}\nv_mul_lo_u32 v9, v3, s37\nv_add_u32 v8, v8, v9")
                assert G4.korder[0] == 0 and G4.korder[2] == 2 * G4.korder[1]
                H.at(CS2AT - 1)
                e(f"buffer_load_dword v244, v8, {s(SB,4)}, s36 offen"); Q.add("warm")
            H.at(CS2AT)
            for j in range(3):
                for i in range(4):
                    e(f"s_add_u32 s31, s32, {8*7168*i}\nbuffer_load_dwordx4 {v(CSR+4*(4*j+i),4)}, v6, {s(SB,4)}, s31 offen offset:{128*j}")
                Q.add(("w", j), 4)
            for i in range(2):
                e(f"s_add_u32 s31, s32, {16*7168*i}\nbuffer_load_dwordx4 {v(CSR+48+4*i,4)}, v5, {s(SB,4)}, s31 offen offset:384")
            Q.add(("w", 3), 2)
            if BTAIL:
                H.at(BT0); G4.issue_b(Q, 0)
                H.at(13); G4.issue_b(Q, 1)
        H.emit(17, 40, 1, every=3, pf_to=CS2AT, cw=(14,) if CWARM > 1 else ())
        pf_stamp(ST)
        for j in range(4):
            Q.wait(("w", j))
            colsum_block(j, CSR + 16 * j, 4 if j < 3 else 2, (8,) if j < 3 else (4, 8))
        pf_until_ep(2)
        if BSEEN:
            for j in range(4): colsum_store(Q, j, 33, 8 if j < 3 else 4, "st2")
            if BSEEN == 2: G4.issue_b(Q, 1)
            e(f"v_mov_b32 v12, {L_FULL}")
            lds_wait(12, 1, vFV, sleep=1)
            if BSEEN == 1: G4.issue_b(Q, 1)
        else:
            if not BLATE:
                for st in ((2,) if BTAIL else (1, 2)): G4.issue_b(Q, st)
            for j in range(4): colsum_store(Q, j, 33, 8 if j < 3 else 4, "st2")
    ST("cs2_pub")
    if BTAIL: Q.wait(0)
    if TWO: return helper4_two(ST, Q)
    with HStream() as H:
        e(f"s_lshl_b32 s36, s{sRB}, 11\ns_add_u32 s36, s36, {WS_F3}\ns_lshr_b32 s37, s{sR}, 1\ns_min_u32 s37, s37, 13\ns_lshl_b32 s37, s37, 11\ns_add_u32 s37, s37, {WS_F3}")
        H.at(0)
        if BSEEN:
            H.atomic(lambda: G4.issue_b(Q, 2), 0)
            Q.wait(1)
            H.at(1)
        Q.wait(2)
        e("v_lshrrev_b32 v240, 2, v1\nv_lshlrev_b32 v240, 7, v240\nv_and_b32 v241, 3, v1\nv_lshl_add_u32 v240, v241, 2, v240\nv_min_u32 v241, 47, v1\nv_lshlrev_b32 v241, 7, v241")
        H.at(CHKAT)
        e(f"buffer_load_dword v232, v240, {s(SWS,4)}, s36 offen sc1\nbuffer_load_dwordx4 v[234:237], v241, {s(SWS,4)}, s37 offen sc1")
        Q.add("chk", 2)
        H.at(CHKAT + 2)
        def chk():
            X = A.newlabel("ckx")
            Q.wait("chk")
            e(f"v_lshrrev_b32 v232, 1, v232\nv_and_b32 v232, v232, v236\nv_and_b32 v232, v232, v237\nv_and_b32 v234, v234, v235\nv_and_b32 v232, v232, v234\nv_and_b32 v232, 1, v232\nv_cmp_ne_u32 vcc, 1, v232\ns_cbranch_vccz {X}")
            poll("s36", 64, voff=240, mask=2, t=8, sleep=8)
            for d in range(3):
                e(f"s_add_u32 s38, s37, {2048*d}"); poll("s38", 64, voff=240, mask=1, t=8, sleep=8)
            A.label(X)
        H.atomic(chk, 10)
        e(f"v_lshlrev_b32 v11, 4, v1\ns_lshl_b32 s36, s35, 14\ns_add_u32 s36, s36, {WS_STAT}\ns_add_u32 s37, s36, 4096\ns_add_u32 s38, s36, 8192\ns_add_u32 s39, s36, 12288")
        def ldst():
            for i in range(16): e(f"buffer_load_dwordx4 {v(96+4*i,4)}, v11, {s(SWS,4)}, s{36+i//4} offen offset:{1024*(i%4)} sc1")
        if not GB: ldst()
        Q.add("stat", 16)
        e(f"s_mul_i32 s33, s{sCB}, 896\ns_mul_i32 s34, s{sWN}, 448\ns_add_u32 s33, s33, s34\ns_add_u32 s33, s33, {WS_CS2}")
        e(f"v_and_b32 v7, 31, v1\nv_lshlrev_b32 v7, 4, v7\nv_lshrrev_b32 v6, 5, v1\nv_mul_u32_u24 v6, {3584*4}, v6\nv_add_u32 v6, v6, v7")
        M28 = ((1 << 28) - 1) | (((1 << 28) - 1) << 32)
        def ld(ks=range(16)):
            for k in ks: e(f"s_add_u32 s31, s33, {k*2*3584*4}\nbuffer_load_dwordx4 {v(16+4*k,4)}, v6, {s(SWS,4)}, s31 offen sc1")
        if GB:
            H.at(GB)
            def burst():
                ldst(); set_exec(M28); ld(); e("s_mov_b64 exec, -1")
            H.atomic(burst, 0)
            H.at(GB + 1)
        else:
            for c in range(4):
                def ldc(c=c):
                    set_exec(M28); ld(range(4 * c, 4 * c + 4)); e("s_mov_b64 exec, -1")
                H.atomic(ldc, 4 * VMC)
        Q.add("cs", 16)
        Q.wait("stat")
        for h in range(2):
            e(f"v_pk_add_f32 {v(160+2*h,2)}, {v(96+2*h,2)}, {v(100+2*h,2)}")
            for i in range(2, 16): e(f"v_pk_add_f32 {v(160+2*h,2)}, {v(160+2*h,2)}, {v(96+4*i+2*h,2)}")
        for h in range(2): e(f"v_mov_b32 v{164+h}, v{160+2*h}")
        for h in range(2): e(f"v_permlane32_swap_b32 v{160+2*h}, v{164+h}")
        for h in range(2): e(f"v_add_f32 v{160+2*h}, v{160+2*h}, v{164+h}\nv_mul_f32 v{166+h}, {f32(1/32)}, v{160+2*h}\nv_mov_b32 v{168+h}, 0")
        for i in range(16):
            for h in range(2):
                r = 96 + 4 * i + 2 * h
                e(f"v_sub_f32 v{r}, v{r}, v{166+h}\nv_fma_f32 v{168+h}, v{r}, v{r}, v{168+h}")
        e(f"v_mov_b32 v13, {f32(1/32)}")
        for h in range(2): e(f"v_fma_f32 v{161+2*h}, v{168+h}, v13, v{161+2*h}\nv_mov_b32 v{164+h}, v{161+2*h}")
        for h in range(2): e(f"v_permlane32_swap_b32 v{161+2*h}, v{164+h}")
        for h in range(2):
            a_, b_ = 160 + 2 * h, 161 + 2 * h
            e(f"v_add_f32 v{b_}, v{b_}, v{164+h}")
            ln_finish(a_, b_, 1024)
            e(f"v_mul_f32 v{b_}, {f32(-LOG2E)}, v{b_}\nv_mul_f32 v{a_}, v{a_}, v{b_}\nv_sub_f32 v{a_}, 0, v{a_}")
        e(f"s_lshl_b32 s30, s{sWN}, 9\ns_add_u32 s30, s30, {L_RA}\nv_add_u32 v13, s30, v7\nds_write_b128 v13, v[160:163]")
        def fin():
            retry(ld, list(range(16, 80)), M28)
            e("s_mov_b64 exec, -1")
        H.atomic(fin, 36)
        for k in range(1, 16): e(f"v_pk_add_f32 v[16:17], v[16:17], {v(16+4*k,2)}\nv_pk_add_f32 v[18:19], v[18:19], {v(18+4*k,2)}")
        for h in range(4): e(f"v_mov_b32 v{20+h}, v{16+h}")
        for h in range(4): e(f"v_permlane32_swap_b32 v{16+h}, v{20+h}")
        e("v_pk_add_f32 v[16:17], v[16:17], v[20:21]\nv_pk_add_f32 v[18:19], v[18:19], v[22:23]")
        e(f"s_add_u32 s34, s34, {L_CS}\nv_add_u32 v7, s34, v7"); set_exec((1 << 28) - 1)
        e("ds_write_b128 v7, v[16:19]\ns_mov_b64 exec, -1\ns_waitcnt lgkmcnt(0)")
        ST("st2_in")
        H.by(16)
        if W2NT:
            H.at(W2AT)
            def w2pf():
                srd(SB, pW2, 7 * MB)
                e(f"s_lshr_b32 s36, s{sG}, 1\ns_mul_i32 s36, s36, {896*2048}\ns_lshl_b32 s37, s{sR}, 1\ns_add_u32 s37, s37, s{sWN}\ns_mul_i32 s37, s37, {56*128}\ns_add_u32 s36, s36, s37\nv_lshlrev_b32 v240, 7, v1")
                set_exec((1 << 56) - 1)
                for k in range(2): e(f"s_add_u32 s31, s36, {k*64*56*128}\nbuffer_load_dword v{244+k}, v240, {s(SB,4)}, s31 offen {W2NT.replace('none','')}")
                e("s_mov_b64 exec, -1")
            H.atomic(w2pf, 0)
    if NOH4:
        keep_ = []
        for it in H.items:
            keep_.append(it)
            if it[0] == "at" and it[1] == CHKAT: break
        if NOH4 == 2: keep_ = [it for it in H.items if not (it[0] == "g" and any("buffer_load" in l for l in it[1]) )]
        H.items = keep_
    H.emit(17, HLIM4, NPF, more=True, pf_to=14, cw=(14,) if CWARM > 1 else ())
    pf_stamp(ST)
    pf_finish()
    if RP5:
        roles_w2(); b_src_w2(); G5.p_setup_b(sWN); G5.rp_addr()
        Q.q = []
        G5.rp_load(Q, RP5, 16)
        with HStream() as H:
            for i in range(RP5):
                H.at(i + 1); H.atomic(lambda: G5.rp_drain(Q, i, 16), 0)
        H.emit(RP5 + 2, 99, 0)
    if CANARY:
        roles_w2()
        Q.q = []
        with HStream() as H:
            e(f"s_lshl_b32 s33, s{sRB}, 3\ns_add_u32 s33, s33, s{sCB}\ns_mul_i32 s34, s33, {256*KB}\ns_add_u32 s34, s34, {WS_PART}\ns_lshl_b32 s30, s{sWN}, 13\ns_add_u32 s34, s34, s30")
            e(f"s_lshl_b32 s30, s{sKS}, 14\ns_add_u32 s34, s34, s30\nv_lshlrev_b32 v2, 4, v1")
            for k in range(4): e(f"v_mov_b32 v{8+k}, -1")
            e(f"s_lshl_b32 s37, s33, 6\ns_lshl_b32 s30, s{sKS}, 4\ns_add_u32 s37, s37, s30\ns_lshl_b32 s30, s{sWN}, 3\ns_add_u32 s37, s37, s30\ns_add_u32 s37, s37, {WS_F5}")
            H.at(PFILL)
            for d in range(1, 4):
                for hb in range(2):
                    e(f"s_add_u32 s31, s{sKS}, {d}\ns_and_b32 s31, s31, 3\ns_lshl_b32 s31, s31, 16\ns_add_u32 s31, s31, s34\ns_add_u32 s31, s31, {hb*4096}")
                    for b in range(4): e(f"buffer_store_dwordx4 v[8:11], v2, {s(SWS,4)}, s31 offen offset:{b*1024} sc1")
            H.by(PFILL + 7); H.at(PFILL + 8)
            e(f"s_waitcnt vmcnt(0)\nv_mov_b32 v12, 1\nv_lshlrev_b32 v13, 2, v1\ns_mov_b64 exec, 3\nbuffer_store_dword v12, v13, {s(SWS,4)}, s37 offen sc1\ns_mov_b64 exec, -1")
        H.emit(PFILL + 10, 24, 0)
    if W2NT:
        set_exec((1 << 56) - 1)
        for k in range(2, 4): e(f"s_add_u32 s31, s36, {k*64*56*128}\nbuffer_load_dword v{244+k}, v240, {s(SB,4)}, s31 offen {W2NT.replace('none','')}")
        e("s_mov_b64 exec, -1")

def producer(ST):
    Q = VmQ()
    pf_init()
    e(f"s_cmp_eq_u32 s{sW}, 2\ns_cbranch_scc1 L_h0\ns_cmp_eq_u32 s{sW}, 3\ns_cbranch_scc1 L_h1")
    SD_ = ST.fork("D"); dma_phase1(SD_, Q)
    e("s_branch L_att")
    A.label("L_h0")
    if HPRIO: e(f"s_setprio {HPRIO}")
    SH = ST.fork("H"); helper0_phase1(SH, VmQ())
    e("s_branch L_att")
    A.label("L_h1")
    if HPRIO: e(f"s_setprio {HPRIO}")
    SH = ST.fork("H"); helper1_phase1(SH, VmQ())
    while len(SH.names) < len(SD_.names): SH.names.append("-")
    while len(SD_.names) < len(SH.names): SD_.names.append("-")
    A.label("L_att")
    e(f"s_setprio {APRIO}")
    n0 = len(SD_.names)
    neighbours_and_attention(SD_, Q)
    SH.names += SD_.names[n0:]
    e(f"s_cmp_ge_u32 s{sW}, 2\ns_cbranch_scc1 L_hrest")
    dma_rest(SD_, Q)
    SD_.flush()
    e("s_endpgm")
    A.label("L_hrest")
    e(f"s_setprio {HPRIO}")
    helper_rest(SH, VmQ())
    SH.flush()

def main():
    A.begin_kernel(KN)
    if STAMPS: e(f"{STAMP_OP} {s(sST,2)}")
    e(f"""
s_cmp_ge_u32 s2, 256
s_cbranch_scc1 L_end
s_load_dwordx16 s[48:63], s[0:1], 0
s_load_dwordx2 s[64:65], s[0:1], 64
v_lshrrev_b32 v2, 6, v0
v_and_b32 v1, 63, v0
v_readfirstlane_b32 s{sWAVE}, v2
v_lshrrev_b32 v3, 4, v1
v_and_b32 v4, 15, v1
s_and_b32 s{sG}, s2, 7
s_mov_b32 s3, 0
s_lshr_b32 s{sR}, s2, 3
s_and_b32 s{sW}, s{sWAVE}, 3
s_lshr_b32 s{sWM}, s{sW}, 1
s_and_b32 s{sWN}, s{sW}, 1
""")
    roles_p1()
    e(f"s_lshl_b32 s{sOWN}, s{sCB}, 4\ns_add_u32 s{sOWN}, s{sOWN}, s{sRB}\ns_lshl_b32 s{sOWN}, s{sOWN}, 16")
    e(f"s_add_u32 s{sROT}, s{sRB}, s{sCB}\ns_and_b32 s{sROT}, s{sROT}, {15 if ROT1 else 0}")
    if CWC == 3:
        Lq = A.newlabel("ncw")
        e(f"s_cmp_ge_u32 s{sWAVE}, 4\ns_cbranch_scc1 {Lq}")
        code_warm(True)
        A.label(Lq)
    e(f"s_lshl_b32 s{sBC}, s{sCB}, 7\ns_mov_b32 s{sBR}, 0\ns_lshl_b32 s{sAR}, s{sRB}, 18")
    G1.p_setup_a(); G1.p_setup_b()
    sync_regs()
    e("s_waitcnt lgkmcnt(0)")
    if STAMPS: e(f"s_mov_b32 s78, s{sST}\ns_mov_b32 s0, 0\ns_mov_b32 s1, 0")
    srd(SX, pX, 4 * MB); srd(SB, pWQKV, 6 * MB)
    if WSOFF: e(f"s_add_u32 s{pWS}, s{pWS}, {WSOFF*MB}\ns_addc_u32 s{pWS+1}, s{pWS+1}, 0")
    srd(SWS, pWS, WS_BYTES); srd(SD, pDBG, 256)
    if JIT: jitter()
    e(f"s_cmp_lt_u32 s{sWAVE}, 4\ns_cbranch_scc1 L_cons")
    producer(Stamper("P"))
    A.label("L_end")
    e("s_endpgm")
    A.label("L_cons")
    if CPRIO: e(f"s_setprio {CPRIO}")
    consumer(Stamper("C"))
    A.lines.append(f".fill ({NCODE*8192} - (. - {KN})) / 4, 4, 0xbf810000")
    A.end_kernel(KN, 256, 102)
    A.lines = hazard.fix(A.lines)
    hdr = open("sequential_preLN__sliding_block__dense_activation_silu__prompt.s.ref").read().split("; Override launch")[0]
    hdr += f"; @launch grid=(256,1,1) block=(512,1,1) lds={LDS_BYTES}\n"
    hdr += """; Generated by a hand-written Python emitter (dev/mega4.py). One persistent kernel, 256 workgroups (one per CU), 8 waves each:
;   waves 0-3 MFMA consumers, 4-5 LDS-DMA loaders, 6-7 helpers (LayerNorm statistics, column sums, prefetch).
;   phases: QKV GEMM (LN1 folded into the epilogue) -> sliding-window attention -> WO GEMM + residual
;           -> W1 GEMM (LN2 folded) + SiLU -> W2 GEMM (split-K 4, reduce-scatter) + residual.
;   Intermediates live in d_ws in MFMA fragment order. Hand-offs use flags / sentinels that every launch re-initialises
"""
    for k, nm in STAMP_NAMES.items(): hdr += f"; stamps {k}: {' '.join(nm)}\n"
    sys.stdout.write(A.text(hdr))
main()
```
